```python
import torch

def _softmax(x, axis=-1):
    return torch.softmax(x, dim=axis)
def _gelu(x):
    return torch.nn.functional.gelu(x, approximate="tanh")
def _silu(x):
    return torch.nn.functional.silu(x)
def _sigmoid(x):
    return torch.sigmoid(x)
def _layernorm(x, axis=-1, eps=1e-5):
    m = x.mean(dim=axis, keepdim=True)
    v = x.var(dim=axis, keepdim=True, unbiased=False)
    return (x - m) / torch.sqrt(v + eps)
def _scatter_add(tgt, idx, src, axis=0):
    return tgt.clone().index_add_(axis, idx, src)
def _segment_sum(src, seg, n):
    out = torch.zeros((n,) + src.shape[1:], dtype=src.dtype)
    return out.index_add_(0, seg, src)
def _pad(x, pw):
    flat = tuple(v for pair in reversed(pw) for v in pair)
    return torch.nn.functional.pad(x, flat)

kernel_name = 'standalone__mha_block_cached__near_ridge'

def setup_inputs():

    _w = (lambda a: (lambda t: t.to(torch.bfloat16) if t.is_floating_point() else t)(torch.as_tensor(a)))
    B, Sq, D = 8, 112, 512
    H, Sk, Dh = 32, 1024, 128
    return {
        "x": _w((lambda *s: torch.randn(*s, dtype=torch.bfloat16) * 0.8)(B, Sq, D)),
        "k_cache": _w((lambda *s: torch.randn(*s, dtype=torch.bfloat16) * 0.8)(B, H, Sk, Dh)),
        "v_cache": _w((lambda *s: torch.randn(*s, dtype=torch.bfloat16) * 0.05)(B, H, Sk, Dh)),
        "wq": _w((lambda *s: torch.randn(*s, dtype=torch.bfloat16) * 0.8)(D, H * Dh) * (D ** -0.5)),
        "wo": _w((lambda *s: torch.randn(*s, dtype=torch.bfloat16) * 0.05)(H * Dh, D) * ((H * Dh) ** -0.5)),
    }

def reference(x, k_cache, v_cache, wq, wo):
    B, Sq, D = x.shape
    H, Dh = 32, 128
    q = (lambda x, *d: x.permute(*d))((x @ wq).reshape(B, Sq, H, Dh), 0, 2, 1, 3)
    scores = torch.einsum("bhqd,bhkd->bhqk", q, k_cache) * (Dh ** -0.5)
    p = _softmax(scores, axis=-1)
    o = torch.einsum("bhqk,bhkd->bhqd", p, v_cache)
    return (lambda x, *d: x.permute(*d))(o, 0, 2, 1, 3).reshape(B, Sq, H * Dh) @ wo
```

```python
import re


def R(base, n=1):
    return list(range(base, base + n))


def vr(base, n=1):
    return "v%d" % base if n == 1 else "v[%d:%d]" % (base, base + n - 1)


def sr(base, n=1):
    return "s%d" % base if n == 1 else "s[%d:%d]" % (base, base + n - 1)


class Ins:
    __slots__ = ("text", "kind", "rd", "wr", "srd", "swr", "ab", "c", "wide", "lg", "vm", "n")

    def __init__(self, text, kind, rd=(), wr=(), srd=(), swr=(), ab=(), c=(), wide=(), lg=None, vm=None, n=1):
        self.text = text
        self.kind = kind
        self.rd = set(rd)
        self.wr = set(wr)
        self.srd = set(srd)
        self.swr = set(swr)
        self.ab = set(ab)
        self.c = tuple(c)
        self.wide = set(wide)
        self.lg = lg
        self.vm = vm
        self.n = n


_REG = re.compile(r"(?<![\w.])(v|s)(\d+)(?![\w:])|(?<![\w.])(v|s)\[(\d+):(\d+)\]")


def regs_in(op):
    v, s = [], []
    for m in _REG.finditer(op):
        if m.group(1):
            k, lo, hi = m.group(1), int(m.group(2)), int(m.group(2))
        else:
            k, lo, hi = m.group(3), int(m.group(4)), int(m.group(5))
        (v if k == "v" else s).extend(range(lo, hi + 1))
    s = ["s%d" % x for x in s]
    for nm in ("vcc", "m0", "exec"):
        if re.search(r"(?<![\w])%s(_lo|_hi)?(?![\w])" % nm, op):
            s.append(nm)
    return v, s


TRANS = ("v_exp_f32", "v_rcp_f32", "v_log_f32", "v_rsq_f32", "v_sqrt_f32")


def parse(text):
    t = text.split(";")[0].strip()
    if not t:
        return Ins(text, "comment", n=0)
    if t.endswith(":"):
        return Ins(text, "label", n=0)
    if t.startswith("."):
        return Ins(text, "comment", n=0)
    parts = t.split(None, 1)
    op = parts[0]
    args = [a.strip() for a in parts[1].split(",")] if len(parts) > 1 else []
    if op == "s_nop":
        return Ins(text, "nop", n=int(args[0]) + 1)
    if op == "s_waitcnt":
        lg = re.search(r"lgkmcnt\((\d+)\)", t)
        vm = re.search(r"vmcnt\((\d+)\)", t)
        return Ins(text, "wait", lg=int(lg.group(1)) if lg else None, vm=int(vm.group(1)) if vm else None)
    if op == "s_barrier":
        return Ins(text, "barrier")
    if op.startswith("s_cbranch") or op == "s_branch" or op == "s_endpgm":
        return Ins(text, "branch", srd=["vcc"] if "vcc" in op else [])
    if op.startswith("s_load") or op.startswith("s_memtime") or op.startswith("s_memrealtime"):
        _, d = regs_in(args[0])
        s = []
        for a in args[1:]:
            s += regs_in(a)[1]
        return Ins(text, "smem", srd=s, swr=d)
    if op.startswith("s_"):
        if op.startswith("s_cmp") or op in ("s_setprio", "s_sleep"):
            s = []
            for a in args:
                s += regs_in(a)[1]
            return Ins(text, "salu", srd=s)
        _, d = regs_in(args[0])
        s = []
        for a in args[1:]:
            s += regs_in(a)[1]
        return Ins(text, "salu", srd=s, swr=d)
    if op.startswith("v_mfma"):
        d = regs_in(args[0])[0]
        a = regs_in(args[1])[0]
        b = regs_in(args[2])[0]
        c = regs_in(args[3])[0]
        return Ins(text, "mfma", rd=a + b + c, wr=d, ab=a + b, c=c)
    if op.startswith("ds_read"):
        d = regs_in(args[0])[0]
        a = regs_in(args[1].split()[0])[0]
        return Ins(text, "ds_rd", rd=a, wr=d)
    if op.startswith("ds_write"):
        v = []
        for a in args:
            v += regs_in(a.split()[0])[0]
        return Ins(text, "ds_wr", rd=v)
    if op.startswith("buffer_") or op.startswith("global_"):
        lds = re.search(r"\blds\b", t) is not None
        allv, alls = [], []
        per = [regs_in(a) for a in args]
        for v, s in per:
            allv += v
            alls += s
        if lds:
            return Ins(text, "vm_dma", rd=allv, srd=alls + ["m0"])
        if "load" in op:
            d = per[0][0]
            rest = []
            for v, s in per[1:]:
                rest += v
            return Ins(text, "vm_ld", rd=rest, wr=d, srd=alls)
        if op.startswith("buffer_"):
            data = per[0][0]
        else:
            data = per[1][0]
        wide = data if ("x4" in op or "x3" in op) else []
        return Ins(text, "vm_st", rd=allv, srd=alls, wide=wide)
    if op.startswith("v_"):
        base = op.replace("_e32", "").replace("_e64", "")
        if base in ("v_readfirstlane_b32", "v_readlane_b32"):
            v, s = regs_in(args[1])
            return Ins(text, "rfl", rd=v, swr=regs_in(args[0])[1])
        if base.startswith("v_permlane"):
            v = regs_in(args[0])[0] + regs_in(args[1])[0]
            return Ins(text, "perm", rd=v, wr=v)
        if base.startswith("v_cmp"):
            v, s = [], []
            for a in args[1:]:
                x, y = regs_in(a)
                v += x
                s += y
            return Ins(text, "valu", rd=v, srd=s, swr=regs_in(args[0])[1])
        d, ds = regs_in(args[0])
        v, s = [], []
        for a in args[1:]:
            x, y = regs_in(a)
            v += x
            s += y
        if base.startswith("v_fmac"):
            v += d
        kind = "trans" if base in TRANS else "valu"
        return Ins(text, kind, rd=v, wr=d, srd=s, swr=ds)
    raise ValueError("cannot parse: " + text)


VALUISH = ("valu", "trans", "perm", "rfl")
VMEM = ("vm_ld", "vm_st", "vm_dma")


def need_states(p, c):
    n = 0
    if p.kind in VALUISH:
        if c.kind == "mfma" and (p.wr & c.rd):
            n = max(n, 2)
        if c.kind == "perm" and (p.wr & c.rd):
            n = max(n, 2)
        if c.kind == "rfl" and (p.wr & c.rd):
            n = max(n, 1)
        if p.kind == "trans" and c.kind in ("valu", "perm", "rfl") and (p.wr & c.rd):
            n = max(n, 1)
        if p.swr:
            if c.kind in VALUISH and (p.swr & c.srd):
                n = max(n, 2 if c.kind != "rfl" else 4)
            if c.kind in VMEM and (p.swr & c.srd):
                n = max(n, 5)
            if c.kind in ("salu", "branch") and (p.swr & c.srd):
                n = max(n, 1)
    if p.kind == "mfma":
        if c.kind == "mfma":
            if p.wr & c.ab:
                n = max(n, 12)
            if p.wr & set(c.c):
                if tuple(sorted(p.wr)) != tuple(c.c):
                    n = max(n, 10)
            elif p.wr & c.wr:
                n = max(n, 12)
        elif c.kind in VALUISH or c.kind in VMEM or c.kind in ("ds_rd", "ds_wr"):
            if p.wr & (c.rd | c.wr):
                n = max(n, 12)
            if c.kind in VALUISH and (set(p.c) & c.wr):
                n = max(n, 7)
    if p.kind == "salu" and "m0" in p.swr and c.kind == "vm_dma":
        n = max(n, 1)
    if p.kind == "vm_st" and p.wide and (p.wide & c.wr):
        n = max(n, 2 if c.kind in VALUISH or c.kind == "mfma" else 1)
    return n


def pad_hazards(seq, hist=(), check_only=False, where=""):
    out = []
    win = [i for i in hist if i.n > 0][-24:]
    for c in seq:
        if c.n == 0:
            out.append(c)
            continue
        need = 0
        dist = 0
        for p in reversed(win):
            req = need_states(p, c)
            if req > dist:
                need = max(need, req - dist)
            dist += p.n
            if dist >= 16:
                break
        if need > 0:
            if check_only:
                raise RuntimeError("hazard (%s): need %d more states before: %s" % (where, need, c.text))
            nop = parse("s_nop %d" % (need - 1))
            out.append(nop)
            win.append(nop)
        out.append(c)
        win.append(c)
        win = win[-24:]
    return out


def insert_waits(seq, lgq=None, vmq=None):
    lgq = list(lgq or [])
    vmq = list(vmq or [])
    out = []
    for c in seq:
        if c.kind == "wait":
            if c.lg is not None:
                assert not any(e == "smem" for e in lgq) or c.lg == 0, "counted lgkm wait with SMEM in flight"
                lgq = lgq[len(lgq) - c.lg:] if c.lg < len(lgq) and c.lg > 0 else ([] if c.lg == 0 else lgq)
            if c.vm is not None:
                vmq = vmq[len(vmq) - c.vm:] if c.vm < len(vmq) and c.vm > 0 else ([] if c.vm == 0 else vmq)
            out.append(c)
            continue
        touch = c.rd | c.wr
        lg = vm = None
        for i in range(len(lgq) - 1, -1, -1):
            e = lgq[i]
            if e != "smem" and (e & touch):
                lg = len(lgq) - 1 - i
                break
        if lg is not None and any(e == "smem" for e in lgq):
            lg = 0
        for i in range(len(vmq) - 1, -1, -1):
            if vmq[i] & touch:
                vm = len(vmq) - 1 - i
                break
        if lg is not None or vm is not None:
            t = "s_waitcnt"
            if vm is not None:
                assert vm <= 63
                t += " vmcnt(%d)" % vm
                vmq = vmq[len(vmq) - vm:] if vm > 0 else []
            if lg is not None:
                lg = min(lg, 15)
                t += " lgkmcnt(%d)" % lg
                lgq = lgq[len(lgq) - lg:] if lg > 0 else []
            out.append(parse(t))
        if c.kind == "ds_rd":
            lgq.append(set(c.wr))
        elif c.kind == "ds_wr":
            lgq.append(set())
        elif c.kind == "smem":
            lgq.append("smem")
        elif c.kind == "vm_ld":
            vmq.append(set(c.wr))
        elif c.kind in ("vm_st", "vm_dma"):
            vmq.append(set())
        out.append(c)
    return out, lgq, vmq


class Block:
    def __init__(self, name=""):
        self.name = name
        self.ins = []

    def __call__(self, text):
        for line in text.split("\n"):
            if line.strip():
                self.ins.append(parse(line.strip()))
        return self

    def add(self, lst):
        for x in lst:
            if isinstance(x, str):
                self(x)
            else:
                self.ins.append(x)

    def finish(self, hist=(), lgq=None, vmq=None):
        seq, lgq, vmq = insert_waits(self.ins, lgq, vmq)
        self.ins = pad_hazards(seq, hist)
        return lgq, vmq

    def text(self):
        o = []
        for i in self.ins:
            o.append(i.text if i.kind in ("label",) else "    " + i.text)
        return "\n".join(o)


def interleave(mfmas, gaps):
    out = []
    for m, g in zip(mfmas, gaps):
        out.append(m)
        out.extend(g)
    return out
```

```python
import sys, struct, math
from asmgen import *

OPT = dict(stamps=0, nt_kv="nt", nt_q="nt", nt_wo="nt", thr=8.0, codepf=0, force_rescale=0)
for a in sys.argv[1:]:
    k, v = a.split("=")
    OPT[k] = type(OPT[k])(v) if not isinstance(OPT[k], str) else v.replace("_", " ").strip()
STAMPS = OPT["stamps"]

KNAME = "standalone__mha_block_cached__near_ridge_kernel"


def f32(x):
    return "0x%08x" % struct.unpack("<I", struct.pack("<f", x))[0]


CSC = math.log2(math.e) / math.sqrt(128.0)

KRING, VRING, STG = 0, 49152, 98304
MB_OFF, E1_OFF, E2_OFF, ST_OFF = 0x0, 0x100000, 0x1000000, 0x4000000
sX, sK, sV, sWQ, sWO, sOUT, sDBG, sWS = 4, 6, 8, 10, 12, 14, 16, 18
sWAVE, sG, sB, sHN, sH, sWGL = 20, 21, 22, 23, 24, 25
SA, SB, SC = 28, 32, 36
sOFF, sLDS, sCNT, sT0, sT1, sT2 = 40, 41, 42, 43, 44, 45
sCS, sPAIR, sDEL, sE1, sE2P, sE2C = 46, 47, 48, 49, 50, 51
sK16 = 54
sRET = 52
sSTAMP = 64
vLANE = 0
vT1, vT2, vT3 = 1, 2, 3
vE, vLO, vM, vDUM = 4, 5, 6, 7
aK, aV, aX, aW = 8, 16, 20, 24
vNM, vTHR, vL, vTM = 28, 29, 30, 31
ACC, QF, S0, S1, KF, VF, XB = 32, 96, 128, 144, 160, 192, 224
PK = XB

nstamp = [0]


def stamp(b, idx):
    if STAMPS:
        b("s_memrealtime s[%d:%d]" % (sSTAMP + 2 * idx, sSTAMP + 2 * idx + 1))
        b("s_waitcnt lgkmcnt(0)")


def srd(b, dst, ptr, off_sreg, size):
    if off_sreg is None:
        b("s_mov_b32 s%d, s%d" % (dst, ptr))
        b("s_mov_b32 s%d, s%d" % (dst + 1, ptr + 1))
    else:
        b("s_add_u32 s%d, s%d, s%d" % (dst, ptr, off_sreg))
        b("s_addc_u32 s%d, s%d, 0" % (dst + 1, ptr + 1))
    b("s_mov_b32 s%d, %s" % (dst + 2, size))
    b("s_mov_b32 s%d, 0x20000" % (dst + 3))


def dma_group(b, S, voffs, soff, flags, n=4):
    for p in range(n):
        o = " offset:%d" % (p * 1024) if p else ""
        b("buffer_load_dwordx4 v%d, s[%d:%d], s%d offen%s %s lds" % (voffs[p], S, S + 3, soff, o, flags))


blocks = []


def new(name):
    b = Block(name)
    blocks.append(b)
    return b


e = new("entry")
e("s_cmp_ge_u32 s2, 256")
e("s_cbranch_scc1 L_end")
e("s_load_dwordx16 s[4:19], s[0:1], 0")
if STAMPS:
    e("s_memrealtime s[%d:%d]" % (sSTAMP, sSTAMP + 1))
e("v_lshrrev_b32 v1, 6, v0")
e("v_and_b32 v0, 63, v0")
e("v_readfirstlane_b32 s%d, v1" % sWAVE)
e("s_and_b32 s%d, s2, 7" % sG)
e("s_lshr_b32 s%d, s2, 5" % sB)
e("s_lshr_b32 s%d, s2, 3" % sHN)
e("s_and_b32 s%d, s%d, 3" % (sHN, sHN))
e("s_lshl_b32 s%d, s%d, 2" % (sH, sG))
e("s_add_u32 s%d, s%d, s%d" % (sH, sH, sHN))
e("s_lshl_b32 s%d, s%d, 5" % (sWGL, sB))
e("s_add_u32 s%d, s%d, s%d" % (sWGL, sWGL, sH))
e("s_cmp_lt_u32 s%d, 4" % sWAVE)
e("s_cbranch_scc1 L_compute")
e("v_lshrrev_b32 v1, 4, v0")
e("v_and_b32 v3, 15, v0")
e("v_lshlrev_b32 v2, 2, v1")
e("v_xor_b32 v2, v2, v3")
e("v_lshlrev_b32 v2, 4, v2")
e("v_lshl_add_u32 v14, v1, 10, v2")
e("v_add_u32 v15, 3072, v14")
e("v_add_u32 v16, 6144, v14")
e("v_add_u32 v17, 9216, v14")
e("s_cmp_eq_u32 s%d, 6" % sWAVE)
e("s_cbranch_scc1 L_ldx")
e("s_cmp_eq_u32 s%d, 7" % sWAVE)
e("s_cbranch_scc1 L_ldw")
e("s_cmp_eq_u32 s%d, 5" % sWAVE)
e("s_cbranch_scc1 L_ldv")
e.finish()

WOV = [14, 15, 16, 17]


def wo_srd(b):
    b("s_lshl_b32 s%d, s%d, 19" % (sT0, sG))
    b("s_lshl_b32 s%d, s%d, 8" % (sT1, sHN))
    b("s_add_u32 s%d, s%d, s%d" % (sT0, sT0, sT1))
    b("s_sub_u32 s%d, 0x400000, s%d" % (sT1, sT0))
    srd(b, SB, sWO, sT0, "s%d" % sT1)


def kv_tile(b, voffs, flags):
    b("s_mov_b32 m0, s%d" % sLDS)
    b("s_add_u32 s%d, s%d, 4096" % (sT0, sLDS))
    dma_group(b, SA, voffs, sOFF, flags)
    b("s_mov_b32 m0, s%d" % sT0)
    b("s_add_u32 s%d, s%d, 4096" % (sOFF, sOFF))
    dma_group(b, SA, voffs, sOFF, flags)
    b("s_add_u32 s%d, s%d, 4096" % (sOFF, sOFF))


def ring_adv(b, base):
    b("s_add_u32 s%d, s%d, 8192" % (sLDS, sLDS))
    b("s_cmp_eq_u32 s%d, %d" % (sLDS, base + 49152))
    b("s_cselect_b32 s%d, %d, s%d" % (sLDS, base, sLDS))


def wo_tile(b):
    b("s_mov_b32 m0, s%d" % sLDS)
    b("s_add_u32 s%d, s%d, 4096" % (sT0, sLDS))
    dma_group(b, SB, WOV, sOFF, OPT["nt_wo"])
    b("s_mov_b32 m0, s%d" % sT0)
    b("s_add_u32 s%d, s%d, 16384" % (sOFF, sOFF))
    dma_group(b, SB, WOV, sOFF, OPT["nt_wo"])
    b("s_add_u32 s%d, s%d, 16384" % (sOFF, sOFF))


def loop_begin(b, label, n):
    b("s_mov_b32 s%d, %d" % (sCNT, n))
    b(label + ":")


def loop_end(b, label):
    b("s_sub_u32 s%d, s%d, 1" % (sCNT, sCNT))
    b("s_cmp_lg_u32 s%d, 0" % sCNT)
    b("s_cbranch_scc1 " + label)


b = new("ldk")
b("L_ldk:")
for p in range(4):
    b("v_add_u32 v4, %d, v1" % (4 * p))
    b("v_xor_b32 v4, v4, v3")
    b("v_lshlrev_b32 v4, 4, v4")
    b("v_lshl_add_u32 v%d, v1, 8, v4" % (10 + p))
b("s_lshl_b32 s%d, s%d, 18" % (sT0, sWGL))
b("s_waitcnt lgkmcnt(0)")
srd(b, SA, sK, sT0, "0x40000")
b("s_mov_b32 s%d, 0" % sOFF)
b("s_mov_b32 s%d, %d" % (sLDS, KRING))
KV4 = [10, 11, 12, 13]
loop_begin(b, "L_k0", 6)
kv_tile(b, KV4, OPT["nt_kv"])
ring_adv(b, KRING)
loop_end(b, "L_k0")
wo_srd(b)
for i in range(7):
    b("s_barrier")
b("s_waitcnt vmcnt(32)")
b("s_barrier")
b("s_waitcnt vmcnt(24)")
b("s_barrier")
kv_tile(b, KV4, OPT["nt_kv"])
ring_adv(b, KRING)
kv_tile(b, KV4, OPT["nt_kv"])
ring_adv(b, KRING)
loop_begin(b, "L_k1", 24)
b("s_waitcnt vmcnt(32)")
b("s_barrier")
kv_tile(b, KV4, OPT["nt_kv"])
ring_adv(b, KRING)
loop_end(b, "L_k1")
b("s_xor_b32 s%d, s%d, 2" % (sOFF, sHN))
b("s_lshl_b32 s%d, s%d, 17" % (sOFF, sOFF))
loop_begin(b, "L_k2", 4)
b("s_waitcnt vmcnt(32)")
b("s_barrier")
wo_tile(b)
ring_adv(b, KRING)
loop_end(b, "L_k2")
b("s_waitcnt vmcnt(32)")
b("s_barrier")
b("s_barrier")
b("s_barrier")
b("s_waitcnt vmcnt(0)")
b("s_barrier")
b("s_endpgm")
b.finish(hist=e.ins)

b = new("ldv")
b("L_ldv:")
b("v_lshl_add_u32 v10, v1, 8, v2")
b("s_lshl_b32 s%d, s%d, 18" % (sT0, sWGL))
b("s_waitcnt lgkmcnt(0)")
srd(b, SA, sV, sT0, "0x40000")
b("s_mov_b32 s%d, 0" % sOFF)
b("s_mov_b32 s%d, %d" % (sLDS, VRING + 2 * 8192))
V4 = [10, 10, 10, 10]
loop_begin(b, "L_v0", 6)
kv_tile(b, V4, OPT["nt_kv"])
ring_adv(b, VRING)
loop_end(b, "L_v0")
wo_srd(b)
for i in range(8):
    b("s_barrier")
b("s_waitcnt vmcnt(40)")
b("s_barrier")
loop_begin(b, "L_v1", 26)
b("s_waitcnt vmcnt(32)")
b("s_barrier")
kv_tile(b, V4, OPT["nt_kv"])
ring_adv(b, VRING)
loop_end(b, "L_v1")
b("s_xor_b32 s%d, s%d, 3" % (sOFF, sHN))
b("s_lshl_b32 s%d, s%d, 17" % (sOFF, sOFF))
loop_begin(b, "L_v2", 4)
b("s_waitcnt vmcnt(32)")
b("s_barrier")
wo_tile(b)
ring_adv(b, VRING)
loop_end(b, "L_v2")
b("s_waitcnt vmcnt(32)")
b("s_barrier")
b("s_waitcnt vmcnt(0)")
b("s_barrier")
b("s_endpgm")
b.finish(hist=e.ins)


def q_loader(b, tag, npieces, gstep, kstep_shift, ldsbase, blk):
    def chunk(buf_s):
        b("s_lshl_b32 s%d, s%d, %d" % (sOFF, sT2, kstep_shift))
        b("s_add_u32 s%d, s%d, 1" % (sT2, sT2))
        b("s_and_b32 s%d, s%d, 7" % (sT2, sT2))
        left = npieces
        g = 0
        while left > 0:
            n = min(4, left)
            if g == 0:
                b("s_mov_b32 m0, s%d" % sLDS)
                b("s_nop 0")
            else:
                b("s_add_u32 m0, s%d, %d" % (sLDS, 4096 * g))
                b("s_add_u32 s%d, s%d, %d" % (sOFF, sOFF, gstep))
            dma_group(b, SA, [10, 11, 12, 13], sOFF, OPT["nt_q"], n)
            left -= n
            g += 1
        b("s_xor_b32 s%d, s%d, %d" % (sLDS, sLDS, (ldsbase) ^ (ldsbase + 32768)))
    b("s_lshl_b32 s%d, s%d, 1" % (sT2, sHN))
    b("s_add_u32 s%d, s%d, s%d" % (sT2, sT2, sB))
    b("s_and_b32 s%d, s%d, 7" % (sT2, sT2))
    b("s_mov_b32 s%d, %d" % (sLDS, ldsbase))
    loop_begin(b, "L_%s0" % tag, 2)
    chunk(0)
    loop_end(b, "L_%s0" % tag)
    wo_srd(b)
    b("s_waitcnt vmcnt(%d)" % npieces)
    b("s_barrier")
    loop_begin(b, "L_%s1" % tag, 6)
    b("s_waitcnt vmcnt(0)")
    b("s_barrier")
    chunk(0)
    loop_end(b, "L_%s1" % tag)
    b("s_waitcnt vmcnt(0)")
    b("s_barrier")
    b("s_setprio 0")
    if tag == "w":
        for i in range(8):
            b("s_barrier")
        srd(b, SC, sDBG, None, "256")
        b("s_lshl_b32 s%d, s%d, 5" % (sT0, sB))
        b("v_mov_b32 v4, s%d" % sT0)
        b("s_mov_b32 s%d, 0x100000" % sCNT)
        b("L_wpoll:")
        b("buffer_load_dword v5, v4, s[%d:%d], 0 offen sc1" % (SC, SC + 3))
        b("s_waitcnt vmcnt(0)")
        b("v_readfirstlane_b32 s%d, v5" % sT0)
        b("s_sub_u32 s%d, s%d, 1" % (sCNT, sCNT))
        b("s_cmp_eq_u32 s%d, 0" % sCNT)
        b("s_cbranch_scc1 L_wpolld")
        b("s_cmp_lt_u32 s%d, 32" % sT0)
        b("s_cbranch_scc1 L_wpoll")
        b("L_wpolld:")
        loop_begin(b, "L_%s2" % tag, 19)
    else:
        loop_begin(b, "L_%s2" % tag, 27)
    b("s_barrier")
    loop_end(b, "L_%s2" % tag)
    b("s_xor_b32 s%d, s%d, %d" % (sOFF, sHN, blk))
    b("s_lshl_b32 s%d, s%d, 17" % (sOFF, sOFF))
    b("s_mov_b32 s%d, %d" % (sLDS, STG + blk * 32768))
    loop_begin(b, "L_%s3" % tag, 4)
    wo_tile(b)
    b("s_add_u32 s%d, s%d, 8192" % (sLDS, sLDS))
    loop_end(b, "L_%s3" % tag)
    for i in range(5):
        b("s_barrier")
    b("s_waitcnt vmcnt(0)")
    b("s_barrier")
    b("s_endpgm")


b = new("ldx")
b("L_ldx:")
b("s_setprio 2")
b("v_lshrrev_b32 v5, 3, v0")
b("v_and_b32 v6, 7, v0")
b("v_lshrrev_b32 v7, 1, v5")
for p in range(4):
    b("v_add_u32 v4, %d, v7" % (4 * (p & 1)))
    b("v_xor_b32 v4, v4, v6")
    b("v_lshlrev_b32 v4, 4, v4")
    b("v_lshl_add_u32 v4, v5, 10, v4")
    b("v_add_u32 v%d, %d, v4" % (10 + p, p * (8192 - 1024)))
b("s_mul_i32 s%d, s%d, 114688" % (sT0, sB))
b("s_waitcnt lgkmcnt(0)")
srd(b, SA, sX, sT0, "114688")
q_loader(b, "x", 14, 32768, 7, STG, 0)
b.finish(hist=e.ins)

b = new("ldw")
b("L_ldw:")
b("s_setprio 2")
b("v_lshl_add_u32 v10, v1, 13, v2")
for p in range(1, 4):
    b("v_add_u32 v%d, %d, v10" % (10 + p, p * (32768 - 1024)))
b("s_lshl_b32 s%d, s%d, 8" % (sT0, sH))
b("s_sub_u32 s%d, 0x400000, s%d" % (sT1, sT0))
b("s_waitcnt lgkmcnt(0)")
srd(b, SA, sWQ, sT0, "s%d" % sT1)
q_loader(b, "w", 16, 131072, 19, STG + 16384, 1)
b.finish(hist=e.ins)

c = new("compute_pro")
c("L_compute:")
c("v_lshrrev_b32 v1, 5, v0")
c("v_and_b32 v2, 31, v0")
c("v_and_b32 v3, 15, v0")
c("v_xor_b32 v3, v3, v1")
c("v_lshlrev_b32 v3, 4, v3")
c("v_lshl_add_u32 v%d, v2, 8, v3" % aK)
for s in range(1, 8):
    c("v_xor_b32 v%d, %d, v%d" % (aK + s, s << 5, aK))
c("s_lshl_b32 s%d, s%d, 5" % (sT0, sWAVE))
c("v_add_u32 v3, s%d, v2" % sT0)
c("v_min_u32 v3, 111, v3")
c("v_bfe_u32 v4, v3, 1, 3")
c("v_xor_b32 v4, v4, v1")
c("v_lshlrev_b32 v4, 4, v4")
c("v_lshl_add_u32 v4, v3, 7, v4")
c("v_add_u32 v%d, %d, v4" % (aX, STG))
for s in range(1, 4):
    c("v_xor_b32 v%d, %d, v%d" % (aX + s, s << 5, aX))
c("v_bfe_u32 v3, v0, 2, 2")
c("v_mul_u32_u24 v3, 320, v3")
c("v_bfe_u32 v4, v0, 4, 1")
c("v_lshl_add_u32 v3, v4, 5, v3")
c("v_and_b32 v4, 3, v0")
c("v_lshl_add_u32 v6, v4, 3, v3")
c("v_and_b32 v4, 1, v0")
c("v_lshl_add_u32 v3, v4, 4, v3")
c("v_bfe_u32 v4, v0, 1, 1")
c("v_lshl_add_u32 v3, v4, 3, v3")
c("v_lshl_add_u32 v6, v1, 10, v6")
c("v_add_u32 v%d, %d, v6" % (aV, VRING + 16384))
for dt in range(1, 4):
    c("v_xor_b32 v%d, %d, v%d" % (aV + dt, dt << 6, aV))
c("v_lshl_add_u32 v%d, v1, 10, v3" % vLO)
c("s_lshl_b32 s%d, s%d, 5" % (sT0, sG))
c("v_xor_b32 v%d, s%d, v%d" % (vLO, sT0, vLO))
c("v_lshl_add_u32 v3, v1, 11, v3")
c("v_add_u32 v%d, %d, v3" % (aW, STG))
for dt in range(1, 4):
    c("v_xor_b32 v%d, %d, v%d" % (aW + dt, dt << 6, aW))
c("s_lshl_b32 s%d, s%d, 5" % (sT0, sWAVE))
c("v_add_u32 v3, s%d, v2" % sT0)
c("v_lshlrev_b32 v%d, 4, v0" % vE)
c("v_cmp_lt_u32 vcc, 111, v3")
c("v_bfrev_b32 v3, 1")
c("v_cndmask_b32 v3, 0, v3, vcc")
c("v_or_b32 v%d, v%d, v3" % (vE, vE))
for i in range(64):
    c("v_mov_b32 v%d, 0" % (ACC + i))
c("s_mov_b32 s%d, %s" % (sCS, f32(CSC)))
c("s_waitcnt lgkmcnt(0)")
srd(c, SA, sWS, None, "0x10000000")
c("s_mul_i32 s%d, s%d, 114688" % (sT0, sB))
srd(c, SB, sOUT, sT0, "114688")
srd(c, SC, sDBG, None, "256")
c("s_cmp_lg_u32 s%d, 0" % sWAVE)
c("s_cbranch_scc1 L_noclr")
c("s_lshl_b32 s%d, s%d, 9" % (sT0, sWGL))
c("v_lshlrev_b32 v1, 3, v0")
c("buffer_store_dwordx2 v[%d:%d], v1, s[%d:%d], s%d offen sc1" % (ACC, ACC + 1, SA, SA + 3, sT0))
c("L_noclr:")
if OPT["codepf"]:
    c("s_cmp_lg_u32 s%d, 1" % sWAVE)
    c("s_cbranch_scc1 L_nopf")
    c("s_getpc_b64 s[56:57]")
    c("L_pc:")
    c("s_mov_b32 s58, L_codeend-L_pc")
    c("s_mov_b32 s59, 0x20000")
    c("v_lshlrev_b32 v1, 7, v0")
    c("buffer_load_dword v%d, v1, s[56:59], 0 offen" % vDUM)
    c("v_add_u32 v1, 8192, v1")
    c("buffer_load_dword v%d, v1, s[56:59], 0 offen" % vDUM)
    c("L_nopf:")
c("s_lshl_b32 s%d, s%d, 15" % (sE1, sWGL))
c("s_lshl_b32 s%d, s%d, 13" % (sT0, sWAVE))
c("s_add_u32 s%d, s%d, s%d" % (sE1, sE1, sT0))
c("s_add_u32 s%d, s%d, %d" % (sE1, sE1, E1_OFF))
c("s_lshl_b32 s%d, s%d, 2" % (sT0, sB))
c("s_add_u32 s%d, s%d, s%d" % (sT0, sT0, sHN))
c("s_lshl_b32 s%d, s%d, 19" % (sT0, sT0))
c("s_lshl_b32 s%d, s%d, 11" % (sT1, sWAVE))
c("s_add_u32 s%d, s%d, s%d" % (sT0, sT0, sT1))
c("s_add_u32 s%d, s%d, %d" % (sE2P, sT0, E2_OFF))
c("s_lshl_b32 s%d, s%d, 16" % (sT1, sG))
c("s_add_u32 s%d, s%d, s%d" % (sE2C, sE2P, sT1))
c.finish(hist=e.ins)

q = new("qproj")


def q_reads(n):
    cch, s = n >> 2, n & 3
    par = n & 1
    bo = (cch & 1) * 32768
    r = ["ds_read_b128 %s, v%d offset:%d" % (vr(XB + 4 * par, 4), aX + s, bo)]
    for dt in range(4):
        for u in range(2):
            r.append("ds_read_b64_tr_b16 %s, v%d offset:%d" % (vr(VF + 16 * par + 4 * dt + 2 * u, 2), aW + dt,
                                                            bo + 16384 + s * 4096 + u * 1024))
    return r


def k_reads(slot_off):
    return ["ds_read_b128 %s, v%d offset:%d" % (vr(KF + 4 * s, 4), aK + s, slot_off) for s in range(8)]


q("s_barrier")
stamp(q, 1)
q.add(q_reads(0))
for n in range(32):
    par = n & 1
    if (n & 3) == 3 and n < 31:
        q("s_waitcnt lgkmcnt(0)")
        q("s_barrier")
    nxt = q_reads(n + 1) if n < 31 else k_reads(0)
    if n < 31:
        gaps = [nxt[0:3], nxt[3:6], nxt[6:9], []]
    else:
        gaps = [nxt[0:2], nxt[2:4], nxt[4:6], nxt[6:8]]
    mf = ["v_mfma_f32_32x32x16_bf16 %s, %s, %s, %s" % (vr(ACC + 16 * dt, 16), vr(VF + 16 * par + 4 * dt, 4),
                                                      vr(XB + 4 * par, 4), vr(ACC + 16 * dt, 16)) for dt in range(4)]
    q.add(interleave(mf, gaps))
stamp(q, 2)
q("s_waitcnt vmcnt(0)")
q("s_cmp_lg_u32 s%d, 0" % sWAVE)
q("s_cbranch_scc1 L_noarr")
q("s_lshl_b32 s%d, s%d, 5" % (sT0, sB))
q("v_mov_b32 v1, s%d" % sT0)
q("v_mov_b32 v2, 1")
q("s_mov_b64 exec, 1")
q("buffer_atomic_add v2, v1, s[%d:%d], 0 offen" % (SC, SC + 3))
q("s_mov_b64 exec, -1")
q("L_noarr:")
aO1, aO2, aO3 = aX, aW, aK
for nt in range(4):
    q("v_xor_b32 v%d, %d, v%d" % (aO2 + nt, nt << 6, vLO))
for nt in range(4):
    q("v_add_u32 v%d, %d, v%d" % (aO1 + nt, STG, aO2 + nt))
for dt in range(4):
    for j in range(8):
        q("v_cvt_pk_bf16_f32 v%d, v%d, v%d" % (QF + 8 * dt + j, ACC + 16 * dt + 2 * j, ACC + 16 * dt + 2 * j + 1))
mf = []
gaps = []
k1 = k_reads(8192)
for s in range(8):
    mf.append("v_mfma_f32_32x32x16_bf16 %s, %s, %s, %s" % (vr(S0, 16), vr(KF + 4 * s, 4), vr(QF + 4 * s, 4),
                                                         "0" if s == 0 else vr(S0, 16)))
    gaps.append([k1[s]] + ["v_mov_b32 v%d, 0" % (ACC + 8 * s + i) for i in range(8)])
q.add(interleave(mf, gaps))
for s in range(8):
    q("v_add_u32 v%d, 16384, v%d" % (aK + s, aK + s))
q("v_mov_b32 v%d, 0" % vL)
q("s_mov_b32 s%d, 1" % sPAIR)
q("s_mov_b32 s%d, 16384" % sK16)


def max_tree(S):
    r = ["v_max3_f32 v%d, v%d, v%d, v%d" % (vTM, S, S + 1, S + 2)]
    for i in range(3, 15, 2):
        r.append("v_max3_f32 v%d, v%d, v%d, v%d" % (vTM, vTM, S + i, S + i + 1))
    r.append("v_max_f32 v%d, v%d, v%d" % (vTM, vTM, S + 15))
    return r


q.add(max_tree(S0))
q("v_mov_b32 v1, v%d" % vTM)
q("v_permlane32_swap_b32 v1, v%d" % vTM)
q("v_max_f32 v%d, v1, v%d" % (vM, vTM))
q("v_mul_f32 v%d, s%d, v%d" % (vNM, sCS, vM))
q("v_sub_f32 v%d, 0, v%d" % (vNM, vNM))
q("v_add_f32 v%d, %s, v%d" % (vTHR, f32(OPT["thr"] / CSC), vM))
q("s_mov_b32 s%d, 15" % sCNT)
stamp(q, 3)
lgq, vmq = q.finish(hist=c.ins)


def v_read(dt, m, u, off):
    return "ds_read_b64_tr_b16 %s, v%d offset:%d" % (vr(VF + 4 * (4 * m + dt) + 2 * u, 2), aV + dt, off + (2 * m + u) * 2048)


def fma(S, i):
    return "v_fma_f32 v%d, v%d, s%d, v%d" % (S + i, S + i, sCS, vNM)


def ex(S, i):
    return "v_exp_f32 v%d, v%d" % (S + i, S + i)


def cvt(S, j):
    return "v_cvt_pk_bf16_f32 v%d, v%d, v%d" % (PK + j, S + 2 * j, S + 2 * j + 1)


def add(S, i):
    return "v_add_f32 v%d, v%d, v%d" % (vL, vL, S + i)


def pv(dt, m):
    return "v_mfma_f32_32x32x16_bf16 %s, %s, %s, %s" % (vr(ACC + 16 * dt, 16), vr(VF + 4 * (4 * m + dt), 4),
                                                      vr(PK + 4 * m, 4), vr(ACC + 16 * dt, 16))


def epoch(b, par, kread=True, adv=False, tag=""):
    S, SN = (S0, S1) if par == 0 else (S1, S0)
    off = par * 8192
    vrd = [v_read(dt, m, u, off) for m in range(2) for dt in range(4) for u in range(2)]
    qk = ["v_mfma_f32_32x32x16_bf16 %s, %s, %s, %s" % (vr(SN, 16), vr(KF + 4 * s, 4), vr(QF + 4 * s, 4),
                                                      "0" if s == 0 else vr(SN, 16)) for s in range(8)]
    kr = k_reads(off) if kread else [None] * 8
    F, E, C, A = (lambda i: fma(S, i)), (lambda i: ex(S, i)), (lambda j: cvt(S, j)), (lambda i: add(S, i))
    b("s_waitcnt lgkmcnt(0)")
    b("s_barrier")
    ga = [
        [vrd[0], vrd[1], F(0), F(1), E(0)],
        [vrd[2], vrd[3], F(2), F(3), E(1)],
        [vrd[4], vrd[5], E(2), E(3)],
        [vrd[6], vrd[7], F(4), F(5), E(4)],
        [C(0), C(1), F(6), F(7), E(5)],
        [vrd[8], vrd[9], E(6), E(7)],
        [vrd[10], vrd[11], C(2), F(8), F(9), C(3)],
        [vrd[12], vrd[13], E(8), E(9)],
    ]
    b.add(interleave(qk, ga))
    mx = max_tree(SN)
    gb = [
        [vrd[14], vrd[15], F(10), F(11), E(10)],
        [kr[0], E(11), F(12), F(13), E(12)],
        [kr[1], F(14), F(15), E(13), C(4), C(5)],
        [E(14), E(15), kr[2], C(6), C(7), A(0), A(1)],
        [kr[3], kr[4], A(2), A(3), A(4), A(5)] + mx[0:2],
        [kr[5], kr[6], A(6), A(7), A(8), A(9)] + mx[2:4],
        [kr[7], A(10), A(11), A(12)] + mx[4:6],
        [A(13), A(14), A(15)] + mx[6:8],
    ]
    gb = [[x for x in g if x is not None] for g in gb]
    if adv:
        gb[0] += ["s_add_u32 s%d, s%d, 1" % (sPAIR, sPAIR), "s_cmp_eq_u32 s%d, 3" % sPAIR,
                  "s_cselect_b32 s%d, 0, s%d" % (sPAIR, sPAIR),
                  "s_cselect_b32 s%d, %d, s%d" % (sDEL, -32768, sK16)]
        gb[1] += ["v_add_u32 v%d, s%d, v%d" % (aV + i, sDEL, aV + i) for i in range(2)]
        gb[2] += ["v_add_u32 v%d, s%d, v%d" % (aV + i, sDEL, aV + i) for i in range(2, 4)]
        gb[4] += ["v_add_u32 v%d, s%d, v%d" % (aK + i, sDEL, aK + i) for i in range(0, 3)]
        gb[5] += ["v_add_u32 v%d, s%d, v%d" % (aK + i, sDEL, aK + i) for i in range(3, 5)]
        gb[6] += ["v_add_u32 v%d, s%d, v%d" % (aK + i, sDEL, aK + i) for i in range(5, 7)]
        gb[7] += ["v_add_u32 v%d, s%d, v%d" % (aK + 7, sDEL, aK + 7)]
    pvs = [pv(dt, m) for m in range(2) for dt in range(4)]
    b.add(interleave(pvs, gb))
    if OPT["force_rescale"]:
        b("v_cmp_gt_f32 vcc, v%d, v%d" % (vTM, vM))
    else:
        b("v_cmp_gt_f32 vcc, v%d, v%d" % (vTM, vTHR))
    b("s_cbranch_vccnz L_resc%s" % tag)
    b("L_back%s:" % tag)


rare = []


def rescale(tag):
    r = Block("resc" + tag)
    r("L_resc%s:" % tag)
    r("s_nop 15")
    r("v_mov_b32 v1, v%d" % vTM)
    r("v_permlane32_swap_b32 v1, v%d" % vTM)
    r("v_max3_f32 v1, v1, v%d, v%d" % (vTM, vM))
    r("v_sub_f32 v2, v%d, v1" % vM)
    r("v_mul_f32 v2, s%d, v2" % sCS)
    r("v_exp_f32 v2, v2")
    r("v_mov_b32 v%d, v1" % vM)
    r("v_mul_f32 v%d, s%d, v1" % (vNM, sCS))
    r("v_sub_f32 v%d, 0, v%d" % (vNM, vNM))
    r("v_add_f32 v%d, %s, v1" % (vTHR, f32(OPT["thr"] / CSC)))
    r("v_mul_f32 v%d, v%d, v2" % (vL, vL))
    for i in range(64):
        r("v_mul_f32 v%d, v%d, v2" % (ACC + i, ACC + i))
    r("s_nop 1")
    r("s_branch L_back%s" % tag)
    r.finish()
    rare.append(r)


lp = new("loop")
lp("L_att:")
epoch(lp, 0, True, False, "a")
epoch(lp, 1, True, True, "b")
loop_end(lp, "L_att")
lp.finish(hist=q.ins)
pad_hazards(lp.ins, hist=lp.ins, check_only=True, where="loop back edge")
rescale("a")
rescale("b")

t = new("tail")
stamp(t, 4)
epoch(t, 0, False, False, "c")
rescale("c")
S = S1
for i in range(16):
    t(fma(S, i))
for i in range(16):
    t(ex(S, i))
for j in range(8):
    t(cvt(S, j))
for i in range(16):
    t(add(S, i))
for nt in range(4):
    t("v_add_u32 v%d, %d, v%d" % (aO3 + nt, VRING, aO2 + nt))
t("v_mov_b32 v1, v%d" % vL)
t("v_permlane32_swap_b32 v1, v%d" % vL)
t("v_add_f32 v%d, v1, v%d" % (vL, vL))
t("v_rcp_f32 v%d, v%d" % (vL, vL))
t("s_waitcnt lgkmcnt(0)")
t("s_barrier")
stamp(t, 5)
vrd = [v_read(dt, m, u, 8192) for dt in range(4) for m in range(2) for u in range(2)]
t.add(vrd[0:12])
pvs = [pv(dt, m) for dt in range(4) for m in range(2)]
t.add(interleave(pvs, [vrd[12:14], vrd[14:16], [], [], [], [], [], []]))
OB = QF
for dt in range(4):
    for i in range(16):
        t("v_mul_f32 v%d, v%d, v%d" % (ACC + 16 * dt + i, ACC + 16 * dt + i, vL))
    for j in range(8):
        t("v_cvt_pk_bf16_f32 v%d, v%d, v%d" % (OB + 8 * dt + j, ACC + 16 * dt + 2 * j, ACC + 16 * dt + 2 * j + 1))
    if dt == 2:
        t("s_add_u32 s%d, s%d, 4096" % (sT0, sE1))
    for m in range(2):
        f = 2 * dt + m
        t("buffer_store_dwordx4 %s, v%d, s[%d:%d], s%d offen offset:%d sc1" % (vr(OB + 4 * f, 4), vE, SA, SA + 3,
                                                                           sE1 if f < 4 else sT0, (f & 3) * 1024))
stamp(t, 6)
t("s_barrier")
stamp(t, 7)

BLK_ADDR = {0: (aO1, [0, 8192, 16384, 24576]), 1: (aO1, [32768, 40960, 49152, 57344]),
            2: (aO2, [16384, 24576, 32768, 40960]), 3: (aO3, [32768, 40960, 0, 8192])}
SBUF = {0: OB, 1: S0, 2: KF, 3: XB}


def w_reads(n, nt):
    if n >= 32:
        return []
    j, ks = n >> 3, n & 7
    dt, m = ks >> 1, ks & 1
    a, offs = BLK_ADDR[j]
    return ["ds_read_b64_tr_b16 %s, v%d offset:%d" % (vr(VF + 16 * (n & 1) + 4 * nt + 2 * u, 2), a + nt,
                                                   offs[dt] + (2 * m + u) * 2048) for u in range(2)]


def o_step(b, n, extra=None):
    j, ks = n >> 3, n & 7
    for nt in range(4):
        b("v_mfma_f32_32x32x16_bf16 %s, %s, %s, %s" % (vr(ACC + 16 * nt, 16), vr(VF + 16 * (n & 1) + 4 * nt, 4),
                                                     vr(SBUF[j] + 4 * ks, 4), "0" if n == 0 else vr(ACC + 16 * nt, 16)))
        b.add(w_reads(n + 2, nt))
        if extra and extra[nt]:
            b.add(extra[nt])


for n in range(2):
    for nt in range(4):
        t.add(w_reads(n, nt))
vM1, vP1, vM2, vP2 = 1, 2, 3, vM


def mbox(dst, shift, lim, extra, own):
    r = []
    if own:
        r.append("v_mov_b32 v%d, s%d" % (dst, sWGL))
    else:
        r.append("v_lshlrev_b32 v%d, %d, v0" % (dst, shift))
        r.append("v_xor_b32 v%d, s%d, v%d" % (dst, sWGL, dst))
    r.append("v_lshl_add_u32 v%d, v%d, 2, s%d" % (dst, dst, sWAVE))
    r.append("v_lshlrev_b32 v%d, 5, v%d" % (dst, dst))
    r.append("v_add_u32 v%d, v%d, v0" % (dst, dst))
    r.append("v_lshlrev_b32 v%d, 2, v%d" % (dst, dst))
    if extra:
        r.append("v_add_u32 v%d, %d, v%d" % (dst, extra, dst))
    r.append("v_subrev_u32 v%d, 1, v0" % vTM)
    r.append("v_cmp_gt_u32 vcc, %d, v%d" % (lim, vTM))
    r.append("v_bfrev_b32 v%d, 1" % vTM)
    r.append("s_nop 0")
    r.append("v_cndmask_b32 v%d, v%d, v%d, vcc" % (dst, vTM, dst))
    return r


mb = [mbox(vM1, 0, 3, 0, False), mbox(vP1, 0, 3, 0, True), mbox(vM2, 2, 7, 32, False), mbox(vP2, 2, 7, 32, True)]
for n in range(8):
    ex4 = None
    if 1 <= n <= 4:
        m_ = mb[n - 1]
        k3 = (len(m_) + 3) // 4
        ex4 = [m_[i * k3:(i + 1) * k3] for i in range(4)]
    if n == 5:
        ex4 = [["v_mov_b32 v%d, 1" % vTHR], [], [], []]
    o_step(t, n, ex4)
t("s_waitcnt vmcnt(0)")
t("buffer_store_dword v%d, v%d, s[%d:%d], 0 offen sc1" % (vTHR, vM1, SA, SA + 3))
stamp(t, 8)


def poll(b, label, vaddr, mask):
    b("s_mov_b32 s%d, 0x100000" % sCNT)
    b(label + ":")
    b("buffer_load_dword v%d, v%d, s[%d:%d], 0 offen sc1" % (vTM, vaddr, SA, SA + 3))
    b("s_sub_u32 s%d, s%d, 1" % (sCNT, sCNT))
    b("s_cmp_eq_u32 s%d, 0" % sCNT)
    b("s_cbranch_scc1 %sd" % label)
    b("s_waitcnt vmcnt(0)")
    b("v_cmp_eq_u32 vcc, 1, v%d" % vTM)
    b("s_cmp_lg_u32 vcc_lo, %d" % mask)
    b("s_cbranch_scc1 " + label)
    b(label + "d:")
    b("s_waitcnt vmcnt(0)")


poll(t, "L_poll1", vP1, 14)
stamp(t, 9)
for j in range(1, 4):
    t("s_xor_b32 s%d, s%d, %d" % (sT0, sE1, j << 15))
    t("s_add_u32 s%d, s%d, 4096" % (sT1, sT0))
    for f in range(8):
        t("buffer_load_dwordx4 %s, v%d, s[%d:%d], s%d offen offset:%d sc1" % (vr(SBUF[j] + 4 * f, 4), vE, SA, SA + 3,
                                                                          sT0 if f < 4 else sT1, (f & 3) * 1024))
for n in range(8, 32):
    o_step(t, n)
stamp(t, 10)
for j in range(1, 8):
    t("s_xor_b32 s%d, s%d, %d" % (sT0, sG, j))
    t("s_lshl_b32 s%d, s%d, 16" % (sT0, sT0))
    t("s_add_u32 s%d, s%d, s%d" % (sT0, sT0, sE2P))
    t("s_add_u32 s%d, s%d, %d" % (sT0, sT0, j * 8192))
    for hf in range(2):
        t("buffer_store_dwordx4 %s, v%d, s[%d:%d], s%d offen offset:%d sc1" % (vr(ACC + 8 * j + 4 * hf, 4), vE, SA, SA + 3,
                                                                           sT0, hf * 1024))
t("s_waitcnt vmcnt(0)")
t("buffer_store_dword v%d, v%d, s[%d:%d], 0 offen sc1" % (vTHR, vM2, SA, SA + 3))
stamp(t, 11)
t("v_and_b32 v1, 31, v0")
t("s_lshl_b32 s%d, s%d, 5" % (sT0, sWAVE))
t("v_add_u32 v1, s%d, v1" % sT0)
t("v_lshlrev_b32 v1, 10, v1")
t("v_lshrrev_b32 v2, 5, v0")
t("v_lshl_add_u32 v1, v2, 4, v1")
t("s_lshl_b32 s%d, s%d, 8" % (sT0, sHN))
t("s_lshl_b32 s%d, s%d, 5" % (sT1, sG))
t("s_add_u32 s%d, s%d, s%d" % (sT2, sT0, sT1))
poll(t, "L_poll2", vP2, 0xFE)
stamp(t, 12)
PB = QF
for j in range(1, 8):
    t("s_add_u32 s%d, s%d, %d" % (sT0, sE2C, j * 8192))
    for hf in range(2):
        t("buffer_load_dwordx4 %s, v%d, s[%d:%d], s%d offen offset:%d sc1" % (vr(PB + 8 * (j - 1) + 4 * hf, 4), vE, SA, SA + 3,
                                                                          sT0, hf * 1024))
for j in range(1, 8):
    for i in range(8):
        t("v_add_f32 v%d, v%d, v%d" % (ACC + i, ACC + i, PB + 8 * (j - 1) + i))
for j in range(4):
    t("v_cvt_pk_bf16_f32 v%d, v%d, v%d" % (ACC + 8 + j, ACC + 2 * j, ACC + 2 * j + 1))
t("buffer_store_dwordx4 %s, v1, s[%d:%d], s%d offen" % (vr(ACC + 8, 4), SB, SB + 3, sT2))
if STAMPS:
    t("s_waitcnt vmcnt(0)")
    stamp(t, 13)
    t("s_getreg_b32 s%d, hwreg(HW_REG_XCC_ID)" % (sSTAMP + 28))
    for i in range(15):
        t("v_mov_b32 v%d, s%d" % (ACC + 16 + i, sSTAMP + 2 * i))
    t("s_lshl_b32 s%d, s2, 2" % sT0)
    t("s_add_u32 s%d, s%d, s%d" % (sT0, sT0, sWAVE))
    t("s_lshl_b32 s%d, s%d, 6" % (sT0, sT0))
    t("s_add_u32 s%d, s%d, %d" % (sT0, sT0, ST_OFF))
    t("v_mov_b32 v1, 0")
    t("s_mov_b64 exec, 1")
    for i in range(4):
        t("buffer_store_dwordx4 %s, v1, s[%d:%d], s%d offen offset:%d" % (vr(ACC + 16 + 4 * i, 4), SA, SA + 3, sT0, 16 * i))
t("L_end:")
t("s_endpgm")
t.finish(hist=lp.ins)
for r in rare:
    blocks.append(r)

hdr = open("standalone__mha_block_cached__near_ridge.s.ref").read().split("; Override launch")[0]
out = [hdr.rstrip()]
out.append("; @launch grid=(256,1,1) block=(512,1,1) lds=163840")
out.append('.amdgcn_target "amdgcn-amd-amdhsa--gfx950"')
out.append(".text")
out.append(".globl " + KNAME)
out.append(".p2align 8")
out.append(".type %s,@function" % KNAME)
out.append(KNAME + ":")
for b in blocks:
    out.append("; ---- %s ----" % b.name)
    out.append(b.text())
out.append("L_codeend:")
out.append(".p2align 8")
out.append(".fill 64, 4, 0xbf800000")
out.append('.section .rodata,"a"')
out.append(".p2align 6")
out.append(".amdhsa_kernel " + KNAME)
out.append("""  .amdhsa_next_free_vgpr 256
  .amdhsa_next_free_sgpr 102
  .amdhsa_accum_offset 256
  .amdhsa_group_segment_fixed_size 0
  .amdhsa_kernarg_size 64
  .amdhsa_user_sgpr_count 2
  .amdhsa_user_sgpr_kernarg_segment_ptr 1
  .amdhsa_system_sgpr_workgroup_id_x 1
.end_amdhsa_kernel""")
print("\n".join(out))
```

```python
import sys, struct, math
from asmgen import *

OPT = dict(stamps=0, nt_kv="nt", nt_q="nt", nt_wo="nt", thr=8.0, codepf=0, force_rescale=0)
for a in sys.argv[1:]:
    k, v = a.split("=")
    OPT[k] = type(OPT[k])(v) if not isinstance(OPT[k], str) else v.replace("_", " ").strip()
STAMPS = OPT["stamps"]

KNAME = "standalone__mha_block_cached__near_ridge_kernel"


def f32(x):
    return "0x%08x" % struct.unpack("<I", struct.pack("<f", x))[0]


CSC = math.log2(math.e) / math.sqrt(128.0)

KRING, VRING, STG = 0, 49152, 98304
MB_OFF, E1_OFF, E2_OFF, ST_OFF = 0x0, 0x100000, 0x1000000, 0x4000000
sX, sK, sV, sWQ, sWO, sOUT, sDBG, sWS = 4, 6, 8, 10, 12, 14, 16, 18
sWAVE, sG, sB, sHN, sH, sWGL = 20, 21, 22, 23, 24, 25
SA, SB, SC = 28, 32, 36
sOFF, sLDS, sCNT, sT0, sT1, sT2 = 40, 41, 42, 43, 44, 45
sCS, sPAIR, sDEL, sE1, sE2P, sE2C = 46, 47, 48, 49, 50, 51
sK16 = 54
sRET = 52
sSTAMP = 64
vLANE = 0
vT1, vT2, vT3 = 1, 2, 3
vE, vLO, vM, vDUM = 4, 5, 6, 7
aK, aV, aX, aW = 8, 16, 20, 24
vNM, vTHR, vL, vTM = 28, 29, 30, 31
ACC, QF, S0, S1, KF, VF, XB = 32, 96, 128, 144, 160, 192, 224
PK = XB

nstamp = [0]


def stamp(b, idx):
    if STAMPS:
        b("s_memrealtime s[%d:%d]" % (sSTAMP + 2 * idx, sSTAMP + 2 * idx + 1))
        b("s_waitcnt lgkmcnt(0)")


def srd(b, dst, ptr, off_sreg, size):
    if off_sreg is None:
        b("s_mov_b32 s%d, s%d" % (dst, ptr))
        b("s_mov_b32 s%d, s%d" % (dst + 1, ptr + 1))
    else:
        b("s_add_u32 s%d, s%d, s%d" % (dst, ptr, off_sreg))
        b("s_addc_u32 s%d, s%d, 0" % (dst + 1, ptr + 1))
    b("s_mov_b32 s%d, %s" % (dst + 2, size))
    b("s_mov_b32 s%d, 0x20000" % (dst + 3))


def dma_group(b, S, voffs, soff, flags, n=4):
    for p in range(n):
        o = " offset:%d" % (p * 1024) if p else ""
        b("buffer_load_dwordx4 v%d, s[%d:%d], s%d offen%s %s lds" % (voffs[p], S, S + 3, soff, o, flags))


blocks = []


def new(name):
    b = Block(name)
    blocks.append(b)
    return b


e = new("entry")
e("s_cmp_ge_u32 s2, 256")
e("s_cbranch_scc1 L_end")
e("s_load_dwordx16 s[4:19], s[0:1], 0")
if STAMPS:
    e("s_memrealtime s[%d:%d]" % (sSTAMP, sSTAMP + 1))
    e("s_memtime s[96:97]")
e("v_lshrrev_b32 v1, 6, v0")
e("v_and_b32 v0, 63, v0")
e("v_readfirstlane_b32 s%d, v1" % sWAVE)
e("s_and_b32 s%d, s2, 7" % sG)
e("s_lshr_b32 s%d, s2, 5" % sB)
e("s_lshr_b32 s%d, s2, 3" % sHN)
e("s_and_b32 s%d, s%d, 3" % (sHN, sHN))
e("s_lshl_b32 s%d, s%d, 2" % (sH, sG))
e("s_add_u32 s%d, s%d, s%d" % (sH, sH, sHN))
e("s_lshl_b32 s%d, s%d, 5" % (sWGL, sB))
e("s_add_u32 s%d, s%d, s%d" % (sWGL, sWGL, sH))
e("s_cmp_lt_u32 s%d, 4" % sWAVE)
e("s_cbranch_scc1 L_compute")
e("v_lshrrev_b32 v1, 4, v0")
e("v_and_b32 v3, 15, v0")
e("v_lshlrev_b32 v2, 2, v1")
e("v_xor_b32 v2, v2, v3")
e("v_lshlrev_b32 v2, 4, v2")
e("v_lshl_add_u32 v14, v1, 10, v2")
e("v_add_u32 v15, 3072, v14")
e("v_add_u32 v16, 6144, v14")
e("v_add_u32 v17, 9216, v14")
e("s_cmp_eq_u32 s%d, 6" % sWAVE)
e("s_cbranch_scc1 L_ldx")
e("s_cmp_eq_u32 s%d, 7" % sWAVE)
e("s_cbranch_scc1 L_ldw")
e("s_cmp_eq_u32 s%d, 5" % sWAVE)
e("s_cbranch_scc1 L_ldv")
e.finish()

WOV = [14, 15, 16, 17]


def wo_srd(b):
    b("s_lshl_b32 s%d, s%d, 19" % (sT0, sG))
    b("s_lshl_b32 s%d, s%d, 8" % (sT1, sHN))
    b("s_add_u32 s%d, s%d, s%d" % (sT0, sT0, sT1))
    b("s_sub_u32 s%d, 0x400000, s%d" % (sT1, sT0))
    srd(b, SB, sWO, sT0, "s%d" % sT1)


def kv_tile(b, voffs, flags):
    b("s_mov_b32 m0, s%d" % sLDS)
    b("s_add_u32 s%d, s%d, 4096" % (sT0, sLDS))
    dma_group(b, SA, voffs, sOFF, flags)
    b("s_mov_b32 m0, s%d" % sT0)
    b("s_add_u32 s%d, s%d, 4096" % (sOFF, sOFF))
    dma_group(b, SA, voffs, sOFF, flags)
    b("s_add_u32 s%d, s%d, 4096" % (sOFF, sOFF))


def ring_adv(b, base):
    b("s_add_u32 s%d, s%d, 8192" % (sLDS, sLDS))
    b("s_cmp_eq_u32 s%d, %d" % (sLDS, base + 49152))
    b("s_cselect_b32 s%d, %d, s%d" % (sLDS, base, sLDS))


def wo_tile(b):
    b("s_mov_b32 m0, s%d" % sLDS)
    b("s_add_u32 s%d, s%d, 4096" % (sT0, sLDS))
    dma_group(b, SB, WOV, sOFF, OPT["nt_wo"])
    b("s_mov_b32 m0, s%d" % sT0)
    b("s_add_u32 s%d, s%d, 16384" % (sOFF, sOFF))
    dma_group(b, SB, WOV, sOFF, OPT["nt_wo"])
    b("s_add_u32 s%d, s%d, 16384" % (sOFF, sOFF))


def loop_begin(b, label, n):
    b("s_mov_b32 s%d, %d" % (sCNT, n))
    b(label + ":")


def loop_end(b, label):
    b("s_sub_u32 s%d, s%d, 1" % (sCNT, sCNT))
    b("s_cmp_lg_u32 s%d, 0" % sCNT)
    b("s_cbranch_scc1 " + label)


b = new("ldk")
b("L_ldk:")
for p in range(4):
    b("v_add_u32 v4, %d, v1" % (4 * p))
    b("v_xor_b32 v4, v4, v3")
    b("v_lshlrev_b32 v4, 4, v4")
    b("v_lshl_add_u32 v%d, v1, 8, v4" % (10 + p))
b("s_lshl_b32 s%d, s%d, 18" % (sT0, sWGL))
b("s_waitcnt lgkmcnt(0)")
srd(b, SA, sK, sT0, "0x40000")
b("s_mov_b32 s%d, 0" % sOFF)
b("s_mov_b32 s%d, %d" % (sLDS, KRING))
KV4 = [10, 11, 12, 13]
loop_begin(b, "L_k0", 6)
kv_tile(b, KV4, OPT["nt_kv"])
ring_adv(b, KRING)
loop_end(b, "L_k0")
wo_srd(b)
for i in range(7):
    b("s_barrier")
b("s_waitcnt vmcnt(32)")
b("s_barrier")
b("s_waitcnt vmcnt(24)")
b("s_barrier")
kv_tile(b, KV4, OPT["nt_kv"])
ring_adv(b, KRING)
kv_tile(b, KV4, OPT["nt_kv"])
ring_adv(b, KRING)
loop_begin(b, "L_k1", 24)
b("s_waitcnt vmcnt(32)")
b("s_barrier")
kv_tile(b, KV4, OPT["nt_kv"])
ring_adv(b, KRING)
loop_end(b, "L_k1")
b("s_xor_b32 s%d, s%d, 2" % (sOFF, sHN))
b("s_lshl_b32 s%d, s%d, 17" % (sOFF, sOFF))
loop_begin(b, "L_k2", 4)
b("s_waitcnt vmcnt(32)")
b("s_barrier")
wo_tile(b)
ring_adv(b, KRING)
loop_end(b, "L_k2")
b("s_waitcnt vmcnt(32)")
b("s_barrier")
b("s_barrier")
b("s_barrier")
b("s_waitcnt vmcnt(0)")
b("s_barrier")
b("s_endpgm")
b.finish(hist=e.ins)

b = new("ldv")
b("L_ldv:")
b("v_lshl_add_u32 v10, v1, 8, v2")
b("s_lshl_b32 s%d, s%d, 18" % (sT0, sWGL))
b("s_waitcnt lgkmcnt(0)")
srd(b, SA, sV, sT0, "0x40000")
b("s_mov_b32 s%d, 0" % sOFF)
b("s_mov_b32 s%d, %d" % (sLDS, VRING + 2 * 8192))
V4 = [10, 10, 10, 10]
loop_begin(b, "L_v0", 6)
kv_tile(b, V4, OPT["nt_kv"])
ring_adv(b, VRING)
loop_end(b, "L_v0")
wo_srd(b)
for i in range(8):
    b("s_barrier")
b("s_waitcnt vmcnt(40)")
b("s_barrier")
loop_begin(b, "L_v1", 26)
b("s_waitcnt vmcnt(32)")
b("s_barrier")
kv_tile(b, V4, OPT["nt_kv"])
ring_adv(b, VRING)
loop_end(b, "L_v1")
b("s_xor_b32 s%d, s%d, 3" % (sOFF, sHN))
b("s_lshl_b32 s%d, s%d, 17" % (sOFF, sOFF))
loop_begin(b, "L_v2", 4)
b("s_waitcnt vmcnt(32)")
b("s_barrier")
wo_tile(b)
ring_adv(b, VRING)
loop_end(b, "L_v2")
b("s_waitcnt vmcnt(32)")
b("s_barrier")
b("s_waitcnt vmcnt(0)")
b("s_barrier")
b("s_endpgm")
b.finish(hist=e.ins)


def q_loader(b, tag, npieces, gstep, kstep_shift, ldsbase, blk):
    def chunk(buf_s):
        b("s_lshl_b32 s%d, s%d, %d" % (sOFF, sT2, kstep_shift))
        b("s_add_u32 s%d, s%d, 1" % (sT2, sT2))
        b("s_and_b32 s%d, s%d, 7" % (sT2, sT2))
        left = npieces
        g = 0
        while left > 0:
            n = min(4, left)
            if g == 0:
                b("s_mov_b32 m0, s%d" % sLDS)
                b("s_nop 0")
            else:
                b("s_add_u32 m0, s%d, %d" % (sLDS, 4096 * g))
                b("s_add_u32 s%d, s%d, %d" % (sOFF, sOFF, gstep))
            dma_group(b, SA, [10, 11, 12, 13], sOFF, OPT["nt_q"], n)
            left -= n
            g += 1
        b("s_xor_b32 s%d, s%d, %d" % (sLDS, sLDS, (ldsbase) ^ (ldsbase + 32768)))
    b("s_lshl_b32 s%d, s%d, 1" % (sT2, sHN))
    b("s_add_u32 s%d, s%d, s%d" % (sT2, sT2, sB))
    b("s_and_b32 s%d, s%d, 7" % (sT2, sT2))
    b("s_mov_b32 s%d, %d" % (sLDS, ldsbase))
    loop_begin(b, "L_%s0" % tag, 2)
    chunk(0)
    loop_end(b, "L_%s0" % tag)
    wo_srd(b)
    b("s_waitcnt vmcnt(%d)" % npieces)
    b("s_barrier")
    loop_begin(b, "L_%s1" % tag, 6)
    b("s_waitcnt vmcnt(0)")
    b("s_barrier")
    chunk(0)
    loop_end(b, "L_%s1" % tag)
    b("s_waitcnt vmcnt(0)")
    b("s_barrier")
    b("s_setprio 0")
    if tag == "w":
        for i in range(8):
            b("s_barrier")
        srd(b, SC, sDBG, None, "256")
        b("s_lshl_b32 s%d, s%d, 4" % (sT0, sB))
        b("s_add_u32 s%d, s%d, 128" % (sT0, sT0))
        b("v_mov_b32 v4, s%d" % sT0)
        b("s_mov_b32 s%d, 0x100000" % sCNT)
        b("L_wpoll:")
        b("buffer_load_dword v5, v4, s[%d:%d], 0 offen sc1" % (SC, SC + 3))
        b("s_waitcnt vmcnt(0)")
        b("v_readfirstlane_b32 s%d, v5" % sT0)
        b("s_sub_u32 s%d, s%d, 1" % (sCNT, sCNT))
        b("s_cmp_eq_u32 s%d, 0" % sCNT)
        b("s_cbranch_scc1 L_wpolld")
        b("s_cmp_lt_u32 s%d, 32" % sT0)
        b("s_cbranch_scc1 L_wpoll")
        b("L_wpolld:")
        loop_begin(b, "L_%s2" % tag, 19)
    else:
        loop_begin(b, "L_%s2" % tag, 27)
    b("s_barrier")
    loop_end(b, "L_%s2" % tag)
    b("s_xor_b32 s%d, s%d, %d" % (sOFF, sHN, blk))
    b("s_lshl_b32 s%d, s%d, 17" % (sOFF, sOFF))
    b("s_mov_b32 s%d, %d" % (sLDS, STG + blk * 32768))
    loop_begin(b, "L_%s3" % tag, 4)
    wo_tile(b)
    b("s_add_u32 s%d, s%d, 8192" % (sLDS, sLDS))
    loop_end(b, "L_%s3" % tag)
    for i in range(5):
        b("s_barrier")
    b("s_waitcnt vmcnt(0)")
    b("s_barrier")
    b("s_endpgm")


b = new("ldx")
b("L_ldx:")
b("s_setprio 2")
b("v_lshrrev_b32 v5, 3, v0")
b("v_and_b32 v6, 7, v0")
b("v_lshrrev_b32 v7, 1, v5")
for p in range(4):
    b("v_add_u32 v4, %d, v7" % (4 * (p & 1)))
    b("v_xor_b32 v4, v4, v6")
    b("v_lshlrev_b32 v4, 4, v4")
    b("v_lshl_add_u32 v4, v5, 10, v4")
    b("v_add_u32 v%d, %d, v4" % (10 + p, p * (8192 - 1024)))
b("s_mul_i32 s%d, s%d, 114688" % (sT0, sB))
b("s_waitcnt lgkmcnt(0)")
srd(b, SA, sX, sT0, "114688")
q_loader(b, "x", 14, 32768, 7, STG, 0)
b.finish(hist=e.ins)

b = new("ldw")
b("L_ldw:")
b("s_setprio 2")
b("v_lshl_add_u32 v10, v1, 13, v2")
for p in range(1, 4):
    b("v_add_u32 v%d, %d, v10" % (10 + p, p * (32768 - 1024)))
b("s_lshl_b32 s%d, s%d, 8" % (sT0, sH))
b("s_sub_u32 s%d, 0x400000, s%d" % (sT1, sT0))
b("s_waitcnt lgkmcnt(0)")
srd(b, SA, sWQ, sT0, "s%d" % sT1)
q_loader(b, "w", 16, 131072, 19, STG + 16384, 1)
b.finish(hist=e.ins)

c = new("compute_pro")
c("L_compute:")
c("v_lshrrev_b32 v1, 5, v0")
c("v_and_b32 v2, 31, v0")
c("v_and_b32 v3, 15, v0")
c("v_xor_b32 v3, v3, v1")
c("v_lshlrev_b32 v3, 4, v3")
c("v_lshl_add_u32 v%d, v2, 8, v3" % aK)
for s in range(1, 8):
    c("v_xor_b32 v%d, %d, v%d" % (aK + s, s << 5, aK))
c("s_lshl_b32 s%d, s%d, 5" % (sT0, sWAVE))
c("v_add_u32 v3, s%d, v2" % sT0)
c("v_min_u32 v3, 111, v3")
c("v_bfe_u32 v4, v3, 1, 3")
c("v_xor_b32 v4, v4, v1")
c("v_lshlrev_b32 v4, 4, v4")
c("v_lshl_add_u32 v4, v3, 7, v4")
c("v_add_u32 v%d, %d, v4" % (aX, STG))
for s in range(1, 4):
    c("v_xor_b32 v%d, %d, v%d" % (aX + s, s << 5, aX))
c("v_bfe_u32 v3, v0, 2, 2")
c("v_mul_u32_u24 v3, 320, v3")
c("v_bfe_u32 v4, v0, 4, 1")
c("v_lshl_add_u32 v3, v4, 5, v3")
c("v_and_b32 v4, 3, v0")
c("v_lshl_add_u32 v6, v4, 3, v3")
c("v_and_b32 v4, 1, v0")
c("v_lshl_add_u32 v3, v4, 4, v3")
c("v_bfe_u32 v4, v0, 1, 1")
c("v_lshl_add_u32 v3, v4, 3, v3")
c("v_lshl_add_u32 v6, v1, 10, v6")
c("v_add_u32 v%d, %d, v6" % (aV, VRING + 16384))
for dt in range(1, 4):
    c("v_xor_b32 v%d, %d, v%d" % (aV + dt, dt << 6, aV))
c("v_lshl_add_u32 v%d, v1, 10, v3" % vLO)
c("s_lshl_b32 s%d, s%d, 5" % (sT0, sG))
c("v_xor_b32 v%d, s%d, v%d" % (vLO, sT0, vLO))
c("v_lshl_add_u32 v3, v1, 11, v3")
c("v_add_u32 v%d, %d, v3" % (aW, STG))
for dt in range(1, 4):
    c("v_xor_b32 v%d, %d, v%d" % (aW + dt, dt << 6, aW))
c("s_lshl_b32 s%d, s%d, 5" % (sT0, sWAVE))
c("v_add_u32 v3, s%d, v2" % sT0)
c("v_lshlrev_b32 v%d, 4, v0" % vE)
c("v_cmp_lt_u32 vcc, 111, v3")
c("v_bfrev_b32 v3, 1")
c("v_cndmask_b32 v3, 0, v3, vcc")
c("v_or_b32 v%d, v%d, v3" % (vE, vE))
for i in range(64):
    c("v_mov_b32 v%d, 0" % (ACC + i))
c("s_mov_b32 s%d, %s" % (sCS, f32(CSC)))
c("s_waitcnt lgkmcnt(0)")
srd(c, SA, sWS, None, "0x10000000")
c("s_mul_i32 s%d, s%d, 114688" % (sT0, sB))
srd(c, SB, sOUT, sT0, "114688")
srd(c, SC, sDBG, None, "256")
c("s_cmp_lg_u32 s%d, 0" % sWAVE)
c("s_cbranch_scc1 L_noclr")
c("s_lshl_b32 s%d, s%d, 9" % (sT0, sWGL))
c("v_lshlrev_b32 v1, 3, v0")
c("buffer_store_dwordx2 v[%d:%d], v1, s[%d:%d], s%d offen sc1" % (ACC, ACC + 1, SA, SA + 3, sT0))
c("L_noclr:")
if OPT["codepf"]:
    c("s_cmp_lg_u32 s%d, 1" % sWAVE)
    c("s_cbranch_scc1 L_nopf")
    c("s_getpc_b64 s[56:57]")
    c("L_pc:")
    c("s_mov_b32 s58, L_codeend-L_pc")
    c("s_mov_b32 s59, 0x20000")
    c("v_lshlrev_b32 v1, 7, v0")
    c("buffer_load_dword v%d, v1, s[56:59], 0 offen" % vDUM)
    c("v_add_u32 v1, 8192, v1")
    c("buffer_load_dword v%d, v1, s[56:59], 0 offen" % vDUM)
    c("L_nopf:")
c("s_lshl_b32 s%d, s%d, 15" % (sE1, sWGL))
c("s_lshl_b32 s%d, s%d, 13" % (sT0, sWAVE))
c("s_add_u32 s%d, s%d, s%d" % (sE1, sE1, sT0))
c("s_add_u32 s%d, s%d, %d" % (sE1, sE1, E1_OFF))
c("s_lshl_b32 s%d, s%d, 2" % (sT0, sB))
c("s_add_u32 s%d, s%d, s%d" % (sT0, sT0, sHN))
c("s_lshl_b32 s%d, s%d, 19" % (sT0, sT0))
c("s_lshl_b32 s%d, s%d, 11" % (sT1, sWAVE))
c("s_add_u32 s%d, s%d, s%d" % (sT0, sT0, sT1))
c("s_add_u32 s%d, s%d, %d" % (sE2P, sT0, E2_OFF))
c("s_lshl_b32 s%d, s%d, 16" % (sT1, sG))
c("s_add_u32 s%d, s%d, s%d" % (sE2C, sE2P, sT1))
c.finish(hist=e.ins)

q = new("qproj")


def q_reads(n):
    cch, s = n >> 2, n & 3
    par = n & 1
    bo = (cch & 1) * 32768
    r = ["ds_read_b128 %s, v%d offset:%d" % (vr(XB + 4 * par, 4), aX + s, bo)]
    for dt in range(4):
        for u in range(2):
            r.append("ds_read_b64_tr_b16 %s, v%d offset:%d" % (vr(VF + 16 * par + 4 * dt + 2 * u, 2), aW + dt,
                                                            bo + 16384 + s * 4096 + u * 1024))
    return r


def k_reads(slot_off):
    return ["ds_read_b128 %s, v%d offset:%d" % (vr(KF + 4 * s, 4), aK + s, slot_off) for s in range(8)]


q("s_barrier")
stamp(q, 1)
q.add(q_reads(0))
for n in range(32):
    par = n & 1
    if (n & 3) == 3 and n < 31:
        q("s_waitcnt lgkmcnt(0)")
        q("s_barrier")
    nxt = q_reads(n + 1) if n < 31 else k_reads(0)
    if n < 31:
        gaps = [nxt[0:3], nxt[3:6], nxt[6:9], []]
    else:
        gaps = [nxt[0:2], nxt[2:4], nxt[4:6], nxt[6:8]]
    mf = ["v_mfma_f32_32x32x16_bf16 %s, %s, %s, %s" % (vr(ACC + 16 * dt, 16), vr(VF + 16 * par + 4 * dt, 4),
                                                      vr(XB + 4 * par, 4), vr(ACC + 16 * dt, 16)) for dt in range(4)]
    q.add(interleave(mf, gaps))
stamp(q, 2)
q("s_waitcnt vmcnt(0)")
q("s_cmp_lg_u32 s%d, 0" % sWAVE)
q("s_cbranch_scc1 L_noarr")
q("s_lshl_b32 s%d, s%d, 4" % (sT0, sB))
q("s_add_u32 s%d, s%d, 128" % (sT0, sT0))
q("v_mov_b32 v1, s%d" % sT0)
q("v_mov_b32 v2, 1")
q("s_mov_b64 exec, 1")
q("buffer_atomic_add v2, v1, s[%d:%d], 0 offen" % (SC, SC + 3))
q("s_mov_b64 exec, -1")
q("L_noarr:")
aO1, aO2, aO3 = aX, aW, aK
for nt in range(4):
    q("v_xor_b32 v%d, %d, v%d" % (aO2 + nt, nt << 6, vLO))
for nt in range(4):
    q("v_add_u32 v%d, %d, v%d" % (aO1 + nt, STG, aO2 + nt))
for dt in range(4):
    for j in range(8):
        q("v_cvt_pk_bf16_f32 v%d, v%d, v%d" % (QF + 8 * dt + j, ACC + 16 * dt + 2 * j, ACC + 16 * dt + 2 * j + 1))
mf = []
gaps = []
k1 = k_reads(8192)
for s in range(8):
    mf.append("v_mfma_f32_32x32x16_bf16 %s, %s, %s, %s" % (vr(S0, 16), vr(KF + 4 * s, 4), vr(QF + 4 * s, 4),
                                                         "0" if s == 0 else vr(S0, 16)))
    gaps.append([k1[s]] + ["v_mov_b32 v%d, 0" % (ACC + 8 * s + i) for i in range(8)])
q.add(interleave(mf, gaps))
for s in range(8):
    q("v_add_u32 v%d, 16384, v%d" % (aK + s, aK + s))
q("v_mov_b32 v%d, 0" % vL)
q("s_mov_b32 s%d, 1" % sPAIR)
q("s_mov_b32 s%d, 16384" % sK16)


def max_tree(S):
    r = ["v_max3_f32 v%d, v%d, v%d, v%d" % (vTM, S, S + 1, S + 2)]
    for i in range(3, 15, 2):
        r.append("v_max3_f32 v%d, v%d, v%d, v%d" % (vTM, vTM, S + i, S + i + 1))
    r.append("v_max_f32 v%d, v%d, v%d" % (vTM, vTM, S + 15))
    return r


q.add(max_tree(S0))
q("v_mov_b32 v1, v%d" % vTM)
q("v_permlane32_swap_b32 v1, v%d" % vTM)
q("v_max_f32 v%d, v1, v%d" % (vM, vTM))
q("v_mul_f32 v%d, s%d, v%d" % (vNM, sCS, vM))
q("v_sub_f32 v%d, 0, v%d" % (vNM, vNM))
q("v_add_f32 v%d, %s, v%d" % (vTHR, f32(OPT["thr"] / CSC), vM))
q("s_mov_b32 s%d, 15" % sCNT)
stamp(q, 3)
lgq, vmq = q.finish(hist=c.ins)


def v_read(dt, m, u, off):
    return "ds_read_b64_tr_b16 %s, v%d offset:%d" % (vr(VF + 4 * (4 * m + dt) + 2 * u, 2), aV + dt, off + (2 * m + u) * 2048)


def fma(S, i):
    return "v_fma_f32 v%d, v%d, s%d, v%d" % (S + i, S + i, sCS, vNM)


def ex(S, i):
    return "v_exp_f32 v%d, v%d" % (S + i, S + i)


def cvt(S, j):
    return "v_cvt_pk_bf16_f32 v%d, v%d, v%d" % (PK + j, S + 2 * j, S + 2 * j + 1)


def add(S, i):
    return "v_add_f32 v%d, v%d, v%d" % (vL, vL, S + i)


def pv(dt, m):
    return "v_mfma_f32_32x32x16_bf16 %s, %s, %s, %s" % (vr(ACC + 16 * dt, 16), vr(VF + 4 * (4 * m + dt), 4),
                                                      vr(PK + 4 * m, 4), vr(ACC + 16 * dt, 16))


def epoch(b, par, kread=True, adv=False, tag=""):
    S, SN = (S0, S1) if par == 0 else (S1, S0)
    off = par * 8192
    vrd = [v_read(dt, m, u, off) for m in range(2) for dt in range(4) for u in range(2)]
    qk = ["v_mfma_f32_32x32x16_bf16 %s, %s, %s, %s" % (vr(SN, 16), vr(KF + 4 * s, 4), vr(QF + 4 * s, 4),
                                                      "0" if s == 0 else vr(SN, 16)) for s in range(8)]
    kr = k_reads(off) if kread else [None] * 8
    F, E, C, A = (lambda i: fma(S, i)), (lambda i: ex(S, i)), (lambda j: cvt(S, j)), (lambda i: add(S, i))
    b("s_waitcnt lgkmcnt(0)")
    b("s_barrier")
    ga = [
        [vrd[0], vrd[1], F(0), F(1), E(0)],
        [vrd[2], vrd[3], F(2), F(3), E(1)],
        [vrd[4], vrd[5], E(2), E(3)],
        [vrd[6], vrd[7], F(4), F(5), E(4)],
        [C(0), C(1), F(6), F(7), E(5)],
        [vrd[8], vrd[9], E(6), E(7)],
        [vrd[10], vrd[11], C(2), F(8), F(9), C(3)],
        [vrd[12], vrd[13], E(8), E(9)],
    ]
    b.add(interleave(qk, ga))
    mx = max_tree(SN)
    gb = [
        [vrd[14], vrd[15], F(10), F(11), E(10)],
        [kr[0], E(11), F(12), F(13), E(12)],
        [kr[1], F(14), F(15), E(13), C(4), C(5)],
        [E(14), E(15), kr[2], C(6), C(7), A(0), A(1)],
        [kr[3], kr[4], A(2), A(3), A(4), A(5)] + mx[0:2],
        [kr[5], kr[6], A(6), A(7), A(8), A(9)] + mx[2:4],
        [kr[7], A(10), A(11), A(12)] + mx[4:6],
        [A(13), A(14), A(15)] + mx[6:8],
    ]
    gb = [[x for x in g if x is not None] for g in gb]
    if adv:
        gb[0] += ["s_add_u32 s%d, s%d, 1" % (sPAIR, sPAIR), "s_cmp_eq_u32 s%d, 3" % sPAIR,
                  "s_cselect_b32 s%d, 0, s%d" % (sPAIR, sPAIR),
                  "s_cselect_b32 s%d, %d, s%d" % (sDEL, -32768, sK16)]
        gb[1] += ["v_add_u32 v%d, s%d, v%d" % (aV + i, sDEL, aV + i) for i in range(2)]
        gb[2] += ["v_add_u32 v%d, s%d, v%d" % (aV + i, sDEL, aV + i) for i in range(2, 4)]
        gb[4] += ["v_add_u32 v%d, s%d, v%d" % (aK + i, sDEL, aK + i) for i in range(0, 3)]
        gb[5] += ["v_add_u32 v%d, s%d, v%d" % (aK + i, sDEL, aK + i) for i in range(3, 5)]
        gb[6] += ["v_add_u32 v%d, s%d, v%d" % (aK + i, sDEL, aK + i) for i in range(5, 7)]
        gb[7] += ["v_add_u32 v%d, s%d, v%d" % (aK + 7, sDEL, aK + 7)]
    pvs = [pv(dt, m) for m in range(2) for dt in range(4)]
    b.add(interleave(pvs, gb))
    if OPT["force_rescale"]:
        b("v_cmp_gt_f32 vcc, v%d, v%d" % (vTM, vM))
    else:
        b("v_cmp_gt_f32 vcc, v%d, v%d" % (vTM, vTHR))
    b("s_cbranch_vccnz L_resc%s" % tag)
    b("L_back%s:" % tag)


rare = []


def rescale(tag):
    r = Block("resc" + tag)
    r("L_resc%s:" % tag)
    r("s_nop 15")
    r("v_mov_b32 v1, v%d" % vTM)
    r("v_permlane32_swap_b32 v1, v%d" % vTM)
    r("v_max3_f32 v1, v1, v%d, v%d" % (vTM, vM))
    r("v_sub_f32 v2, v%d, v1" % vM)
    r("v_mul_f32 v2, s%d, v2" % sCS)
    r("v_exp_f32 v2, v2")
    r("v_mov_b32 v%d, v1" % vM)
    r("v_mul_f32 v%d, s%d, v1" % (vNM, sCS))
    r("v_sub_f32 v%d, 0, v%d" % (vNM, vNM))
    r("v_add_f32 v%d, %s, v1" % (vTHR, f32(OPT["thr"] / CSC)))
    r("v_mul_f32 v%d, v%d, v2" % (vL, vL))
    for i in range(64):
        r("v_mul_f32 v%d, v%d, v2" % (ACC + i, ACC + i))
    r("s_nop 1")
    r("s_branch L_back%s" % tag)
    r.finish()
    rare.append(r)


lp = new("loop")
lp("L_att:")
epoch(lp, 0, True, False, "a")
epoch(lp, 1, True, True, "b")
loop_end(lp, "L_att")
lp.finish(hist=q.ins)
pad_hazards(lp.ins, hist=lp.ins, check_only=True, where="loop back edge")
rescale("a")
rescale("b")

t = new("tail")
stamp(t, 4)
epoch(t, 0, False, False, "c")
rescale("c")
S = S1
for i in range(16):
    t(fma(S, i))
for i in range(16):
    t(ex(S, i))
for j in range(8):
    t(cvt(S, j))
for i in range(16):
    t(add(S, i))
for nt in range(4):
    t("v_add_u32 v%d, %d, v%d" % (aO3 + nt, VRING, aO2 + nt))
t("v_mov_b32 v1, v%d" % vL)
t("v_permlane32_swap_b32 v1, v%d" % vL)
t("v_add_f32 v%d, v1, v%d" % (vL, vL))
t("v_rcp_f32 v%d, v%d" % (vL, vL))
t("s_waitcnt lgkmcnt(0)")
t("s_barrier")
stamp(t, 5)
vrd = [v_read(dt, m, u, 8192) for dt in range(4) for m in range(2) for u in range(2)]
t.add(vrd[0:12])
pvs = [pv(dt, m) for dt in range(4) for m in range(2)]
t.add(interleave(pvs, [vrd[12:14], vrd[14:16], [], [], [], [], [], []]))
OB = QF
for dt in range(4):
    for i in range(16):
        t("v_mul_f32 v%d, v%d, v%d" % (ACC + 16 * dt + i, ACC + 16 * dt + i, vL))
    for j in range(8):
        t("v_cvt_pk_bf16_f32 v%d, v%d, v%d" % (OB + 8 * dt + j, ACC + 16 * dt + 2 * j, ACC + 16 * dt + 2 * j + 1))
    if dt == 2:
        t("s_add_u32 s%d, s%d, 4096" % (sT0, sE1))
    for m in range(2):
        f = 2 * dt + m
        t("buffer_store_dwordx4 %s, v%d, s[%d:%d], s%d offen offset:%d sc1" % (vr(OB + 4 * f, 4), vE, SA, SA + 3,
                                                                           sE1 if f < 4 else sT0, (f & 3) * 1024))
stamp(t, 6)
t("s_barrier")
stamp(t, 7)

BLK_ADDR = {0: (aO1, [0, 8192, 16384, 24576]), 1: (aO1, [32768, 40960, 49152, 57344]),
            2: (aO2, [16384, 24576, 32768, 40960]), 3: (aO3, [32768, 40960, 0, 8192])}
SBUF = {0: OB, 1: S0, 2: KF, 3: XB}


def w_reads(n, nt):
    if n >= 32:
        return []
    j, ks = n >> 3, n & 7
    dt, m = ks >> 1, ks & 1
    a, offs = BLK_ADDR[j]
    return ["ds_read_b64_tr_b16 %s, v%d offset:%d" % (vr(VF + 16 * (n & 1) + 4 * nt + 2 * u, 2), a + nt,
                                                   offs[dt] + (2 * m + u) * 2048) for u in range(2)]


def o_step(b, n, extra=None):
    j, ks = n >> 3, n & 7
    for nt in range(4):
        b("v_mfma_f32_32x32x16_bf16 %s, %s, %s, %s" % (vr(ACC + 16 * nt, 16), vr(VF + 16 * (n & 1) + 4 * nt, 4),
                                                     vr(SBUF[j] + 4 * ks, 4), "0" if n == 0 else vr(ACC + 16 * nt, 16)))
        b.add(w_reads(n + 2, nt))
        if extra and extra[nt]:
            b.add(extra[nt])


for n in range(2):
    for nt in range(4):
        t.add(w_reads(n, nt))
vM1, vP1, vM2, vP2 = 1, 2, 3, vM


def mbox(dst, shift, lim, extra, own):
    r = []
    if own:
        r.append("v_mov_b32 v%d, s%d" % (dst, sWGL))
    else:
        r.append("v_lshlrev_b32 v%d, %d, v0" % (dst, shift))
        r.append("v_xor_b32 v%d, s%d, v%d" % (dst, sWGL, dst))
    r.append("v_lshl_add_u32 v%d, v%d, 2, s%d" % (dst, dst, sWAVE))
    r.append("v_lshlrev_b32 v%d, 5, v%d" % (dst, dst))
    r.append("v_add_u32 v%d, v%d, v0" % (dst, dst))
    r.append("v_lshlrev_b32 v%d, 2, v%d" % (dst, dst))
    if extra:
        r.append("v_add_u32 v%d, %d, v%d" % (dst, extra, dst))
    r.append("v_subrev_u32 v%d, 1, v0" % vTM)
    r.append("v_cmp_gt_u32 vcc, %d, v%d" % (lim, vTM))
    r.append("v_bfrev_b32 v%d, 1" % vTM)
    r.append("s_nop 0")
    r.append("v_cndmask_b32 v%d, v%d, v%d, vcc" % (dst, vTM, dst))
    return r


mb = [mbox(vM1, 0, 3, 0, False), mbox(vP1, 0, 3, 0, True), mbox(vM2, 2, 7, 32, False), mbox(vP2, 2, 7, 32, True)]
for n in range(8):
    ex4 = None
    if 1 <= n <= 4:
        m_ = mb[n - 1]
        k3 = (len(m_) + 3) // 4
        ex4 = [m_[i * k3:(i + 1) * k3] for i in range(4)]
    if n == 5:
        ex4 = [["v_mov_b32 v%d, 1" % vTHR], [], [], []]
    o_step(t, n, ex4)
t("s_waitcnt vmcnt(0)")
t("buffer_store_dword v%d, v%d, s[%d:%d], 0 offen sc1" % (vTHR, vM1, SA, SA + 3))
stamp(t, 8)


def poll(b, label, vaddr, mask):
    b("s_mov_b32 s%d, 0x100000" % sCNT)
    b(label + ":")
    b("buffer_load_dword v%d, v%d, s[%d:%d], 0 offen sc1" % (vTM, vaddr, SA, SA + 3))
    b("s_sub_u32 s%d, s%d, 1" % (sCNT, sCNT))
    b("s_cmp_eq_u32 s%d, 0" % sCNT)
    b("s_cbranch_scc1 %sd" % label)
    b("s_waitcnt vmcnt(0)")
    b("v_cmp_eq_u32 vcc, 1, v%d" % vTM)
    b("s_cmp_lg_u32 vcc_lo, %d" % mask)
    b("s_cbranch_scc1 " + label)
    b(label + "d:")
    b("s_waitcnt vmcnt(0)")


poll(t, "L_poll1", vP1, 14)
stamp(t, 9)
for j in range(1, 4):
    t("s_xor_b32 s%d, s%d, %d" % (sT0, sE1, j << 15))
    t("s_add_u32 s%d, s%d, 4096" % (sT1, sT0))
    for f in range(8):
        t("buffer_load_dwordx4 %s, v%d, s[%d:%d], s%d offen offset:%d sc1" % (vr(SBUF[j] + 4 * f, 4), vE, SA, SA + 3,
                                                                          sT0 if f < 4 else sT1, (f & 3) * 1024))
for n in range(8, 32):
    o_step(t, n)
stamp(t, 10)
for j in range(1, 8):
    t("s_xor_b32 s%d, s%d, %d" % (sT0, sG, j))
    t("s_lshl_b32 s%d, s%d, 16" % (sT0, sT0))
    t("s_add_u32 s%d, s%d, s%d" % (sT0, sT0, sE2P))
    t("s_add_u32 s%d, s%d, %d" % (sT0, sT0, j * 8192))
    for hf in range(2):
        t("buffer_store_dwordx4 %s, v%d, s[%d:%d], s%d offen offset:%d sc1" % (vr(ACC + 8 * j + 4 * hf, 4), vE, SA, SA + 3,
                                                                           sT0, hf * 1024))
t("s_waitcnt vmcnt(0)")
t("buffer_store_dword v%d, v%d, s[%d:%d], 0 offen sc1" % (vTHR, vM2, SA, SA + 3))
stamp(t, 11)
t("v_and_b32 v1, 31, v0")
t("s_lshl_b32 s%d, s%d, 5" % (sT0, sWAVE))
t("v_add_u32 v1, s%d, v1" % sT0)
t("v_lshlrev_b32 v1, 10, v1")
t("v_lshrrev_b32 v2, 5, v0")
t("v_lshl_add_u32 v1, v2, 4, v1")
t("s_lshl_b32 s%d, s%d, 8" % (sT0, sHN))
t("s_lshl_b32 s%d, s%d, 5" % (sT1, sG))
t("s_add_u32 s%d, s%d, s%d" % (sT2, sT0, sT1))
poll(t, "L_poll2", vP2, 0xFE)
stamp(t, 12)
PB = QF
for j in range(1, 8):
    t("s_add_u32 s%d, s%d, %d" % (sT0, sE2C, j * 8192))
    for hf in range(2):
        t("buffer_load_dwordx4 %s, v%d, s[%d:%d], s%d offen offset:%d sc1" % (vr(PB + 8 * (j - 1) + 4 * hf, 4), vE, SA, SA + 3,
                                                                          sT0, hf * 1024))
for j in range(1, 8):
    for i in range(8):
        t("v_add_f32 v%d, v%d, v%d" % (ACC + i, ACC + i, PB + 8 * (j - 1) + i))
for j in range(4):
    t("v_cvt_pk_bf16_f32 v%d, v%d, v%d" % (ACC + 8 + j, ACC + 2 * j, ACC + 2 * j + 1))
t("buffer_store_dwordx4 %s, v1, s[%d:%d], s%d offen" % (vr(ACC + 8, 4), SB, SB + 3, sT2))
if STAMPS:
    t("s_waitcnt vmcnt(0)")
    stamp(t, 13)
    t("s_memtime s[98:99]")
    t("s_waitcnt lgkmcnt(0)")
    t("s_sub_u32 s%d, s98, s96" % (sSTAMP + 28))
    t("s_getreg_b32 s%d, hwreg(HW_REG_XCC_ID)" % (sSTAMP + 30))
    for i in range(16):
        t("v_mov_b32 v%d, s%d" % (ACC + 16 + i, sSTAMP + 2 * i))
    t("s_lshl_b32 s%d, s2, 2" % sT0)
    t("s_add_u32 s%d, s%d, s%d" % (sT0, sT0, sWAVE))
    t("s_lshl_b32 s%d, s%d, 6" % (sT0, sT0))
    t("s_add_u32 s%d, s%d, %d" % (sT0, sT0, ST_OFF))
    t("v_mov_b32 v1, 0")
    t("s_mov_b64 exec, 1")
    for i in range(4):
        t("buffer_store_dwordx4 %s, v1, s[%d:%d], s%d offen offset:%d" % (vr(ACC + 16 + 4 * i, 4), SA, SA + 3, sT0, 16 * i))
    if STAMPS == 2:
        t("s_cmp_lg_u32 s2, 77")
        t("s_cbranch_scc1 L_end")
        t("s_cmp_lg_u32 s%d, 0" % sWAVE)
        t("s_cbranch_scc1 L_end")
        t("s_nop 3")
        for i in range(1, 14):
            t("v_sub_u32 v%d, v%d, v%d" % (ACC + 16 + i, ACC + 16 + i, ACC + 16))
        for i in range(4):
            t("buffer_store_dwordx4 %s, v1, s[%d:%d], 0 offen offset:%d" % (vr(ACC + 16 + 4 * i, 4), SC, SC + 3, 16 * i))
t("L_end:")
t("s_endpgm")
t.finish(hist=lp.ins)
for r in rare:
    blocks.append(r)

hdr = open("standalone__mha_block_cached__near_ridge.s.ref").read().split("; Override launch")[0]
out = [hdr.rstrip()]
out.append("; @launch grid=(256,1,1) block=(512,1,1) lds=163840")
out.append('.amdgcn_target "amdgcn-amd-amdhsa--gfx950"')
out.append(".text")
out.append(".globl " + KNAME)
out.append(".p2align 8")
out.append(".type %s,@function" % KNAME)
out.append(KNAME + ":")
for b in blocks:
    out.append("; ---- %s ----" % b.name)
    out.append(b.text())
out.append("L_codeend:")
out.append(".p2align 8")
out.append(".fill 64, 4, 0xbf800000")
out.append('.section .rodata,"a"')
out.append(".p2align 6")
out.append(".amdhsa_kernel " + KNAME)
out.append("""  .amdhsa_next_free_vgpr 256
  .amdhsa_next_free_sgpr 102
  .amdhsa_accum_offset 256
  .amdhsa_group_segment_fixed_size 0
  .amdhsa_kernarg_size 64
  .amdhsa_user_sgpr_count 2
  .amdhsa_user_sgpr_kernarg_segment_ptr 1
  .amdhsa_system_sgpr_workgroup_id_x 1
.end_amdhsa_kernel""")
print("\n".join(out))
```

```python
import re


def R(base, n=1):
    return list(range(base, base + n))


def vr(base, n=1):
    return "v%d" % base if n == 1 else "v[%d:%d]" % (base, base + n - 1)


def sr(base, n=1):
    return "s%d" % base if n == 1 else "s[%d:%d]" % (base, base + n - 1)


class Ins:
    __slots__ = ("text", "kind", "rd", "wr", "srd", "swr", "ab", "c", "wide", "lg", "vm", "n", "passes")

    def __init__(self, text, kind, rd=(), wr=(), srd=(), swr=(), ab=(), c=(), wide=(), lg=None, vm=None, n=1):
        self.text = text
        self.kind = kind
        self.rd = set(rd)
        self.wr = set(wr)
        self.srd = set(srd)
        self.swr = set(swr)
        self.ab = set(ab)
        self.c = tuple(c)
        self.wide = set(wide)
        self.lg = lg
        self.vm = vm
        self.n = n
        self.passes = 4 if "16x16x32" in text else 8


_REG = re.compile(r"(?<![\w.])(v|s)(\d+)(?![\w:])|(?<![\w.])(v|s)\[(\d+):(\d+)\]")


def regs_in(op):
    v, s = [], []
    for m in _REG.finditer(op):
        if m.group(1):
            k, lo, hi = m.group(1), int(m.group(2)), int(m.group(2))
        else:
            k, lo, hi = m.group(3), int(m.group(4)), int(m.group(5))
        (v if k == "v" else s).extend(range(lo, hi + 1))
    s = ["s%d" % x for x in s]
    for nm in ("vcc", "m0", "exec"):
        if re.search(r"(?<![\w])%s(_lo|_hi)?(?![\w])" % nm, op):
            s.append(nm)
    return v, s


TRANS = ("v_exp_f32", "v_rcp_f32", "v_log_f32", "v_rsq_f32", "v_sqrt_f32")


def parse(text):
    t = text.split(";")[0].strip()
    if not t:
        return Ins(text, "comment", n=0)
    if t.endswith(":"):
        return Ins(text, "label", n=0)
    if t.startswith("."):
        return Ins(text, "comment", n=0)
    parts = t.split(None, 1)
    op = parts[0]
    args = [a.strip() for a in parts[1].split(",")] if len(parts) > 1 else []
    if op == "s_nop":
        return Ins(text, "nop", n=int(args[0]) + 1)
    if op == "s_waitcnt":
        lg = re.search(r"lgkmcnt\((\d+)\)", t)
        vm = re.search(r"vmcnt\((\d+)\)", t)
        return Ins(text, "wait", lg=int(lg.group(1)) if lg else None, vm=int(vm.group(1)) if vm else None)
    if op == "s_barrier":
        return Ins(text, "barrier")
    if op.startswith("s_cbranch") or op == "s_branch" or op == "s_endpgm":
        return Ins(text, "branch", srd=["vcc"] if "vcc" in op else [])
    if op.startswith("s_load") or op.startswith("s_memtime") or op.startswith("s_memrealtime"):
        _, d = regs_in(args[0])
        s = []
        for a in args[1:]:
            s += regs_in(a)[1]
        return Ins(text, "smem", srd=s, swr=d)
    if op.startswith("s_"):
        if op.startswith("s_cmp") or op in ("s_setprio", "s_sleep"):
            s = []
            for a in args:
                s += regs_in(a)[1]
            return Ins(text, "salu", srd=s)
        _, d = regs_in(args[0])
        s = []
        for a in args[1:]:
            s += regs_in(a)[1]
        return Ins(text, "salu", srd=s, swr=d)
    if op.startswith("v_mfma"):
        d = regs_in(args[0])[0]
        a = regs_in(args[1])[0]
        b = regs_in(args[2])[0]
        c = regs_in(args[3])[0]
        return Ins(text, "mfma", rd=a + b + c, wr=d, ab=a + b, c=c)
    if op.startswith("ds_read"):
        d = regs_in(args[0])[0]
        a = regs_in(args[1].split()[0])[0]
        return Ins(text, "ds_rd", rd=a, wr=d)
    if op.startswith("ds_write"):
        v = []
        for a in args:
            v += regs_in(a.split()[0])[0]
        return Ins(text, "ds_wr", rd=v)
    if op.startswith("buffer_") or op.startswith("global_"):
        lds = re.search(r"\blds\b", t) is not None
        allv, alls = [], []
        per = [regs_in(a) for a in args]
        for v, s in per:
            allv += v
            alls += s
        if lds:
            return Ins(text, "vm_dma", rd=allv, srd=alls + ["m0"])
        if "load" in op:
            d = per[0][0]
            rest = []
            for v, s in per[1:]:
                rest += v
            return Ins(text, "vm_ld", rd=rest, wr=d, srd=alls)
        if op.startswith("buffer_"):
            data = per[0][0]
        else:
            data = per[1][0]
        wide = data if ("x4" in op or "x3" in op) else []
        return Ins(text, "vm_st", rd=allv, srd=alls, wide=wide)
    if op.startswith("v_"):
        base = op.replace("_e32", "").replace("_e64", "")
        if base in ("v_readfirstlane_b32", "v_readlane_b32"):
            v, s = regs_in(args[1])
            return Ins(text, "rfl", rd=v, swr=regs_in(args[0])[1])
        if base == "v_writelane_b32":
            return Ins(text, "valu", wr=regs_in(args[0])[0], srd=regs_in(args[1])[1] + regs_in(args[2])[1])
        if base.startswith("v_permlane"):
            v = regs_in(args[0])[0] + regs_in(args[1])[0]
            return Ins(text, "perm", rd=v, wr=v)
        if base.startswith("v_cmp"):
            v, s = [], []
            for a in args[1:]:
                x, y = regs_in(a)
                v += x
                s += y
            return Ins(text, "valu", rd=v, srd=s, swr=regs_in(args[0])[1])
        d, ds = regs_in(args[0])
        v, s = [], []
        for a in args[1:]:
            x, y = regs_in(a)
            v += x
            s += y
        if base.startswith("v_fmac"):
            v += d
        kind = "trans" if base in TRANS else "valu"
        return Ins(text, kind, rd=v, wr=d, srd=s, swr=ds)
    raise ValueError("cannot parse: " + text)


VALUISH = ("valu", "trans", "perm", "rfl")
VMEM = ("vm_ld", "vm_st", "vm_dma")


def need_states(p, c):
    n = 0
    if p.kind in VALUISH:
        if c.kind == "mfma" and (p.wr & c.rd):
            n = max(n, 2)
        if c.kind == "perm" and (p.wr & c.rd):
            n = max(n, 2)
        if c.kind == "rfl" and (p.wr & c.rd):
            n = max(n, 1)
        if p.kind == "trans" and c.kind in ("valu", "perm", "rfl") and (p.wr & c.rd):
            n = max(n, 1)
        if p.swr:
            if c.kind in VALUISH and (p.swr & c.srd):
                n = max(n, 2 if c.kind != "rfl" else 4)
            if c.kind in VMEM and (p.swr & c.srd):
                n = max(n, 5)
            if c.kind in ("salu", "branch") and (p.swr & c.srd):
                n = max(n, 1)
    if p.kind == "mfma":
        big = p.passes == 8
        if c.kind == "mfma":
            if p.wr & c.ab:
                n = max(n, 12 if big else 8)
            if p.wr & set(c.c):
                if tuple(sorted(p.wr)) != tuple(c.c) or p.passes != c.passes:
                    n = max(n, 10 if big else 6)
            if (p.wr & c.wr) and tuple(sorted(p.wr)) != tuple(c.c):
                n = max(n, 12 if big else 8)
        elif c.kind in VALUISH or c.kind in VMEM or c.kind in ("ds_rd", "ds_wr"):
            if p.wr & (c.rd | c.wr):
                n = max(n, 12 if big else 8)
            if c.kind in VALUISH and (set(p.c) & c.wr):
                n = max(n, 7 if big else 3)
    if p.kind == "salu" and "m0" in p.swr and c.kind == "vm_dma":
        n = max(n, 1)
    if p.kind == "vm_st" and p.wide and (p.wide & c.wr):
        n = max(n, 2 if c.kind in VALUISH or c.kind == "mfma" else 1)
    return n


def pad_hazards(seq, hist=(), check_only=False, where=""):
    out = []
    win = [i for i in hist if i.n > 0][-24:]
    for c in seq:
        if c.n == 0:
            out.append(c)
            continue
        need = 0
        dist = 0
        for p in reversed(win):
            req = need_states(p, c)
            if req > dist:
                need = max(need, req - dist)
            dist += p.n
            if dist >= 16:
                break
        if need > 0:
            if check_only:
                raise RuntimeError("hazard (%s): need %d more states before: %s" % (where, need, c.text))
            nop = parse("s_nop %d" % (need - 1))
            out.append(nop)
            win.append(nop)
        out.append(c)
        win.append(c)
        win = win[-24:]
    return out


def insert_waits(seq, lgq=None, vmq=None):
    lgq = list(lgq or [])
    vmq = list(vmq or [])
    out = []
    for c in seq:
        if c.kind == "wait":
            if c.lg is not None:
                lgq = lgq[len(lgq) - c.lg:] if c.lg < len(lgq) and c.lg > 0 else ([] if c.lg == 0 else lgq)
            if c.vm is not None:
                vmq = vmq[len(vmq) - c.vm:] if c.vm < len(vmq) and c.vm > 0 else ([] if c.vm == 0 else vmq)
            out.append(c)
            continue
        touch = c.rd | c.wr
        lg = vm = None
        for i in range(len(lgq) - 1, -1, -1):
            e = lgq[i]
            if e != "smem" and (e & touch):
                lg = len(lgq) - 1 - i
                break
        if lg is not None:
            lg -= sum(1 for e in lgq[len(lgq) - lg:] if e == "smem") if lg > 0 else 0
        for i in range(len(vmq) - 1, -1, -1):
            if vmq[i] & touch:
                vm = len(vmq) - 1 - i
                break
        if lg is not None or vm is not None:
            t = "s_waitcnt"
            if vm is not None:
                assert vm <= 63
                t += " vmcnt(%d)" % vm
                vmq = vmq[len(vmq) - vm:] if vm > 0 else []
            if lg is not None:
                lg = min(lg, 15)
                t += " lgkmcnt(%d)" % lg
                lgq = [e for e in lgq if e != "smem"]
                lgq = lgq[len(lgq) - lg:] if lg > 0 else []
            out.append(parse(t))
        if c.kind == "ds_rd":
            lgq.append(set(c.wr))
        elif c.kind == "ds_wr":
            lgq.append(set())
        elif c.kind == "smem":
            lgq.append("smem")
        elif c.kind == "vm_ld":
            vmq.append(set(c.wr))
        elif c.kind in ("vm_st", "vm_dma"):
            vmq.append(set())
        out.append(c)
    return out, lgq, vmq


class Block:
    def __init__(self, name=""):
        self.name = name
        self.ins = []

    def __call__(self, text):
        for line in text.split("\n"):
            if line.strip():
                self.ins.append(parse(line.strip()))
        return self

    def add(self, lst):
        for x in lst:
            if isinstance(x, str):
                self(x)
            else:
                self.ins.append(x)

    def finish(self, hist=(), lgq=None, vmq=None):
        seq, lgq, vmq = insert_waits(self.ins, lgq, vmq)
        self.ins = pad_hazards(seq, hist)
        return lgq, vmq

    def text(self):
        o = []
        for i in self.ins:
            o.append(i.text if i.kind in ("label",) else "    " + i.text)
        return "\n".join(o)


def interleave(mfmas, gaps):
    out = []
    for m, g in zip(mfmas, gaps):
        out.append(m)
        out.extend(g)
    return out
```

```python
import sys, struct, math
from asmgen import *

OPT = dict(stamps=0, nt_kv="nt", nt_x="", nt_w="nt", nt_wo="nt", lag=0, thr=8.0, force_rescale=0, k_at="5.5.6.7", v_at="6.6.7.7",
           prio_x=3, prio_w=2)
for a in sys.argv[1:]:
    k, v = a.split("=")
    OPT[k] = type(OPT[k])(v) if not isinstance(OPT[k], str) else v.replace("_", " ").strip()
STAMPS = OPT["stamps"]

KNAME = "standalone__mha_block_cached__near_ridge_kernel"


def f32(x):
    return "0x%08x" % struct.unpack("<I", struct.pack("<f", x))[0]


CSC = math.log2(math.e) / math.sqrt(128.0)

KRING, VRING, STG = 0, 32768, 65536
RING = 32768
MB_OFF, E1_OFF, E2_OFF, ST_OFF = 0x0, 0x100000, 0x1000000, 0x4000000
sX, sK, sV, sWQ, sWO, sOUT, sDBG, sWS = 4, 6, 8, 10, 12, 14, 16, 18
sWAVE, sG, sB, sHN, sH, sWGL = 20, 21, 22, 23, 24, 25
SA, SB, SC = 28, 32, 36
sOFF, sLDS, sCNT, sT0, sT1, sT2 = 40, 41, 42, 43, 44, 45
sCS, sPAIR, sDEL, sE1, sE2P, sE2C = 46, 47, 48, 49, 50, 51
sTHR, sK16, sPADM = 52, 54, 55
sSTAMP = 64
vE, vLO, vTM, aX = 4, 5, 6, 7
aK, aW, aV = 8, 12, 16
NM = (24, 28)
ACC, QF, S0, S1, KF, VF, XB = 32, 96, 128, 144, 160, 192, 224
PK = XB
vL = (232, 233)
K_AT = [int(x) for x in OPT["k_at"].split(".")]
V_AT = [int(x) for x in OPT["v_at"].split(".")]
assert len(K_AT) == 4 and len(V_AT) == 4
NQB = 9
aXq, aX2, aW2 = 128, 132, 136
M16 = "v_mfma_f32_16x16x32_bf16"
M32 = "v_mfma_f32_32x32x16_bf16"


def stamp(b, idx):
    if STAMPS == 3 and 1 <= idx <= 6:
        return
    if STAMPS:
        b("s_memrealtime s[%d:%d]" % (sSTAMP + 2 * idx, sSTAMP + 2 * idx + 1))
        b("s_waitcnt lgkmcnt(0)")


def srd(b, dst, ptr, off_sreg, size):
    if off_sreg is None:
        b("s_mov_b32 s%d, s%d" % (dst, ptr))
        b("s_mov_b32 s%d, s%d" % (dst + 1, ptr + 1))
    else:
        b("s_add_u32 s%d, s%d, s%d" % (dst, ptr, off_sreg))
        b("s_addc_u32 s%d, s%d, 0" % (dst + 1, ptr + 1))
    b("s_mov_b32 s%d, %s" % (dst + 2, size))
    b("s_mov_b32 s%d, 0x20000" % (dst + 3))


def dma_group(b, S, voffs, soff, flags, n=4):
    for p in range(n):
        o = " offset:%d" % (p * 1024) if p else ""
        b("buffer_load_dwordx4 v%d, s[%d:%d], s%d offen%s %s lds" % (voffs[p], S, S + 3, soff, o, flags))


blocks = []


def new(name):
    b = Block(name)
    blocks.append(b)
    return b


e = new("entry")
e("s_cmp_ge_u32 s2, 256")
e("s_cbranch_scc1 L_end")
e("s_load_dwordx16 s[4:19], s[0:1], 0")
if STAMPS:
    e("s_memrealtime s[%d:%d]" % (sSTAMP, sSTAMP + 1))
    e("s_memtime s[96:97]")
e("v_lshrrev_b32 v1, 6, v0")
e("v_and_b32 v0, 63, v0")
e("v_readfirstlane_b32 s%d, v1" % sWAVE)
e("s_and_b32 s%d, s2, 7" % sG)
e("s_lshr_b32 s%d, s2, 5" % sB)
e("s_lshr_b32 s%d, s2, 3" % sHN)
e("s_and_b32 s%d, s%d, 3" % (sHN, sHN))
e("s_lshl_b32 s%d, s%d, 2" % (sH, sG))
e("s_add_u32 s%d, s%d, s%d" % (sH, sH, sHN))
e("s_lshl_b32 s%d, s%d, 5" % (sWGL, sB))
e("s_add_u32 s%d, s%d, s%d" % (sWGL, sWGL, sH))
e("s_cmp_lt_u32 s%d, 4" % sWAVE)
e("s_cbranch_scc1 L_compute")
e("v_lshrrev_b32 v1, 4, v0")
e("v_and_b32 v3, 15, v0")
e("v_lshlrev_b32 v2, 2, v1")
e("v_xor_b32 v2, v2, v3")
e("v_lshlrev_b32 v2, 4, v2")
e("s_cmp_eq_u32 s%d, 6" % sWAVE)
e("s_cbranch_scc1 L_ldx")
e("s_cmp_eq_u32 s%d, 7" % sWAVE)
e("s_cbranch_scc1 L_ldw")
e("s_cmp_eq_u32 s%d, 5" % sWAVE)
e("s_cbranch_scc1 L_ldv")
e.finish()

WOV = [14, 15, 16, 17]


def wo_setup(b):
    b("v_lshl_add_u32 v14, v1, 10, v2")
    b("v_add_u32 v15, 3072, v14")
    b("v_add_u32 v16, 6144, v14")
    b("v_add_u32 v17, 9216, v14")
    b("s_lshl_b32 s%d, s%d, 19" % (sT0, sG))
    b("s_lshl_b32 s%d, s%d, 8" % (sT1, sHN))
    b("s_add_u32 s%d, s%d, s%d" % (sT0, sT0, sT1))
    b("s_sub_u32 s%d, 0x400000, s%d" % (sT1, sT0))
    srd(b, SB, sWO, sT0, "s%d" % sT1)


def kv_tile(b, voffs, base):
    fl = OPT["nt_kv"]
    b("s_mov_b32 m0, s%d" % sLDS)
    b("s_add_u32 s%d, s%d, 4096" % (sT0, sLDS))
    dma_group(b, SA, voffs, sOFF, fl)
    b("s_mov_b32 m0, s%d" % sT0)
    b("s_add_u32 s%d, s%d, 4096" % (sOFF, sOFF))
    dma_group(b, SA, voffs, sOFF, fl)
    b("s_add_u32 s%d, s%d, 4096" % (sOFF, sOFF))
    ring_adv(b, base)


def ring_adv(b, base):
    b("s_add_u32 s%d, s%d, 8192" % (sLDS, sLDS))
    b("s_cmp_eq_u32 s%d, %d" % (sLDS, base + RING))
    b("s_cselect_b32 s%d, %d, s%d" % (sLDS, base, sLDS))


def wo_tile(b):
    b("s_mov_b32 m0, s%d" % sLDS)
    b("s_add_u32 s%d, s%d, 4096" % (sT0, sLDS))
    dma_group(b, SB, WOV, sOFF, OPT["nt_wo"])
    b("s_mov_b32 m0, s%d" % sT0)
    b("s_add_u32 s%d, s%d, 16384" % (sOFF, sOFF))
    dma_group(b, SB, WOV, sOFF, OPT["nt_wo"])
    b("s_add_u32 s%d, s%d, 16384" % (sOFF, sOFF))


def loop_begin(b, label, n):
    b("s_mov_b32 s%d, %d" % (sCNT, n))
    b(label + ":")


def loop_end(b, label):
    b("s_sub_u32 s%d, s%d, 1" % (sCNT, sCNT))
    b("s_cmp_lg_u32 s%d, 0" % sCNT)
    b("s_cbranch_scc1 " + label)


b = new("ldk")
b("L_ldk:")
for p in range(4):
    b("v_add_u32 v4, %d, v1" % (4 * p))
    b("v_xor_b32 v4, v4, v3")
    b("v_lshlrev_b32 v4, 4, v4")
    b("v_lshl_add_u32 v%d, v1, 8, v4" % (10 + p))
b("s_lshl_b32 s%d, s%d, 18" % (sT0, sWGL))
b("s_waitcnt lgkmcnt(0)")
srd(b, SA, sK, sT0, "0x40000")
b("s_mov_b32 s%d, 0" % sOFF)
b("s_mov_b32 s%d, %d" % (sLDS, KRING))
KV4 = [10, 11, 12, 13]
for _ in range(K_AT.count(-1)):
    kv_tile(b, KV4, KRING)
wo_setup(b)
for i in range(NQB):
    if i == NQB - 1:
        b("s_waitcnt vmcnt(16)")
    b("s_barrier")
    for _ in range(K_AT.count(i)):
        kv_tile(b, KV4, KRING)
b("s_waitcnt vmcnt(8)")
b("s_barrier")
kv_tile(b, KV4, KRING)
LAG = OPT["lag"]
if not LAG:
    kv_tile(b, KV4, KRING)
loop_begin(b, "L_k1", 26 + LAG)
b("s_waitcnt vmcnt(%d)" % (16 - 8 * LAG))
b("s_barrier")
kv_tile(b, KV4, KRING)
loop_end(b, "L_k1")
b("s_xor_b32 s%d, s%d, 3" % (sOFF, sHN))
b("s_lshl_b32 s%d, s%d, 17" % (sOFF, sOFF))
b("s_mov_b32 s%d, %d" % (sLDS, KRING))
for n in (16, 8, 0)[LAG:]:
    b("s_waitcnt vmcnt(%d)" % n)
    b("s_barrier")
b("s_barrier")
loop_begin(b, "L_k2", 4)
wo_tile(b)
b("s_add_u32 s%d, s%d, 8192" % (sLDS, sLDS))
loop_end(b, "L_k2")
b("s_barrier")
b("s_waitcnt vmcnt(0)")
b("s_barrier")
b("s_endpgm")
b.finish(hist=e.ins)

b = new("ldv")
b("L_ldv:")
for par in range(2):
    b("v_lshlrev_b32 v4, 1, v1")
    b("v_xor_b32 v4, v4, v3")
    if par:
        b("v_xor_b32 v4, 8, v4")
    b("v_lshlrev_b32 v4, 4, v4")
    b("v_lshl_add_u32 v%d, v1, 8, v4" % (10 + par))
b("s_lshl_b32 s%d, s%d, 18" % (sT0, sWGL))
b("s_waitcnt lgkmcnt(0)")
srd(b, SA, sV, sT0, "0x40000")
b("s_mov_b32 s%d, 0" % sOFF)
b("s_mov_b32 s%d, %d" % (sLDS, VRING + 2 * 8192))
V4 = [10, 11, 10, 11]
for _ in range(V_AT.count(-1)):
    kv_tile(b, V4, VRING)
for i in range(NQB):
    b("s_barrier")
    for _ in range(V_AT.count(i)):
        kv_tile(b, V4, VRING)
b("s_waitcnt vmcnt(24)")
b("s_barrier")
if LAG:
    b("s_waitcnt vmcnt(16)")
    b("s_barrier")
loop_begin(b, "L_v1", 28)
b("s_waitcnt vmcnt(%d)" % (16 - 8 * LAG))
if STAMPS:
    b("s_memrealtime s[60:61]")
    b("s_waitcnt lgkmcnt(0)")
b("s_barrier")
if STAMPS:
    b("s_memrealtime s[62:63]")
    b("s_waitcnt lgkmcnt(0)")
    b("s_mov_b32 m0, s%d" % sCNT)
    b("s_nop 0")
    b("v_writelane_b32 v20, s60, m0")
    b("v_writelane_b32 v21, s62, m0")
kv_tile(b, V4, VRING)
loop_end(b, "L_v1")
for n in (16, 8, 0)[LAG:]:
    b("s_waitcnt vmcnt(%d)" % n)
    b("s_barrier")
b("s_barrier")
if STAMPS:
    srd(b, SA, sWS, None, "0x10000000")
    b("s_lshl_b32 s%d, s2, 9" % sT0)
    b("s_add_u32 s%d, s%d, %d" % (sT0, sT0, ST_OFF + 0x100000))
    b("v_lshlrev_b32 v1, 2, v0")
    b("buffer_store_dword v20, v1, s[%d:%d], s%d offen" % (SA, SA + 3, sT0))
    b("buffer_store_dword v21, v1, s[%d:%d], s%d offen offset:256" % (SA, SA + 3, sT0))
b("s_endpgm")
b.finish(hist=e.ins)


def q_loader(b, tag, gstep, kstep_shift, ldsbase, blk, flags):
    def chunk():
        b("s_lshl_b32 s%d, s%d, %d" % (sOFF, sT2, kstep_shift))
        b("s_mov_b32 m0, s%d" % sLDS)
        b("s_add_u32 s%d, s%d, 1" % (sT2, sT2))
        dma_group(b, SA, [10, 11, 12, 13], sOFF, flags)
        for g in range(1, 4):
            b("s_add_u32 m0, s%d, %d" % (sLDS, 4096 * g))
            b("s_add_u32 s%d, s%d, %d" % (sOFF, sOFF, gstep))
            dma_group(b, SA, [10, 11, 12, 13], sOFF, flags)
        b("s_and_b32 s%d, s%d, 7" % (sT2, sT2))
        b("s_add_u32 s%d, s%d, 32768" % (sLDS, sLDS))
        b("s_cmp_eq_u32 s%d, %d" % (sLDS, ldsbase + 98304))
        b("s_cselect_b32 s%d, %d, s%d" % (sLDS, ldsbase, sLDS))
    b("s_lshl_b32 s%d, s%d, 1" % (sT2, sHN))
    b("s_add_u32 s%d, s%d, s%d" % (sT2, sT2, sB))
    b("s_and_b32 s%d, s%d, 7" % (sT2, sT2))
    b("s_mov_b32 s%d, %d" % (sLDS, ldsbase))
    loop_begin(b, "L_%s0" % tag, 2)
    chunk()
    loop_end(b, "L_%s0" % tag)
    loop_begin(b, "L_%s1" % tag, 6)
    b("s_waitcnt vmcnt(16)")
    b("s_barrier")
    chunk()
    loop_end(b, "L_%s1" % tag)
    wo_setup(b)
    b("s_waitcnt vmcnt(16)")
    b("s_barrier")
    b("s_waitcnt vmcnt(0)")
    b("s_barrier")
    b("s_barrier")
    b("s_setprio 0")
    first = 4 if blk == 0 else 2
    for i in range(first + 1):
        b("s_barrier")
    b("s_xor_b32 s%d, s%d, %d" % (sOFF, sHN, blk))
    b("s_lshl_b32 s%d, s%d, 17" % (sOFF, sOFF))
    b("s_mov_b32 s%d, %d" % (sLDS, STG + blk * 32768))
    loop_begin(b, "L_%s2" % tag, 4)
    wo_tile(b)
    b("s_add_u32 s%d, s%d, 8192" % (sLDS, sLDS))
    for i in range(4):
        b("s_barrier")
    loop_end(b, "L_%s2" % tag)
    b("s_xor_b32 s%d, s%d, 2" % (sOFF, sHN))
    b("s_lshl_b32 s%d, s%d, 17" % (sOFF, sOFF))
    b("s_add_u32 s%d, s%d, %d" % (sOFF, sOFF, blk * 65536))
    b("s_mov_b32 s%d, %d" % (sLDS, STG + 65536 + blk * 16384))
    wo_tile(b)
    b("s_add_u32 s%d, s%d, 8192" % (sLDS, sLDS))
    if tag == "w":
        srd(b, SC, sDBG, None, "256")
        b("s_lshl_b32 s%d, s%d, 4" % (sT0, sB))
        b("s_add_u32 s%d, s%d, 128" % (sT0, sT0))
        b("v_mov_b32 v4, s%d" % sT0)
        b("buffer_load_dword v5, v4, s[%d:%d], 0 offen sc1" % (SC, SC + 3))
    for i in range(4):
        b("s_barrier")
    wo_tile(b)
    done = first + 20
    if tag == "w":
        for i in range(3):
            b("s_barrier")
        done += 3
        b("s_mov_b32 s%d, 0x100000" % sCNT)
        b("s_branch L_wchk")
        b("L_wpoll:")
        b("buffer_load_dword v5, v4, s[%d:%d], 0 offen sc1" % (SC, SC + 3))
        b("L_wchk:")
        b("s_waitcnt vmcnt(0)")
        b("v_readfirstlane_b32 s%d, v5" % sT0)
        b("s_sub_u32 s%d, s%d, 1" % (sCNT, sCNT))
        b("s_cmp_eq_u32 s%d, 0" % sCNT)
        b("s_cbranch_scc1 L_wpolld")
        b("s_cmp_lt_u32 s%d, 32" % sT0)
        b("s_cbranch_scc1 L_wpoll")
        b("L_wpolld:")
    for i in range(31 - done):
        b("s_barrier")
    b("s_waitcnt vmcnt(0)")
    b("s_barrier")
    b("s_endpgm")


b = new("ldx")
b("L_ldx:")
b("s_setprio %d" % OPT["prio_x"])
b("v_lshrrev_b32 v5, 3, v0")
b("v_and_b32 v6, 7, v0")
b("v_lshrrev_b32 v7, 1, v5")
for p in range(4):
    b("v_add_u32 v4, %d, v7" % (4 * (p & 1)))
    b("v_xor_b32 v4, v4, v6")
    b("v_lshlrev_b32 v4, 4, v4")
    b("v_lshl_add_u32 v4, v5, 10, v4")
    b("v_add_u32 v%d, %d, v4" % (10 + p, p * (8192 - 1024)))
b("s_mul_i32 s%d, s%d, 114688" % (sT0, sB))
b("s_waitcnt lgkmcnt(0)")
srd(b, SA, sX, sT0, "114688")
q_loader(b, "x", 32768, 7, STG, 0, OPT["nt_x"])
b.finish(hist=e.ins)

b = new("ldw")
b("L_ldw:")
b("s_setprio %d" % OPT["prio_w"])
b("v_lshl_add_u32 v10, v1, 13, v2")
for p in range(1, 4):
    b("v_add_u32 v%d, %d, v10" % (10 + p, p * (32768 - 1024)))
b("s_lshl_b32 s%d, s%d, 8" % (sT0, sH))
b("s_sub_u32 s%d, 0x400000, s%d" % (sT1, sT0))
b("s_waitcnt lgkmcnt(0)")
srd(b, SA, sWQ, sT0, "s%d" % sT1)
q_loader(b, "w", 131072, 19, STG + 16384, 1, OPT["nt_w"])
b.finish(hist=e.ins)

c = new("compute_pro")
c("L_compute:")
c("v_lshrrev_b32 v1, 4, v0")
c("v_and_b32 v2, 15, v0")
c("v_xor_b32 v3, v1, v2")
c("v_lshlrev_b32 v3, 4, v3")
c("v_lshl_add_u32 v%d, v2, 8, v3" % aK)
for ks in range(1, 4):
    c("v_xor_b32 v%d, %d, v%d" % (aK + ks, ks << 6, aK))
c("s_lshl_b32 s%d, s%d, 12" % (sT0, sWAVE))
c("s_add_u32 s%d, s%d, %d" % (sT0, sT0, STG))
c("v_lshrrev_b32 v3, 5, v0")
c("v_bfe_u32 v4, v0, 1, 3")
c("v_xor_b32 v3, v3, v4")
c("v_lshlrev_b32 v3, 4, v3")
c("v_and_b32 v4, 31, v0")
c("v_lshl_add_u32 v3, v4, 7, v3")
c("v_add_u32 v%d, s%d, v3" % (aXq, sT0))
for s_ in range(1, 4):
    c("v_xor_b32 v%d, %d, v%d" % (aXq + s_, s_ << 5, aXq))
for s_ in range(4):
    c("v_add_u32 v%d, 65536, v%d" % (aX2 + s_, aXq + s_))
c("v_bfe_u32 v2, v0, 2, 2")
c("v_lshrrev_b32 v3, 2, v0")
c("v_and_b32 v4, 7, v3")
c("v_lshlrev_b32 v4, 5, v4")
c("v_lshl_add_u32 v3, v3, 8, v4")
c("v_and_b32 v4, 3, v0")
c("v_lshl_add_u32 v3, v4, 3, v3")
c("v_add_u32 v%d, %d, v3" % (aV, VRING + 16384))
for db in range(1, 8):
    c("v_xor_b32 v%d, %d, v%d" % (aV + db, db << 5, aV))
c("v_mul_u32_u24 v2, 320, v2")
c("v_lshrrev_b32 v3, 5, v0")
c("v_lshl_add_u32 v3, v3, 11, v2")
c("v_and_b32 v4, 1, v0")
c("v_lshl_add_u32 v3, v4, 5, v3")
c("v_and_b32 v4, 1, v1")
c("v_lshl_add_u32 v3, v4, 4, v3")
c("v_bfe_u32 v4, v0, 1, 1")
c("v_lshl_add_u32 v3, v4, 3, v3")
c("v_add_u32 v%d, %d, v3" % (aW, STG))
for dt in range(1, 4):
    c("v_xor_b32 v%d, %d, v%d" % (aW + dt, dt << 6, aW))
for dt in range(4):
    c("v_add_u32 v%d, 65536, v%d" % (aW2 + dt, aW + dt))
c("v_lshrrev_b32 v3, 5, v0")
c("v_lshl_add_u32 v3, v3, 11, v2")
c("v_and_b32 v4, 1, v1")
c("v_lshl_add_u32 v3, v4, 5, v3")
c("v_and_b32 v4, 1, v0")
c("v_lshl_add_u32 v3, v4, 4, v3")
c("v_bfe_u32 v4, v0, 1, 1")
c("v_lshl_add_u32 v3, v4, 3, v3")
c("s_lshl_b32 s%d, s%d, 5" % (sT0, sG))
c("v_xor_b32 v%d, s%d, v3" % (vLO, sT0))
c("s_cmp_eq_u32 s%d, 3" % sWAVE)
c("s_mov_b32 s%d, %s" % (sT0, f32(3e38)))
c("s_cselect_b32 s%d, %s, s%d" % (sPADM, f32(-1e30), sT0))
c("v_and_b32 v2, 31, v0")
c("s_lshl_b32 s%d, s%d, 5" % (sT0, sWAVE))
c("v_add_u32 v3, s%d, v2" % sT0)
c("v_lshlrev_b32 v%d, 4, v0" % vE)
c("v_cmp_lt_u32 vcc, 111, v3")
c("v_bfrev_b32 v3, 1")
c("v_cndmask_b32 v3, 0, v3, vcc")
c("v_or_b32 v%d, v%d, v3" % (vE, vE))
for i in range(64):
    c("v_mov_b32 v%d, 0" % (ACC + i))
c("s_mov_b32 s%d, %s" % (sCS, f32(CSC)))
c("s_mov_b32 s%d, %s" % (sCS + 1, f32(CSC)))
c("s_mov_b32 s%d, %s" % (sTHR, f32(0.0 if OPT["force_rescale"] else OPT["thr"])))
c("s_waitcnt lgkmcnt(0)")
srd(c, SA, sWS, None, "0x10000000")
c("s_mul_i32 s%d, s%d, 114688" % (sT0, sB))
srd(c, SB, sOUT, sT0, "114688")
srd(c, SC, sDBG, None, "256")
c("s_cmp_lg_u32 s%d, 0" % sWAVE)
c("s_cbranch_scc1 L_noclr")
c("s_lshl_b32 s%d, s%d, 9" % (sT0, sWGL))
c("v_lshlrev_b32 v1, 3, v0")
c("buffer_store_dwordx2 v[%d:%d], v1, s[%d:%d], s%d offen sc1" % (ACC, ACC + 1, SA, SA + 3, sT0))
c("L_noclr:")
c("s_lshl_b32 s%d, s%d, 15" % (sE1, sWGL))
c("s_lshl_b32 s%d, s%d, 13" % (sT0, sWAVE))
c("s_add_u32 s%d, s%d, s%d" % (sE1, sE1, sT0))
c("s_add_u32 s%d, s%d, %d" % (sE1, sE1, E1_OFF))
c("s_lshl_b32 s%d, s%d, 2" % (sT0, sB))
c("s_add_u32 s%d, s%d, s%d" % (sT0, sT0, sHN))
c("s_lshl_b32 s%d, s%d, 19" % (sT0, sT0))
c("s_lshl_b32 s%d, s%d, 11" % (sT1, sWAVE))
c("s_add_u32 s%d, s%d, s%d" % (sT0, sT0, sT1))
c("s_add_u32 s%d, s%d, %d" % (sE2P, sT0, E2_OFF))
c("s_lshl_b32 s%d, s%d, 16" % (sT1, sG))
c("s_add_u32 s%d, s%d, s%d" % (sE2C, sE2P, sT1))


def q_reads(n):
    cch, s_ = n >> 2, n & 3
    par = n & 1
    buf = cch % 3
    ax, aw, bo = (aXq, aW, buf * 32768) if buf < 2 else (aX2, aW2, 0)
    r = ["ds_read_b128 %s, v%d offset:%d" % (vr(XB + 4 * par, 4), ax + s_, bo)]
    for dt in range(4):
        for u in range(2):
            r.append("ds_read_b64_tr_b16 %s, v%d offset:%d" % (vr(VF + 16 * par + 4 * dt + 2 * u, 2), aw + dt,
                                                            bo + 16384 + s_ * 4096 + u * 1024))
    return r


def k_reads(slot_off):
    return ["ds_read_b128 %s, v%d offset:%d" % (vr(KF + 16 * kb + 4 * ks, 4), aK + ks, slot_off + kb * 4096)
            for ks in range(4) for kb in range(2)]


c.finish(hist=e.ins)
q = new("qproj")
q("s_barrier")
stamp(q, 1)
q.add(q_reads(0))
for n in range(32):
    par = n & 1
    if (n & 3) == 3:
        q("s_waitcnt lgkmcnt(0)")
        q("s_barrier")
    nxt = q_reads(n + 1) if n < 31 else k_reads(0)
    if n < 31:
        gaps = [nxt[0:3], nxt[3:7], nxt[7:9], []]
    else:
        gaps = [nxt[0:2], nxt[2:4], nxt[4:6], nxt[6:8]]
    mf = ["%s %s, %s, %s, %s" % (M32, vr(ACC + 16 * dt, 16), vr(VF + 16 * par + 4 * dt, 4),
                                 vr(XB + 4 * par, 4), vr(ACC + 16 * dt, 16)) for dt in range(4)]
    q.add(interleave(mf, gaps))
stamp(q, 2)
q("s_waitcnt vmcnt(0)")
q("s_cmp_lg_u32 s%d, 0" % sWAVE)
q("s_cbranch_scc1 L_noarr")
q("s_lshl_b32 s%d, s%d, 4" % (sT0, sB))
q("s_add_u32 s%d, s%d, 128" % (sT0, sT0))
q("v_mov_b32 v1, s%d" % sT0)
q("v_mov_b32 v2, 1")
q("s_mov_b64 exec, 1")
q("buffer_atomic_add v2, v1, s[%d:%d], 0 offen" % (SC, SC + 3))
q("s_mov_b64 exec, -1")
q("L_noarr:")
aO1, aO2, aO3 = aK, aW, aV
for nt in range(4):
    q("v_xor_b32 v%d, %d, v%d" % (aO2 + nt, nt << 6, vLO))
for ks in range(4):
    for m in range(2):
        a0 = ACC + 16 * ks + 8 * m
        for j in range(4):
            q("v_pk_mul_f32 %s, %s, s[%d:%d]" % (vr(a0 + 2 * j, 2), vr(a0 + 2 * j, 2), sCS, sCS + 1))
        for j in range(4):
            q("v_cvt_pk_bf16_f32 v%d, v%d, v%d" % (QF + 16 * m + 4 * ks + j, a0 + 2 * j, a0 + 2 * j + 1))
for ks in range(4):
    for j in range(4):
        q("v_permlane16_swap_b32 v%d, v%d" % (QF + 4 * ks + j, QF + 16 + 4 * ks + j))


def qk_list(SN, first):
    r = []
    for ks in range(4):
        for kb in range(2):
            for blk in range(2):
                d = vr(SN + 8 * blk + 4 * kb, 4)
                cc = d if ks else ("0" if first else vr(NM[blk], 4))
                r.append("%s %s, %s, %s, %s" % (M16, d, vr(KF + 16 * kb + 4 * ks, 4), vr(QF + 16 * blk + 4 * ks, 4), cc))
    return r


k1 = k_reads(8192)
gaps = []
for i in range(16):
    g = ["v_mov_b32 v%d, 0" % (ACC + 4 * i + j) for j in range(4)]
    if i & 1:
        g.append(k1[i >> 1])
    gaps.append(g)
q.add(interleave(qk_list(S0, True), gaps))
for ks in range(4):
    q("v_add_u32 v%d, 16384, v%d" % (aK + ks, aK + ks))
q("v_mov_b32 v%d, 0" % vL[0])
q("v_mov_b32 v%d, 0" % vL[1])


def blk_max(b, S, dst, tmp):
    b("v_max3_f32 v%d, v%d, v%d, v%d" % (dst, S, S + 1, S + 2))
    b("v_max3_f32 v%d, v%d, v%d, v%d" % (dst, dst, S + 3, S + 4))
    b("v_max3_f32 v%d, v%d, v%d, v%d" % (dst, dst, S + 5, S + 6))
    b("v_max_f32 v%d, v%d, v%d" % (dst, dst, S + 7))
    lane_reduce(b, "v_max_f32", dst, tmp)


def lane_reduce(b, op, dst, tmp):
    b("v_mov_b32 v%d, v%d" % (tmp, dst))
    b("v_permlane32_swap_b32 v%d, v%d" % (tmp, dst))
    b("%s v%d, v%d, v%d" % (op, dst, tmp, dst))
    b("v_mov_b32 v%d, v%d" % (tmp, dst))
    b("v_permlane16_swap_b32 v%d, v%d" % (tmp, dst))
    b("%s v%d, v%d, v%d" % (op, dst, tmp, dst))


for blk in range(2):
    blk_max(q, S0 + 8 * blk, 1, 2)
    q("v_sub_f32 v%d, 0, v1" % NM[blk])
    if blk == 1:
        q("v_min_f32 v%d, s%d, v%d" % (NM[blk], sPADM, NM[blk]))
    for j in range(1, 4):
        q("v_mov_b32 v%d, v%d" % (NM[blk] + j, NM[blk]))
    for i in range(8):
        q("v_add_f32 v%d, v%d, v%d" % (S0 + 8 * blk + i, S0 + 8 * blk + i, NM[blk]))
q("s_mov_b32 s%d, 15" % sCNT)
stamp(q, 3)
q.finish(hist=c.ins)


def v_read(db, u, off):
    return "ds_read_b64_tr_b16 %s, v%d offset:%d" % (vr(VF + 4 * db + 2 * u, 2), aV + db, off + u * 4096)


def ex(S, i):
    return "v_exp_f32 v%d, v%d" % (S + i, S + i)


def cvt(S, j):
    return "v_cvt_pk_bf16_f32 v%d, v%d, v%d" % (PK + j, S + 2 * j, S + 2 * j + 1)


def add(S, i):
    return "v_add_f32 v%d, v%d, v%d" % (vL[i >> 3], vL[i >> 3], S + i)


def pv_list():
    r = []
    for db in range(8):
        for blk in range(2):
            d = vr(ACC + 32 * blk + 4 * db, 4)
            r.append("%s %s, %s, %s, %s" % (M16, d, vr(VF + 4 * db, 4), vr(PK + 4 * blk, 4), d))
    return r


def max_tree(S):
    r = ["v_max3_f32 v%d, v%d, v%d, v%d" % (vTM, S, S + 1, S + 2)]
    for i in range(3, 15, 2):
        r.append("v_max3_f32 v%d, v%d, v%d, v%d" % (vTM, vTM, S + i, S + i + 1))
    r.append("v_max_f32 v%d, v%d, v%d" % (vTM, vTM, S + 15))
    return r


def epoch(b, par, kread=True, adv=False, tag=""):
    S, SN = (S0, S1) if par == 0 else (S1, S0)
    off = par * 8192
    vrd = [v_read(db, u, off) for db in range(8) for u in range(2)]
    kr = k_reads(off) if kread else [None] * 8
    b("s_waitcnt lgkmcnt(0)")
    if STAMPS == 3 and tag == "a":
        b("s_cmp_eq_u32 s%d, 13" % sCNT)
        for i in range(6):
            b("s_cselect_b32 s%d, s%d, s%d" % (sSTAMP + 2 * (i + 1), 56 + 2 * i if i < 3 else 90 + 2 * (i - 3), sSTAMP + 2 * (i + 1)))
    b("s_barrier")
    if STAMPS == 3 and tag in ("a", "b"):
        b("s_memtime s[%d:%d]" % ((56, 57) if tag == "a" else (90, 91)))
    ga = [[] for _ in range(16)]
    for i, gi in enumerate([0, 1, 3, 5, 7, 9, 11, 13]):
        ga[gi].append(vrd[i])
    for j in range(7):
        ga[2 * j + 2].append(cvt(S, j))
    for i in range(16):
        ga[i].append(ex(S, i))
    b.add(interleave(qk_list(SN, False), ga))
    if STAMPS == 3 and tag in ("a", "b"):
        b("s_memtime s[%d:%d]" % ((58, 59) if tag == "a" else (92, 93)))
    mx = max_tree(SN)
    gb = [[] for _ in range(16)]
    gb[0] = [cvt(S, 7), vrd[8], vrd[9]]
    gb[1] = [vrd[10], vrd[11]]
    gb[2] = [vrd[12], vrd[13]]
    gb[3] = [vrd[14], vrd[15]]
    for i in range(8):
        gb[4 + i].append(kr[i])
    order = [0, 8, 1, 9, 2, 10, 3, 11, 4, 12, 5, 13, 6, 14, 7, 15]
    for i in range(8):
        gb[4 + i].append(add(S, order[i]))
    for i in range(8):
        gb[12 + (i >> 1)].append(add(S, order[8 + i]))
    for i in range(8):
        gb[8 + i].append(mx[i])
    gb = [[x for x in g if x is not None] for g in gb]
    if adv:
        for i in range(8):
            gb[4 + (i >> 1)].append("v_xor_b32 v%d, 16384, v%d" % (aV + i, aV + i))
        for i in range(4):
            gb[12 + i].append("v_xor_b32 v%d, 16384, v%d" % (aK + i, aK + i))
    b.add(interleave(pv_list(), gb))
    if STAMPS == 3 and tag in ("a", "b"):
        b("s_memtime s[%d:%d]" % ((60, 61) if tag == "a" else (94, 95)))
    b("v_cmp_lt_f32 vcc, s%d, v%d" % (sTHR, vTM))
    b("s_cbranch_vccnz L_resc%s" % tag)
    b("L_back%s:" % tag)
    rescale(tag, SN)


rare = []


def rescale(tag, SN):
    r = Block("resc" + tag)
    r("L_resc%s:" % tag)
    r("s_nop 15")
    for blk in range(2):
        blk_max(r, SN + 8 * blk, 1, 2)
        r("v_max_f32 v1, 0, v1")
        r("v_sub_f32 v2, 0, v1")
        r("v_exp_f32 v2, v2")
        for j in range(4):
            r("v_sub_f32 v%d, v%d, v1" % (NM[blk] + j, NM[blk] + j))
        for i in range(8):
            r("v_sub_f32 v%d, v%d, v1" % (SN + 8 * blk + i, SN + 8 * blk + i))
        r("v_mul_f32 v%d, v%d, v2" % (vL[blk], vL[blk]))
        for i in range(32):
            r("v_mul_f32 v%d, v%d, v2" % (ACC + 32 * blk + i, ACC + 32 * blk + i))
    r("s_nop 1")
    r("s_branch L_back%s" % tag)
    r.finish()
    rare.append(r)


lp = new("loop")
lp("L_att:")
epoch(lp, 0, True, False, "a")
epoch(lp, 1, True, True, "b")
loop_end(lp, "L_att")
lp.finish(hist=q.ins)
pad_hazards(lp.ins, hist=lp.ins, check_only=True, where="loop back edge")

t = new("tail")
stamp(t, 4)
epoch(t, 0, False, False, "c")
S = S1
for i in range(16):
    t(ex(S, i))
for j in range(8):
    t(cvt(S, j))
for i in range(16):
    t(add(S, i))
for nt in range(4):
    t("v_add_u32 v%d, %d, v%d" % (aO1 + nt, STG, aO2 + nt))
for blk in range(2):
    lane_reduce(t, "v_add_f32", vL[blk], 1)
    t("v_max_f32 v%d, %s, v%d" % (vL[blk], f32(1e-30), vL[blk]))
    t("v_rcp_f32 v%d, v%d" % (vL[blk], vL[blk]))
t("s_waitcnt lgkmcnt(0)")
t("s_barrier")
stamp(t, 5)
vrd = [v_read(db, u, 8192) for db in range(8) for u in range(2)]
t.add(vrd[0:10])
t.add(interleave(pv_list(), [vrd[10:12], vrd[12:14], vrd[14:16]] + [[]] * 13))
OB = QF
t("s_add_u32 s%d, s%d, 4096" % (sT0, sE1))
for ks in range(4):
    for blk in range(2):
        a0 = ACC + 32 * blk + 8 * ks
        for i in range(8):
            t("v_mul_f32 v%d, v%d, v%d" % (a0 + i, a0 + i, vL[blk]))
        for j in range(4):
            t("v_cvt_pk_bf16_f32 v%d, v%d, v%d" % (OB + 16 * blk + 4 * ks + j, a0 + 2 * j, a0 + 2 * j + 1))
    for j in range(4):
        t("v_permlane16_swap_b32 v%d, v%d" % (OB + 4 * ks + j, OB + 16 + 4 * ks + j))
    for y in range(2):
        f = 2 * ks + y
        t("buffer_store_dwordx4 %s, v%d, s[%d:%d], s%d offen offset:%d sc1" % (vr(OB + 16 * y + 4 * ks, 4), vE, SA, SA + 3,
                                                                           sE1 if f < 4 else sT0, (f & 3) * 1024))
stamp(t, 6)
t("s_barrier")
stamp(t, 7)

BLK_ADDR = {0: (aO1, [0, 8192, 16384, 24576]), 1: (aO1, [32768, 40960, 49152, 57344]),
            2: (aO3, [0, 8192, 16384, 24576]), 3: (aO2, [0, 8192, 16384, 24576])}
SBUF = {1: S0, 2: KF, 3: XB}


def w_reads(n, nt):
    if n >= 32:
        return []
    j, f = n >> 3, n & 7
    ks, y = f >> 1, f & 1
    a, offs = BLK_ADDR[j]
    return ["ds_read_b64_tr_b16 %s, v%d offset:%d" % (vr(VF + 16 * (n & 1) + 4 * nt + 2 * u, 2), a + nt,
                                                   offs[ks] + u * 4096 + y * 1024) for u in range(2)]


def bfrag(j, f):
    return OB + 16 * (f & 1) + 4 * (f >> 1) if j == 0 else SBUF[j] + 4 * f


def o_step(b, n, extra=None):
    j, f = n >> 3, n & 7
    for nt in range(4):
        b("%s %s, %s, %s, %s" % (M32, vr(ACC + 16 * nt, 16), vr(VF + 16 * (n & 1) + 4 * nt, 4),
                                 vr(bfrag(j, f), 4), "0" if n == 0 else vr(ACC + 16 * nt, 16)))
        b.add(w_reads(n + 2, nt))
        if extra and extra[nt]:
            b.add(extra[nt])


for n in range(2):
    for nt in range(4):
        t.add(w_reads(n, nt))
vM1, vP1, vM2, vP2 = 1, 2, 3, aX
vONE = NM[0]


def mbox(dst, shift, lim, extra, own):
    r = []
    if own:
        r.append("v_mov_b32 v%d, s%d" % (dst, sWGL))
    else:
        r.append("v_lshlrev_b32 v%d, %d, v0" % (dst, shift))
        r.append("v_xor_b32 v%d, s%d, v%d" % (dst, sWGL, dst))
    r.append("v_lshl_add_u32 v%d, v%d, 2, s%d" % (dst, dst, sWAVE))
    r.append("v_lshlrev_b32 v%d, 5, v%d" % (dst, dst))
    r.append("v_add_u32 v%d, v%d, v0" % (dst, dst))
    r.append("v_lshlrev_b32 v%d, 2, v%d" % (dst, dst))
    if extra:
        r.append("v_add_u32 v%d, %d, v%d" % (dst, extra, dst))
    r.append("v_subrev_u32 v%d, 1, v0" % vTM)
    r.append("v_cmp_gt_u32 vcc, %d, v%d" % (lim, vTM))
    r.append("v_bfrev_b32 v%d, 1" % vTM)
    r.append("s_nop 0")
    r.append("v_cndmask_b32 v%d, v%d, v%d, vcc" % (dst, vTM, dst))
    return r


mb = [mbox(vM1, 0, 3, 0, False), mbox(vP1, 0, 3, 0, True), mbox(vM2, 2, 7, 32, False), mbox(vP2, 2, 7, 32, True)]
for n in range(8):
    ex4 = None
    if 1 <= n <= 4:
        m_ = mb[n - 1]
        k3 = (len(m_) + 3) // 4
        ex4 = [m_[i * k3:(i + 1) * k3] for i in range(4)]
    if n == 5:
        ex4 = [["v_mov_b32 v%d, 1" % vONE], [], [], []]
    if n == 6:
        ex4 = [["v_add_u32 v%d, %d, v%d" % (aO3 + nt, STG + 65536, aO2 + nt)] for nt in range(4)]
    o_step(t, n, ex4)
t("s_waitcnt vmcnt(0)")
t("buffer_store_dword v%d, v%d, s[%d:%d], 0 offen sc1" % (vONE, vM1, SA, SA + 3))
stamp(t, 8)


def poll(b, label, vaddr, mask):
    b("s_mov_b32 s%d, 0x100000" % sCNT)
    b(label + ":")
    b("buffer_load_dword v%d, v%d, s[%d:%d], 0 offen sc1" % (vTM, vaddr, SA, SA + 3))
    b("s_sub_u32 s%d, s%d, 1" % (sCNT, sCNT))
    b("s_cmp_eq_u32 s%d, 0" % sCNT)
    b("s_cbranch_scc1 %sd" % label)
    b("s_waitcnt vmcnt(0)")
    b("v_cmp_eq_u32 vcc, 1, v%d" % vTM)
    b("s_cmp_lg_u32 vcc_lo, %d" % mask)
    b("s_cbranch_scc1 " + label)
    b(label + "d:")
    b("s_waitcnt vmcnt(0)")


poll(t, "L_poll1", vP1, 14)
stamp(t, 9)
for j in range(1, 4):
    t("s_xor_b32 s%d, s%d, %d" % (sT0, sE1, j << 15))
    t("s_add_u32 s%d, s%d, 4096" % (sT1, sT0))
    for f in range(8):
        t("buffer_load_dwordx4 %s, v%d, s[%d:%d], s%d offen offset:%d sc1" % (vr(SBUF[j] + 4 * f, 4), vE, SA, SA + 3,
                                                                          sT0 if f < 4 else sT1, (f & 3) * 1024))
for n in range(8, 32):
    o_step(t, n)
stamp(t, 10)
for j in range(1, 8):
    t("s_xor_b32 s%d, s%d, %d" % (sT0, sG, j))
    t("s_lshl_b32 s%d, s%d, 16" % (sT0, sT0))
    t("s_add_u32 s%d, s%d, s%d" % (sT0, sT0, sE2P))
    t("s_add_u32 s%d, s%d, %d" % (sT0, sT0, j * 8192))
    for hf in range(2):
        t("buffer_store_dwordx4 %s, v%d, s[%d:%d], s%d offen offset:%d sc1" % (vr(ACC + 8 * j + 4 * hf, 4), vE, SA, SA + 3,
                                                                           sT0, hf * 1024))
t("s_waitcnt vmcnt(0)")
t("buffer_store_dword v%d, v%d, s[%d:%d], 0 offen sc1" % (vONE, vM2, SA, SA + 3))
stamp(t, 11)
t("v_and_b32 v1, 31, v0")
t("s_lshl_b32 s%d, s%d, 5" % (sT0, sWAVE))
t("v_add_u32 v1, s%d, v1" % sT0)
t("v_lshlrev_b32 v1, 10, v1")
t("v_lshrrev_b32 v2, 5, v0")
t("v_lshl_add_u32 v1, v2, 4, v1")
t("s_lshl_b32 s%d, s%d, 8" % (sT0, sHN))
t("s_lshl_b32 s%d, s%d, 5" % (sT1, sG))
t("s_add_u32 s%d, s%d, s%d" % (sT2, sT0, sT1))
poll(t, "L_poll2", vP2, 0xFE)
stamp(t, 12)
PB = QF
for j in range(1, 8):
    t("s_add_u32 s%d, s%d, %d" % (sT0, sE2C, j * 8192))
    for hf in range(2):
        t("buffer_load_dwordx4 %s, v%d, s[%d:%d], s%d offen offset:%d sc1" % (vr(PB + 8 * (j - 1) + 4 * hf, 4), vE, SA, SA + 3,
                                                                          sT0, hf * 1024))
for j in range(1, 8):
    for i in range(8):
        t("v_add_f32 v%d, v%d, v%d" % (ACC + i, ACC + i, PB + 8 * (j - 1) + i))
for j in range(4):
    t("v_cvt_pk_bf16_f32 v%d, v%d, v%d" % (ACC + 8 + j, ACC + 2 * j, ACC + 2 * j + 1))
t("buffer_store_dwordx4 %s, v1, s[%d:%d], s%d offen" % (vr(ACC + 8, 4), SB, SB + 3, sT2))
if STAMPS:
    t("s_waitcnt vmcnt(0)")
    stamp(t, 13)
    t("s_memtime s[98:99]")
    t("s_waitcnt lgkmcnt(0)")
    t("s_sub_u32 s%d, s98, s96" % (sSTAMP + 28))
    t("s_getreg_b32 s%d, hwreg(HW_REG_XCC_ID)" % (sSTAMP + 30))
    for i in range(16):
        t("v_mov_b32 v%d, s%d" % (ACC + 16 + i, sSTAMP + 2 * i))
    t("s_lshl_b32 s%d, s2, 2" % sT0)
    t("s_add_u32 s%d, s%d, s%d" % (sT0, sT0, sWAVE))
    t("s_lshl_b32 s%d, s%d, 6" % (sT0, sT0))
    t("s_add_u32 s%d, s%d, %d" % (sT0, sT0, ST_OFF))
    t("v_mov_b32 v1, 0")
    t("s_mov_b64 exec, 1")
    for i in range(4):
        t("buffer_store_dwordx4 %s, v1, s[%d:%d], s%d offen offset:%d" % (vr(ACC + 16 + 4 * i, 4), SA, SA + 3, sT0, 16 * i))
t("L_end:")
t("s_endpgm")
t.finish(hist=lp.ins)
for r in rare:
    blocks.append(r)

hdr = open("standalone__mha_block_cached__near_ridge.s.ref").read().split("; Override launch")[0]
out = [hdr.rstrip()]
out.append("; @launch grid=(256,1,1) block=(512,1,1) lds=163840")
out.append('.amdgcn_target "amdgcn-amd-amdhsa--gfx950"')
out.append(".text")
out.append(".globl " + KNAME)
out.append(".p2align 8")
out.append(".type %s,@function" % KNAME)
out.append(KNAME + ":")
for b in blocks:
    out.append("; ---- %s ----" % b.name)
    out.append(b.text())
out.append(".p2align 8")
out.append(".fill 64, 4, 0xbf800000")
out.append('.section .rodata,"a"')
out.append(".p2align 6")
out.append(".amdhsa_kernel " + KNAME)
out.append("""  .amdhsa_next_free_vgpr 256
  .amdhsa_next_free_sgpr 102
  .amdhsa_accum_offset 256
  .amdhsa_group_segment_fixed_size 0
  .amdhsa_kernarg_size 64
  .amdhsa_user_sgpr_count 2
  .amdhsa_user_sgpr_kernarg_segment_ptr 1
  .amdhsa_system_sgpr_workgroup_id_x 1
.end_amdhsa_kernel""")
print("\n".join(out))
```

```python
import sys, struct, math
from asmgen import *

OPT = dict(stamps=0, nt_kv="nt", nt_x="", nt_w="nt", nt_wo="nt", lag=0, probe=-1, thr=8.0, force_rescale=0, k_at="5.5.6.7", v_at="6.6.7.7",
           prio_x=3, prio_w=2)
for a in sys.argv[1:]:
    k, v = a.split("=")
    OPT[k] = type(OPT[k])(v) if not isinstance(OPT[k], str) else v.replace("_", " ").strip()
STAMPS = OPT["stamps"]

KNAME = "standalone__mha_block_cached__near_ridge_kernel"


def f32(x):
    return "0x%08x" % struct.unpack("<I", struct.pack("<f", x))[0]


CSC = math.log2(math.e) / math.sqrt(128.0)

KRING, VRING, STG = 0, 32768, 65536
RING = 32768
MB_OFF, E1_OFF, E2_OFF, ST_OFF = 0x0, 0x100000, 0x1000000, 0x4000000
sX, sK, sV, sWQ, sWO, sOUT, sDBG, sWS = 4, 6, 8, 10, 12, 14, 16, 18
sWAVE, sG, sB, sHN, sH, sWGL = 20, 21, 22, 23, 24, 25
SA, SB, SC = 28, 32, 36
sOFF, sLDS, sCNT, sT0, sT1, sT2 = 40, 41, 42, 43, 44, 45
sCS, sPAIR, sDEL, sE1, sE2P, sE2C = 46, 47, 48, 49, 50, 51
sTHR, sK16, sPADM = 52, 54, 55
sSTAMP = 64
vE, vLO, vTM, aX = 4, 5, 6, 7
aK, aW, aV = 8, 12, 16
NM = (24, 28)
ACC, QF, S0, S1, KF, VF, XB = 32, 96, 128, 144, 160, 192, 224
PK = XB
vL = (232, 233)
K_AT = [int(x) for x in OPT["k_at"].split(".")]
V_AT = [int(x) for x in OPT["v_at"].split(".")]
assert len(K_AT) == 4 and len(V_AT) == 4
NQB = 9
aXq, aX2, aW2 = 128, 132, 136
M16 = "v_mfma_f32_16x16x32_bf16"
M32 = "v_mfma_f32_32x32x16_bf16"


PROBE = OPT["probe"]


def stamp(b, idx):
    if PROBE == idx:
        b("s_memrealtime s[%d:%d]" % (sSTAMP + 2, sSTAMP + 3))
        b("s_waitcnt lgkmcnt(0)")
    if STAMPS == 3 and 1 <= idx <= 6:
        return
    if STAMPS:
        b("s_memrealtime s[%d:%d]" % (sSTAMP + 2 * idx, sSTAMP + 2 * idx + 1))
        b("s_waitcnt lgkmcnt(0)")


def srd(b, dst, ptr, off_sreg, size):
    if off_sreg is None:
        b("s_mov_b32 s%d, s%d" % (dst, ptr))
        b("s_mov_b32 s%d, s%d" % (dst + 1, ptr + 1))
    else:
        b("s_add_u32 s%d, s%d, s%d" % (dst, ptr, off_sreg))
        b("s_addc_u32 s%d, s%d, 0" % (dst + 1, ptr + 1))
    b("s_mov_b32 s%d, %s" % (dst + 2, size))
    b("s_mov_b32 s%d, 0x20000" % (dst + 3))


def dma_group(b, S, voffs, soff, flags, n=4):
    for p in range(n):
        o = " offset:%d" % (p * 1024) if p else ""
        b("buffer_load_dwordx4 v%d, s[%d:%d], s%d offen%s %s lds" % (voffs[p], S, S + 3, soff, o, flags))


blocks = []


def new(name):
    b = Block(name)
    blocks.append(b)
    return b


e = new("entry")
e("s_cmp_ge_u32 s2, 256")
e("s_cbranch_scc1 L_end")
e("s_load_dwordx16 s[4:19], s[0:1], 0")
if PROBE >= 0:
    e("s_memrealtime s[%d:%d]" % (sSTAMP, sSTAMP + 1))
if STAMPS:
    e("s_memrealtime s[%d:%d]" % (sSTAMP, sSTAMP + 1))
    e("s_memtime s[96:97]")
e("v_lshrrev_b32 v1, 6, v0")
e("v_and_b32 v0, 63, v0")
e("v_readfirstlane_b32 s%d, v1" % sWAVE)
e("s_and_b32 s%d, s2, 7" % sG)
e("s_lshr_b32 s%d, s2, 5" % sB)
e("s_lshr_b32 s%d, s2, 3" % sHN)
e("s_and_b32 s%d, s%d, 3" % (sHN, sHN))
e("s_lshl_b32 s%d, s%d, 2" % (sH, sG))
e("s_add_u32 s%d, s%d, s%d" % (sH, sH, sHN))
e("s_lshl_b32 s%d, s%d, 5" % (sWGL, sB))
e("s_add_u32 s%d, s%d, s%d" % (sWGL, sWGL, sH))
e("s_cmp_lt_u32 s%d, 4" % sWAVE)
e("s_cbranch_scc1 L_compute")
e("v_lshrrev_b32 v1, 4, v0")
e("v_and_b32 v3, 15, v0")
e("v_lshlrev_b32 v2, 2, v1")
e("v_xor_b32 v2, v2, v3")
e("v_lshlrev_b32 v2, 4, v2")
e("s_cmp_eq_u32 s%d, 6" % sWAVE)
e("s_cbranch_scc1 L_ldx")
e("s_cmp_eq_u32 s%d, 7" % sWAVE)
e("s_cbranch_scc1 L_ldw")
e("s_cmp_eq_u32 s%d, 5" % sWAVE)
e("s_cbranch_scc1 L_ldv")
e.finish()

WOV = [14, 15, 16, 17]


def wo_setup(b):
    b("v_lshl_add_u32 v14, v1, 10, v2")
    b("v_add_u32 v15, 3072, v14")
    b("v_add_u32 v16, 6144, v14")
    b("v_add_u32 v17, 9216, v14")
    b("s_lshl_b32 s%d, s%d, 19" % (sT0, sG))
    b("s_lshl_b32 s%d, s%d, 8" % (sT1, sHN))
    b("s_add_u32 s%d, s%d, s%d" % (sT0, sT0, sT1))
    b("s_sub_u32 s%d, 0x400000, s%d" % (sT1, sT0))
    srd(b, SB, sWO, sT0, "s%d" % sT1)


def kv_tile(b, voffs, base):
    fl = OPT["nt_kv"]
    b("s_mov_b32 m0, s%d" % sLDS)
    b("s_add_u32 s%d, s%d, 4096" % (sT0, sLDS))
    dma_group(b, SA, voffs, sOFF, fl)
    b("s_mov_b32 m0, s%d" % sT0)
    b("s_add_u32 s%d, s%d, 4096" % (sOFF, sOFF))
    dma_group(b, SA, voffs, sOFF, fl)
    b("s_add_u32 s%d, s%d, 4096" % (sOFF, sOFF))
    ring_adv(b, base)


def ring_adv(b, base):
    b("s_add_u32 s%d, s%d, 8192" % (sLDS, sLDS))
    b("s_cmp_eq_u32 s%d, %d" % (sLDS, base + RING))
    b("s_cselect_b32 s%d, %d, s%d" % (sLDS, base, sLDS))


def wo_tile(b):
    b("s_mov_b32 m0, s%d" % sLDS)
    b("s_add_u32 s%d, s%d, 4096" % (sT0, sLDS))
    dma_group(b, SB, WOV, sOFF, OPT["nt_wo"])
    b("s_mov_b32 m0, s%d" % sT0)
    b("s_add_u32 s%d, s%d, 16384" % (sOFF, sOFF))
    dma_group(b, SB, WOV, sOFF, OPT["nt_wo"])
    b("s_add_u32 s%d, s%d, 16384" % (sOFF, sOFF))


def loop_begin(b, label, n):
    b("s_mov_b32 s%d, %d" % (sCNT, n))
    b(label + ":")


def loop_end(b, label):
    b("s_sub_u32 s%d, s%d, 1" % (sCNT, sCNT))
    b("s_cmp_lg_u32 s%d, 0" % sCNT)
    b("s_cbranch_scc1 " + label)


b = new("ldk")
b("L_ldk:")
for p in range(4):
    b("v_add_u32 v4, %d, v1" % (4 * p))
    b("v_xor_b32 v4, v4, v3")
    b("v_lshlrev_b32 v4, 4, v4")
    b("v_lshl_add_u32 v%d, v1, 8, v4" % (10 + p))
b("s_lshl_b32 s%d, s%d, 18" % (sT0, sWGL))
b("s_waitcnt lgkmcnt(0)")
srd(b, SA, sK, sT0, "0x40000")
b("s_mov_b32 s%d, 0" % sOFF)
b("s_mov_b32 s%d, %d" % (sLDS, KRING))
KV4 = [10, 11, 12, 13]
for _ in range(K_AT.count(-1)):
    kv_tile(b, KV4, KRING)
wo_setup(b)
for i in range(NQB):
    if i == NQB - 1:
        b("s_waitcnt vmcnt(16)")
    b("s_barrier")
    for _ in range(K_AT.count(i)):
        kv_tile(b, KV4, KRING)
b("s_waitcnt vmcnt(8)")
b("s_barrier")
kv_tile(b, KV4, KRING)
LAG = OPT["lag"]
if not LAG:
    kv_tile(b, KV4, KRING)
loop_begin(b, "L_k1", 26 + LAG)
b("s_waitcnt vmcnt(%d)" % (16 - 8 * LAG))
b("s_barrier")
kv_tile(b, KV4, KRING)
loop_end(b, "L_k1")
b("s_xor_b32 s%d, s%d, 3" % (sOFF, sHN))
b("s_lshl_b32 s%d, s%d, 17" % (sOFF, sOFF))
b("s_mov_b32 s%d, %d" % (sLDS, KRING))
for n in (16, 8, 0)[LAG:]:
    b("s_waitcnt vmcnt(%d)" % n)
    b("s_barrier")
b("s_barrier")
loop_begin(b, "L_k2", 4)
wo_tile(b)
b("s_add_u32 s%d, s%d, 8192" % (sLDS, sLDS))
loop_end(b, "L_k2")
b("s_barrier")
b("s_waitcnt vmcnt(0)")
b("s_barrier")
b("s_endpgm")
b.finish(hist=e.ins)

b = new("ldv")
b("L_ldv:")
for par in range(2):
    b("v_lshlrev_b32 v4, 1, v1")
    b("v_xor_b32 v4, v4, v3")
    if par:
        b("v_xor_b32 v4, 8, v4")
    b("v_lshlrev_b32 v4, 4, v4")
    b("v_lshl_add_u32 v%d, v1, 8, v4" % (10 + par))
b("s_lshl_b32 s%d, s%d, 18" % (sT0, sWGL))
b("s_waitcnt lgkmcnt(0)")
srd(b, SA, sV, sT0, "0x40000")
b("s_mov_b32 s%d, 0" % sOFF)
b("s_mov_b32 s%d, %d" % (sLDS, VRING + 2 * 8192))
V4 = [10, 11, 10, 11]
for _ in range(V_AT.count(-1)):
    kv_tile(b, V4, VRING)
for i in range(NQB):
    b("s_barrier")
    for _ in range(V_AT.count(i)):
        kv_tile(b, V4, VRING)
b("s_waitcnt vmcnt(24)")
b("s_barrier")
if LAG:
    b("s_waitcnt vmcnt(16)")
    b("s_barrier")
loop_begin(b, "L_v1", 28)
b("s_waitcnt vmcnt(%d)" % (16 - 8 * LAG))
if STAMPS:
    b("s_memrealtime s[60:61]")
    b("s_waitcnt lgkmcnt(0)")
b("s_barrier")
if STAMPS:
    b("s_memrealtime s[62:63]")
    b("s_waitcnt lgkmcnt(0)")
    b("s_mov_b32 m0, s%d" % sCNT)
    b("s_nop 0")
    b("v_writelane_b32 v20, s60, m0")
    b("v_writelane_b32 v21, s62, m0")
kv_tile(b, V4, VRING)
loop_end(b, "L_v1")
for n in (16, 8, 0)[LAG:]:
    b("s_waitcnt vmcnt(%d)" % n)
    b("s_barrier")
b("s_barrier")
if STAMPS:
    srd(b, SA, sWS, None, "0x10000000")
    b("s_lshl_b32 s%d, s2, 9" % sT0)
    b("s_add_u32 s%d, s%d, %d" % (sT0, sT0, ST_OFF + 0x100000))
    b("v_lshlrev_b32 v1, 2, v0")
    b("buffer_store_dword v20, v1, s[%d:%d], s%d offen" % (SA, SA + 3, sT0))
    b("buffer_store_dword v21, v1, s[%d:%d], s%d offen offset:256" % (SA, SA + 3, sT0))
b("s_endpgm")
b.finish(hist=e.ins)


def q_loader(b, tag, gstep, kstep_shift, ldsbase, blk, flags):
    def chunk():
        b("s_lshl_b32 s%d, s%d, %d" % (sOFF, sT2, kstep_shift))
        b("s_mov_b32 m0, s%d" % sLDS)
        b("s_add_u32 s%d, s%d, 1" % (sT2, sT2))
        dma_group(b, SA, [10, 11, 12, 13], sOFF, flags)
        for g in range(1, 4):
            b("s_add_u32 m0, s%d, %d" % (sLDS, 4096 * g))
            b("s_add_u32 s%d, s%d, %d" % (sOFF, sOFF, gstep))
            dma_group(b, SA, [10, 11, 12, 13], sOFF, flags)
        b("s_and_b32 s%d, s%d, 7" % (sT2, sT2))
        b("s_add_u32 s%d, s%d, 32768" % (sLDS, sLDS))
        b("s_cmp_eq_u32 s%d, %d" % (sLDS, ldsbase + 98304))
        b("s_cselect_b32 s%d, %d, s%d" % (sLDS, ldsbase, sLDS))
    b("s_lshl_b32 s%d, s%d, 1" % (sT2, sHN))
    b("s_add_u32 s%d, s%d, s%d" % (sT2, sT2, sB))
    b("s_and_b32 s%d, s%d, 7" % (sT2, sT2))
    b("s_mov_b32 s%d, %d" % (sLDS, ldsbase))
    loop_begin(b, "L_%s0" % tag, 2)
    chunk()
    loop_end(b, "L_%s0" % tag)
    loop_begin(b, "L_%s1" % tag, 6)
    b("s_waitcnt vmcnt(16)")
    b("s_barrier")
    chunk()
    loop_end(b, "L_%s1" % tag)
    wo_setup(b)
    b("s_waitcnt vmcnt(16)")
    b("s_barrier")
    b("s_waitcnt vmcnt(0)")
    b("s_barrier")
    b("s_barrier")
    b("s_setprio 0")
    first = 4 if blk == 0 else 2
    for i in range(first + 1):
        b("s_barrier")
    b("s_xor_b32 s%d, s%d, %d" % (sOFF, sHN, blk))
    b("s_lshl_b32 s%d, s%d, 17" % (sOFF, sOFF))
    b("s_mov_b32 s%d, %d" % (sLDS, STG + blk * 32768))
    loop_begin(b, "L_%s2" % tag, 4)
    wo_tile(b)
    b("s_add_u32 s%d, s%d, 8192" % (sLDS, sLDS))
    for i in range(4):
        b("s_barrier")
    loop_end(b, "L_%s2" % tag)
    b("s_xor_b32 s%d, s%d, 2" % (sOFF, sHN))
    b("s_lshl_b32 s%d, s%d, 17" % (sOFF, sOFF))
    b("s_add_u32 s%d, s%d, %d" % (sOFF, sOFF, blk * 65536))
    b("s_mov_b32 s%d, %d" % (sLDS, STG + 65536 + blk * 16384))
    wo_tile(b)
    b("s_add_u32 s%d, s%d, 8192" % (sLDS, sLDS))
    if tag == "w":
        srd(b, SC, sDBG, None, "256")
        b("s_lshl_b32 s%d, s%d, 4" % (sT0, sB))
        b("s_add_u32 s%d, s%d, 128" % (sT0, sT0))
        b("v_mov_b32 v4, s%d" % sT0)
        b("buffer_load_dword v5, v4, s[%d:%d], 0 offen sc1" % (SC, SC + 3))
    for i in range(4):
        b("s_barrier")
    wo_tile(b)
    done = first + 20
    if tag == "w":
        for i in range(3):
            b("s_barrier")
        done += 3
        b("s_mov_b32 s%d, 0x100000" % sCNT)
        b("s_branch L_wchk")
        b("L_wpoll:")
        b("buffer_load_dword v5, v4, s[%d:%d], 0 offen sc1" % (SC, SC + 3))
        b("L_wchk:")
        b("s_waitcnt vmcnt(0)")
        b("v_readfirstlane_b32 s%d, v5" % sT0)
        b("s_sub_u32 s%d, s%d, 1" % (sCNT, sCNT))
        b("s_cmp_eq_u32 s%d, 0" % sCNT)
        b("s_cbranch_scc1 L_wpolld")
        b("s_cmp_lt_u32 s%d, 32" % sT0)
        b("s_cbranch_scc1 L_wpoll")
        b("L_wpolld:")
    for i in range(31 - done):
        b("s_barrier")
    b("s_waitcnt vmcnt(0)")
    b("s_barrier")
    b("s_endpgm")


b = new("ldx")
b("L_ldx:")
b("s_setprio %d" % OPT["prio_x"])
b("v_lshrrev_b32 v5, 3, v0")
b("v_and_b32 v6, 7, v0")
b("v_lshrrev_b32 v7, 1, v5")
for p in range(4):
    b("v_add_u32 v4, %d, v7" % (4 * (p & 1)))
    b("v_xor_b32 v4, v4, v6")
    b("v_lshlrev_b32 v4, 4, v4")
    b("v_lshl_add_u32 v4, v5, 10, v4")
    b("v_add_u32 v%d, %d, v4" % (10 + p, p * (8192 - 1024)))
b("s_mul_i32 s%d, s%d, 114688" % (sT0, sB))
b("s_waitcnt lgkmcnt(0)")
srd(b, SA, sX, sT0, "114688")
q_loader(b, "x", 32768, 7, STG, 0, OPT["nt_x"])
b.finish(hist=e.ins)

b = new("ldw")
b("L_ldw:")
b("s_setprio %d" % OPT["prio_w"])
b("v_lshl_add_u32 v10, v1, 13, v2")
for p in range(1, 4):
    b("v_add_u32 v%d, %d, v10" % (10 + p, p * (32768 - 1024)))
b("s_lshl_b32 s%d, s%d, 8" % (sT0, sH))
b("s_sub_u32 s%d, 0x400000, s%d" % (sT1, sT0))
b("s_waitcnt lgkmcnt(0)")
srd(b, SA, sWQ, sT0, "s%d" % sT1)
q_loader(b, "w", 131072, 19, STG + 16384, 1, OPT["nt_w"])
b.finish(hist=e.ins)

c = new("compute_pro")
c("L_compute:")
c("v_lshrrev_b32 v1, 4, v0")
c("v_and_b32 v2, 15, v0")
c("v_xor_b32 v3, v1, v2")
c("v_lshlrev_b32 v3, 4, v3")
c("v_lshl_add_u32 v%d, v2, 8, v3" % aK)
for ks in range(1, 4):
    c("v_xor_b32 v%d, %d, v%d" % (aK + ks, ks << 6, aK))
c("s_lshl_b32 s%d, s%d, 12" % (sT0, sWAVE))
c("s_add_u32 s%d, s%d, %d" % (sT0, sT0, STG))
c("v_lshrrev_b32 v3, 5, v0")
c("v_bfe_u32 v4, v0, 1, 3")
c("v_xor_b32 v3, v3, v4")
c("v_lshlrev_b32 v3, 4, v3")
c("v_and_b32 v4, 31, v0")
c("v_lshl_add_u32 v3, v4, 7, v3")
c("v_add_u32 v%d, s%d, v3" % (aXq, sT0))
for s_ in range(1, 4):
    c("v_xor_b32 v%d, %d, v%d" % (aXq + s_, s_ << 5, aXq))
for s_ in range(4):
    c("v_add_u32 v%d, 65536, v%d" % (aX2 + s_, aXq + s_))
c("v_bfe_u32 v2, v0, 2, 2")
c("v_lshrrev_b32 v3, 2, v0")
c("v_and_b32 v4, 7, v3")
c("v_lshlrev_b32 v4, 5, v4")
c("v_lshl_add_u32 v3, v3, 8, v4")
c("v_and_b32 v4, 3, v0")
c("v_lshl_add_u32 v3, v4, 3, v3")
c("v_add_u32 v%d, %d, v3" % (aV, VRING + 16384))
for db in range(1, 8):
    c("v_xor_b32 v%d, %d, v%d" % (aV + db, db << 5, aV))
c("v_mul_u32_u24 v2, 320, v2")
c("v_lshrrev_b32 v3, 5, v0")
c("v_lshl_add_u32 v3, v3, 11, v2")
c("v_and_b32 v4, 1, v0")
c("v_lshl_add_u32 v3, v4, 5, v3")
c("v_and_b32 v4, 1, v1")
c("v_lshl_add_u32 v3, v4, 4, v3")
c("v_bfe_u32 v4, v0, 1, 1")
c("v_lshl_add_u32 v3, v4, 3, v3")
c("v_add_u32 v%d, %d, v3" % (aW, STG))
for dt in range(1, 4):
    c("v_xor_b32 v%d, %d, v%d" % (aW + dt, dt << 6, aW))
for dt in range(4):
    c("v_add_u32 v%d, 65536, v%d" % (aW2 + dt, aW + dt))
c("v_lshrrev_b32 v3, 5, v0")
c("v_lshl_add_u32 v3, v3, 11, v2")
c("v_and_b32 v4, 1, v1")
c("v_lshl_add_u32 v3, v4, 5, v3")
c("v_and_b32 v4, 1, v0")
c("v_lshl_add_u32 v3, v4, 4, v3")
c("v_bfe_u32 v4, v0, 1, 1")
c("v_lshl_add_u32 v3, v4, 3, v3")
c("s_lshl_b32 s%d, s%d, 5" % (sT0, sG))
c("v_xor_b32 v%d, s%d, v3" % (vLO, sT0))
c("s_cmp_eq_u32 s%d, 3" % sWAVE)
c("s_mov_b32 s%d, %s" % (sT0, f32(3e38)))
c("s_cselect_b32 s%d, %s, s%d" % (sPADM, f32(-1e30), sT0))
c("v_and_b32 v2, 31, v0")
c("s_lshl_b32 s%d, s%d, 5" % (sT0, sWAVE))
c("v_add_u32 v3, s%d, v2" % sT0)
c("v_lshlrev_b32 v%d, 4, v0" % vE)
c("v_cmp_lt_u32 vcc, 111, v3")
c("v_bfrev_b32 v3, 1")
c("v_cndmask_b32 v3, 0, v3, vcc")
c("v_or_b32 v%d, v%d, v3" % (vE, vE))
for i in range(64):
    c("v_mov_b32 v%d, 0" % (ACC + i))
c("s_mov_b32 s%d, %s" % (sCS, f32(CSC)))
c("s_mov_b32 s%d, %s" % (sCS + 1, f32(CSC)))
c("s_mov_b32 s%d, %s" % (sTHR, f32(0.0 if OPT["force_rescale"] else OPT["thr"])))
c("s_waitcnt lgkmcnt(0)")
srd(c, SA, sWS, None, "0x10000000")
c("s_mul_i32 s%d, s%d, 114688" % (sT0, sB))
srd(c, SB, sOUT, sT0, "114688")
srd(c, SC, sDBG, None, "256")
c("s_cmp_lg_u32 s%d, 0" % sWAVE)
c("s_cbranch_scc1 L_noclr")
c("s_lshl_b32 s%d, s%d, 9" % (sT0, sWGL))
c("v_lshlrev_b32 v1, 3, v0")
c("buffer_store_dwordx2 v[%d:%d], v1, s[%d:%d], s%d offen sc1" % (ACC, ACC + 1, SA, SA + 3, sT0))
c("L_noclr:")
c("s_lshl_b32 s%d, s%d, 15" % (sE1, sWGL))
c("s_lshl_b32 s%d, s%d, 13" % (sT0, sWAVE))
c("s_add_u32 s%d, s%d, s%d" % (sE1, sE1, sT0))
c("s_add_u32 s%d, s%d, %d" % (sE1, sE1, E1_OFF))
c("s_lshl_b32 s%d, s%d, 2" % (sT0, sB))
c("s_add_u32 s%d, s%d, s%d" % (sT0, sT0, sHN))
c("s_lshl_b32 s%d, s%d, 19" % (sT0, sT0))
c("s_lshl_b32 s%d, s%d, 11" % (sT1, sWAVE))
c("s_add_u32 s%d, s%d, s%d" % (sT0, sT0, sT1))
c("s_add_u32 s%d, s%d, %d" % (sE2P, sT0, E2_OFF))
c("s_lshl_b32 s%d, s%d, 16" % (sT1, sG))
c("s_add_u32 s%d, s%d, s%d" % (sE2C, sE2P, sT1))


def q_reads(n):
    cch, s_ = n >> 2, n & 3
    par = n & 1
    buf = cch % 3
    ax, aw, bo = (aXq, aW, buf * 32768) if buf < 2 else (aX2, aW2, 0)
    r = ["ds_read_b128 %s, v%d offset:%d" % (vr(XB + 4 * par, 4), ax + s_, bo)]
    for dt in range(4):
        for u in range(2):
            r.append("ds_read_b64_tr_b16 %s, v%d offset:%d" % (vr(VF + 16 * par + 4 * dt + 2 * u, 2), aw + dt,
                                                            bo + 16384 + s_ * 4096 + u * 1024))
    return r


def k_reads(slot_off):
    return ["ds_read_b128 %s, v%d offset:%d" % (vr(KF + 16 * kb + 4 * ks, 4), aK + ks, slot_off + kb * 4096)
            for ks in range(4) for kb in range(2)]


c.finish(hist=e.ins)
q = new("qproj")
q("s_barrier")
stamp(q, 1)
q.add(q_reads(0))
for n in range(32):
    par = n & 1
    if (n & 3) == 3:
        q("s_waitcnt lgkmcnt(0)")
        q("s_barrier")
    nxt = q_reads(n + 1) if n < 31 else k_reads(0)
    if n < 31:
        gaps = [nxt[0:3], nxt[3:7], nxt[7:9], []]
    else:
        gaps = [nxt[0:2], nxt[2:4], nxt[4:6], nxt[6:8]]
    mf = ["%s %s, %s, %s, %s" % (M32, vr(ACC + 16 * dt, 16), vr(VF + 16 * par + 4 * dt, 4),
                                 vr(XB + 4 * par, 4), vr(ACC + 16 * dt, 16)) for dt in range(4)]
    q.add(interleave(mf, gaps))
stamp(q, 2)
q("s_waitcnt vmcnt(0)")
q("s_cmp_lg_u32 s%d, 0" % sWAVE)
q("s_cbranch_scc1 L_noarr")
q("s_lshl_b32 s%d, s%d, 4" % (sT0, sB))
q("s_add_u32 s%d, s%d, 128" % (sT0, sT0))
q("v_mov_b32 v1, s%d" % sT0)
q("v_mov_b32 v2, 1")
q("s_mov_b64 exec, 1")
q("buffer_atomic_add v2, v1, s[%d:%d], 0 offen" % (SC, SC + 3))
q("s_mov_b64 exec, -1")
q("L_noarr:")
aO1, aO2, aO3 = aK, aW, aV
for nt in range(4):
    q("v_xor_b32 v%d, %d, v%d" % (aO2 + nt, nt << 6, vLO))
for ks in range(4):
    for m in range(2):
        a0 = ACC + 16 * ks + 8 * m
        for j in range(4):
            q("v_pk_mul_f32 %s, %s, s[%d:%d]" % (vr(a0 + 2 * j, 2), vr(a0 + 2 * j, 2), sCS, sCS + 1))
        for j in range(4):
            q("v_cvt_pk_bf16_f32 v%d, v%d, v%d" % (QF + 16 * m + 4 * ks + j, a0 + 2 * j, a0 + 2 * j + 1))
for ks in range(4):
    for j in range(4):
        q("v_permlane16_swap_b32 v%d, v%d" % (QF + 4 * ks + j, QF + 16 + 4 * ks + j))


def qk_list(SN, first):
    r = []
    for ks in range(4):
        for kb in range(2):
            for blk in range(2):
                d = vr(SN + 8 * blk + 4 * kb, 4)
                cc = d if ks else ("0" if first else vr(NM[blk], 4))
                r.append("%s %s, %s, %s, %s" % (M16, d, vr(KF + 16 * kb + 4 * ks, 4), vr(QF + 16 * blk + 4 * ks, 4), cc))
    return r


k1 = k_reads(8192)
gaps = []
for i in range(16):
    g = ["v_mov_b32 v%d, 0" % (ACC + 4 * i + j) for j in range(4)]
    if i & 1:
        g.append(k1[i >> 1])
    gaps.append(g)
q.add(interleave(qk_list(S0, True), gaps))
for ks in range(4):
    q("v_add_u32 v%d, 16384, v%d" % (aK + ks, aK + ks))
q("v_mov_b32 v%d, 0" % vL[0])
q("v_mov_b32 v%d, 0" % vL[1])


def blk_max(b, S, dst, tmp):
    b("v_max3_f32 v%d, v%d, v%d, v%d" % (dst, S, S + 1, S + 2))
    b("v_max3_f32 v%d, v%d, v%d, v%d" % (dst, dst, S + 3, S + 4))
    b("v_max3_f32 v%d, v%d, v%d, v%d" % (dst, dst, S + 5, S + 6))
    b("v_max_f32 v%d, v%d, v%d" % (dst, dst, S + 7))
    lane_reduce(b, "v_max_f32", dst, tmp)


def lane_reduce(b, op, dst, tmp):
    b("v_mov_b32 v%d, v%d" % (tmp, dst))
    b("v_permlane32_swap_b32 v%d, v%d" % (tmp, dst))
    b("%s v%d, v%d, v%d" % (op, dst, tmp, dst))
    b("v_mov_b32 v%d, v%d" % (tmp, dst))
    b("v_permlane16_swap_b32 v%d, v%d" % (tmp, dst))
    b("%s v%d, v%d, v%d" % (op, dst, tmp, dst))


for blk in range(2):
    blk_max(q, S0 + 8 * blk, 1, 2)
    q("v_sub_f32 v%d, 0, v1" % NM[blk])
    if blk == 1:
        q("v_min_f32 v%d, s%d, v%d" % (NM[blk], sPADM, NM[blk]))
    for j in range(1, 4):
        q("v_mov_b32 v%d, v%d" % (NM[blk] + j, NM[blk]))
    for i in range(8):
        q("v_add_f32 v%d, v%d, v%d" % (S0 + 8 * blk + i, S0 + 8 * blk + i, NM[blk]))
q("s_mov_b32 s%d, 15" % sCNT)
stamp(q, 3)
q.finish(hist=c.ins)


def v_read(db, u, off):
    return "ds_read_b64_tr_b16 %s, v%d offset:%d" % (vr(VF + 4 * db + 2 * u, 2), aV + db, off + u * 4096)


def ex(S, i):
    return "v_exp_f32 v%d, v%d" % (S + i, S + i)


def cvt(S, j):
    return "v_cvt_pk_bf16_f32 v%d, v%d, v%d" % (PK + j, S + 2 * j, S + 2 * j + 1)


def add(S, i):
    return "v_add_f32 v%d, v%d, v%d" % (vL[i >> 3], vL[i >> 3], S + i)


def pv_list():
    r = []
    for db in range(8):
        for blk in range(2):
            d = vr(ACC + 32 * blk + 4 * db, 4)
            r.append("%s %s, %s, %s, %s" % (M16, d, vr(VF + 4 * db, 4), vr(PK + 4 * blk, 4), d))
    return r


def max_tree(S):
    r = ["v_max3_f32 v%d, v%d, v%d, v%d" % (vTM, S, S + 1, S + 2)]
    for i in range(3, 15, 2):
        r.append("v_max3_f32 v%d, v%d, v%d, v%d" % (vTM, vTM, S + i, S + i + 1))
    r.append("v_max_f32 v%d, v%d, v%d" % (vTM, vTM, S + 15))
    return r


def epoch(b, par, kread=True, adv=False, tag=""):
    S, SN = (S0, S1) if par == 0 else (S1, S0)
    off = par * 8192
    vrd = [v_read(db, u, off) for db in range(8) for u in range(2)]
    kr = k_reads(off) if kread else [None] * 8
    b("s_waitcnt lgkmcnt(0)")
    if STAMPS == 3 and tag == "a":
        b("s_cmp_eq_u32 s%d, 13" % sCNT)
        for i in range(6):
            b("s_cselect_b32 s%d, s%d, s%d" % (sSTAMP + 2 * (i + 1), 56 + 2 * i if i < 3 else 90 + 2 * (i - 3), sSTAMP + 2 * (i + 1)))
    b("s_barrier")
    if STAMPS == 3 and tag in ("a", "b"):
        b("s_memtime s[%d:%d]" % ((56, 57) if tag == "a" else (90, 91)))
    ga = [[] for _ in range(16)]
    for i, gi in enumerate([0, 1, 3, 5, 7, 9, 11, 13]):
        ga[gi].append(vrd[i])
    for j in range(7):
        ga[2 * j + 2].append(cvt(S, j))
    for i in range(16):
        ga[i].append(ex(S, i))
    b.add(interleave(qk_list(SN, False), ga))
    if STAMPS == 3 and tag in ("a", "b"):
        b("s_memtime s[%d:%d]" % ((58, 59) if tag == "a" else (92, 93)))
    mx = max_tree(SN)
    gb = [[] for _ in range(16)]
    gb[0] = [cvt(S, 7), vrd[8], vrd[9]]
    gb[1] = [vrd[10], vrd[11]]
    gb[2] = [vrd[12], vrd[13]]
    gb[3] = [vrd[14], vrd[15]]
    for i in range(8):
        gb[4 + i].append(kr[i])
    order = [0, 8, 1, 9, 2, 10, 3, 11, 4, 12, 5, 13, 6, 14, 7, 15]
    for i in range(8):
        gb[4 + i].append(add(S, order[i]))
    for i in range(8):
        gb[12 + (i >> 1)].append(add(S, order[8 + i]))
    for i in range(8):
        gb[8 + i].append(mx[i])
    gb = [[x for x in g if x is not None] for g in gb]
    if adv:
        for i in range(8):
            gb[4 + (i >> 1)].append("v_xor_b32 v%d, 16384, v%d" % (aV + i, aV + i))
        for i in range(4):
            gb[12 + i].append("v_xor_b32 v%d, 16384, v%d" % (aK + i, aK + i))
    b.add(interleave(pv_list(), gb))
    if STAMPS == 3 and tag in ("a", "b"):
        b("s_memtime s[%d:%d]" % ((60, 61) if tag == "a" else (94, 95)))
    b("v_cmp_lt_f32 vcc, s%d, v%d" % (sTHR, vTM))
    b("s_cbranch_vccnz L_resc%s" % tag)
    b("L_back%s:" % tag)
    rescale(tag, SN)


rare = []


def rescale(tag, SN):
    r = Block("resc" + tag)
    r("L_resc%s:" % tag)
    r("s_nop 15")
    for blk in range(2):
        blk_max(r, SN + 8 * blk, 1, 2)
        r("v_max_f32 v1, 0, v1")
        r("v_sub_f32 v2, 0, v1")
        r("v_exp_f32 v2, v2")
        for j in range(4):
            r("v_sub_f32 v%d, v%d, v1" % (NM[blk] + j, NM[blk] + j))
        for i in range(8):
            r("v_sub_f32 v%d, v%d, v1" % (SN + 8 * blk + i, SN + 8 * blk + i))
        r("v_mul_f32 v%d, v%d, v2" % (vL[blk], vL[blk]))
        for i in range(32):
            r("v_mul_f32 v%d, v%d, v2" % (ACC + 32 * blk + i, ACC + 32 * blk + i))
    r("s_nop 1")
    r("s_branch L_back%s" % tag)
    r.finish()
    rare.append(r)


lp = new("loop")
lp("L_att:")
epoch(lp, 0, True, False, "a")
epoch(lp, 1, True, True, "b")
loop_end(lp, "L_att")
lp.finish(hist=q.ins)
pad_hazards(lp.ins, hist=lp.ins, check_only=True, where="loop back edge")

t = new("tail")
stamp(t, 4)
epoch(t, 0, False, False, "c")
S = S1
for i in range(16):
    t(ex(S, i))
for j in range(8):
    t(cvt(S, j))
for i in range(16):
    t(add(S, i))
for nt in range(4):
    t("v_add_u32 v%d, %d, v%d" % (aO1 + nt, STG, aO2 + nt))
for blk in range(2):
    lane_reduce(t, "v_add_f32", vL[blk], 1)
    t("v_max_f32 v%d, %s, v%d" % (vL[blk], f32(1e-30), vL[blk]))
    t("v_rcp_f32 v%d, v%d" % (vL[blk], vL[blk]))
t("s_waitcnt lgkmcnt(0)")
t("s_barrier")
stamp(t, 5)
vrd = [v_read(db, u, 8192) for db in range(8) for u in range(2)]
t.add(vrd[0:10])
t.add(interleave(pv_list(), [vrd[10:12], vrd[12:14], vrd[14:16]] + [[]] * 13))
OB = QF
t("s_add_u32 s%d, s%d, 4096" % (sT0, sE1))
for ks in range(4):
    for blk in range(2):
        a0 = ACC + 32 * blk + 8 * ks
        for i in range(8):
            t("v_mul_f32 v%d, v%d, v%d" % (a0 + i, a0 + i, vL[blk]))
        for j in range(4):
            t("v_cvt_pk_bf16_f32 v%d, v%d, v%d" % (OB + 16 * blk + 4 * ks + j, a0 + 2 * j, a0 + 2 * j + 1))
    for j in range(4):
        t("v_permlane16_swap_b32 v%d, v%d" % (OB + 4 * ks + j, OB + 16 + 4 * ks + j))
    for y in range(2):
        f = 2 * ks + y
        t("buffer_store_dwordx4 %s, v%d, s[%d:%d], s%d offen offset:%d sc1" % (vr(OB + 16 * y + 4 * ks, 4), vE, SA, SA + 3,
                                                                           sE1 if f < 4 else sT0, (f & 3) * 1024))
stamp(t, 6)
t("s_barrier")
stamp(t, 7)

BLK_ADDR = {0: (aO1, [0, 8192, 16384, 24576]), 1: (aO1, [32768, 40960, 49152, 57344]),
            2: (aO3, [0, 8192, 16384, 24576]), 3: (aO2, [0, 8192, 16384, 24576])}
SBUF = {1: S0, 2: KF, 3: XB}


def w_reads(n, nt):
    if n >= 32:
        return []
    j, f = n >> 3, n & 7
    ks, y = f >> 1, f & 1
    a, offs = BLK_ADDR[j]
    return ["ds_read_b64_tr_b16 %s, v%d offset:%d" % (vr(VF + 16 * (n & 1) + 4 * nt + 2 * u, 2), a + nt,
                                                   offs[ks] + u * 4096 + y * 1024) for u in range(2)]


def bfrag(j, f):
    return OB + 16 * (f & 1) + 4 * (f >> 1) if j == 0 else SBUF[j] + 4 * f


def o_step(b, n, extra=None):
    j, f = n >> 3, n & 7
    for nt in range(4):
        b("%s %s, %s, %s, %s" % (M32, vr(ACC + 16 * nt, 16), vr(VF + 16 * (n & 1) + 4 * nt, 4),
                                 vr(bfrag(j, f), 4), "0" if n == 0 else vr(ACC + 16 * nt, 16)))
        b.add(w_reads(n + 2, nt))
        if extra and extra[nt]:
            b.add(extra[nt])


for n in range(2):
    for nt in range(4):
        t.add(w_reads(n, nt))
vM1, vP1, vM2, vP2 = 1, 2, 3, aX
vONE = NM[0]


def mbox(dst, shift, lim, extra, own):
    r = []
    if own:
        r.append("v_mov_b32 v%d, s%d" % (dst, sWGL))
    else:
        r.append("v_lshlrev_b32 v%d, %d, v0" % (dst, shift))
        r.append("v_xor_b32 v%d, s%d, v%d" % (dst, sWGL, dst))
    r.append("v_lshl_add_u32 v%d, v%d, 2, s%d" % (dst, dst, sWAVE))
    r.append("v_lshlrev_b32 v%d, 5, v%d" % (dst, dst))
    r.append("v_add_u32 v%d, v%d, v0" % (dst, dst))
    r.append("v_lshlrev_b32 v%d, 2, v%d" % (dst, dst))
    if extra:
        r.append("v_add_u32 v%d, %d, v%d" % (dst, extra, dst))
    r.append("v_subrev_u32 v%d, 1, v0" % vTM)
    r.append("v_cmp_gt_u32 vcc, %d, v%d" % (lim, vTM))
    r.append("v_bfrev_b32 v%d, 1" % vTM)
    r.append("s_nop 0")
    r.append("v_cndmask_b32 v%d, v%d, v%d, vcc" % (dst, vTM, dst))
    return r


mb = [mbox(vM1, 0, 3, 0, False), mbox(vP1, 0, 3, 0, True), mbox(vM2, 2, 7, 32, False), mbox(vP2, 2, 7, 32, True)]
for n in range(8):
    ex4 = None
    if 1 <= n <= 4:
        m_ = mb[n - 1]
        k3 = (len(m_) + 3) // 4
        ex4 = [m_[i * k3:(i + 1) * k3] for i in range(4)]
    if n == 5:
        ex4 = [["v_mov_b32 v%d, 1" % vONE], [], [], []]
    if n == 6:
        ex4 = [["v_add_u32 v%d, %d, v%d" % (aO3 + nt, STG + 65536, aO2 + nt)] for nt in range(4)]
    o_step(t, n, ex4)
t("s_waitcnt vmcnt(0)")
t("buffer_store_dword v%d, v%d, s[%d:%d], 0 offen sc1" % (vONE, vM1, SA, SA + 3))
stamp(t, 8)


def poll(b, label, vaddr, mask):
    b("s_mov_b32 s%d, 0x100000" % sCNT)
    b(label + ":")
    b("buffer_load_dword v%d, v%d, s[%d:%d], 0 offen sc1" % (vTM, vaddr, SA, SA + 3))
    b("s_sub_u32 s%d, s%d, 1" % (sCNT, sCNT))
    b("s_cmp_eq_u32 s%d, 0" % sCNT)
    b("s_cbranch_scc1 %sd" % label)
    b("s_waitcnt vmcnt(0)")
    b("v_cmp_eq_u32 vcc, 1, v%d" % vTM)
    b("s_cmp_lg_u32 vcc_lo, %d" % mask)
    b("s_cbranch_scc1 " + label)
    b(label + "d:")
    b("s_waitcnt vmcnt(0)")


poll(t, "L_poll1", vP1, 14)
stamp(t, 9)
for j in range(1, 4):
    t("s_xor_b32 s%d, s%d, %d" % (sT0, sE1, j << 15))
    t("s_add_u32 s%d, s%d, 4096" % (sT1, sT0))
    for f in range(8):
        t("buffer_load_dwordx4 %s, v%d, s[%d:%d], s%d offen offset:%d sc1" % (vr(SBUF[j] + 4 * f, 4), vE, SA, SA + 3,
                                                                          sT0 if f < 4 else sT1, (f & 3) * 1024))
for n in range(8, 32):
    o_step(t, n)
stamp(t, 10)
for j in range(1, 8):
    t("s_xor_b32 s%d, s%d, %d" % (sT0, sG, j))
    t("s_lshl_b32 s%d, s%d, 16" % (sT0, sT0))
    t("s_add_u32 s%d, s%d, s%d" % (sT0, sT0, sE2P))
    t("s_add_u32 s%d, s%d, %d" % (sT0, sT0, j * 8192))
    for hf in range(2):
        t("buffer_store_dwordx4 %s, v%d, s[%d:%d], s%d offen offset:%d sc1" % (vr(ACC + 8 * j + 4 * hf, 4), vE, SA, SA + 3,
                                                                           sT0, hf * 1024))
t("s_waitcnt vmcnt(0)")
t("buffer_store_dword v%d, v%d, s[%d:%d], 0 offen sc1" % (vONE, vM2, SA, SA + 3))
stamp(t, 11)
t("v_and_b32 v1, 31, v0")
t("s_lshl_b32 s%d, s%d, 5" % (sT0, sWAVE))
t("v_add_u32 v1, s%d, v1" % sT0)
t("v_lshlrev_b32 v1, 10, v1")
t("v_lshrrev_b32 v2, 5, v0")
t("v_lshl_add_u32 v1, v2, 4, v1")
t("s_lshl_b32 s%d, s%d, 8" % (sT0, sHN))
t("s_lshl_b32 s%d, s%d, 5" % (sT1, sG))
t("s_add_u32 s%d, s%d, s%d" % (sT2, sT0, sT1))
poll(t, "L_poll2", vP2, 0xFE)
stamp(t, 12)
PB = QF
for j in range(1, 8):
    t("s_add_u32 s%d, s%d, %d" % (sT0, sE2C, j * 8192))
    for hf in range(2):
        t("buffer_load_dwordx4 %s, v%d, s[%d:%d], s%d offen offset:%d sc1" % (vr(PB + 8 * (j - 1) + 4 * hf, 4), vE, SA, SA + 3,
                                                                          sT0, hf * 1024))
for j in range(1, 8):
    for i in range(8):
        t("v_add_f32 v%d, v%d, v%d" % (ACC + i, ACC + i, PB + 8 * (j - 1) + i))
for j in range(4):
    t("v_cvt_pk_bf16_f32 v%d, v%d, v%d" % (ACC + 8 + j, ACC + 2 * j, ACC + 2 * j + 1))
t("buffer_store_dwordx4 %s, v1, s[%d:%d], s%d offen" % (vr(ACC + 8, 4), SB, SB + 3, sT2))
if STAMPS:
    t("s_waitcnt vmcnt(0)")
    stamp(t, 13)
    t("s_memtime s[98:99]")
    t("s_waitcnt lgkmcnt(0)")
    t("s_sub_u32 s%d, s98, s96" % (sSTAMP + 28))
    t("s_getreg_b32 s%d, hwreg(HW_REG_XCC_ID)" % (sSTAMP + 30))
    for i in range(16):
        t("v_mov_b32 v%d, s%d" % (ACC + 16 + i, sSTAMP + 2 * i))
    t("s_lshl_b32 s%d, s2, 2" % sT0)
    t("s_add_u32 s%d, s%d, s%d" % (sT0, sT0, sWAVE))
    t("s_lshl_b32 s%d, s%d, 6" % (sT0, sT0))
    t("s_add_u32 s%d, s%d, %d" % (sT0, sT0, ST_OFF))
    t("v_mov_b32 v1, 0")
    t("s_mov_b64 exec, 1")
    for i in range(4):
        t("buffer_store_dwordx4 %s, v1, s[%d:%d], s%d offen offset:%d" % (vr(ACC + 16 + 4 * i, 4), SA, SA + 3, sT0, 16 * i))
if PROBE >= 0:
    stamp(t, 13)
    t("s_add_u32 s%d, s%d, 6000" % (sT2, sSTAMP + (2 if PROBE else 0)))
    t("L_spin:")
    t("s_sleep 2")
    t("s_memrealtime s[%d:%d]" % (sSTAMP + 4, sSTAMP + 5))
    t("s_waitcnt lgkmcnt(0)")
    t("s_sub_u32 s%d, s%d, s%d" % (sT0, sSTAMP + 4, sT2))
    t("s_cmp_lt_i32 s%d, 0" % sT0)
    t("s_cbranch_scc1 L_spin")
t("L_end:")
t("s_endpgm")
t.finish(hist=lp.ins)
for r in rare:
    blocks.append(r)

hdr = open("standalone__mha_block_cached__near_ridge.s.ref").read().split("; Override launch")[0]
out = [hdr.rstrip()]
out.append("; @launch grid=(256,1,1) block=(512,1,1) lds=163840")
out.append('.amdgcn_target "amdgcn-amd-amdhsa--gfx950"')
out.append(".text")
out.append(".globl " + KNAME)
out.append(".p2align 8")
out.append(".type %s,@function" % KNAME)
out.append(KNAME + ":")
for b in blocks:
    out.append("; ---- %s ----" % b.name)
    out.append(b.text())
out.append(".p2align 8")
out.append(".fill 64, 4, 0xbf800000")
out.append('.section .rodata,"a"')
out.append(".p2align 6")
out.append(".amdhsa_kernel " + KNAME)
out.append("""  .amdhsa_next_free_vgpr 256
  .amdhsa_next_free_sgpr 102
  .amdhsa_accum_offset 256
  .amdhsa_group_segment_fixed_size 0
  .amdhsa_kernarg_size 64
  .amdhsa_user_sgpr_count 2
  .amdhsa_user_sgpr_kernarg_segment_ptr 1
  .amdhsa_system_sgpr_workgroup_id_x 1
.end_amdhsa_kernel""")
print("\n".join(out))
```

```python
import re


def R(base, n=1):
    return list(range(base, base + n))


def vr(base, n=1):
    return "v%d" % base if n == 1 else "v[%d:%d]" % (base, base + n - 1)


def sr(base, n=1):
    return "s%d" % base if n == 1 else "s[%d:%d]" % (base, base + n - 1)


class Ins:
    __slots__ = ("text", "kind", "rd", "wr", "srd", "swr", "ab", "c", "wide", "lg", "vm", "n", "passes")

    def __init__(self, text, kind, rd=(), wr=(), srd=(), swr=(), ab=(), c=(), wide=(), lg=None, vm=None, n=1):
        self.text = text
        self.kind = kind
        self.rd = set(rd)
        self.wr = set(wr)
        self.srd = set(srd)
        self.swr = set(swr)
        self.ab = set(ab)
        self.c = tuple(c)
        self.wide = set(wide)
        self.lg = lg
        self.vm = vm
        self.n = n
        self.passes = 4 if "16x16x32" in text else 8


_REG = re.compile(r"(?<![\w.])(v|s)(\d+)(?![\w:])|(?<![\w.])(v|s)\[(\d+):(\d+)\]")


def regs_in(op):
    v, s = [], []
    for m in _REG.finditer(op):
        if m.group(1):
            k, lo, hi = m.group(1), int(m.group(2)), int(m.group(2))
        else:
            k, lo, hi = m.group(3), int(m.group(4)), int(m.group(5))
        (v if k == "v" else s).extend(range(lo, hi + 1))
    s = ["s%d" % x for x in s]
    for nm in ("vcc", "m0", "exec"):
        if re.search(r"(?<![\w])%s(_lo|_hi)?(?![\w])" % nm, op):
            s.append(nm)
    return v, s


TRANS = ("v_exp_f32", "v_rcp_f32", "v_log_f32", "v_rsq_f32", "v_sqrt_f32")


def parse(text):
    t = text.split(";")[0].strip()
    if not t:
        return Ins(text, "comment", n=0)
    if t.endswith(":"):
        return Ins(text, "label", n=0)
    if t.startswith("."):
        return Ins(text, "comment", n=0)
    parts = t.split(None, 1)
    op = parts[0]
    args = [a.strip() for a in parts[1].split(",")] if len(parts) > 1 else []
    if op == "s_nop":
        return Ins(text, "nop", n=int(args[0]) + 1)
    if op == "s_waitcnt":
        lg = re.search(r"lgkmcnt\((\d+)\)", t)
        vm = re.search(r"vmcnt\((\d+)\)", t)
        return Ins(text, "wait", lg=int(lg.group(1)) if lg else None, vm=int(vm.group(1)) if vm else None)
    if op == "s_barrier":
        return Ins(text, "barrier")
    if op.startswith("s_cbranch") or op == "s_branch" or op == "s_endpgm":
        return Ins(text, "branch", srd=["vcc"] if "vcc" in op else [])
    if op.startswith("s_load") or op.startswith("s_atomic") or op.startswith("s_memtime") or op.startswith("s_memrealtime"):
        _, d = regs_in(args[0])
        s = []
        for a in args[1:]:
            s += regs_in(a)[1]
        return Ins(text, "smem", srd=s, swr=d)
    if op.startswith("s_"):
        if op.startswith("s_cmp") or op.startswith("s_bitcmp") or op in ("s_setprio", "s_sleep"):
            s = []
            for a in args:
                s += regs_in(a)[1]
            return Ins(text, "salu", srd=s)
        _, d = regs_in(args[0])
        s = []
        for a in args[1:]:
            s += regs_in(a)[1]
        return Ins(text, "salu", srd=s, swr=d)
    if op.startswith("v_mfma"):
        d = regs_in(args[0])[0]
        a = regs_in(args[1])[0]
        b = regs_in(args[2])[0]
        c = regs_in(args[3])[0]
        return Ins(text, "mfma", rd=a + b + c, wr=d, ab=a + b, c=c)
    if op.startswith("ds_read"):
        d = regs_in(args[0])[0]
        a = regs_in(args[1].split()[0])[0]
        return Ins(text, "ds_rd", rd=a, wr=d)
    if op.startswith("ds_write"):
        v = []
        for a in args:
            v += regs_in(a.split()[0])[0]
        return Ins(text, "ds_wr", rd=v)
    if op.startswith("buffer_") or op.startswith("global_"):
        lds = re.search(r"\blds\b", t) is not None
        allv, alls = [], []
        per = [regs_in(a) for a in args]
        for v, s in per:
            allv += v
            alls += s
        if lds:
            return Ins(text, "vm_dma", rd=allv, srd=alls + ["m0"])
        if "load" in op:
            d = per[0][0]
            rest = []
            for v, s in per[1:]:
                rest += v
            return Ins(text, "vm_ld", rd=rest, wr=d, srd=alls)
        if op.startswith("buffer_"):
            data = per[0][0]
        else:
            data = per[1][0]
        wide = data if ("x4" in op or "x3" in op) else []
        return Ins(text, "vm_st", rd=allv, srd=alls, wide=wide)
    if op.startswith("v_"):
        base = op.replace("_e32", "").replace("_e64", "")
        if base in ("v_readfirstlane_b32", "v_readlane_b32"):
            v, s = regs_in(args[1])
            return Ins(text, "rfl", rd=v, swr=regs_in(args[0])[1])
        if base == "v_writelane_b32":
            return Ins(text, "valu", wr=regs_in(args[0])[0], srd=regs_in(args[1])[1] + regs_in(args[2])[1])
        if base.startswith("v_permlane"):
            v = regs_in(args[0])[0] + regs_in(args[1])[0]
            return Ins(text, "perm", rd=v, wr=v)
        if base.startswith("v_cmp"):
            v, s = [], []
            for a in args[1:]:
                x, y = regs_in(a)
                v += x
                s += y
            return Ins(text, "valu", rd=v, srd=s, swr=regs_in(args[0])[1])
        d, ds = regs_in(args[0])
        v, s = [], []
        rest = args[1:]
        if "_co_u32" in base:
            ds = ds + regs_in(args[1])[1]
            rest = args[2:]
        for a in rest:
            x, y = regs_in(a)
            v += x
            s += y
        if base.startswith("v_fmac"):
            v += d
        kind = "trans" if base in TRANS else "valu"
        return Ins(text, kind, rd=v, wr=d, srd=s, swr=ds)
    raise ValueError("cannot parse: " + text)


VALUISH = ("valu", "trans", "perm", "rfl")
VMEM = ("vm_ld", "vm_st", "vm_dma")


def need_states(p, c):
    n = 0
    if p.kind in VALUISH:
        if c.kind == "mfma" and (p.wr & c.rd):
            n = max(n, 2)
        if c.kind == "perm" and (p.wr & c.rd):
            n = max(n, 2)
        if c.kind == "rfl" and (p.wr & c.rd):
            n = max(n, 1)
        if p.kind == "trans" and c.kind in ("valu", "perm", "rfl") and (p.wr & c.rd):
            n = max(n, 1)
        if p.swr:
            if c.kind in VALUISH and (p.swr & c.srd):
                n = max(n, 2 if c.kind != "rfl" else 4)
            if c.kind in VMEM and (p.swr & c.srd):
                n = max(n, 5)
            if c.kind in ("salu", "branch") and (p.swr & c.srd):
                n = max(n, 1)
    if p.kind == "mfma":
        big = p.passes == 8
        if c.kind == "mfma":
            if p.wr & c.ab:
                n = max(n, 12 if big else 8)
            if p.wr & set(c.c):
                if tuple(sorted(p.wr)) != tuple(c.c) or p.passes != c.passes:
                    n = max(n, 10 if big else 6)
            if (p.wr & c.wr) and tuple(sorted(p.wr)) != tuple(c.c):
                n = max(n, 12 if big else 8)
        elif c.kind in VALUISH or c.kind in VMEM or c.kind in ("ds_rd", "ds_wr"):
            if p.wr & (c.rd | c.wr):
                n = max(n, 12 if big else 8)
            if c.kind in VALUISH and (set(p.c) & c.wr):
                n = max(n, 7 if big else 3)
    if p.kind == "salu" and "m0" in p.swr and c.kind == "vm_dma":
        n = max(n, 1)
    if p.kind == "vm_st" and p.wide and (p.wide & c.wr):
        n = max(n, 2 if c.kind in VALUISH or c.kind == "mfma" else 1)
    return n


def pad_hazards(seq, hist=(), check_only=False, where=""):
    out = []
    win = [i for i in hist if i.n > 0][-24:]
    for c in seq:
        if c.n == 0:
            out.append(c)
            continue
        need = 0
        dist = 0
        for p in reversed(win):
            req = need_states(p, c)
            if req > dist:
                need = max(need, req - dist)
            dist += p.n
            if dist >= 16:
                break
        if need > 0:
            if check_only:
                raise RuntimeError("hazard (%s): need %d more states before: %s" % (where, need, c.text))
            nop = parse("s_nop %d" % (need - 1))
            out.append(nop)
            win.append(nop)
        out.append(c)
        win.append(c)
        win = win[-24:]
    return out


def insert_waits(seq, lgq=None, vmq=None):
    lgq = list(lgq or [])
    vmq = list(vmq or [])
    out = []
    for c in seq:
        if c.kind == "wait":
            if c.lg is not None:
                lgq = lgq[len(lgq) - c.lg:] if c.lg < len(lgq) and c.lg > 0 else ([] if c.lg == 0 else lgq)
            if c.vm is not None:
                vmq = vmq[len(vmq) - c.vm:] if c.vm < len(vmq) and c.vm > 0 else ([] if c.vm == 0 else vmq)
            out.append(c)
            continue
        touch = c.rd | c.wr
        lg = vm = None
        for i in range(len(lgq) - 1, -1, -1):
            e = lgq[i]
            if e != "smem" and (e & touch):
                lg = len(lgq) - 1 - i
                break
        if lg is not None:
            lg -= sum(1 for e in lgq[len(lgq) - lg:] if e == "smem") if lg > 0 else 0
        for i in range(len(vmq) - 1, -1, -1):
            if vmq[i] & touch:
                vm = len(vmq) - 1 - i
                break
        if lg is not None or vm is not None:
            t = "s_waitcnt"
            if vm is not None:
                assert vm <= 63
                t += " vmcnt(%d)" % vm
                vmq = vmq[len(vmq) - vm:] if vm > 0 else []
            if lg is not None:
                lg = min(lg, 15)
                t += " lgkmcnt(%d)" % lg
                lgq = [e for e in lgq if e != "smem"]
                lgq = lgq[len(lgq) - lg:] if lg > 0 else []
            out.append(parse(t))
        if c.kind == "ds_rd":
            lgq.append(set(c.wr))
        elif c.kind == "ds_wr":
            lgq.append(set())
        elif c.kind == "smem":
            lgq.append("smem")
        elif c.kind == "vm_ld":
            vmq.append(set(c.wr))
        elif c.kind in ("vm_st", "vm_dma"):
            vmq.append(set())
        out.append(c)
    return out, lgq, vmq


class Block:
    def __init__(self, name=""):
        self.name = name
        self.ins = []

    def __call__(self, text):
        for line in text.split("\n"):
            if line.strip():
                self.ins.append(parse(line.strip()))
        return self

    def add(self, lst):
        for x in lst:
            if isinstance(x, str):
                self(x)
            else:
                self.ins.append(x)

    def finish(self, hist=(), lgq=None, vmq=None):
        seq, lgq, vmq = insert_waits(self.ins, lgq, vmq)
        self.ins = pad_hazards(seq, hist)
        return lgq, vmq

    def text(self):
        o = []
        for i in self.ins:
            o.append(i.text if i.kind in ("label",) else "    " + i.text)
        return "\n".join(o)


def interleave(mfmas, gaps):
    out = []
    for m, g in zip(mfmas, gaps):
        out.append(m)
        out.extend(g)
    return out
```

```python
import sys, struct, math
from asmgen import *

OPT = dict(stamps=0, nt_kv="nt", nt_x="", nt_w="nt", nt_wo="nt", lag=0, probe=-1, thr=8.0, force_rescale=0, stag_k="5.5.5.5", stag_v="6.6.6.6",
           prio_x=2, prio_w=2, codepf=1, rot=0, ksw=6, vsw=12, fast=1, flagat=16, spec=0, first=0, st2="sc1", ld2="sc1", lp2="sc1", prog=1, wsbase=0, p16=1)
for a in sys.argv[1:]:
    k, v = a.split("=")
    OPT[k] = type(OPT[k])(v) if not isinstance(OPT[k], str) else v.replace("_", " ").strip()
STAMPS = OPT["stamps"]

KNAME = "standalone__mha_block_cached__near_ridge_kernel"


def f32(x):
    return "0x%08x" % struct.unpack("<I", struct.pack("<f", x))[0]


CSC = math.log2(math.e) / math.sqrt(128.0)

KRING, VRING, STG = 0, 32768, 65536
RING = 32768
MB_OFF, E1_OFF, E2_OFF, ST_OFF = 0x0, 0x100000, 0x1000000, 0x4000000
sX, sK, sV, sWQ, sWO, sOUT, sDBG, sWS = 4, 6, 8, 10, 12, 14, 16, 18
sWAVE, sG, sB, sHN, sH, sWGL = 20, 21, 22, 23, 24, 25
SA, SB, SC = 28, 32, 36
sOFF, sLDS, sCNT, sT0, sT1, sT2 = 40, 41, 42, 43, 44, 45
sCS, sPAIR, sDEL, sE1, sE2P, sE2C = 46, 47, 48, 49, 50, 51
sTHR, sFAST, sK16, sPADM = 52, 53, 54, 55
sVALID = 26
sN = 56
sTG = 96
sMISS, sT3 = 100, 101
TAGK = 0x405
sSTAMP = 64
vE, vLO, vTM, aX = 4, 5, 6, 7
aK, aW, aV = 8, 12, 16
NM = (24, 28)
ACC, QF, S0, S1, KF, VF, XB = 32, 96, 128, 144, 160, 192, 224
PK = XB
vL = (232, 234)
vM1, vP1, vINFO, vINF, vOUT, vMASK = 240, 241, 242, 243, 7, 3
def nib(txt):
    return sum(int(x) << (4 * i) for i, x in enumerate(txt.split(".")))


NQB = 9
aWq, aXq = 96, 104
M16 = "v_mfma_f32_16x16x32_bf16"
M32 = "v_mfma_f32_32x32x16_bf16"


PROBE = OPT["probe"]


def stamp(b, idx, force=False):
    if STAMPS == 5 and 1 <= idx <= 4:
        if force:
            b("s_memrealtime s[%d:%d]" % (sSTAMP + 2 * idx, sSTAMP + 2 * idx + 1))
        return
    if force:
        return
    if PROBE == idx:
        b("s_memrealtime s[%d:%d]" % (sSTAMP + 2, sSTAMP + 3))
        b("s_waitcnt lgkmcnt(0)")
    if STAMPS == 3 and 1 <= idx <= 6:
        return
    if STAMPS:
        b("s_memrealtime s[%d:%d]" % (sSTAMP + 2 * idx, sSTAMP + 2 * idx + 1))
        b("s_waitcnt lgkmcnt(0)")


def srd(b, dst, ptr, off_sreg, size):
    if off_sreg is None:
        b("s_mov_b32 s%d, s%d" % (dst, ptr))
        b("s_mov_b32 s%d, s%d" % (dst + 1, ptr + 1))
    else:
        b("s_add_u32 s%d, s%d, s%d" % (dst, ptr, off_sreg))
        b("s_addc_u32 s%d, s%d, 0" % (dst + 1, ptr + 1))
    b("s_mov_b32 s%d, %s" % (dst + 2, size))
    b("s_mov_b32 s%d, 0x20000" % (dst + 3))


def dma_group(b, S, voffs, soff, flags, n=4):
    for p in range(n):
        o = " offset:%d" % (p * 1024) if p else ""
        b("buffer_load_dwordx4 v%d, s[%d:%d], s%d offen%s %s lds" % (voffs[p], S, S + 3, soff, o, flags))


blocks = []


def new(name):
    b = Block(name)
    blocks.append(b)
    return b


e = new("entry")
e("L_start:")
e("s_cmp_ge_u32 s2, 256")
e("s_cbranch_scc1 L_end")
e("s_load_dwordx16 s[4:19], s[0:1], 0")
if PROBE >= 0:
    e("s_memrealtime s[%d:%d]" % (sSTAMP, sSTAMP + 1))
if STAMPS:
    e("s_memrealtime s[%d:%d]" % (sSTAMP, sSTAMP + 1))
    e("s_memtime s[92:93]")
e("v_lshrrev_b32 v1, 6, v0")
e("v_and_b32 v0, 63, v0")
e("v_readfirstlane_b32 s%d, v1" % sWAVE)
e("s_and_b32 s%d, s2, 7" % sG)
e("s_lshr_b32 s%d, s2, 5" % sB)
e("s_lshr_b32 s%d, s2, 3" % sHN)
e("s_and_b32 s%d, s%d, 3" % (sHN, sHN))
e("s_lshl_b32 s%d, s%d, 2" % (sH, sG))
e("s_add_u32 s%d, s%d, s%d" % (sH, sH, sHN))
e("s_lshl_b32 s%d, s%d, 5" % (sWGL, sB))
e("s_add_u32 s%d, s%d, s%d" % (sWGL, sWGL, sH))
e("s_cmp_lt_u32 s%d, 4" % sWAVE)
e("s_cbranch_scc1 L_compute")
e("v_lshrrev_b32 v1, 4, v0")
e("v_and_b32 v3, 15, v0")
e("v_lshlrev_b32 v2, 2, v1")
e("v_xor_b32 v2, v2, v3")
e("v_lshlrev_b32 v2, 4, v2")
e("s_cmp_eq_u32 s%d, 6" % sWAVE)
e("s_cbranch_scc1 L_ldx")
e("s_cmp_eq_u32 s%d, 7" % sWAVE)
e("s_cbranch_scc1 L_ldw")
e("s_cmp_eq_u32 s%d, 5" % sWAVE)
e("s_cbranch_scc1 L_ldv")
e.finish()

WOV = [14, 15, 16, 17]


def wo_setup(b):
    b("v_lshl_add_u32 v14, v1, 10, v2")
    b("v_add_u32 v15, 3072, v14")
    b("v_add_u32 v16, 6144, v14")
    b("v_add_u32 v17, 9216, v14")
    b("s_lshl_b32 s%d, s%d, 19" % (sT0, sG))
    b("s_lshl_b32 s%d, s%d, 8" % (sT1, sHN))
    b("s_add_u32 s%d, s%d, s%d" % (sT0, sT0, sT1))
    b("s_sub_u32 s%d, 0x400000, s%d" % (sT1, sT0))
    srd(b, SB, sWO, sT0, "s%d" % sT1)


def kv_tile(b, voffs, base):
    fl = OPT["nt_kv"]
    b("s_mov_b32 m0, s%d" % sLDS)
    b("s_add_u32 s%d, s%d, 4096" % (sT0, sLDS))
    dma_group(b, SA, voffs, sOFF, fl)
    b("s_mov_b32 m0, s%d" % sT0)
    b("s_add_u32 s%d, s%d, 4096" % (sOFF, sOFF))
    dma_group(b, SA, voffs, sOFF, fl)
    b("s_add_u32 s%d, s%d, 4096" % (sOFF, sOFF))
    if OPT["rot"]:
        b("s_and_b32 s%d, s%d, 0x3ffff" % (sOFF, sOFF))
    ring_adv(b, base)


def key_rot(b):
    if OPT["rot"] == 0:
        b("s_mov_b32 s%d, 0" % sOFF)
        return
    if OPT["rot"] == 1:
        b("s_and_b32 s%d, s2, 31" % sOFF)
    elif OPT["rot"] == 2:
        b("s_lshr_b32 s%d, s2, 3" % sOFF)
    elif OPT["rot"] == 3:
        b("s_lshr_b32 s%d, s2, 3" % sOFF)
        b("s_lshl_b32 s%d, s2, 2" % sT1)
        b("s_add_u32 s%d, s%d, s%d" % (sOFF, sOFF, sT1))
        b("s_and_b32 s%d, s%d, 31" % (sOFF, sOFF))
    b("s_lshl_b32 s%d, s%d, 13" % (sOFF, sOFF))


def ring_adv(b, base):
    b("s_add_u32 s%d, s%d, 8192" % (sLDS, sLDS))
    b("s_cmp_eq_u32 s%d, %d" % (sLDS, base + RING))
    b("s_cselect_b32 s%d, %d, s%d" % (sLDS, base, sLDS))


def wo_tile(b):
    b("s_mov_b32 m0, s%d" % sLDS)
    b("s_add_u32 s%d, s%d, 4096" % (sT0, sLDS))
    dma_group(b, SB, WOV, sOFF, OPT["nt_wo"])
    b("s_mov_b32 m0, s%d" % sT0)
    b("s_add_u32 s%d, s%d, 16384" % (sOFF, sOFF))
    dma_group(b, SB, WOV, sOFF, OPT["nt_wo"])
    b("s_add_u32 s%d, s%d, 16384" % (sOFF, sOFF))


def loop_begin(b, label, n):
    b("s_mov_b32 s%d, %d" % (sCNT, n))
    b(label + ":")


def loop_end(b, label):
    b("s_sub_u32 s%d, s%d, 1" % (sCNT, sCNT))
    b("s_cmp_lg_u32 s%d, 0" % sCNT)
    b("s_cbranch_scc1 " + label)


b = new("ldk")
b("L_ldk:")
for p in range(4):
    b("v_add_u32 v4, %d, v1" % (4 * p))
    b("v_xor_b32 v4, v4, v3")
    b("v_lshlrev_b32 v4, 4, v4")
    b("v_lshl_add_u32 v%d, v1, 8, v4" % (10 + p))
b("s_lshl_b32 s%d, s%d, 18" % (sT0, sWGL))
b("s_waitcnt lgkmcnt(0)")
srd(b, SA, sK, sT0, "0x40000")
key_rot(b)
b("s_mov_b32 s%d, %d" % (sLDS, KRING))
KV4 = [10, 11, 12, 13]
wo_setup(b)


def q_phase_kv(b, tag, voffs, base, txt, done=0):
    at = [int(x) for x in txt.split(".")]
    first = min(at)
    assert first >= done
    if first > done:
        loop_begin(b, "L_%sq" % tag, first - done)
        b("s_barrier")
        loop_end(b, "L_%sq" % tag)
    for i in range(first, 8):
        b("s_barrier")
        n = at.count(i)
        if n > 1:
            loop_begin(b, "L_%sq%d" % (tag, i), n)
            kv_tile(b, voffs, base)
            loop_end(b, "L_%sq%d" % (tag, i))
        elif n:
            kv_tile(b, voffs, base)


q_phase_kv(b, "k", KV4, KRING, OPT["stag_k"])
b("s_waitcnt vmcnt(16)")
b("s_barrier")
b("s_waitcnt vmcnt(8)")
b("s_barrier")
kv_tile(b, KV4, KRING)
LAG = OPT["lag"]
if not LAG:
    kv_tile(b, KV4, KRING)
KSW = OPT["ksw"]
if KSW:
    assert not LAG
    loop_begin(b, "L_k1", KSW - 1)
    b("s_waitcnt vmcnt(16)")
    b("s_barrier")
    kv_tile(b, KV4, KRING)
    loop_end(b, "L_k1")
    b("s_waitcnt vmcnt(16)")
    b("s_barrier")
    loop_begin(b, "L_k1b", 27 - KSW)
    b("s_waitcnt vmcnt(8)")
    b("s_barrier")
    kv_tile(b, KV4, KRING)
    loop_end(b, "L_k1b")
else:
    loop_begin(b, "L_k1", 26 + LAG)
    b("s_waitcnt vmcnt(%d)" % (16 - 8 * LAG))
    b("s_barrier")
    kv_tile(b, KV4, KRING)
    loop_end(b, "L_k1")
b("s_xor_b32 s%d, s%d, 3" % (sOFF, sHN))
b("s_lshl_b32 s%d, s%d, 17" % (sOFF, sOFF))
b("s_mov_b32 s%d, %d" % (sLDS, KRING))
for n in (16, 8, 0)[(1 if KSW else LAG):]:
    b("s_waitcnt vmcnt(%d)" % n)
    b("s_barrier")
b("s_barrier")
loop_begin(b, "L_k2", 4)
wo_tile(b)
b("s_add_u32 s%d, s%d, 8192" % (sLDS, sLDS))
loop_end(b, "L_k2")
b("s_barrier")
b("s_waitcnt vmcnt(0)")
b("s_barrier")
b("s_endpgm")
b.finish(hist=e.ins)

b = new("ldv")
b("L_ldv:")
for par in range(2):
    b("v_lshlrev_b32 v4, 1, v1")
    b("v_xor_b32 v4, v4, v3")
    if par:
        b("v_xor_b32 v4, 8, v4")
    b("v_lshlrev_b32 v4, 4, v4")
    b("v_lshl_add_u32 v%d, v1, 8, v4" % (10 + par))
b("s_lshl_b32 s%d, s%d, 18" % (sT0, sWGL))
b("s_waitcnt lgkmcnt(0)")
srd(b, SA, sV, sT0, "0x40000")
key_rot(b)
b("s_mov_b32 s%d, %d" % (sLDS, VRING + 2 * 8192))
V4 = [10, 11, 10, 11]
b("s_mov_b32 s%d, %d" % (sT0, OPT["wsbase"]))
srd(b, SC, sWS, sT0, "0x%x" % (0x10000000 - OPT["wsbase"]))
srd(b, SB, sDBG, None, "256")
b("s_lshl_b32 s%d, s%d, 2" % (sT0, sB))
b("s_add_u32 s%d, s%d, s%d" % (sT0, sT0, sHN))
b("s_lshl_b32 s%d, s%d, 3" % (sT0, sT0))
b("s_add_u32 s%d, s%d, s%d" % (sT0, sT0, sG))
b("s_lshl_b32 s%d, s%d, 16" % (sT0, sT0))
b("s_add_u32 s%d, s%d, %d" % (sT0, sT0, E2_OFF + 8192))
b("v_mov_b32 v4, 0")
b("v_mov_b32 v5, 0")
b("buffer_load_dword v6, v4, s[%d:%d], s%d offen sc1" % (SC, SC + 3, sT0))
b("s_lshl_b32 s%d, s%d, 11" % (sT0, sWGL))
b("v_lshlrev_b32 v8, 3, v0")
b("buffer_store_dwordx2 v[4:5], v8, s[%d:%d], s%d offen sc1" % (SC, SC + 3, sT0))
b("buffer_store_dwordx2 v[4:5], v8, s[%d:%d], s%d offen offset:1024 sc1" % (SC, SC + 3, sT0))
b("s_getreg_b32 s%d, hwreg(HW_REG_XCC_ID, 0, 4)" % sT1)
b("v_mov_b32 v7, s%d" % sT1)
b("s_waitcnt vmcnt(2)")
b("v_add_u32 v6, 1, v6")
b("v_and_b32 v6, 0xfff, v6")
b("s_mov_b64 exec, 1")
b("buffer_store_dwordx2 v[6:7], v4, s[%d:%d], s%d offen offset:512 sc1" % (SC, SC + 3, sT0))
b("s_mov_b64 exec, -1")
b("s_lshl_b32 s%d, s%d, 4" % (sT0, sB))
b("s_add_u32 s%d, s%d, 128" % (sT0, sT0))
b("v_mov_b32 v8, s%d" % sT0)
b("v_mov_b32 v9, 1")
b("s_barrier")
b("s_barrier")
b("s_waitcnt vmcnt(0)")
b("s_mov_b64 exec, 1")
b("buffer_atomic_add v9, v8, s[%d:%d], 0 offen" % (SB, SB + 3))
b("s_mov_b64 exec, -1")
q_phase_kv(b, "v", V4, VRING, OPT["stag_v"], 2)
b("s_barrier")
b("s_waitcnt vmcnt(24)")
b("s_barrier")
if LAG:
    b("s_waitcnt vmcnt(16)")
    b("s_barrier")
VSW = OPT["vsw"]


def v_loop(label, n, w, base):
    loop_begin(b, label, n)
    b("s_waitcnt vmcnt(%d)" % w)
    if STAMPS:
        b("s_memrealtime s[60:61]")
        b("s_waitcnt lgkmcnt(0)")
    b("s_barrier")
    if STAMPS:
        b("s_memrealtime s[62:63]")
        b("s_waitcnt lgkmcnt(0)")
        b("s_add_u32 m0, s%d, %d" % (sCNT, base))
        b("s_nop 0")
        b("v_writelane_b32 v20, s60, m0")
        b("v_writelane_b32 v21, s62, m0")
    kv_tile(b, V4, VRING)
    loop_end(b, label)


if VSW:
    v_loop("L_v1", VSW - 1, 16, 29 - VSW)
    b("s_waitcnt vmcnt(16)")
    b("s_barrier")
    v_loop("L_v1b", 29 - VSW, 8, 0)
else:
    v_loop("L_v1", 28, 16 - 8 * LAG, 0)
for n in (16, 8, 0)[(1 if VSW else LAG):]:
    b("s_waitcnt vmcnt(%d)" % n)
    b("s_barrier")
b("s_barrier")
if STAMPS:
    srd(b, SA, sWS, None, "0x10000000")
    b("s_lshl_b32 s%d, s2, 9" % sT0)
    b("s_add_u32 s%d, s%d, %d" % (sT0, sT0, ST_OFF + 0x100000))
    b("v_lshlrev_b32 v1, 2, v0")
    b("buffer_store_dword v20, v1, s[%d:%d], s%d offen" % (SA, SA + 3, sT0))
    b("buffer_store_dword v21, v1, s[%d:%d], s%d offen offset:256" % (SA, SA + 3, sT0))
b("s_endpgm")
b.finish(hist=e.ins)


def q_loader(b, tag, gstep, kstep_shift, ldsbase, blk, flags):
    def chunk():
        b("s_lshl_b32 s%d, s%d, %d" % (sOFF, sT2, kstep_shift))
        b("s_mov_b32 m0, s%d" % sLDS)
        b("s_add_u32 s%d, s%d, 1" % (sT2, sT2))
        dma_group(b, SA, [10, 11, 12, 13], sOFF, flags)
        for g in range(1, 4):
            b("s_add_u32 m0, s%d, %d" % (sLDS, 4096 * g))
            b("s_add_u32 s%d, s%d, %d" % (sOFF, sOFF, gstep))
            dma_group(b, SA, [10, 11, 12, 13], sOFF, flags)
        b("s_and_b32 s%d, s%d, 7" % (sT2, sT2))
        b("s_add_u32 s%d, s%d, 32768" % (sLDS, sLDS))
        b("s_cmp_eq_u32 s%d, %d" % (sLDS, ldsbase + 98304))
        b("s_cselect_b32 s%d, %d, s%d" % (sLDS, ldsbase, sLDS))
    b("s_lshl_b32 s%d, s%d, 1" % (sT2, sHN))
    b("s_add_u32 s%d, s%d, s%d" % (sT2, sT2, sB))
    b("s_and_b32 s%d, s%d, 7" % (sT2, sT2))
    b("s_mov_b32 s%d, %d" % (sLDS, ldsbase))
    loop_begin(b, "L_%s0" % tag, 2)
    chunk()
    loop_end(b, "L_%s0" % tag)
    loop_begin(b, "L_%s1" % tag, 6)
    if STAMPS == 4:
        b("s_memrealtime s[58:59]")
        b("s_waitcnt lgkmcnt(0)")
    b("s_waitcnt vmcnt(16)")
    if STAMPS == 4:
        b("s_memrealtime s[60:61]")
        b("s_waitcnt lgkmcnt(0)")
    b("s_barrier")
    if STAMPS == 4:
        b("s_memrealtime s[62:63]")
        b("s_waitcnt lgkmcnt(0)")
        b("s_mov_b32 m0, s%d" % sCNT)
        b("s_nop 0")
        b("v_writelane_b32 v19, s58, m0")
        b("v_writelane_b32 v20, s60, m0")
        b("v_writelane_b32 v21, s62, m0")
    chunk()
    loop_end(b, "L_%s1" % tag)
    wo_setup(b)
    b("s_waitcnt vmcnt(16)")
    b("s_barrier")
    b("s_waitcnt vmcnt(0)")
    b("s_barrier")
    b("s_barrier")
    b("s_setprio 0")
    first = 4 if blk == 0 else 2
    for i in range(first + 1):
        b("s_barrier")
    b("s_xor_b32 s%d, s%d, %d" % (sOFF, sHN, blk))
    b("s_lshl_b32 s%d, s%d, 17" % (sOFF, sOFF))
    b("s_mov_b32 s%d, %d" % (sLDS, STG + blk * 32768))
    loop_begin(b, "L_%s2" % tag, 4)
    wo_tile(b)
    b("s_add_u32 s%d, s%d, 8192" % (sLDS, sLDS))
    for i in range(4):
        b("s_barrier")
    loop_end(b, "L_%s2" % tag)
    b("s_xor_b32 s%d, s%d, 2" % (sOFF, sHN))
    b("s_lshl_b32 s%d, s%d, 17" % (sOFF, sOFF))
    b("s_add_u32 s%d, s%d, %d" % (sOFF, sOFF, blk * 65536))
    b("s_mov_b32 s%d, %d" % (sLDS, STG + 65536 + blk * 16384))
    wo_tile(b)
    b("s_add_u32 s%d, s%d, 8192" % (sLDS, sLDS))
    if tag == "w":
        srd(b, SC, sDBG, None, "256")
        b("s_lshl_b32 s%d, s%d, 4" % (sT0, sB))
        b("s_add_u32 s%d, s%d, 128" % (sT0, sT0))
        b("v_mov_b32 v4, s%d" % sT0)
        b("buffer_load_dword v5, v4, s[%d:%d], 0 offen sc1" % (SC, SC + 3))
    for i in range(4):
        b("s_barrier")
    wo_tile(b)
    done = first + 20
    if tag == "w":
        for i in range(3):
            b("s_barrier")
        done += 3
        b("s_mov_b32 s%d, 0x100000" % sCNT)
        b("s_branch L_wchk")
        b("L_wpoll:")
        b("buffer_load_dword v5, v4, s[%d:%d], 0 offen sc1" % (SC, SC + 3))
        b("L_wchk:")
        b("s_waitcnt vmcnt(0)")
        b("v_readfirstlane_b32 s%d, v5" % sT0)
        b("s_sub_u32 s%d, s%d, 1" % (sCNT, sCNT))
        b("s_cmp_eq_u32 s%d, 0" % sCNT)
        b("s_cbranch_scc1 L_wpolld")
        b("s_cmp_lt_u32 s%d, 32" % sT0)
        b("s_cbranch_scc1 L_wpoll")
        b("L_wpolld:")
    for i in range(30 - done):
        b("s_barrier")
    b("s_waitcnt vmcnt(0)")
    b("s_barrier")
    b("s_barrier")
    if STAMPS == 4:
        srd(b, SA, sWS, None, "0x10000000")
        b("s_lshl_b32 s%d, s2, 11" % sT0)
        b("s_add_u32 s%d, s%d, %d" % (sT0, sT0, ST_OFF + 0x200000 + blk * 1024))
        b("v_lshlrev_b32 v1, 2, v0")
        for i in range(3):
            b("buffer_store_dword v%d, v1, s[%d:%d], s%d offen offset:%d" % (19 + i, SA, SA + 3, sT0, 256 * i))
    b("s_endpgm")


b = new("ldx")
b("L_ldx:")
b("s_setprio %d" % OPT["prio_x"])
b("v_lshrrev_b32 v5, 3, v0")
b("v_and_b32 v6, 7, v0")
b("v_lshrrev_b32 v7, 1, v5")
for p in range(4):
    b("v_add_u32 v4, %d, v7" % (4 * (p & 1)))
    b("v_xor_b32 v4, v4, v6")
    b("v_lshlrev_b32 v4, 4, v4")
    b("v_lshl_add_u32 v4, v5, 10, v4")
    b("v_add_u32 v%d, %d, v4" % (10 + p, p * (8192 - 1024)))
b("s_mul_i32 s%d, s%d, 114688" % (sT0, sB))
b("s_waitcnt lgkmcnt(0)")
srd(b, SA, sX, sT0, "114688")
q_loader(b, "x", 32768, 7, STG, 0, OPT["nt_x"])
b.finish(hist=e.ins)

b = new("ldw")
b("L_ldw:")
b("s_setprio %d" % OPT["prio_w"])
b("v_lshlrev_b32 v4, 1, v1")
b("v_xor_b32 v4, v4, v3")
b("v_lshlrev_b32 v4, 4, v4")
b("v_lshl_add_u32 v10, v1, 13, v4")
b("v_add_u32 v11, %d, v10" % (32768 - 1024))
b("v_xor_b32 v4, 128, v10")
b("v_add_u32 v12, %d, v4" % (2 * (32768 - 1024)))
b("v_add_u32 v13, %d, v4" % (3 * (32768 - 1024)))
b("s_lshl_b32 s%d, s%d, 8" % (sT0, sH))
b("s_sub_u32 s%d, 0x400000, s%d" % (sT1, sT0))
b("s_waitcnt lgkmcnt(0)")
srd(b, SA, sWQ, sT0, "s%d" % sT1)
q_loader(b, "w", 131072, 19, STG + 16384, 1, OPT["nt_w"])
b.finish(hist=e.ins)

c = new("compute_pro")
c("L_compute:")
if OPT["codepf"]:
    c("s_cmp_lg_u32 s%d, 1" % sWAVE)
    c("s_cbranch_scc1 L_nopf")
    c("s_getpc_b64 s[56:57]")
    c("L_pc:")
    c("s_sub_u32 s56, s56, L_pc-L_start")
    c("s_subb_u32 s57, s57, 0")
    c("s_lshr_b32 s%d, s2, 3" % sT0)
    c("s_and_b32 s%d, s%d, 7" % (sT0, sT0))
    c("s_mul_i32 s%d, s%d, ((L_codeend-L_start+1023)/1024)*128" % (sT0, sT0))
    c("v_lshlrev_b32 v1, 7, v0")
    c("v_add_u32 v1, s%d, v1" % sT0)
    c("v_min_u32 v1, L_codeend-L_start-4, v1")
    c("v_mov_b32 v3, s57")
    c("v_add_co_u32 v2, vcc, s56, v1")
    c("s_nop 1")
    c("v_addc_co_u32 v3, vcc, 0, v3, vcc")
    c("v_cmp_gt_u32 vcc, (L_codeend-L_start+1023)/1024, v0")
    c("s_and_saveexec_b64 s[58:59], vcc")
    c("global_load_dword v255, v[2:3], off")
    c("s_mov_b64 exec, -1")
    c("L_nopf:")
c("v_lshrrev_b32 v1, 4, v0")
c("v_and_b32 v2, 15, v0")
c("v_lshrrev_b32 v3, 5, v0")
c("v_and_b32 v4, 1, v1")
c("v_lshl_add_u32 v3, v4, 1, v3")
c("v_xor_b32 v3, v3, v2")
c("v_lshlrev_b32 v3, 4, v3")
c("v_lshl_add_u32 v%d, v2, 8, v3" % aK)
for ks in range(1, 4):
    c("v_xor_b32 v%d, %d, v%d" % (aK + ks, ks << 6, aK))
c("s_lshl_b32 s%d, s%d, 12" % (sT0, sWAVE))
c("s_add_u32 s%d, s%d, %d" % (sT0, sT0, STG))
c("v_lshrrev_b32 v3, 1, v2")
c("v_xor_b32 v3, v3, v1")
c("v_lshlrev_b32 v3, 4, v3")
c("v_lshl_add_u32 v3, v2, 7, v3")
c("v_add_u32 v%d, s%d, v3" % (aXq, sT0))
c("v_xor_b32 v%d, 64, v%d" % (aXq + 1, aXq))
c("v_bfe_u32 v2, v0, 2, 2")
c("v_lshrrev_b32 v3, 2, v0")
c("v_and_b32 v4, 7, v3")
c("v_lshlrev_b32 v4, 5, v4")
c("v_lshl_add_u32 v3, v3, 8, v4")
c("v_and_b32 v4, 3, v0")
c("v_lshl_add_u32 v3, v4, 3, v3")
c("v_add_u32 v%d, %d, v3" % (aV, VRING + 16384))
for db in range(1, 8):
    c("v_xor_b32 v%d, %d, v%d" % (aV + db, db << 5, aV))
c("v_lshl_add_u32 v3, v1, 10, v3")
c("v_add_u32 v%d, %d, v3" % (aWq, STG + 16384))
for db in range(1, 8):
    c("v_xor_b32 v%d, %d, v%d" % (aWq + db, db << 5, aWq))
c("v_mul_u32_u24 v2, 320, v2")
c("v_lshrrev_b32 v3, 5, v0")
c("v_lshl_add_u32 v3, v3, 11, v2")
c("v_and_b32 v4, 1, v1")
c("v_lshl_add_u32 v3, v4, 5, v3")
c("v_and_b32 v4, 1, v0")
c("v_lshl_add_u32 v3, v4, 4, v3")
c("v_bfe_u32 v4, v0, 1, 1")
c("v_lshl_add_u32 v3, v4, 3, v3")
c("s_lshl_b32 s%d, s%d, 5" % (sT0, sG))
c("v_xor_b32 v%d, s%d, v3" % (vLO, sT0))
c("s_cmp_eq_u32 s%d, 3" % sWAVE)
c("s_mov_b32 s%d, %s" % (sT0, f32(3e38)))
c("s_cselect_b32 s%d, %s, s%d" % (sPADM, f32(-1e30), sT0))
c("v_and_b32 v2, 31, v0")
c("s_lshl_b32 s%d, s%d, 5" % (sT0, sWAVE))
c("v_add_u32 v3, s%d, v2" % sT0)
c("v_lshlrev_b32 v%d, 4, v0" % vE)
c("v_cmp_lt_u32 vcc, 111, v3")
c("v_bfrev_b32 v3, 1")
c("s_not_b64 s[%d:%d], vcc" % (sVALID, sVALID + 1))
c("v_cndmask_b32 v3, 0, v3, vcc")
c("v_or_b32 v%d, v%d, v3" % (vE, vE))
for i in range(64):
    c("v_mov_b32 v%d, 0" % (ACC + i))
c("s_mov_b32 s%d, %s" % (sCS, f32(CSC)))
c("s_mov_b32 s%d, %s" % (sCS + 1, f32(CSC)))
c("s_mov_b32 s%d, %s" % (sTHR, f32(0.0 if OPT["force_rescale"] else OPT["thr"])))
c("s_waitcnt lgkmcnt(0)")
c("s_mov_b32 s%d, %d" % (sT0, OPT["wsbase"]))
srd(c, SA, sWS, sT0, "0x%x" % (0x10000000 - OPT["wsbase"]))
c("s_mul_i32 s%d, s%d, 114688" % (sT0, sB))
srd(c, SB, sOUT, sT0, "114688")
c("s_lshl_b32 s%d, s%d, 7" % (sT0, sWAVE))
c("v_xor_b32 v1, s%d, v0" % sWGL)
c("v_lshlrev_b32 v1, 11, v1")
c("v_lshl_add_u32 v2, v0, 2, s%d" % sT0)
c("v_add_u32 v1, v1, v2")
c("s_lshl_b32 s%d, s%d, 11" % (sT1, sWGL))
c("v_add_u32 v2, s%d, v2" % sT1)
c("v_subrev_u32 v3, 1, v0")
c("v_cmp_gt_u32 vcc, 3, v3")
c("v_bfrev_b32 v3, 1")
c("s_nop 0")
c("v_cndmask_b32 v%d, v3, v1, vcc" % vM1)
c("v_cndmask_b32 v%d, v3, v2, vcc" % vP1)
c("v_lshlrev_b32 v1, 2, v0")
c("v_and_b32 v2, 3, v0")
c("v_cmp_gt_u32 vcc, 8, v0")
c("s_nop 1")
c("v_cndmask_b32 v1, v2, v1, vcc")
c("v_xor_b32 v1, s%d, v1" % sWGL)
c("v_lshlrev_b32 v1, 11, v1")
c("v_lshrrev_b32 v2, 3, v0")
c("v_lshl_add_u32 v1, v2, 2, v1")
c("v_add_u32 v1, 512, v1")
c("v_cmp_gt_u32 vcc, 12, v0")
c("s_nop 1")
c("v_cndmask_b32 v%d, v3, v1, vcc" % vINFO)
c("v_and_b32 v1, 31, v0")
c("s_lshl_b32 s%d, s%d, 5" % (sT0, sWAVE))
c("v_add_u32 v1, s%d, v1" % sT0)
c("v_lshlrev_b32 v1, 10, v1")
c("v_lshrrev_b32 v2, 5, v0")
c("v_lshl_add_u32 v%d, v2, 4, v1" % vOUT)
c("s_lshl_b32 s%d, s%d, 8" % (sT0, sHN))
c("s_lshl_b32 s%d, s%d, 5" % (sT1, sG))
c("s_add_u32 s%d, s%d, s%d" % (sOFF, sT0, sT1))
c("s_lshl_b32 s%d, s%d, 15" % (sE1, sWGL))
c("s_lshl_b32 s%d, s%d, 13" % (sT0, sWAVE))
c("s_add_u32 s%d, s%d, s%d" % (sE1, sE1, sT0))
c("s_add_u32 s%d, s%d, %d" % (sE1, sE1, E1_OFF))
c("s_lshl_b32 s%d, s%d, 2" % (sT0, sB))
c("s_add_u32 s%d, s%d, s%d" % (sT0, sT0, sHN))
c("s_lshl_b32 s%d, s%d, 19" % (sT0, sT0))
c("s_lshl_b32 s%d, s%d, 11" % (sT1, sWAVE))
c("s_add_u32 s%d, s%d, s%d" % (sT0, sT0, sT1))
c("s_add_u32 s%d, s%d, %d" % (sE2P, sT0, E2_OFF))
c("s_lshl_b32 s%d, s%d, 16" % (sT1, sG))
c("s_add_u32 s%d, s%d, s%d" % (sE2C, sE2P, sT1))


def q_reads(s_):
    W = VF if s_ == 0 else S0
    r = ["ds_read_b128 %s, v%d offset:%d" % (vr(XB + 8 * s_ + 4 * blk, 4), aXq + s_, blk * 2048) for blk in range(2)]
    for db in range(8):
        for u in range(2):
            r.append("ds_read_b64_tr_b16 %s, v%d offset:%d" % (vr(W + 4 * db + 2 * u, 2), aWq + db, s_ * 8192 + u * 1024))
    return r


def k_reads(slot_off):
    return ["ds_read_b128 %s, v%d offset:%d" % (vr(KF + 16 * kb + 4 * ks, 4), aK + ks, slot_off + kb * 4096)
            for ks in range(4) for kb in range(2)]


def q_mfmas(s_):
    W = VF if s_ == 0 else S0
    r = []
    for db in range(8):
        for blk in range(2):
            d = vr(ACC + 32 * blk + 4 * db, 4)
            r.append("%s %s, %s, %s, %s" % (M16, d, vr(W + 4 * db, 4), vr(XB + 8 * s_ + 4 * blk, 4), d))
    return r


c("s_mov_b32 s%d, 0" % sT2)
c("s_mov_b32 s%d, 32768" % sK16)
c("s_mov_b32 s%d, 8" % sCNT)
c("s_barrier")
stamp(c, 1)
c.add(q_reads(0))
lgq0, _ = c.finish(hist=e.ins)

ql = new("qloop")
ql("L_q:")
nx = q_reads(1)
gaps = [nx[2 * i:2 * i + 2] for i in range(9)] + [[] for _ in range(7)]
gaps[9] = ["s_add_u32 s%d, s%d, 1" % (sT2, sT2), "s_cmp_eq_u32 s%d, 3" % sT2,
           "s_cselect_b32 s%d, 0, s%d" % (sT2, sT2), "s_cselect_b32 s%d, %d, s%d" % (sDEL, -65536, sK16)]
adv = ["v_add_u32 v%d, s%d, v%d" % (r_, sDEL, r_) for r_ in range(aWq, aWq + 10)]
for i in range(5):
    gaps[10 + i] = adv[2 * i:2 * i + 2]
ql.add(interleave(q_mfmas(0), gaps))
ql("s_waitcnt lgkmcnt(0)")
ql("s_barrier")
nx = q_reads(0)
gaps = [nx[2 * i:2 * i + 2] for i in range(9)] + [[] for _ in range(7)]
ql.add(interleave(q_mfmas(1), gaps))
loop_end(ql, "L_q")
lgq1, _ = ql.finish(hist=c.ins, lgq=lgq0)
assert lgq1 == lgq0[-len(lgq1):] or STAMPS or PROBE == 1, (lgq0, lgq1)
pad_hazards(ql.ins, hist=ql.ins, check_only=True, where="q loop back edge")

q = new("attn_pro")
stamp(q, 2)
q("s_waitcnt lgkmcnt(0)")
q.add(k_reads(0))
q("s_waitcnt vmcnt(0)")
aO1, aO2, aO3 = aK, aW, aV
for nt in range(4):
    q("v_xor_b32 v%d, %d, v%d" % (aO2 + nt, nt << 6, vLO))
for ks in range(4):
    for blk in range(2):
        a0 = ACC + 32 * blk + 8 * ks
        f0 = QF + 16 * blk + 4 * ks
        for j in range(4):
            q("v_pk_mul_f32 %s, %s, s[%d:%d]" % (vr(a0 + 2 * j, 2), vr(a0 + 2 * j, 2), sCS, sCS + 1))
        for j in range(4):
            q("v_cvt_pk_bf16_f32 v%d, v%d, v%d" % (f0 + j, a0 + 2 * j, a0 + 2 * j + 1))
for ks in range(4):
    for blk in range(2):
        f0 = QF + 16 * blk + 4 * ks
        for j in range(2):
            q("v_permlane16_swap_b32 v%d, v%d" % (f0 + j, f0 + 2 + j))


def qk_list(SN, first):
    r = []
    for ks in range(4):
        for kb in range(2):
            for blk in range(2):
                d = vr(SN + 8 * blk + 4 * kb, 4)
                cc = d if ks else ("0" if first else vr(NM[blk], 4))
                r.append("%s %s, %s, %s, %s" % (M16, d, vr(KF + 16 * kb + 4 * ks, 4), vr(QF + 16 * blk + 4 * ks, 4), cc))
    return r


k1 = k_reads(8192)
gaps = []
for i in range(16):
    g = ["v_mov_b32 v%d, 0" % (ACC + 4 * i + j) for j in range(4)]
    if i & 1:
        g.append(k1[i >> 1])
    gaps.append(g)
q.add(interleave(qk_list(S0, True), gaps))
for ks in range(4):
    q("v_add_u32 v%d, 16384, v%d" % (aK + ks, aK + ks))
q("v_mov_b32 v%d, 0" % vL[0])
q("v_mov_b32 v%d, 0" % vL[1])


def blk_max(b, S, dst, tmp):
    b("v_max3_f32 v%d, v%d, v%d, v%d" % (dst, S, S + 1, S + 2))
    b("v_max3_f32 v%d, v%d, v%d, v%d" % (dst, dst, S + 3, S + 4))
    b("v_max3_f32 v%d, v%d, v%d, v%d" % (dst, dst, S + 5, S + 6))
    b("v_max_f32 v%d, v%d, v%d" % (dst, dst, S + 7))
    lane_reduce(b, "v_max_f32", dst, tmp)


def lane_reduce(b, op, dst, tmp):
    b("v_mov_b32 v%d, v%d" % (tmp, dst))
    b("v_permlane32_swap_b32 v%d, v%d" % (tmp, dst))
    b("%s v%d, v%d, v%d" % (op, dst, tmp, dst))
    b("v_mov_b32 v%d, v%d" % (tmp, dst))
    b("v_permlane16_swap_b32 v%d, v%d" % (tmp, dst))
    b("%s v%d, v%d, v%d" % (op, dst, tmp, dst))


for blk in range(2):
    blk_max(q, S0 + 8 * blk, 1, 2)
    q("v_sub_f32 v%d, 0, v1" % NM[blk])
    if blk == 1:
        q("v_min_f32 v%d, s%d, v%d" % (NM[blk], sPADM, NM[blk]))
    for j in range(1, 4):
        q("v_mov_b32 v%d, v%d" % (NM[blk] + j, NM[blk]))
    for i in range(8):
        q("v_add_f32 v%d, v%d, v%d" % (S0 + 8 * blk + i, S0 + 8 * blk + i, NM[blk]))
q("s_mov_b32 s%d, 15" % sCNT)
stamp(q, 3)
q.finish(hist=ql.ins)


def v_read(db, u, off):
    return "ds_read_b64_tr_b16 %s, v%d offset:%d" % (vr(VF + 4 * db + 2 * u, 2), aV + db, off + u * 4096)


def ex(S, i):
    return "v_exp_f32 v%d, v%d" % (S + i, S + i)


def cvt(S, j):
    return "v_cvt_pk_bf16_f32 v%d, v%d, v%d" % (PK + j, S + 2 * j, S + 2 * j + 1)


def add(S, i):
    return "v_add_f32 v%d, v%d, v%d" % (vL[i >> 3], vL[i >> 3], S + i)


def pv_list():
    r = []
    for db in range(8):
        for blk in range(2):
            d = vr(ACC + 32 * blk + 4 * db, 4)
            r.append("%s %s, %s, %s, %s" % (M16, d, vr(VF + 4 * db, 4), vr(PK + 4 * blk, 4), d))
    return r


def max_tree(S):
    r = ["v_max3_f32 v%d, v%d, v%d, v%d" % (vTM, S, S + 1, S + 2)]
    for i in range(3, 15, 2):
        r.append("v_max3_f32 v%d, v%d, v%d, v%d" % (vTM, vTM, S + i, S + i + 1))
    r.append("v_max_f32 v%d, v%d, v%d" % (vTM, vTM, S + 15))
    return r


def epoch(b, par, kread=True, adv=False, tag="", head=()):
    S, SN = (S0, S1) if par == 0 else (S1, S0)
    off = par * 8192
    vrd = [v_read(db, u, off) for db in range(8) for u in range(2)]
    kr = k_reads(off) if kread else [None] * 8
    b("s_waitcnt lgkmcnt(0)")
    if STAMPS == 3 and tag == "a":
        b("s_cmp_eq_u32 s%d, 13" % sCNT)
        for i in range(6):
            b("s_cselect_b32 s%d, s%d, s%d" % (sSTAMP + 2 * (i + 1), 56 + 2 * i if i < 3 else 90 + 2 * (i - 3), sSTAMP + 2 * (i + 1)))
    b("s_barrier")
    if STAMPS == 3 and tag in ("a", "b"):
        b("s_memtime s[%d:%d]" % ((56, 57) if tag == "a" else (90, 91)))
    b.add(head)
    ga = [[] for _ in range(16)]
    for i, gi in enumerate([0, 1, 3, 5, 7, 9, 11, 13]):
        ga[gi].append(vrd[i])
    for j in range(7):
        ga[2 * j + 2].append(cvt(S, j))
    for i in range(16):
        ga[i].append(ex(S, i))
    b.add(interleave(qk_list(SN, False), ga))
    if STAMPS == 3 and tag in ("a", "b"):
        b("s_memtime s[%d:%d]" % ((58, 59) if tag == "a" else (92, 93)))
    mx = max_tree(SN)
    gb = [[] for _ in range(16)]
    gb[0] = [cvt(S, 7), vrd[8], vrd[9]]
    gb[1] = [vrd[10], vrd[11]]
    gb[2] = [vrd[12], vrd[13]]
    gb[3] = [vrd[14], vrd[15]]
    for i in range(8):
        gb[4 + i].append(kr[i])
    order = [0, 8, 1, 9, 2, 10, 3, 11, 4, 12, 5, 13, 6, 14, 7, 15]
    for i in range(8):
        gb[4 + i].append(add(S, order[i]))
    for i in range(8):
        gb[12 + (i >> 1)].append(add(S, order[8 + i]))
    for i in range(8):
        gb[8 + i].append(mx[i])
    gb = [[x for x in g if x is not None] for g in gb]
    if adv:
        for i in range(8):
            gb[4 + (i >> 1)].append("v_xor_b32 v%d, 16384, v%d" % (aV + i, aV + i))
        for i in range(4):
            gb[12 + i].append("v_xor_b32 v%d, 16384, v%d" % (aK + i, aK + i))
    b.add(interleave(pv_list(), gb))
    if STAMPS == 3 and tag in ("a", "b"):
        b("s_memtime s[%d:%d]" % ((60, 61) if tag == "a" else (94, 95)))
    b("v_cmp_lt_f32 vcc, s%d, v%d" % (sTHR, vTM))
    b("s_cbranch_vccnz L_resc%s" % tag)
    b("L_back%s:" % tag)
    rescale(tag, SN)


rare = []


def rescale(tag, SN):
    r = Block("resc" + tag)
    r("L_resc%s:" % tag)
    r("s_nop 15")
    for blk in range(2):
        blk_max(r, SN + 8 * blk, 1, 2)
        r("v_max_f32 v1, 0, v1")
        r("v_sub_f32 v2, 0, v1")
        r("v_exp_f32 v2, v2")
        for j in range(4):
            r("v_sub_f32 v%d, v%d, v1" % (NM[blk] + j, NM[blk] + j))
        for i in range(8):
            r("v_sub_f32 v%d, v%d, v1" % (SN + 8 * blk + i, SN + 8 * blk + i))
        r("v_mul_f32 v%d, v%d, v2" % (vL[blk], vL[blk]))
        for i in range(32):
            r("v_mul_f32 v%d, v%d, v2" % (ACC + 32 * blk + i, ACC + 32 * blk + i))
    r("s_nop 1")
    r("s_branch L_back%s" % tag)
    r.finish()
    rare.append(r)


lp = new("loop")
lp("L_att:")
epoch(lp, 0, True, False, "a")
epoch(lp, 1, True, True, "b",
      head=["s_cmp_lg_u32 s%d, 1" % sCNT, "s_cbranch_scc1 L_noinfo",
            "buffer_load_dword v%d, v%d, s[%d:%d], 0 offen sc1" % (vINF, vINFO, SA, SA + 3), "L_noinfo:"])
loop_end(lp, "L_att")
lp.finish(hist=q.ins)
pad_hazards(lp.ins, hist=lp.ins, check_only=True, where="loop back edge")

t = new("tail")
stamp(t, 4)
epoch(t, 0, False, False, "c")
S = S1
for i in range(16):
    t(ex(S, i))
for j in range(8):
    t(cvt(S, j))
for i in range(16):
    t(add(S, i))
for nt in range(4):
    t("v_add_u32 v%d, %d, v%d" % (aO1 + nt, STG, aO2 + nt))
for blk in range(2):
    lane_reduce(t, "v_add_f32", vL[blk], 1)
    t("v_max_f32 v%d, %s, v%d" % (vL[blk], f32(1e-30), vL[blk]))
    t("v_rcp_f32 v%d, v%d" % (vL[blk], vL[blk]))
t("v_mov_b32 v%d, 0xfffff000" % vMASK)
t("v_mov_b32 v%d, 1" % NM[0])
t("s_add_u32 s%d, s%d, 4096" % (sT2, sE1))
t("s_waitcnt lgkmcnt(0)")
t("s_barrier")
stamp(t, 5)
vrd = [v_read(db, u, 8192) for db in range(8) for u in range(2)]
t.add(vrd[0:10])
OB = QF


def norm(ks):
    r = []
    for blk in range(2):
        a0 = ACC + 32 * blk + 8 * ks
        for j in range(4):
            r.append("v_pk_mul_f32 %s, %s, %s op_sel_hi:[1,0]" % (vr(a0 + 2 * j, 2), vr(a0 + 2 * j, 2), vr(vL[blk], 2)))
        for j in range(4):
            r.append("v_cvt_pk_bf16_f32 v%d, v%d, v%d" % (OB + 16 * blk + 4 * ks + j, a0 + 2 * j, a0 + 2 * j + 1))
    return r


def swaps(ks):
    return ["v_permlane16_swap_b32 v%d, v%d" % (OB + 4 * ks + j, OB + 16 + 4 * ks + j) for j in range(4)]


info = ["v_readlane_b32 s%d, v%d, %d" % (sN + j, vINF, j) for j in range(8)]
info += ["v_readlane_b32 s%d, v%d, 8" % (sT0, vINF), "s_nop 0", "v_cmp_eq_u32 vcc, s%d, v%d" % (sT0, vINF),
         "s_nop 0", "s_lshr_b32 s%d, vcc_lo, 8" % sFAST, "s_and_b32 s%d, s%d, 15" % (sFAST, sFAST)]
g = [vrd[10:12], vrd[12:14], vrd[14:16], info[0:4], info[4:8], info[8:], [], []] + [[] for _ in range(8)]
n0, n1 = norm(0), norm(1)
for i in range(4):
    g[8 + i] = n0[4 * i:4 * i + 4]
    g[12 + i] = n1[4 * i:4 * i + 4]
t.add(interleave(pv_list(), g))
t.add(swaps(0))
t.add(norm(2))
t.add(swaps(1))
t.add(norm(3))
t.add(swaps(2))

BLK_ADDR = {0: (aO1, 0), 1: (aO1, 32768), 2: (aO3, 0), 3: (aO2, 0)}
SBUF = {1: S0, 2: KF, 3: XB}
SEQ = [(j, f, nt) for j in range(3) for f in range(8) for nt in range(4)]
SEQ += [(3, f, nt) for nt in (1, 2, 3, 0) for f in range(8)]


def w_reads(m):
    if m >= len(SEQ):
        return []
    j, f, nt = SEQ[m]
    ks, y = f >> 1, f & 1
    a, off = BLK_ADDR[j]
    return ["ds_read_b64_tr_b16 %s, v%d offset:%d" % (vr(VF + 4 * (m & 7) + 2 * u, 2), a + nt,
                                                   off + ks * 8192 + u * 4096 + y * 1024) for u in range(2)]


def bfrag(j, f):
    return OB + 16 * (f & 1) + 4 * (f >> 1) if j == 0 else SBUF[j] + 4 * f


def o_mfma(b, m, extra=()):
    j, f, nt = SEQ[m]
    b("%s %s, %s, %s, %s" % (M32, vr(ACC + 16 * nt, 16), vr(VF + 4 * (m & 7), 4), vr(bfrag(j, f), 4),
                             "0" if (j == 0 and f == 0) else vr(ACC + 16 * nt, 16)))
    b.add(w_reads(m + 8))
    b.add(extra)


for m in range(4):
    t.add(w_reads(m))
t.add(swaps(3))
for m in range(4, 8):
    t.add(w_reads(m))


def publish(fl):
    return ["buffer_store_dwordx4 %s, v%d, s[%d:%d], s%d offen offset:%d %s" % (vr(bfrag(0, f), 4), vE, SA, SA + 3,
            sE1 if f < 4 else sT2, (f & 3) * 1024, fl) for f in range(8)]


def two_way(b, name, fast, slow):
    if not OPT["fast"]:
        b.add(slow)
        return
    b("s_cmp_eq_u32 s%d, 15" % sFAST)
    b("s_cbranch_scc1 L_%sf" % name)
    b.add(slow)
    b("s_branch L_%sj" % name)
    b("L_%sf:" % name)
    for x in fast:
        i_ = parse(x)
        i_.kind = "comment"
        i_.n = 0
        b.add([i_])
    b("L_%sj:" % name)


two_way(t, "pub", publish(""), publish("sc1"))
stamp(t, 6)
stamp(t, 7)
flag = "buffer_store_dword v%d, v%d, s[%d:%d], 0 offen" % (NM[0], vM1, SA, SA + 3)
pollld = "buffer_load_dword v%d, v%d, s[%d:%d], 0 offen sc1" % (vTM, vP1, SA, SA + 3)
for m in range(32):
    ex_ = []
    if 4 <= m < 8:
        ex_ = ["v_add_u32 v%d, %d, v%d" % (aO3 + (m & 3), STG + 65536, aO2 + (m & 3))]
    o_mfma(t, m, ex_)
    if m == OPT["flagat"] - 1:
        t("s_waitcnt vmcnt(0)")
        two_way(t, "flg", [flag], [flag + " sc1"])
        stamp(t, 8)
    if m == 27:
        t(pollld)
t("s_mov_b32 s%d, 0x100000" % sCNT)
t("s_branch L_poll1c")
t("L_poll1:")
i_ = parse(pollld)
i_.kind = "comment"
i_.n = 0
t.add([i_])
t("L_poll1c:")
t("s_sub_u32 s%d, s%d, 1" % (sCNT, sCNT))
t("s_cmp_eq_u32 s%d, 0" % sCNT)
t("s_cbranch_scc1 L_poll1d")
t("s_waitcnt vmcnt(0)")
t("v_cmp_eq_u32 vcc, 1, v%d" % vTM)
t("s_cmp_lg_u32 vcc_lo, 14")
t("s_cbranch_scc1 L_poll1")
t("L_poll1d:")
t("s_waitcnt vmcnt(0)")
stamp(t, 9)
for j in range(1, 4):
    t("s_xor_b32 s%d, s%d, %d" % (sT0, sE1, j << 15))
    t("s_add_u32 s%d, s%d, 4096" % (sT1, sT0))
    for f in range(8):
        t("buffer_load_dwordx4 %s, v%d, s[%d:%d], s%d offen offset:%d sc1" % (vr(SBUF[j] + 4 * f, 4), vE, SA, SA + 3,
                                                                          sT0 if f < 4 else sT1, (f & 3) * 1024))
PB = QF


def tags(src):
    r = ["s_mov_b32 s%d, s%d" % (sTG, src)]
    for i in range(1, 4):
        r += ["s_add_u32 s%d, s%d, %d" % (sTG + i, sTG + i - 1, TAGK), "s_and_b32 s%d, s%d, 0xfff" % (sTG + i, sTG + i)]
    return r


def send(j):
    if OPT["p16"]:
        r = ["s_xor_b32 s%d, s%d, %d" % (sT0, sG, j), "s_lshl_b32 s%d, s%d, 16" % (sT0, sT0),
             "s_add_u32 s%d, s%d, s%d" % (sT0, sT0, sE2P), "s_add_u32 s%d, s%d, %d" % (sT0, sT0, j * 8192)]
        r += ["s_nop 0"] * 0
        a0 = ACC + 8 * j
        r += [None] * 7
        r += ["v_cvt_pk_bf16_f32 v%d, v%d, v%d" % (a0 + i, a0 + 2 * i, a0 + 2 * i + 1) for i in range(4)]
        r.append("buffer_store_dwordx4 %s, v%d, s[%d:%d], s%d offen %s" % (vr(a0, 4), vE, SA, SA + 3, sT0, OPT["st2"]))
        return r
    r = tags(sN + j)
    r += ["s_xor_b32 s%d, s%d, %d" % (sT0, sG, j), "s_lshl_b32 s%d, s%d, 16" % (sT0, sT0),
          "s_add_u32 s%d, s%d, s%d" % (sT0, sT0, sE2P), "s_add_u32 s%d, s%d, %d" % (sT0, sT0, j * 8192)]
    for hf in range(2):
        a0 = ACC + 8 * j + 4 * hf
        r += ["v_and_or_b32 v%d, v%d, v%d, s%d" % (a0 + i, a0 + i, vMASK, sTG + i) for i in range(4)]
        r.append("buffer_store_dwordx4 %s, v%d, s[%d:%d], s%d offen offset:%d %s" % (vr(a0, 4), vE, SA, SA + 3, sT0, hf * 1024, OPT["st2"]))
    return r


def fetch(j):
    if OPT["p16"]:
        return ["s_add_u32 s%d, s%d, %d" % (sT3, sE2C, j * 8192),
                "buffer_load_dwordx4 %s, v%d, s[%d:%d], s%d offen %s" % (vr(PB + 4 * (j - 1), 4), vE, SA, SA + 3, sT3, OPT["ld2"])]
    return ["s_add_u32 s%d, s%d, %d" % (sT3, sE2C, j * 8192)] + \
           ["buffer_load_dwordx4 %s, v%d, s[%d:%d], s%d offen offset:%d %s" % (vr(PB + 8 * (j - 1) + 4 * hf, 4), vE, SA, SA + 3,
                                                                            sT3, hf * 1024, OPT["ld2"]) for hf in range(2)]


def check(j):
    p = PB + 8 * (j - 1)
    r = ["v_xor_b32 v%d, s%d, v%d" % (p + i, sTG + (i & 3), p + i) for i in range(8)]
    r += ["v_or3_b32 v1, v%d, v%d, v%d" % (p, p + 1, p + 2), "v_or3_b32 v1, v1, v%d, v%d" % (p + 3, p + 4),
          "v_or3_b32 v1, v1, v%d, v%d" % (p + 5, p + 6), "v_or_b32 v1, v1, v%d" % (p + 7),
          "v_and_b32 v1, 0xfff, v1", "v_cmp_ne_u32 vcc, 0, v1",
          "s_and_b64 vcc, vcc, s[%d:%d]" % (sVALID, sVALID + 1)]
    return r


extra = {m: [] for m in range(128)}
vLP, vHS = 2, NM[1]
sWANT = sPADM
light = "buffer_load_dword v%d, v%d, s[%d:%d], 0 offen %s" % (vTM, vLP, SA, SA + 3, OPT["lp2"])
hint = "buffer_store_dword v%d, v%d, s[%d:%d], 0 offen sc1" % (NM[0], vHS, SA, SA + 3)
extra[40] += ["s_lshl_b32 s%d, s%d, 7" % (sT0, sWAVE), "s_add_u32 s%d, s%d, 1024" % (sT0, sT0),
              "v_lshl_add_u32 v%d, v0, 2, s%d" % (vLP, sT0)]
extra[41] += ["v_lshlrev_b32 v1, 2, v0", "v_xor_b32 v1, s%d, v1" % sWGL, "v_lshl_add_u32 v%d, v1, 11, v%d" % (vHS, vLP)]
extra[42] += ["s_lshl_b32 s%d, s%d, 11" % (sT0, sWGL), "v_add_u32 v%d, s%d, v%d" % (vLP, sT0, vLP), "v_subrev_u32 v1, 1, v0"]
extra[43] += ["v_cmp_gt_u32 vcc, 7, v1", "v_bfrev_b32 v1, 1", "s_nop 0", "v_cndmask_b32 v%d, v1, v%d, vcc" % (vLP, vLP),
              "v_cndmask_b32 v%d, v1, v%d, vcc" % (vHS, vHS)]
if OPT["first"]:
    for j in range(1, 8):
        extra[96 + j] += fetch(j)
elif not OPT["p16"]:
    extra[116] += [light]
for i, nt in enumerate((1, 2, 3) if OPT["prog"] else ()):
    base = 104 + 8 * i
    for k_, j in enumerate((2 * nt, 2 * nt + 1)):
        sd = send(j)
        extra[base + 2 + 3 * k_] += sd[0:11]
        extra[base + 3 + 3 * k_] += sd[11:16]
        extra[base + 4 + 3 * k_] += sd[16:]
for m in range(32, 128):
    if m == 33:
        stamp(t, 1, True)
    if m == 64:
        stamp(t, 2, True)
    if m == 84:
        stamp(t, 3, True)
        t("s_barrier")
    if m == 96:
        stamp(t, 4, True)
    o_mfma(t, m, [x for x in extra[m] if x])
stamp(t, 10)
for j in ([1] if OPT["prog"] else [2, 3, 4, 5, 6, 7, 1]):
    t.add([x for x in send(j) if x])
if OPT["p16"]:
    t("s_waitcnt vmcnt(0)")
t(hint)
stamp(t, 11)
t.add(tags(sN))


def ready_mask(b):
    b("v_cmp_eq_u32 vcc, 1, v%d" % vTM)
    b("s_and_b32 s%d, vcc_lo, s%d" % (sWANT, sMISS))
    if OPT["spec"]:
        b("s_bcnt1_i32_b32 s%d, s%d" % (sT3, sMISS))
        b("s_cmp_le_u32 s%d, %d" % (sT3, OPT["spec"]))
        b("s_cselect_b32 s%d, s%d, s%d" % (sWANT, sMISS, sWANT))


if not OPT["p16"]:
    t("s_mov_b32 s%d, 0x100000" % sCNT)
    if OPT["first"]:
        t(light)
        t("s_mov_b32 s%d, 0" % sMISS)
        for j in range(1, 8):
            t.add(check(j))
            t("s_cselect_b32 s%d, %d, 0" % (sT3, 1 << j))
            t("s_or_b32 s%d, s%d, s%d" % (sMISS, sMISS, sT3))
        t("s_cbranch_scc0 L_poll2d")
    else:
        t("s_mov_b32 s%d, 0xfe" % sMISS)
    ready_mask(t)
    t("L_poll2:")
    t(light)
    t("s_cmp_eq_u32 s%d, 0" % sWANT)
    t("s_cbranch_scc1 L_p2w")
    for j in range(1, 8):
        t("s_bitcmp1_b32 s%d, %d" % (sWANT, j))
        t("s_cbranch_scc0 L_p2a%d" % j)
        t.add(fetch(j))
        t("L_p2a%d:" % j)
    t("s_waitcnt vmcnt(0)")
    for j in range(1, 8):
        t("s_bitcmp1_b32 s%d, %d" % (sWANT, j))
        t("s_cbranch_scc0 L_p2b%d" % j)
        t.add(check(j))
        t("s_cbranch_scc1 L_p2b%d" % j)
        t("s_bitset0_b32 s%d, %d" % (sMISS, j))
        t("L_p2b%d:" % j)
    t("s_cmp_eq_u32 s%d, 0" % sMISS)
    t("s_cbranch_scc1 L_poll2d")
    t("L_p2w:")
    t("s_waitcnt vmcnt(0)")
    ready_mask(t)
    t("s_sub_u32 s%d, s%d, 1" % (sCNT, sCNT))
    t("s_cbranch_scc0 L_poll2")
else:
    t("s_mov_b32 s%d, 0x100000" % sCNT)
    t("L_poll2:")
    t(light)
    t("s_sub_u32 s%d, s%d, 1" % (sCNT, sCNT))
    t("s_cbranch_scc1 L_poll2e")
    t("s_waitcnt vmcnt(0)")
    t("v_cmp_eq_u32 vcc, 1, v%d" % vTM)
    t("s_cmp_lg_u32 vcc_lo, 0xfe")
    t("s_cbranch_scc1 L_poll2")
    t("L_poll2e:")
    for j in range(1, 8):
        t.add(fetch(j))
t("L_poll2d:")
stamp(t, 12)
for j in range(1, 8):
    if OPT["p16"]:
        for i in range(4):
            p = PB + 4 * (j - 1) + i
            t("v_lshlrev_b32 v1, 16, v%d" % p)
            t("v_and_b32 v%d, 0xffff0000, v%d" % (p, p))
            t("v_add_f32 v%d, v%d, v1" % (ACC + 2 * i, ACC + 2 * i))
            t("v_add_f32 v%d, v%d, v%d" % (ACC + 2 * i + 1, ACC + 2 * i + 1, p))
        continue
    for i in range(8):
        t("v_add_f32 v%d, v%d, v%d" % (ACC + i, ACC + i, PB + 8 * (j - 1) + i))
for j in range(4):
    t("v_cvt_pk_bf16_f32 v%d, v%d, v%d" % (ACC + 8 + j, ACC + 2 * j, ACC + 2 * j + 1))
t("buffer_store_dwordx4 %s, v%d, s[%d:%d], s%d offen" % (vr(ACC + 8, 4), vOUT, SB, SB + 3, sOFF))
if STAMPS:
    t("s_waitcnt vmcnt(0)")
    stamp(t, 13)
    t("s_memtime s[94:95]")
    t("s_waitcnt lgkmcnt(0)")
    t("s_sub_u32 s%d, s94, s92" % (sSTAMP + 28))
    t("s_getreg_b32 s%d, hwreg(HW_REG_XCC_ID)" % (sSTAMP + 30))
    for i in range(16):
        t("v_mov_b32 v%d, s%d" % (ACC + 16 + i, sSTAMP + 2 * i))
    t("s_lshl_b32 s%d, s2, 2" % sT0)
    t("s_add_u32 s%d, s%d, s%d" % (sT0, sT0, sWAVE))
    t("s_lshl_b32 s%d, s%d, 6" % (sT0, sT0))
    t("s_add_u32 s%d, s%d, %d" % (sT0, sT0, ST_OFF))
    srd(t, SA, sWS, None, "0x10000000")
    t("v_mov_b32 v1, 0")
    t("s_mov_b64 exec, 1")
    for i in range(4):
        t("buffer_store_dwordx4 %s, v1, s[%d:%d], s%d offen offset:%d" % (vr(ACC + 16 + 4 * i, 4), SA, SA + 3, sT0, 16 * i))
if PROBE >= 0:
    stamp(t, 13)
    t("s_add_u32 s%d, s%d, 6000" % (sT2, sSTAMP + (2 if PROBE else 0)))
    t("L_spin:")
    t("s_sleep 2")
    t("s_memrealtime s[%d:%d]" % (sSTAMP + 4, sSTAMP + 5))
    t("s_waitcnt lgkmcnt(0)")
    t("s_sub_u32 s%d, s%d, s%d" % (sT0, sSTAMP + 4, sT2))
    t("s_cmp_lt_i32 s%d, 0" % sT0)
    t("s_cbranch_scc1 L_spin")
t("L_end:")
t("s_endpgm")
t.finish(hist=lp.ins, vmq=[{vINF}])
for r in rare:
    blocks.append(r)

hdr = open("standalone__mha_block_cached__near_ridge.s.ref").read().split("; Override launch")[0]
out = [hdr.rstrip()]
out.append("; @launch grid=(256,1,1) block=(512,1,1) lds=163840")
out.append('.amdgcn_target "amdgcn-amd-amdhsa--gfx950"')
out.append(".text")
out.append(".globl " + KNAME)
out.append(".p2align 8")
out.append(".type %s,@function" % KNAME)
out.append(KNAME + ":")
for b in blocks:
    out.append("; ---- %s ----" % b.name)
    out.append(b.text())
out.append("L_codeend:")
out.append(".p2align 8")
out.append(".fill 64, 4, 0xbf800000")
out.append('.section .rodata,"a"')
out.append(".p2align 6")
out.append(".amdhsa_kernel " + KNAME)
out.append("""  .amdhsa_next_free_vgpr 256
  .amdhsa_next_free_sgpr 102
  .amdhsa_accum_offset 256
  .amdhsa_group_segment_fixed_size 0
  .amdhsa_kernarg_size 64
  .amdhsa_user_sgpr_count 2
  .amdhsa_user_sgpr_kernarg_segment_ptr 1
  .amdhsa_system_sgpr_workgroup_id_x 1
.end_amdhsa_kernel""")
print("\n".join(out))
```

```python
import sys, struct, math
from asmgen import *

OPT = dict(stamps=0, nt_kv="nt", nt_x="", nt_w="nt", nt_wo="nt", lag=0, probe=-1, thr=8.0, force_rescale=0, stag_k="5.5.5.5", stag_v="6.6.6.6",
           prio_x=2, prio_w=2, codepf=1, rot=0, ksw=6, vsw=12, fast=1, dyn=0, qdiag=0, wopf=5, wopf_fl="nt",  fat=12, wsbase=0)
for a in sys.argv[1:]:
    k, v = a.split("=")
    OPT[k] = type(OPT[k])(v) if not isinstance(OPT[k], str) else v.replace("_", " ").strip()
STAMPS = OPT["stamps"]

KNAME = "standalone__mha_block_cached__near_ridge_kernel"


def f32(x):
    return "0x%08x" % struct.unpack("<I", struct.pack("<f", x))[0]


CSC = math.log2(math.e) / math.sqrt(128.0)

KRING, VRING, STG = 0, 32768, 65536
RING = 32768
MB_OFF, E1_OFF, E2_OFF, ST_OFF = 0x0, 0x100000, 0x900000, 0x4000000
sX, sK, sV, sWQ, sWO, sOUT, sDBG, sWS = 4, 6, 8, 10, 12, 14, 16, 18
sWAVE, sG, sB, sHN, sH, sWGL = 20, 21, 22, 23, 24, 25
SA, SB, SC = 28, 32, 36
sOFF, sLDS, sCNT, sT0, sT1, sT2 = 40, 41, 42, 43, 44, 45
sCS, sPAIR, sDEL, sE1, sE2P, sE2C = 46, 47, 48, 49, 50, 51
sTHR, sFAST, sK16, sPADM = 52, 53, 54, 55
sVALID = 26
sN = 56
sTG = 96
sMISS, sT3 = 100, 101
TAGK = 0x405
sSTAMP = 64
vE, vLO, vTM, aX = 4, 5, 6, 7
aK, aW, aV = 8, 12, 16
NM = (24, 28)
ACC, QF, S0, S1, KF, VF, XB = 32, 96, 128, 144, 160, 192, 224
PK = XB
vL = (232, 234)
vM1, vINFO, vINF, vOUT, vP1 = 240, 242, 243, 7, 3
def nib(txt):
    return sum(int(x) << (4 * i) for i, x in enumerate(txt.split(".")))


NQB = 9
aWq, aXq = 96, 104
M16 = "v_mfma_f32_16x16x32_bf16"
M32 = "v_mfma_f32_32x32x16_bf16"


PROBE = OPT["probe"]


def stamp(b, idx, force=False):
    if STAMPS == 5 and 1 <= idx <= 4:
        if force:
            b("s_memrealtime s[%d:%d]" % (sSTAMP + 2 * idx, sSTAMP + 2 * idx + 1))
        return
    if force:
        return
    if PROBE == idx:
        b("s_memrealtime s[%d:%d]" % (sSTAMP + 2, sSTAMP + 3))
        b("s_waitcnt lgkmcnt(0)")
    if STAMPS == 3 and 1 <= idx <= 6:
        return
    if STAMPS:
        b("s_memrealtime s[%d:%d]" % (sSTAMP + 2 * idx, sSTAMP + 2 * idx + 1))
        b("s_waitcnt lgkmcnt(0)")


def srd(b, dst, ptr, off_sreg, size):
    if off_sreg is None:
        b("s_mov_b32 s%d, s%d" % (dst, ptr))
        b("s_mov_b32 s%d, s%d" % (dst + 1, ptr + 1))
    else:
        b("s_add_u32 s%d, s%d, s%d" % (dst, ptr, off_sreg))
        b("s_addc_u32 s%d, s%d, 0" % (dst + 1, ptr + 1))
    b("s_mov_b32 s%d, %s" % (dst + 2, size))
    b("s_mov_b32 s%d, 0x20000" % (dst + 3))


def dma_group(b, S, voffs, soff, flags, n=4):
    for p in range(n):
        o = " offset:%d" % (p * 1024) if p else ""
        b("buffer_load_dwordx4 v%d, s[%d:%d], s%d offen%s %s lds" % (voffs[p], S, S + 3, soff, o, flags))


blocks = []


def new(name):
    b = Block(name)
    blocks.append(b)
    return b


e = new("entry")
e("L_start:")
e("s_cmp_ge_u32 s2, 256")
e("s_cbranch_scc1 L_end")
e("s_load_dwordx16 s[4:19], s[0:1], 0")
if PROBE >= 0:
    e("s_memrealtime s[%d:%d]" % (sSTAMP, sSTAMP + 1))
if STAMPS:
    e("s_memrealtime s[%d:%d]" % (sSTAMP, sSTAMP + 1))
    e("s_memtime s[92:93]")
e("v_lshrrev_b32 v1, 6, v0")
e("v_and_b32 v0, 63, v0")
e("v_readfirstlane_b32 s%d, v1" % sWAVE)
e("s_and_b32 s%d, s2, 7" % sG)
e("s_lshr_b32 s%d, s2, 5" % sB)
e("s_lshr_b32 s%d, s2, 3" % sHN)
e("s_and_b32 s%d, s%d, 3" % (sHN, sHN))
e("s_lshl_b32 s%d, s%d, 2" % (sH, sG))
e("s_add_u32 s%d, s%d, s%d" % (sH, sH, sHN))
e("s_lshl_b32 s%d, s%d, 5" % (sWGL, sB))
e("s_add_u32 s%d, s%d, s%d" % (sWGL, sWGL, sH))
e("s_cmp_lt_u32 s%d, 4" % sWAVE)
e("s_cbranch_scc1 L_compute")
e("v_lshrrev_b32 v1, 4, v0")
e("v_and_b32 v3, 15, v0")
e("v_lshlrev_b32 v2, 2, v1")
e("v_xor_b32 v2, v2, v3")
e("v_lshlrev_b32 v2, 4, v2")
e("s_cmp_eq_u32 s%d, 6" % sWAVE)
e("s_cbranch_scc1 L_ldx")
e("s_cmp_eq_u32 s%d, 7" % sWAVE)
e("s_cbranch_scc1 L_ldw")
e("s_cmp_eq_u32 s%d, 5" % sWAVE)
e("s_cbranch_scc1 L_ldv")
e.finish()

WOV = [14, 15, 16, 17]


def wo_setup(b):
    b("v_lshl_add_u32 v14, v1, 10, v2")
    b("v_add_u32 v15, 3072, v14")
    b("v_add_u32 v16, 6144, v14")
    b("v_add_u32 v17, 9216, v14")
    b("s_lshl_b32 s%d, s%d, 19" % (sT0, sG))
    b("s_lshl_b32 s%d, s%d, 8" % (sT1, sHN))
    b("s_add_u32 s%d, s%d, s%d" % (sT0, sT0, sT1))
    b("s_sub_u32 s%d, 0x400000, s%d" % (sT1, sT0))
    srd(b, SB, sWO, sT0, "s%d" % sT1)


def kv_tile(b, voffs, base):
    fl = OPT["nt_kv"]
    b("s_mov_b32 m0, s%d" % sLDS)
    b("s_add_u32 s%d, s%d, 4096" % (sT0, sLDS))
    dma_group(b, SA, voffs, sOFF, fl)
    b("s_mov_b32 m0, s%d" % sT0)
    b("s_add_u32 s%d, s%d, 4096" % (sOFF, sOFF))
    dma_group(b, SA, voffs, sOFF, fl)
    b("s_add_u32 s%d, s%d, 4096" % (sOFF, sOFF))
    if OPT["rot"]:
        b("s_and_b32 s%d, s%d, 0x3ffff" % (sOFF, sOFF))
    ring_adv(b, base)


def key_rot(b):
    if OPT["rot"] == 0:
        b("s_mov_b32 s%d, 0" % sOFF)
        return
    if OPT["rot"] == 1:
        b("s_and_b32 s%d, s2, 31" % sOFF)
    elif OPT["rot"] == 2:
        b("s_lshr_b32 s%d, s2, 3" % sOFF)
    elif OPT["rot"] == 3:
        b("s_lshr_b32 s%d, s2, 3" % sOFF)
        b("s_lshl_b32 s%d, s2, 2" % sT1)
        b("s_add_u32 s%d, s%d, s%d" % (sOFF, sOFF, sT1))
        b("s_and_b32 s%d, s%d, 31" % (sOFF, sOFF))
    b("s_lshl_b32 s%d, s%d, 13" % (sOFF, sOFF))


def ring_adv(b, base):
    b("s_add_u32 s%d, s%d, 8192" % (sLDS, sLDS))
    b("s_cmp_eq_u32 s%d, %d" % (sLDS, base + RING))
    b("s_cselect_b32 s%d, %d, s%d" % (sLDS, base, sLDS))


def wo_tile(b):
    b("s_mov_b32 m0, s%d" % sLDS)
    b("s_add_u32 s%d, s%d, 4096" % (sT0, sLDS))
    dma_group(b, SB, WOV, sOFF, OPT["nt_wo"])
    b("s_mov_b32 m0, s%d" % sT0)
    b("s_add_u32 s%d, s%d, 16384" % (sOFF, sOFF))
    dma_group(b, SB, WOV, sOFF, OPT["nt_wo"])
    b("s_add_u32 s%d, s%d, 16384" % (sOFF, sOFF))


def loop_begin(b, label, n):
    b("s_mov_b32 s%d, %d" % (sCNT, n))
    b(label + ":")


def loop_end(b, label):
    b("s_sub_u32 s%d, s%d, 1" % (sCNT, sCNT))
    b("s_cmp_lg_u32 s%d, 0" % sCNT)
    b("s_cbranch_scc1 " + label)


b = new("ldk")
b("L_ldk:")
for p in range(4):
    b("v_add_u32 v4, %d, v1" % (4 * p))
    b("v_xor_b32 v4, v4, v3")
    b("v_lshlrev_b32 v4, 4, v4")
    b("v_lshl_add_u32 v%d, v1, 8, v4" % (10 + p))
b("s_lshl_b32 s%d, s%d, 18" % (sT0, sWGL))
b("s_waitcnt lgkmcnt(0)")
srd(b, SA, sK, sT0, "0x40000")
key_rot(b)
b("s_mov_b32 s%d, %d" % (sLDS, KRING))
KV4 = [10, 11, 12, 13]
wo_setup(b)


def q_phase_kv(b, tag, voffs, base, txt, done=0, pre=None):
    at = [int(x) for x in txt.split(".")]
    first = min(at + ([pre[0]] if pre else []))
    assert first >= done
    if first > done:
        loop_begin(b, "L_%sq" % tag, first - done)
        b("s_barrier")
        loop_end(b, "L_%sq" % tag)
    for i in range(first, 8):
        b("s_barrier")
        if pre and pre[0] == i:
            b.add(pre[1])
        n = at.count(i)
        if n > 1:
            loop_begin(b, "L_%sq%d" % (tag, i), n)
            kv_tile(b, voffs, base)
            loop_end(b, "L_%sq%d" % (tag, i))
        elif n:
            kv_tile(b, voffs, base)


pre = None
if OPT["wopf"] >= 0:
    b("s_lshl_b32 s%d, s%d, 19" % (sT0, sG))
    b("s_lshr_b32 s%d, s2, 3" % sT1)
    b("s_lshl_b32 s%d, s%d, 14" % (sT1, sT1))
    b("s_add_u32 s%d, s%d, s%d" % (sT0, sT0, sT1))
    srd(b, SC, sWO, sT0, "16384")
    b("v_lshlrev_b32 v18, 7, v0")
    b("v_add_u32 v19, 8192, v18")
    pre = (OPT["wopf"], ["buffer_load_dword v20, v18, s[%d:%d], 0 offen %s" % (SC, SC + 3, OPT["wopf_fl"]),
                         "buffer_load_dword v21, v19, s[%d:%d], 0 offen %s" % (SC, SC + 3, OPT["wopf_fl"])])
q_phase_kv(b, "k", KV4, KRING, OPT["stag_k"], 0, pre)
b("s_waitcnt vmcnt(16)")
b("s_barrier")
b("s_waitcnt vmcnt(8)")
b("s_barrier")
kv_tile(b, KV4, KRING)
LAG = OPT["lag"]
if not LAG:
    kv_tile(b, KV4, KRING)
KSW = OPT["ksw"]
if KSW:
    assert not LAG
    loop_begin(b, "L_k1", KSW - 1)
    b("s_waitcnt vmcnt(16)")
    b("s_barrier")
    kv_tile(b, KV4, KRING)
    loop_end(b, "L_k1")
    b("s_waitcnt vmcnt(16)")
    b("s_barrier")
    loop_begin(b, "L_k1b", 27 - KSW)
    b("s_waitcnt vmcnt(8)")
    b("s_barrier")
    kv_tile(b, KV4, KRING)
    loop_end(b, "L_k1b")
else:
    loop_begin(b, "L_k1", 26 + LAG)
    b("s_waitcnt vmcnt(%d)" % (16 - 8 * LAG))
    b("s_barrier")
    kv_tile(b, KV4, KRING)
    loop_end(b, "L_k1")
b("s_xor_b32 s%d, s%d, 3" % (sOFF, sHN))
b("s_lshl_b32 s%d, s%d, 17" % (sOFF, sOFF))
b("s_mov_b32 s%d, %d" % (sLDS, KRING))
for n in (16, 8, 0)[(1 if KSW else LAG):]:
    b("s_waitcnt vmcnt(%d)" % n)
    b("s_barrier")
b("s_barrier")
loop_begin(b, "L_k2", 4)
wo_tile(b)
b("s_add_u32 s%d, s%d, 8192" % (sLDS, sLDS))
loop_end(b, "L_k2")
b("s_barrier")
b("s_waitcnt vmcnt(0)")
b("s_barrier")
b("s_endpgm")
b.finish(hist=e.ins)

b = new("ldv")
b("L_ldv:")
for par in range(2):
    b("v_lshlrev_b32 v4, 1, v1")
    b("v_xor_b32 v4, v4, v3")
    if par:
        b("v_xor_b32 v4, 8, v4")
    b("v_lshlrev_b32 v4, 4, v4")
    b("v_lshl_add_u32 v%d, v1, 8, v4" % (10 + par))
b("s_lshl_b32 s%d, s%d, 18" % (sT0, sWGL))
b("s_waitcnt lgkmcnt(0)")
srd(b, SA, sV, sT0, "0x40000")
key_rot(b)
b("s_mov_b32 s%d, %d" % (sLDS, VRING + 2 * 8192))
V4 = [10, 11, 10, 11]
b("s_mov_b32 s%d, %d" % (sT0, OPT["wsbase"]))
srd(b, SC, sWS, sT0, "0x%x" % (0x10000000 - OPT["wsbase"]))
b("v_mov_b32 v4, 0")
b("v_mov_b32 v5, 0")
b("s_lshl_b32 s%d, s%d, 11" % (sT0, sWGL))
b("v_lshlrev_b32 v8, 3, v0")
b("buffer_store_dwordx2 v[4:5], v8, s[%d:%d], s%d offen sc1" % (SC, SC + 3, sT0))
b("buffer_store_dwordx2 v[4:5], v8, s[%d:%d], s%d offen offset:1024 sc1" % (SC, SC + 3, sT0))
b("s_getreg_b32 s%d, hwreg(HW_REG_XCC_ID, 0, 4)" % sT1)
b("s_add_u32 s%d, s%d, 1" % (sT1, sT1))
b("v_mov_b32 v7, s%d" % sT1)
b("s_mov_b64 exec, 1")
b("buffer_store_dword v7, v4, s[%d:%d], s%d offen offset:512 sc1" % (SC, SC + 3, sT0))
b("s_mov_b64 exec, -1")
b("s_lshl_b32 s%d, s%d, 5" % (sT0, sB))
b("s_add_u32 s%d, s%d, s%d" % (SB, sDBG, sT0))
b("s_addc_u32 s%d, s%d, 0" % (SB + 1, sDBG + 1))
b("s_mov_b32 s%d, 1" % (SB + 2))
b("s_barrier")
b("s_barrier")
b("s_waitcnt vmcnt(0)")
b("s_atomic_add s%d, s[%d:%d], 0x0" % (SB + 2, SB, SB + 1))
q_phase_kv(b, "v", V4, VRING, OPT["stag_v"], 2)
b("s_barrier")
b("s_waitcnt vmcnt(24)")
b("s_barrier")
if LAG:
    b("s_waitcnt vmcnt(16)")
    b("s_barrier")
VSW = OPT["vsw"]


def v_loop(label, n, w, base):
    loop_begin(b, label, n)
    b("s_waitcnt vmcnt(%d)" % w)
    if STAMPS:
        b("s_memrealtime s[60:61]")
        b("s_waitcnt lgkmcnt(0)")
    b("s_barrier")
    if STAMPS:
        b("s_memrealtime s[62:63]")
        b("s_waitcnt lgkmcnt(0)")
        b("s_add_u32 m0, s%d, %d" % (sCNT, base))
        b("s_nop 0")
        b("v_writelane_b32 v20, s60, m0")
        b("v_writelane_b32 v21, s62, m0")
    kv_tile(b, V4, VRING)
    loop_end(b, label)


if VSW:
    v_loop("L_v1", VSW - 1, 16, 29 - VSW)
    b("s_waitcnt vmcnt(16)")
    b("s_barrier")
    v_loop("L_v1b", 29 - VSW, 8, 0)
else:
    v_loop("L_v1", 28, 16 - 8 * LAG, 0)
for n in (16, 8, 0)[(1 if VSW else LAG):]:
    b("s_waitcnt vmcnt(%d)" % n)
    b("s_barrier")
b("s_barrier")
if STAMPS:
    srd(b, SA, sWS, None, "0x10000000")
    b("s_lshl_b32 s%d, s2, 9" % sT0)
    b("s_add_u32 s%d, s%d, %d" % (sT0, sT0, ST_OFF + 0x100000))
    b("v_lshlrev_b32 v1, 2, v0")
    b("buffer_store_dword v20, v1, s[%d:%d], s%d offen" % (SA, SA + 3, sT0))
    b("buffer_store_dword v21, v1, s[%d:%d], s%d offen offset:256" % (SA, SA + 3, sT0))
b("s_endpgm")
b.finish(hist=e.ins)


def q_loader(b, tag, gstep, kstep_shift, ldsbase, blk, flags):
    def chunk():
        b("s_lshl_b32 s%d, s%d, %d" % (sOFF, sT2, kstep_shift))
        b("s_mov_b32 m0, s%d" % sLDS)
        b("s_add_u32 s%d, s%d, 1" % (sT2, sT2))
        dma_group(b, SA, [10, 11, 12, 13], sOFF, flags)
        for g in range(1, 4):
            b("s_add_u32 m0, s%d, %d" % (sLDS, 4096 * g))
            b("s_add_u32 s%d, s%d, %d" % (sOFF, sOFF, gstep))
            dma_group(b, SA, [10, 11, 12, 13], sOFF, flags)
        b("s_and_b32 s%d, s%d, 7" % (sT2, sT2))
        b("s_add_u32 s%d, s%d, 32768" % (sLDS, sLDS))
        b("s_cmp_eq_u32 s%d, %d" % (sLDS, ldsbase + 98304))
        b("s_cselect_b32 s%d, %d, s%d" % (sLDS, ldsbase, sLDS))
    b("s_lshl_b32 s%d, s%d, 1" % (sT2, sHN))
    b("s_add_u32 s%d, s%d, s%d" % (sT2, sT2, sB))
    b("s_and_b32 s%d, s%d, 7" % (sT2, sT2))
    b("s_mov_b32 s%d, %d" % (sLDS, ldsbase))
    loop_begin(b, "L_%s0" % tag, 2)
    chunk()
    loop_end(b, "L_%s0" % tag)
    loop_begin(b, "L_%s1" % tag, 6)
    if STAMPS == 4:
        b("s_memrealtime s[58:59]")
        b("s_waitcnt lgkmcnt(0)")
    b("s_waitcnt vmcnt(16)")
    if STAMPS == 4:
        b("s_memrealtime s[60:61]")
        b("s_waitcnt lgkmcnt(0)")
    b("s_barrier")
    if STAMPS == 4:
        b("s_memrealtime s[62:63]")
        b("s_waitcnt lgkmcnt(0)")
        b("s_mov_b32 m0, s%d" % sCNT)
        b("s_nop 0")
        b("v_writelane_b32 v19, s58, m0")
        b("v_writelane_b32 v20, s60, m0")
        b("v_writelane_b32 v21, s62, m0")
    chunk()
    loop_end(b, "L_%s1" % tag)
    wo_setup(b)
    b("s_waitcnt vmcnt(16)")
    b("s_barrier")
    b("s_waitcnt vmcnt(0)")
    b("s_barrier")
    b("s_barrier")
    b("s_setprio 0")
    first = 4 if blk == 0 else 2
    for i in range(first + 1):
        b("s_barrier")
    b("s_xor_b32 s%d, s%d, %d" % (sOFF, sHN, blk))
    b("s_lshl_b32 s%d, s%d, 17" % (sOFF, sOFF))
    b("s_mov_b32 s%d, %d" % (sLDS, STG + blk * 32768))
    loop_begin(b, "L_%s2" % tag, 4)
    wo_tile(b)
    b("s_add_u32 s%d, s%d, 8192" % (sLDS, sLDS))
    for i in range(4):
        b("s_barrier")
    loop_end(b, "L_%s2" % tag)
    b("s_xor_b32 s%d, s%d, 2" % (sOFF, sHN))
    b("s_lshl_b32 s%d, s%d, 17" % (sOFF, sOFF))
    b("s_add_u32 s%d, s%d, %d" % (sOFF, sOFF, blk * 65536))
    b("s_mov_b32 s%d, %d" % (sLDS, STG + 65536 + blk * 16384))
    wo_tile(b)
    b("s_add_u32 s%d, s%d, 8192" % (sLDS, sLDS))
    if tag == "w":
        b("s_lshl_b32 s%d, s%d, 5" % (sT0, sB))
        b("s_add_u32 s%d, s%d, s%d" % (SC, sDBG, sT0))
        b("s_addc_u32 s%d, s%d, 0" % (SC + 1, sDBG + 1))
        b("s_load_dword s%d, s[%d:%d], 0x0 glc" % (SC + 2, SC, SC + 1))
    for i in range(4):
        b("s_barrier")
    wo_tile(b)
    done = first + 20
    if tag == "w":
        for i in range(3):
            b("s_barrier")
        done += 3
        b("s_mov_b32 s%d, 0x100000" % sCNT)
        b("s_branch L_wchk")
        b("L_wpoll:")
        b("s_load_dword s%d, s[%d:%d], 0x0 glc" % (SC + 2, SC, SC + 1))
        b("L_wchk:")
        b("s_waitcnt lgkmcnt(0)")
        b("s_sub_u32 s%d, s%d, 1" % (sCNT, sCNT))
        b("s_cbranch_scc1 L_wpolld")
        b("s_cmp_lt_u32 s%d, 32" % (SC + 2))
        b("s_cbranch_scc1 L_wpoll")
        b("L_wpolld:")
    for i in range(30 - done):
        b("s_barrier")
    b("s_waitcnt vmcnt(0)")
    b("s_barrier")
    b("s_barrier")
    if STAMPS == 4:
        srd(b, SA, sWS, None, "0x10000000")
        b("s_lshl_b32 s%d, s2, 11" % sT0)
        b("s_add_u32 s%d, s%d, %d" % (sT0, sT0, ST_OFF + 0x200000 + blk * 1024))
        b("v_lshlrev_b32 v1, 2, v0")
        for i in range(3):
            b("buffer_store_dword v%d, v1, s[%d:%d], s%d offen offset:%d" % (19 + i, SA, SA + 3, sT0, 256 * i))
    b("s_endpgm")


b = new("ldx")
b("L_ldx:")
b("s_setprio %d" % OPT["prio_x"])
b("v_lshrrev_b32 v5, 3, v0")
b("v_and_b32 v6, 7, v0")
b("v_lshrrev_b32 v7, 1, v5")
for p in range(4):
    b("v_add_u32 v4, %d, v7" % (4 * (p & 1)))
    b("v_xor_b32 v4, v4, v6")
    b("v_lshlrev_b32 v4, 4, v4")
    b("v_lshl_add_u32 v4, v5, 10, v4")
    b("v_add_u32 v%d, %d, v4" % (10 + p, p * (8192 - 1024)))
b("s_mul_i32 s%d, s%d, 114688" % (sT0, sB))
b("s_waitcnt lgkmcnt(0)")
srd(b, SA, sX, sT0, "114688")
q_loader(b, "x", 32768, 7, STG, 0, OPT["nt_x"])
b.finish(hist=e.ins)

b = new("ldw")
b("L_ldw:")
b("s_setprio %d" % OPT["prio_w"])
b("v_lshlrev_b32 v4, 1, v1")
b("v_xor_b32 v4, v4, v3")
b("v_lshlrev_b32 v4, 4, v4")
b("v_lshl_add_u32 v10, v1, 13, v4")
b("v_add_u32 v11, %d, v10" % (32768 - 1024))
b("v_xor_b32 v4, 128, v10")
b("v_add_u32 v12, %d, v4" % (2 * (32768 - 1024)))
b("v_add_u32 v13, %d, v4" % (3 * (32768 - 1024)))
b("s_lshl_b32 s%d, s%d, 8" % (sT0, sH))
b("s_sub_u32 s%d, 0x400000, s%d" % (sT1, sT0))
b("s_waitcnt lgkmcnt(0)")
srd(b, SA, sWQ, sT0, "s%d" % sT1)
q_loader(b, "w", 131072, 19, STG + 16384, 1, OPT["nt_w"])
b.finish(hist=e.ins)

c = new("compute_pro")
c("L_compute:")
if OPT["codepf"]:
    c("s_cmp_lg_u32 s%d, 1" % sWAVE)
    c("s_cbranch_scc1 L_nopf")
    c("s_getpc_b64 s[56:57]")
    c("L_pc:")
    c("s_sub_u32 s56, s56, L_pc-L_start")
    c("s_subb_u32 s57, s57, 0")
    c("s_lshr_b32 s%d, s2, 3" % sT0)
    c("s_and_b32 s%d, s%d, 7" % (sT0, sT0))
    c("s_mul_i32 s%d, s%d, ((L_codeend-L_start+1023)/1024)*128" % (sT0, sT0))
    c("v_lshlrev_b32 v1, 7, v0")
    c("v_add_u32 v1, s%d, v1" % sT0)
    c("v_min_u32 v1, L_codeend-L_start-4, v1")
    c("v_mov_b32 v3, s57")
    c("v_add_co_u32 v2, vcc, s56, v1")
    c("s_nop 1")
    c("v_addc_co_u32 v3, vcc, 0, v3, vcc")
    c("v_cmp_gt_u32 vcc, (L_codeend-L_start+1023)/1024, v0")
    c("s_and_saveexec_b64 s[58:59], vcc")
    c("global_load_dword v255, v[2:3], off")
    c("s_mov_b64 exec, -1")
    c("L_nopf:")
c("v_lshrrev_b32 v1, 4, v0")
c("v_and_b32 v2, 15, v0")
c("v_lshrrev_b32 v3, 5, v0")
c("v_and_b32 v4, 1, v1")
c("v_lshl_add_u32 v3, v4, 1, v3")
c("v_xor_b32 v3, v3, v2")
c("v_lshlrev_b32 v3, 4, v3")
c("v_lshl_add_u32 v%d, v2, 8, v3" % aK)
for ks in range(1, 4):
    c("v_xor_b32 v%d, %d, v%d" % (aK + ks, ks << 6, aK))
c("s_lshl_b32 s%d, s%d, 12" % (sT0, sWAVE))
c("s_add_u32 s%d, s%d, %d" % (sT0, sT0, STG))
c("v_lshrrev_b32 v3, 1, v2")
c("v_xor_b32 v3, v3, v1")
c("v_lshlrev_b32 v3, 4, v3")
c("v_lshl_add_u32 v3, v2, 7, v3")
c("v_add_u32 v%d, s%d, v3" % (aXq, sT0))
c("v_xor_b32 v%d, 64, v%d" % (aXq + 1, aXq))
c("v_bfe_u32 v2, v0, 2, 2")
c("v_lshrrev_b32 v3, 2, v0")
c("v_and_b32 v4, 7, v3")
c("v_lshlrev_b32 v4, 5, v4")
c("v_lshl_add_u32 v3, v3, 8, v4")
c("v_and_b32 v4, 3, v0")
c("v_lshl_add_u32 v3, v4, 3, v3")
c("v_add_u32 v%d, %d, v3" % (aV, VRING + 16384))
for db in range(1, 8):
    c("v_xor_b32 v%d, %d, v%d" % (aV + db, db << 5, aV))
c("v_lshl_add_u32 v3, v1, 10, v3")
c("v_add_u32 v%d, %d, v3" % (aWq, STG + 16384))
for db in range(1, 8):
    c("v_xor_b32 v%d, %d, v%d" % (aWq + db, db << 5, aWq))
c("v_mul_u32_u24 v2, 320, v2")
c("v_lshrrev_b32 v3, 5, v0")
c("v_lshl_add_u32 v3, v3, 11, v2")
c("v_and_b32 v4, 1, v1")
c("v_lshl_add_u32 v3, v4, 5, v3")
c("v_and_b32 v4, 1, v0")
c("v_lshl_add_u32 v3, v4, 4, v3")
c("v_bfe_u32 v4, v0, 1, 1")
c("v_lshl_add_u32 v3, v4, 3, v3")
c("s_lshl_b32 s%d, s%d, 5" % (sT0, sG))
c("v_xor_b32 v%d, s%d, v3" % (vLO, sT0))
c("s_cmp_eq_u32 s%d, 3" % sWAVE)
c("s_mov_b32 s%d, %s" % (sT0, f32(3e38)))
c("s_cselect_b32 s%d, %s, s%d" % (sPADM, f32(-1e30), sT0))
c("v_and_b32 v2, 31, v0")
c("s_lshl_b32 s%d, s%d, 5" % (sT0, sWAVE))
c("v_add_u32 v3, s%d, v2" % sT0)
c("v_lshlrev_b32 v%d, 4, v0" % vE)
c("v_cmp_lt_u32 vcc, 111, v3")
c("v_bfrev_b32 v3, 1")
c("v_cndmask_b32 v3, 0, v3, vcc")
c("v_or_b32 v%d, v%d, v3" % (vE, vE))
for i in range(64):
    c("v_mov_b32 v%d, 0" % (ACC + i))
c("s_mov_b32 s%d, %s" % (sCS, f32(CSC)))
c("s_mov_b32 s%d, %s" % (sCS + 1, f32(CSC)))
c("s_mov_b32 s%d, %s" % (sTHR, f32(0.0 if OPT["force_rescale"] else OPT["thr"])))
c("s_waitcnt lgkmcnt(0)")
c("s_mov_b32 s%d, %d" % (sT0, OPT["wsbase"]))
srd(c, SA, sWS, sT0, "0x%x" % (0x10000000 - OPT["wsbase"]))
c("s_mul_i32 s%d, s%d, 114688" % (sT0, sB))
srd(c, SB, sOUT, sT0, "114688")
c("s_lshl_b32 s%d, s%d, 7" % (sT0, sWAVE))
c("v_xor_b32 v1, s%d, v0" % sWGL)
c("v_lshlrev_b32 v1, 11, v1")
c("v_lshl_add_u32 v2, v0, 2, s%d" % sT0)
c("v_add_u32 v1, v1, v2")
c("s_lshl_b32 s%d, s%d, 11" % (sT1, sWGL))
c("v_add_u32 v2, s%d, v2" % sT1)
c("v_subrev_u32 v3, 1, v0")
c("v_cmp_gt_u32 vcc, 3, v3")
c("v_bfrev_b32 v3, 1")
c("s_nop 0")
c("v_cndmask_b32 v%d, v3, v1, vcc" % vM1)
c("v_cndmask_b32 v%d, v3, v2, vcc" % vP1)
c("v_xor_b32 v1, s%d, v0" % sWGL)
c("v_lshlrev_b32 v1, 11, v1")
c("v_add_u32 v1, 512, v1")
c("v_cmp_gt_u32 vcc, 4, v0")
c("v_bfrev_b32 v2, 1")
c("s_nop 0")
c("v_cndmask_b32 v%d, v2, v1, vcc" % vINFO)
c("v_and_b32 v1, 31, v0")
c("s_lshl_b32 s%d, s%d, 5" % (sT0, sWAVE))
c("v_add_u32 v1, s%d, v1" % sT0)
c("v_lshlrev_b32 v1, 10, v1")
c("v_lshrrev_b32 v2, 5, v0")
c("v_lshl_add_u32 v%d, v2, 4, v1" % vOUT)
c("s_lshl_b32 s%d, s%d, 8" % (sT0, sHN))
c("s_lshl_b32 s%d, s%d, 5" % (sT1, sG))
c("s_add_u32 s%d, s%d, s%d" % (sOFF, sT0, sT1))
c("s_lshl_b32 s%d, s%d, 15" % (sE1, sWGL))
c("s_lshl_b32 s%d, s%d, 13" % (sT0, sWAVE))
c("s_add_u32 s%d, s%d, s%d" % (sE1, sE1, sT0))
c("s_add_u32 s%d, s%d, %d" % (sE1, sE1, E1_OFF))
c("s_lshl_b32 s%d, s%d, 2" % (sT0, sB))
c("s_add_u32 s%d, s%d, s%d" % (sT0, sT0, sHN))
c("s_lshl_b32 s%d, s%d, 18" % (sT0, sT0))
c("s_lshl_b32 s%d, s%d, 10" % (sT1, sWAVE))
c("s_add_u32 s%d, s%d, s%d" % (sT0, sT0, sT1))
c("s_add_u32 s%d, s%d, %d" % (sE2P, sT0, E2_OFF))
c("s_lshl_b32 s%d, s%d, 15" % (sT1, sG))
c("s_add_u32 s%d, s%d, s%d" % (sE2C, sE2P, sT1))


def q_reads(s_):
    W = VF if s_ == 0 else S0
    r = ["ds_read_b128 %s, v%d offset:%d" % (vr(XB + 8 * s_ + 4 * blk, 4), aXq + s_, blk * 2048) for blk in range(2)]
    for db in range(8):
        for u in range(2):
            r.append("ds_read_b64_tr_b16 %s, v%d offset:%d" % (vr(W + 4 * db + 2 * u, 2), aWq + db, s_ * 8192 + u * 1024))
    if OPT["qdiag"] & 1:
        r = ["s_nop 0"] * 18
    return r


def k_reads(slot_off):
    return ["ds_read_b128 %s, v%d offset:%d" % (vr(KF + 16 * kb + 4 * ks, 4), aK + ks, slot_off + kb * 4096)
            for ks in range(4) for kb in range(2)]


def q_mfmas(s_):
    W = VF if s_ == 0 else S0
    r = []
    for db in range(8):
        for blk in range(2):
            d = vr(ACC + 32 * blk + 4 * db, 4)
            r.append("%s %s, %s, %s, %s" % (M16, d, vr(W + 4 * db, 4), vr(XB + 8 * s_ + 4 * blk, 4), d))
    if OPT["qdiag"] & 2:
        r = ["s_nop 0"] * 16
    return r


c("s_mov_b32 s%d, 0" % sT2)
c("s_mov_b32 s%d, 32768" % sK16)
c("s_mov_b32 s%d, 8" % sCNT)
c("s_barrier")
stamp(c, 1)
c.add(q_reads(0))
lgq0, _ = c.finish(hist=e.ins)

ql = new("qloop")
ql("L_q:")
nx = q_reads(1)
gaps = [nx[2 * i:2 * i + 2] for i in range(9)] + [[] for _ in range(7)]
gaps[9] = ["s_add_u32 s%d, s%d, 1" % (sT2, sT2), "s_cmp_eq_u32 s%d, 3" % sT2,
           "s_cselect_b32 s%d, 0, s%d" % (sT2, sT2), "s_cselect_b32 s%d, %d, s%d" % (sDEL, -65536, sK16)]
adv = ["v_add_u32 v%d, s%d, v%d" % (r_, sDEL, r_) for r_ in range(aWq, aWq + 10)]
for i in range(5):
    gaps[10 + i] = adv[2 * i:2 * i + 2]
ql.add(interleave(q_mfmas(0), gaps))
ql("s_waitcnt lgkmcnt(0)")
ql("s_barrier")
nx = q_reads(0)
gaps = [nx[2 * i:2 * i + 2] for i in range(9)] + [[] for _ in range(7)]
ql.add(interleave(q_mfmas(1), gaps))
loop_end(ql, "L_q")
lgq1, _ = ql.finish(hist=c.ins, lgq=lgq0)
assert lgq1 == lgq0[-len(lgq1):] or STAMPS or PROBE == 1 or OPT["qdiag"], (lgq0, lgq1)
pad_hazards(ql.ins, hist=ql.ins, check_only=True, where="q loop back edge")

q = new("attn_pro")
stamp(q, 2)
q("s_waitcnt lgkmcnt(0)")
q.add(k_reads(0))
q("s_waitcnt vmcnt(0)")
aO1, aO2, aO3 = aK, aW, aV
for nt in range(4):
    q("v_xor_b32 v%d, %d, v%d" % (aO2 + nt, nt << 6, vLO))
for ks in range(4):
    for blk in range(2):
        a0 = ACC + 32 * blk + 8 * ks
        f0 = QF + 16 * blk + 4 * ks
        for j in range(4):
            q("v_pk_mul_f32 %s, %s, s[%d:%d]" % (vr(a0 + 2 * j, 2), vr(a0 + 2 * j, 2), sCS, sCS + 1))
        for j in range(4):
            q("v_cvt_pk_bf16_f32 v%d, v%d, v%d" % (f0 + j, a0 + 2 * j, a0 + 2 * j + 1))
for ks in range(4):
    for blk in range(2):
        f0 = QF + 16 * blk + 4 * ks
        for j in range(2):
            q("v_permlane16_swap_b32 v%d, v%d" % (f0 + j, f0 + 2 + j))


def qk_list(SN, first):
    r = []
    for ks in range(4):
        for kb in range(2):
            for blk in range(2):
                d = vr(SN + 8 * blk + 4 * kb, 4)
                cc = d if ks else ("0" if first else vr(NM[blk], 4))
                r.append("%s %s, %s, %s, %s" % (M16, d, vr(KF + 16 * kb + 4 * ks, 4), vr(QF + 16 * blk + 4 * ks, 4), cc))
    return r


k1 = k_reads(8192)
gaps = []
for i in range(16):
    g = ["v_mov_b32 v%d, 0" % (ACC + 4 * i + j) for j in range(4)]
    if i & 1:
        g.append(k1[i >> 1])
    gaps.append(g)
q.add(interleave(qk_list(S0, True), gaps))
for ks in range(4):
    q("v_add_u32 v%d, 16384, v%d" % (aK + ks, aK + ks))
q("v_mov_b32 v%d, 0" % vL[0])
q("v_mov_b32 v%d, 0" % vL[1])


def blk_max(b, S, dst, tmp):
    b("v_max3_f32 v%d, v%d, v%d, v%d" % (dst, S, S + 1, S + 2))
    b("v_max3_f32 v%d, v%d, v%d, v%d" % (dst, dst, S + 3, S + 4))
    b("v_max3_f32 v%d, v%d, v%d, v%d" % (dst, dst, S + 5, S + 6))
    b("v_max_f32 v%d, v%d, v%d" % (dst, dst, S + 7))
    lane_reduce(b, "v_max_f32", dst, tmp)


def lane_reduce(b, op, dst, tmp):
    b("v_mov_b32 v%d, v%d" % (tmp, dst))
    b("v_permlane32_swap_b32 v%d, v%d" % (tmp, dst))
    b("%s v%d, v%d, v%d" % (op, dst, tmp, dst))
    b("v_mov_b32 v%d, v%d" % (tmp, dst))
    b("v_permlane16_swap_b32 v%d, v%d" % (tmp, dst))
    b("%s v%d, v%d, v%d" % (op, dst, tmp, dst))


for blk in range(2):
    blk_max(q, S0 + 8 * blk, 1, 2)
    q("v_sub_f32 v%d, 0, v1" % NM[blk])
    if blk == 1:
        q("v_min_f32 v%d, s%d, v%d" % (NM[blk], sPADM, NM[blk]))
    for j in range(1, 4):
        q("v_mov_b32 v%d, v%d" % (NM[blk] + j, NM[blk]))
    for i in range(8):
        q("v_add_f32 v%d, v%d, v%d" % (S0 + 8 * blk + i, S0 + 8 * blk + i, NM[blk]))
q("s_mov_b32 s%d, 15" % sCNT)
stamp(q, 3)
q.finish(hist=ql.ins)


def v_read(db, u, off):
    return "ds_read_b64_tr_b16 %s, v%d offset:%d" % (vr(VF + 4 * db + 2 * u, 2), aV + db, off + u * 4096)


def ex(S, i):
    return "v_exp_f32 v%d, v%d" % (S + i, S + i)


def cvt(S, j):
    return "v_cvt_pk_bf16_f32 v%d, v%d, v%d" % (PK + j, S + 2 * j, S + 2 * j + 1)


def add(S, i):
    return "v_add_f32 v%d, v%d, v%d" % (vL[i >> 3], vL[i >> 3], S + i)


def pv_list():
    r = []
    for db in range(8):
        for blk in range(2):
            d = vr(ACC + 32 * blk + 4 * db, 4)
            r.append("%s %s, %s, %s, %s" % (M16, d, vr(VF + 4 * db, 4), vr(PK + 4 * blk, 4), d))
    return r


def max_tree(S):
    r = ["v_max3_f32 v%d, v%d, v%d, v%d" % (vTM, S, S + 1, S + 2)]
    for i in range(3, 15, 2):
        r.append("v_max3_f32 v%d, v%d, v%d, v%d" % (vTM, vTM, S + i, S + i + 1))
    r.append("v_max_f32 v%d, v%d, v%d" % (vTM, vTM, S + 15))
    return r


def epoch(b, par, kread=True, adv=False, tag="", head=()):
    S, SN = (S0, S1) if par == 0 else (S1, S0)
    off = par * 8192
    vrd = [v_read(db, u, off) for db in range(8) for u in range(2)]
    kr = k_reads(off) if kread else [None] * 8
    b("s_waitcnt lgkmcnt(0)")
    if STAMPS == 3 and tag == "a":
        b("s_cmp_eq_u32 s%d, 13" % sCNT)
        for i in range(6):
            b("s_cselect_b32 s%d, s%d, s%d" % (sSTAMP + 2 * (i + 1), 56 + 2 * i if i < 3 else 90 + 2 * (i - 3), sSTAMP + 2 * (i + 1)))
    b("s_barrier")
    if STAMPS == 3 and tag in ("a", "b"):
        b("s_memtime s[%d:%d]" % ((56, 57) if tag == "a" else (90, 91)))
    b.add(head)
    ga = [[] for _ in range(16)]
    for i, gi in enumerate([0, 1, 3, 5, 7, 9, 11, 13]):
        ga[gi].append(vrd[i])
    for j in range(7):
        ga[2 * j + 2].append(cvt(S, j))
    for i in range(16):
        ga[i].append(ex(S, i))
    b.add(interleave(qk_list(SN, False), ga))
    if STAMPS == 3 and tag in ("a", "b"):
        b("s_memtime s[%d:%d]" % ((58, 59) if tag == "a" else (92, 93)))
    mx = max_tree(SN)
    gb = [[] for _ in range(16)]
    gb[0] = [cvt(S, 7), vrd[8], vrd[9]]
    gb[1] = [vrd[10], vrd[11]]
    gb[2] = [vrd[12], vrd[13]]
    gb[3] = [vrd[14], vrd[15]]
    for i in range(8):
        gb[4 + i].append(kr[i])
    order = [0, 8, 1, 9, 2, 10, 3, 11, 4, 12, 5, 13, 6, 14, 7, 15]
    for i in range(8):
        gb[4 + i].append(add(S, order[i]))
    for i in range(8):
        gb[12 + (i >> 1)].append(add(S, order[8 + i]))
    for i in range(8):
        gb[8 + i].append(mx[i])
    gb = [[x for x in g if x is not None] for g in gb]
    if adv:
        for i in range(8):
            gb[4 + (i >> 1)].append("v_xor_b32 v%d, 16384, v%d" % (aV + i, aV + i))
        for i in range(4):
            gb[12 + i].append("v_xor_b32 v%d, 16384, v%d" % (aK + i, aK + i))
    b.add(interleave(pv_list(), gb))
    if STAMPS == 3 and tag in ("a", "b"):
        b("s_memtime s[%d:%d]" % ((60, 61) if tag == "a" else (94, 95)))
    b("v_cmp_lt_f32 vcc, s%d, v%d" % (sTHR, vTM))
    b("s_cbranch_vccnz L_resc%s" % tag)
    b("L_back%s:" % tag)
    rescale(tag, SN)


rare = []


def rescale(tag, SN):
    r = Block("resc" + tag)
    r("L_resc%s:" % tag)
    r("s_nop 15")
    for blk in range(2):
        blk_max(r, SN + 8 * blk, 1, 2)
        r("v_max_f32 v1, 0, v1")
        r("v_sub_f32 v2, 0, v1")
        r("v_exp_f32 v2, v2")
        for j in range(4):
            r("v_sub_f32 v%d, v%d, v1" % (NM[blk] + j, NM[blk] + j))
        for i in range(8):
            r("v_sub_f32 v%d, v%d, v1" % (SN + 8 * blk + i, SN + 8 * blk + i))
        r("v_mul_f32 v%d, v%d, v2" % (vL[blk], vL[blk]))
        for i in range(32):
            r("v_mul_f32 v%d, v%d, v2" % (ACC + 32 * blk + i, ACC + 32 * blk + i))
    r("s_nop 1")
    r("s_branch L_back%s" % tag)
    r.finish()
    rare.append(r)


lp = new("loop")
lp("L_att:")
epoch(lp, 0, True, False, "a")
epoch(lp, 1, True, True, "b",
      head=["s_cmp_lg_u32 s%d, 1" % sCNT, "s_cbranch_scc1 L_noinfo",
            "buffer_load_dword v%d, v%d, s[%d:%d], 0 offen sc1" % (vINF, vINFO, SA, SA + 3), "L_noinfo:"])
loop_end(lp, "L_att")
lp.finish(hist=q.ins)
pad_hazards(lp.ins, hist=lp.ins, check_only=True, where="loop back edge")

t = new("tail")
stamp(t, 4)
epoch(t, 0, False, False, "c")
S = S1
for i in range(16):
    t(ex(S, i))
for j in range(8):
    t(cvt(S, j))
for i in range(16):
    t(add(S, i))
for nt in range(4):
    t("v_add_u32 v%d, %d, v%d" % (aO1 + nt, STG, aO2 + nt))
for blk in range(2):
    lane_reduce(t, "v_add_f32", vL[blk], 1)
    t("v_max_f32 v%d, %s, v%d" % (vL[blk], f32(1e-30), vL[blk]))
    t("v_rcp_f32 v%d, v%d" % (vL[blk], vL[blk]))
t("v_mov_b32 v%d, 1" % NM[0])
t("s_add_u32 s%d, s%d, 4096" % (sT2, sE1))
t("s_waitcnt lgkmcnt(0)")
t("s_barrier")
stamp(t, 5)
vrd = [v_read(db, u, 8192) for db in range(8) for u in range(2)]
t.add(vrd[0:10])
OB = QF


def norm(ks):
    r = []
    for blk in range(2):
        a0 = ACC + 32 * blk + 8 * ks
        for j in range(4):
            r.append("v_pk_mul_f32 %s, %s, %s op_sel_hi:[1,0]" % (vr(a0 + 2 * j, 2), vr(a0 + 2 * j, 2), vr(vL[blk], 2)))
        for j in range(4):
            r.append("v_cvt_pk_bf16_f32 v%d, v%d, v%d" % (OB + 16 * blk + 4 * ks + j, a0 + 2 * j, a0 + 2 * j + 1))
    return r


def swaps(ks):
    return ["v_permlane16_swap_b32 v%d, v%d" % (OB + 4 * ks + j, OB + 16 + 4 * ks + j) for j in range(4)]


info = ["v_readlane_b32 s%d, v%d, 0" % (sT0, vINF), "s_nop 0", "v_cmp_eq_u32 vcc, s%d, v%d" % (sT0, vINF),
        "s_nop 0", "s_and_b32 s%d, vcc_lo, 15" % sFAST]
g = [vrd[10:12], vrd[12:14], vrd[14:16], info, [], [], [], []] + [[] for _ in range(8)]
n0, n1 = norm(0), norm(1)
for i in range(4):
    g[8 + i] = n0[4 * i:4 * i + 4]
    g[12 + i] = n1[4 * i:4 * i + 4]
t.add(interleave(pv_list(), g))
t.add(swaps(0))
t.add(norm(2))
t.add(swaps(1))
t.add(norm(3))
t.add(swaps(2))

DYN = OPT["dyn"]
AREG = {0: aO1, 1: aO3, 2: aO1, 3: aO3}
SBUF = {1: S0, 2: KF, 3: XB}
SEQ = [(j, f, nt) for j in range(3) for f in range(8) for nt in range(4)]
SEQ += [(3, f, nt) for nt in (1, 2, 3, 0) for f in range(8)]
sASG, sP, sP4, sWB = sN, sN + 1, sN + 2, sN + 3
OOB = 0x40000000


def w_reads(m):
    if m >= len(SEQ):
        return []
    j, f, nt = SEQ[m]
    ks, y = f >> 1, f & 1
    return ["ds_read_b64_tr_b16 %s, v%d offset:%d" % (vr(VF + 4 * (m & 7) + 2 * u, 2), AREG[j] + nt,
                                                   ks * 8192 + u * 4096 + y * 1024) for u in range(2)]


def bfrag(j, f):
    return OB + 16 * (f & 1) + 4 * (f >> 1) if j == 0 else SBUF[j] + 4 * f


def o_mfma(b, m, extra=()):
    j, f, nt = SEQ[m]
    b("%s %s, %s, %s, %s" % (M32, vr(ACC + 16 * nt, 16), vr(VF + 4 * (m & 7), 4), vr(bfrag(j, f), 4),
                             "0" if (j == 0 and f == 0) else vr(ACC + 16 * nt, 16)))
    b.add(w_reads(m + 8))
    b.add(extra)


for m in range(4):
    t.add(w_reads(m))
t.add(swaps(3))
for m in range(4, 8):
    t.add(w_reads(m))


def uncounted(x):
    i_ = parse(x)
    i_.kind = "comment"
    i_.n = 0
    return i_


def publish(fl):
    return ["buffer_store_dwordx4 %s, v%d, s[%d:%d], s%d offen offset:%d %s" % (vr(bfrag(0, f), 4), vE, SA, SA + 3,
            sE1 if f < 4 else sT2, (f & 3) * 1024, fl) for f in range(8)]


def two_way(b, name, fast, slow):
    if not OPT["fast"]:
        b.add(slow)
        return
    b("s_cmp_eq_u32 s%d, 15" % sFAST)
    b("s_cbranch_scc1 L_%sf" % name)
    b.add(slow)
    b("s_branch L_%sj" % name)
    b("L_%sf:" % name)
    b.add([uncounted(x) for x in fast])
    b("L_%sj:" % name)


flag = "buffer_store_dword v%d, v%d, s[%d:%d], 0 offen" % (NM[0], vM1, SA, SA + 3)
pollld = "buffer_load_dword v%d, v%d, s[%d:%d], 0 offen sc1" % (vTM, vP1, SA, SA + 3)


def sib_load(p, f):
    return "buffer_load_dwordx4 %s, v%d, s[%d:%d], s%d offen offset:%d sc1" % (vr(SBUF[p] + 4 * f, 4), vE, SA, SA + 3,
                                                                           sP if f < 4 else sP4, (f & 3) * 1024)


def try_assign(b, p, name):
    b("v_cmp_eq_u32 vcc, 1, v%d" % vTM)
    b("s_mov_b32 s%d, 0x%x" % (sP, OOB))
    if DYN:
        b("s_andn2_b32 s%d, vcc_lo, s%d" % (sT0, sASG))
    else:
        b("s_and_b32 s%d, vcc_lo, %d" % (sT0, 1 << p))
    b("s_cbranch_scc0 %s" % name)
    b("s_ff1_i32_b32 s%d, s%d" % (sT0, sT0))
    b("s_bitset1_b32 s%d, s%d" % (sASG, sT0))
    b("s_lshl_b32 s%d, s%d, 15" % (sT0, sT0))
    b("s_xor_b32 s%d, s%d, s%d" % (sP, sE1, sT0))
    b("s_add_u32 s%d, s%d, %d" % (sWB, sT0, STG))
    b("s_cmp_eq_u32 s%d, 163840" % sWB)
    b("s_cselect_b32 s%d, 0, s%d" % (sWB, sWB))
    b(name + ":")
    b("s_add_u32 s%d, s%d, 4096" % (sP4, sP))


def decide(b, p):
    b("s_cmp_lg_u32 s%d, 0x%x" % (sP, OOB))
    b("s_cbranch_scc1 L_dec%dd" % p)
    b("s_mov_b32 s%d, 0x100000" % sCNT)
    b("L_dec%d:" % p)
    b(pollld)
    b("s_waitcnt vmcnt(0)")
    try_assign(b, p, "L_dec%da" % p)
    b("s_sub_u32 s%d, s%d, 1" % (sCNT, sCNT))
    b("s_cbranch_scc1 L_dec%dl" % p)
    b("s_cmp_eq_u32 s%d, 0x%x" % (sP, OOB))
    b("s_cbranch_scc1 L_dec%d" % p)
    b("L_dec%dl:" % p)
    b.add([sib_load(p, f) for f in range(8)])
    b("L_dec%dd:" % p)
    for nt in range(4):
        b("v_add_u32 v%d, s%d, v%d" % (AREG[p] + nt, sWB, aO2 + nt))


PB = QF


def send(j):
    a0 = ACC + 8 * j
    return (["s_xor_b32 s%d, s%d, %d" % (sT0, sG, j), "s_lshl_b32 s%d, s%d, 15" % (sT0, sT0),
             "s_add_u32 s%d, s%d, s%d" % (sT0, sT0, sE2P), "s_add_u32 s%d, s%d, %d" % (sT0, sT0, j * 4096)],
            ["v_cvt_pk_bf16_f32 v%d, v%d, v%d" % (a0 + i, a0 + 2 * i, a0 + 2 * i + 1) for i in range(4)] +
            ["buffer_store_dwordx4 %s, v%d, s[%d:%d], s%d offen sc1" % (vr(a0, 4), vE, SA, SA + 3, sT0)])


def fetch(j):
    return ["s_add_u32 s%d, s%d, %d" % (sT3, sE2C, j * 4096),
            "buffer_load_dwordx4 %s, v%d, s[%d:%d], s%d offen sc1" % (vr(PB + 4 * (j - 1), 4), vE, SA, SA + 3, sT3)]


extra = {m: [] for m in range(128)}
vP2, vM2 = 2, NM[1]
poll2 = "buffer_load_dword v%d, v%d, s[%d:%d], 0 offen sc1" % (vTM, vP2, SA, SA + 3)
extra[1] += ["s_lshl_b32 s%d, s%d, 7" % (sT0, sWAVE), "s_add_u32 s%d, s%d, 1024" % (sT0, sT0),
             "v_lshl_add_u32 v%d, v0, 2, s%d" % (vP2, sT0)]
extra[2] += ["v_lshlrev_b32 v1, 2, v0", "v_xor_b32 v1, s%d, v1" % sWGL, "v_lshl_add_u32 v%d, v1, 11, v%d" % (vM2, vP2)]
extra[3] += ["s_lshl_b32 s%d, s%d, 11" % (sT0, sWGL), "v_add_u32 v%d, s%d, v%d" % (vP2, sT0, vP2), "v_subrev_u32 v1, 1, v0"]
extra[4] += ["v_cmp_gt_u32 vcc, 7, v1", "v_bfrev_b32 v1, 1", "s_nop 0", "v_cndmask_b32 v%d, v1, v%d, vcc" % (vP2, vP2),
             "v_cndmask_b32 v%d, v1, v%d, vcc" % (vM2, vM2)]
for i, nt in enumerate((1, 2, 3)):
    base = 104 + 8 * i
    for k_, j in enumerate((2 * nt, 2 * nt + 1)):
        sa, sb_ = send(j)
        extra[base + 2 + 3 * k_] += sa
        extra[base + 3 + 3 * k_] += sb_
for p in (1, 2, 3):
    for f in range(8):
        extra[32 * p - 16 + f].append(uncounted(sib_load(p, f)))
extra[64 - 27].append(pollld)
extra[96 - 27].append(pollld)

t("s_mov_b32 s%d, 0" % sASG)
two_way(t, "pub", publish(""), publish("sc1"))
t(pollld)
stamp(t, 6)
for m in range(128):
    if m == OPT["fat"]:
        t("s_barrier")
    if m == 16:
        t("s_waitcnt vmcnt(0)")
        two_way(t, "flg", [flag], [flag + " sc1"])
        stamp(t, 8)
    if m in (16, 48, 80):
        t("s_waitcnt vmcnt(%d)" % (1 if m == 16 else 0))
        try_assign(t, m // 32 + 1, "L_try%d" % m)
    if m in (24, 56, 88):
        decide(t, m // 32 + 1)
        if m == 24:
            stamp(t, 7)
        if m == 88:
            stamp(t, 9)
    o_mfma(t, m, extra[m])
stamp(t, 10)
sa, sb_ = send(1)
t.add(sa + sb_)
t("s_waitcnt vmcnt(0)")
t("buffer_store_dword v%d, v%d, s[%d:%d], 0 offen sc1" % (NM[0], vM2, SA, SA + 3))
stamp(t, 11)
t("s_mov_b32 s%d, 0x100000" % sCNT)
t("L_poll2:")
t(poll2)
t("s_sub_u32 s%d, s%d, 1" % (sCNT, sCNT))
t("s_cbranch_scc1 L_poll2e")
t("s_waitcnt vmcnt(0)")
t("v_cmp_eq_u32 vcc, 1, v%d" % vTM)
t("s_cmp_lg_u32 vcc_lo, 0xfe")
t("s_cbranch_scc1 L_poll2")
t("L_poll2e:")
stamp(t, 12)
for j in range(1, 8):
    t.add(fetch(j))
for j in range(1, 8):
    for i in range(4):
        p = PB + 4 * (j - 1) + i
        t("v_lshlrev_b32 v1, 16, v%d" % p)
        t("v_and_b32 v%d, 0xffff0000, v%d" % (p, p))
        t("v_add_f32 v%d, v%d, v1" % (ACC + 2 * i, ACC + 2 * i))
        t("v_add_f32 v%d, v%d, v%d" % (ACC + 2 * i + 1, ACC + 2 * i + 1, p))
for j in range(4):
    t("v_cvt_pk_bf16_f32 v%d, v%d, v%d" % (ACC + 8 + j, ACC + 2 * j, ACC + 2 * j + 1))
t("buffer_store_dwordx4 %s, v%d, s[%d:%d], s%d offen" % (vr(ACC + 8, 4), vOUT, SB, SB + 3, sOFF))
if STAMPS:
    t("s_waitcnt vmcnt(0)")
    stamp(t, 13)
    t("s_memtime s[94:95]")
    t("s_waitcnt lgkmcnt(0)")
    t("s_sub_u32 s%d, s94, s92" % (sSTAMP + 28))
    t("s_getreg_b32 s%d, hwreg(HW_REG_XCC_ID)" % (sSTAMP + 30))
    for i in range(16):
        t("v_mov_b32 v%d, s%d" % (ACC + 16 + i, sSTAMP + 2 * i))
    t("s_lshl_b32 s%d, s2, 2" % sT0)
    t("s_add_u32 s%d, s%d, s%d" % (sT0, sT0, sWAVE))
    t("s_lshl_b32 s%d, s%d, 6" % (sT0, sT0))
    t("s_add_u32 s%d, s%d, %d" % (sT0, sT0, ST_OFF))
    srd(t, SA, sWS, None, "0x10000000")
    t("v_mov_b32 v1, 0")
    t("s_mov_b64 exec, 1")
    for i in range(4):
        t("buffer_store_dwordx4 %s, v1, s[%d:%d], s%d offen offset:%d" % (vr(ACC + 16 + 4 * i, 4), SA, SA + 3, sT0, 16 * i))
if PROBE >= 0:
    stamp(t, 13)
    t("s_add_u32 s%d, s%d, 6000" % (sT2, sSTAMP + (2 if PROBE else 0)))
    t("L_spin:")
    t("s_sleep 2")
    t("s_memrealtime s[%d:%d]" % (sSTAMP + 4, sSTAMP + 5))
    t("s_waitcnt lgkmcnt(0)")
    t("s_sub_u32 s%d, s%d, s%d" % (sT0, sSTAMP + 4, sT2))
    t("s_cmp_lt_i32 s%d, 0" % sT0)
    t("s_cbranch_scc1 L_spin")
t("L_end:")
t("s_endpgm")
t.finish(hist=lp.ins, vmq=[{vINF}])
for r in rare:
    blocks.append(r)

hdr = open("standalone__mha_block_cached__near_ridge.s.ref").read().split("; Override launch")[0]
out = [hdr.rstrip()]
out.append("; @launch grid=(256,1,1) block=(512,1,1) lds=163840")
out.append('.amdgcn_target "amdgcn-amd-amdhsa--gfx950"')
out.append(".text")
out.append(".globl " + KNAME)
out.append(".p2align 8")
out.append(".type %s,@function" % KNAME)
out.append(KNAME + ":")
for b in blocks:
    out.append("; ---- %s ----" % b.name)
    out.append(b.text())
out.append("L_codeend:")
out.append(".p2align 8")
out.append(".fill 64, 4, 0xbf800000")
out.append('.section .rodata,"a"')
out.append(".p2align 6")
out.append(".amdhsa_kernel " + KNAME)
out.append("""  .amdhsa_next_free_vgpr 256
  .amdhsa_next_free_sgpr 102
  .amdhsa_accum_offset 256
  .amdhsa_group_segment_fixed_size 0
  .amdhsa_kernarg_size 64
  .amdhsa_user_sgpr_count 2
  .amdhsa_user_sgpr_kernarg_segment_ptr 1
  .amdhsa_system_sgpr_workgroup_id_x 1
.end_amdhsa_kernel""")
print("\n".join(out))
```

```python
import sys, struct, math
from asmgen import *

OPT = dict(stamps=0, probe=-1, nt_kv="nt", nt_x="", nt_w="nt", nt_wo="nt", thr=8.0, force_rescale=0,
           prio_x=2, prio_w=2, codepf=1, fast=1, dyn=0, fat=12, wsbase=0, wopf=-1, wopf_fl="nt", qdiag=0,
           early="0.1.2.3", k_at="6.7.8.8", v_at="6.7.8.8", dynld=1, noload=0, msum=1, sched=21, drop="", ksw=32, vsw=32, thr0=12, thr1=8, kd="5:15.3:22.2", vd="5:17.3:24.2")
for a in sys.argv[1:]:
    k, v = a.split("=")
    OPT[k] = type(OPT[k])(v) if not isinstance(OPT[k], str) else v.replace("_", " ").strip()
STAMPS = OPT["stamps"]

KNAME = "standalone__mha_block_cached__near_ridge_kernel"


def f32(x):
    return "0x%08x" % struct.unpack("<I", struct.pack("<f", x))[0]


CSC = math.log2(math.e) / math.sqrt(128.0)

KRING, VRING, STG, XREG = 0, 49152, 98304, 32768
MB_OFF, E1_OFF, E2_OFF, ST_OFF = 0x0, 0x100000, 0x900000, 0x4000000
sX, sK, sV, sWQ, sWO, sOUT, sDBG, sWS = 4, 6, 8, 10, 12, 14, 16, 18
sWAVE, sG, sB, sHN, sH, sWGL = 20, 21, 22, 23, 24, 25
SA, SB, SC = 28, 32, 36
sOFF, sLDS, sCNT, sT0, sT1, sT2 = 40, 41, 42, 43, 44, 45
sCS, sPAIR, sDEL, sE1, sE2P, sE2C = 46, 47, 48, 49, 50, 51
sTHR, sFAST, sK16, sPADM = 52, 53, 54, 55
sVALID = 26
sN = 56
sTG = 96
sMISS, sT3 = 100, 101
sBEG, sEND, sTABK, sTABV, sDELV = 26, 27, 96, 97, 98
TAGK = 0x405
sSTAMP = 64
vE, vLO, vTM, aX = 4, 5, 6, 7
aK, aW, aV = 8, 12, 16
NM = (24, 28)
ACC, QF, S0, S1, KF, VF, XB = 32, 96, 128, 144, 160, 192, 224
PK = XB
vL = (232, 236)
ONES = 244
vM1, vINFO, vINF, vOUT, vP1 = 240, 242, 243, 7, 3
def nib(txt):
    return sum(int(x) << (4 * i) for i, x in enumerate(txt.split(".")))


NQB = 9
aWq, aXq = 96, 104
M16 = "v_mfma_f32_16x16x32_bf16"
M32 = "v_mfma_f32_32x32x16_bf16"


PROBE = OPT["probe"]


def stamp(b, idx, force=False):
    if STAMPS == 5 and 1 <= idx <= 4:
        if force:
            b("s_memrealtime s[%d:%d]" % (sSTAMP + 2 * idx, sSTAMP + 2 * idx + 1))
        return
    if force:
        return
    if PROBE == idx:
        b("s_memrealtime s[%d:%d]" % (sSTAMP + 2, sSTAMP + 3))
        b("s_waitcnt lgkmcnt(0)")
    if STAMPS == 3 and 1 <= idx <= 6:
        return
    if STAMPS:
        b("s_memrealtime s[%d:%d]" % (sSTAMP + 2 * idx, sSTAMP + 2 * idx + 1))
        b("s_waitcnt lgkmcnt(0)")


def srd(b, dst, ptr, off_sreg, size):
    if off_sreg is None:
        b("s_mov_b32 s%d, s%d" % (dst, ptr))
        b("s_mov_b32 s%d, s%d" % (dst + 1, ptr + 1))
    else:
        b("s_add_u32 s%d, s%d, s%d" % (dst, ptr, off_sreg))
        b("s_addc_u32 s%d, s%d, 0" % (dst + 1, ptr + 1))
    b("s_mov_b32 s%d, %s" % (dst + 2, size))
    b("s_mov_b32 s%d, 0x20000" % (dst + 3))


def dma_group(b, S, voffs, soff, flags, n=4):
    for p in range(n):
        o = " offset:%d" % (p * 1024) if p else ""
        b("buffer_load_dwordx4 v%d, s[%d:%d], s%d offen%s %s lds" % (voffs[p], S, S + 3, soff, o, flags))


blocks = []


def new(name):
    b = Block(name)
    blocks.append(b)
    return b


e = new("entry")
e("L_start:")
e("s_cmp_ge_u32 s2, 256")
e("s_cbranch_scc1 L_end")
e("s_load_dwordx16 s[4:19], s[0:1], 0")
if PROBE >= 0:
    e("s_memrealtime s[%d:%d]" % (sSTAMP, sSTAMP + 1))
if STAMPS:
    e("s_memrealtime s[%d:%d]" % (sSTAMP, sSTAMP + 1))
    e("s_memtime s[92:93]")
e("v_lshrrev_b32 v1, 6, v0")
e("v_and_b32 v0, 63, v0")
e("v_readfirstlane_b32 s%d, v1" % sWAVE)
e("s_and_b32 s%d, s2, 7" % sG)
e("s_lshr_b32 s%d, s2, 5" % sB)
e("s_lshr_b32 s%d, s2, 3" % sHN)
e("s_and_b32 s%d, s%d, 3" % (sHN, sHN))
e("s_lshl_b32 s%d, s%d, 2" % (sH, sG))
e("s_add_u32 s%d, s%d, s%d" % (sH, sH, sHN))
e("s_lshl_b32 s%d, s%d, 5" % (sWGL, sB))
e("s_add_u32 s%d, s%d, s%d" % (sWGL, sWGL, sH))
e("s_cmp_lt_u32 s%d, 4" % sWAVE)
e("s_cbranch_scc1 L_compute")
e("v_lshrrev_b32 v1, 4, v0")
e("v_and_b32 v3, 15, v0")
e("v_lshlrev_b32 v2, 2, v1")
e("v_xor_b32 v2, v2, v3")
e("v_lshlrev_b32 v2, 4, v2")
e("s_cmp_eq_u32 s%d, 6" % sWAVE)
e("s_cbranch_scc1 L_ldx")
e("s_cmp_eq_u32 s%d, 7" % sWAVE)
e("s_cbranch_scc1 L_ldw")
e("s_cmp_eq_u32 s%d, 5" % sWAVE)
e("s_cbranch_scc1 L_ldv")
e.finish()

WOV = [14, 15, 16, 17]


def wo_setup(b):
    b("v_lshl_add_u32 v14, v1, 10, v2")
    b("v_add_u32 v15, 3072, v14")
    b("v_add_u32 v16, 6144, v14")
    b("v_add_u32 v17, 9216, v14")
    b("s_lshl_b32 s%d, s%d, 19" % (sT0, sG))
    b("s_lshl_b32 s%d, s%d, 8" % (sT1, sHN))
    b("s_add_u32 s%d, s%d, s%d" % (sT0, sT0, sT1))
    b("s_sub_u32 s%d, 0x400000, s%d" % (sT1, sT0))
    srd(b, SB, sWO, sT0, "s%d" % sT1)


def kv_tile(b, voffs):
    fl = OPT["nt_kv"]
    if OPT["noload"] and b.name in ("ldk", "ldv") and any(i.text.startswith("L_%sd:" % b.name[2]) for i in b.ins):
        return
    b("s_mov_b32 m0, s%d" % sLDS)
    b("s_add_u32 s%d, s%d, 4096" % (sT0, sLDS))
    dma_group(b, SA, voffs, sOFF, fl)
    b("s_mov_b32 m0, s%d" % sT0)
    b("s_add_u32 s%d, s%d, 4096" % (sOFF, sOFF))
    dma_group(b, SA, voffs, sOFF, fl)
    b("s_add_u32 s%d, s%d, 4096" % (sOFF, sOFF))
    b("s_add_u32 s%d, s%d, 8192" % (sLDS, sLDS))
    b("s_cmp_eq_u32 s%d, s%d" % (sLDS, sEND))
    b("s_cselect_b32 s%d, s%d, s%d" % (sLDS, sBEG, sLDS))


def wo_tile(b):
    b("s_mov_b32 m0, s%d" % sLDS)
    b("s_add_u32 s%d, s%d, 4096" % (sT0, sLDS))
    dma_group(b, SB, WOV, sOFF, OPT["nt_wo"])
    b("s_mov_b32 m0, s%d" % sT0)
    b("s_add_u32 s%d, s%d, 16384" % (sOFF, sOFF))
    dma_group(b, SB, WOV, sOFF, OPT["nt_wo"])
    b("s_add_u32 s%d, s%d, 16384" % (sOFF, sOFF))


def loop_begin(b, label, n):
    b("s_mov_b32 s%d, %d" % (sCNT, n))
    b(label + ":")


def loop_end(b, label):
    b("s_sub_u32 s%d, s%d, 1" % (sCNT, sCNT))
    b("s_cmp_lg_u32 s%d, 0" % sCNT)
    b("s_cbranch_scc1 " + label)


b = new("ldk")
b("L_ldk:")
for p in range(4):
    b("v_add_u32 v4, %d, v1" % (4 * p))
    b("v_xor_b32 v4, v4, v3")
    b("v_lshlrev_b32 v4, 4, v4")
    b("v_lshl_add_u32 v%d, v1, 8, v4" % (10 + p))
b("s_lshl_b32 s%d, s%d, 18" % (sT0, sWGL))
b("s_waitcnt lgkmcnt(0)")
srd(b, SA, sK, sT0, "0x40000")
b("s_mov_b32 s%d, 0" % sOFF)
b("s_mov_b32 s%d, %d" % (sLDS, KRING))
b("s_mov_b32 s%d, %d" % (sBEG, KRING))
b("s_mov_b32 s%d, %d" % (sEND, KRING + 49152))
KV4 = [10, 11, 12, 13]
wo_setup(b)


def tiles(b, label, voffs, n):
    if n > 1:
        b("s_mov_b32 s%d, %d" % (sT3, n))
        b(label + ":")
        kv_tile(b, voffs)
        b("s_sub_u32 s%d, s%d, 1" % (sT3, sT3))
        b("s_cmp_lg_u32 s%d, 0" % sT3)
        b("s_cbranch_scc1 " + label)
    elif n:
        kv_tile(b, voffs)


def q_phase_kv(b, tag, voffs, txt, hooks):
    early = [int(x) for x in OPT["early"].split(".")]
    at = [int(x) for x in txt.split(".")]
    assert max(early) <= at[0] and at == sorted(at) and at[2] >= 6
    b("s_add_u32 s%d, s%d, s%d" % (sT1, sB, sHN))
    b("s_and_b32 s%d, s%d, 3" % (sT1, sT1))
    b("s_lshl_b32 s%d, s%d, 2" % (sT1, sT1))
    b("s_lshr_b32 s%d, %d, s%d" % (sT1, sum(x << (4 * i) for i, x in enumerate(early)), sT1))
    b("s_and_b32 s%d, s%d, 15" % (sCNT, sT1))
    for i in range(8):
        b("s_barrier")
        b.add(hooks.get(i, []))
        if i in early:
            b("s_cmp_lg_u32 s%d, %d" % (sCNT, i))
            b("s_cbranch_scc1 L_%se%d" % (tag, i))
            b("s_swappc_b64 s[60:61], s[62:63]") if False else None
            tiles(b, "L_%sei%d" % (tag, i), voffs, 2)
            b("L_%se%d:" % (tag, i))
        tiles(b, "L_%sq%d" % (tag, i), voffs, at.count(i))
    if tag == "k":
        b("s_waitcnt vmcnt(%d)" % (8 * sum(x < 8 for x in at)))
    b("s_barrier")
    tiles(b, "L_%sq8" % tag, voffs, at.count(8))
    return 2 + sum(x <= 8 for x in at)


def att_phase_kv(b, tag, voffs, nxt, lead, dtxt, free_at, switch, stamps=False):
    steps = [x.split(":") for x in dtxt.split(".")]

    def depth(t):
        for st in steps:
            if len(st) == 1 or t < int(st[1]):
                return int(st[0])
    plan = []
    for t in range(32):
        need = t + lead
        wait = 8 * (nxt - 1 - need) if need <= 31 else None
        assert wait is None or wait >= 0, (tag, t)
        n = 0
        while nxt <= 31 and nxt <= need + depth(t) and n < 2:
            assert free_at(nxt) <= t, (tag, t, nxt)
            nxt += 1
            n += 1
        plan.append((wait, n, nxt))
    assert nxt == 32
    t = 0
    switched = False
    while t < 32:
        wait, n, after = plan[t]
        first = after - n
        if not switched and first >= switch[0]:
            assert first <= switch[1]
            b(switch[2])
            switched = True
        u = t
        while u + 1 < 32 and plan[u + 1][:2] == (wait, n) and (switched or plan[u + 1][2] - n < switch[0]) and u + 1 not in (30, 31):
            u += 1
        cnt = u - t + 1
        if cnt > 1:
            loop_begin(b, "L_%sa%d" % (tag, t), cnt)
        if wait is not None:
            b("s_waitcnt vmcnt(%d)" % wait)
        if stamps:
            b("s_memrealtime s[60:61]")
            b("s_waitcnt lgkmcnt(0)")
        b("s_barrier")
        if stamps:
            b("s_memrealtime s[62:63]")
            b("s_waitcnt lgkmcnt(0)")
            if cnt > 1:
                b("s_sub_u32 m0, %d, s%d" % (u + 1, sCNT))
            else:
                b("s_mov_b32 m0, %d" % t)
            b("s_nop 0")
            b("v_writelane_b32 v20, s60, m0")
            b("v_writelane_b32 v21, s62, m0")
        tiles(b, "L_%sai%d" % (tag, t), voffs, n)
        if cnt > 1:
            loop_end(b, "L_%sa%d" % (tag, t))
        if tag == "k" and u == 30:
            b("s_xor_b32 s%d, s%d, 3" % (sOFF, sHN))
            b("s_lshl_b32 s%d, s%d, 17" % (sOFF, sOFF))
            b("s_mov_b32 s%d, %d" % (sLDS, KRING))
            loop_begin(b, "L_k2", 4)
            wo_tile(b)
            b("s_add_u32 s%d, s%d, 8192" % (sLDS, sLDS))
            loop_end(b, "L_k2")
        t = u + 1


def att_phase_dyn(b, tag, voffs, nxt, lead, f1, f2, tend, tsw, sw_at, sw_reg, sw_val, stamps=False):
    sT, sNXT, sA, sVM, sLIM, sTH = sCNT, 56, 57, 58, 59, 53
    b("s_mov_b32 s%d, 0" % sT)
    b("s_mov_b32 s%d, %d" % (sNXT, nxt))
    b("s_mov_b32 s%d, %d" % (sTH, OPT["thr0"]))
    b("L_%sd:" % tag)
    b("s_sub_u32 s%d, s%d, s%d" % (sA, sNXT, sT))
    for a_ in (2, 3, 1, 4, 5):
        b("s_cmp_eq_u32 s%d, %d" % (sA, lead + 1 + a_))
        b("s_cbranch_scc1 L_%sd%d" % (tag, a_))
    b("s_waitcnt vmcnt(0)")
    for a_ in range(1, 6):
        b("L_%sd%d:" % (tag, a_))
        b("s_waitcnt vmcnt(%d)" % (8 * a_))
    if stamps:
        b("s_memrealtime s[60:61]")
        b("s_waitcnt lgkmcnt(0)")
    b("s_barrier")
    if stamps:
        b("s_memrealtime s[62:63]")
        b("s_waitcnt lgkmcnt(0)")
        b("s_mov_b32 m0, s%d" % sT)
        b("s_nop 0")
        b("v_writelane_b32 v20, s60, m0")
        b("v_writelane_b32 v21, s62, m0")
    b("s_getreg_b32 s%d, hwreg(HW_REG_IB_STS, 22, 2)" % sA)
    b("s_getreg_b32 s%d, hwreg(HW_REG_IB_STS, 0, 4)" % sVM)
    b("s_lshl_b32 s%d, s%d, 4" % (sA, sA))
    b("s_or_b32 s%d, s%d, s%d" % (sVM, sVM, sA))
    if stamps:
        b("s_lshl_b32 s%d, s%d, 8" % (sLIM, sNXT))
        b("s_or_b32 s%d, s%d, s%d" % (sLIM, sLIM, sVM))
        b("s_add_u32 m0, s%d, 32" % sT)
        b("s_nop 0")
        b("v_writelane_b32 v20, s%d, m0" % sLIM)
    b("L_%sdi:" % tag)
    b("s_cmp_le_u32 s%d, 21" % sNXT)
    b("s_cselect_b32 s%d, %d, %d" % (sLIM, f1, f2))
    b("s_add_u32 s%d, s%d, s%d" % (sLIM, sLIM, sT))
    b("s_min_u32 s%d, s%d, 31" % (sLIM, sLIM))
    b("s_cmp_gt_u32 s%d, s%d" % (sNXT, sLIM))
    b("s_cbranch_scc1 L_%sdn" % tag)
    b("s_cmp_le_u32 s%d, s%d" % (sVM, sTH))
    b("s_cbranch_scc1 L_%sdg" % tag)
    b("s_add_u32 s%d, s%d, %d" % (sLIM, sT, lead + 1))
    b("s_cmp_gt_u32 s%d, s%d" % (sNXT, sLIM))
    b("s_cbranch_scc1 L_%sdn" % tag)
    b("L_%sdg:" % tag)
    b("s_cmp_eq_u32 s%d, %d" % (sNXT, sw_at))
    b("s_cselect_b32 s%d, %d, s%d" % (sw_reg, sw_val, sw_reg))
    kv_tile(b, voffs)
    b("s_add_u32 s%d, s%d, 1" % (sNXT, sNXT))
    b("s_add_u32 s%d, s%d, 8" % (sVM, sVM))
    b("s_branch L_%sdi" % tag)
    b("L_%sdn:" % tag)
    if stamps:
        b("s_memrealtime s[62:63]")
        b("s_waitcnt lgkmcnt(0)")
        b("s_add_u32 m0, s%d, 32" % sT)
        b("s_nop 0")
        b("v_writelane_b32 v21, s62, m0")
    b("s_add_u32 s%d, s%d, 1" % (sT, sT))
    b("s_cmp_eq_u32 s%d, %d" % (sT, tsw))
    b("s_cselect_b32 s%d, %d, s%d" % (sTH, OPT["thr1"], sTH))
    b("s_cmp_lt_u32 s%d, %d" % (sT, tend))
    b("s_cbranch_scc1 L_%sd" % tag)


pre = None
if OPT["wopf"] >= 0:
    b("s_lshl_b32 s%d, s%d, 19" % (sT0, sG))
    b("s_lshr_b32 s%d, s2, 3" % sT1)
    b("s_lshl_b32 s%d, s%d, 14" % (sT1, sT1))
    b("s_add_u32 s%d, s%d, s%d" % (sT0, sT0, sT1))
    srd(b, SC, sWO, sT0, "16384")
    b("v_lshlrev_b32 v18, 7, v0")
    b("v_add_u32 v19, 8192, v18")
    pre = (OPT["wopf"], ["buffer_load_dword v20, v18, s[%d:%d], 0 offen %s" % (SC, SC + 3, OPT["wopf_fl"]),
                         "buffer_load_dword v21, v19, s[%d:%d], 0 offen %s" % (SC, SC + 3, OPT["wopf_fl"])])
NK0 = q_phase_kv(b, "k", KV4, OPT["k_at"], {pre[0]: pre[1]} if pre else {})
if OPT["dynld"]:
    att_phase_dyn(b, "k", KV4, NK0, 2, 7, 5, 30, OPT["ksw"], 19, sEND, KRING + 32768)
    b("s_xor_b32 s%d, s%d, 3" % (sOFF, sHN))
    b("s_lshl_b32 s%d, s%d, 17" % (sOFF, sOFF))
    b("s_mov_b32 s%d, %d" % (sLDS, KRING))
    b("s_barrier")
    loop_begin(b, "L_k2", 4)
    wo_tile(b)
    b("s_add_u32 s%d, s%d, 8192" % (sLDS, sLDS))
    loop_end(b, "L_k2")
    b("s_barrier")
else:
    att_phase_kv(b, "k", KV4, NK0, 2, OPT["kd"], lambda j: max(0, (j - 6 if j <= 21 else j - 4) - 1), (18, 21, "s_mov_b32 s%d, %d" % (sEND, KRING + 32768)))
b("s_waitcnt vmcnt(0)")
b("s_barrier")
b("s_endpgm")
b.finish(hist=e.ins)

b = new("ldv")
b("L_ldv:")
for par in range(2):
    b("v_lshlrev_b32 v4, 1, v1")
    b("v_xor_b32 v4, v4, v3")
    if par:
        b("v_xor_b32 v4, 8, v4")
    b("v_lshlrev_b32 v4, 4, v4")
    b("v_lshl_add_u32 v%d, v1, 8, v4" % (10 + par))
b("s_lshl_b32 s%d, s%d, 18" % (sT0, sWGL))
b("s_waitcnt lgkmcnt(0)")
srd(b, SA, sV, sT0, "0x40000")
b("s_mov_b32 s%d, 0" % sOFF)
b("s_mov_b32 s%d, %d" % (sLDS, VRING + 2 * 8192))
b("s_mov_b32 s%d, %d" % (sBEG, VRING))
b("s_mov_b32 s%d, %d" % (sEND, VRING + 49152))
V4 = [10, 11, 10, 11]
b("s_mov_b32 s%d, %d" % (sT0, OPT["wsbase"]))
srd(b, SC, sWS, sT0, "0x%x" % (0x10000000 - OPT["wsbase"]))
b("v_mov_b32 v4, 0")
b("v_mov_b32 v5, 0")
b("s_lshl_b32 s%d, s%d, 11" % (sT0, sWGL))
b("v_lshlrev_b32 v8, 3, v0")
b("buffer_store_dwordx2 v[4:5], v8, s[%d:%d], s%d offen sc1" % (SC, SC + 3, sT0))
b("buffer_store_dwordx2 v[4:5], v8, s[%d:%d], s%d offen offset:1024 sc1" % (SC, SC + 3, sT0))
b("s_getreg_b32 s%d, hwreg(HW_REG_XCC_ID, 0, 4)" % sT1)
b("s_add_u32 s%d, s%d, 1" % (sT1, sT1))
b("v_mov_b32 v7, s%d" % sT1)
b("s_mov_b64 exec, 1")
b("buffer_store_dword v7, v4, s[%d:%d], s%d offen offset:512 sc1" % (SC, SC + 3, sT0))
b("s_mov_b64 exec, -1")
b("s_lshl_b32 s%d, s%d, 5" % (sT0, sB))
b("s_add_u32 s%d, s%d, s%d" % (SB, sDBG, sT0))
b("s_addc_u32 s%d, s%d, 0" % (SB + 1, sDBG + 1))
b("s_mov_b32 s%d, 1" % (SB + 2))
NV0 = q_phase_kv(b, "v", V4, OPT["v_at"],
           {0: ["s_waitcnt vmcnt(0)", "s_atomic_add s%d, s[%d:%d], 0x0" % (SB + 2, SB, SB + 1)]})
if OPT["dynld"]:
    att_phase_dyn(b, "v", V4, NV0, 0, 5, 3, 32, OPT["vsw"], 18, sBEG, VRING + 16384, STAMPS == 1)
else:
    att_phase_kv(b, "v", V4, NV0, 0, OPT["vd"], lambda j: (j - 6 if j <= 21 else j - 4) + 1, (16, 21, "s_mov_b32 s%d, %d" % (sBEG, VRING + 16384)), STAMPS == 1)
b("s_barrier")
if STAMPS:
    srd(b, SA, sWS, None, "0x10000000")
    b("s_lshl_b32 s%d, s2, 9" % sT0)
    b("s_add_u32 s%d, s%d, %d" % (sT0, sT0, ST_OFF + 0x100000))
    b("v_lshlrev_b32 v1, 2, v0")
    b("buffer_store_dword v20, v1, s[%d:%d], s%d offen" % (SA, SA + 3, sT0))
    b("buffer_store_dword v21, v1, s[%d:%d], s%d offen offset:256" % (SA, SA + 3, sT0))
b("s_endpgm")
b.finish(hist=e.ins)


def q_loader(b, tag, gstep, kstep_shift, ldsbase, blk, flags):
    def chunk():
        b("s_lshl_b32 s%d, s%d, %d" % (sOFF, sT2, kstep_shift))
        b("s_mov_b32 m0, s%d" % sLDS)
        b("s_add_u32 s%d, s%d, 1" % (sT2, sT2))
        dma_group(b, SA, [10, 11, 12, 13], sOFF, flags)
        for g in range(1, 4):
            b("s_add_u32 m0, s%d, %d" % (sLDS, 4096 * g))
            b("s_add_u32 s%d, s%d, %d" % (sOFF, sOFF, gstep))
            dma_group(b, SA, [10, 11, 12, 13], sOFF, flags)
        b("s_and_b32 s%d, s%d, 7" % (sT2, sT2))
        b("s_add_u32 s%d, s%d, 32768" % (sLDS, sLDS))
        b("s_cmp_eq_u32 s%d, %d" % (sLDS, ldsbase - STG + XREG + 32768))
        b("s_cselect_b32 s%d, %d, s%d" % (sLDS, ldsbase, sLDS))
        b("s_cmp_eq_u32 s%d, %d" % (sLDS, ldsbase + 65536))
        b("s_cselect_b32 s%d, %d, s%d" % (sLDS, ldsbase - STG + XREG, sLDS))
    b("s_lshl_b32 s%d, s%d, 1" % (sT2, sHN))
    b("s_add_u32 s%d, s%d, s%d" % (sT2, sT2, sB))
    b("s_and_b32 s%d, s%d, 7" % (sT2, sT2))
    b("s_mov_b32 s%d, %d" % (sLDS, ldsbase))
    loop_begin(b, "L_%s0" % tag, 2)
    chunk()
    loop_end(b, "L_%s0" % tag)
    loop_begin(b, "L_%s1" % tag, 6)
    if STAMPS == 4:
        b("s_memrealtime s[58:59]")
        b("s_waitcnt lgkmcnt(0)")
    b("s_waitcnt vmcnt(16)")
    if STAMPS == 4:
        b("s_memrealtime s[60:61]")
        b("s_waitcnt lgkmcnt(0)")
    b("s_barrier")
    if STAMPS == 4:
        b("s_memrealtime s[62:63]")
        b("s_waitcnt lgkmcnt(0)")
        b("s_mov_b32 m0, s%d" % sCNT)
        b("s_nop 0")
        b("v_writelane_b32 v19, s58, m0")
        b("v_writelane_b32 v20, s60, m0")
        b("v_writelane_b32 v21, s62, m0")
    chunk()
    loop_end(b, "L_%s1" % tag)
    wo_setup(b)
    b("s_waitcnt vmcnt(16)")
    b("s_barrier")
    b("s_waitcnt vmcnt(0)")
    b("s_barrier")
    b("s_barrier")
    b("s_setprio 0")
    first = 4 if blk == 0 else 2
    for i in range(first + 1):
        b("s_barrier")
    b("s_xor_b32 s%d, s%d, %d" % (sOFF, sHN, blk))
    b("s_lshl_b32 s%d, s%d, 17" % (sOFF, sOFF))
    b("s_mov_b32 s%d, %d" % (sLDS, STG + blk * 32768))
    loop_begin(b, "L_%s2" % tag, 4)
    wo_tile(b)
    b("s_add_u32 s%d, s%d, 8192" % (sLDS, sLDS))
    for i in range(4):
        b("s_barrier")
    loop_end(b, "L_%s2" % tag)
    b("s_xor_b32 s%d, s%d, 2" % (sOFF, sHN))
    b("s_lshl_b32 s%d, s%d, 17" % (sOFF, sOFF))
    b("s_add_u32 s%d, s%d, %d" % (sOFF, sOFF, blk * 65536))
    b("s_mov_b32 s%d, %d" % (sLDS, XREG + blk * 16384))
    wo_tile(b)
    b("s_add_u32 s%d, s%d, 8192" % (sLDS, sLDS))
    if tag == "w":
        b("s_lshl_b32 s%d, s%d, 5" % (sT0, sB))
        b("s_add_u32 s%d, s%d, s%d" % (SC, sDBG, sT0))
        b("s_addc_u32 s%d, s%d, 0" % (SC + 1, sDBG + 1))
        b("s_load_dword s%d, s[%d:%d], 0x0 glc" % (SC + 2, SC, SC + 1))
    for i in range(4):
        b("s_barrier")
    wo_tile(b)
    done = first + 20
    if tag == "w":
        for i in range(3):
            b("s_barrier")
        done += 3
        b("s_mov_b32 s%d, 0x100000" % sCNT)
        b("s_branch L_wchk")
        b("L_wpoll:")
        b("s_load_dword s%d, s[%d:%d], 0x0 glc" % (SC + 2, SC, SC + 1))
        b("L_wchk:")
        b("s_waitcnt lgkmcnt(0)")
        b("s_sub_u32 s%d, s%d, 1" % (sCNT, sCNT))
        b("s_cbranch_scc1 L_wpolld")
        b("s_cmp_lt_u32 s%d, 32" % (SC + 2))
        b("s_cbranch_scc1 L_wpoll")
        b("L_wpolld:")
    for i in range(30 - done):
        b("s_barrier")
    b("s_waitcnt vmcnt(0)")
    b("s_barrier")
    b("s_barrier")
    if STAMPS == 4:
        srd(b, SA, sWS, None, "0x10000000")
        b("s_lshl_b32 s%d, s2, 11" % sT0)
        b("s_add_u32 s%d, s%d, %d" % (sT0, sT0, ST_OFF + 0x200000 + blk * 1024))
        b("v_lshlrev_b32 v1, 2, v0")
        for i in range(3):
            b("buffer_store_dword v%d, v1, s[%d:%d], s%d offen offset:%d" % (19 + i, SA, SA + 3, sT0, 256 * i))
    b("s_endpgm")


b = new("ldx")
b("L_ldx:")
b("s_setprio %d" % OPT["prio_x"])
b("v_lshrrev_b32 v5, 3, v0")
b("v_and_b32 v6, 7, v0")
b("v_lshrrev_b32 v7, 1, v5")
for p in range(4):
    b("v_add_u32 v4, %d, v7" % (4 * (p & 1)))
    b("v_xor_b32 v4, v4, v6")
    b("v_lshlrev_b32 v4, 4, v4")
    b("v_lshl_add_u32 v4, v5, 10, v4")
    b("v_add_u32 v%d, %d, v4" % (10 + p, p * (8192 - 1024)))
b("s_mul_i32 s%d, s%d, 114688" % (sT0, sB))
b("s_waitcnt lgkmcnt(0)")
srd(b, SA, sX, sT0, "114688")
q_loader(b, "x", 32768, 7, STG, 0, OPT["nt_x"])
b.finish(hist=e.ins)

b = new("ldw")
b("L_ldw:")
b("s_setprio %d" % OPT["prio_w"])
b("v_lshlrev_b32 v4, 1, v1")
b("v_xor_b32 v4, v4, v3")
b("v_lshlrev_b32 v4, 4, v4")
b("v_lshl_add_u32 v10, v1, 13, v4")
b("v_add_u32 v11, %d, v10" % (32768 - 1024))
b("v_xor_b32 v4, 128, v10")
b("v_add_u32 v12, %d, v4" % (2 * (32768 - 1024)))
b("v_add_u32 v13, %d, v4" % (3 * (32768 - 1024)))
b("s_lshl_b32 s%d, s%d, 8" % (sT0, sH))
b("s_sub_u32 s%d, 0x400000, s%d" % (sT1, sT0))
b("s_waitcnt lgkmcnt(0)")
srd(b, SA, sWQ, sT0, "s%d" % sT1)
q_loader(b, "w", 131072, 19, STG + 16384, 1, OPT["nt_w"])
b.finish(hist=e.ins)

c = new("compute_pro")
c("L_compute:")
if OPT["codepf"]:
    c("s_cmp_lg_u32 s%d, 1" % sWAVE)
    c("s_cbranch_scc1 L_nopf")
    c("s_getpc_b64 s[56:57]")
    c("L_pc:")
    c("s_sub_u32 s56, s56, L_pc-L_start")
    c("s_subb_u32 s57, s57, 0")
    c("s_lshr_b32 s%d, s2, 3" % sT0)
    c("s_and_b32 s%d, s%d, 7" % (sT0, sT0))
    c("s_mul_i32 s%d, s%d, ((L_codeend-L_start+1023)/1024)*128" % (sT0, sT0))
    c("v_lshlrev_b32 v1, 7, v0")
    c("v_add_u32 v1, s%d, v1" % sT0)
    c("v_min_u32 v1, L_codeend-L_start-4, v1")
    c("v_mov_b32 v3, s57")
    c("v_add_co_u32 v2, vcc, s56, v1")
    c("s_nop 1")
    c("v_addc_co_u32 v3, vcc, 0, v3, vcc")
    c("v_cmp_gt_u32 vcc, (L_codeend-L_start+1023)/1024, v0")
    c("s_and_saveexec_b64 s[58:59], vcc")
    c("global_load_dword v255, v[2:3], off")
    c("s_mov_b64 exec, -1")
    c("L_nopf:")
c("v_lshrrev_b32 v1, 4, v0")
c("v_and_b32 v2, 15, v0")
c("v_lshrrev_b32 v3, 5, v0")
c("v_and_b32 v4, 1, v1")
c("v_lshl_add_u32 v3, v4, 1, v3")
c("v_xor_b32 v3, v3, v2")
c("v_lshlrev_b32 v3, 4, v3")
c("v_lshl_add_u32 v%d, v2, 8, v3" % aK)
for ks in range(1, 4):
    c("v_xor_b32 v%d, %d, v%d" % (aK + ks, ks << 6, aK))
c("s_lshl_b32 s%d, s%d, 12" % (sT0, sWAVE))
c("s_add_u32 s%d, s%d, %d" % (sT0, sT0, STG))
c("v_lshrrev_b32 v3, 1, v2")
c("v_xor_b32 v3, v3, v1")
c("v_lshlrev_b32 v3, 4, v3")
c("v_lshl_add_u32 v3, v2, 7, v3")
c("v_add_u32 v%d, s%d, v3" % (aXq, sT0))
c("v_xor_b32 v%d, 64, v%d" % (aXq + 1, aXq))
c("v_bfe_u32 v2, v0, 2, 2")
c("v_lshrrev_b32 v3, 2, v0")
c("v_and_b32 v4, 7, v3")
c("v_lshlrev_b32 v4, 5, v4")
c("v_lshl_add_u32 v3, v3, 8, v4")
c("v_and_b32 v4, 3, v0")
c("v_lshl_add_u32 v3, v4, 3, v3")
c("v_add_u32 v%d, %d, v3" % (aV, VRING + 16384))
for db in range(1, 8):
    c("v_xor_b32 v%d, %d, v%d" % (aV + db, db << 5, aV))
c("v_lshl_add_u32 v3, v1, 10, v3")
c("v_add_u32 v%d, %d, v3" % (aWq, STG + 16384))
for db in range(1, 8):
    c("v_xor_b32 v%d, %d, v%d" % (aWq + db, db << 5, aWq))
c("v_mul_u32_u24 v2, 320, v2")
c("v_lshrrev_b32 v3, 5, v0")
c("v_lshl_add_u32 v3, v3, 11, v2")
c("v_and_b32 v4, 1, v1")
c("v_lshl_add_u32 v3, v4, 5, v3")
c("v_and_b32 v4, 1, v0")
c("v_lshl_add_u32 v3, v4, 4, v3")
c("v_bfe_u32 v4, v0, 1, 1")
c("v_lshl_add_u32 v3, v4, 3, v3")
c("s_lshl_b32 s%d, s%d, 5" % (sT0, sG))
c("v_xor_b32 v%d, s%d, v3" % (vLO, sT0))
c("s_cmp_eq_u32 s%d, 3" % sWAVE)
c("s_mov_b32 s%d, %s" % (sT0, f32(3e38)))
c("s_cselect_b32 s%d, %s, s%d" % (sPADM, f32(-1e30), sT0))
c("v_and_b32 v2, 31, v0")
c("s_lshl_b32 s%d, s%d, 5" % (sT0, sWAVE))
c("v_add_u32 v3, s%d, v2" % sT0)
c("v_lshlrev_b32 v%d, 4, v0" % vE)
c("v_cmp_lt_u32 vcc, 111, v3")
c("v_bfrev_b32 v3, 1")
c("v_cndmask_b32 v3, 0, v3, vcc")
c("v_or_b32 v%d, v%d, v3" % (vE, vE))
for i in range(64):
    c("v_mov_b32 v%d, 0" % (ACC + i))
c("s_mov_b32 s%d, %s" % (sCS, f32(CSC)))
c("s_mov_b32 s%d, %s" % (sCS + 1, f32(CSC)))
c("s_mov_b32 s%d, %s" % (sTHR, f32(0.0 if OPT["force_rescale"] else OPT["thr"])))
c("s_waitcnt lgkmcnt(0)")
c("s_mov_b32 s%d, %d" % (sT0, OPT["wsbase"]))
srd(c, SA, sWS, sT0, "0x%x" % (0x10000000 - OPT["wsbase"]))
c("s_mul_i32 s%d, s%d, 114688" % (sT0, sB))
srd(c, SB, sOUT, sT0, "114688")
c("s_lshl_b32 s%d, s%d, 7" % (sT0, sWAVE))
c("v_xor_b32 v1, s%d, v0" % sWGL)
c("v_lshlrev_b32 v1, 11, v1")
c("v_lshl_add_u32 v2, v0, 2, s%d" % sT0)
c("v_add_u32 v1, v1, v2")
c("s_lshl_b32 s%d, s%d, 11" % (sT1, sWGL))
c("v_add_u32 v2, s%d, v2" % sT1)
c("v_subrev_u32 v3, 1, v0")
c("v_cmp_gt_u32 vcc, 3, v3")
c("v_bfrev_b32 v3, 1")
c("s_nop 0")
c("v_cndmask_b32 v%d, v3, v1, vcc" % vM1)
c("v_cndmask_b32 v%d, v3, v2, vcc" % vP1)
c("v_xor_b32 v1, s%d, v0" % sWGL)
c("v_lshlrev_b32 v1, 11, v1")
c("v_add_u32 v1, 512, v1")
c("v_cmp_gt_u32 vcc, 4, v0")
c("v_bfrev_b32 v2, 1")
c("s_nop 0")
c("v_cndmask_b32 v%d, v2, v1, vcc" % vINFO)
c("v_and_b32 v1, 31, v0")
c("s_lshl_b32 s%d, s%d, 5" % (sT0, sWAVE))
c("v_add_u32 v1, s%d, v1" % sT0)
c("v_lshlrev_b32 v1, 10, v1")
c("v_lshrrev_b32 v2, 5, v0")
c("v_lshl_add_u32 v%d, v2, 4, v1" % vOUT)
c("s_lshl_b32 s%d, s%d, 8" % (sT0, sHN))
c("s_lshl_b32 s%d, s%d, 5" % (sT1, sG))
c("s_add_u32 s%d, s%d, s%d" % (sOFF, sT0, sT1))
c("s_lshl_b32 s%d, s%d, 15" % (sE1, sWGL))
c("s_lshl_b32 s%d, s%d, 13" % (sT0, sWAVE))
c("s_add_u32 s%d, s%d, s%d" % (sE1, sE1, sT0))
c("s_add_u32 s%d, s%d, %d" % (sE1, sE1, E1_OFF))
c("s_lshl_b32 s%d, s%d, 2" % (sT0, sB))
c("s_add_u32 s%d, s%d, s%d" % (sT0, sT0, sHN))
c("s_lshl_b32 s%d, s%d, 18" % (sT0, sT0))
c("s_lshl_b32 s%d, s%d, 10" % (sT1, sWAVE))
c("s_add_u32 s%d, s%d, s%d" % (sT0, sT0, sT1))
c("s_add_u32 s%d, s%d, %d" % (sE2P, sT0, E2_OFF))
c("s_lshl_b32 s%d, s%d, 15" % (sT1, sG))
c("s_add_u32 s%d, s%d, s%d" % (sE2C, sE2P, sT1))


def q_reads(s_):
    W = VF if s_ == 0 else S0
    r = ["ds_read_b128 %s, v%d offset:%d" % (vr(XB + 8 * s_ + 4 * blk, 4), aXq + s_, blk * 2048) for blk in range(2)]
    for db in range(8):
        for u in range(2):
            r.append("ds_read_b64_tr_b16 %s, v%d offset:%d" % (vr(W + 4 * db + 2 * u, 2), aWq + db, s_ * 8192 + u * 1024))
    if OPT["qdiag"] & 1:
        r = ["s_nop 0"] * 18
    return r


def k_reads(slot_off):
    return ["ds_read_b128 %s, v%d offset:%d" % (vr(KF + 16 * kb + 4 * ks, 4), aK + ks, slot_off + kb * 4096)
            for ks in range(4) for kb in range(2)]


def q_mfmas(s_):
    W = VF if s_ == 0 else S0
    r = []
    for db in range(8):
        for blk in range(2):
            d = vr(ACC + 32 * blk + 4 * db, 4)
            r.append("%s %s, %s, %s, %s" % (M16, d, vr(W + 4 * db, 4), vr(XB + 8 * s_ + 4 * blk, 4), d))
    if OPT["qdiag"] & 2:
        r = ["s_nop 0"] * 16
    return r


c("s_mov_b32 s%d, %d" % (sT2, sum(((1, -3, 2)[i % 3] + 3) << (3 * i) for i in range(8))))
c("s_mov_b32 s%d, 8" % sCNT)
c("s_barrier")
stamp(c, 1)
c.add(q_reads(0))
lgq0, _ = c.finish(hist=e.ins)

ql = new("qloop")
ql("L_q:")
nx = q_reads(1)
gaps = [nx[2 * i:2 * i + 2] for i in range(9)] + [[] for _ in range(7)]
gaps[9] = ["s_and_b32 s%d, s%d, 7" % (sDEL, sT2), "s_lshr_b32 s%d, s%d, 3" % (sT2, sT2),
           "s_sub_u32 s%d, s%d, 3" % (sDEL, sDEL), "s_lshl_b32 s%d, s%d, 15" % (sDEL, sDEL)]
adv = ["v_add_u32 v%d, s%d, v%d" % (r_, sDEL, r_) for r_ in range(aWq, aWq + 10)]
for i in range(5):
    gaps[10 + i] = adv[2 * i:2 * i + 2]
ql.add(interleave(q_mfmas(0), gaps))
ql("s_waitcnt lgkmcnt(0)")
ql("s_barrier")
nx = q_reads(0)
gaps = [nx[2 * i:2 * i + 2] for i in range(9)] + [[] for _ in range(7)]
ql.add(interleave(q_mfmas(1), gaps))
loop_end(ql, "L_q")
lgq1, _ = ql.finish(hist=c.ins, lgq=lgq0)
assert lgq1 == lgq0[-len(lgq1):] or STAMPS or PROBE == 1 or OPT["qdiag"], (lgq0, lgq1)
pad_hazards(ql.ins, hist=ql.ins, check_only=True, where="q loop back edge")

q = new("attn_pro")
stamp(q, 2)
q("s_waitcnt lgkmcnt(0)")
q.add(k_reads(0))
q("s_waitcnt vmcnt(0)")
aO1, aO2, aO3 = aK, aW, aV
for nt in range(4):
    q("v_xor_b32 v%d, %d, v%d" % (aO2 + nt, nt << 6, vLO))
for ks in range(4):
    for blk in range(2):
        a0 = ACC + 32 * blk + 8 * ks
        f0 = QF + 16 * blk + 4 * ks
        for j in range(4):
            q("v_pk_mul_f32 %s, %s, s[%d:%d]" % (vr(a0 + 2 * j, 2), vr(a0 + 2 * j, 2), sCS, sCS + 1))
        for j in range(4):
            q("v_cvt_pk_bf16_f32 v%d, v%d, v%d" % (f0 + j, a0 + 2 * j, a0 + 2 * j + 1))
for ks in range(4):
    for blk in range(2):
        f0 = QF + 16 * blk + 4 * ks
        for j in range(2):
            q("v_permlane16_swap_b32 v%d, v%d" % (f0 + j, f0 + 2 + j))


def qk_list(SN, first):
    r = []
    for ks in range(4):
        for kb in range(2):
            for blk in range(2):
                d = vr(SN + 8 * blk + 4 * kb, 4)
                cc = d if ks else ("0" if first else vr(NM[blk], 4))
                r.append("%s %s, %s, %s, %s" % (M16, d, vr(KF + 16 * kb + 4 * ks, 4), vr(QF + 16 * blk + 4 * ks, 4), cc))
    return r


k1 = k_reads(8192)
gaps = []
for i in range(16):
    g = ["v_mov_b32 v%d, 0" % (ACC + 4 * i + j) for j in range(4)]
    if i & 1:
        g.append(k1[i >> 1])
    gaps.append(g)
q.add(interleave(qk_list(S0, True), gaps))
for ks in range(4):
    q("v_add_u32 v%d, 16384, v%d" % (aK + ks, aK + ks))
for i in range(8):
    q("v_mov_b32 v%d, 0" % (vL[0] + i))
for i in range(4):
    q("v_mov_b32 v%d, 0x3f803f80" % (ONES + i))


def blk_max(b, S, dst, tmp):
    b("v_max3_f32 v%d, v%d, v%d, v%d" % (dst, S, S + 1, S + 2))
    b("v_max3_f32 v%d, v%d, v%d, v%d" % (dst, dst, S + 3, S + 4))
    b("v_max3_f32 v%d, v%d, v%d, v%d" % (dst, dst, S + 5, S + 6))
    b("v_max_f32 v%d, v%d, v%d" % (dst, dst, S + 7))
    lane_reduce(b, "v_max_f32", dst, tmp)


def lane_reduce(b, op, dst, tmp):
    b("v_mov_b32 v%d, v%d" % (tmp, dst))
    b("v_permlane32_swap_b32 v%d, v%d" % (tmp, dst))
    b("%s v%d, v%d, v%d" % (op, dst, tmp, dst))
    b("v_mov_b32 v%d, v%d" % (tmp, dst))
    b("v_permlane16_swap_b32 v%d, v%d" % (tmp, dst))
    b("%s v%d, v%d, v%d" % (op, dst, tmp, dst))


for blk in range(2):
    blk_max(q, S0 + 8 * blk, 1, 2)
    q("v_sub_f32 v%d, 0, v1" % NM[blk])
    if blk == 1:
        q("v_min_f32 v%d, s%d, v%d" % (NM[blk], sPADM, NM[blk]))
    for j in range(1, 4):
        q("v_mov_b32 v%d, v%d" % (NM[blk] + j, NM[blk]))
    for i in range(8):
        q("v_add_f32 v%d, v%d, v%d" % (S0 + 8 * blk + i, S0 + 8 * blk + i, NM[blk]))
KSEQ = [1, 2, 0, 1, 2, 0, 1, 2, 0, 1, 0, 1, 0, 1, 0, 0]
VSEQ = [1, 2, 0, 1, 2, 0, 1, 2, 0, 1, 2, 1, 2, 1, 2, 1]
for tab, seq in ((sTABK, KSEQ), (sTABV, VSEQ)):
    q("s_mov_b32 s%d, 0x%x" % (tab, sum((seq[i + 1] - seq[i] + 2) << (2 * i) for i in range(15))))
q("s_mov_b32 s%d, 15" % sCNT)
stamp(q, 3)
q.finish(hist=ql.ins)


def v_read(db, u, off):
    return "ds_read_b64_tr_b16 %s, v%d offset:%d" % (vr(VF + 4 * db + 2 * u, 2), aV + db, off + u * 4096)


def ex(S, i):
    return "v_exp_f32 v%d, v%d" % (S + i, S + i)


def cvt(S, j):
    return "v_cvt_pk_bf16_f32 v%d, v%d, v%d" % (PK + j, S + 2 * j, S + 2 * j + 1)


def add(S, i):
    return "v_add_f32 v%d, v%d, v%d" % (vL[i >> 3], vL[i >> 3], S + i)


def pv_list():
    r = []
    for db in range(8):
        for blk in range(2):
            d = vr(ACC + 32 * blk + 4 * db, 4)
            r.append("%s %s, %s, %s, %s" % (M16, d, vr(VF + 4 * db, 4), vr(PK + 4 * blk, 4), d))
    return r


def sum_mfma(blk):
    return "%s %s, %s, %s, %s" % (M16, vr(vL[blk], 4), vr(ONES, 4), vr(PK + 4 * blk, 4), vr(vL[blk], 4))


def max_tree(S):
    r = ["v_max3_f32 v%d, v%d, v%d, v%d" % (vTM, S, S + 1, S + 2)]
    for i in range(3, 15, 2):
        r.append("v_max3_f32 v%d, v%d, v%d, v%d" % (vTM, vTM, S + i, S + i + 1))
    r.append("v_max_f32 v%d, v%d, v%d" % (vTM, vTM, S + 15))
    return r


def epoch_b0(b, S, SN, vrd, kr, adv, sc):
    ga = [[] for _ in range(16)]
    gb = [[] for _ in range(18)]
    nA = {10: 8, 11: 10, 12: 12}[sc]
    for i in range(16):
        ga[i if sc != 12 else min(i, 15)].append(vrd[i])
    pos = [int(i * 16 / nA) for i in range(nA)]
    for i in range(nA):
        ga[pos[i]].append(ex(S, i))
    for j in range(4):
        ga[min(15, pos[2 * j + 1] + 1)].insert(0, cvt(S, j))
    b.add(interleave(qk_list(SN, False), ga))
    b("s_waitcnt lgkmcnt(%d)" % 8)
    pv = pv_list()
    order = [pv[2 * db] for db in range(4)] + ["WAIT"] + [pv[2 * db] for db in range(4, 8)] + [sum_mfma(0)] + \
            [pv[2 * db + 1] for db in range(8)] + [sum_mfma(1)]
    for i in range(nA, 16):
        gb[i - nA].append(ex(S, i))
    for j in range(4, 8):
        gb[max(0, 2 * j + 1 - nA + 1)].append(cvt(S, j))
    for i in range(8):
        gb[4 + i].append(kr[i])
    mx = max_tree(SN)
    for i in range(8):
        gb[9 + i].append(mx[i])
    if adv:
        for tab, dl, gi in ((sTABV, sDELV, 0), (sTABK, sDEL, 1)):
            gb[gi] += ["s_and_b32 s%d, s%d, 3" % (dl, tab), "s_lshr_b32 s%d, s%d, 2" % (tab, tab),
                       "s_sub_u32 s%d, s%d, 2" % (dl, dl), "s_lshl_b32 s%d, s%d, 14" % (dl, dl)]
        for i in range(8):
            gb[9 + i].append("v_add_u32 v%d, s%d, v%d" % (aV + i, sDELV, aV + i))
        for i in range(4):
            gb[13 + i].append("v_add_u32 v%d, s%d, v%d" % (aK + i, sDEL, aK + i))
    k = 0
    for x in order:
        if x == "WAIT":
            b("s_waitcnt lgkmcnt(0)")
            continue
        b(x)
        b.add([y for y in gb[k] if y is not None])
        k += 1


def epoch_p(b, S, SN, vrd, kr, adv, sc):
    A = "e0|t0 t1|e1|t2 c0|e2|t3 t4|e3|t5 c1|e4|t6 t7|e5|t8 c2|e6|t9 e7|t10 c3|t11 e8"
    B = {20: "t12 t13|t14 e9|t15 e10|c4 e11|k0 e12|c5 e13|k1 e14|c6 e15|k2 c7 m0 m1|k3 m2|k4 m3|k5 m4|k6 m5|k7 m6|m7 a|x a|a a|a a",
         21: "t12 t13|t14 e9|t15 e10|c4 e11|e12|c5 e13|e14|c6 e15|k0 c7 m0 m1|k1 k2|k3 m2|k4 m3|k5 m4|k6 m5|k7 m6|m7 a|x a|a a",
         22: "t12 t13|t14 e9|t15 e10|k0 c4 e11|k1 e12|k2 c5 e13|k3 e14|k4 c6 e15|k5 c7 m0 m1|k6 m2|k7 m3|m4 m5|m6 m7|x a|a a|a a|a a|a a"}[sc]
    mx = max_tree(SN)
    adds = []
    if adv:
        adds = ["v_add_u32 v%d, s%d, v%d" % (aV + i, sDELV, aV + i) for i in range(8)] + \
               ["v_add_u32 v%d, s%d, v%d" % (aK + i, sDEL, aK + i) for i in range(4)]

    def ins(tok):
        k, n = tok[0], int(tok[1:]) if len(tok) > 1 else 0
        if k == "a":
            return adds.pop(0) if adds else None
        if k == "x":
            return "v_cmp_lt_f32 vcc, s%d, v%d" % (sTHR, vTM)
        return {"e": lambda: ex(S, n), "t": lambda: vrd[n], "c": lambda: cvt(S, n), "k": lambda: kr[n], "m": lambda: mx[n]}[k]()
    ga = [[ins(x) for x in g.split()] for g in A.split("|")]
    if adv:
        for tab, dl, gi in ((sTABV, sDELV, 1), (sTABK, sDEL, 5)):
            ga[gi] += ["s_and_b32 s%d, s%d, 3" % (dl, tab), "s_lshr_b32 s%d, s%d, 2" % (tab, tab)]
            ga[gi + 2] += ["s_sub_u32 s%d, s%d, 2" % (dl, dl), "s_lshl_b32 s%d, s%d, 14" % (dl, dl)]
    b.add(interleave(qk_list(SN, False), ga))
    pv = pv_list()
    order = [pv[2 * db] for db in range(8)] + [sum_mfma(0)] + [pv[2 * db + 1] for db in range(8)] + [sum_mfma(1)]
    gb = [[ins(x) for x in g.split()] for g in B.split("|")]
    gb[-1] += adds[:]
    nk = 0 if kr[0] is None else 1
    for i, (m_, g) in enumerate(zip(order, gb)):
        if i == 0:
            b("s_waitcnt lgkmcnt(4)")
        if i == 4:
            b("s_waitcnt lgkmcnt(%d)" % (4 + (nk if sc == 22 else 0)))
        b(m_)
        b.add([y for y in g if y is not None])


def epoch(b, par, kread=True, adv=False, tag="", head=()):
    S, SN = (S0, S1) if par == 0 else (S1, S0)
    off = par * 8192
    vrd = [v_read(db, u, off) for db in range(8) for u in range(2)]
    kr = k_reads(off) if kread else [None] * 8
    b("s_waitcnt lgkmcnt(0)")
    b("s_barrier")
    b.add(head)
    SC_ = OPT["sched"]
    if SC_ >= 10:
        if SC_ >= 20:
            epoch_p(b, S, SN, vrd, kr, adv, SC_)
        else:
            epoch_b0(b, S, SN, vrd, kr, adv, SC_)
            b("v_cmp_lt_f32 vcc, s%d, v%d" % (sTHR, vTM))
        b("s_cbranch_vccnz L_resc%s" % tag)
        b("L_back%s:" % tag)
        rescale(tag, SN)
        return
    ga = [[] for _ in range(16)]
    va = {0: [0, 1, 3, 5, 7, 9, 11, 13], 1: [0, 1, 3, 5, 7, 9, 11, 13], 2: [1, 1, 3, 3, 5, 5, 7, 7, 9, 9, 11, 11],
          3: [0, 0, 1, 1, 3, 3, 5, 5]}[SC_]
    for i, gi in enumerate(va):
        ga[gi].append(vrd[i])
    for j in range(7):
        ga[2 * j + 2].append(cvt(S, j))
    for i in range(16):
        if SC_ == 1:
            ga[i].insert(0, ex(S, i))
        else:
            ga[i].append(ex(S, i))
    b.add(interleave(qk_list(SN, False), ga))
    mx = max_tree(SN)
    gb = [[] for _ in range(16)]
    gb[0] = [cvt(S, 7)]
    rest = vrd[len(va):]
    for i, x in enumerate(rest):
        gb[i >> 1].append(x)
    k0 = (len(rest) + 1) // 2
    for i in range(8):
        gb[k0 + i].append(kr[i])
    if not OPT["msum"]:
        order = [0, 8, 1, 9, 2, 10, 3, 11, 4, 12, 5, 13, 6, 14, 7, 15]
        for i in range(8):
            gb[4 + i].append(add(S, order[i]))
        for i in range(8):
            gb[12 + (i >> 1)].append(add(S, order[8 + i]))
    for i in range(8):
        gb[8 + i].append(mx[i])
    gb = [[x for x in g if x is not None] for g in gb]
    if adv:
        for tab, dl, gi in ((sTABV, sDELV, 1), (sTABK, sDEL, 2)):
            gb[gi] += ["s_and_b32 s%d, s%d, 3" % (dl, tab), "s_lshr_b32 s%d, s%d, 2" % (tab, tab),
                       "s_sub_u32 s%d, s%d, 2" % (dl, dl), "s_lshl_b32 s%d, s%d, 14" % (dl, dl)]
        for i in range(8):
            gb[4 + (i >> 1)].append("v_add_u32 v%d, s%d, v%d" % (aV + i, sDELV, aV + i))
        for i in range(4):
            gb[12 + i].append("v_add_u32 v%d, s%d, v%d" % (aK + i, sDEL, aK + i))
    b.add(interleave(pv_list(), gb))
    if OPT["msum"]:
        b(sum_mfma(0))
        b(sum_mfma(1))
    b("v_cmp_lt_f32 vcc, s%d, v%d" % (sTHR, vTM))
    b("s_cbranch_vccnz L_resc%s" % tag)
    b("L_back%s:" % tag)
    rescale(tag, SN)


rare = []


def rescale(tag, SN):
    r = Block("resc" + tag)
    r("L_resc%s:" % tag)
    r("s_nop 15")
    for blk in range(2):
        blk_max(r, SN + 8 * blk, 1, 2)
        r("v_max_f32 v1, 0, v1")
        r("v_sub_f32 v2, 0, v1")
        r("v_exp_f32 v2, v2")
        for j in range(4):
            r("v_sub_f32 v%d, v%d, v1" % (NM[blk] + j, NM[blk] + j))
        for i in range(8):
            r("v_sub_f32 v%d, v%d, v1" % (SN + 8 * blk + i, SN + 8 * blk + i))
        for j in range(4 if OPT["msum"] else 1):
            r("v_mul_f32 v%d, v%d, v2" % (vL[blk] + j, vL[blk] + j))
        for i in range(32):
            r("v_mul_f32 v%d, v%d, v2" % (ACC + 32 * blk + i, ACC + 32 * blk + i))
    r("s_nop 1")
    r("s_branch L_back%s" % tag)
    r.finish()
    rare.append(r)


if STAMPS == 6:
    q.ins.append(parse("s_memtime s[92:93]"))
lp = new("loop")
lp("L_att:")
epoch(lp, 0, True, False, "a")
epoch(lp, 1, True, True, "b",
      head=["s_cmp_lg_u32 s%d, 1" % sCNT, "s_cbranch_scc1 L_noinfo",
            "buffer_load_dword v%d, v%d, s[%d:%d], 0 offen sc1" % (vINF, vINFO, SA, SA + 3), "L_noinfo:"])
loop_end(lp, "L_att")
if OPT["drop"]:
    def keep(i):
        x = i.text
        d = OPT["drop"]
        return not (("t" in d and "_tr_" in x) or ("k" in d and "ds_read_b128" in x) or ("e" in d and "v_exp" in x) or
                    ("c" in d and "v_cvt" in x) or ("m" in d and "v_max" in x) or ("a" in d and ("v_add_u32" in x)) or
                    ("M" in d and "v_mfma" in x))
    lp.ins = [i for i in lp.ins if keep(i)]
lp.finish(hist=q.ins)
pad_hazards(lp.ins, hist=lp.ins, check_only=True, where="loop back edge")

t = new("tail")
if STAMPS == 6:
    t("s_memtime s[94:95]")
    t("s_waitcnt lgkmcnt(0)")
stamp(t, 4)
epoch(t, 0, False, False, "c")
S = S1
for i in range(16):
    t(ex(S, i))
for j in range(8):
    t(cvt(S, j))
if OPT["msum"]:
    t(sum_mfma(0))
    t(sum_mfma(1))
else:
    for i in range(16):
        t(add(S, i))
for nt in range(4):
    t("v_add_u32 v%d, %d, v%d" % (aO1 + nt, STG, aO2 + nt))
for blk in range(2):
    if not OPT["msum"]:
        lane_reduce(t, "v_add_f32", vL[blk], 1)
    t("v_max_f32 v%d, %s, v%d" % (vL[blk], f32(1e-30), vL[blk]))
    t("v_rcp_f32 v%d, v%d" % (vL[blk], vL[blk]))
t("v_mov_b32 v%d, 1" % NM[0])
t("s_add_u32 s%d, s%d, 4096" % (sT2, sE1))
t("s_waitcnt lgkmcnt(0)")
t("s_barrier")
stamp(t, 5)
vrd = [v_read(db, u, 8192) for db in range(8) for u in range(2)]
t.add(vrd[0:10])
OB = QF


def norm(ks):
    r = []
    for blk in range(2):
        a0 = ACC + 32 * blk + 8 * ks
        for j in range(4):
            r.append("v_pk_mul_f32 %s, %s, %s op_sel_hi:[1,0]" % (vr(a0 + 2 * j, 2), vr(a0 + 2 * j, 2), vr(vL[blk], 2)))
        for j in range(4):
            r.append("v_cvt_pk_bf16_f32 v%d, v%d, v%d" % (OB + 16 * blk + 4 * ks + j, a0 + 2 * j, a0 + 2 * j + 1))
    return r


def swaps(ks):
    return ["v_permlane16_swap_b32 v%d, v%d" % (OB + 4 * ks + j, OB + 16 + 4 * ks + j) for j in range(4)]


info = ["v_readlane_b32 s%d, v%d, 0" % (sT0, vINF), "s_nop 0", "v_cmp_eq_u32 vcc, s%d, v%d" % (sT0, vINF),
        "s_nop 0", "s_and_b32 s%d, vcc_lo, 15" % sFAST]
g = [vrd[10:12], vrd[12:14], vrd[14:16], info, [], [], [], []] + [[] for _ in range(8)]
n0, n1 = norm(0), norm(1)
for i in range(4):
    g[8 + i] = n0[4 * i:4 * i + 4]
    g[12 + i] = n1[4 * i:4 * i + 4]
t.add(interleave(pv_list(), g))
t.add(swaps(0))
t.add(norm(2))
t.add(swaps(1))
t.add(norm(3))
t.add(swaps(2))

DYN = OPT["dyn"]
AREG = {0: aO1, 1: aO3, 2: aO1, 3: aO3}
SBUF = {1: S0, 2: KF, 3: XB}
SEQ = [(j, f, nt) for j in range(3) for f in range(8) for nt in range(4)]
SEQ += [(3, f, nt) for nt in (1, 2, 3, 0) for f in range(8)]
sASG, sP, sP4, sWB = sN, sN + 1, sN + 2, sN + 3
OOB = 0x40000000


def w_reads(m):
    if m >= len(SEQ):
        return []
    j, f, nt = SEQ[m]
    ks, y = f >> 1, f & 1
    return ["ds_read_b64_tr_b16 %s, v%d offset:%d" % (vr(VF + 4 * (m & 7) + 2 * u, 2), AREG[j] + nt,
                                                   ks * 8192 + u * 4096 + y * 1024) for u in range(2)]


def bfrag(j, f):
    return OB + 16 * (f & 1) + 4 * (f >> 1) if j == 0 else SBUF[j] + 4 * f


def o_mfma(b, m, extra=()):
    j, f, nt = SEQ[m]
    b("%s %s, %s, %s, %s" % (M32, vr(ACC + 16 * nt, 16), vr(VF + 4 * (m & 7), 4), vr(bfrag(j, f), 4),
                             "0" if (j == 0 and f == 0) else vr(ACC + 16 * nt, 16)))
    b.add(w_reads(m + 8))
    b.add(extra)


for m in range(4):
    t.add(w_reads(m))
t.add(swaps(3))
for m in range(4, 8):
    t.add(w_reads(m))


def uncounted(x):
    i_ = parse(x)
    i_.kind = "comment"
    i_.n = 0
    return i_


def publish(fl):
    return ["buffer_store_dwordx4 %s, v%d, s[%d:%d], s%d offen offset:%d %s" % (vr(bfrag(0, f), 4), vE, SA, SA + 3,
            sE1 if f < 4 else sT2, (f & 3) * 1024, fl) for f in range(8)]


def two_way(b, name, fast, slow):
    if not OPT["fast"]:
        b.add(slow)
        return
    b("s_cmp_eq_u32 s%d, 15" % sFAST)
    b("s_cbranch_scc1 L_%sf" % name)
    b.add(slow)
    b("s_branch L_%sj" % name)
    b("L_%sf:" % name)
    b.add([uncounted(x) for x in fast])
    b("L_%sj:" % name)


flag = "buffer_store_dword v%d, v%d, s[%d:%d], 0 offen" % (NM[0], vM1, SA, SA + 3)
pollld = "buffer_load_dword v%d, v%d, s[%d:%d], 0 offen sc1" % (vTM, vP1, SA, SA + 3)


def sib_load(p, f):
    return "buffer_load_dwordx4 %s, v%d, s[%d:%d], s%d offen offset:%d sc1" % (vr(SBUF[p] + 4 * f, 4), vE, SA, SA + 3,
                                                                           sP if f < 4 else sP4, (f & 3) * 1024)


def try_assign(b, p, name):
    b("v_cmp_eq_u32 vcc, 1, v%d" % vTM)
    b("s_mov_b32 s%d, 0x%x" % (sP, OOB))
    if DYN:
        b("s_andn2_b32 s%d, vcc_lo, s%d" % (sT0, sASG))
    else:
        b("s_and_b32 s%d, vcc_lo, %d" % (sT0, 1 << p))
    b("s_cbranch_scc0 %s" % name)
    b("s_ff1_i32_b32 s%d, s%d" % (sT0, sT0))
    b("s_bitset1_b32 s%d, s%d" % (sASG, sT0))
    b("s_lshl_b32 s%d, s%d, 2" % (sWB, sT0))
    b("s_lshl_b32 s%d, s%d, 15" % (sT0, sT0))
    b("s_xor_b32 s%d, s%d, s%d" % (sP, sE1, sT0))
    b("s_lshr_b32 s%d, 0x0140, s%d" % (sWB, sWB))
    b("s_and_b32 s%d, s%d, 15" % (sWB, sWB))
    b("s_lshl_b32 s%d, s%d, 15" % (sWB, sWB))
    b(name + ":")
    b("s_add_u32 s%d, s%d, 4096" % (sP4, sP))


def decide(b, p):
    b("s_cmp_lg_u32 s%d, 0x%x" % (sP, OOB))
    b("s_cbranch_scc1 L_dec%dd" % p)
    b("s_mov_b32 s%d, 0x100000" % sCNT)
    b("L_dec%d:" % p)
    b(pollld)
    b("s_waitcnt vmcnt(0)")
    try_assign(b, p, "L_dec%da" % p)
    b("s_sub_u32 s%d, s%d, 1" % (sCNT, sCNT))
    b("s_cbranch_scc1 L_dec%dl" % p)
    b("s_cmp_eq_u32 s%d, 0x%x" % (sP, OOB))
    b("s_cbranch_scc1 L_dec%d" % p)
    b("L_dec%dl:" % p)
    b.add([sib_load(p, f) for f in range(8)])
    b("L_dec%dd:" % p)
    for nt in range(4):
        b("v_add_u32 v%d, s%d, v%d" % (AREG[p] + nt, sWB, aO2 + nt))


PB = QF


def send(j):
    a0 = ACC + 8 * j
    return (["s_xor_b32 s%d, s%d, %d" % (sT0, sG, j), "s_lshl_b32 s%d, s%d, 15" % (sT0, sT0),
             "s_add_u32 s%d, s%d, s%d" % (sT0, sT0, sE2P), "s_add_u32 s%d, s%d, %d" % (sT0, sT0, j * 4096)],
            ["v_cvt_pk_bf16_f32 v%d, v%d, v%d" % (a0 + i, a0 + 2 * i, a0 + 2 * i + 1) for i in range(4)] +
            ["buffer_store_dwordx4 %s, v%d, s[%d:%d], s%d offen sc1" % (vr(a0, 4), vE, SA, SA + 3, sT0)])


def fetch(j):
    return ["s_add_u32 s%d, s%d, %d" % (sT3, sE2C, j * 4096),
            "buffer_load_dwordx4 %s, v%d, s[%d:%d], s%d offen sc1" % (vr(PB + 4 * (j - 1), 4), vE, SA, SA + 3, sT3)]


extra = {m: [] for m in range(128)}
vP2, vM2 = 2, NM[1]
poll2 = "buffer_load_dword v%d, v%d, s[%d:%d], 0 offen sc1" % (vTM, vP2, SA, SA + 3)
extra[1] += ["s_lshl_b32 s%d, s%d, 7" % (sT0, sWAVE), "s_add_u32 s%d, s%d, 1024" % (sT0, sT0),
             "v_lshl_add_u32 v%d, v0, 2, s%d" % (vP2, sT0)]
extra[2] += ["v_lshlrev_b32 v1, 2, v0", "v_xor_b32 v1, s%d, v1" % sWGL, "v_lshl_add_u32 v%d, v1, 11, v%d" % (vM2, vP2)]
extra[3] += ["s_lshl_b32 s%d, s%d, 11" % (sT0, sWGL), "v_add_u32 v%d, s%d, v%d" % (vP2, sT0, vP2), "v_subrev_u32 v1, 1, v0"]
extra[4] += ["v_cmp_gt_u32 vcc, 7, v1", "v_bfrev_b32 v1, 1", "s_nop 0", "v_cndmask_b32 v%d, v1, v%d, vcc" % (vP2, vP2),
             "v_cndmask_b32 v%d, v1, v%d, vcc" % (vM2, vM2)]
for i, nt in enumerate((1, 2, 3)):
    base = 104 + 8 * i
    for k_, j in enumerate((2 * nt, 2 * nt + 1)):
        sa, sb_ = send(j)
        extra[base + 2 + 3 * k_] += sa
        extra[base + 3 + 3 * k_] += sb_
for p in (1, 2, 3):
    for f in range(8):
        extra[32 * p - 16 + f].append(uncounted(sib_load(p, f)))
extra[64 - 27].append(pollld)
extra[96 - 27].append(pollld)

t("s_mov_b32 s%d, 0" % sASG)
two_way(t, "pub", publish(""), publish("sc1"))
t(pollld)
stamp(t, 6)
for m in range(128):
    if m == OPT["fat"]:
        t("s_barrier")
    if m == 16:
        t("s_waitcnt vmcnt(0)")
        two_way(t, "flg", [flag], [flag + " sc1"])
        stamp(t, 8)
    if m in (16, 48, 80):
        t("s_waitcnt vmcnt(%d)" % (1 if m == 16 else 0))
        try_assign(t, m // 32 + 1, "L_try%d" % m)
    if m in (24, 56, 88):
        decide(t, m // 32 + 1)
        if m == 24:
            stamp(t, 7)
        if m == 88:
            stamp(t, 9)
    o_mfma(t, m, extra[m])
stamp(t, 10)
sa, sb_ = send(1)
t.add(sa + sb_)
t("s_waitcnt vmcnt(0)")
t("buffer_store_dword v%d, v%d, s[%d:%d], 0 offen sc1" % (NM[0], vM2, SA, SA + 3))
stamp(t, 11)
t("s_mov_b32 s%d, 0x100000" % sCNT)
t("L_poll2:")
t(poll2)
t("s_sub_u32 s%d, s%d, 1" % (sCNT, sCNT))
t("s_cbranch_scc1 L_poll2e")
t("s_waitcnt vmcnt(0)")
t("v_cmp_eq_u32 vcc, 1, v%d" % vTM)
t("s_cmp_lg_u32 vcc_lo, 0xfe")
t("s_cbranch_scc1 L_poll2")
t("L_poll2e:")
stamp(t, 12)
for j in range(1, 8):
    t.add(fetch(j))
for j in range(1, 8):
    for i in range(4):
        p = PB + 4 * (j - 1) + i
        t("v_lshlrev_b32 v1, 16, v%d" % p)
        t("v_and_b32 v%d, 0xffff0000, v%d" % (p, p))
        t("v_add_f32 v%d, v%d, v1" % (ACC + 2 * i, ACC + 2 * i))
        t("v_add_f32 v%d, v%d, v%d" % (ACC + 2 * i + 1, ACC + 2 * i + 1, p))
for j in range(4):
    t("v_cvt_pk_bf16_f32 v%d, v%d, v%d" % (ACC + 8 + j, ACC + 2 * j, ACC + 2 * j + 1))
t("buffer_store_dwordx4 %s, v%d, s[%d:%d], s%d offen" % (vr(ACC + 8, 4), vOUT, SB, SB + 3, sOFF))
if STAMPS:
    t("s_waitcnt vmcnt(0)")
    stamp(t, 13)
    if STAMPS != 6:
        t("s_memtime s[94:95]")
        t("s_waitcnt lgkmcnt(0)")
    t("s_sub_u32 s%d, s94, s92" % (sSTAMP + 28))
    t("s_getreg_b32 s%d, hwreg(HW_REG_XCC_ID)" % (sSTAMP + 30))
    for i in range(16):
        t("v_mov_b32 v%d, s%d" % (ACC + 16 + i, sSTAMP + 2 * i))
    t("s_lshl_b32 s%d, s2, 2" % sT0)
    t("s_add_u32 s%d, s%d, s%d" % (sT0, sT0, sWAVE))
    t("s_lshl_b32 s%d, s%d, 6" % (sT0, sT0))
    t("s_add_u32 s%d, s%d, %d" % (sT0, sT0, ST_OFF))
    srd(t, SA, sWS, None, "0x10000000")
    t("v_mov_b32 v1, 0")
    t("s_mov_b64 exec, 1")
    for i in range(4):
        t("buffer_store_dwordx4 %s, v1, s[%d:%d], s%d offen offset:%d" % (vr(ACC + 16 + 4 * i, 4), SA, SA + 3, sT0, 16 * i))
if PROBE >= 0:
    stamp(t, 13)
    t("s_add_u32 s%d, s%d, 6000" % (sT2, sSTAMP + (2 if PROBE else 0)))
    t("L_spin:")
    t("s_sleep 2")
    t("s_memrealtime s[%d:%d]" % (sSTAMP + 4, sSTAMP + 5))
    t("s_waitcnt lgkmcnt(0)")
    t("s_sub_u32 s%d, s%d, s%d" % (sT0, sSTAMP + 4, sT2))
    t("s_cmp_lt_i32 s%d, 0" % sT0)
    t("s_cbranch_scc1 L_spin")
t("L_end:")
t("s_endpgm")
t.finish(hist=lp.ins, vmq=[{vINF}])
for r in rare:
    blocks.append(r)

hdr = open("standalone__mha_block_cached__near_ridge.s.ref").read().split("; Override launch")[0]
out = [hdr.rstrip()]
out.append("; @launch grid=(256,1,1) block=(512,1,1) lds=163840")
out.append('.amdgcn_target "amdgcn-amd-amdhsa--gfx950"')
out.append(".text")
out.append(".globl " + KNAME)
out.append(".p2align 8")
out.append(".type %s,@function" % KNAME)
out.append(KNAME + ":")
for b in blocks:
    out.append("; ---- %s ----" % b.name)
    out.append(b.text())
out.append("L_codeend:")
out.append(".p2align 8")
out.append(".fill 64, 4, 0xbf800000")
out.append('.section .rodata,"a"')
out.append(".p2align 6")
out.append(".amdhsa_kernel " + KNAME)
out.append("""  .amdhsa_next_free_vgpr 256
  .amdhsa_next_free_sgpr 102
  .amdhsa_accum_offset 256
  .amdhsa_group_segment_fixed_size 0
  .amdhsa_kernarg_size 64
  .amdhsa_user_sgpr_count 2
  .amdhsa_user_sgpr_kernarg_segment_ptr 1
  .amdhsa_system_sgpr_workgroup_id_x 1
.end_amdhsa_kernel""")
print("\n".join(out))
```

```python
import sys, struct, math
from asmgen import *

OPT = dict(stamps=0, probe=-1, nt_kv="nt", nt_x="", nt_w="nt", nt_wo="nt", thr=8.0, force_rescale=0,
           prio_x=2, prio_w=2, codepf=1, fast=1, dyn=0, fat=12, wsbase=0, wopf=-1, wopf_fl="nt", qdiag=0,
           early="0.1.2.3", k_at="6.7.8.8", v_at="6.7.8.8", dynld=1, noload=0, msum=1, sched=21, drop="", ksw=32, vsw=32, thr0=12, thr1=8, kd="5:15.3:22.2", vd="5:17.3:24.2")
for a in sys.argv[1:]:
    k, v = a.split("=")
    OPT[k] = type(OPT[k])(v) if not isinstance(OPT[k], str) else v.replace("_", " ").strip()
STAMPS = OPT["stamps"]

KNAME = "standalone__mha_block_cached__near_ridge_kernel"


def f32(x):
    return "0x%08x" % struct.unpack("<I", struct.pack("<f", x))[0]


CSC = math.log2(math.e) / math.sqrt(128.0)

KRING, VRING, STG, XREG = 0, 49152, 98304, 32768
MB_OFF, E1_OFF, E2_OFF, ST_OFF = 0x0, 0x100000, 0x900000, 0x4000000
sX, sK, sV, sWQ, sWO, sOUT, sDBG, sWS = 4, 6, 8, 10, 12, 14, 16, 18
sWAVE, sG, sB, sHN, sH, sWGL = 20, 21, 22, 23, 24, 25
SA, SB, SC = 28, 32, 36
sOFF, sLDS, sCNT, sT0, sT1, sT2 = 40, 41, 42, 43, 44, 45
sCS, sPAIR, sDEL, sE1, sE2P, sE2C = 46, 47, 48, 49, 50, 51
sTHR, sFAST, sK16, sPADM = 52, 53, 54, 55
sVALID = 26
sN = 56
sTG = 96
sMISS, sT3 = 100, 101
sBEG, sEND, sTABK, sTABV, sDELV = 26, 27, 96, 97, 98
TAGK = 0x405
sSTAMP = 64
vE, vLO, vTM, aX = 4, 5, 6, 7
aK, aW, aV = 8, 12, 16
NM = (24, 28)
ACC, QF, S0, S1, KF, VF, XB = 32, 96, 128, 144, 160, 192, 224
PK = XB
vL = (232, 236)
ONES = 244
vM1, vINFO, vINF, vOUT, vP1 = 240, 242, 243, 7, 3
def nib(txt):
    return sum(int(x) << (4 * i) for i, x in enumerate(txt.split(".")))


NQB = 9
aWq, aXq = 96, 104
M16 = "v_mfma_f32_16x16x32_bf16"
M32 = "v_mfma_f32_32x32x16_bf16"


PROBE = OPT["probe"]


def stamp(b, idx, force=False):
    if STAMPS == 5 and 1 <= idx <= 4:
        if force:
            b("s_memrealtime s[%d:%d]" % (sSTAMP + 2 * idx, sSTAMP + 2 * idx + 1))
        return
    if force:
        return
    if PROBE == idx:
        b("s_memrealtime s[%d:%d]" % (sSTAMP + 2, sSTAMP + 3))
        b("s_waitcnt lgkmcnt(0)")
    if PROBE == 40 + idx:
        b("s_memtime s[%d:%d]" % (sSTAMP + 2, sSTAMP + 3))
        b("s_waitcnt lgkmcnt(0)")
        b("s_sub_u32 s%d, s%d, s%d" % (sSTAMP + 2, sSTAMP + 2, sSTAMP + 6))
        b("s_lshr_b32 s%d, s%d, 4" % (sSTAMP + 2, sSTAMP + 2))
        b("s_add_u32 s%d, s%d, s%d" % (sSTAMP + 2, sSTAMP + 2, sSTAMP))
    if STAMPS == 3 and 1 <= idx <= 6:
        return
    if STAMPS:
        b("s_memrealtime s[%d:%d]" % (sSTAMP + 2 * idx, sSTAMP + 2 * idx + 1))
        b("s_waitcnt lgkmcnt(0)")


def srd(b, dst, ptr, off_sreg, size):
    if off_sreg is None:
        b("s_mov_b32 s%d, s%d" % (dst, ptr))
        b("s_mov_b32 s%d, s%d" % (dst + 1, ptr + 1))
    else:
        b("s_add_u32 s%d, s%d, s%d" % (dst, ptr, off_sreg))
        b("s_addc_u32 s%d, s%d, 0" % (dst + 1, ptr + 1))
    b("s_mov_b32 s%d, %s" % (dst + 2, size))
    b("s_mov_b32 s%d, 0x20000" % (dst + 3))


def dma_group(b, S, voffs, soff, flags, n=4):
    for p in range(n):
        o = " offset:%d" % (p * 1024) if p else ""
        b("buffer_load_dwordx4 v%d, s[%d:%d], s%d offen%s %s lds" % (voffs[p], S, S + 3, soff, o, flags))


blocks = []


def new(name):
    b = Block(name)
    blocks.append(b)
    return b


e = new("entry")
e("L_start:")
e("s_cmp_ge_u32 s2, 256")
e("s_cbranch_scc1 L_end")
e("s_load_dwordx16 s[4:19], s[0:1], 0")
if PROBE >= 0:
    e("s_memrealtime s[%d:%d]" % (sSTAMP, sSTAMP + 1))
    e("s_memtime s[%d:%d]" % (sSTAMP + 6, sSTAMP + 7))
if STAMPS:
    e("s_memrealtime s[%d:%d]" % (sSTAMP, sSTAMP + 1))
    e("s_memtime s[92:93]")
e("v_lshrrev_b32 v1, 6, v0")
e("v_and_b32 v0, 63, v0")
e("v_readfirstlane_b32 s%d, v1" % sWAVE)
e("s_and_b32 s%d, s2, 7" % sG)
e("s_lshr_b32 s%d, s2, 5" % sB)
e("s_lshr_b32 s%d, s2, 3" % sHN)
e("s_and_b32 s%d, s%d, 3" % (sHN, sHN))
e("s_lshl_b32 s%d, s%d, 2" % (sH, sG))
e("s_add_u32 s%d, s%d, s%d" % (sH, sH, sHN))
e("s_lshl_b32 s%d, s%d, 5" % (sWGL, sB))
e("s_add_u32 s%d, s%d, s%d" % (sWGL, sWGL, sH))
e("s_cmp_lt_u32 s%d, 4" % sWAVE)
e("s_cbranch_scc1 L_compute")
e("v_lshrrev_b32 v1, 4, v0")
e("v_and_b32 v3, 15, v0")
e("v_lshlrev_b32 v2, 2, v1")
e("v_xor_b32 v2, v2, v3")
e("v_lshlrev_b32 v2, 4, v2")
e("s_cmp_eq_u32 s%d, 6" % sWAVE)
e("s_cbranch_scc1 L_ldx")
e("s_cmp_eq_u32 s%d, 7" % sWAVE)
e("s_cbranch_scc1 L_ldw")
e("s_cmp_eq_u32 s%d, 5" % sWAVE)
e("s_cbranch_scc1 L_ldv")
e.finish()

WOV = [14, 15, 16, 17]


def wo_setup(b):
    b("v_lshl_add_u32 v14, v1, 10, v2")
    b("v_add_u32 v15, 3072, v14")
    b("v_add_u32 v16, 6144, v14")
    b("v_add_u32 v17, 9216, v14")
    b("s_lshl_b32 s%d, s%d, 19" % (sT0, sG))
    b("s_lshl_b32 s%d, s%d, 8" % (sT1, sHN))
    b("s_add_u32 s%d, s%d, s%d" % (sT0, sT0, sT1))
    b("s_sub_u32 s%d, 0x400000, s%d" % (sT1, sT0))
    srd(b, SB, sWO, sT0, "s%d" % sT1)


def kv_tile(b, voffs):
    fl = OPT["nt_kv"]
    if OPT["noload"] and b.name in ("ldk", "ldv") and any(i.text.startswith("L_%sd:" % b.name[2]) for i in b.ins):
        return
    b("s_mov_b32 m0, s%d" % sLDS)
    b("s_add_u32 s%d, s%d, 4096" % (sT0, sLDS))
    dma_group(b, SA, voffs, sOFF, fl)
    b("s_mov_b32 m0, s%d" % sT0)
    b("s_add_u32 s%d, s%d, 4096" % (sOFF, sOFF))
    dma_group(b, SA, voffs, sOFF, fl)
    b("s_add_u32 s%d, s%d, 4096" % (sOFF, sOFF))
    b("s_add_u32 s%d, s%d, 8192" % (sLDS, sLDS))
    b("s_cmp_eq_u32 s%d, s%d" % (sLDS, sEND))
    b("s_cselect_b32 s%d, s%d, s%d" % (sLDS, sBEG, sLDS))


def wo_tile(b):
    b("s_mov_b32 m0, s%d" % sLDS)
    b("s_add_u32 s%d, s%d, 4096" % (sT0, sLDS))
    dma_group(b, SB, WOV, sOFF, OPT["nt_wo"])
    b("s_mov_b32 m0, s%d" % sT0)
    b("s_add_u32 s%d, s%d, 16384" % (sOFF, sOFF))
    dma_group(b, SB, WOV, sOFF, OPT["nt_wo"])
    b("s_add_u32 s%d, s%d, 16384" % (sOFF, sOFF))


def loop_begin(b, label, n):
    b("s_mov_b32 s%d, %d" % (sCNT, n))
    b(label + ":")


def loop_end(b, label):
    b("s_sub_u32 s%d, s%d, 1" % (sCNT, sCNT))
    b("s_cmp_lg_u32 s%d, 0" % sCNT)
    b("s_cbranch_scc1 " + label)


b = new("ldk")
b("L_ldk:")
for p in range(4):
    b("v_add_u32 v4, %d, v1" % (4 * p))
    b("v_xor_b32 v4, v4, v3")
    b("v_lshlrev_b32 v4, 4, v4")
    b("v_lshl_add_u32 v%d, v1, 8, v4" % (10 + p))
b("s_lshl_b32 s%d, s%d, 18" % (sT0, sWGL))
b("s_waitcnt lgkmcnt(0)")
srd(b, SA, sK, sT0, "0x40000")
b("s_mov_b32 s%d, 0" % sOFF)
b("s_mov_b32 s%d, %d" % (sLDS, KRING))
b("s_mov_b32 s%d, %d" % (sBEG, KRING))
b("s_mov_b32 s%d, %d" % (sEND, KRING + 49152))
KV4 = [10, 11, 12, 13]
wo_setup(b)


def tiles(b, label, voffs, n):
    if n > 1:
        b("s_mov_b32 s%d, %d" % (sT3, n))
        b(label + ":")
        kv_tile(b, voffs)
        b("s_sub_u32 s%d, s%d, 1" % (sT3, sT3))
        b("s_cmp_lg_u32 s%d, 0" % sT3)
        b("s_cbranch_scc1 " + label)
    elif n:
        kv_tile(b, voffs)


def q_phase_kv(b, tag, voffs, txt, hooks):
    early = [int(x) for x in OPT["early"].split(".")]
    at = [int(x) for x in txt.split(".")]
    assert max(early) <= at[0] and at == sorted(at) and at[2] >= 6
    b("s_add_u32 s%d, s%d, s%d" % (sT1, sB, sHN))
    b("s_and_b32 s%d, s%d, 3" % (sT1, sT1))
    b("s_lshl_b32 s%d, s%d, 2" % (sT1, sT1))
    b("s_lshr_b32 s%d, %d, s%d" % (sT1, sum(x << (4 * i) for i, x in enumerate(early)), sT1))
    b("s_and_b32 s%d, s%d, 15" % (sCNT, sT1))
    for i in range(8):
        b("s_barrier")
        b.add(hooks.get(i, []))
        if i in early:
            b("s_cmp_lg_u32 s%d, %d" % (sCNT, i))
            b("s_cbranch_scc1 L_%se%d" % (tag, i))
            b("s_swappc_b64 s[60:61], s[62:63]") if False else None
            tiles(b, "L_%sei%d" % (tag, i), voffs, 2)
            b("L_%se%d:" % (tag, i))
        tiles(b, "L_%sq%d" % (tag, i), voffs, at.count(i))
    if tag == "k":
        b("s_waitcnt vmcnt(%d)" % (8 * sum(x < 8 for x in at)))
    b("s_barrier")
    tiles(b, "L_%sq8" % tag, voffs, at.count(8))
    return 2 + sum(x <= 8 for x in at)


def att_phase_kv(b, tag, voffs, nxt, lead, dtxt, free_at, switch, stamps=False):
    steps = [x.split(":") for x in dtxt.split(".")]

    def depth(t):
        for st in steps:
            if len(st) == 1 or t < int(st[1]):
                return int(st[0])
    plan = []
    for t in range(32):
        need = t + lead
        wait = 8 * (nxt - 1 - need) if need <= 31 else None
        assert wait is None or wait >= 0, (tag, t)
        n = 0
        while nxt <= 31 and nxt <= need + depth(t) and n < 2:
            assert free_at(nxt) <= t, (tag, t, nxt)
            nxt += 1
            n += 1
        plan.append((wait, n, nxt))
    assert nxt == 32
    t = 0
    switched = False
    while t < 32:
        wait, n, after = plan[t]
        first = after - n
        if not switched and first >= switch[0]:
            assert first <= switch[1]
            b(switch[2])
            switched = True
        u = t
        while u + 1 < 32 and plan[u + 1][:2] == (wait, n) and (switched or plan[u + 1][2] - n < switch[0]) and u + 1 not in (30, 31):
            u += 1
        cnt = u - t + 1
        if cnt > 1:
            loop_begin(b, "L_%sa%d" % (tag, t), cnt)
        if wait is not None:
            b("s_waitcnt vmcnt(%d)" % wait)
        if stamps:
            b("s_memrealtime s[60:61]")
            b("s_waitcnt lgkmcnt(0)")
        b("s_barrier")
        if stamps:
            b("s_memrealtime s[62:63]")
            b("s_waitcnt lgkmcnt(0)")
            if cnt > 1:
                b("s_sub_u32 m0, %d, s%d" % (u + 1, sCNT))
            else:
                b("s_mov_b32 m0, %d" % t)
            b("s_nop 0")
            b("v_writelane_b32 v20, s60, m0")
            b("v_writelane_b32 v21, s62, m0")
        tiles(b, "L_%sai%d" % (tag, t), voffs, n)
        if cnt > 1:
            loop_end(b, "L_%sa%d" % (tag, t))
        if tag == "k" and u == 30:
            b("s_xor_b32 s%d, s%d, 3" % (sOFF, sHN))
            b("s_lshl_b32 s%d, s%d, 17" % (sOFF, sOFF))
            b("s_mov_b32 s%d, %d" % (sLDS, KRING))
            loop_begin(b, "L_k2", 4)
            wo_tile(b)
            b("s_add_u32 s%d, s%d, 8192" % (sLDS, sLDS))
            loop_end(b, "L_k2")
        t = u + 1


def att_phase_dyn(b, tag, voffs, nxt, lead, f1, f2, tend, tsw, sw_at, sw_reg, sw_val, stamps=False):
    sT, sNXT, sA, sVM, sLIM, sTH = sCNT, 56, 57, 58, 59, 53
    b("s_mov_b32 s%d, 0" % sT)
    b("s_mov_b32 s%d, %d" % (sNXT, nxt))
    b("s_mov_b32 s%d, %d" % (sTH, OPT["thr0"]))
    b("L_%sd:" % tag)
    b("s_sub_u32 s%d, s%d, s%d" % (sA, sNXT, sT))
    for a_ in (2, 3, 1, 4, 5):
        b("s_cmp_eq_u32 s%d, %d" % (sA, lead + 1 + a_))
        b("s_cbranch_scc1 L_%sd%d" % (tag, a_))
    b("s_waitcnt vmcnt(0)")
    for a_ in range(1, 6):
        b("L_%sd%d:" % (tag, a_))
        b("s_waitcnt vmcnt(%d)" % (8 * a_))
    if stamps:
        b("s_memrealtime s[60:61]")
        b("s_waitcnt lgkmcnt(0)")
    b("s_barrier")
    if stamps:
        b("s_memrealtime s[62:63]")
        b("s_waitcnt lgkmcnt(0)")
        b("s_mov_b32 m0, s%d" % sT)
        b("s_nop 0")
        b("v_writelane_b32 v20, s60, m0")
        b("v_writelane_b32 v21, s62, m0")
    b("s_getreg_b32 s%d, hwreg(HW_REG_IB_STS, 22, 2)" % sA)
    b("s_getreg_b32 s%d, hwreg(HW_REG_IB_STS, 0, 4)" % sVM)
    b("s_lshl_b32 s%d, s%d, 4" % (sA, sA))
    b("s_or_b32 s%d, s%d, s%d" % (sVM, sVM, sA))
    if stamps:
        b("s_lshl_b32 s%d, s%d, 8" % (sLIM, sNXT))
        b("s_or_b32 s%d, s%d, s%d" % (sLIM, sLIM, sVM))
        b("s_add_u32 m0, s%d, 32" % sT)
        b("s_nop 0")
        b("v_writelane_b32 v20, s%d, m0" % sLIM)
    b("L_%sdi:" % tag)
    b("s_cmp_le_u32 s%d, 21" % sNXT)
    b("s_cselect_b32 s%d, %d, %d" % (sLIM, f1, f2))
    b("s_add_u32 s%d, s%d, s%d" % (sLIM, sLIM, sT))
    b("s_min_u32 s%d, s%d, 31" % (sLIM, sLIM))
    b("s_cmp_gt_u32 s%d, s%d" % (sNXT, sLIM))
    b("s_cbranch_scc1 L_%sdn" % tag)
    b("s_cmp_le_u32 s%d, s%d" % (sVM, sTH))
    b("s_cbranch_scc1 L_%sdg" % tag)
    b("s_add_u32 s%d, s%d, %d" % (sLIM, sT, lead + 1))
    b("s_cmp_gt_u32 s%d, s%d" % (sNXT, sLIM))
    b("s_cbranch_scc1 L_%sdn" % tag)
    b("L_%sdg:" % tag)
    b("s_cmp_eq_u32 s%d, %d" % (sNXT, sw_at))
    b("s_cselect_b32 s%d, %d, s%d" % (sw_reg, sw_val, sw_reg))
    kv_tile(b, voffs)
    b("s_add_u32 s%d, s%d, 1" % (sNXT, sNXT))
    b("s_add_u32 s%d, s%d, 8" % (sVM, sVM))
    b("s_branch L_%sdi" % tag)
    b("L_%sdn:" % tag)
    if stamps:
        b("s_memrealtime s[62:63]")
        b("s_waitcnt lgkmcnt(0)")
        b("s_add_u32 m0, s%d, 32" % sT)
        b("s_nop 0")
        b("v_writelane_b32 v21, s62, m0")
    b("s_add_u32 s%d, s%d, 1" % (sT, sT))
    b("s_cmp_eq_u32 s%d, %d" % (sT, tsw))
    b("s_cselect_b32 s%d, %d, s%d" % (sTH, OPT["thr1"], sTH))
    b("s_cmp_lt_u32 s%d, %d" % (sT, tend))
    b("s_cbranch_scc1 L_%sd" % tag)


pre = None
if OPT["wopf"] >= 0:
    b("s_lshl_b32 s%d, s%d, 19" % (sT0, sG))
    b("s_lshr_b32 s%d, s2, 3" % sT1)
    b("s_lshl_b32 s%d, s%d, 14" % (sT1, sT1))
    b("s_add_u32 s%d, s%d, s%d" % (sT0, sT0, sT1))
    srd(b, SC, sWO, sT0, "16384")
    b("v_lshlrev_b32 v18, 7, v0")
    b("v_add_u32 v19, 8192, v18")
    pre = (OPT["wopf"], ["buffer_load_dword v20, v18, s[%d:%d], 0 offen %s" % (SC, SC + 3, OPT["wopf_fl"]),
                         "buffer_load_dword v21, v19, s[%d:%d], 0 offen %s" % (SC, SC + 3, OPT["wopf_fl"])])
NK0 = q_phase_kv(b, "k", KV4, OPT["k_at"], {pre[0]: pre[1]} if pre else {})
if OPT["dynld"]:
    att_phase_dyn(b, "k", KV4, NK0, 2, 7, 5, 30, OPT["ksw"], 19, sEND, KRING + 32768)
    b("s_xor_b32 s%d, s%d, 3" % (sOFF, sHN))
    b("s_lshl_b32 s%d, s%d, 17" % (sOFF, sOFF))
    b("s_mov_b32 s%d, %d" % (sLDS, KRING))
    b("s_barrier")
    loop_begin(b, "L_k2", 4)
    wo_tile(b)
    b("s_add_u32 s%d, s%d, 8192" % (sLDS, sLDS))
    loop_end(b, "L_k2")
    b("s_barrier")
else:
    att_phase_kv(b, "k", KV4, NK0, 2, OPT["kd"], lambda j: max(0, (j - 6 if j <= 21 else j - 4) - 1), (18, 21, "s_mov_b32 s%d, %d" % (sEND, KRING + 32768)))
b("s_waitcnt vmcnt(0)")
b("s_barrier")
b("s_endpgm")
b.finish(hist=e.ins)

b = new("ldv")
b("L_ldv:")
for par in range(2):
    b("v_lshlrev_b32 v4, 1, v1")
    b("v_xor_b32 v4, v4, v3")
    if par:
        b("v_xor_b32 v4, 8, v4")
    b("v_lshlrev_b32 v4, 4, v4")
    b("v_lshl_add_u32 v%d, v1, 8, v4" % (10 + par))
b("s_lshl_b32 s%d, s%d, 18" % (sT0, sWGL))
b("s_waitcnt lgkmcnt(0)")
srd(b, SA, sV, sT0, "0x40000")
b("s_mov_b32 s%d, 0" % sOFF)
b("s_mov_b32 s%d, %d" % (sLDS, VRING + 2 * 8192))
b("s_mov_b32 s%d, %d" % (sBEG, VRING))
b("s_mov_b32 s%d, %d" % (sEND, VRING + 49152))
V4 = [10, 11, 10, 11]
b("s_mov_b32 s%d, %d" % (sT0, OPT["wsbase"]))
srd(b, SC, sWS, sT0, "0x%x" % (0x10000000 - OPT["wsbase"]))
b("v_mov_b32 v4, 0")
b("v_mov_b32 v5, 0")
b("s_lshl_b32 s%d, s%d, 11" % (sT0, sWGL))
b("v_lshlrev_b32 v8, 3, v0")
b("buffer_store_dwordx2 v[4:5], v8, s[%d:%d], s%d offen sc1" % (SC, SC + 3, sT0))
b("buffer_store_dwordx2 v[4:5], v8, s[%d:%d], s%d offen offset:1024 sc1" % (SC, SC + 3, sT0))
b("s_getreg_b32 s%d, hwreg(HW_REG_XCC_ID, 0, 4)" % sT1)
b("s_add_u32 s%d, s%d, 1" % (sT1, sT1))
b("v_mov_b32 v7, s%d" % sT1)
b("s_mov_b64 exec, 1")
b("buffer_store_dword v7, v4, s[%d:%d], s%d offen offset:512 sc1" % (SC, SC + 3, sT0))
b("s_mov_b64 exec, -1")
b("s_lshl_b32 s%d, s%d, 5" % (sT0, sB))
b("s_add_u32 s%d, s%d, s%d" % (SB, sDBG, sT0))
b("s_addc_u32 s%d, s%d, 0" % (SB + 1, sDBG + 1))
b("s_mov_b32 s%d, 1" % (SB + 2))
NV0 = q_phase_kv(b, "v", V4, OPT["v_at"],
           {0: ["s_waitcnt vmcnt(0)", "s_atomic_add s%d, s[%d:%d], 0x0" % (SB + 2, SB, SB + 1)]})
if OPT["dynld"]:
    att_phase_dyn(b, "v", V4, NV0, 0, 5, 3, 32, OPT["vsw"], 18, sBEG, VRING + 16384, STAMPS == 1)
else:
    att_phase_kv(b, "v", V4, NV0, 0, OPT["vd"], lambda j: (j - 6 if j <= 21 else j - 4) + 1, (16, 21, "s_mov_b32 s%d, %d" % (sBEG, VRING + 16384)), STAMPS == 1)
b("s_barrier")
if STAMPS:
    srd(b, SA, sWS, None, "0x10000000")
    b("s_lshl_b32 s%d, s2, 9" % sT0)
    b("s_add_u32 s%d, s%d, %d" % (sT0, sT0, ST_OFF + 0x100000))
    b("v_lshlrev_b32 v1, 2, v0")
    b("buffer_store_dword v20, v1, s[%d:%d], s%d offen" % (SA, SA + 3, sT0))
    b("buffer_store_dword v21, v1, s[%d:%d], s%d offen offset:256" % (SA, SA + 3, sT0))
b("s_endpgm")
b.finish(hist=e.ins)


def q_loader(b, tag, gstep, kstep_shift, ldsbase, blk, flags):
    def chunk():
        b("s_lshl_b32 s%d, s%d, %d" % (sOFF, sT2, kstep_shift))
        b("s_mov_b32 m0, s%d" % sLDS)
        b("s_add_u32 s%d, s%d, 1" % (sT2, sT2))
        dma_group(b, SA, [10, 11, 12, 13], sOFF, flags)
        for g in range(1, 4):
            b("s_add_u32 m0, s%d, %d" % (sLDS, 4096 * g))
            b("s_add_u32 s%d, s%d, %d" % (sOFF, sOFF, gstep))
            dma_group(b, SA, [10, 11, 12, 13], sOFF, flags)
        b("s_and_b32 s%d, s%d, 7" % (sT2, sT2))
        b("s_add_u32 s%d, s%d, 32768" % (sLDS, sLDS))
        b("s_cmp_eq_u32 s%d, %d" % (sLDS, ldsbase - STG + XREG + 32768))
        b("s_cselect_b32 s%d, %d, s%d" % (sLDS, ldsbase, sLDS))
        b("s_cmp_eq_u32 s%d, %d" % (sLDS, ldsbase + 65536))
        b("s_cselect_b32 s%d, %d, s%d" % (sLDS, ldsbase - STG + XREG, sLDS))
    b("s_lshl_b32 s%d, s%d, 1" % (sT2, sHN))
    b("s_add_u32 s%d, s%d, s%d" % (sT2, sT2, sB))
    b("s_and_b32 s%d, s%d, 7" % (sT2, sT2))
    b("s_mov_b32 s%d, %d" % (sLDS, ldsbase))
    loop_begin(b, "L_%s0" % tag, 2)
    chunk()
    loop_end(b, "L_%s0" % tag)
    loop_begin(b, "L_%s1" % tag, 6)
    if STAMPS == 4:
        b("s_memrealtime s[58:59]")
        b("s_waitcnt lgkmcnt(0)")
    b("s_waitcnt vmcnt(16)")
    if STAMPS == 4:
        b("s_memrealtime s[60:61]")
        b("s_waitcnt lgkmcnt(0)")
    b("s_barrier")
    if STAMPS == 4:
        b("s_memrealtime s[62:63]")
        b("s_waitcnt lgkmcnt(0)")
        b("s_mov_b32 m0, s%d" % sCNT)
        b("s_nop 0")
        b("v_writelane_b32 v19, s58, m0")
        b("v_writelane_b32 v20, s60, m0")
        b("v_writelane_b32 v21, s62, m0")
    chunk()
    loop_end(b, "L_%s1" % tag)
    wo_setup(b)
    b("s_waitcnt vmcnt(16)")
    b("s_barrier")
    b("s_waitcnt vmcnt(0)")
    b("s_barrier")
    b("s_barrier")
    b("s_setprio 0")
    first = 4 if blk == 0 else 2
    for i in range(first + 1):
        b("s_barrier")
    b("s_xor_b32 s%d, s%d, %d" % (sOFF, sHN, blk))
    b("s_lshl_b32 s%d, s%d, 17" % (sOFF, sOFF))
    b("s_mov_b32 s%d, %d" % (sLDS, STG + blk * 32768))
    loop_begin(b, "L_%s2" % tag, 4)
    wo_tile(b)
    b("s_add_u32 s%d, s%d, 8192" % (sLDS, sLDS))
    for i in range(4):
        b("s_barrier")
    loop_end(b, "L_%s2" % tag)
    b("s_xor_b32 s%d, s%d, 2" % (sOFF, sHN))
    b("s_lshl_b32 s%d, s%d, 17" % (sOFF, sOFF))
    b("s_add_u32 s%d, s%d, %d" % (sOFF, sOFF, blk * 65536))
    b("s_mov_b32 s%d, %d" % (sLDS, XREG + blk * 16384))
    wo_tile(b)
    b("s_add_u32 s%d, s%d, 8192" % (sLDS, sLDS))
    if tag == "w":
        b("s_lshl_b32 s%d, s%d, 5" % (sT0, sB))
        b("s_add_u32 s%d, s%d, s%d" % (SC, sDBG, sT0))
        b("s_addc_u32 s%d, s%d, 0" % (SC + 1, sDBG + 1))
        b("s_load_dword s%d, s[%d:%d], 0x0 glc" % (SC + 2, SC, SC + 1))
    for i in range(4):
        b("s_barrier")
    wo_tile(b)
    done = first + 20
    if tag == "w":
        for i in range(3):
            b("s_barrier")
        done += 3
        b("s_mov_b32 s%d, 0x100000" % sCNT)
        b("s_branch L_wchk")
        b("L_wpoll:")
        b("s_load_dword s%d, s[%d:%d], 0x0 glc" % (SC + 2, SC, SC + 1))
        b("L_wchk:")
        b("s_waitcnt lgkmcnt(0)")
        b("s_sub_u32 s%d, s%d, 1" % (sCNT, sCNT))
        b("s_cbranch_scc1 L_wpolld")
        b("s_cmp_lt_u32 s%d, 32" % (SC + 2))
        b("s_cbranch_scc1 L_wpoll")
        b("L_wpolld:")
    for i in range(30 - done):
        b("s_barrier")
    b("s_waitcnt vmcnt(0)")
    b("s_barrier")
    b("s_barrier")
    if STAMPS == 4:
        srd(b, SA, sWS, None, "0x10000000")
        b("s_lshl_b32 s%d, s2, 11" % sT0)
        b("s_add_u32 s%d, s%d, %d" % (sT0, sT0, ST_OFF + 0x200000 + blk * 1024))
        b("v_lshlrev_b32 v1, 2, v0")
        for i in range(3):
            b("buffer_store_dword v%d, v1, s[%d:%d], s%d offen offset:%d" % (19 + i, SA, SA + 3, sT0, 256 * i))
    b("s_endpgm")


b = new("ldx")
b("L_ldx:")
b("s_setprio %d" % OPT["prio_x"])
b("v_lshrrev_b32 v5, 3, v0")
b("v_and_b32 v6, 7, v0")
b("v_lshrrev_b32 v7, 1, v5")
for p in range(4):
    b("v_add_u32 v4, %d, v7" % (4 * (p & 1)))
    b("v_xor_b32 v4, v4, v6")
    b("v_lshlrev_b32 v4, 4, v4")
    b("v_lshl_add_u32 v4, v5, 10, v4")
    b("v_add_u32 v%d, %d, v4" % (10 + p, p * (8192 - 1024)))
b("s_mul_i32 s%d, s%d, 114688" % (sT0, sB))
b("s_waitcnt lgkmcnt(0)")
srd(b, SA, sX, sT0, "114688")
q_loader(b, "x", 32768, 7, STG, 0, OPT["nt_x"])
b.finish(hist=e.ins)

b = new("ldw")
b("L_ldw:")
b("s_setprio %d" % OPT["prio_w"])
b("v_lshlrev_b32 v4, 1, v1")
b("v_xor_b32 v4, v4, v3")
b("v_lshlrev_b32 v4, 4, v4")
b("v_lshl_add_u32 v10, v1, 13, v4")
b("v_add_u32 v11, %d, v10" % (32768 - 1024))
b("v_xor_b32 v4, 128, v10")
b("v_add_u32 v12, %d, v4" % (2 * (32768 - 1024)))
b("v_add_u32 v13, %d, v4" % (3 * (32768 - 1024)))
b("s_lshl_b32 s%d, s%d, 8" % (sT0, sH))
b("s_sub_u32 s%d, 0x400000, s%d" % (sT1, sT0))
b("s_waitcnt lgkmcnt(0)")
srd(b, SA, sWQ, sT0, "s%d" % sT1)
q_loader(b, "w", 131072, 19, STG + 16384, 1, OPT["nt_w"])
b.finish(hist=e.ins)

c = new("compute_pro")
c("L_compute:")
if OPT["codepf"]:
    c("s_cmp_lg_u32 s%d, 1" % sWAVE)
    c("s_cbranch_scc1 L_nopf")
    c("s_getpc_b64 s[56:57]")
    c("L_pc:")
    c("s_sub_u32 s56, s56, L_pc-L_start")
    c("s_subb_u32 s57, s57, 0")
    c("s_lshr_b32 s%d, s2, 3" % sT0)
    c("s_and_b32 s%d, s%d, 7" % (sT0, sT0))
    c("s_mul_i32 s%d, s%d, ((L_codeend-L_start+1023)/1024)*128" % (sT0, sT0))
    c("v_lshlrev_b32 v1, 7, v0")
    c("v_add_u32 v1, s%d, v1" % sT0)
    c("v_min_u32 v1, L_codeend-L_start-4, v1")
    c("v_mov_b32 v3, s57")
    c("v_add_co_u32 v2, vcc, s56, v1")
    c("s_nop 1")
    c("v_addc_co_u32 v3, vcc, 0, v3, vcc")
    c("v_cmp_gt_u32 vcc, (L_codeend-L_start+1023)/1024, v0")
    c("s_and_saveexec_b64 s[58:59], vcc")
    c("global_load_dword v255, v[2:3], off")
    c("s_mov_b64 exec, -1")
    c("L_nopf:")
c("v_lshrrev_b32 v1, 4, v0")
c("v_and_b32 v2, 15, v0")
c("v_lshrrev_b32 v3, 5, v0")
c("v_and_b32 v4, 1, v1")
c("v_lshl_add_u32 v3, v4, 1, v3")
c("v_xor_b32 v3, v3, v2")
c("v_lshlrev_b32 v3, 4, v3")
c("v_lshl_add_u32 v%d, v2, 8, v3" % aK)
for ks in range(1, 4):
    c("v_xor_b32 v%d, %d, v%d" % (aK + ks, ks << 6, aK))
c("s_lshl_b32 s%d, s%d, 12" % (sT0, sWAVE))
c("s_add_u32 s%d, s%d, %d" % (sT0, sT0, STG))
c("v_lshrrev_b32 v3, 1, v2")
c("v_xor_b32 v3, v3, v1")
c("v_lshlrev_b32 v3, 4, v3")
c("v_lshl_add_u32 v3, v2, 7, v3")
c("v_add_u32 v%d, s%d, v3" % (aXq, sT0))
c("v_xor_b32 v%d, 64, v%d" % (aXq + 1, aXq))
c("v_bfe_u32 v2, v0, 2, 2")
c("v_lshrrev_b32 v3, 2, v0")
c("v_and_b32 v4, 7, v3")
c("v_lshlrev_b32 v4, 5, v4")
c("v_lshl_add_u32 v3, v3, 8, v4")
c("v_and_b32 v4, 3, v0")
c("v_lshl_add_u32 v3, v4, 3, v3")
c("v_add_u32 v%d, %d, v3" % (aV, VRING + 16384))
for db in range(1, 8):
    c("v_xor_b32 v%d, %d, v%d" % (aV + db, db << 5, aV))
c("v_lshl_add_u32 v3, v1, 10, v3")
c("v_add_u32 v%d, %d, v3" % (aWq, STG + 16384))
for db in range(1, 8):
    c("v_xor_b32 v%d, %d, v%d" % (aWq + db, db << 5, aWq))
c("v_mul_u32_u24 v2, 320, v2")
c("v_lshrrev_b32 v3, 5, v0")
c("v_lshl_add_u32 v3, v3, 11, v2")
c("v_and_b32 v4, 1, v1")
c("v_lshl_add_u32 v3, v4, 5, v3")
c("v_and_b32 v4, 1, v0")
c("v_lshl_add_u32 v3, v4, 4, v3")
c("v_bfe_u32 v4, v0, 1, 1")
c("v_lshl_add_u32 v3, v4, 3, v3")
c("s_lshl_b32 s%d, s%d, 5" % (sT0, sG))
c("v_xor_b32 v%d, s%d, v3" % (vLO, sT0))
c("s_cmp_eq_u32 s%d, 3" % sWAVE)
c("s_mov_b32 s%d, %s" % (sT0, f32(3e38)))
c("s_cselect_b32 s%d, %s, s%d" % (sPADM, f32(-1e30), sT0))
c("v_and_b32 v2, 31, v0")
c("s_lshl_b32 s%d, s%d, 5" % (sT0, sWAVE))
c("v_add_u32 v3, s%d, v2" % sT0)
c("v_lshlrev_b32 v%d, 4, v0" % vE)
c("v_cmp_lt_u32 vcc, 111, v3")
c("v_bfrev_b32 v3, 1")
c("v_cndmask_b32 v3, 0, v3, vcc")
c("v_or_b32 v%d, v%d, v3" % (vE, vE))
for i in range(64):
    c("v_mov_b32 v%d, 0" % (ACC + i))
c("s_mov_b32 s%d, %s" % (sCS, f32(CSC)))
c("s_mov_b32 s%d, %s" % (sCS + 1, f32(CSC)))
c("s_mov_b32 s%d, %s" % (sTHR, f32(0.0 if OPT["force_rescale"] else OPT["thr"])))
c("s_waitcnt lgkmcnt(0)")
c("s_mov_b32 s%d, %d" % (sT0, OPT["wsbase"]))
srd(c, SA, sWS, sT0, "0x%x" % (0x10000000 - OPT["wsbase"]))
c("s_mul_i32 s%d, s%d, 114688" % (sT0, sB))
srd(c, SB, sOUT, sT0, "114688")
c("s_lshl_b32 s%d, s%d, 7" % (sT0, sWAVE))
c("v_xor_b32 v1, s%d, v0" % sWGL)
c("v_lshlrev_b32 v1, 11, v1")
c("v_lshl_add_u32 v2, v0, 2, s%d" % sT0)
c("v_add_u32 v1, v1, v2")
c("s_lshl_b32 s%d, s%d, 11" % (sT1, sWGL))
c("v_add_u32 v2, s%d, v2" % sT1)
c("v_subrev_u32 v3, 1, v0")
c("v_cmp_gt_u32 vcc, 3, v3")
c("v_bfrev_b32 v3, 1")
c("s_nop 0")
c("v_cndmask_b32 v%d, v3, v1, vcc" % vM1)
c("v_cndmask_b32 v%d, v3, v2, vcc" % vP1)
c("v_xor_b32 v1, s%d, v0" % sWGL)
c("v_lshlrev_b32 v1, 11, v1")
c("v_add_u32 v1, 512, v1")
c("v_cmp_gt_u32 vcc, 4, v0")
c("v_bfrev_b32 v2, 1")
c("s_nop 0")
c("v_cndmask_b32 v%d, v2, v1, vcc" % vINFO)
c("v_and_b32 v1, 31, v0")
c("s_lshl_b32 s%d, s%d, 5" % (sT0, sWAVE))
c("v_add_u32 v1, s%d, v1" % sT0)
c("v_lshlrev_b32 v1, 10, v1")
c("v_lshrrev_b32 v2, 5, v0")
c("v_lshl_add_u32 v%d, v2, 4, v1" % vOUT)
c("s_lshl_b32 s%d, s%d, 8" % (sT0, sHN))
c("s_lshl_b32 s%d, s%d, 5" % (sT1, sG))
c("s_add_u32 s%d, s%d, s%d" % (sOFF, sT0, sT1))
c("s_lshl_b32 s%d, s%d, 15" % (sE1, sWGL))
c("s_lshl_b32 s%d, s%d, 13" % (sT0, sWAVE))
c("s_add_u32 s%d, s%d, s%d" % (sE1, sE1, sT0))
c("s_add_u32 s%d, s%d, %d" % (sE1, sE1, E1_OFF))
c("s_lshl_b32 s%d, s%d, 2" % (sT0, sB))
c("s_add_u32 s%d, s%d, s%d" % (sT0, sT0, sHN))
c("s_lshl_b32 s%d, s%d, 18" % (sT0, sT0))
c("s_lshl_b32 s%d, s%d, 10" % (sT1, sWAVE))
c("s_add_u32 s%d, s%d, s%d" % (sT0, sT0, sT1))
c("s_add_u32 s%d, s%d, %d" % (sE2P, sT0, E2_OFF))
c("s_lshl_b32 s%d, s%d, 15" % (sT1, sG))
c("s_add_u32 s%d, s%d, s%d" % (sE2C, sE2P, sT1))


def q_reads(s_):
    W = VF if s_ == 0 else S0
    r = ["ds_read_b128 %s, v%d offset:%d" % (vr(XB + 8 * s_ + 4 * blk, 4), aXq + s_, blk * 2048) for blk in range(2)]
    for db in range(8):
        for u in range(2):
            r.append("ds_read_b64_tr_b16 %s, v%d offset:%d" % (vr(W + 4 * db + 2 * u, 2), aWq + db, s_ * 8192 + u * 1024))
    if OPT["qdiag"] & 1:
        r = ["s_nop 0"] * 18
    return r


def k_reads(slot_off):
    return ["ds_read_b128 %s, v%d offset:%d" % (vr(KF + 16 * kb + 4 * ks, 4), aK + ks, slot_off + kb * 4096)
            for ks in range(4) for kb in range(2)]


def q_mfmas(s_):
    W = VF if s_ == 0 else S0
    r = []
    for db in range(8):
        for blk in range(2):
            d = vr(ACC + 32 * blk + 4 * db, 4)
            r.append("%s %s, %s, %s, %s" % (M16, d, vr(W + 4 * db, 4), vr(XB + 8 * s_ + 4 * blk, 4), d))
    if OPT["qdiag"] & 2:
        r = ["s_nop 0"] * 16
    return r


c("s_mov_b32 s%d, %d" % (sT2, sum(((1, -3, 2)[i % 3] + 3) << (3 * i) for i in range(8))))
c("s_mov_b32 s%d, 8" % sCNT)
c("s_barrier")
stamp(c, 1)
c.add(q_reads(0))
lgq0, _ = c.finish(hist=e.ins)

ql = new("qloop")
ql("L_q:")
nx = q_reads(1)
gaps = [nx[2 * i:2 * i + 2] for i in range(9)] + [[] for _ in range(7)]
gaps[9] = ["s_and_b32 s%d, s%d, 7" % (sDEL, sT2), "s_lshr_b32 s%d, s%d, 3" % (sT2, sT2),
           "s_sub_u32 s%d, s%d, 3" % (sDEL, sDEL), "s_lshl_b32 s%d, s%d, 15" % (sDEL, sDEL)]
adv = ["v_add_u32 v%d, s%d, v%d" % (r_, sDEL, r_) for r_ in range(aWq, aWq + 10)]
for i in range(5):
    gaps[10 + i] = adv[2 * i:2 * i + 2]
ql.add(interleave(q_mfmas(0), gaps))
ql("s_waitcnt lgkmcnt(0)")
ql("s_barrier")
if 20 < PROBE < 40:
    ql("s_cmp_lg_u32 s%d, %d" % (sCNT, 9 - (PROBE - 20)))
    ql("s_cbranch_scc1 L_noprobe")
    ql("s_memrealtime s[%d:%d]" % (sSTAMP + 2, sSTAMP + 3))
    ql("L_noprobe:")
nx = q_reads(0)
gaps = [nx[2 * i:2 * i + 2] for i in range(9)] + [[] for _ in range(7)]
ql.add(interleave(q_mfmas(1), gaps))
loop_end(ql, "L_q")
lgq1, _ = ql.finish(hist=c.ins, lgq=lgq0)
assert lgq1 == lgq0[-len(lgq1):] or STAMPS or PROBE >= 1 or OPT["qdiag"], (lgq0, lgq1)
pad_hazards(ql.ins, hist=ql.ins, check_only=True, where="q loop back edge")

q = new("attn_pro")
stamp(q, 2)
q("s_waitcnt lgkmcnt(0)")
q.add(k_reads(0))
q("s_waitcnt vmcnt(0)")
aO1, aO2, aO3 = aK, aW, aV
for nt in range(4):
    q("v_xor_b32 v%d, %d, v%d" % (aO2 + nt, nt << 6, vLO))
for ks in range(4):
    for blk in range(2):
        a0 = ACC + 32 * blk + 8 * ks
        f0 = QF + 16 * blk + 4 * ks
        for j in range(4):
            q("v_pk_mul_f32 %s, %s, s[%d:%d]" % (vr(a0 + 2 * j, 2), vr(a0 + 2 * j, 2), sCS, sCS + 1))
        for j in range(4):
            q("v_cvt_pk_bf16_f32 v%d, v%d, v%d" % (f0 + j, a0 + 2 * j, a0 + 2 * j + 1))
for ks in range(4):
    for blk in range(2):
        f0 = QF + 16 * blk + 4 * ks
        for j in range(2):
            q("v_permlane16_swap_b32 v%d, v%d" % (f0 + j, f0 + 2 + j))


def qk_list(SN, first):
    r = []
    for ks in range(4):
        for kb in range(2):
            for blk in range(2):
                d = vr(SN + 8 * blk + 4 * kb, 4)
                cc = d if ks else ("0" if first else vr(NM[blk], 4))
                r.append("%s %s, %s, %s, %s" % (M16, d, vr(KF + 16 * kb + 4 * ks, 4), vr(QF + 16 * blk + 4 * ks, 4), cc))
    return r


k1 = k_reads(8192)
gaps = []
for i in range(16):
    g = ["v_mov_b32 v%d, 0" % (ACC + 4 * i + j) for j in range(4)]
    if i & 1:
        g.append(k1[i >> 1])
    gaps.append(g)
q.add(interleave(qk_list(S0, True), gaps))
for ks in range(4):
    q("v_add_u32 v%d, 16384, v%d" % (aK + ks, aK + ks))
for i in range(8):
    q("v_mov_b32 v%d, 0" % (vL[0] + i))
for i in range(4):
    q("v_mov_b32 v%d, 0x3f803f80" % (ONES + i))


def blk_max(b, S, dst, tmp):
    b("v_max3_f32 v%d, v%d, v%d, v%d" % (dst, S, S + 1, S + 2))
    b("v_max3_f32 v%d, v%d, v%d, v%d" % (dst, dst, S + 3, S + 4))
    b("v_max3_f32 v%d, v%d, v%d, v%d" % (dst, dst, S + 5, S + 6))
    b("v_max_f32 v%d, v%d, v%d" % (dst, dst, S + 7))
    lane_reduce(b, "v_max_f32", dst, tmp)


def lane_reduce(b, op, dst, tmp):
    b("v_mov_b32 v%d, v%d" % (tmp, dst))
    b("v_permlane32_swap_b32 v%d, v%d" % (tmp, dst))
    b("%s v%d, v%d, v%d" % (op, dst, tmp, dst))
    b("v_mov_b32 v%d, v%d" % (tmp, dst))
    b("v_permlane16_swap_b32 v%d, v%d" % (tmp, dst))
    b("%s v%d, v%d, v%d" % (op, dst, tmp, dst))


for blk in range(2):
    blk_max(q, S0 + 8 * blk, 1, 2)
    q("v_sub_f32 v%d, 0, v1" % NM[blk])
    if blk == 1:
        q("v_min_f32 v%d, s%d, v%d" % (NM[blk], sPADM, NM[blk]))
    for j in range(1, 4):
        q("v_mov_b32 v%d, v%d" % (NM[blk] + j, NM[blk]))
    for i in range(8):
        q("v_add_f32 v%d, v%d, v%d" % (S0 + 8 * blk + i, S0 + 8 * blk + i, NM[blk]))
KSEQ = [1, 2, 0, 1, 2, 0, 1, 2, 0, 1, 0, 1, 0, 1, 0, 0]
VSEQ = [1, 2, 0, 1, 2, 0, 1, 2, 0, 1, 2, 1, 2, 1, 2, 1]
for tab, seq in ((sTABK, KSEQ), (sTABV, VSEQ)):
    q("s_mov_b32 s%d, 0x%x" % (tab, sum((seq[i + 1] - seq[i] + 2) << (2 * i) for i in range(15))))
q("s_mov_b32 s%d, 15" % sCNT)
stamp(q, 3)
q.finish(hist=ql.ins)


def v_read(db, u, off):
    return "ds_read_b64_tr_b16 %s, v%d offset:%d" % (vr(VF + 4 * db + 2 * u, 2), aV + db, off + u * 4096)


def ex(S, i):
    return "v_exp_f32 v%d, v%d" % (S + i, S + i)


def cvt(S, j):
    return "v_cvt_pk_bf16_f32 v%d, v%d, v%d" % (PK + j, S + 2 * j, S + 2 * j + 1)


def add(S, i):
    return "v_add_f32 v%d, v%d, v%d" % (vL[i >> 3], vL[i >> 3], S + i)


def pv_list():
    r = []
    for db in range(8):
        for blk in range(2):
            d = vr(ACC + 32 * blk + 4 * db, 4)
            r.append("%s %s, %s, %s, %s" % (M16, d, vr(VF + 4 * db, 4), vr(PK + 4 * blk, 4), d))
    return r


def sum_mfma(blk):
    return "%s %s, %s, %s, %s" % (M16, vr(vL[blk], 4), vr(ONES, 4), vr(PK + 4 * blk, 4), vr(vL[blk], 4))


def max_tree(S):
    r = ["v_max3_f32 v%d, v%d, v%d, v%d" % (vTM, S, S + 1, S + 2)]
    for i in range(3, 15, 2):
        r.append("v_max3_f32 v%d, v%d, v%d, v%d" % (vTM, vTM, S + i, S + i + 1))
    r.append("v_max_f32 v%d, v%d, v%d" % (vTM, vTM, S + 15))
    return r


def epoch_b0(b, S, SN, vrd, kr, adv, sc):
    ga = [[] for _ in range(16)]
    gb = [[] for _ in range(18)]
    nA = {10: 8, 11: 10, 12: 12}[sc]
    for i in range(16):
        ga[i if sc != 12 else min(i, 15)].append(vrd[i])
    pos = [int(i * 16 / nA) for i in range(nA)]
    for i in range(nA):
        ga[pos[i]].append(ex(S, i))
    for j in range(4):
        ga[min(15, pos[2 * j + 1] + 1)].insert(0, cvt(S, j))
    b.add(interleave(qk_list(SN, False), ga))
    b("s_waitcnt lgkmcnt(%d)" % 8)
    pv = pv_list()
    order = [pv[2 * db] for db in range(4)] + ["WAIT"] + [pv[2 * db] for db in range(4, 8)] + [sum_mfma(0)] + \
            [pv[2 * db + 1] for db in range(8)] + [sum_mfma(1)]
    for i in range(nA, 16):
        gb[i - nA].append(ex(S, i))
    for j in range(4, 8):
        gb[max(0, 2 * j + 1 - nA + 1)].append(cvt(S, j))
    for i in range(8):
        gb[4 + i].append(kr[i])
    mx = max_tree(SN)
    for i in range(8):
        gb[9 + i].append(mx[i])
    if adv:
        for tab, dl, gi in ((sTABV, sDELV, 0), (sTABK, sDEL, 1)):
            gb[gi] += ["s_and_b32 s%d, s%d, 3" % (dl, tab), "s_lshr_b32 s%d, s%d, 2" % (tab, tab),
                       "s_sub_u32 s%d, s%d, 2" % (dl, dl), "s_lshl_b32 s%d, s%d, 14" % (dl, dl)]
        for i in range(8):
            gb[9 + i].append("v_add_u32 v%d, s%d, v%d" % (aV + i, sDELV, aV + i))
        for i in range(4):
            gb[13 + i].append("v_add_u32 v%d, s%d, v%d" % (aK + i, sDEL, aK + i))
    k = 0
    for x in order:
        if x == "WAIT":
            b("s_waitcnt lgkmcnt(0)")
            continue
        b(x)
        b.add([y for y in gb[k] if y is not None])
        k += 1


def epoch_p(b, S, SN, vrd, kr, adv, sc):
    A = "e0|t0 t1|e1|t2 c0|e2|t3 t4|e3|t5 c1|e4|t6 t7|e5|t8 c2|e6|t9 e7|t10 c3|t11 e8"
    B = {20: "t12 t13|t14 e9|t15 e10|c4 e11|k0 e12|c5 e13|k1 e14|c6 e15|k2 c7 m0 m1|k3 m2|k4 m3|k5 m4|k6 m5|k7 m6|m7 a|x a|a a|a a",
         21: "t12 t13|t14 e9|t15 e10|c4 e11|e12|c5 e13|e14|c6 e15|k0 c7 m0 m1|k1 k2|k3 m2|k4 m3|k5 m4|k6 m5|k7 m6|m7 a|x a|a a",
         22: "t12 t13|t14 e9|t15 e10|k0 c4 e11|k1 e12|k2 c5 e13|k3 e14|k4 c6 e15|k5 c7 m0 m1|k6 m2|k7 m3|m4 m5|m6 m7|x a|a a|a a|a a|a a"}[sc]
    mx = max_tree(SN)
    adds = []
    if adv:
        adds = ["v_add_u32 v%d, s%d, v%d" % (aV + i, sDELV, aV + i) for i in range(8)] + \
               ["v_add_u32 v%d, s%d, v%d" % (aK + i, sDEL, aK + i) for i in range(4)]

    def ins(tok):
        k, n = tok[0], int(tok[1:]) if len(tok) > 1 else 0
        if k == "a":
            return adds.pop(0) if adds else None
        if k == "x":
            return "v_cmp_lt_f32 vcc, s%d, v%d" % (sTHR, vTM)
        return {"e": lambda: ex(S, n), "t": lambda: vrd[n], "c": lambda: cvt(S, n), "k": lambda: kr[n], "m": lambda: mx[n]}[k]()
    ga = [[ins(x) for x in g.split()] for g in A.split("|")]
    if adv:
        for tab, dl, gi in ((sTABV, sDELV, 1), (sTABK, sDEL, 5)):
            ga[gi] += ["s_and_b32 s%d, s%d, 3" % (dl, tab), "s_lshr_b32 s%d, s%d, 2" % (tab, tab)]
            ga[gi + 2] += ["s_sub_u32 s%d, s%d, 2" % (dl, dl), "s_lshl_b32 s%d, s%d, 14" % (dl, dl)]
    b.add(interleave(qk_list(SN, False), ga))
    pv = pv_list()
    order = [pv[2 * db] for db in range(8)] + [sum_mfma(0)] + [pv[2 * db + 1] for db in range(8)] + [sum_mfma(1)]
    gb = [[ins(x) for x in g.split()] for g in B.split("|")]
    gb[-1] += adds[:]
    nk = 0 if kr[0] is None else 1
    for i, (m_, g) in enumerate(zip(order, gb)):
        if i == 0:
            b("s_waitcnt lgkmcnt(4)")
        if i == 4:
            b("s_waitcnt lgkmcnt(%d)" % (4 + (nk if sc == 22 else 0)))
        b(m_)
        b.add([y for y in g if y is not None])


def epoch(b, par, kread=True, adv=False, tag="", head=()):
    S, SN = (S0, S1) if par == 0 else (S1, S0)
    off = par * 8192
    vrd = [v_read(db, u, off) for db in range(8) for u in range(2)]
    kr = k_reads(off) if kread else [None] * 8
    b("s_waitcnt lgkmcnt(0)")
    b("s_barrier")
    b.add(head)
    SC_ = OPT["sched"]
    if SC_ >= 10:
        if SC_ >= 20:
            epoch_p(b, S, SN, vrd, kr, adv, SC_)
        else:
            epoch_b0(b, S, SN, vrd, kr, adv, SC_)
            b("v_cmp_lt_f32 vcc, s%d, v%d" % (sTHR, vTM))
        b("s_cbranch_vccnz L_resc%s" % tag)
        b("L_back%s:" % tag)
        rescale(tag, SN)
        return
    ga = [[] for _ in range(16)]
    va = {0: [0, 1, 3, 5, 7, 9, 11, 13], 1: [0, 1, 3, 5, 7, 9, 11, 13], 2: [1, 1, 3, 3, 5, 5, 7, 7, 9, 9, 11, 11],
          3: [0, 0, 1, 1, 3, 3, 5, 5]}[SC_]
    for i, gi in enumerate(va):
        ga[gi].append(vrd[i])
    for j in range(7):
        ga[2 * j + 2].append(cvt(S, j))
    for i in range(16):
        if SC_ == 1:
            ga[i].insert(0, ex(S, i))
        else:
            ga[i].append(ex(S, i))
    b.add(interleave(qk_list(SN, False), ga))
    mx = max_tree(SN)
    gb = [[] for _ in range(16)]
    gb[0] = [cvt(S, 7)]
    rest = vrd[len(va):]
    for i, x in enumerate(rest):
        gb[i >> 1].append(x)
    k0 = (len(rest) + 1) // 2
    for i in range(8):
        gb[k0 + i].append(kr[i])
    if not OPT["msum"]:
        order = [0, 8, 1, 9, 2, 10, 3, 11, 4, 12, 5, 13, 6, 14, 7, 15]
        for i in range(8):
            gb[4 + i].append(add(S, order[i]))
        for i in range(8):
            gb[12 + (i >> 1)].append(add(S, order[8 + i]))
    for i in range(8):
        gb[8 + i].append(mx[i])
    gb = [[x for x in g if x is not None] for g in gb]
    if adv:
        for tab, dl, gi in ((sTABV, sDELV, 1), (sTABK, sDEL, 2)):
            gb[gi] += ["s_and_b32 s%d, s%d, 3" % (dl, tab), "s_lshr_b32 s%d, s%d, 2" % (tab, tab),
                       "s_sub_u32 s%d, s%d, 2" % (dl, dl), "s_lshl_b32 s%d, s%d, 14" % (dl, dl)]
        for i in range(8):
            gb[4 + (i >> 1)].append("v_add_u32 v%d, s%d, v%d" % (aV + i, sDELV, aV + i))
        for i in range(4):
            gb[12 + i].append("v_add_u32 v%d, s%d, v%d" % (aK + i, sDEL, aK + i))
    b.add(interleave(pv_list(), gb))
    if OPT["msum"]:
        b(sum_mfma(0))
        b(sum_mfma(1))
    b("v_cmp_lt_f32 vcc, s%d, v%d" % (sTHR, vTM))
    b("s_cbranch_vccnz L_resc%s" % tag)
    b("L_back%s:" % tag)
    rescale(tag, SN)


rare = []


def rescale(tag, SN):
    r = Block("resc" + tag)
    r("L_resc%s:" % tag)
    r("s_nop 15")
    for blk in range(2):
        blk_max(r, SN + 8 * blk, 1, 2)
        r("v_max_f32 v1, 0, v1")
        r("v_sub_f32 v2, 0, v1")
        r("v_exp_f32 v2, v2")
        for j in range(4):
            r("v_sub_f32 v%d, v%d, v1" % (NM[blk] + j, NM[blk] + j))
        for i in range(8):
            r("v_sub_f32 v%d, v%d, v1" % (SN + 8 * blk + i, SN + 8 * blk + i))
        for j in range(4 if OPT["msum"] else 1):
            r("v_mul_f32 v%d, v%d, v2" % (vL[blk] + j, vL[blk] + j))
        for i in range(32):
            r("v_mul_f32 v%d, v%d, v2" % (ACC + 32 * blk + i, ACC + 32 * blk + i))
    r("s_nop 1")
    r("s_branch L_back%s" % tag)
    r.finish()
    rare.append(r)


if STAMPS == 6:
    q.ins.append(parse("s_memtime s[92:93]"))
lp = new("loop")
lp("L_att:")
epoch(lp, 0, True, False, "a")
epoch(lp, 1, True, True, "b",
      head=["s_cmp_lg_u32 s%d, 1" % sCNT, "s_cbranch_scc1 L_noinfo",
            "buffer_load_dword v%d, v%d, s[%d:%d], 0 offen sc1" % (vINF, vINFO, SA, SA + 3), "L_noinfo:"])
loop_end(lp, "L_att")
if OPT["drop"]:
    def keep(i):
        x = i.text
        d = OPT["drop"]
        return not (("t" in d and "_tr_" in x) or ("k" in d and "ds_read_b128" in x) or ("e" in d and "v_exp" in x) or
                    ("c" in d and "v_cvt" in x) or ("m" in d and "v_max" in x) or ("a" in d and ("v_add_u32" in x)) or
                    ("M" in d and "v_mfma" in x))
    lp.ins = [i for i in lp.ins if keep(i)]
lp.finish(hist=q.ins)
pad_hazards(lp.ins, hist=lp.ins, check_only=True, where="loop back edge")

t = new("tail")
if STAMPS == 6:
    t("s_memtime s[94:95]")
    t("s_waitcnt lgkmcnt(0)")
stamp(t, 4)
epoch(t, 0, False, False, "c")
S = S1
for i in range(16):
    t(ex(S, i))
for j in range(8):
    t(cvt(S, j))
if OPT["msum"]:
    t(sum_mfma(0))
    t(sum_mfma(1))
else:
    for i in range(16):
        t(add(S, i))
for nt in range(4):
    t("v_add_u32 v%d, %d, v%d" % (aO1 + nt, STG, aO2 + nt))
for blk in range(2):
    if not OPT["msum"]:
        lane_reduce(t, "v_add_f32", vL[blk], 1)
    t("v_max_f32 v%d, %s, v%d" % (vL[blk], f32(1e-30), vL[blk]))
    t("v_rcp_f32 v%d, v%d" % (vL[blk], vL[blk]))
t("v_mov_b32 v%d, 1" % NM[0])
t("s_add_u32 s%d, s%d, 4096" % (sT2, sE1))
t("s_waitcnt lgkmcnt(0)")
t("s_barrier")
stamp(t, 5)
vrd = [v_read(db, u, 8192) for db in range(8) for u in range(2)]
t.add(vrd[0:10])
OB = QF


def norm(ks):
    r = []
    for blk in range(2):
        a0 = ACC + 32 * blk + 8 * ks
        for j in range(4):
            r.append("v_pk_mul_f32 %s, %s, %s op_sel_hi:[1,0]" % (vr(a0 + 2 * j, 2), vr(a0 + 2 * j, 2), vr(vL[blk], 2)))
        for j in range(4):
            r.append("v_cvt_pk_bf16_f32 v%d, v%d, v%d" % (OB + 16 * blk + 4 * ks + j, a0 + 2 * j, a0 + 2 * j + 1))
    return r


def swaps(ks):
    return ["v_permlane16_swap_b32 v%d, v%d" % (OB + 4 * ks + j, OB + 16 + 4 * ks + j) for j in range(4)]


info = ["v_readlane_b32 s%d, v%d, 0" % (sT0, vINF), "s_nop 0", "v_cmp_eq_u32 vcc, s%d, v%d" % (sT0, vINF),
        "s_nop 0", "s_and_b32 s%d, vcc_lo, 15" % sFAST]
g = [vrd[10:12], vrd[12:14], vrd[14:16], info, [], [], [], []] + [[] for _ in range(8)]
n0, n1 = norm(0), norm(1)
for i in range(4):
    g[8 + i] = n0[4 * i:4 * i + 4]
    g[12 + i] = n1[4 * i:4 * i + 4]
t.add(interleave(pv_list(), g))
t.add(swaps(0))
t.add(norm(2))
t.add(swaps(1))
t.add(norm(3))
t.add(swaps(2))

DYN = OPT["dyn"]
AREG = {0: aO1, 1: aO3, 2: aO1, 3: aO3}
SBUF = {1: S0, 2: KF, 3: XB}
SEQ = [(j, f, nt) for j in range(3) for f in range(8) for nt in range(4)]
SEQ += [(3, f, nt) for nt in (1, 2, 3, 0) for f in range(8)]
sASG, sP, sP4, sWB = sN, sN + 1, sN + 2, sN + 3
OOB = 0x40000000


def w_reads(m):
    if m >= len(SEQ):
        return []
    j, f, nt = SEQ[m]
    ks, y = f >> 1, f & 1
    return ["ds_read_b64_tr_b16 %s, v%d offset:%d" % (vr(VF + 4 * (m & 7) + 2 * u, 2), AREG[j] + nt,
                                                   ks * 8192 + u * 4096 + y * 1024) for u in range(2)]


def bfrag(j, f):
    return OB + 16 * (f & 1) + 4 * (f >> 1) if j == 0 else SBUF[j] + 4 * f


def o_mfma(b, m, extra=()):
    j, f, nt = SEQ[m]
    b("%s %s, %s, %s, %s" % (M32, vr(ACC + 16 * nt, 16), vr(VF + 4 * (m & 7), 4), vr(bfrag(j, f), 4),
                             "0" if (j == 0 and f == 0) else vr(ACC + 16 * nt, 16)))
    b.add(w_reads(m + 8))
    b.add(extra)


for m in range(4):
    t.add(w_reads(m))
t.add(swaps(3))
for m in range(4, 8):
    t.add(w_reads(m))


def uncounted(x):
    i_ = parse(x)
    i_.kind = "comment"
    i_.n = 0
    return i_


def publish(fl):
    return ["buffer_store_dwordx4 %s, v%d, s[%d:%d], s%d offen offset:%d %s" % (vr(bfrag(0, f), 4), vE, SA, SA + 3,
            sE1 if f < 4 else sT2, (f & 3) * 1024, fl) for f in range(8)]


def two_way(b, name, fast, slow):
    if not OPT["fast"]:
        b.add(slow)
        return
    b("s_cmp_eq_u32 s%d, 15" % sFAST)
    b("s_cbranch_scc1 L_%sf" % name)
    b.add(slow)
    b("s_branch L_%sj" % name)
    b("L_%sf:" % name)
    b.add([uncounted(x) for x in fast])
    b("L_%sj:" % name)


flag = "buffer_store_dword v%d, v%d, s[%d:%d], 0 offen" % (NM[0], vM1, SA, SA + 3)
pollld = "buffer_load_dword v%d, v%d, s[%d:%d], 0 offen sc1" % (vTM, vP1, SA, SA + 3)


def sib_load(p, f):
    return "buffer_load_dwordx4 %s, v%d, s[%d:%d], s%d offen offset:%d sc1" % (vr(SBUF[p] + 4 * f, 4), vE, SA, SA + 3,
                                                                           sP if f < 4 else sP4, (f & 3) * 1024)


def try_assign(b, p, name):
    b("v_cmp_eq_u32 vcc, 1, v%d" % vTM)
    b("s_mov_b32 s%d, 0x%x" % (sP, OOB))
    if DYN:
        b("s_andn2_b32 s%d, vcc_lo, s%d" % (sT0, sASG))
    else:
        b("s_and_b32 s%d, vcc_lo, %d" % (sT0, 1 << p))
    b("s_cbranch_scc0 %s" % name)
    b("s_ff1_i32_b32 s%d, s%d" % (sT0, sT0))
    b("s_bitset1_b32 s%d, s%d" % (sASG, sT0))
    b("s_lshl_b32 s%d, s%d, 2" % (sWB, sT0))
    b("s_lshl_b32 s%d, s%d, 15" % (sT0, sT0))
    b("s_xor_b32 s%d, s%d, s%d" % (sP, sE1, sT0))
    b("s_lshr_b32 s%d, 0x0140, s%d" % (sWB, sWB))
    b("s_and_b32 s%d, s%d, 15" % (sWB, sWB))
    b("s_lshl_b32 s%d, s%d, 15" % (sWB, sWB))
    b(name + ":")
    b("s_add_u32 s%d, s%d, 4096" % (sP4, sP))


def decide(b, p):
    b("s_cmp_lg_u32 s%d, 0x%x" % (sP, OOB))
    b("s_cbranch_scc1 L_dec%dd" % p)
    b("s_mov_b32 s%d, 0x100000" % sCNT)
    b("L_dec%d:" % p)
    b(pollld)
    b("s_waitcnt vmcnt(0)")
    try_assign(b, p, "L_dec%da" % p)
    b("s_sub_u32 s%d, s%d, 1" % (sCNT, sCNT))
    b("s_cbranch_scc1 L_dec%dl" % p)
    b("s_cmp_eq_u32 s%d, 0x%x" % (sP, OOB))
    b("s_cbranch_scc1 L_dec%d" % p)
    b("L_dec%dl:" % p)
    b.add([sib_load(p, f) for f in range(8)])
    b("L_dec%dd:" % p)
    for nt in range(4):
        b("v_add_u32 v%d, s%d, v%d" % (AREG[p] + nt, sWB, aO2 + nt))


PB = QF


def send(j):
    a0 = ACC + 8 * j
    return (["s_xor_b32 s%d, s%d, %d" % (sT0, sG, j), "s_lshl_b32 s%d, s%d, 15" % (sT0, sT0),
             "s_add_u32 s%d, s%d, s%d" % (sT0, sT0, sE2P), "s_add_u32 s%d, s%d, %d" % (sT0, sT0, j * 4096)],
            ["v_cvt_pk_bf16_f32 v%d, v%d, v%d" % (a0 + i, a0 + 2 * i, a0 + 2 * i + 1) for i in range(4)] +
            ["buffer_store_dwordx4 %s, v%d, s[%d:%d], s%d offen sc1" % (vr(a0, 4), vE, SA, SA + 3, sT0)])


def fetch(j):
    return ["s_add_u32 s%d, s%d, %d" % (sT3, sE2C, j * 4096),
            "buffer_load_dwordx4 %s, v%d, s[%d:%d], s%d offen sc1" % (vr(PB + 4 * (j - 1), 4), vE, SA, SA + 3, sT3)]


extra = {m: [] for m in range(128)}
vP2, vM2 = 2, NM[1]
poll2 = "buffer_load_dword v%d, v%d, s[%d:%d], 0 offen sc1" % (vTM, vP2, SA, SA + 3)
extra[1] += ["s_lshl_b32 s%d, s%d, 7" % (sT0, sWAVE), "s_add_u32 s%d, s%d, 1024" % (sT0, sT0),
             "v_lshl_add_u32 v%d, v0, 2, s%d" % (vP2, sT0)]
extra[2] += ["v_lshlrev_b32 v1, 2, v0", "v_xor_b32 v1, s%d, v1" % sWGL, "v_lshl_add_u32 v%d, v1, 11, v%d" % (vM2, vP2)]
extra[3] += ["s_lshl_b32 s%d, s%d, 11" % (sT0, sWGL), "v_add_u32 v%d, s%d, v%d" % (vP2, sT0, vP2), "v_subrev_u32 v1, 1, v0"]
extra[4] += ["v_cmp_gt_u32 vcc, 7, v1", "v_bfrev_b32 v1, 1", "s_nop 0", "v_cndmask_b32 v%d, v1, v%d, vcc" % (vP2, vP2),
             "v_cndmask_b32 v%d, v1, v%d, vcc" % (vM2, vM2)]
for i, nt in enumerate((1, 2, 3)):
    base = 104 + 8 * i
    for k_, j in enumerate((2 * nt, 2 * nt + 1)):
        sa, sb_ = send(j)
        extra[base + 2 + 3 * k_] += sa
        extra[base + 3 + 3 * k_] += sb_
for p in (1, 2, 3):
    for f in range(8):
        extra[32 * p - 16 + f].append(uncounted(sib_load(p, f)))
extra[64 - 27].append(pollld)
extra[96 - 27].append(pollld)

t("s_mov_b32 s%d, 0" % sASG)
two_way(t, "pub", publish(""), publish("sc1"))
t(pollld)
stamp(t, 6)
for m in range(128):
    if m == OPT["fat"]:
        t("s_barrier")
    if m == 16:
        t("s_waitcnt vmcnt(0)")
        two_way(t, "flg", [flag], [flag + " sc1"])
        stamp(t, 8)
    if m in (16, 48, 80):
        t("s_waitcnt vmcnt(%d)" % (1 if m == 16 else 0))
        try_assign(t, m // 32 + 1, "L_try%d" % m)
    if m in (24, 56, 88):
        decide(t, m // 32 + 1)
        if m == 24:
            stamp(t, 7)
        if m == 88:
            stamp(t, 9)
    o_mfma(t, m, extra[m])
stamp(t, 10)
sa, sb_ = send(1)
t.add(sa + sb_)
t("s_waitcnt vmcnt(0)")
t("buffer_store_dword v%d, v%d, s[%d:%d], 0 offen sc1" % (NM[0], vM2, SA, SA + 3))
stamp(t, 11)
t("s_mov_b32 s%d, 0x100000" % sCNT)
t("L_poll2:")
t(poll2)
t("s_sub_u32 s%d, s%d, 1" % (sCNT, sCNT))
t("s_cbranch_scc1 L_poll2e")
t("s_waitcnt vmcnt(0)")
t("v_cmp_eq_u32 vcc, 1, v%d" % vTM)
t("s_cmp_lg_u32 vcc_lo, 0xfe")
t("s_cbranch_scc1 L_poll2")
t("L_poll2e:")
stamp(t, 12)
for j in range(1, 8):
    t.add(fetch(j))
for j in range(1, 8):
    for i in range(4):
        p = PB + 4 * (j - 1) + i
        t("v_lshlrev_b32 v1, 16, v%d" % p)
        t("v_and_b32 v%d, 0xffff0000, v%d" % (p, p))
        t("v_add_f32 v%d, v%d, v1" % (ACC + 2 * i, ACC + 2 * i))
        t("v_add_f32 v%d, v%d, v%d" % (ACC + 2 * i + 1, ACC + 2 * i + 1, p))
for j in range(4):
    t("v_cvt_pk_bf16_f32 v%d, v%d, v%d" % (ACC + 8 + j, ACC + 2 * j, ACC + 2 * j + 1))
t("buffer_store_dwordx4 %s, v%d, s[%d:%d], s%d offen" % (vr(ACC + 8, 4), vOUT, SB, SB + 3, sOFF))
if STAMPS:
    t("s_waitcnt vmcnt(0)")
    stamp(t, 13)
    if STAMPS != 6:
        t("s_memtime s[94:95]")
        t("s_waitcnt lgkmcnt(0)")
    t("s_sub_u32 s%d, s94, s92" % (sSTAMP + 28))
    t("s_getreg_b32 s%d, hwreg(HW_REG_XCC_ID)" % (sSTAMP + 30))
    for i in range(16):
        t("v_mov_b32 v%d, s%d" % (ACC + 16 + i, sSTAMP + 2 * i))
    t("s_lshl_b32 s%d, s2, 2" % sT0)
    t("s_add_u32 s%d, s%d, s%d" % (sT0, sT0, sWAVE))
    t("s_lshl_b32 s%d, s%d, 6" % (sT0, sT0))
    t("s_add_u32 s%d, s%d, %d" % (sT0, sT0, ST_OFF))
    srd(t, SA, sWS, None, "0x10000000")
    t("v_mov_b32 v1, 0")
    t("s_mov_b64 exec, 1")
    for i in range(4):
        t("buffer_store_dwordx4 %s, v1, s[%d:%d], s%d offen offset:%d" % (vr(ACC + 16 + 4 * i, 4), SA, SA + 3, sT0, 16 * i))
if PROBE >= 0:
    stamp(t, 13)
    t("s_add_u32 s%d, s%d, 6000" % (sT2, sSTAMP + (2 if PROBE else 0)))
    t("L_spin:")
    t("s_sleep 2")
    t("s_memrealtime s[%d:%d]" % (sSTAMP + 4, sSTAMP + 5))
    t("s_waitcnt lgkmcnt(0)")
    t("s_sub_u32 s%d, s%d, s%d" % (sT0, sSTAMP + 4, sT2))
    t("s_cmp_lt_i32 s%d, 0" % sT0)
    t("s_cbranch_scc1 L_spin")
t("L_end:")
t("s_endpgm")
t.finish(hist=lp.ins, vmq=[{vINF}])
for r in rare:
    blocks.append(r)

hdr = open("standalone__mha_block_cached__near_ridge.s.ref").read().split("; Override launch")[0]
out = [hdr.rstrip()]
out.append("; @launch grid=(256,1,1) block=(512,1,1) lds=163840")
out.append('.amdgcn_target "amdgcn-amd-amdhsa--gfx950"')
out.append(".text")
out.append(".globl " + KNAME)
out.append(".p2align 8")
out.append(".type %s,@function" % KNAME)
out.append(KNAME + ":")
for b in blocks:
    out.append("; ---- %s ----" % b.name)
    out.append(b.text())
out.append("L_codeend:")
out.append(".p2align 8")
out.append(".fill 64, 4, 0xbf800000")
out.append('.section .rodata,"a"')
out.append(".p2align 6")
out.append(".amdhsa_kernel " + KNAME)
out.append("""  .amdhsa_next_free_vgpr 256
  .amdhsa_next_free_sgpr 102
  .amdhsa_accum_offset 256
  .amdhsa_group_segment_fixed_size 0
  .amdhsa_kernarg_size 64
  .amdhsa_user_sgpr_count 2
  .amdhsa_user_sgpr_kernarg_segment_ptr 1
  .amdhsa_system_sgpr_workgroup_id_x 1
.end_amdhsa_kernel""")
print("\n".join(out))
```

```python
import sys, struct, math
from asmgen import *

OPT = dict(stamps=0, probe=-1, nt_kv="nt", nt_x="", nt_w="nt", nt_wo="nt", thr=8.0, force_rescale=0,
           prio_x=2, prio_w=2, codepf=1, fast=1, dyn=0, fat=6, wsbase=0, wopf=-1, wopf_fl="nt", qdiag=0,
           early="0.1.2.3", k_at="5.6.7.8", v_at="6.7.8.8", dynld=1, dot=1, flagat=12, chk=1, fair=0, r1=85, r2=170, tlo=6, thi=16, fper=3, rotmask=6, wo3=1, noload=0, msum=1, sched=21, qs=2, pro=1, drop="", ksw=32, vsw=32, thr0=8, thr1=8, kd="5:15.3:22.2", vd="5:17.3:24.2")
for a in sys.argv[1:]:
    k, v = a.split("=")
    OPT[k] = type(OPT[k])(v) if not isinstance(OPT[k], str) else v.replace("_", " ").strip()
STAMPS = OPT["stamps"]

KNAME = "standalone__mha_block_cached__near_ridge_kernel"


def f32(x):
    return "0x%08x" % struct.unpack("<I", struct.pack("<f", x))[0]


CSC = math.log2(math.e) / math.sqrt(128.0)

KRING, VRING, STG, XREG = 0, 49152, 98304, 32768
MB_OFF, E1_OFF, E2_OFF, ST_OFF = 0x0, 0x100000, 0x900000, 0x4000000
sX, sK, sV, sWQ, sWO, sOUT, sDBG, sWS = 4, 6, 8, 10, 12, 14, 16, 18
sWAVE, sG, sB, sHN, sH, sWGL = 20, 21, 22, 23, 24, 25
SA, SB, SC = 28, 32, 36
sOFF, sLDS, sCNT, sT0, sT1, sT2 = 40, 41, 42, 43, 44, 45
sCS, sPAIR, sDEL, sE1, sE2P, sE2C = 46, 47, 48, 49, 50, 51
sTHR, sFAST, sK16, sPADM = 52, 53, 54, 55
sVALID = 26
sN = 56
sTG = 96
sMISS, sT3 = 100, 101
sBEG, sEND, sTABK, sTABV, sDELV = 26, 27, 96, 97, 98
TAGK = 0x405
sSTAMP = 64
vE, vLO, vTM, aX = 4, 5, 6, 7
aK, aW, aV = 8, 12, 16
NM = (24, 28)
ACC, QF, S0, S1, KF, VF, XB = 32, 96, 128, 144, 160, 192, 224
PK = XB
vL = (232, 236)
ONES = 244
vM1, vINFO, vINF, vOUT, vP1 = 240, 242, 243, 7, 3
def nib(txt):
    return sum(int(x) << (4 * i) for i, x in enumerate(txt.split(".")))


NQB = 9
aWq, aXq = 96, 104
M16 = "v_mfma_f32_16x16x32_bf16"
M32 = "v_mfma_f32_32x32x16_bf16"


PROBE = OPT["probe"]


def cst(b, idx):
    if STAMPS == 7:
        b("s_memtime s[%d:%d]" % (sSTAMP + 2 * idx, sSTAMP + 2 * idx + 1))


def stamp(b, idx, force=False):
    if STAMPS == 8:
        if idx in (3, 5, 10, 13):
            b("s_memrealtime s[%d:%d]" % (sSTAMP + 2 * idx, sSTAMP + 2 * idx + 1))
            if idx == 13:
                b("s_waitcnt lgkmcnt(0)")
        return
    if STAMPS == 7:
        if idx == 5:
            b("s_memrealtime s[%d:%d]" % (sSTAMP + 2, sSTAMP + 3))
        return
    if STAMPS == 5 and 1 <= idx <= 4:
        if force:
            b("s_memrealtime s[%d:%d]" % (sSTAMP + 2 * idx, sSTAMP + 2 * idx + 1))
        return
    if force:
        return
    if PROBE == idx:
        b("s_memrealtime s[%d:%d]" % (sSTAMP + 2, sSTAMP + 3))
        b("s_waitcnt lgkmcnt(0)")
    if PROBE == 40 + idx:
        b("s_memtime s[%d:%d]" % (sSTAMP + 2, sSTAMP + 3))
        b("s_waitcnt lgkmcnt(0)")
        b("s_sub_u32 s%d, s%d, s%d" % (sSTAMP + 2, sSTAMP + 2, sSTAMP + 6))
        b("s_lshr_b32 s%d, s%d, 4" % (sSTAMP + 2, sSTAMP + 2))
        b("s_add_u32 s%d, s%d, s%d" % (sSTAMP + 2, sSTAMP + 2, sSTAMP))
    if STAMPS == 3 and 1 <= idx <= 6:
        return
    if STAMPS:
        b("s_memrealtime s[%d:%d]" % (sSTAMP + 2 * idx, sSTAMP + 2 * idx + 1))
        b("s_waitcnt lgkmcnt(0)")


def srd(b, dst, ptr, off_sreg, size):
    if off_sreg is None:
        b("s_mov_b32 s%d, s%d" % (dst, ptr))
        b("s_mov_b32 s%d, s%d" % (dst + 1, ptr + 1))
    else:
        b("s_add_u32 s%d, s%d, s%d" % (dst, ptr, off_sreg))
        b("s_addc_u32 s%d, s%d, 0" % (dst + 1, ptr + 1))
    b("s_mov_b32 s%d, %s" % (dst + 2, size))
    b("s_mov_b32 s%d, 0x20000" % (dst + 3))


def dma_group(b, S, voffs, soff, flags, n=4):
    for p in range(n):
        o = " offset:%d" % (p * 1024) if p else ""
        b("buffer_load_dwordx4 v%d, s[%d:%d], s%d offen%s %s lds" % (voffs[p], S, S + 3, soff, o, flags))


blocks = []


def new(name):
    b = Block(name)
    blocks.append(b)
    return b


e = new("entry")
e("L_start:")
e("s_cmp_ge_u32 s2, 256")
e("s_cbranch_scc1 L_end")
e("s_load_dwordx16 s[4:19], s[0:1], 0")
if PROBE >= 0:
    e("s_memrealtime s[%d:%d]" % (sSTAMP, sSTAMP + 1))
    e("s_memtime s[%d:%d]" % (sSTAMP + 6, sSTAMP + 7))
if STAMPS:
    e("s_memrealtime s[%d:%d]" % (sSTAMP, sSTAMP + 1))
    e("s_memtime s[92:93]")
e("v_lshrrev_b32 v1, 6, v0")
e("v_and_b32 v0, 63, v0")
e("v_readfirstlane_b32 s%d, v1" % sWAVE)
e("s_and_b32 s%d, s2, 7" % sG)
e("s_lshr_b32 s%d, s2, 5" % sB)
e("s_lshr_b32 s%d, s2, 3" % sHN)
e("s_and_b32 s%d, s%d, 3" % (sHN, sHN))
e("s_lshl_b32 s%d, s%d, 2" % (sH, sG))
e("s_add_u32 s%d, s%d, s%d" % (sH, sH, sHN))
e("s_lshl_b32 s%d, s%d, 5" % (sWGL, sB))
e("s_add_u32 s%d, s%d, s%d" % (sWGL, sWGL, sH))
e("s_cmp_lt_u32 s%d, 4" % sWAVE)
e("s_cbranch_scc1 L_compute")
e("v_lshrrev_b32 v1, 4, v0")
e("v_and_b32 v3, 15, v0")
e("v_lshlrev_b32 v2, 2, v1")
e("v_xor_b32 v2, v2, v3")
e("v_lshlrev_b32 v2, 4, v2")
e("s_cmp_eq_u32 s%d, 6" % sWAVE)
e("s_cbranch_scc1 L_ldx")
e("s_cmp_eq_u32 s%d, 7" % sWAVE)
e("s_cbranch_scc1 L_ldw")
e("s_cmp_eq_u32 s%d, 5" % sWAVE)
e("s_cbranch_scc1 L_ldv")
e.finish()

WOV = [14, 15, 16, 17]


def wo_setup(b):
    b("v_lshl_add_u32 v14, v1, 10, v2")
    b("v_add_u32 v15, 3072, v14")
    b("v_add_u32 v16, 6144, v14")
    b("v_add_u32 v17, 9216, v14")
    b("s_lshl_b32 s%d, s%d, 19" % (sT0, sG))
    b("s_lshl_b32 s%d, s%d, 8" % (sT1, sHN))
    b("s_add_u32 s%d, s%d, s%d" % (sT0, sT0, sT1))
    b("s_sub_u32 s%d, 0x400000, s%d" % (sT1, sT0))
    srd(b, SB, sWO, sT0, "s%d" % sT1)


def kv_tile(b, voffs):
    fl = OPT["nt_kv"]
    if OPT["noload"] and b.name in ("ldk", "ldv") and any(i.text.startswith("L_%sd:" % b.name[2]) for i in b.ins):
        return
    b("s_mov_b32 m0, s%d" % sLDS)
    b("s_add_u32 s%d, s%d, 4096" % (sT0, sLDS))
    dma_group(b, SA, voffs, sOFF, fl)
    b("s_mov_b32 m0, s%d" % sT0)
    b("s_add_u32 s%d, s%d, 4096" % (sOFF, sOFF))
    dma_group(b, SA, voffs, sOFF, fl)
    b("s_add_u32 s%d, s%d, 4096" % (sOFF, sOFF))
    b("s_add_u32 s%d, s%d, 8192" % (sLDS, sLDS))
    b("s_cmp_eq_u32 s%d, s%d" % (sLDS, sEND))
    b("s_cselect_b32 s%d, s%d, s%d" % (sLDS, sBEG, sLDS))


def wo_tile(b):
    b("s_mov_b32 m0, s%d" % sLDS)
    b("s_add_u32 s%d, s%d, 4096" % (sT0, sLDS))
    dma_group(b, SB, WOV, sOFF, OPT["nt_wo"])
    b("s_mov_b32 m0, s%d" % sT0)
    b("s_add_u32 s%d, s%d, 16384" % (sOFF, sOFF))
    dma_group(b, SB, WOV, sOFF, OPT["nt_wo"])
    b("s_add_u32 s%d, s%d, 16384" % (sOFF, sOFF))


def loop_begin(b, label, n):
    b("s_mov_b32 s%d, %d" % (sCNT, n))
    b(label + ":")


def loop_end(b, label):
    b("s_sub_u32 s%d, s%d, 1" % (sCNT, sCNT))
    b("s_cmp_lg_u32 s%d, 0" % sCNT)
    b("s_cbranch_scc1 " + label)


b = new("ldk")
b("L_ldk:")
for p in range(4):
    b("v_add_u32 v4, %d, v1" % (4 * p))
    b("v_xor_b32 v4, v4, v3")
    b("v_lshlrev_b32 v4, 4, v4")
    b("v_lshl_add_u32 v%d, v1, 8, v4" % (10 + p))
b("s_lshl_b32 s%d, s%d, 18" % (sT0, sWGL))
b("s_waitcnt lgkmcnt(0)")
srd(b, SA, sK, sT0, "0x40000")
b("s_mov_b32 s%d, 0" % sOFF)
b("s_mov_b32 s%d, %d" % (sLDS, KRING))
b("s_mov_b32 s%d, %d" % (sBEG, KRING))
b("s_mov_b32 s%d, %d" % (sEND, KRING + 49152))
KV4 = [10, 11, 12, 13]
wo_setup(b)


def tiles(b, label, voffs, n):
    if n > 1:
        b("s_mov_b32 s%d, %d" % (sT3, n))
        b(label + ":")
        kv_tile(b, voffs)
        b("s_sub_u32 s%d, s%d, 1" % (sT3, sT3))
        b("s_cmp_lg_u32 s%d, 0" % sT3)
        b("s_cbranch_scc1 " + label)
    elif n:
        kv_tile(b, voffs)


def q_phase_kv(b, tag, voffs, txt, hooks):
    early = [int(x) for x in OPT["early"].split(".")]
    at = [int(x) for x in txt.split(".")]
    assert max(early) <= at[0] and at == sorted(at) and at[2] >= 6
    b("s_add_u32 s%d, s%d, s%d" % (sT1, sB, sHN))
    b("s_and_b32 s%d, s%d, 3" % (sT1, sT1))
    b("s_lshl_b32 s%d, s%d, 2" % (sT1, sT1))
    b("s_lshr_b32 s%d, %d, s%d" % (sT1, sum(x << (4 * i) for i, x in enumerate(early)), sT1))
    b("s_and_b32 s%d, s%d, 15" % (sCNT, sT1))
    for i in range(8):
        b("s_barrier")
        b.add(hooks.get(i, []))
        if i in early:
            b("s_cmp_lg_u32 s%d, %d" % (sCNT, i))
            b("s_cbranch_scc1 L_%se%d" % (tag, i))
            b.add(hooks.get(100, []))
            tiles(b, "L_%sei%d" % (tag, i), voffs, 2)
            b("L_%se%d:" % (tag, i))
        tiles(b, "L_%sq%d" % (tag, i), voffs, at.count(i))
    if tag == "k":
        b("s_waitcnt vmcnt(%d)" % (8 * sum(x < 8 for x in at)))
    b("s_barrier")
    tiles(b, "L_%sq8" % tag, voffs, at.count(8))
    return 2 + sum(x <= 8 for x in at)


def att_phase_kv(b, tag, voffs, nxt, lead, dtxt, free_at, switch, stamps=False):
    steps = [x.split(":") for x in dtxt.split(".")]

    def depth(t):
        for st in steps:
            if len(st) == 1 or t < int(st[1]):
                return int(st[0])
    plan = []
    for t in range(32):
        need = t + lead
        wait = 8 * (nxt - 1 - need) if need <= 31 else None
        assert wait is None or wait >= 0, (tag, t)
        n = 0
        while nxt <= 31 and nxt <= need + depth(t) and n < 2:
            assert free_at(nxt) <= t, (tag, t, nxt)
            nxt += 1
            n += 1
        plan.append((wait, n, nxt))
    assert nxt == 32
    t = 0
    switched = False
    while t < 32:
        wait, n, after = plan[t]
        first = after - n
        if not switched and first >= switch[0]:
            assert first <= switch[1]
            b(switch[2])
            switched = True
        u = t
        while u + 1 < 32 and plan[u + 1][:2] == (wait, n) and (switched or plan[u + 1][2] - n < switch[0]) and u + 1 not in (30, 31):
            u += 1
        cnt = u - t + 1
        if cnt > 1:
            loop_begin(b, "L_%sa%d" % (tag, t), cnt)
        if wait is not None:
            b("s_waitcnt vmcnt(%d)" % wait)
        if stamps:
            b("s_memrealtime s[60:61]")
            b("s_waitcnt lgkmcnt(0)")
        b("s_barrier")
        if stamps:
            b("s_memrealtime s[62:63]")
            b("s_waitcnt lgkmcnt(0)")
            if cnt > 1:
                b("s_sub_u32 m0, %d, s%d" % (u + 1, sCNT))
            else:
                b("s_mov_b32 m0, %d" % t)
            b("s_nop 0")
            b("v_writelane_b32 v20, s60, m0")
            b("v_writelane_b32 v21, s62, m0")
        tiles(b, "L_%sai%d" % (tag, t), voffs, n)
        if cnt > 1:
            loop_end(b, "L_%sa%d" % (tag, t))
        if tag == "k" and u == 30:
            b("s_xor_b32 s%d, s%d, 3" % (sOFF, sHN))
            b("s_lshl_b32 s%d, s%d, 17" % (sOFF, sOFF))
            b("s_mov_b32 s%d, %d" % (sLDS, KRING))
            loop_begin(b, "L_k2", 4)
            wo_tile(b)
            b("s_add_u32 s%d, s%d, 8192" % (sLDS, sLDS))
            loop_end(b, "L_k2")
        t = u + 1


def wo3_tile(b, sNXT):
    b("s_add_u32 s%d, s%d, 2" % (sT1, sNXT))
    b("s_and_b32 s%d, s%d, 3" % (sT1, sT1))
    b("s_lshl_b32 s%d, s%d, 13" % (sLDS, sT1))
    b("s_xor_b32 s%d, s%d, 3" % (sOFF, sHN))
    b("s_lshl_b32 s%d, s%d, 2" % (sOFF, sOFF))
    b("s_add_u32 s%d, s%d, s%d" % (sOFF, sOFF, sT1))
    b("s_lshl_b32 s%d, s%d, 15" % (sOFF, sOFF))
    wo_tile(b)


def att_phase_dyn(b, tag, voffs, nxt, lead, f1, f2, tend, tsw, sw_at, sw_reg, sw_val, stamps=False):
    sT, sNXT, sA, sVM, sLIM, sTH = sCNT, 56, 57, 58, 59, 53
    b("s_mov_b32 s%d, 0" % sT)
    b("s_mov_b32 s%d, %d" % (sNXT, nxt))
    b("s_mov_b32 s%d, %d" % (sTH, OPT["thr0"]))
    b("s_mov_b32 s39, %d" % OPT["r1"])
    b("L_%sd:" % tag)
    b("s_sub_u32 s%d, s%d, s%d" % (sA, sNXT, sT))
    for a_ in (2, 3, 1, 4, 5):
        b("s_cmp_eq_u32 s%d, %d" % (sA, lead + 1 + a_))
        b("s_cbranch_scc1 L_%sd%d" % (tag, a_))
    b("s_waitcnt vmcnt(0)")
    for a_ in range(1, 6):
        b("L_%sd%d:" % (tag, a_))
        b("s_waitcnt vmcnt(%d)" % (8 * a_))
    if stamps:
        b("s_memrealtime s[60:61]")
        b("s_waitcnt lgkmcnt(0)")
    b("s_barrier")
    if stamps:
        b("s_memrealtime s[62:63]")
        b("s_waitcnt lgkmcnt(0)")
        b("s_mov_b32 m0, s%d" % sT)
        b("s_nop 0")
        b("v_writelane_b32 v20, s60, m0")
        b("v_writelane_b32 v21, s62, m0")
    if OPT["fair"]:
        per = OPT["fper"]
        ph = 0 if tag == "k" else (per + 1) // 2
        sR = 39
        b("s_and_b32 s%d, s%d, %d" % (sA, sT, per))
        b("s_cmp_lg_u32 s%d, %d" % (sA, ph))
        b("s_cbranch_scc1 L_%sf1" % tag)
        b("s_lshl_b32 s%d, s%d, 2" % (sVM, sT))
        b("s_add_u32 s%d, s%d, %d" % (sVM, sVM, 4 if ph == 0 else 128))
        b("s_mov_b32 s%d, 1" % sR)
        b("s_atomic_add s%d, s[%d:%d], s%d glc" % (sR, sDBG, sDBG + 1, sVM))
        b("L_%sf1:" % tag)
        b("s_cmp_lg_u32 s%d, %d" % (sA, (ph + min(per, 2)) & per))
        b("s_cbranch_scc1 L_%sf2" % tag)
        b("s_waitcnt lgkmcnt(0)")
        b("s_cmp_lt_u32 s%d, %d" % (sR, OPT["r1"]))
        b("s_cselect_b32 s%d, %d, %d" % (sTH, OPT["tlo"], OPT["thr0"]))
        b("s_cmp_ge_u32 s%d, %d" % (sR, OPT["r2"]))
        b("s_cselect_b32 s%d, %d, s%d" % (sTH, OPT["thi"], sTH))
        b("L_%sf2:" % tag)
    b("s_getreg_b32 s%d, hwreg(HW_REG_IB_STS, 22, 2)" % sA)
    b("s_getreg_b32 s%d, hwreg(HW_REG_IB_STS, 0, 4)" % sVM)
    b("s_lshl_b32 s%d, s%d, 4" % (sA, sA))
    b("s_or_b32 s%d, s%d, s%d" % (sVM, sVM, sA))
    if stamps:
        b("s_lshl_b32 s%d, s%d, 8" % (sLIM, sNXT))
        b("s_or_b32 s%d, s%d, s%d" % (sLIM, sLIM, sVM))
        b("s_add_u32 m0, s%d, 32" % sT)
        b("s_nop 0")
        b("v_writelane_b32 v20, s%d, m0" % sLIM)
    b("L_%sdi:" % tag)
    b("s_cmp_le_u32 s%d, 21" % sNXT)
    b("s_cselect_b32 s%d, %d, %d" % (sLIM, f1, f2))
    b("s_add_u32 s%d, s%d, s%d" % (sLIM, sLIM, sT))
    last = 35 if (tag == "k" and OPT["wo3"]) else 31
    b("s_min_u32 s%d, s%d, %d" % (sLIM, sLIM, last))
    b("s_cmp_gt_u32 s%d, s%d" % (sNXT, sLIM))
    b("s_cbranch_scc1 L_%sdn" % tag)
    b("s_cmp_le_u32 s%d, s%d" % (sVM, sTH))
    b("s_cbranch_scc1 L_%sdg" % tag)
    b("s_add_u32 s%d, s%d, %d" % (sLIM, sT, lead + 1))
    b("s_cmp_gt_u32 s%d, s%d" % (sNXT, sLIM))
    b("s_cbranch_scc1 L_%sdn" % tag)
    b("L_%sdg:" % tag)
    if last > 31:
        b("s_cmp_ge_u32 s%d, 32" % sNXT)
        b("s_cbranch_scc1 L_kdw")
    b("s_cmp_eq_u32 s%d, %d" % (sNXT, sw_at))
    b("s_cselect_b32 s%d, %d, s%d" % (sw_reg, sw_val, sw_reg))
    kv_tile(b, voffs)
    b("L_%sdj:" % tag)
    b("s_add_u32 s%d, s%d, 1" % (sNXT, sNXT))
    b("s_add_u32 s%d, s%d, 8" % (sVM, sVM))
    b("s_branch L_%sdi" % tag)
    if last > 31:
        b("L_kdw:")
        wo3_tile(b, sNXT)
        b("s_branch L_kdj")
    b("L_%sdn:" % tag)
    if stamps:
        b("s_memrealtime s[62:63]")
        b("s_waitcnt lgkmcnt(0)")
        b("s_add_u32 m0, s%d, 32" % sT)
        b("s_nop 0")
        b("v_writelane_b32 v21, s62, m0")
    b("s_add_u32 s%d, s%d, 1" % (sT, sT))
    b("s_cmp_eq_u32 s%d, %d" % (sT, tsw))
    b("s_cselect_b32 s%d, %d, s%d" % (sTH, OPT["thr1"], sTH))
    b("s_cmp_lt_u32 s%d, %d" % (sT, tend))
    b("s_cbranch_scc1 L_%sd" % tag)


pre = None
if OPT["wopf"] >= 0:
    b("s_lshl_b32 s%d, s%d, 19" % (sT0, sG))
    b("s_lshr_b32 s%d, s2, 3" % sT1)
    b("s_lshl_b32 s%d, s%d, 14" % (sT1, sT1))
    b("s_add_u32 s%d, s%d, s%d" % (sT0, sT0, sT1))
    srd(b, SC, sWO, sT0, "16384")
    b("v_lshlrev_b32 v18, 7, v0")
    b("v_add_u32 v19, 8192, v18")
    pre = (OPT["wopf"], ["buffer_load_dword v20, v18, s[%d:%d], 0 offen %s" % (SC, SC + 3, OPT["wopf_fl"]),
                         "buffer_load_dword v21, v19, s[%d:%d], 0 offen %s" % (SC, SC + 3, OPT["wopf_fl"])])
NK0 = q_phase_kv(b, "k", KV4, OPT["k_at"], {pre[0]: pre[1]} if pre else {})
if OPT["dynld"]:
    att_phase_dyn(b, "k", KV4, NK0, 2, 7, 5, 30, OPT["ksw"], 19, sEND, KRING + 32768)
    if OPT["wo3"]:
        b("s_barrier")
        b("L_k2:")
        wo3_tile(b, 56)
        b("s_add_u32 s56, s56, 1")
        b("s_cmp_le_u32 s56, 35")
        b("s_cbranch_scc1 L_k2")
    else:
        b("s_xor_b32 s%d, s%d, 3" % (sOFF, sHN))
        b("s_lshl_b32 s%d, s%d, 17" % (sOFF, sOFF))
        b("s_mov_b32 s%d, %d" % (sLDS, KRING))
        b("s_barrier")
        loop_begin(b, "L_k2", 4)
        wo_tile(b)
        b("s_add_u32 s%d, s%d, 8192" % (sLDS, sLDS))
        loop_end(b, "L_k2")
    b("s_barrier")
else:
    att_phase_kv(b, "k", KV4, NK0, 2, OPT["kd"], lambda j: max(0, (j - 6 if j <= 21 else j - 4) - 1), (18, 21, "s_mov_b32 s%d, %d" % (sEND, KRING + 32768)))
b("s_waitcnt vmcnt(0)")
b("s_barrier")
b("s_endpgm")
b.finish(hist=e.ins)

b = new("ldv")
b("L_ldv:")
for par in range(2):
    b("v_lshlrev_b32 v4, 1, v1")
    b("v_xor_b32 v4, v4, v3")
    if par:
        b("v_xor_b32 v4, 8, v4")
    b("v_lshlrev_b32 v4, 4, v4")
    b("v_lshl_add_u32 v%d, v1, 8, v4" % (10 + par))
b("s_lshl_b32 s%d, s%d, 18" % (sT0, sWGL))
b("s_waitcnt lgkmcnt(0)")
srd(b, SA, sV, sT0, "0x40000")
b("s_mov_b32 s%d, 0" % sOFF)
b("s_mov_b32 s%d, %d" % (sLDS, VRING + 2 * 8192))
b("s_mov_b32 s%d, %d" % (sBEG, VRING))
b("s_mov_b32 s%d, %d" % (sEND, VRING + 49152))
V4 = [10, 11, 10, 11]
b("s_mov_b32 s%d, %d" % (sT0, OPT["wsbase"]))
srd(b, SC, sWS, sT0, "0x%x" % (0x10000000 - OPT["wsbase"]))
b("v_mov_b32 v4, 0")
b("v_mov_b32 v5, 0")
b("s_lshl_b32 s%d, s%d, 11" % (sT0, sWGL))
b("v_lshlrev_b32 v8, 3, v0")
b("buffer_store_dwordx2 v[4:5], v8, s[%d:%d], s%d offen sc1" % (SC, SC + 3, sT0))
b("buffer_store_dwordx2 v[4:5], v8, s[%d:%d], s%d offen offset:1024 sc1" % (SC, SC + 3, sT0))
b("s_getreg_b32 s%d, hwreg(HW_REG_XCC_ID, 0, 4)" % sT1)
b("s_add_u32 s%d, s%d, 1" % (sT1, sT1))
b("v_mov_b32 v7, s%d" % sT1)
b("s_mov_b64 exec, 1")
b("buffer_store_dword v7, v4, s[%d:%d], s%d offen offset:512 sc1" % (SC, SC + 3, sT0))
b("s_mov_b64 exec, -1")
b("s_lshl_b32 s%d, s%d, 5" % (sT0, sB))
b("s_add_u32 s%d, s%d, s%d" % (SB, sDBG, sT0))
b("s_addc_u32 s%d, s%d, 0" % (SB + 1, sDBG + 1))
b("s_mov_b32 s%d, 1" % (SB + 2))
NV0 = q_phase_kv(b, "v", V4, OPT["v_at"],
           {0: ["s_waitcnt vmcnt(0)", "s_atomic_add s%d, s[%d:%d], 0x0" % (SB + 2, SB, SB + 1)]})
if OPT["dynld"]:
    att_phase_dyn(b, "v", V4, NV0, 0, 5, 3, 32, OPT["vsw"], 18, sBEG, VRING + 16384, STAMPS == 1)
else:
    att_phase_kv(b, "v", V4, NV0, 0, OPT["vd"], lambda j: (j - 6 if j <= 21 else j - 4) + 1, (16, 21, "s_mov_b32 s%d, %d" % (sBEG, VRING + 16384)), STAMPS == 1)
b("s_barrier")
if STAMPS:
    srd(b, SA, sWS, None, "0x10000000")
    b("s_lshl_b32 s%d, s2, 9" % sT0)
    b("s_add_u32 s%d, s%d, %d" % (sT0, sT0, ST_OFF + 0x100000))
    b("v_lshlrev_b32 v1, 2, v0")
    b("buffer_store_dword v20, v1, s[%d:%d], s%d offen" % (SA, SA + 3, sT0))
    b("buffer_store_dword v21, v1, s[%d:%d], s%d offen offset:256" % (SA, SA + 3, sT0))
b("s_endpgm")
b.finish(hist=e.ins)


def q_loader(b, tag, gstep, kstep_shift, ldsbase, blk, flags):
    def chunk():
        b("s_lshl_b32 s%d, s%d, %d" % (sOFF, sT2, kstep_shift))
        b("s_mov_b32 m0, s%d" % sLDS)
        b("s_add_u32 s%d, s%d, 1" % (sT2, sT2))
        dma_group(b, SA, [10, 11, 12, 13], sOFF, flags)
        for g in range(1, 4):
            b("s_add_u32 m0, s%d, %d" % (sLDS, 4096 * g))
            b("s_add_u32 s%d, s%d, %d" % (sOFF, sOFF, gstep))
            dma_group(b, SA, [10, 11, 12, 13], sOFF, flags)
        b("s_and_b32 s%d, s%d, 7" % (sT2, sT2))
        b("s_add_u32 s%d, s%d, 32768" % (sLDS, sLDS))
        b("s_cmp_eq_u32 s%d, %d" % (sLDS, ldsbase - STG + XREG + 32768))
        b("s_cselect_b32 s%d, %d, s%d" % (sLDS, ldsbase, sLDS))
        b("s_cmp_eq_u32 s%d, %d" % (sLDS, ldsbase + 65536))
        b("s_cselect_b32 s%d, %d, s%d" % (sLDS, ldsbase - STG + XREG, sLDS))
    b("s_lshl_b32 s%d, s%d, 1" % (sT2, sHN))
    b("s_add_u32 s%d, s%d, s%d" % (sT2, sT2, sB))
    b("s_and_b32 s%d, s%d, %d" % (sT2, sT2, OPT["rotmask"]))
    b("s_mov_b32 s%d, %d" % (sLDS, ldsbase))
    loop_begin(b, "L_%s0" % tag, 2)
    chunk()
    loop_end(b, "L_%s0" % tag)
    loop_begin(b, "L_%s1" % tag, 6)
    if STAMPS == 4:
        b("s_memrealtime s[58:59]")
        b("s_waitcnt lgkmcnt(0)")
    b("s_waitcnt vmcnt(16)")
    if STAMPS == 4:
        b("s_memrealtime s[60:61]")
        b("s_waitcnt lgkmcnt(0)")
    b("s_barrier")
    if STAMPS == 4:
        b("s_memrealtime s[62:63]")
        b("s_waitcnt lgkmcnt(0)")
        b("s_mov_b32 m0, s%d" % sCNT)
        b("s_nop 0")
        b("v_writelane_b32 v19, s58, m0")
        b("v_writelane_b32 v20, s60, m0")
        b("v_writelane_b32 v21, s62, m0")
    chunk()
    loop_end(b, "L_%s1" % tag)
    wo_setup(b)
    b("s_waitcnt vmcnt(16)")
    b("s_barrier")
    b("s_waitcnt vmcnt(0)")
    b("s_barrier")
    b("s_barrier")
    b("s_setprio 0")
    first = 4 if blk == 0 else 2
    for i in range(first + 1):
        b("s_barrier")
    if tag == "w" and OPT["chk"]:
        b("s_lshl_b32 s%d, s%d, 5" % (sT0, sB))
        b("s_add_u32 s%d, s%d, s%d" % (SC, sDBG, sT0))
        b("s_addc_u32 s%d, s%d, 0" % (SC + 1, sDBG + 1))
        b("s_load_dword s%d, s[%d:%d], 0x0 glc" % (SC + 2, SC, SC + 1))
    b("s_xor_b32 s%d, s%d, %d" % (sOFF, sHN, blk))
    b("s_lshl_b32 s%d, s%d, 17" % (sOFF, sOFF))
    b("s_mov_b32 s%d, %d" % (sLDS, STG + blk * 32768))
    loop_begin(b, "L_%s2" % tag, 4)
    wo_tile(b)
    b("s_add_u32 s%d, s%d, 8192" % (sLDS, sLDS))
    for i in range(4):
        b("s_barrier")
    loop_end(b, "L_%s2" % tag)
    b("s_xor_b32 s%d, s%d, 2" % (sOFF, sHN))
    b("s_lshl_b32 s%d, s%d, 17" % (sOFF, sOFF))
    b("s_add_u32 s%d, s%d, %d" % (sOFF, sOFF, blk * 65536))
    b("s_mov_b32 s%d, %d" % (sLDS, XREG + blk * 16384))
    wo_tile(b)
    b("s_add_u32 s%d, s%d, 8192" % (sLDS, sLDS))
    if tag == "w" and not OPT["chk"]:
        b("s_lshl_b32 s%d, s%d, 5" % (sT0, sB))
        b("s_add_u32 s%d, s%d, s%d" % (SC, sDBG, sT0))
        b("s_addc_u32 s%d, s%d, 0" % (SC + 1, sDBG + 1))
        b("s_load_dword s%d, s[%d:%d], 0x0 glc" % (SC + 2, SC, SC + 1))
    for i in range(4):
        b("s_barrier")
    wo_tile(b)
    done = first + 20
    if tag == "w":
        for i in range(3):
            b("s_barrier")
        done += 3
        b("s_mov_b32 s%d, 0x100000" % sCNT)
        b("s_branch L_wchk")
        b("L_wpoll:")
        b("s_load_dword s%d, s[%d:%d], 0x0 glc" % (SC + 2, SC, SC + 1))
        b("L_wchk:")
        b("s_waitcnt lgkmcnt(0)")
        b("s_sub_u32 s%d, s%d, 1" % (sCNT, sCNT))
        b("s_cbranch_scc1 L_wpolld")
        b("s_cmp_lt_u32 s%d, 32" % (SC + 2))
        b("s_cbranch_scc1 L_wpoll")
        b("L_wpolld:")
    for i in range(29 - done):
        b("s_barrier")
    b("s_waitcnt vmcnt(0)")
    b("s_barrier")
    b("s_barrier")
    b("s_barrier")
    if STAMPS == 4:
        srd(b, SA, sWS, None, "0x10000000")
        b("s_lshl_b32 s%d, s2, 11" % sT0)
        b("s_add_u32 s%d, s%d, %d" % (sT0, sT0, ST_OFF + 0x200000 + blk * 1024))
        b("v_lshlrev_b32 v1, 2, v0")
        for i in range(3):
            b("buffer_store_dword v%d, v1, s[%d:%d], s%d offen offset:%d" % (19 + i, SA, SA + 3, sT0, 256 * i))
    b("s_endpgm")


b = new("ldx")
b("L_ldx:")
b("s_setprio %d" % OPT["prio_x"])
b("v_lshrrev_b32 v5, 3, v0")
b("v_and_b32 v6, 7, v0")
b("v_lshrrev_b32 v7, 1, v5")
for p in range(4):
    b("v_add_u32 v4, %d, v7" % (4 * (p & 1)))
    b("v_xor_b32 v4, v4, v6")
    b("v_lshlrev_b32 v4, 4, v4")
    b("v_lshl_add_u32 v4, v5, 10, v4")
    b("v_add_u32 v%d, %d, v4" % (10 + p, p * (8192 - 1024)))
b("s_mul_i32 s%d, s%d, 114688" % (sT0, sB))
b("s_waitcnt lgkmcnt(0)")
srd(b, SA, sX, sT0, "114688")
q_loader(b, "x", 32768, 7, STG, 0, OPT["nt_x"])
b.finish(hist=e.ins)

b = new("ldw")
b("L_ldw:")
b("s_setprio %d" % OPT["prio_w"])
b("v_lshlrev_b32 v4, 1, v1")
b("v_xor_b32 v4, v4, v3")
b("v_lshlrev_b32 v4, 4, v4")
b("v_lshl_add_u32 v10, v1, 13, v4")
b("v_add_u32 v11, %d, v10" % (32768 - 1024))
b("v_xor_b32 v4, 128, v10")
b("v_add_u32 v12, %d, v4" % (2 * (32768 - 1024)))
b("v_add_u32 v13, %d, v4" % (3 * (32768 - 1024)))
b("s_lshl_b32 s%d, s%d, 8" % (sT0, sH))
b("s_sub_u32 s%d, 0x400000, s%d" % (sT1, sT0))
b("s_waitcnt lgkmcnt(0)")
srd(b, SA, sWQ, sT0, "s%d" % sT1)
q_loader(b, "w", 131072, 19, STG + 16384, 1, OPT["nt_w"])
b.finish(hist=e.ins)

c = new("compute_pro")
c("L_compute:")
if OPT["codepf"]:
    c("s_cmp_lg_u32 s%d, 1" % sWAVE)
    c("s_cbranch_scc1 L_nopf")
    c("s_getpc_b64 s[56:57]")
    c("L_pc:")
    c("s_sub_u32 s56, s56, L_pc-L_start")
    c("s_subb_u32 s57, s57, 0")
    c("s_lshr_b32 s%d, s2, 3" % sT0)
    c("s_and_b32 s%d, s%d, 7" % (sT0, sT0))
    c("s_mul_i32 s%d, s%d, ((L_codeend-L_start+1023)/1024)*128" % (sT0, sT0))
    c("v_lshlrev_b32 v1, 7, v0")
    c("v_add_u32 v1, s%d, v1" % sT0)
    c("v_min_u32 v1, L_codeend-L_start-4, v1")
    c("v_mov_b32 v3, s57")
    c("v_add_co_u32 v2, vcc, s56, v1")
    c("s_nop 1")
    c("v_addc_co_u32 v3, vcc, 0, v3, vcc")
    c("v_cmp_gt_u32 vcc, (L_codeend-L_start+1023)/1024, v0")
    c("s_and_saveexec_b64 s[58:59], vcc")
    c("global_load_dword v255, v[2:3], off")
    c("s_mov_b64 exec, -1")
    c("L_nopf:")
c("v_lshrrev_b32 v1, 4, v0")
c("v_and_b32 v2, 15, v0")
c("v_lshrrev_b32 v3, 5, v0")
c("v_and_b32 v4, 1, v1")
c("v_lshl_add_u32 v3, v4, 1, v3")
c("v_xor_b32 v3, v3, v2")
c("v_lshlrev_b32 v3, 4, v3")
c("v_lshl_add_u32 v%d, v2, 8, v3" % aK)
for ks in range(1, 4):
    c("v_xor_b32 v%d, %d, v%d" % (aK + ks, ks << 6, aK))
c("s_lshl_b32 s%d, s%d, 12" % (sT0, sWAVE))
c("s_add_u32 s%d, s%d, %d" % (sT0, sT0, STG))
c("v_lshrrev_b32 v3, 1, v2")
c("v_xor_b32 v3, v3, v1")
c("v_lshlrev_b32 v3, 4, v3")
c("v_lshl_add_u32 v3, v2, 7, v3")
c("v_add_u32 v%d, s%d, v3" % (aXq, sT0))
c("v_xor_b32 v%d, 64, v%d" % (aXq + 1, aXq))
c("v_bfe_u32 v2, v0, 2, 2")
c("v_lshrrev_b32 v3, 2, v0")
c("v_and_b32 v4, 7, v3")
c("v_lshlrev_b32 v4, 5, v4")
c("v_lshl_add_u32 v3, v3, 8, v4")
c("v_and_b32 v4, 3, v0")
c("v_lshl_add_u32 v3, v4, 3, v3")
c("v_add_u32 v%d, %d, v3" % (aV, VRING + 16384))
for db in range(1, 8):
    c("v_xor_b32 v%d, %d, v%d" % (aV + db, db << 5, aV))
c("v_lshl_add_u32 v3, v1, 10, v3")
c("v_add_u32 v%d, %d, v3" % (aWq, STG + 16384))
for db in range(1, 8):
    c("v_xor_b32 v%d, %d, v%d" % (aWq + db, db << 5, aWq))
c("v_mul_u32_u24 v2, 320, v2")
c("v_lshrrev_b32 v3, 5, v0")
c("v_lshl_add_u32 v3, v3, 11, v2")
c("v_and_b32 v4, 1, v1")
c("v_lshl_add_u32 v3, v4, 5, v3")
c("v_and_b32 v4, 1, v0")
c("v_lshl_add_u32 v3, v4, 4, v3")
c("v_bfe_u32 v4, v0, 1, 1")
c("v_lshl_add_u32 v3, v4, 3, v3")
c("s_lshl_b32 s%d, s%d, 5" % (sT0, sG))
c("v_xor_b32 v%d, s%d, v3" % (vLO, sT0))
c("s_cmp_eq_u32 s%d, 3" % sWAVE)
c("s_mov_b32 s%d, %s" % (sT0, f32(3e38)))
c("s_cselect_b32 s%d, %s, s%d" % (sPADM, f32(-1e30), sT0))
c("v_and_b32 v2, 31, v0")
c("s_lshl_b32 s%d, s%d, 5" % (sT0, sWAVE))
c("v_add_u32 v3, s%d, v2" % sT0)
c("v_lshlrev_b32 v%d, 4, v0" % vE)
c("v_cmp_lt_u32 vcc, 111, v3")
c("v_bfrev_b32 v3, 1")
c("v_cndmask_b32 v3, 0, v3, vcc")
c("v_or_b32 v%d, v%d, v3" % (vE, vE))
for i in range(64):
    c("v_mov_b32 v%d, 0" % (ACC + i))
c("s_mov_b32 s%d, %s" % (sCS, f32(CSC)))
c("s_mov_b32 s%d, %s" % (sCS + 1, f32(CSC)))
c("s_mov_b32 s%d, %s" % (sTHR, f32(0.0 if OPT["force_rescale"] else OPT["thr"])))
c("s_waitcnt lgkmcnt(0)")
c("s_mov_b32 s%d, %d" % (sT0, OPT["wsbase"]))
srd(c, SA, sWS, sT0, "0x%x" % (0x10000000 - OPT["wsbase"]))
c("s_mul_i32 s%d, s%d, 114688" % (sT0, sB))
srd(c, SB, sOUT, sT0, "114688")
c("s_lshl_b32 s%d, s%d, 7" % (sT0, sWAVE))
c("v_xor_b32 v1, s%d, v0" % sWGL)
c("v_lshlrev_b32 v1, 11, v1")
c("v_lshl_add_u32 v2, v0, 2, s%d" % sT0)
c("v_add_u32 v1, v1, v2")
c("s_lshl_b32 s%d, s%d, 11" % (sT1, sWGL))
c("v_add_u32 v2, s%d, v2" % sT1)
c("v_subrev_u32 v3, 1, v0")
c("v_cmp_gt_u32 vcc, 3, v3")
c("v_bfrev_b32 v3, 1")
c("s_nop 0")
c("v_cndmask_b32 v%d, v3, v1, vcc" % vM1)
c("v_cndmask_b32 v%d, v3, v2, vcc" % vP1)
c("v_xor_b32 v1, s%d, v0" % sWGL)
c("v_lshlrev_b32 v1, 11, v1")
c("v_add_u32 v1, 512, v1")
c("v_cmp_gt_u32 vcc, 4, v0")
c("v_bfrev_b32 v2, 1")
c("s_nop 0")
c("v_cndmask_b32 v%d, v2, v1, vcc" % vINFO)
c("v_and_b32 v1, 31, v0")
c("s_lshl_b32 s%d, s%d, 5" % (sT0, sWAVE))
c("v_add_u32 v1, s%d, v1" % sT0)
c("v_lshlrev_b32 v1, 10, v1")
c("v_lshrrev_b32 v2, 5, v0")
c("v_lshl_add_u32 v%d, v2, 4, v1" % vOUT)
c("s_lshl_b32 s%d, s%d, 8" % (sT0, sHN))
c("s_lshl_b32 s%d, s%d, 5" % (sT1, sG))
c("s_add_u32 s%d, s%d, s%d" % (sOFF, sT0, sT1))
c("s_lshl_b32 s%d, s%d, 15" % (sE1, sWGL))
c("s_lshl_b32 s%d, s%d, 13" % (sT0, sWAVE))
c("s_add_u32 s%d, s%d, s%d" % (sE1, sE1, sT0))
c("s_add_u32 s%d, s%d, %d" % (sE1, sE1, E1_OFF))
c("s_lshl_b32 s%d, s%d, 2" % (sT0, sB))
c("s_add_u32 s%d, s%d, s%d" % (sT0, sT0, sHN))
c("s_lshl_b32 s%d, s%d, 18" % (sT0, sT0))
c("s_lshl_b32 s%d, s%d, 10" % (sT1, sWAVE))
c("s_add_u32 s%d, s%d, s%d" % (sT0, sT0, sT1))
c("s_add_u32 s%d, s%d, %d" % (sE2P, sT0, E2_OFF))
c("s_lshl_b32 s%d, s%d, 15" % (sT1, sG))
c("s_add_u32 s%d, s%d, s%d" % (sE2C, sE2P, sT1))


def q_reads(s_):
    W = VF if s_ == 0 else S0
    r = ["ds_read_b128 %s, v%d offset:%d" % (vr(XB + 8 * s_ + 4 * blk, 4), aXq + s_, blk * 2048) for blk in range(2)]
    for db in range(8):
        for u in range(2):
            r.append("ds_read_b64_tr_b16 %s, v%d offset:%d" % (vr(W + 4 * db + 2 * u, 2), aWq + db, s_ * 8192 + u * 1024))
    if OPT["qdiag"] & 1:
        r = ["s_nop 0"] * 18
    return r


def k_reads(slot_off):
    return ["ds_read_b128 %s, v%d offset:%d" % (vr(KF + 16 * kb + 4 * ks, 4), aK + ks, slot_off + kb * 4096)
            for ks in range(4) for kb in range(2)]


def q_mfmas(s_):
    W = VF if s_ == 0 else S0
    r = []
    for db in range(8):
        for blk in range(2):
            d = vr(ACC + 32 * blk + 4 * db, 4)
            r.append("%s %s, %s, %s, %s" % (M16, d, vr(W + 4 * db, 4), vr(XB + 8 * s_ + 4 * blk, 4), d))
    if OPT["qdiag"] & 2:
        r = ["s_nop 0"] * 16
    return r


c("s_mov_b32 s%d, %d" % (sT2, sum(((1, -3, 2)[i % 3] + 3) << (3 * i) for i in range(8))))
c("s_mov_b32 s%d, 8" % sCNT)
c("s_barrier")
stamp(c, 1)
c.add(q_reads(0))
lgq0, _ = c.finish(hist=e.ins)

ql = new("qloop")
ql("L_q:")
tabq = ["s_and_b32 s%d, s%d, 7" % (sDEL, sT2), "s_lshr_b32 s%d, s%d, 3" % (sT2, sT2),
        "s_sub_u32 s%d, s%d, 3" % (sDEL, sDEL), "s_lshl_b32 s%d, s%d, 15" % (sDEL, sDEL)]
adv = ["v_add_u32 v%d, s%d, v%d" % (r_, sDEL, r_) for r_ in range(aWq, aWq + 10)]


def spread(items, counts):
    out, k = [], 0
    for n in counts:
        out.append(items[k:k + n])
        k += n
    assert k == len(items)
    return out


def q_barrier():
    ql("s_waitcnt lgkmcnt(0)")
    ql("s_barrier")
    if 20 < PROBE < 40:
        ql("s_cmp_lg_u32 s%d, %d" % (sCNT, 9 - (PROBE - 20)))
        ql("s_cbranch_scc1 L_noprobe")
        ql("s_memrealtime s[%d:%d]" % (sSTAMP + 2, sSTAMP + 3))
        ql("L_noprobe:")


if OPT["qs"] == 0:
    gaps = spread(q_reads(1), [2] * 9 + [0] * 7)
    gaps[9] = tabq
    for i in range(5):
        gaps[10 + i] = adv[2 * i:2 * i + 2]
    ql.add(interleave(q_mfmas(0), gaps))
    q_barrier()
    ql.add(interleave(q_mfmas(1), spread(q_reads(0), [2] * 9 + [0] * 7)))
else:
    NB_ = {1: 4, 2: 6}[OPT["qs"]]
    gaps = spread(q_reads(1), [2, 1, 2, 1, 2, 1, 1, 1, 1, 1, 1, 1, 1, 1, 1, 0])
    gaps[1] += tabq[:2]
    gaps[3] += tabq[2:]
    ql.add(interleave(q_mfmas(0), gaps))
    m1 = q_mfmas(1)
    ql.add(interleave(m1[:NB_], spread(adv, {4: [3, 2, 3, 2], 6: [2, 2, 2, 2, 1, 1]}[NB_])))
    q_barrier()
    ql.add(interleave(m1[NB_:], spread(q_reads(0), {4: [2, 2, 2, 1, 2, 1, 2, 1, 2, 1, 1, 1], 6: [2, 2, 2, 2, 2, 2, 2, 2, 1, 1]}[NB_])))
loop_end(ql, "L_q")
lgq1, _ = ql.finish(hist=c.ins, lgq=lgq0)
assert lgq1 == lgq0[-len(lgq1):] or STAMPS or PROBE >= 1 or OPT["qdiag"], (lgq0, lgq1)
pad_hazards(ql.ins, hist=ql.ins, check_only=True, where="q loop back edge")

q = new("attn_pro")
stamp(q, 2)
q("s_waitcnt lgkmcnt(0)")
q.add(k_reads(0))
q("s_waitcnt vmcnt(0)")
aO1, aO2, aO3 = aK, aW, aV
for nt in range(4):
    q("v_xor_b32 v%d, %d, v%d" % (aO2 + nt, nt << 6, vLO))


def conv(ks):
    r = []
    for blk in range(2):
        a0 = ACC + 32 * blk + 8 * ks
        f0 = QF + 16 * blk + 4 * ks
        if ks == 0 or OPT["pro"] == 0:
            r += ["v_pk_mul_f32 %s, %s, s[%d:%d]" % (vr(a0 + 2 * j, 2), vr(a0 + 2 * j, 2), sCS, sCS + 1) for j in range(4)]
        else:
            r += ["v_mul_f32 v%d, s%d, v%d" % (a0 + j, sCS, a0 + j) for j in range(8)]
        r += ["v_cvt_pk_bf16_f32 v%d, v%d, v%d" % (f0 + j, a0 + 2 * j, a0 + 2 * j + 1) for j in range(4)]
    for blk in range(2):
        f0 = QF + 16 * blk + 4 * ks
        r += ["v_permlane16_swap_b32 v%d, v%d" % (f0 + j, f0 + 2 + j) for j in range(2)]
    return r


def qk_list(SN, first):
    r = []
    for ks in range(4):
        for kb in range(2):
            for blk in range(2):
                d = vr(SN + 8 * blk + 4 * kb, 4)
                cc = d if ks else ("0" if first else vr(NM[blk], 4))
                r.append("%s %s, %s, %s, %s" % (M16, d, vr(KF + 16 * kb + 4 * ks, 4), vr(QF + 16 * blk + 4 * ks, 4), cc))
    return r


k1 = k_reads(8192)
init = ["v_mov_b32 v%d, 0" % (vL[0] + i) for i in range(8)] + ["v_mov_b32 v%d, 0x3f803f80" % (ONES + i) for i in range(4)]
if OPT["pro"] == 0:
    for ks in range(4):
        q.add(conv(ks))
    gaps = []
    for i in range(16):
        g = ["v_mov_b32 v%d, 0" % (ACC + 4 * i + j) for j in range(4)]
        if i & 1:
            g.append(k1[i >> 1])
        gaps.append(g)
    q.add(interleave(qk_list(S0, True), gaps))
    q.add(init)
else:
    q.add(conv(0))
    q.add(init[:4])
    qk0 = qk_list(S0, True)
    for ks in range(3):
        g = spread(conv(ks + 1), [7, 7, 7, 7])
        g[2].insert(0, k1[2 * ks])
        if ks:
            g[0].insert(0, k1[2 * ks - 1])
        q.add(interleave(qk0[4 * ks:4 * ks + 4], g))
    q.add(interleave(qk0[12:], [[k1[5]] + init[4:6], init[6:8], [k1[6]] + init[8:10], init[10:]]))
    z = vr(vL[0], 4)
    q.add(interleave(["%s %s, %s, %s, 0" % (M32, vr(ACC + 16 * i, 16), z, z) for i in range(4)], [[k1[7]], [], [], []]))
for ks in range(4):
    q("v_add_u32 v%d, 16384, v%d" % (aK + ks, aK + ks))


def blk_max(b, S, dst, tmp):
    b("v_max3_f32 v%d, v%d, v%d, v%d" % (dst, S, S + 1, S + 2))
    b("v_max3_f32 v%d, v%d, v%d, v%d" % (dst, dst, S + 3, S + 4))
    b("v_max3_f32 v%d, v%d, v%d, v%d" % (dst, dst, S + 5, S + 6))
    b("v_max_f32 v%d, v%d, v%d" % (dst, dst, S + 7))
    lane_reduce(b, "v_max_f32", dst, tmp)


def lane_reduce(b, op, dst, tmp):
    b("v_mov_b32 v%d, v%d" % (tmp, dst))
    b("v_permlane32_swap_b32 v%d, v%d" % (tmp, dst))
    b("%s v%d, v%d, v%d" % (op, dst, tmp, dst))
    b("v_mov_b32 v%d, v%d" % (tmp, dst))
    b("v_permlane16_swap_b32 v%d, v%d" % (tmp, dst))
    b("%s v%d, v%d, v%d" % (op, dst, tmp, dst))


chains = []
for blk in range(2):
    tb = Block()
    blk_max(tb, S0 + 8 * blk, *((1, 2) if blk == 0 else (vTM, NM[1] + 1)))
    tb("v_sub_f32 v%d, 0, v%d" % (NM[blk], 1 if blk == 0 else vTM))
    if blk == 1:
        tb("v_min_f32 v%d, s%d, v%d" % (NM[blk], sPADM, NM[blk]))
    for j in range(1, 4):
        tb("v_mov_b32 v%d, v%d" % (NM[blk] + j, NM[blk]))
    for i in range(8):
        tb("v_add_f32 v%d, v%d, v%d" % (S0 + 8 * blk + i, S0 + 8 * blk + i, NM[blk]))
    chains.append(tb.ins)
for i in range(max(map(len, chains))):
    q.add([ch[i] for ch in chains if i < len(ch)])
KSEQ = [1, 2, 0, 1, 2, 0, 1, 2, 0, 1, 0, 1, 0, 1, 0, 0]
VSEQ = [1, 2, 0, 1, 2, 0, 1, 2, 0, 1, 2, 1, 2, 1, 2, 1]
for tab, seq in ((sTABK, KSEQ), (sTABV, VSEQ)):
    q("s_mov_b32 s%d, 0x%x" % (tab, sum((seq[i + 1] - seq[i] + 2) << (2 * i) for i in range(15))))
q("s_mov_b32 s%d, 15" % sCNT)
stamp(q, 3)
q.finish(hist=ql.ins)


def v_read(db, u, off):
    return "ds_read_b64_tr_b16 %s, v%d offset:%d" % (vr(VF + 4 * db + 2 * u, 2), aV + db, off + u * 4096)


def ex(S, i):
    return "v_exp_f32 v%d, v%d" % (S + i, S + i)


def cvt(S, j):
    return "v_cvt_pk_bf16_f32 v%d, v%d, v%d" % (PK + j, S + 2 * j, S + 2 * j + 1)


def add(S, i):
    return "v_add_f32 v%d, v%d, v%d" % (vL[i >> 3], vL[i >> 3], S + i)


def pv_list():
    r = []
    for db in range(8):
        for blk in range(2):
            d = vr(ACC + 32 * blk + 4 * db, 4)
            r.append("%s %s, %s, %s, %s" % (M16, d, vr(VF + 4 * db, 4), vr(PK + 4 * blk, 4), d))
    return r


def sum_mfma(blk):
    return "%s %s, %s, %s, %s" % (M16, vr(vL[blk], 4), vr(ONES, 4), vr(PK + 4 * blk, 4), vr(vL[blk], 4))


def max_tree(S):
    r = ["v_max3_f32 v%d, v%d, v%d, v%d" % (vTM, S, S + 1, S + 2)]
    for i in range(3, 15, 2):
        r.append("v_max3_f32 v%d, v%d, v%d, v%d" % (vTM, vTM, S + i, S + i + 1))
    r.append("v_max_f32 v%d, v%d, v%d" % (vTM, vTM, S + 15))
    return r


def epoch_b0(b, S, SN, vrd, kr, adv, sc):
    ga = [[] for _ in range(16)]
    gb = [[] for _ in range(18)]
    nA = {10: 8, 11: 10, 12: 12}[sc]
    for i in range(16):
        ga[i if sc != 12 else min(i, 15)].append(vrd[i])
    pos = [int(i * 16 / nA) for i in range(nA)]
    for i in range(nA):
        ga[pos[i]].append(ex(S, i))
    for j in range(4):
        ga[min(15, pos[2 * j + 1] + 1)].insert(0, cvt(S, j))
    b.add(interleave(qk_list(SN, False), ga))
    b("s_waitcnt lgkmcnt(%d)" % 8)
    pv = pv_list()
    order = [pv[2 * db] for db in range(4)] + ["WAIT"] + [pv[2 * db] for db in range(4, 8)] + [sum_mfma(0)] + \
            [pv[2 * db + 1] for db in range(8)] + [sum_mfma(1)]
    for i in range(nA, 16):
        gb[i - nA].append(ex(S, i))
    for j in range(4, 8):
        gb[max(0, 2 * j + 1 - nA + 1)].append(cvt(S, j))
    for i in range(8):
        gb[4 + i].append(kr[i])
    mx = max_tree(SN)
    for i in range(8):
        gb[9 + i].append(mx[i])
    if adv:
        for tab, dl, gi in ((sTABV, sDELV, 0), (sTABK, sDEL, 1)):
            gb[gi] += ["s_and_b32 s%d, s%d, 3" % (dl, tab), "s_lshr_b32 s%d, s%d, 2" % (tab, tab),
                       "s_sub_u32 s%d, s%d, 2" % (dl, dl), "s_lshl_b32 s%d, s%d, 14" % (dl, dl)]
        for i in range(8):
            gb[9 + i].append("v_add_u32 v%d, s%d, v%d" % (aV + i, sDELV, aV + i))
        for i in range(4):
            gb[13 + i].append("v_add_u32 v%d, s%d, v%d" % (aK + i, sDEL, aK + i))
    k = 0
    for x in order:
        if x == "WAIT":
            b("s_waitcnt lgkmcnt(0)")
            continue
        b(x)
        b.add([y for y in gb[k] if y is not None])
        k += 1


def epoch_p(b, S, SN, vrd, kr, adv, sc):
    A = "e0|t0 t1|e1|t2 c0|e2|t3 t4|e3|t5 c1|e4|t6 t7|e5|t8 c2|e6|t9 e7|t10 c3|t11 e8"
    B = {20: "t12 t13|t14 e9|t15 e10|c4 e11|k0 e12|c5 e13|k1 e14|c6 e15|k2 c7 m0 m1|k3 m2|k4 m3|k5 m4|k6 m5|k7 m6|m7 a|x a|a a|a a",
         21: "t12 t13|t14 e9|t15 e10|c4 e11|e12|c5 e13|e14|c6 e15|k0 c7 m0 m1|k1 k2|k3 m2|k4 m3|k5 m4|k6 m5|k7 m6|m7 a|x a|a a",
         22: "t12 t13|t14 e9|t15 e10|k0 c4 e11|k1 e12|k2 c5 e13|k3 e14|k4 c6 e15|k5 c7 m0 m1|k6 m2|k7 m3|m4 m5|m6 m7|x a|a a|a a|a a|a a"}[sc]
    mx = max_tree(SN)
    adds = []
    if adv:
        adds = ["v_add_u32 v%d, s%d, v%d" % (aV + i, sDELV, aV + i) for i in range(8)] + \
               ["v_add_u32 v%d, s%d, v%d" % (aK + i, sDEL, aK + i) for i in range(4)]

    def ins(tok):
        k, n = tok[0], int(tok[1:]) if len(tok) > 1 else 0
        if k == "a":
            return adds.pop(0) if adds else None
        if k == "x":
            return "v_cmp_lt_f32 vcc, s%d, v%d" % (sTHR, vTM)
        return {"e": lambda: ex(S, n), "t": lambda: vrd[n], "c": lambda: cvt(S, n), "k": lambda: kr[n], "m": lambda: mx[n]}[k]()
    ga = [[ins(x) for x in g.split()] for g in A.split("|")]
    if adv:
        for tab, dl, gi in ((sTABV, sDELV, 1), (sTABK, sDEL, 5)):
            ga[gi] += ["s_and_b32 s%d, s%d, 3" % (dl, tab), "s_lshr_b32 s%d, s%d, 2" % (tab, tab)]
            ga[gi + 2] += ["s_sub_u32 s%d, s%d, 2" % (dl, dl), "s_lshl_b32 s%d, s%d, 14" % (dl, dl)]
    b.add(interleave(qk_list(SN, False), ga))
    pv = pv_list()
    order = [pv[2 * db] for db in range(8)] + [sum_mfma(0)] + [pv[2 * db + 1] for db in range(8)] + [sum_mfma(1)]
    gb = [[ins(x) for x in g.split()] for g in B.split("|")]
    gb[-1] += adds[:]
    nk = 0 if kr[0] is None else 1
    for i, (m_, g) in enumerate(zip(order, gb)):
        if i == 0:
            b("s_waitcnt lgkmcnt(4)")
        if i == 4:
            b("s_waitcnt lgkmcnt(%d)" % (4 + (nk if sc == 22 else 0)))
        b(m_)
        b.add([y for y in g if y is not None])


def epoch(b, par, kread=True, adv=False, tag="", head=()):
    S, SN = (S0, S1) if par == 0 else (S1, S0)
    off = par * 8192
    vrd = [v_read(db, u, off) for db in range(8) for u in range(2)]
    kr = k_reads(off) if kread else [None] * 8
    b("s_waitcnt lgkmcnt(0)")
    b("s_barrier")
    b.add(head)
    SC_ = OPT["sched"]
    if SC_ >= 10:
        if SC_ >= 20:
            epoch_p(b, S, SN, vrd, kr, adv, SC_)
        else:
            epoch_b0(b, S, SN, vrd, kr, adv, SC_)
            b("v_cmp_lt_f32 vcc, s%d, v%d" % (sTHR, vTM))
        b("s_cbranch_vccnz L_resc%s" % tag)
        b("L_back%s:" % tag)
        rescale(tag, SN)
        return
    ga = [[] for _ in range(16)]
    va = {0: [0, 1, 3, 5, 7, 9, 11, 13], 1: [0, 1, 3, 5, 7, 9, 11, 13], 2: [1, 1, 3, 3, 5, 5, 7, 7, 9, 9, 11, 11],
          3: [0, 0, 1, 1, 3, 3, 5, 5]}[SC_]
    for i, gi in enumerate(va):
        ga[gi].append(vrd[i])
    for j in range(7):
        ga[2 * j + 2].append(cvt(S, j))
    for i in range(16):
        if SC_ == 1:
            ga[i].insert(0, ex(S, i))
        else:
            ga[i].append(ex(S, i))
    b.add(interleave(qk_list(SN, False), ga))
    mx = max_tree(SN)
    gb = [[] for _ in range(16)]
    gb[0] = [cvt(S, 7)]
    rest = vrd[len(va):]
    for i, x in enumerate(rest):
        gb[i >> 1].append(x)
    k0 = (len(rest) + 1) // 2
    for i in range(8):
        gb[k0 + i].append(kr[i])
    if not OPT["msum"]:
        order = [0, 8, 1, 9, 2, 10, 3, 11, 4, 12, 5, 13, 6, 14, 7, 15]
        for i in range(8):
            gb[4 + i].append(add(S, order[i]))
        for i in range(8):
            gb[12 + (i >> 1)].append(add(S, order[8 + i]))
    for i in range(8):
        gb[8 + i].append(mx[i])
    gb = [[x for x in g if x is not None] for g in gb]
    if adv:
        for tab, dl, gi in ((sTABV, sDELV, 1), (sTABK, sDEL, 2)):
            gb[gi] += ["s_and_b32 s%d, s%d, 3" % (dl, tab), "s_lshr_b32 s%d, s%d, 2" % (tab, tab),
                       "s_sub_u32 s%d, s%d, 2" % (dl, dl), "s_lshl_b32 s%d, s%d, 14" % (dl, dl)]
        for i in range(8):
            gb[4 + (i >> 1)].append("v_add_u32 v%d, s%d, v%d" % (aV + i, sDELV, aV + i))
        for i in range(4):
            gb[12 + i].append("v_add_u32 v%d, s%d, v%d" % (aK + i, sDEL, aK + i))
    b.add(interleave(pv_list(), gb))
    if OPT["msum"]:
        b(sum_mfma(0))
        b(sum_mfma(1))
    b("v_cmp_lt_f32 vcc, s%d, v%d" % (sTHR, vTM))
    b("s_cbranch_vccnz L_resc%s" % tag)
    b("L_back%s:" % tag)
    rescale(tag, SN)


rare = []


def rescale(tag, SN):
    r = Block("resc" + tag)
    r("L_resc%s:" % tag)
    r("s_nop 15")
    for blk in range(2):
        blk_max(r, SN + 8 * blk, 1, 2)
        r("v_max_f32 v1, 0, v1")
        r("v_sub_f32 v2, 0, v1")
        r("v_exp_f32 v2, v2")
        for j in range(4):
            r("v_sub_f32 v%d, v%d, v1" % (NM[blk] + j, NM[blk] + j))
        for i in range(8):
            r("v_sub_f32 v%d, v%d, v1" % (SN + 8 * blk + i, SN + 8 * blk + i))
        for j in range(4 if OPT["msum"] else 1):
            r("v_mul_f32 v%d, v%d, v2" % (vL[blk] + j, vL[blk] + j))
        for i in range(32):
            r("v_mul_f32 v%d, v%d, v2" % (ACC + 32 * blk + i, ACC + 32 * blk + i))
    r("s_nop 1")
    r("s_branch L_back%s" % tag)
    r.finish()
    rare.append(r)


if STAMPS == 6:
    q.ins.append(parse("s_memtime s[92:93]"))
lp = new("loop")
lp("L_att:")
epoch(lp, 0, True, False, "a")
epoch(lp, 1, True, True, "b",
      head=["s_cmp_lg_u32 s%d, 1" % sCNT, "s_cbranch_scc1 L_noinfo",
            "buffer_load_dword v%d, v%d, s[%d:%d], 0 offen sc1" % (vINF, vINFO, SA, SA + 3), "L_noinfo:"])
loop_end(lp, "L_att")
if OPT["drop"]:
    def keep(i):
        x = i.text
        d = OPT["drop"]
        return not (("t" in d and "_tr_" in x) or ("k" in d and "ds_read_b128" in x) or ("e" in d and "v_exp" in x) or
                    ("c" in d and "v_cvt" in x) or ("m" in d and "v_max" in x) or ("a" in d and ("v_add_u32" in x)) or
                    ("M" in d and "v_mfma" in x))
    lp.ins = [i for i in lp.ins if keep(i)]
lp.finish(hist=q.ins)
pad_hazards(lp.ins, hist=lp.ins, check_only=True, where="loop back edge")

t = new("tail")
if STAMPS == 6:
    t("s_memtime s[94:95]")
    t("s_waitcnt lgkmcnt(0)")
stamp(t, 4)
epoch(t, 0, False, False, "c")
OB = QF
DYN = OPT["dyn"]
AREG = {0: aO1, 1: aO3, 2: aO1, 3: aO3}
SBUF = {1: S0, 2: KF, 3: XB}
SEQ = [(j, f, nt) for j in range(3) for f in range(8) for nt in range(4)]
SEQ += [(3, f, nt) for nt in (1, 2, 3, 0) for f in range(8)]
sASG, sP, sP4, sWB, sE1F, sE1F4 = sN, sN + 1, sN + 2, sN + 3, sN + 4, sN + 5
OOB = 0x40000000


def wbuf(m):
    return (KF if m < 8 else VF) + 4 * (m & 7)


def w_reads(m):
    if m >= len(SEQ):
        return []
    j, f, nt = SEQ[m]
    ks, y = f >> 1, f & 1
    return ["ds_read_b64_tr_b16 %s, v%d offset:%d" % (vr(wbuf(m) + 2 * u, 2), AREG[j] + nt,
                                                   ks * 8192 + u * 4096 + y * 1024) for u in range(2)]


S = S1
for nt in range(4):
    t("v_add_u32 v%d, %d, v%d" % (aO1 + nt, STG, aO2 + nt))
for m in range(8):
    t.add(w_reads(m))
for i in range(16):
    t(ex(S, i))
for j in range(8):
    t(cvt(S, j))
t(sum_mfma(0))
t(sum_mfma(1))
t("v_readlane_b32 s%d, v%d, 0" % (sT0, vINF))
t("v_mov_b32 v%d, 1" % NM[0])
t("s_mov_b32 s%d, 0" % sASG)
t("v_cmp_eq_u32 vcc, s%d, v%d" % (sT0, vINF))
t("s_add_u32 s%d, s%d, 4096" % (sT2, sE1))
t("s_and_b32 s%d, vcc_lo, 15" % sFAST)
t("s_cmp_eq_u32 s%d, %d" % (sFAST, 15 if OPT["fast"] else 16))
t("s_cselect_b32 s%d, s%d, 0x%x" % (sE1F, sE1, OOB))
t("s_add_u32 s%d, s%d, 4096" % (sE1F4, sE1F))
for blk in range(2):
    t("v_max_f32 v%d, %s, v%d" % (vL[blk], f32(1e-30), vL[blk]))
for blk in range(2):
    t("v_rcp_f32 v%d, v%d" % (vL[blk], vL[blk]))
for blk in range(2):
    for j in range(4):
        t("v_pk_mul_f32 %s, %s, %s op_sel_hi:[1,0]" % (vr(S + 8 * blk + 2 * j, 2), vr(S + 8 * blk + 2 * j, 2), vr(vL[blk], 2)))
for blk in range(2):
    for j in range(16):
        a0 = ACC + 32 * blk + 2 * j
        t("v_pk_mul_f32 %s, %s, %s op_sel_hi:[1,0]" % (vr(a0, 2), vr(a0, 2), vr(vL[blk], 2)))
for j in range(8):
    t(cvt(S, j))
t("s_waitcnt lgkmcnt(0)")
t("s_barrier")
stamp(t, 5)
cst(t, 2)
vrd = [v_read(db, u, 8192) for db in range(8) for u in range(2)]


def bfrag(j, f):
    return OB + 16 * (f & 1) + 4 * (f >> 1) if j == 0 else SBUF[j] + 4 * f


def pack(ks):
    return ["v_cvt_pk_bf16_f32 v%d, v%d, v%d" % (OB + 16 * blk + 4 * ks + j, ACC + 32 * blk + 8 * ks + 2 * j, ACC + 32 * blk + 8 * ks + 2 * j + 1)
            for blk in range(2) for j in range(4)]


def swaps(ks):
    return ["v_permlane16_swap_b32 v%d, v%d" % (OB + 4 * ks + j, OB + 16 + 4 * ks + j) for j in range(4)]


def publish(f, lo, hi, fl):
    return "buffer_store_dwordx4 %s, v%d, s[%d:%d], s%d offen offset:%d %s" % (vr(bfrag(0, f), 4), vE, SA, SA + 3,
                                                                           lo if f < 4 else hi, (f & 3) * 1024, fl)


t.add(vrd[0:8])
p0, p1, p2 = pack(0), pack(1), pack(2)
g = [vrd[8:10], vrd[10:12], vrd[12:14], vrd[14:16], [], [], p0[0:2], p0[2:4], p0[4:6], p0[6:8], p1[0:2] + swaps(0)[0:1],
     p1[2:4] + swaps(0)[1:2], p1[4:6] + swaps(0)[2:3], p1[6:8] + swaps(0)[3:4], p2[0:3], p2[3:8]]
t.add(interleave(pv_list(), g))
t.add([publish(f, sE1F, sE1F4, "") for f in (0, 1)])
t.add(swaps(1))
t.add([publish(f, sE1F, sE1F4, "") for f in (2, 3)])
t.add(swaps(2))
t.add(pack(3))
t.add([publish(f, sE1F, sE1F4, "") for f in (4, 5)])
t.add(swaps(3))
t.add([publish(f, sE1F, sE1F4, "") for f in (6, 7)])


def uncounted(x):
    i_ = parse(x)
    i_.kind = "comment"
    i_.n = 0
    return i_


t("s_cmp_lg_u32 s%d, 0x%x" % (sE1F, OOB))
t("s_cbranch_scc1 L_pubj")
t.add([uncounted(publish(f, sE1, sT2, "sc1")) for f in range(8)])
t("L_pubj:")


def o_mfma(b, m, extra=()):
    j, f, nt = SEQ[m]
    b("%s %s, %s, %s, %s" % (M32, vr(ACC + 16 * nt, 16), vr(wbuf(m), 4), vr(bfrag(j, f), 4),
                             "0" if (j == 0 and f == 0) else vr(ACC + 16 * nt, 16)))
    b.add(w_reads(m + 8))
    b.add(extra)


def two_way(b, name, fast, slow):
    b("s_cmp_lg_u32 s%d, 0x%x" % (sE1F, OOB))
    b("s_cbranch_scc1 L_%sf" % name)
    b.add(slow)
    b("s_branch L_%sj" % name)
    b("L_%sf:" % name)
    b.add([uncounted(x) for x in fast])
    b("L_%sj:" % name)


flag = "buffer_store_dword v%d, v%d, s[%d:%d], 0 offen" % (NM[0], vM1, SA, SA + 3)
pollld = "buffer_load_dword v%d, v%d, s[%d:%d], 0 offen sc1" % (vTM, vP1, SA, SA + 3)


def sib_load(p, f):
    return "buffer_load_dwordx4 %s, v%d, s[%d:%d], s%d offen offset:%d sc1" % (vr(SBUF[p] + 4 * f, 4), vE, SA, SA + 3,
                                                                           sP if f < 4 else sP4, (f & 3) * 1024)


def try_assign(b, p, name):
    b("v_cmp_eq_u32 vcc, 1, v%d" % vTM)
    b("s_mov_b32 s%d, 0x%x" % (sP, OOB))
    if DYN:
        b("s_andn2_b32 s%d, vcc_lo, s%d" % (sT0, sASG))
        b("s_cbranch_scc0 %s" % name)
        b("s_ff1_i32_b32 s%d, s%d" % (sT0, sT0))
        b("s_bitset1_b32 s%d, s%d" % (sASG, sT0))
        b("s_lshl_b32 s%d, s%d, 2" % (sWB, sT0))
        b("s_lshl_b32 s%d, s%d, 15" % (sT0, sT0))
        b("s_xor_b32 s%d, s%d, s%d" % (sP, sE1, sT0))
        b("s_lshr_b32 s%d, 0x0140, s%d" % (sWB, sWB))
        b("s_and_b32 s%d, s%d, 15" % (sWB, sWB))
        b("s_lshl_b32 s%d, s%d, 15" % (sWB, sWB))
        b(name + ":")
    else:
        b("s_xor_b32 s%d, s%d, %d" % (sT0, sE1, p << 15))
        b("s_bitcmp1_b32 vcc_lo, %d" % p)
        b("s_cselect_b32 s%d, s%d, s%d" % (sP, sT0, sP))
    b("s_add_u32 s%d, s%d, 4096" % (sP4, sP))


NEARLY = 4


def decide(b, p):
    b("s_cmp_lg_u32 s%d, 0x%x" % (sP, OOB))
    b("s_cbranch_scc1 L_dec%dd" % p)
    b("s_mov_b32 s%d, 0x100000" % sCNT)
    b("L_dec%d:" % p)
    b(pollld)
    b("s_waitcnt vmcnt(0)")
    try_assign(b, p, "L_dec%da" % p)
    b("s_sub_u32 s%d, s%d, 1" % (sCNT, sCNT))
    b("s_cbranch_scc1 L_dec%dl" % p)
    b("s_cmp_eq_u32 s%d, 0x%x" % (sP, OOB))
    b("s_cbranch_scc1 L_dec%d" % p)
    b("L_dec%dl:" % p)
    b.add([sib_load(p, f) for f in range(8 if p == 3 else NEARLY)])
    b("L_dec%dd:" % p)
    for nt in range(4):
        if DYN:
            b("v_add_u32 v%d, s%d, v%d" % (AREG[p] + nt, sWB, aO2 + nt))


PB = QF


def send(j):
    a0 = ACC + 8 * j
    return (["s_xor_b32 s%d, s%d, %d" % (sT0, sG, j), "s_lshl_b32 s%d, s%d, 15" % (sT0, sT0),
             "s_add_u32 s%d, s%d, s%d" % (sT0, sT0, sE2P), "s_add_u32 s%d, s%d, %d" % (sT0, sT0, j * 4096)],
            ["v_cvt_pk_bf16_f32 v%d, v%d, v%d" % (a0 + i, a0 + 2 * i, a0 + 2 * i + 1) for i in range(4)],
            ["buffer_store_dwordx4 %s, v%d, s[%d:%d], s%d offen sc1" % (vr(a0, 4), vE, SA, SA + 3, sT0)])


def fetch(j):
    return ["s_add_u32 s%d, s%d, %d" % (sT3, sE2C, j * 4096),
            "buffer_load_dwordx4 %s, v%d, s[%d:%d], s%d offen sc1" % (vr(PB + 4 * (j - 1), 4), vE, SA, SA + 3, sT3)]


extra = {m: [] for m in range(128)}
vP2, vM2 = 2, NM[1]
vTM2 = NM[1] + 1
poll2 = "buffer_load_dword v%%d, v%d, s[%d:%d], 0 offen sc1" % (vP2, SA, SA + 3)
extra[1] += ["s_lshl_b32 s%d, s%d, 7" % (sT0, sWAVE), "s_add_u32 s%d, s%d, 1024" % (sT0, sT0),
             "v_lshl_add_u32 v%d, v0, 2, s%d" % (vP2, sT0)]
extra[2] += ["v_lshlrev_b32 v1, 2, v0", "v_xor_b32 v1, s%d, v1" % sWGL, "v_lshl_add_u32 v%d, v1, 11, v%d" % (vM2, vP2)]
extra[3] += ["s_lshl_b32 s%d, s%d, 11" % (sT0, sWGL), "v_add_u32 v%d, s%d, v%d" % (vP2, sT0, vP2), "v_subrev_u32 v1, 1, v0"]
extra[4] += ["v_cmp_gt_u32 vcc, 7, v1", "v_bfrev_b32 v1, 1", "s_nop 0"]
extra[5] += ["v_cndmask_b32 v%d, v1, v%d, vcc" % (vP2, vP2), "v_cndmask_b32 v%d, v1, v%d, vcc" % (vM2, vM2)]
extra[6] += ["s_mov_b32 s%d, 0x3f80" % sTG, "s_mov_b32 s%d, 0x3f800000" % (sTG + 1)]
if not DYN:
    for p, base in ((1, STG + 32768), (2, XREG), (3, 0)):
        for nt in range(4):
            extra[32 * p - 14 + nt].append("v_add_u32 v%d, %d, v%d" % (AREG[p] + nt, base, aO2 + nt) if base else
                                           "v_mov_b32 v%d, v%d" % (AREG[p] + nt, aO2 + nt))
for i, nt in enumerate((1, 2, 3)):
    base = 104 + 8 * i
    for k_, j in enumerate((2 * nt, 2 * nt + 1)):
        sa, sb_, sc_ = send(j)
        extra[base + 2 + 3 * k_] += sa
        extra[base + 3 + 3 * k_] += sb_
        extra[base + 4 + 3 * k_] += sc_
FL = OPT["flagat"]
for p in (1, 2):
    for f in range(8):
        if f < NEARLY:
            extra[32 * p - 16 + 2 * f].append(uncounted(sib_load(p, f)))
        else:
            extra[32 * p - 16 + 2 * f].append(sib_load(p, f))
for f in range(8):
    extra[72 + 2 * f].append(uncounted(sib_load(3, f)))
extra[38].append(pollld)
extra[62].append(pollld)
t(pollld)
stamp(t, 6)
cst(t, 3)
for m in range(128):
    if m == OPT["fat"]:
        t("s_barrier")
    if m == FL:
        cst(t, 4)
        t("s_waitcnt vmcnt(0)")
        cst(t, 5)
        two_way(t, "flg", [flag], [flag + " sc1"])
        stamp(t, 8)
    if m in (16, 48, 72):
        t("s_waitcnt vmcnt(%d)" % (1 if m == 16 else 0))
        try_assign(t, {16: 1, 48: 2, 72: 3}[m], "L_try%d" % m)
    if m in (24, 56, 88):
        decide(t, m // 32 + 1)
        cst(t, 6 + m // 32)
        if m == 24:
            stamp(t, 7)
        if m == 88:
            stamp(t, 9)
    o_mfma(t, m, extra[m])
stamp(t, 10)
cst(t, 9)
sa, sb_, sc_ = send(1)
t.add(sa + sb_ + sc_)
t(poll2 % vTM)
t("s_waitcnt vmcnt(1)")
t("buffer_store_dword v%d, v%d, s[%d:%d], 0 offen sc1" % (NM[0], vM2, SA, SA + 3))
stamp(t, 11)
cst(t, 10)
t(poll2 % vTM2)
t("s_mov_b32 s%d, 0x100000" % sCNT)
t("s_waitcnt vmcnt(2)")
t("L_poll2:")
t("v_cmp_eq_u32 vcc, 1, v%d" % vTM)
t("s_cmp_eq_u32 vcc_lo, 0xfe")
t("s_cbranch_scc1 L_poll2e")
t.add([uncounted(poll2 % vTM)])
t("s_waitcnt vmcnt(1)")
t.add([uncounted("v_cmp_eq_u32 vcc, 1, v%d" % vTM2)])
t("s_nop 0")
t("s_cmp_eq_u32 vcc_lo, 0xfe")
t("s_cbranch_scc1 L_poll2e")
t.add([uncounted(poll2 % vTM2)])
t("s_sub_u32 s%d, s%d, 1" % (sCNT, sCNT))
t("s_waitcnt vmcnt(1)")
t("s_cbranch_scc0 L_poll2")
t("L_poll2e:")
stamp(t, 12)
cst(t, 11)
for j in range(1, 8):
    t.add(fetch(j))
for j in range(1, 8):
    for i in range(4):
        p = PB + 4 * (j - 1) + i
        if OPT["dot"]:
            t("v_dot2_f32_bf16 v%d, v%d, s%d, v%d" % (ACC + 2 * i, p, sTG, ACC + 2 * i))
            t("v_dot2_f32_bf16 v%d, v%d, s%d, v%d" % (ACC + 2 * i + 1, p, sTG + 1, ACC + 2 * i + 1))
            continue
        t("v_lshlrev_b32 v1, 16, v%d" % p)
        t("v_and_b32 v%d, 0xffff0000, v%d" % (p, p))
        t("v_add_f32 v%d, v%d, v1" % (ACC + 2 * i, ACC + 2 * i))
        t("v_add_f32 v%d, v%d, v%d" % (ACC + 2 * i + 1, ACC + 2 * i + 1, p))
if OPT["dot"]:
    t("s_nop 2")
for j in range(4):
    t("v_cvt_pk_bf16_f32 v%d, v%d, v%d" % (ACC + 8 + j, ACC + 2 * j, ACC + 2 * j + 1))
t("buffer_store_dwordx4 %s, v%d, s[%d:%d], s%d offen" % (vr(ACC + 8, 4), vOUT, SB, SB + 3, sOFF))
if STAMPS:
    cst(t, 12)
    t("s_waitcnt vmcnt(0)")
    cst(t, 13)
    t("s_waitcnt lgkmcnt(0)")
    stamp(t, 13)
    if STAMPS != 6:
        t("s_memtime s[94:95]")
        t("s_waitcnt lgkmcnt(0)")
    t("s_sub_u32 s%d, s94, s92" % (sSTAMP + 28))
    t("s_getreg_b32 s%d, hwreg(HW_REG_XCC_ID)" % (sSTAMP + 30))
    for i in range(16):
        t("v_mov_b32 v%d, s%d" % (ACC + 16 + i, sSTAMP + 2 * i))
    t("s_lshl_b32 s%d, s2, 2" % sT0)
    t("s_add_u32 s%d, s%d, s%d" % (sT0, sT0, sWAVE))
    t("s_lshl_b32 s%d, s%d, 6" % (sT0, sT0))
    t("s_add_u32 s%d, s%d, %d" % (sT0, sT0, ST_OFF))
    srd(t, SA, sWS, None, "0x10000000")
    t("v_mov_b32 v1, 0")
    t("s_mov_b64 exec, 1")
    for i in range(4):
        t("buffer_store_dwordx4 %s, v1, s[%d:%d], s%d offen offset:%d" % (vr(ACC + 16 + 4 * i, 4), SA, SA + 3, sT0, 16 * i))
if PROBE >= 0:
    stamp(t, 13)
    t("s_add_u32 s%d, s%d, 6000" % (sT2, sSTAMP + (2 if PROBE else 0)))
    t("L_spin:")
    t("s_sleep 2")
    t("s_memrealtime s[%d:%d]" % (sSTAMP + 4, sSTAMP + 5))
    t("s_waitcnt lgkmcnt(0)")
    t("s_sub_u32 s%d, s%d, s%d" % (sT0, sSTAMP + 4, sT2))
    t("s_cmp_lt_i32 s%d, 0" % sT0)
    t("s_cbranch_scc1 L_spin")
t("L_end:")
t("s_endpgm")
t.finish(hist=lp.ins, vmq=[{vINF}])
for r in rare:
    blocks.append(r)

hdr = open("standalone__mha_block_cached__near_ridge.s.ref").read().split("; Override launch")[0]
out = [hdr.rstrip()]
out.append("; Fused Q-projection + attention + output projection, one workgroup per (batch, head).")
out.append("; @launch grid=(256,1,1) block=(512,1,1) lds=163840")
out.append('.amdgcn_target "amdgcn-amd-amdhsa--gfx950"')
out.append(".text")
out.append(".globl " + KNAME)
out.append(".p2align 8")
out.append(".type %s,@function" % KNAME)
out.append(KNAME + ":")
for b in blocks:
    out.append("; ---- %s ----" % b.name)
    out.append(b.text())
out.append("L_codeend:")
out.append(".p2align 8")
out.append(".fill 64, 4, 0xbf800000")
out.append('.section .rodata,"a"')
out.append(".p2align 6")
out.append(".amdhsa_kernel " + KNAME)
out.append("""  .amdhsa_next_free_vgpr 256
  .amdhsa_next_free_sgpr 102
  .amdhsa_accum_offset 256
  .amdhsa_group_segment_fixed_size 0
  .amdhsa_kernarg_size 64
  .amdhsa_user_sgpr_count 2
  .amdhsa_user_sgpr_kernarg_segment_ptr 1
  .amdhsa_system_sgpr_workgroup_id_x 1
.end_amdhsa_kernel""")
print("\n".join(out))
```

```python
import sys, struct, math
from asmgen import *

OPT = dict(stamps=0, probe=-1, nt_kv="nt", nt_x="", nt_w="nt", nt_wo="nt", thr=8.0, force_rescale=0,
           prio_x=2, prio_w=2, codepf=1, fast=1, dyn=0, fat=6, wsbase=0, wopf=-1, wopf_fl="nt", qdiag=0,
           early="0.1.2.3", k_at="5.6.7.8", v_at="6.7.8.8", dynld=1, w3diag=0, dot=1, flagat=12, chk=1, fair=0, r1=85, r2=170, tlo=6, thi=16, fper=3, rotmask=6, wo3=1, noload=0, msum=1, sched=21, qs=2, pro=1, drop="", ksw=32, vsw=32, thr0=8, thr1=8, kd="5:15.3:22.2", vd="5:17.3:24.2")
for a in sys.argv[1:]:
    k, v = a.split("=")
    OPT[k] = type(OPT[k])(v) if not isinstance(OPT[k], str) else v.replace("_", " ").strip()
STAMPS = OPT["stamps"]

KNAME = "standalone__mha_block_cached__near_ridge_kernel"


def f32(x):
    return "0x%08x" % struct.unpack("<I", struct.pack("<f", x))[0]


CSC = math.log2(math.e) / math.sqrt(128.0)

KRING, VRING, STG, XREG = 0, 49152, 98304, 32768
MB_OFF, E1_OFF, E2_OFF, ST_OFF = 0x0, 0x100000, 0x900000, 0x4000000
sX, sK, sV, sWQ, sWO, sOUT, sDBG, sWS = 4, 6, 8, 10, 12, 14, 16, 18
sWAVE, sG, sB, sHN, sH, sWGL = 20, 21, 22, 23, 24, 25
SA, SB, SC = 28, 32, 36
sOFF, sLDS, sCNT, sT0, sT1, sT2 = 40, 41, 42, 43, 44, 45
sCS, sPAIR, sDEL, sE1, sE2P, sE2C = 46, 47, 48, 49, 50, 51
sTHR, sFAST, sK16, sPADM = 52, 53, 54, 55
sVALID = 26
sN = 56
sTG = 96
sMISS, sT3 = 100, 101
sBEG, sEND, sTABK, sTABV, sDELV = 26, 27, 96, 97, 98
TAGK = 0x405
sSTAMP = 64
vE, vLO, vTM, aX = 4, 5, 6, 7
aK, aW, aV = 8, 12, 16
NM = (24, 28)
ACC, QF, S0, S1, KF, VF, XB = 32, 96, 128, 144, 160, 192, 224
PK = XB
vL = (232, 236)
ONES = 244
vM1, vINFO, vINF, vOUT, vP1 = 240, 242, 243, 7, 3
def nib(txt):
    return sum(int(x) << (4 * i) for i, x in enumerate(txt.split(".")))


NQB = 9
aWq, aXq = 96, 104
M16 = "v_mfma_f32_16x16x32_bf16"
M32 = "v_mfma_f32_32x32x16_bf16"


PROBE = OPT["probe"]


def cst(b, idx):
    if STAMPS == 7:
        b("s_memtime s[%d:%d]" % (sSTAMP + 2 * idx, sSTAMP + 2 * idx + 1))


def stamp(b, idx, force=False):
    if STAMPS == 8:
        if idx in (3, 5, 10, 13):
            b("s_memrealtime s[%d:%d]" % (sSTAMP + 2 * idx, sSTAMP + 2 * idx + 1))
            if idx == 13:
                b("s_waitcnt lgkmcnt(0)")
        return
    if STAMPS == 7:
        if idx == 5:
            b("s_memrealtime s[%d:%d]" % (sSTAMP + 2, sSTAMP + 3))
        return
    if STAMPS == 5 and 1 <= idx <= 4:
        if force:
            b("s_memrealtime s[%d:%d]" % (sSTAMP + 2 * idx, sSTAMP + 2 * idx + 1))
        return
    if force:
        return
    if PROBE == idx:
        b("s_memrealtime s[%d:%d]" % (sSTAMP + 2, sSTAMP + 3))
        b("s_waitcnt lgkmcnt(0)")
    if PROBE == 40 + idx:
        b("s_memtime s[%d:%d]" % (sSTAMP + 2, sSTAMP + 3))
        b("s_waitcnt lgkmcnt(0)")
        b("s_sub_u32 s%d, s%d, s%d" % (sSTAMP + 2, sSTAMP + 2, sSTAMP + 6))
        b("s_lshr_b32 s%d, s%d, 4" % (sSTAMP + 2, sSTAMP + 2))
        b("s_add_u32 s%d, s%d, s%d" % (sSTAMP + 2, sSTAMP + 2, sSTAMP))
    if STAMPS == 3 and 1 <= idx <= 6:
        return
    if STAMPS:
        b("s_memrealtime s[%d:%d]" % (sSTAMP + 2 * idx, sSTAMP + 2 * idx + 1))
        b("s_waitcnt lgkmcnt(0)")


def srd(b, dst, ptr, off_sreg, size):
    if off_sreg is None:
        b("s_mov_b32 s%d, s%d" % (dst, ptr))
        b("s_mov_b32 s%d, s%d" % (dst + 1, ptr + 1))
    else:
        b("s_add_u32 s%d, s%d, s%d" % (dst, ptr, off_sreg))
        b("s_addc_u32 s%d, s%d, 0" % (dst + 1, ptr + 1))
    b("s_mov_b32 s%d, %s" % (dst + 2, size))
    b("s_mov_b32 s%d, 0x20000" % (dst + 3))


def dma_group(b, S, voffs, soff, flags, n=4):
    for p in range(n):
        o = " offset:%d" % (p * 1024) if p else ""
        b("buffer_load_dwordx4 v%d, s[%d:%d], s%d offen%s %s lds" % (voffs[p], S, S + 3, soff, o, flags))


blocks = []


def new(name):
    b = Block(name)
    blocks.append(b)
    return b


e = new("entry")
e("L_start:")
e("s_cmp_ge_u32 s2, 256")
e("s_cbranch_scc1 L_end")
e("s_load_dwordx16 s[4:19], s[0:1], 0")
if PROBE >= 0:
    e("s_memrealtime s[%d:%d]" % (sSTAMP, sSTAMP + 1))
    e("s_memtime s[%d:%d]" % (sSTAMP + 6, sSTAMP + 7))
if STAMPS:
    e("s_memrealtime s[%d:%d]" % (sSTAMP, sSTAMP + 1))
    e("s_memtime s[92:93]")
e("v_lshrrev_b32 v1, 6, v0")
e("v_and_b32 v0, 63, v0")
e("v_readfirstlane_b32 s%d, v1" % sWAVE)
e("s_and_b32 s%d, s2, 7" % sG)
e("s_lshr_b32 s%d, s2, 5" % sB)
e("s_lshr_b32 s%d, s2, 3" % sHN)
e("s_and_b32 s%d, s%d, 3" % (sHN, sHN))
e("s_lshl_b32 s%d, s%d, 2" % (sH, sG))
e("s_add_u32 s%d, s%d, s%d" % (sH, sH, sHN))
e("s_lshl_b32 s%d, s%d, 5" % (sWGL, sB))
e("s_add_u32 s%d, s%d, s%d" % (sWGL, sWGL, sH))
e("s_cmp_lt_u32 s%d, 4" % sWAVE)
e("s_cbranch_scc1 L_compute")
e("v_lshrrev_b32 v1, 4, v0")
e("v_and_b32 v3, 15, v0")
e("v_lshlrev_b32 v2, 2, v1")
e("v_xor_b32 v2, v2, v3")
e("v_lshlrev_b32 v2, 4, v2")
e("s_cmp_eq_u32 s%d, 6" % sWAVE)
e("s_cbranch_scc1 L_ldx")
e("s_cmp_eq_u32 s%d, 7" % sWAVE)
e("s_cbranch_scc1 L_ldw")
e("s_cmp_eq_u32 s%d, 5" % sWAVE)
e("s_cbranch_scc1 L_ldv")
e.finish()

WOV = [14, 15, 16, 17]


def wo_setup(b):
    b("v_lshl_add_u32 v14, v1, 10, v2")
    b("v_add_u32 v15, 3072, v14")
    b("v_add_u32 v16, 6144, v14")
    b("v_add_u32 v17, 9216, v14")
    b("s_lshl_b32 s%d, s%d, 19" % (sT0, sG))
    b("s_lshl_b32 s%d, s%d, 8" % (sT1, sHN))
    b("s_add_u32 s%d, s%d, s%d" % (sT0, sT0, sT1))
    b("s_sub_u32 s%d, 0x400000, s%d" % (sT1, sT0))
    srd(b, SB, sWO, sT0, "s%d" % sT1)


def kv_tile(b, voffs):
    fl = OPT["nt_kv"]
    if OPT["noload"] and b.name in ("ldk", "ldv") and any(i.text.startswith("L_%sd:" % b.name[2]) for i in b.ins):
        return
    b("s_mov_b32 m0, s%d" % sLDS)
    b("s_add_u32 s%d, s%d, 4096" % (sT0, sLDS))
    dma_group(b, SA, voffs, sOFF, fl)
    b("s_mov_b32 m0, s%d" % sT0)
    b("s_add_u32 s%d, s%d, 4096" % (sOFF, sOFF))
    dma_group(b, SA, voffs, sOFF, fl)
    b("s_add_u32 s%d, s%d, 4096" % (sOFF, sOFF))
    b("s_add_u32 s%d, s%d, 8192" % (sLDS, sLDS))
    b("s_cmp_eq_u32 s%d, s%d" % (sLDS, sEND))
    b("s_cselect_b32 s%d, s%d, s%d" % (sLDS, sBEG, sLDS))


def wo_tile(b):
    b("s_mov_b32 m0, s%d" % sLDS)
    b("s_add_u32 s%d, s%d, 4096" % (sT0, sLDS))
    dma_group(b, SB, WOV, sOFF, OPT["nt_wo"])
    b("s_mov_b32 m0, s%d" % sT0)
    b("s_add_u32 s%d, s%d, 16384" % (sOFF, sOFF))
    dma_group(b, SB, WOV, sOFF, OPT["nt_wo"])
    b("s_add_u32 s%d, s%d, 16384" % (sOFF, sOFF))


def loop_begin(b, label, n):
    b("s_mov_b32 s%d, %d" % (sCNT, n))
    b(label + ":")


def loop_end(b, label):
    b("s_sub_u32 s%d, s%d, 1" % (sCNT, sCNT))
    b("s_cmp_lg_u32 s%d, 0" % sCNT)
    b("s_cbranch_scc1 " + label)


b = new("ldk")
b("L_ldk:")
for p in range(4):
    b("v_add_u32 v4, %d, v1" % (4 * p))
    b("v_xor_b32 v4, v4, v3")
    b("v_lshlrev_b32 v4, 4, v4")
    b("v_lshl_add_u32 v%d, v1, 8, v4" % (10 + p))
b("s_lshl_b32 s%d, s%d, 18" % (sT0, sWGL))
b("s_waitcnt lgkmcnt(0)")
srd(b, SA, sK, sT0, "0x40000")
b("s_mov_b32 s%d, 0" % sOFF)
b("s_mov_b32 s%d, %d" % (sLDS, KRING))
b("s_mov_b32 s%d, %d" % (sBEG, KRING))
b("s_mov_b32 s%d, %d" % (sEND, KRING + 49152))
KV4 = [10, 11, 12, 13]
wo_setup(b)


def tiles(b, label, voffs, n):
    if n > 1:
        b("s_mov_b32 s%d, %d" % (sT3, n))
        b(label + ":")
        kv_tile(b, voffs)
        b("s_sub_u32 s%d, s%d, 1" % (sT3, sT3))
        b("s_cmp_lg_u32 s%d, 0" % sT3)
        b("s_cbranch_scc1 " + label)
    elif n:
        kv_tile(b, voffs)


def q_phase_kv(b, tag, voffs, txt, hooks):
    early = [int(x) for x in OPT["early"].split(".")]
    at = [int(x) for x in txt.split(".")]
    assert max(early) <= at[0] and at == sorted(at) and at[2] >= 6
    b("s_add_u32 s%d, s%d, s%d" % (sT1, sB, sHN))
    b("s_and_b32 s%d, s%d, 3" % (sT1, sT1))
    b("s_lshl_b32 s%d, s%d, 2" % (sT1, sT1))
    b("s_lshr_b32 s%d, %d, s%d" % (sT1, sum(x << (4 * i) for i, x in enumerate(early)), sT1))
    b("s_and_b32 s%d, s%d, 15" % (sCNT, sT1))
    for i in range(8):
        b("s_barrier")
        b.add(hooks.get(i, []))
        if i in early:
            b("s_cmp_lg_u32 s%d, %d" % (sCNT, i))
            b("s_cbranch_scc1 L_%se%d" % (tag, i))
            b.add(hooks.get(100, []))
            tiles(b, "L_%sei%d" % (tag, i), voffs, 2)
            b("L_%se%d:" % (tag, i))
        tiles(b, "L_%sq%d" % (tag, i), voffs, at.count(i))
    if tag == "k":
        b("s_waitcnt vmcnt(%d)" % (8 * sum(x < 8 for x in at)))
    b("s_barrier")
    tiles(b, "L_%sq8" % tag, voffs, at.count(8))
    return 2 + sum(x <= 8 for x in at)


def att_phase_kv(b, tag, voffs, nxt, lead, dtxt, free_at, switch, stamps=False):
    steps = [x.split(":") for x in dtxt.split(".")]

    def depth(t):
        for st in steps:
            if len(st) == 1 or t < int(st[1]):
                return int(st[0])
    plan = []
    for t in range(32):
        need = t + lead
        wait = 8 * (nxt - 1 - need) if need <= 31 else None
        assert wait is None or wait >= 0, (tag, t)
        n = 0
        while nxt <= 31 and nxt <= need + depth(t) and n < 2:
            assert free_at(nxt) <= t, (tag, t, nxt)
            nxt += 1
            n += 1
        plan.append((wait, n, nxt))
    assert nxt == 32
    t = 0
    switched = False
    while t < 32:
        wait, n, after = plan[t]
        first = after - n
        if not switched and first >= switch[0]:
            assert first <= switch[1]
            b(switch[2])
            switched = True
        u = t
        while u + 1 < 32 and plan[u + 1][:2] == (wait, n) and (switched or plan[u + 1][2] - n < switch[0]) and u + 1 not in (30, 31):
            u += 1
        cnt = u - t + 1
        if cnt > 1:
            loop_begin(b, "L_%sa%d" % (tag, t), cnt)
        if wait is not None:
            b("s_waitcnt vmcnt(%d)" % wait)
        if stamps:
            b("s_memrealtime s[60:61]")
            b("s_waitcnt lgkmcnt(0)")
        b("s_barrier")
        if stamps:
            b("s_memrealtime s[62:63]")
            b("s_waitcnt lgkmcnt(0)")
            if cnt > 1:
                b("s_sub_u32 m0, %d, s%d" % (u + 1, sCNT))
            else:
                b("s_mov_b32 m0, %d" % t)
            b("s_nop 0")
            b("v_writelane_b32 v20, s60, m0")
            b("v_writelane_b32 v21, s62, m0")
        tiles(b, "L_%sai%d" % (tag, t), voffs, n)
        if cnt > 1:
            loop_end(b, "L_%sa%d" % (tag, t))
        if tag == "k" and u == 30:
            b("s_xor_b32 s%d, s%d, 3" % (sOFF, sHN))
            b("s_lshl_b32 s%d, s%d, 17" % (sOFF, sOFF))
            b("s_mov_b32 s%d, %d" % (sLDS, KRING))
            loop_begin(b, "L_k2", 4)
            wo_tile(b)
            b("s_add_u32 s%d, s%d, 8192" % (sLDS, sLDS))
            loop_end(b, "L_k2")
        t = u + 1


def wo3_tile(b, sNXT):
    b("s_add_u32 s%d, s%d, 2" % (sT1, sNXT))
    b("s_and_b32 s%d, s%d, 3" % (sT1, sT1))
    b("s_lshl_b32 s%d, s%d, 13" % (sLDS, sT1))
    b("s_xor_b32 s%d, s%d, 3" % (sOFF, sHN))
    b("s_lshl_b32 s%d, s%d, 2" % (sOFF, sOFF))
    b("s_add_u32 s%d, s%d, s%d" % (sOFF, sOFF, sT1))
    b("s_lshl_b32 s%d, s%d, 15" % (sOFF, sOFF))
    wo_tile(b)


def att_phase_dyn(b, tag, voffs, nxt, lead, f1, f2, tend, tsw, sw_at, sw_reg, sw_val, stamps=False):
    sT, sNXT, sA, sVM, sLIM, sTH = sCNT, 56, 57, 58, 59, 53
    b("s_mov_b32 s%d, 0" % sT)
    b("s_mov_b32 s%d, %d" % (sNXT, nxt))
    b("s_mov_b32 s%d, %d" % (sTH, OPT["thr0"]))
    b("s_mov_b32 s39, %d" % OPT["r1"])
    b("L_%sd:" % tag)
    b("s_sub_u32 s%d, s%d, s%d" % (sA, sNXT, sT))
    for a_ in (2, 3, 1, 4, 5):
        b("s_cmp_eq_u32 s%d, %d" % (sA, lead + 1 + a_))
        b("s_cbranch_scc1 L_%sd%d" % (tag, a_))
    b("s_waitcnt vmcnt(0)")
    for a_ in range(1, 6):
        b("L_%sd%d:" % (tag, a_))
        b("s_waitcnt vmcnt(%d)" % (8 * a_))
    if stamps:
        b("s_memrealtime s[60:61]")
        b("s_waitcnt lgkmcnt(0)")
    b("s_barrier")
    if stamps:
        b("s_memrealtime s[62:63]")
        b("s_waitcnt lgkmcnt(0)")
        b("s_mov_b32 m0, s%d" % sT)
        b("s_nop 0")
        b("v_writelane_b32 v20, s60, m0")
        b("v_writelane_b32 v21, s62, m0")
    if OPT["fair"]:
        per = OPT["fper"]
        ph = 0 if tag == "k" else (per + 1) // 2
        sR = 39
        b("s_and_b32 s%d, s%d, %d" % (sA, sT, per))
        b("s_cmp_lg_u32 s%d, %d" % (sA, ph))
        b("s_cbranch_scc1 L_%sf1" % tag)
        b("s_lshl_b32 s%d, s%d, 2" % (sVM, sT))
        b("s_add_u32 s%d, s%d, %d" % (sVM, sVM, 4 if ph == 0 else 128))
        b("s_mov_b32 s%d, 1" % sR)
        b("s_atomic_add s%d, s[%d:%d], s%d glc" % (sR, sDBG, sDBG + 1, sVM))
        b("L_%sf1:" % tag)
        b("s_cmp_lg_u32 s%d, %d" % (sA, (ph + min(per, 2)) & per))
        b("s_cbranch_scc1 L_%sf2" % tag)
        b("s_waitcnt lgkmcnt(0)")
        b("s_cmp_lt_u32 s%d, %d" % (sR, OPT["r1"]))
        b("s_cselect_b32 s%d, %d, %d" % (sTH, OPT["tlo"], OPT["thr0"]))
        b("s_cmp_ge_u32 s%d, %d" % (sR, OPT["r2"]))
        b("s_cselect_b32 s%d, %d, s%d" % (sTH, OPT["thi"], sTH))
        b("L_%sf2:" % tag)
    b("s_getreg_b32 s%d, hwreg(HW_REG_IB_STS, 22, 2)" % sA)
    b("s_getreg_b32 s%d, hwreg(HW_REG_IB_STS, 0, 4)" % sVM)
    b("s_lshl_b32 s%d, s%d, 4" % (sA, sA))
    b("s_or_b32 s%d, s%d, s%d" % (sVM, sVM, sA))
    if stamps:
        b("s_lshl_b32 s%d, s%d, 8" % (sLIM, sNXT))
        b("s_or_b32 s%d, s%d, s%d" % (sLIM, sLIM, sVM))
        b("s_add_u32 m0, s%d, 32" % sT)
        b("s_nop 0")
        b("v_writelane_b32 v20, s%d, m0" % sLIM)
    b("L_%sdi:" % tag)
    b("s_cmp_le_u32 s%d, 21" % sNXT)
    b("s_cselect_b32 s%d, %d, %d" % (sLIM, f1, f2))
    b("s_add_u32 s%d, s%d, s%d" % (sLIM, sLIM, sT))
    last = 35 if (tag == "k" and OPT["wo3"]) else 31
    b("s_min_u32 s%d, s%d, %d" % (sLIM, sLIM, last))
    b("s_cmp_gt_u32 s%d, s%d" % (sNXT, sLIM))
    b("s_cbranch_scc1 L_%sdn" % tag)
    b("s_cmp_le_u32 s%d, s%d" % (sVM, sTH))
    b("s_cbranch_scc1 L_%sdg" % tag)
    b("s_add_u32 s%d, s%d, %d" % (sLIM, sT, lead + 1))
    b("s_cmp_gt_u32 s%d, s%d" % (sNXT, sLIM))
    b("s_cbranch_scc1 L_%sdn" % tag)
    b("L_%sdg:" % tag)
    if last > 31:
        b("s_cmp_ge_u32 s%d, 32" % sNXT)
        b("s_cbranch_scc1 L_kdw")
    b("s_cmp_eq_u32 s%d, %d" % (sNXT, sw_at))
    b("s_cselect_b32 s%d, %d, s%d" % (sw_reg, sw_val, sw_reg))
    kv_tile(b, voffs)
    b("L_%sdj:" % tag)
    b("s_add_u32 s%d, s%d, 1" % (sNXT, sNXT))
    b("s_add_u32 s%d, s%d, 8" % (sVM, sVM))
    b("s_branch L_%sdi" % tag)
    if last > 31:
        b("L_kdw:")
        wo3_tile(b, sNXT)
        b("s_branch L_kdj")
    b("L_%sdn:" % tag)
    if stamps:
        b("s_memrealtime s[62:63]")
        b("s_waitcnt lgkmcnt(0)")
        b("s_add_u32 m0, s%d, 32" % sT)
        b("s_nop 0")
        b("v_writelane_b32 v21, s62, m0")
    b("s_add_u32 s%d, s%d, 1" % (sT, sT))
    b("s_cmp_eq_u32 s%d, %d" % (sT, tsw))
    b("s_cselect_b32 s%d, %d, s%d" % (sTH, OPT["thr1"], sTH))
    b("s_cmp_lt_u32 s%d, %d" % (sT, tend))
    b("s_cbranch_scc1 L_%sd" % tag)


pre = None
if OPT["wopf"] >= 0:
    b("s_lshl_b32 s%d, s%d, 19" % (sT0, sG))
    b("s_lshr_b32 s%d, s2, 3" % sT1)
    b("s_lshl_b32 s%d, s%d, 14" % (sT1, sT1))
    b("s_add_u32 s%d, s%d, s%d" % (sT0, sT0, sT1))
    srd(b, SC, sWO, sT0, "16384")
    b("v_lshlrev_b32 v18, 7, v0")
    b("v_add_u32 v19, 8192, v18")
    pre = (OPT["wopf"], ["buffer_load_dword v20, v18, s[%d:%d], 0 offen %s" % (SC, SC + 3, OPT["wopf_fl"]),
                         "buffer_load_dword v21, v19, s[%d:%d], 0 offen %s" % (SC, SC + 3, OPT["wopf_fl"])])
NK0 = q_phase_kv(b, "k", KV4, OPT["k_at"], {pre[0]: pre[1]} if pre else {})
if OPT["dynld"]:
    att_phase_dyn(b, "k", KV4, NK0, 2, 7, 5, 30, OPT["ksw"], 19, sEND, KRING + 32768)
    if OPT["wo3"]:
        b("s_barrier")
        b("L_k2:")
        wo3_tile(b, 56)
        b("s_add_u32 s56, s56, 1")
        b("s_cmp_le_u32 s56, 35")
        b("s_cbranch_scc1 L_k2")
    else:
        b("s_xor_b32 s%d, s%d, 3" % (sOFF, sHN))
        b("s_lshl_b32 s%d, s%d, 17" % (sOFF, sOFF))
        b("s_mov_b32 s%d, %d" % (sLDS, KRING))
        b("s_barrier")
        loop_begin(b, "L_k2", 4)
        wo_tile(b)
        b("s_add_u32 s%d, s%d, 8192" % (sLDS, sLDS))
        loop_end(b, "L_k2")
    b("s_barrier")
else:
    att_phase_kv(b, "k", KV4, NK0, 2, OPT["kd"], lambda j: max(0, (j - 6 if j <= 21 else j - 4) - 1), (18, 21, "s_mov_b32 s%d, %d" % (sEND, KRING + 32768)))
b("s_waitcnt vmcnt(0)")
b("s_barrier")
b("s_endpgm")
b.finish(hist=e.ins)

b = new("ldv")
b("L_ldv:")
for par in range(2):
    b("v_lshlrev_b32 v4, 1, v1")
    b("v_xor_b32 v4, v4, v3")
    if par:
        b("v_xor_b32 v4, 8, v4")
    b("v_lshlrev_b32 v4, 4, v4")
    b("v_lshl_add_u32 v%d, v1, 8, v4" % (10 + par))
b("s_lshl_b32 s%d, s%d, 18" % (sT0, sWGL))
b("s_waitcnt lgkmcnt(0)")
srd(b, SA, sV, sT0, "0x40000")
b("s_mov_b32 s%d, 0" % sOFF)
b("s_mov_b32 s%d, %d" % (sLDS, VRING + 2 * 8192))
b("s_mov_b32 s%d, %d" % (sBEG, VRING))
b("s_mov_b32 s%d, %d" % (sEND, VRING + 49152))
V4 = [10, 11, 10, 11]
b("s_mov_b32 s%d, %d" % (sT0, OPT["wsbase"]))
srd(b, SC, sWS, sT0, "0x%x" % (0x10000000 - OPT["wsbase"]))
b("v_mov_b32 v4, 0")
b("v_mov_b32 v5, 0")
b("s_lshl_b32 s%d, s%d, 11" % (sT0, sWGL))
b("v_lshlrev_b32 v8, 3, v0")
b("buffer_store_dwordx2 v[4:5], v8, s[%d:%d], s%d offen sc1" % (SC, SC + 3, sT0))
b("buffer_store_dwordx2 v[4:5], v8, s[%d:%d], s%d offen offset:1024 sc1" % (SC, SC + 3, sT0))
b("s_getreg_b32 s%d, hwreg(HW_REG_XCC_ID, 0, 4)" % sT1)
b("s_add_u32 s%d, s%d, 1" % (sT1, sT1))
b("v_mov_b32 v7, s%d" % sT1)
b("s_mov_b64 exec, 1")
b("buffer_store_dword v7, v4, s[%d:%d], s%d offen offset:512 sc1" % (SC, SC + 3, sT0))
b("s_mov_b64 exec, -1")
b("s_lshl_b32 s%d, s%d, 5" % (sT0, sB))
b("s_add_u32 s%d, s%d, s%d" % (SB, sDBG, sT0))
b("s_addc_u32 s%d, s%d, 0" % (SB + 1, sDBG + 1))
b("s_mov_b32 s%d, 1" % (SB + 2))
NV0 = q_phase_kv(b, "v", V4, OPT["v_at"],
           {0: ["s_waitcnt vmcnt(0)", "s_atomic_add s%d, s[%d:%d], 0x0" % (SB + 2, SB, SB + 1)]})
if OPT["dynld"]:
    att_phase_dyn(b, "v", V4, NV0, 0, 5, 3, 32, OPT["vsw"], 18, sBEG, VRING + 16384, STAMPS == 1)
else:
    att_phase_kv(b, "v", V4, NV0, 0, OPT["vd"], lambda j: (j - 6 if j <= 21 else j - 4) + 1, (16, 21, "s_mov_b32 s%d, %d" % (sBEG, VRING + 16384)), STAMPS == 1)
b("s_barrier")
if STAMPS:
    srd(b, SA, sWS, None, "0x10000000")
    b("s_lshl_b32 s%d, s2, 9" % sT0)
    b("s_add_u32 s%d, s%d, %d" % (sT0, sT0, ST_OFF + 0x100000))
    b("v_lshlrev_b32 v1, 2, v0")
    b("buffer_store_dword v20, v1, s[%d:%d], s%d offen" % (SA, SA + 3, sT0))
    b("buffer_store_dword v21, v1, s[%d:%d], s%d offen offset:256" % (SA, SA + 3, sT0))
b("s_endpgm")
b.finish(hist=e.ins)


def q_loader(b, tag, gstep, kstep_shift, ldsbase, blk, flags):
    def chunk():
        b("s_lshl_b32 s%d, s%d, %d" % (sOFF, sT2, kstep_shift))
        b("s_mov_b32 m0, s%d" % sLDS)
        b("s_add_u32 s%d, s%d, 1" % (sT2, sT2))
        dma_group(b, SA, [10, 11, 12, 13], sOFF, flags)
        for g in range(1, 4):
            b("s_add_u32 m0, s%d, %d" % (sLDS, 4096 * g))
            b("s_add_u32 s%d, s%d, %d" % (sOFF, sOFF, gstep))
            dma_group(b, SA, [10, 11, 12, 13], sOFF, flags)
        b("s_and_b32 s%d, s%d, 7" % (sT2, sT2))
        b("s_add_u32 s%d, s%d, 32768" % (sLDS, sLDS))
        b("s_cmp_eq_u32 s%d, %d" % (sLDS, ldsbase - STG + XREG + 32768))
        b("s_cselect_b32 s%d, %d, s%d" % (sLDS, ldsbase, sLDS))
        b("s_cmp_eq_u32 s%d, %d" % (sLDS, ldsbase + 65536))
        b("s_cselect_b32 s%d, %d, s%d" % (sLDS, ldsbase - STG + XREG, sLDS))
    b("s_lshl_b32 s%d, s%d, 1" % (sT2, sHN))
    b("s_add_u32 s%d, s%d, s%d" % (sT2, sT2, sB))
    b("s_and_b32 s%d, s%d, %d" % (sT2, sT2, OPT["rotmask"]))
    b("s_mov_b32 s%d, %d" % (sLDS, ldsbase))
    loop_begin(b, "L_%s0" % tag, 2)
    chunk()
    loop_end(b, "L_%s0" % tag)
    loop_begin(b, "L_%s1" % tag, 6)
    if STAMPS == 4:
        b("s_memrealtime s[58:59]")
        b("s_waitcnt lgkmcnt(0)")
    b("s_waitcnt vmcnt(16)")
    if STAMPS == 4:
        b("s_memrealtime s[60:61]")
        b("s_waitcnt lgkmcnt(0)")
    b("s_barrier")
    if STAMPS == 4:
        b("s_memrealtime s[62:63]")
        b("s_waitcnt lgkmcnt(0)")
        b("s_mov_b32 m0, s%d" % sCNT)
        b("s_nop 0")
        b("v_writelane_b32 v19, s58, m0")
        b("v_writelane_b32 v20, s60, m0")
        b("v_writelane_b32 v21, s62, m0")
    chunk()
    loop_end(b, "L_%s1" % tag)
    wo_setup(b)
    b("s_waitcnt vmcnt(16)")
    b("s_barrier")
    b("s_waitcnt vmcnt(0)")
    b("s_barrier")
    b("s_barrier")
    b("s_setprio 0")
    first = 4 if blk == 0 else 2
    for i in range(first + 1):
        b("s_barrier")
    if tag == "w" and OPT["chk"]:
        b("s_lshl_b32 s%d, s%d, 5" % (sT0, sB))
        b("s_add_u32 s%d, s%d, s%d" % (SC, sDBG, sT0))
        b("s_addc_u32 s%d, s%d, 0" % (SC + 1, sDBG + 1))
        b("s_load_dword s%d, s[%d:%d], 0x0 glc" % (SC + 2, SC, SC + 1))
    b("s_xor_b32 s%d, s%d, %d" % (sOFF, sHN, blk))
    b("s_lshl_b32 s%d, s%d, 17" % (sOFF, sOFF))
    b("s_mov_b32 s%d, %d" % (sLDS, STG + blk * 32768))
    loop_begin(b, "L_%s2" % tag, 4)
    wo_tile(b)
    b("s_add_u32 s%d, s%d, 8192" % (sLDS, sLDS))
    for i in range(4):
        b("s_barrier")
    loop_end(b, "L_%s2" % tag)
    b("s_xor_b32 s%d, s%d, 2" % (sOFF, sHN))
    b("s_lshl_b32 s%d, s%d, 17" % (sOFF, sOFF))
    b("s_add_u32 s%d, s%d, %d" % (sOFF, sOFF, blk * 65536))
    b("s_mov_b32 s%d, %d" % (sLDS, XREG + blk * 16384))
    wo_tile(b)
    b("s_add_u32 s%d, s%d, 8192" % (sLDS, sLDS))
    if tag == "w" and not OPT["chk"]:
        b("s_lshl_b32 s%d, s%d, 5" % (sT0, sB))
        b("s_add_u32 s%d, s%d, s%d" % (SC, sDBG, sT0))
        b("s_addc_u32 s%d, s%d, 0" % (SC + 1, sDBG + 1))
        b("s_load_dword s%d, s[%d:%d], 0x0 glc" % (SC + 2, SC, SC + 1))
    for i in range(4):
        b("s_barrier")
    wo_tile(b)
    done = first + 20
    if tag == "w":
        for i in range(3):
            b("s_barrier")
        done += 3
        b("s_mov_b32 s%d, 0x100000" % sCNT)
        b("s_branch L_wchk")
        b("L_wpoll:")
        b("s_load_dword s%d, s[%d:%d], 0x0 glc" % (SC + 2, SC, SC + 1))
        b("L_wchk:")
        b("s_waitcnt lgkmcnt(0)")
        b("s_sub_u32 s%d, s%d, 1" % (sCNT, sCNT))
        b("s_cbranch_scc1 L_wpolld")
        b("s_cmp_lt_u32 s%d, 32" % (SC + 2))
        b("s_cbranch_scc1 L_wpoll")
        b("L_wpolld:")
    for i in range(29 - done):
        b("s_barrier")
    b("s_waitcnt vmcnt(0)")
    b("s_barrier")
    b("s_barrier")
    b("s_barrier")
    if STAMPS == 4:
        srd(b, SA, sWS, None, "0x10000000")
        b("s_lshl_b32 s%d, s2, 11" % sT0)
        b("s_add_u32 s%d, s%d, %d" % (sT0, sT0, ST_OFF + 0x200000 + blk * 1024))
        b("v_lshlrev_b32 v1, 2, v0")
        for i in range(3):
            b("buffer_store_dword v%d, v1, s[%d:%d], s%d offen offset:%d" % (19 + i, SA, SA + 3, sT0, 256 * i))
    b("s_endpgm")


b = new("ldx")
b("L_ldx:")
b("s_setprio %d" % OPT["prio_x"])
b("v_lshrrev_b32 v5, 3, v0")
b("v_and_b32 v6, 7, v0")
b("v_lshrrev_b32 v7, 1, v5")
for p in range(4):
    b("v_add_u32 v4, %d, v7" % (4 * (p & 1)))
    b("v_xor_b32 v4, v4, v6")
    b("v_lshlrev_b32 v4, 4, v4")
    b("v_lshl_add_u32 v4, v5, 10, v4")
    b("v_add_u32 v%d, %d, v4" % (10 + p, p * (8192 - 1024)))
b("s_mul_i32 s%d, s%d, 114688" % (sT0, sB))
b("s_waitcnt lgkmcnt(0)")
srd(b, SA, sX, sT0, "114688")
q_loader(b, "x", 32768, 7, STG, 0, OPT["nt_x"])
b.finish(hist=e.ins)

b = new("ldw")
b("L_ldw:")
b("s_setprio %d" % OPT["prio_w"])
b("v_lshlrev_b32 v4, 1, v1")
b("v_xor_b32 v4, v4, v3")
b("v_lshlrev_b32 v4, 4, v4")
b("v_lshl_add_u32 v10, v1, 13, v4")
b("v_add_u32 v11, %d, v10" % (32768 - 1024))
b("v_xor_b32 v4, 128, v10")
b("v_add_u32 v12, %d, v4" % (2 * (32768 - 1024)))
b("v_add_u32 v13, %d, v4" % (3 * (32768 - 1024)))
b("s_lshl_b32 s%d, s%d, 8" % (sT0, sH))
b("s_sub_u32 s%d, 0x400000, s%d" % (sT1, sT0))
b("s_waitcnt lgkmcnt(0)")
srd(b, SA, sWQ, sT0, "s%d" % sT1)
q_loader(b, "w", 131072, 19, STG + 16384, 1, OPT["nt_w"])
b.finish(hist=e.ins)

c = new("compute_pro")
c("L_compute:")
if OPT["codepf"]:
    c("s_cmp_lg_u32 s%d, 1" % sWAVE)
    c("s_cbranch_scc1 L_nopf")
    c("s_getpc_b64 s[56:57]")
    c("L_pc:")
    c("s_sub_u32 s56, s56, L_pc-L_start")
    c("s_subb_u32 s57, s57, 0")
    c("s_lshr_b32 s%d, s2, 3" % sT0)
    c("s_and_b32 s%d, s%d, 7" % (sT0, sT0))
    c("s_mul_i32 s%d, s%d, ((L_codeend-L_start+1023)/1024)*128" % (sT0, sT0))
    c("v_lshlrev_b32 v1, 7, v0")
    c("v_add_u32 v1, s%d, v1" % sT0)
    c("v_min_u32 v1, L_codeend-L_start-4, v1")
    c("v_mov_b32 v3, s57")
    c("v_add_co_u32 v2, vcc, s56, v1")
    c("s_nop 1")
    c("v_addc_co_u32 v3, vcc, 0, v3, vcc")
    c("v_cmp_gt_u32 vcc, (L_codeend-L_start+1023)/1024, v0")
    c("s_and_saveexec_b64 s[58:59], vcc")
    c("global_load_dword v255, v[2:3], off")
    c("s_mov_b64 exec, -1")
    c("L_nopf:")
c("v_lshrrev_b32 v1, 4, v0")
c("v_and_b32 v2, 15, v0")
c("v_lshrrev_b32 v3, 5, v0")
c("v_and_b32 v4, 1, v1")
c("v_lshl_add_u32 v3, v4, 1, v3")
c("v_xor_b32 v3, v3, v2")
c("v_lshlrev_b32 v3, 4, v3")
c("v_lshl_add_u32 v%d, v2, 8, v3" % aK)
for ks in range(1, 4):
    c("v_xor_b32 v%d, %d, v%d" % (aK + ks, ks << 6, aK))
c("s_lshl_b32 s%d, s%d, 12" % (sT0, sWAVE))
c("s_add_u32 s%d, s%d, %d" % (sT0, sT0, STG))
c("v_lshrrev_b32 v3, 1, v2")
c("v_xor_b32 v3, v3, v1")
c("v_lshlrev_b32 v3, 4, v3")
c("v_lshl_add_u32 v3, v2, 7, v3")
c("v_add_u32 v%d, s%d, v3" % (aXq, sT0))
c("v_xor_b32 v%d, 64, v%d" % (aXq + 1, aXq))
c("v_bfe_u32 v2, v0, 2, 2")
c("v_lshrrev_b32 v3, 2, v0")
c("v_and_b32 v4, 7, v3")
c("v_lshlrev_b32 v4, 5, v4")
c("v_lshl_add_u32 v3, v3, 8, v4")
c("v_and_b32 v4, 3, v0")
c("v_lshl_add_u32 v3, v4, 3, v3")
c("v_add_u32 v%d, %d, v3" % (aV, VRING + 16384))
for db in range(1, 8):
    c("v_xor_b32 v%d, %d, v%d" % (aV + db, db << 5, aV))
c("v_lshl_add_u32 v3, v1, 10, v3")
c("v_add_u32 v%d, %d, v3" % (aWq, STG + 16384))
for db in range(1, 8):
    c("v_xor_b32 v%d, %d, v%d" % (aWq + db, db << 5, aWq))
c("v_mul_u32_u24 v2, 320, v2")
c("v_lshrrev_b32 v3, 5, v0")
c("v_lshl_add_u32 v3, v3, 11, v2")
c("v_and_b32 v4, 1, v1")
c("v_lshl_add_u32 v3, v4, 5, v3")
c("v_and_b32 v4, 1, v0")
c("v_lshl_add_u32 v3, v4, 4, v3")
c("v_bfe_u32 v4, v0, 1, 1")
c("v_lshl_add_u32 v3, v4, 3, v3")
c("s_lshl_b32 s%d, s%d, 5" % (sT0, sG))
c("v_xor_b32 v%d, s%d, v3" % (vLO, sT0))
c("s_cmp_eq_u32 s%d, 3" % sWAVE)
c("s_mov_b32 s%d, %s" % (sT0, f32(3e38)))
c("s_cselect_b32 s%d, %s, s%d" % (sPADM, f32(-1e30), sT0))
c("v_and_b32 v2, 31, v0")
c("s_lshl_b32 s%d, s%d, 5" % (sT0, sWAVE))
c("v_add_u32 v3, s%d, v2" % sT0)
c("v_lshlrev_b32 v%d, 4, v0" % vE)
c("v_cmp_lt_u32 vcc, 111, v3")
c("v_bfrev_b32 v3, 1")
c("v_cndmask_b32 v3, 0, v3, vcc")
c("v_or_b32 v%d, v%d, v3" % (vE, vE))
for i in range(64):
    c("v_mov_b32 v%d, 0" % (ACC + i))
c("s_mov_b32 s%d, %s" % (sCS, f32(CSC)))
c("s_mov_b32 s%d, %s" % (sCS + 1, f32(CSC)))
c("s_mov_b32 s%d, %s" % (sTHR, f32(0.0 if OPT["force_rescale"] else OPT["thr"])))
c("s_waitcnt lgkmcnt(0)")
c("s_mov_b32 s%d, %d" % (sT0, OPT["wsbase"]))
srd(c, SA, sWS, sT0, "0x%x" % (0x10000000 - OPT["wsbase"]))
c("s_mul_i32 s%d, s%d, 114688" % (sT0, sB))
srd(c, SB, sOUT, sT0, "114688")
c("s_lshl_b32 s%d, s%d, 7" % (sT0, sWAVE))
c("v_xor_b32 v1, s%d, v0" % sWGL)
c("v_lshlrev_b32 v1, 11, v1")
c("v_lshl_add_u32 v2, v0, 2, s%d" % sT0)
c("v_add_u32 v1, v1, v2")
c("s_lshl_b32 s%d, s%d, 11" % (sT1, sWGL))
c("v_add_u32 v2, s%d, v2" % sT1)
c("v_subrev_u32 v3, 1, v0")
c("v_cmp_gt_u32 vcc, 3, v3")
c("v_bfrev_b32 v3, 1")
c("s_nop 0")
c("v_cndmask_b32 v%d, v3, v1, vcc" % vM1)
c("v_cndmask_b32 v%d, v3, v2, vcc" % vP1)
c("v_xor_b32 v1, s%d, v0" % sWGL)
c("v_lshlrev_b32 v1, 11, v1")
c("v_add_u32 v1, 512, v1")
c("v_cmp_gt_u32 vcc, 4, v0")
c("v_bfrev_b32 v2, 1")
c("s_nop 0")
c("v_cndmask_b32 v%d, v2, v1, vcc" % vINFO)
c("v_and_b32 v1, 31, v0")
c("s_lshl_b32 s%d, s%d, 5" % (sT0, sWAVE))
c("v_add_u32 v1, s%d, v1" % sT0)
c("v_lshlrev_b32 v1, 10, v1")
c("v_lshrrev_b32 v2, 5, v0")
c("v_lshl_add_u32 v%d, v2, 4, v1" % vOUT)
c("s_lshl_b32 s%d, s%d, 8" % (sT0, sHN))
c("s_lshl_b32 s%d, s%d, 5" % (sT1, sG))
c("s_add_u32 s%d, s%d, s%d" % (sOFF, sT0, sT1))
c("s_lshl_b32 s%d, s%d, 15" % (sE1, sWGL))
c("s_lshl_b32 s%d, s%d, 13" % (sT0, sWAVE))
c("s_add_u32 s%d, s%d, s%d" % (sE1, sE1, sT0))
c("s_add_u32 s%d, s%d, %d" % (sE1, sE1, E1_OFF))
c("s_lshl_b32 s%d, s%d, 2" % (sT0, sB))
c("s_add_u32 s%d, s%d, s%d" % (sT0, sT0, sHN))
c("s_lshl_b32 s%d, s%d, 18" % (sT0, sT0))
c("s_lshl_b32 s%d, s%d, 10" % (sT1, sWAVE))
c("s_add_u32 s%d, s%d, s%d" % (sT0, sT0, sT1))
c("s_add_u32 s%d, s%d, %d" % (sE2P, sT0, E2_OFF))
c("s_lshl_b32 s%d, s%d, 15" % (sT1, sG))
c("s_add_u32 s%d, s%d, s%d" % (sE2C, sE2P, sT1))


def q_reads(s_):
    W = VF if s_ == 0 else S0
    r = ["ds_read_b128 %s, v%d offset:%d" % (vr(XB + 8 * s_ + 4 * blk, 4), aXq + s_, blk * 2048) for blk in range(2)]
    for db in range(8):
        for u in range(2):
            r.append("ds_read_b64_tr_b16 %s, v%d offset:%d" % (vr(W + 4 * db + 2 * u, 2), aWq + db, s_ * 8192 + u * 1024))
    if OPT["qdiag"] & 1:
        r = ["s_nop 0"] * 18
    return r


def k_reads(slot_off):
    return ["ds_read_b128 %s, v%d offset:%d" % (vr(KF + 16 * kb + 4 * ks, 4), aK + ks, slot_off + kb * 4096)
            for ks in range(4) for kb in range(2)]


def q_mfmas(s_):
    W = VF if s_ == 0 else S0
    r = []
    for db in range(8):
        for blk in range(2):
            d = vr(ACC + 32 * blk + 4 * db, 4)
            r.append("%s %s, %s, %s, %s" % (M16, d, vr(W + 4 * db, 4), vr(XB + 8 * s_ + 4 * blk, 4), d))
    if OPT["qdiag"] & 2:
        r = ["s_nop 0"] * 16
    return r


c("s_mov_b32 s%d, %d" % (sT2, sum(((1, -3, 2)[i % 3] + 3) << (3 * i) for i in range(8))))
c("s_mov_b32 s%d, 8" % sCNT)
c("s_barrier")
stamp(c, 1)
c.add(q_reads(0))
lgq0, _ = c.finish(hist=e.ins)

ql = new("qloop")
ql("L_q:")
tabq = ["s_and_b32 s%d, s%d, 7" % (sDEL, sT2), "s_lshr_b32 s%d, s%d, 3" % (sT2, sT2),
        "s_sub_u32 s%d, s%d, 3" % (sDEL, sDEL), "s_lshl_b32 s%d, s%d, 15" % (sDEL, sDEL)]
adv = ["v_add_u32 v%d, s%d, v%d" % (r_, sDEL, r_) for r_ in range(aWq, aWq + 10)]


def spread(items, counts):
    out, k = [], 0
    for n in counts:
        out.append(items[k:k + n])
        k += n
    assert k == len(items)
    return out


def q_barrier():
    ql("s_waitcnt lgkmcnt(0)")
    ql("s_barrier")
    if 20 < PROBE < 40:
        ql("s_cmp_lg_u32 s%d, %d" % (sCNT, 9 - (PROBE - 20)))
        ql("s_cbranch_scc1 L_noprobe")
        ql("s_memrealtime s[%d:%d]" % (sSTAMP + 2, sSTAMP + 3))
        ql("L_noprobe:")


if OPT["qs"] == 0:
    gaps = spread(q_reads(1), [2] * 9 + [0] * 7)
    gaps[9] = tabq
    for i in range(5):
        gaps[10 + i] = adv[2 * i:2 * i + 2]
    ql.add(interleave(q_mfmas(0), gaps))
    q_barrier()
    ql.add(interleave(q_mfmas(1), spread(q_reads(0), [2] * 9 + [0] * 7)))
else:
    NB_ = {1: 4, 2: 6}[OPT["qs"]]
    gaps = spread(q_reads(1), [2, 1, 2, 1, 2, 1, 1, 1, 1, 1, 1, 1, 1, 1, 1, 0])
    gaps[1] += tabq[:2]
    gaps[3] += tabq[2:]
    ql.add(interleave(q_mfmas(0), gaps))
    m1 = q_mfmas(1)
    ql.add(interleave(m1[:NB_], spread(adv, {4: [3, 2, 3, 2], 6: [2, 2, 2, 2, 1, 1]}[NB_])))
    q_barrier()
    ql.add(interleave(m1[NB_:], spread(q_reads(0), {4: [2, 2, 2, 1, 2, 1, 2, 1, 2, 1, 1, 1], 6: [2, 2, 2, 2, 2, 2, 2, 2, 1, 1]}[NB_])))
loop_end(ql, "L_q")
lgq1, _ = ql.finish(hist=c.ins, lgq=lgq0)
assert lgq1 == lgq0[-len(lgq1):] or STAMPS or PROBE >= 1 or OPT["qdiag"], (lgq0, lgq1)
pad_hazards(ql.ins, hist=ql.ins, check_only=True, where="q loop back edge")

q = new("attn_pro")
stamp(q, 2)
q("s_waitcnt lgkmcnt(0)")
q.add(k_reads(0))
q("s_waitcnt vmcnt(0)")
aO1, aO2, aO3 = aK, aW, aV
for nt in range(4):
    q("v_xor_b32 v%d, %d, v%d" % (aO2 + nt, nt << 6, vLO))


def conv(ks):
    r = []
    for blk in range(2):
        a0 = ACC + 32 * blk + 8 * ks
        f0 = QF + 16 * blk + 4 * ks
        if ks == 0 or OPT["pro"] == 0:
            r += ["v_pk_mul_f32 %s, %s, s[%d:%d]" % (vr(a0 + 2 * j, 2), vr(a0 + 2 * j, 2), sCS, sCS + 1) for j in range(4)]
        else:
            r += ["v_mul_f32 v%d, s%d, v%d" % (a0 + j, sCS, a0 + j) for j in range(8)]
        r += ["v_cvt_pk_bf16_f32 v%d, v%d, v%d" % (f0 + j, a0 + 2 * j, a0 + 2 * j + 1) for j in range(4)]
    for blk in range(2):
        f0 = QF + 16 * blk + 4 * ks
        r += ["v_permlane16_swap_b32 v%d, v%d" % (f0 + j, f0 + 2 + j) for j in range(2)]
    return r


def qk_list(SN, first):
    r = []
    for ks in range(4):
        for kb in range(2):
            for blk in range(2):
                d = vr(SN + 8 * blk + 4 * kb, 4)
                cc = d if ks else ("0" if first else vr(NM[blk], 4))
                r.append("%s %s, %s, %s, %s" % (M16, d, vr(KF + 16 * kb + 4 * ks, 4), vr(QF + 16 * blk + 4 * ks, 4), cc))
    return r


k1 = k_reads(8192)
init = ["v_mov_b32 v%d, 0" % (vL[0] + i) for i in range(8)] + ["v_mov_b32 v%d, 0x3f803f80" % (ONES + i) for i in range(4)]
if OPT["pro"] == 0:
    for ks in range(4):
        q.add(conv(ks))
    gaps = []
    for i in range(16):
        g = ["v_mov_b32 v%d, 0" % (ACC + 4 * i + j) for j in range(4)]
        if i & 1:
            g.append(k1[i >> 1])
        gaps.append(g)
    q.add(interleave(qk_list(S0, True), gaps))
    q.add(init)
else:
    q.add(conv(0))
    q.add(init[:4])
    qk0 = qk_list(S0, True)
    for ks in range(3):
        g = spread(conv(ks + 1), [7, 7, 7, 7])
        g[2].insert(0, k1[2 * ks])
        if ks:
            g[0].insert(0, k1[2 * ks - 1])
        q.add(interleave(qk0[4 * ks:4 * ks + 4], g))
    q.add(interleave(qk0[12:], [[k1[5]] + init[4:6], init[6:8], [k1[6]] + init[8:10], init[10:]]))
    z = vr(vL[0], 4)
    q.add(interleave(["%s %s, %s, %s, 0" % (M32, vr(ACC + 16 * i, 16), z, z) for i in range(4)], [[k1[7]], [], [], []]))
for ks in range(4):
    q("v_add_u32 v%d, 16384, v%d" % (aK + ks, aK + ks))


def blk_max(b, S, dst, tmp):
    b("v_max3_f32 v%d, v%d, v%d, v%d" % (dst, S, S + 1, S + 2))
    b("v_max3_f32 v%d, v%d, v%d, v%d" % (dst, dst, S + 3, S + 4))
    b("v_max3_f32 v%d, v%d, v%d, v%d" % (dst, dst, S + 5, S + 6))
    b("v_max_f32 v%d, v%d, v%d" % (dst, dst, S + 7))
    lane_reduce(b, "v_max_f32", dst, tmp)


def lane_reduce(b, op, dst, tmp):
    b("v_mov_b32 v%d, v%d" % (tmp, dst))
    b("v_permlane32_swap_b32 v%d, v%d" % (tmp, dst))
    b("%s v%d, v%d, v%d" % (op, dst, tmp, dst))
    b("v_mov_b32 v%d, v%d" % (tmp, dst))
    b("v_permlane16_swap_b32 v%d, v%d" % (tmp, dst))
    b("%s v%d, v%d, v%d" % (op, dst, tmp, dst))


chains = []
for blk in range(2):
    tb = Block()
    blk_max(tb, S0 + 8 * blk, *((1, 2) if blk == 0 else (vTM, NM[1] + 1)))
    tb("v_sub_f32 v%d, 0, v%d" % (NM[blk], 1 if blk == 0 else vTM))
    if blk == 1:
        tb("v_min_f32 v%d, s%d, v%d" % (NM[blk], sPADM, NM[blk]))
    for j in range(1, 4):
        tb("v_mov_b32 v%d, v%d" % (NM[blk] + j, NM[blk]))
    for i in range(8):
        tb("v_add_f32 v%d, v%d, v%d" % (S0 + 8 * blk + i, S0 + 8 * blk + i, NM[blk]))
    chains.append(tb.ins)
for i in range(max(map(len, chains))):
    q.add([ch[i] for ch in chains if i < len(ch)])
if OPT["w3diag"] == 2:
    q("s_cmp_lg_u32 s%d, 3" % sWAVE)
    q("s_cbranch_scc1 L_w3d")
    for i in range(16):
        q("v_mov_b32 v%d, v%d" % (QF + 16 + i, QF + i))
    for i in range(4):
        q("v_mov_b32 v%d, v%d" % (NM[1] + i, NM[0] + i))
    q("L_w3d:")
if OPT["w3diag"] == 1:
    q("s_cmp_lg_u32 s%d, 3" % sWAVE)
    q("s_cbranch_scc1 L_w3d")
    for i in range(30):
        q("s_barrier")
    q("s_branch L_w3e")
    q("L_w3d:")
KSEQ = [1, 2, 0, 1, 2, 0, 1, 2, 0, 1, 0, 1, 0, 1, 0, 0]
VSEQ = [1, 2, 0, 1, 2, 0, 1, 2, 0, 1, 2, 1, 2, 1, 2, 1]
for tab, seq in ((sTABK, KSEQ), (sTABV, VSEQ)):
    q("s_mov_b32 s%d, 0x%x" % (tab, sum((seq[i + 1] - seq[i] + 2) << (2 * i) for i in range(15))))
q("s_mov_b32 s%d, 15" % sCNT)
stamp(q, 3)
q.finish(hist=ql.ins)


def v_read(db, u, off):
    return "ds_read_b64_tr_b16 %s, v%d offset:%d" % (vr(VF + 4 * db + 2 * u, 2), aV + db, off + u * 4096)


def ex(S, i):
    return "v_exp_f32 v%d, v%d" % (S + i, S + i)


def cvt(S, j):
    return "v_cvt_pk_bf16_f32 v%d, v%d, v%d" % (PK + j, S + 2 * j, S + 2 * j + 1)


def add(S, i):
    return "v_add_f32 v%d, v%d, v%d" % (vL[i >> 3], vL[i >> 3], S + i)


def pv_list():
    r = []
    for db in range(8):
        for blk in range(2):
            d = vr(ACC + 32 * blk + 4 * db, 4)
            r.append("%s %s, %s, %s, %s" % (M16, d, vr(VF + 4 * db, 4), vr(PK + 4 * blk, 4), d))
    return r


def sum_mfma(blk):
    return "%s %s, %s, %s, %s" % (M16, vr(vL[blk], 4), vr(ONES, 4), vr(PK + 4 * blk, 4), vr(vL[blk], 4))


def max_tree(S):
    r = ["v_max3_f32 v%d, v%d, v%d, v%d" % (vTM, S, S + 1, S + 2)]
    for i in range(3, 15, 2):
        r.append("v_max3_f32 v%d, v%d, v%d, v%d" % (vTM, vTM, S + i, S + i + 1))
    r.append("v_max_f32 v%d, v%d, v%d" % (vTM, vTM, S + 15))
    return r


def epoch_b0(b, S, SN, vrd, kr, adv, sc):
    ga = [[] for _ in range(16)]
    gb = [[] for _ in range(18)]
    nA = {10: 8, 11: 10, 12: 12}[sc]
    for i in range(16):
        ga[i if sc != 12 else min(i, 15)].append(vrd[i])
    pos = [int(i * 16 / nA) for i in range(nA)]
    for i in range(nA):
        ga[pos[i]].append(ex(S, i))
    for j in range(4):
        ga[min(15, pos[2 * j + 1] + 1)].insert(0, cvt(S, j))
    b.add(interleave(qk_list(SN, False), ga))
    b("s_waitcnt lgkmcnt(%d)" % 8)
    pv = pv_list()
    order = [pv[2 * db] for db in range(4)] + ["WAIT"] + [pv[2 * db] for db in range(4, 8)] + [sum_mfma(0)] + \
            [pv[2 * db + 1] for db in range(8)] + [sum_mfma(1)]
    for i in range(nA, 16):
        gb[i - nA].append(ex(S, i))
    for j in range(4, 8):
        gb[max(0, 2 * j + 1 - nA + 1)].append(cvt(S, j))
    for i in range(8):
        gb[4 + i].append(kr[i])
    mx = max_tree(SN)
    for i in range(8):
        gb[9 + i].append(mx[i])
    if adv:
        for tab, dl, gi in ((sTABV, sDELV, 0), (sTABK, sDEL, 1)):
            gb[gi] += ["s_and_b32 s%d, s%d, 3" % (dl, tab), "s_lshr_b32 s%d, s%d, 2" % (tab, tab),
                       "s_sub_u32 s%d, s%d, 2" % (dl, dl), "s_lshl_b32 s%d, s%d, 14" % (dl, dl)]
        for i in range(8):
            gb[9 + i].append("v_add_u32 v%d, s%d, v%d" % (aV + i, sDELV, aV + i))
        for i in range(4):
            gb[13 + i].append("v_add_u32 v%d, s%d, v%d" % (aK + i, sDEL, aK + i))
    k = 0
    for x in order:
        if x == "WAIT":
            b("s_waitcnt lgkmcnt(0)")
            continue
        b(x)
        b.add([y for y in gb[k] if y is not None])
        k += 1


def epoch_p(b, S, SN, vrd, kr, adv, sc):
    A = "e0|t0 t1|e1|t2 c0|e2|t3 t4|e3|t5 c1|e4|t6 t7|e5|t8 c2|e6|t9 e7|t10 c3|t11 e8"
    B = {20: "t12 t13|t14 e9|t15 e10|c4 e11|k0 e12|c5 e13|k1 e14|c6 e15|k2 c7 m0 m1|k3 m2|k4 m3|k5 m4|k6 m5|k7 m6|m7 a|x a|a a|a a",
         21: "t12 t13|t14 e9|t15 e10|c4 e11|e12|c5 e13|e14|c6 e15|k0 c7 m0 m1|k1 k2|k3 m2|k4 m3|k5 m4|k6 m5|k7 m6|m7 a|x a|a a",
         22: "t12 t13|t14 e9|t15 e10|k0 c4 e11|k1 e12|k2 c5 e13|k3 e14|k4 c6 e15|k5 c7 m0 m1|k6 m2|k7 m3|m4 m5|m6 m7|x a|a a|a a|a a|a a"}[sc]
    mx = max_tree(SN)
    adds = []
    if adv:
        adds = ["v_add_u32 v%d, s%d, v%d" % (aV + i, sDELV, aV + i) for i in range(8)] + \
               ["v_add_u32 v%d, s%d, v%d" % (aK + i, sDEL, aK + i) for i in range(4)]

    def ins(tok):
        k, n = tok[0], int(tok[1:]) if len(tok) > 1 else 0
        if k == "a":
            return adds.pop(0) if adds else None
        if k == "x":
            return "v_cmp_lt_f32 vcc, s%d, v%d" % (sTHR, vTM)
        return {"e": lambda: ex(S, n), "t": lambda: vrd[n], "c": lambda: cvt(S, n), "k": lambda: kr[n], "m": lambda: mx[n]}[k]()
    ga = [[ins(x) for x in g.split()] for g in A.split("|")]
    if adv:
        for tab, dl, gi in ((sTABV, sDELV, 1), (sTABK, sDEL, 5)):
            ga[gi] += ["s_and_b32 s%d, s%d, 3" % (dl, tab), "s_lshr_b32 s%d, s%d, 2" % (tab, tab)]
            ga[gi + 2] += ["s_sub_u32 s%d, s%d, 2" % (dl, dl), "s_lshl_b32 s%d, s%d, 14" % (dl, dl)]
    b.add(interleave(qk_list(SN, False), ga))
    pv = pv_list()
    order = [pv[2 * db] for db in range(8)] + [sum_mfma(0)] + [pv[2 * db + 1] for db in range(8)] + [sum_mfma(1)]
    gb = [[ins(x) for x in g.split()] for g in B.split("|")]
    gb[-1] += adds[:]
    nk = 0 if kr[0] is None else 1
    for i, (m_, g) in enumerate(zip(order, gb)):
        if i == 0:
            b("s_waitcnt lgkmcnt(4)")
        if i == 4:
            b("s_waitcnt lgkmcnt(%d)" % (4 + (nk if sc == 22 else 0)))
        b(m_)
        b.add([y for y in g if y is not None])


def epoch(b, par, kread=True, adv=False, tag="", head=()):
    S, SN = (S0, S1) if par == 0 else (S1, S0)
    off = par * 8192
    vrd = [v_read(db, u, off) for db in range(8) for u in range(2)]
    kr = k_reads(off) if kread else [None] * 8
    b("s_waitcnt lgkmcnt(0)")
    b("s_barrier")
    b.add(head)
    SC_ = OPT["sched"]
    if SC_ >= 10:
        if SC_ >= 20:
            epoch_p(b, S, SN, vrd, kr, adv, SC_)
        else:
            epoch_b0(b, S, SN, vrd, kr, adv, SC_)
            b("v_cmp_lt_f32 vcc, s%d, v%d" % (sTHR, vTM))
        b("s_cbranch_vccnz L_resc%s" % tag)
        b("L_back%s:" % tag)
        rescale(tag, SN)
        return
    ga = [[] for _ in range(16)]
    va = {0: [0, 1, 3, 5, 7, 9, 11, 13], 1: [0, 1, 3, 5, 7, 9, 11, 13], 2: [1, 1, 3, 3, 5, 5, 7, 7, 9, 9, 11, 11],
          3: [0, 0, 1, 1, 3, 3, 5, 5]}[SC_]
    for i, gi in enumerate(va):
        ga[gi].append(vrd[i])
    for j in range(7):
        ga[2 * j + 2].append(cvt(S, j))
    for i in range(16):
        if SC_ == 1:
            ga[i].insert(0, ex(S, i))
        else:
            ga[i].append(ex(S, i))
    b.add(interleave(qk_list(SN, False), ga))
    mx = max_tree(SN)
    gb = [[] for _ in range(16)]
    gb[0] = [cvt(S, 7)]
    rest = vrd[len(va):]
    for i, x in enumerate(rest):
        gb[i >> 1].append(x)
    k0 = (len(rest) + 1) // 2
    for i in range(8):
        gb[k0 + i].append(kr[i])
    if not OPT["msum"]:
        order = [0, 8, 1, 9, 2, 10, 3, 11, 4, 12, 5, 13, 6, 14, 7, 15]
        for i in range(8):
            gb[4 + i].append(add(S, order[i]))
        for i in range(8):
            gb[12 + (i >> 1)].append(add(S, order[8 + i]))
    for i in range(8):
        gb[8 + i].append(mx[i])
    gb = [[x for x in g if x is not None] for g in gb]
    if adv:
        for tab, dl, gi in ((sTABV, sDELV, 1), (sTABK, sDEL, 2)):
            gb[gi] += ["s_and_b32 s%d, s%d, 3" % (dl, tab), "s_lshr_b32 s%d, s%d, 2" % (tab, tab),
                       "s_sub_u32 s%d, s%d, 2" % (dl, dl), "s_lshl_b32 s%d, s%d, 14" % (dl, dl)]
        for i in range(8):
            gb[4 + (i >> 1)].append("v_add_u32 v%d, s%d, v%d" % (aV + i, sDELV, aV + i))
        for i in range(4):
            gb[12 + i].append("v_add_u32 v%d, s%d, v%d" % (aK + i, sDEL, aK + i))
    b.add(interleave(pv_list(), gb))
    if OPT["msum"]:
        b(sum_mfma(0))
        b(sum_mfma(1))
    b("v_cmp_lt_f32 vcc, s%d, v%d" % (sTHR, vTM))
    b("s_cbranch_vccnz L_resc%s" % tag)
    b("L_back%s:" % tag)
    rescale(tag, SN)


rare = []


def rescale(tag, SN):
    r = Block("resc" + tag)
    r("L_resc%s:" % tag)
    r("s_nop 15")
    for blk in range(2):
        blk_max(r, SN + 8 * blk, 1, 2)
        r("v_max_f32 v1, 0, v1")
        r("v_sub_f32 v2, 0, v1")
        r("v_exp_f32 v2, v2")
        for j in range(4):
            r("v_sub_f32 v%d, v%d, v1" % (NM[blk] + j, NM[blk] + j))
        for i in range(8):
            r("v_sub_f32 v%d, v%d, v1" % (SN + 8 * blk + i, SN + 8 * blk + i))
        for j in range(4 if OPT["msum"] else 1):
            r("v_mul_f32 v%d, v%d, v2" % (vL[blk] + j, vL[blk] + j))
        for i in range(32):
            r("v_mul_f32 v%d, v%d, v2" % (ACC + 32 * blk + i, ACC + 32 * blk + i))
    r("s_nop 1")
    r("s_branch L_back%s" % tag)
    r.finish()
    rare.append(r)


if STAMPS == 6:
    q.ins.append(parse("s_memtime s[92:93]"))
lp = new("loop")
lp("L_att:")
epoch(lp, 0, True, False, "a")
epoch(lp, 1, True, True, "b",
      head=["s_cmp_lg_u32 s%d, 1" % sCNT, "s_cbranch_scc1 L_noinfo",
            "buffer_load_dword v%d, v%d, s[%d:%d], 0 offen sc1" % (vINF, vINFO, SA, SA + 3), "L_noinfo:"])
loop_end(lp, "L_att")
if OPT["drop"]:
    def keep(i):
        x = i.text
        d = OPT["drop"]
        return not (("t" in d and "_tr_" in x) or ("k" in d and "ds_read_b128" in x) or ("e" in d and "v_exp" in x) or
                    ("c" in d and "v_cvt" in x) or ("m" in d and "v_max" in x) or ("a" in d and ("v_add_u32" in x)) or
                    ("M" in d and "v_mfma" in x))
    lp.ins = [i for i in lp.ins if keep(i)]
lp.finish(hist=q.ins)
pad_hazards(lp.ins, hist=lp.ins, check_only=True, where="loop back edge")

t = new("tail")
t("L_w3e:")
if STAMPS == 6:
    t("s_memtime s[94:95]")
    t("s_waitcnt lgkmcnt(0)")
stamp(t, 4)
epoch(t, 0, False, False, "c")
OB = QF
DYN = OPT["dyn"]
AREG = {0: aO1, 1: aO3, 2: aO1, 3: aO3}
SBUF = {1: S0, 2: KF, 3: XB}
SEQ = [(j, f, nt) for j in range(3) for f in range(8) for nt in range(4)]
SEQ += [(3, f, nt) for nt in (1, 2, 3, 0) for f in range(8)]
sASG, sP, sP4, sWB, sE1F, sE1F4 = sN, sN + 1, sN + 2, sN + 3, sN + 4, sN + 5
OOB = 0x40000000


def wbuf(m):
    return (KF if m < 8 else VF) + 4 * (m & 7)


def w_reads(m):
    if m >= len(SEQ):
        return []
    j, f, nt = SEQ[m]
    ks, y = f >> 1, f & 1
    return ["ds_read_b64_tr_b16 %s, v%d offset:%d" % (vr(wbuf(m) + 2 * u, 2), AREG[j] + nt,
                                                   ks * 8192 + u * 4096 + y * 1024) for u in range(2)]


S = S1
for nt in range(4):
    t("v_add_u32 v%d, %d, v%d" % (aO1 + nt, STG, aO2 + nt))
for m in range(8):
    t.add(w_reads(m))
for i in range(16):
    t(ex(S, i))
for j in range(8):
    t(cvt(S, j))
t(sum_mfma(0))
t(sum_mfma(1))
t("v_readlane_b32 s%d, v%d, 0" % (sT0, vINF))
t("v_mov_b32 v%d, 1" % NM[0])
t("s_mov_b32 s%d, 0" % sASG)
t("v_cmp_eq_u32 vcc, s%d, v%d" % (sT0, vINF))
t("s_add_u32 s%d, s%d, 4096" % (sT2, sE1))
t("s_and_b32 s%d, vcc_lo, 15" % sFAST)
t("s_cmp_eq_u32 s%d, %d" % (sFAST, 15 if OPT["fast"] else 16))
t("s_cselect_b32 s%d, s%d, 0x%x" % (sE1F, sE1, OOB))
t("s_add_u32 s%d, s%d, 4096" % (sE1F4, sE1F))
for blk in range(2):
    t("v_max_f32 v%d, %s, v%d" % (vL[blk], f32(1e-30), vL[blk]))
for blk in range(2):
    t("v_rcp_f32 v%d, v%d" % (vL[blk], vL[blk]))
for blk in range(2):
    for j in range(4):
        t("v_pk_mul_f32 %s, %s, %s op_sel_hi:[1,0]" % (vr(S + 8 * blk + 2 * j, 2), vr(S + 8 * blk + 2 * j, 2), vr(vL[blk], 2)))
for blk in range(2):
    for j in range(16):
        a0 = ACC + 32 * blk + 2 * j
        t("v_pk_mul_f32 %s, %s, %s op_sel_hi:[1,0]" % (vr(a0, 2), vr(a0, 2), vr(vL[blk], 2)))
for j in range(8):
    t(cvt(S, j))
t("s_waitcnt lgkmcnt(0)")
t("s_barrier")
stamp(t, 5)
cst(t, 2)
vrd = [v_read(db, u, 8192) for db in range(8) for u in range(2)]


def bfrag(j, f):
    return OB + 16 * (f & 1) + 4 * (f >> 1) if j == 0 else SBUF[j] + 4 * f


def pack(ks):
    return ["v_cvt_pk_bf16_f32 v%d, v%d, v%d" % (OB + 16 * blk + 4 * ks + j, ACC + 32 * blk + 8 * ks + 2 * j, ACC + 32 * blk + 8 * ks + 2 * j + 1)
            for blk in range(2) for j in range(4)]


def swaps(ks):
    return ["v_permlane16_swap_b32 v%d, v%d" % (OB + 4 * ks + j, OB + 16 + 4 * ks + j) for j in range(4)]


def publish(f, lo, hi, fl):
    return "buffer_store_dwordx4 %s, v%d, s[%d:%d], s%d offen offset:%d %s" % (vr(bfrag(0, f), 4), vE, SA, SA + 3,
                                                                           lo if f < 4 else hi, (f & 3) * 1024, fl)


t.add(vrd[0:8])
p0, p1, p2 = pack(0), pack(1), pack(2)
g = [vrd[8:10], vrd[10:12], vrd[12:14], vrd[14:16], [], [], p0[0:2], p0[2:4], p0[4:6], p0[6:8], p1[0:2] + swaps(0)[0:1],
     p1[2:4] + swaps(0)[1:2], p1[4:6] + swaps(0)[2:3], p1[6:8] + swaps(0)[3:4], p2[0:3], p2[3:8]]
t.add(interleave(pv_list(), g))
t.add([publish(f, sE1F, sE1F4, "") for f in (0, 1)])
t.add(swaps(1))
t.add([publish(f, sE1F, sE1F4, "") for f in (2, 3)])
t.add(swaps(2))
t.add(pack(3))
t.add([publish(f, sE1F, sE1F4, "") for f in (4, 5)])
t.add(swaps(3))
t.add([publish(f, sE1F, sE1F4, "") for f in (6, 7)])


def uncounted(x):
    i_ = parse(x)
    i_.kind = "comment"
    i_.n = 0
    return i_


t("s_cmp_lg_u32 s%d, 0x%x" % (sE1F, OOB))
t("s_cbranch_scc1 L_pubj")
t.add([uncounted(publish(f, sE1, sT2, "sc1")) for f in range(8)])
t("L_pubj:")


def o_mfma(b, m, extra=()):
    j, f, nt = SEQ[m]
    b("%s %s, %s, %s, %s" % (M32, vr(ACC + 16 * nt, 16), vr(wbuf(m), 4), vr(bfrag(j, f), 4),
                             "0" if (j == 0 and f == 0) else vr(ACC + 16 * nt, 16)))
    b.add(w_reads(m + 8))
    b.add(extra)


def two_way(b, name, fast, slow):
    b("s_cmp_lg_u32 s%d, 0x%x" % (sE1F, OOB))
    b("s_cbranch_scc1 L_%sf" % name)
    b.add(slow)
    b("s_branch L_%sj" % name)
    b("L_%sf:" % name)
    b.add([uncounted(x) for x in fast])
    b("L_%sj:" % name)


flag = "buffer_store_dword v%d, v%d, s[%d:%d], 0 offen" % (NM[0], vM1, SA, SA + 3)
pollld = "buffer_load_dword v%d, v%d, s[%d:%d], 0 offen sc1" % (vTM, vP1, SA, SA + 3)


def sib_load(p, f):
    return "buffer_load_dwordx4 %s, v%d, s[%d:%d], s%d offen offset:%d sc1" % (vr(SBUF[p] + 4 * f, 4), vE, SA, SA + 3,
                                                                           sP if f < 4 else sP4, (f & 3) * 1024)


def try_assign(b, p, name):
    b("v_cmp_eq_u32 vcc, 1, v%d" % vTM)
    b("s_mov_b32 s%d, 0x%x" % (sP, OOB))
    if DYN:
        b("s_andn2_b32 s%d, vcc_lo, s%d" % (sT0, sASG))
        b("s_cbranch_scc0 %s" % name)
        b("s_ff1_i32_b32 s%d, s%d" % (sT0, sT0))
        b("s_bitset1_b32 s%d, s%d" % (sASG, sT0))
        b("s_lshl_b32 s%d, s%d, 2" % (sWB, sT0))
        b("s_lshl_b32 s%d, s%d, 15" % (sT0, sT0))
        b("s_xor_b32 s%d, s%d, s%d" % (sP, sE1, sT0))
        b("s_lshr_b32 s%d, 0x0140, s%d" % (sWB, sWB))
        b("s_and_b32 s%d, s%d, 15" % (sWB, sWB))
        b("s_lshl_b32 s%d, s%d, 15" % (sWB, sWB))
        b(name + ":")
    else:
        b("s_xor_b32 s%d, s%d, %d" % (sT0, sE1, p << 15))
        b("s_bitcmp1_b32 vcc_lo, %d" % p)
        b("s_cselect_b32 s%d, s%d, s%d" % (sP, sT0, sP))
    b("s_add_u32 s%d, s%d, 4096" % (sP4, sP))


NEARLY = 4


def decide(b, p):
    b("s_cmp_lg_u32 s%d, 0x%x" % (sP, OOB))
    b("s_cbranch_scc1 L_dec%dd" % p)
    b("s_mov_b32 s%d, 0x100000" % sCNT)
    b("L_dec%d:" % p)
    b(pollld)
    b("s_waitcnt vmcnt(0)")
    try_assign(b, p, "L_dec%da" % p)
    b("s_sub_u32 s%d, s%d, 1" % (sCNT, sCNT))
    b("s_cbranch_scc1 L_dec%dl" % p)
    b("s_cmp_eq_u32 s%d, 0x%x" % (sP, OOB))
    b("s_cbranch_scc1 L_dec%d" % p)
    b("L_dec%dl:" % p)
    b.add([sib_load(p, f) for f in range(8 if p == 3 else NEARLY)])
    b("L_dec%dd:" % p)
    for nt in range(4):
        if DYN:
            b("v_add_u32 v%d, s%d, v%d" % (AREG[p] + nt, sWB, aO2 + nt))


PB = QF


def send(j):
    a0 = ACC + 8 * j
    return (["s_xor_b32 s%d, s%d, %d" % (sT0, sG, j), "s_lshl_b32 s%d, s%d, 15" % (sT0, sT0),
             "s_add_u32 s%d, s%d, s%d" % (sT0, sT0, sE2P), "s_add_u32 s%d, s%d, %d" % (sT0, sT0, j * 4096)],
            ["v_cvt_pk_bf16_f32 v%d, v%d, v%d" % (a0 + i, a0 + 2 * i, a0 + 2 * i + 1) for i in range(4)],
            ["buffer_store_dwordx4 %s, v%d, s[%d:%d], s%d offen sc1" % (vr(a0, 4), vE, SA, SA + 3, sT0)])


def fetch(j):
    return ["s_add_u32 s%d, s%d, %d" % (sT3, sE2C, j * 4096),
            "buffer_load_dwordx4 %s, v%d, s[%d:%d], s%d offen sc1" % (vr(PB + 4 * (j - 1), 4), vE, SA, SA + 3, sT3)]


extra = {m: [] for m in range(128)}
vP2, vM2 = 2, NM[1]
vTM2 = NM[1] + 1
poll2 = "buffer_load_dword v%%d, v%d, s[%d:%d], 0 offen sc1" % (vP2, SA, SA + 3)
extra[1] += ["s_lshl_b32 s%d, s%d, 7" % (sT0, sWAVE), "s_add_u32 s%d, s%d, 1024" % (sT0, sT0),
             "v_lshl_add_u32 v%d, v0, 2, s%d" % (vP2, sT0)]
extra[2] += ["v_lshlrev_b32 v1, 2, v0", "v_xor_b32 v1, s%d, v1" % sWGL, "v_lshl_add_u32 v%d, v1, 11, v%d" % (vM2, vP2)]
extra[3] += ["s_lshl_b32 s%d, s%d, 11" % (sT0, sWGL), "v_add_u32 v%d, s%d, v%d" % (vP2, sT0, vP2), "v_subrev_u32 v1, 1, v0"]
extra[4] += ["v_cmp_gt_u32 vcc, 7, v1", "v_bfrev_b32 v1, 1", "s_nop 0"]
extra[5] += ["v_cndmask_b32 v%d, v1, v%d, vcc" % (vP2, vP2), "v_cndmask_b32 v%d, v1, v%d, vcc" % (vM2, vM2)]
extra[6] += ["s_mov_b32 s%d, 0x3f80" % sTG, "s_mov_b32 s%d, 0x3f800000" % (sTG + 1)]
if not DYN:
    for p, base in ((1, STG + 32768), (2, XREG), (3, 0)):
        for nt in range(4):
            extra[32 * p - 14 + nt].append("v_add_u32 v%d, %d, v%d" % (AREG[p] + nt, base, aO2 + nt) if base else
                                           "v_mov_b32 v%d, v%d" % (AREG[p] + nt, aO2 + nt))
for i, nt in enumerate((1, 2, 3)):
    base = 104 + 8 * i
    for k_, j in enumerate((2 * nt, 2 * nt + 1)):
        sa, sb_, sc_ = send(j)
        extra[base + 2 + 3 * k_] += sa
        extra[base + 3 + 3 * k_] += sb_
        extra[base + 4 + 3 * k_] += sc_
FL = OPT["flagat"]
for p in (1, 2):
    for f in range(8):
        if f < NEARLY:
            extra[32 * p - 16 + 2 * f].append(uncounted(sib_load(p, f)))
        else:
            extra[32 * p - 16 + 2 * f].append(sib_load(p, f))
for f in range(8):
    extra[72 + 2 * f].append(uncounted(sib_load(3, f)))
extra[38].append(pollld)
extra[62].append(pollld)
t(pollld)
stamp(t, 6)
cst(t, 3)
for m in range(128):
    if m == OPT["fat"]:
        t("s_barrier")
    if m == FL:
        cst(t, 4)
        t("s_waitcnt vmcnt(0)")
        cst(t, 5)
        two_way(t, "flg", [flag], [flag + " sc1"])
        stamp(t, 8)
    if m in (16, 48, 72):
        t("s_waitcnt vmcnt(%d)" % (1 if m == 16 else 0))
        try_assign(t, {16: 1, 48: 2, 72: 3}[m], "L_try%d" % m)
    if m in (24, 56, 88):
        decide(t, m // 32 + 1)
        cst(t, 6 + m // 32)
        if m == 24:
            stamp(t, 7)
        if m == 88:
            stamp(t, 9)
    o_mfma(t, m, extra[m])
stamp(t, 10)
cst(t, 9)
sa, sb_, sc_ = send(1)
t.add(sa + sb_ + sc_)
t(poll2 % vTM)
t("s_waitcnt vmcnt(1)")
t("buffer_store_dword v%d, v%d, s[%d:%d], 0 offen sc1" % (NM[0], vM2, SA, SA + 3))
stamp(t, 11)
cst(t, 10)
t(poll2 % vTM2)
t("s_mov_b32 s%d, 0x100000" % sCNT)
t("s_waitcnt vmcnt(2)")
t("L_poll2:")
t("v_cmp_eq_u32 vcc, 1, v%d" % vTM)
t("s_cmp_eq_u32 vcc_lo, 0xfe")
t("s_cbranch_scc1 L_poll2e")
t.add([uncounted(poll2 % vTM)])
t("s_waitcnt vmcnt(1)")
t.add([uncounted("v_cmp_eq_u32 vcc, 1, v%d" % vTM2)])
t("s_nop 0")
t("s_cmp_eq_u32 vcc_lo, 0xfe")
t("s_cbranch_scc1 L_poll2e")
t.add([uncounted(poll2 % vTM2)])
t("s_sub_u32 s%d, s%d, 1" % (sCNT, sCNT))
t("s_waitcnt vmcnt(1)")
t("s_cbranch_scc0 L_poll2")
t("L_poll2e:")
stamp(t, 12)
cst(t, 11)
for j in range(1, 8):
    t.add(fetch(j))
for j in range(1, 8):
    for i in range(4):
        p = PB + 4 * (j - 1) + i
        if OPT["dot"]:
            t("v_dot2_f32_bf16 v%d, v%d, s%d, v%d" % (ACC + 2 * i, p, sTG, ACC + 2 * i))
            t("v_dot2_f32_bf16 v%d, v%d, s%d, v%d" % (ACC + 2 * i + 1, p, sTG + 1, ACC + 2 * i + 1))
            continue
        t("v_lshlrev_b32 v1, 16, v%d" % p)
        t("v_and_b32 v%d, 0xffff0000, v%d" % (p, p))
        t("v_add_f32 v%d, v%d, v1" % (ACC + 2 * i, ACC + 2 * i))
        t("v_add_f32 v%d, v%d, v%d" % (ACC + 2 * i + 1, ACC + 2 * i + 1, p))
if OPT["dot"]:
    t("s_nop 2")
for j in range(4):
    t("v_cvt_pk_bf16_f32 v%d, v%d, v%d" % (ACC + 8 + j, ACC + 2 * j, ACC + 2 * j + 1))
t("buffer_store_dwordx4 %s, v%d, s[%d:%d], s%d offen" % (vr(ACC + 8, 4), vOUT, SB, SB + 3, sOFF))
if STAMPS:
    cst(t, 12)
    t("s_waitcnt vmcnt(0)")
    cst(t, 13)
    t("s_waitcnt lgkmcnt(0)")
    stamp(t, 13)
    if STAMPS != 6:
        t("s_memtime s[94:95]")
        t("s_waitcnt lgkmcnt(0)")
    t("s_sub_u32 s%d, s94, s92" % (sSTAMP + 28))
    t("s_getreg_b32 s%d, hwreg(HW_REG_XCC_ID)" % (sSTAMP + 30))
    for i in range(16):
        t("v_mov_b32 v%d, s%d" % (ACC + 16 + i, sSTAMP + 2 * i))
    t("s_lshl_b32 s%d, s2, 2" % sT0)
    t("s_add_u32 s%d, s%d, s%d" % (sT0, sT0, sWAVE))
    t("s_lshl_b32 s%d, s%d, 6" % (sT0, sT0))
    t("s_add_u32 s%d, s%d, %d" % (sT0, sT0, ST_OFF))
    srd(t, SA, sWS, None, "0x10000000")
    t("v_mov_b32 v1, 0")
    t("s_mov_b64 exec, 1")
    for i in range(4):
        t("buffer_store_dwordx4 %s, v1, s[%d:%d], s%d offen offset:%d" % (vr(ACC + 16 + 4 * i, 4), SA, SA + 3, sT0, 16 * i))
if PROBE >= 0:
    stamp(t, 13)
    t("s_add_u32 s%d, s%d, 6000" % (sT2, sSTAMP + (2 if PROBE else 0)))
    t("L_spin:")
    t("s_sleep 2")
    t("s_memrealtime s[%d:%d]" % (sSTAMP + 4, sSTAMP + 5))
    t("s_waitcnt lgkmcnt(0)")
    t("s_sub_u32 s%d, s%d, s%d" % (sT0, sSTAMP + 4, sT2))
    t("s_cmp_lt_i32 s%d, 0" % sT0)
    t("s_cbranch_scc1 L_spin")
t("L_end:")
t("s_endpgm")
t.finish(hist=lp.ins, vmq=[{vINF}])
for r in rare:
    blocks.append(r)

hdr = open("standalone__mha_block_cached__near_ridge.s.ref").read().split("; Override launch")[0]
out = [hdr.rstrip()]
out.append("; Fused Q-projection + attention + output projection, one workgroup per (batch, head).")
out.append("; @launch grid=(256,1,1) block=(512,1,1) lds=163840")
out.append('.amdgcn_target "amdgcn-amd-amdhsa--gfx950"')
out.append(".text")
out.append(".globl " + KNAME)
out.append(".p2align 8")
out.append(".type %s,@function" % KNAME)
out.append(KNAME + ":")
for b in blocks:
    out.append("; ---- %s ----" % b.name)
    out.append(b.text())
out.append("L_codeend:")
out.append(".p2align 8")
out.append(".fill 64, 4, 0xbf800000")
out.append('.section .rodata,"a"')
out.append(".p2align 6")
out.append(".amdhsa_kernel " + KNAME)
out.append("""  .amdhsa_next_free_vgpr 256
  .amdhsa_next_free_sgpr 102
  .amdhsa_accum_offset 256
  .amdhsa_group_segment_fixed_size 0
  .amdhsa_kernarg_size 64
  .amdhsa_user_sgpr_count 2
  .amdhsa_user_sgpr_kernarg_segment_ptr 1
  .amdhsa_system_sgpr_workgroup_id_x 1
.end_amdhsa_kernel""")
print("\n".join(out))
```

```python
import sys, struct, math
from asmgen import *

OPT = dict(stamps=0, nt_kv="nt", nt_x="", nt_w="nt", nt_wo="nt", thr=8.0, force_rescale=0, codepf=1, fast=1,
           early="0.1.2.3", k_at="5.6.7.8", v_at="6.7.8.8", thr0=8, rotmask=6, fat=6, flagat=12, single=1,
           noload=0, map=0, rot=0, wseg=256)
for a in sys.argv[1:]:
    k, v = a.split("=")
    OPT[k] = type(OPT[k])(v) if not isinstance(OPT[k], str) else v.replace("_", " ").strip()
STAMPS = OPT["stamps"]
KNAME = "standalone__mha_block_cached__near_ridge_kernel"


def f32(x):
    return "0x%08x" % struct.unpack("<I", struct.pack("<f", x))[0]


CSC = math.log2(math.e) / math.sqrt(128.0)
M16 = "v_mfma_f32_16x16x32_bf16"
M32 = "v_mfma_f32_32x32x16_bf16"
OOB = 0x40000000
SPIN = 0x100000

KRING, VRING, STG, XREG = 0, 49152, 98304, 32768
E1_OFF, E2_OFF, ST_OFF = 0x100000, 0x900000, 0x4000000
sX, sK, sV, sWQ, sWO, sOUT, sDBG, sWS = 4, 6, 8, 10, 12, 14, 16, 18
sWAVE, sG, sB, sHN, sH, sWGL = 20, 21, 22, 23, 24, 25
sBEG, sEND = 26, 27
SA, SB, SC = 28, 32, 36
sOFF, sLDS, sCNT, sT0, sT1, sT2 = 40, 41, 42, 43, 44, 45
sCS, sDEL, sE1, sE2P, sE2C, sTHR = 46, 48, 49, 50, 51, 52
sT3, sTABK, sTABV, sDELV = 53, 54, 55, 56
sP, sP4, sE1F, sE1F4, sLO, sHI = 57, 58, 59, 60, 61, 62
sNXT, sA, sVM, sLIM = 54, 55, 56, 57
sSTAMP = 64
vP2, vP1, vE, vLO, vTM, vOUT = 2, 3, 4, 5, 6, 7
aK, aW, aV = 8, 12, 16
NM = (24, 28)
ACC, QF, S0, S1, KF, VF, XB = 32, 96, 128, 144, 160, 192, 224
PK = XB
vL = (232, 236)
vM1, vINFO, vINF, ONES, vDUM = 240, 242, 243, 244, 255
aWq, aXq = 96, 104
aO1, aO2, aO3 = aK, aW, aV
OB = PB = QF


def cst(b, idx):
    if STAMPS == 7:
        b("s_memtime s[%d:%d]" % (sSTAMP + 2 * idx, sSTAMP + 2 * idx + 1))


def stamp(b, idx):
    if STAMPS == 7:
        if idx == 5:
            b("s_memrealtime s[%d:%d]" % (sSTAMP + 2, sSTAMP + 3))
    elif STAMPS == 8:
        if idx in (3, 5, 10, 13):
            b("s_memrealtime s[%d:%d]" % (sSTAMP + 2 * idx, sSTAMP + 2 * idx + 1))
    elif STAMPS:
        b("s_memrealtime s[%d:%d]" % (sSTAMP + 2 * idx, sSTAMP + 2 * idx + 1))
        b("s_waitcnt lgkmcnt(0)")


def srd(b, dst, ptr, off_sreg, size):
    if off_sreg is None:
        b("s_mov_b32 s%d, s%d" % (dst, ptr))
        b("s_mov_b32 s%d, s%d" % (dst + 1, ptr + 1))
    else:
        b("s_add_u32 s%d, s%d, s%d" % (dst, ptr, off_sreg))
        b("s_addc_u32 s%d, s%d, 0" % (dst + 1, ptr + 1))
    b("s_mov_b32 s%d, %s" % (dst + 2, size))
    b("s_mov_b32 s%d, 0x20000" % (dst + 3))


def dma_group(b, S, voffs, soff, flags, n=4):
    for p in range(n):
        o = " offset:%d" % (p * 1024) if p else ""
        b("buffer_load_dwordx4 v%d, s[%d:%d], s%d offen%s %s lds" % (voffs[p], S, S + 3, soff, o, flags))


def loop_begin(b, label, n):
    b("s_mov_b32 s%d, %d" % (sCNT, n))
    b(label + ":")


def loop_end(b, label):
    b("s_sub_u32 s%d, s%d, 1" % (sCNT, sCNT))
    b("s_cmp_lg_u32 s%d, 0" % sCNT)
    b("s_cbranch_scc1 " + label)


def spread(items, counts):
    out, k = [], 0
    for n in counts:
        out.append(items[k:k + n])
        k += n
    assert k == len(items)
    return out


def uncounted(x):
    i_ = parse(x)
    i_.kind = "comment"
    i_.n = 0
    return i_


blocks = []


def new(name):
    b = Block(name)
    blocks.append(b)
    return b


e = new("entry: workgroup -> (batch b, head group g, head hn in group); waves 0-3 compute, 4-7 load")
e("L_start:")
e("s_cmp_ge_u32 s2, 256")
e("s_cbranch_scc1 L_end")
e("s_load_dwordx16 s[4:19], s[0:1], 0")
if STAMPS:
    e("s_memrealtime s[%d:%d]" % (sSTAMP, sSTAMP + 1))
    e("s_memtime s[92:93]")
e("v_lshrrev_b32 v1, 6, v0")
e("v_and_b32 v0, 63, v0")
e("v_readfirstlane_b32 s%d, v1" % sWAVE)
e("s_and_b32 s%d, s2, 7" % sG)
if OPT["map"] == 0:
    e("s_lshr_b32 s%d, s2, 5" % sB)
    e("s_lshr_b32 s%d, s2, 3" % sHN)
    e("s_and_b32 s%d, s%d, 3" % (sHN, sHN))
else:
    e("s_lshr_b32 s%d, s2, 6" % sHN)
    e("s_lshr_b32 s%d, s2, 3" % sB)
    e("s_and_b32 s%d, s%d, 7" % (sB, sB))
e("s_lshl_b32 s%d, s%d, 2" % (sH, sG))
e("s_add_u32 s%d, s%d, s%d" % (sH, sH, sHN))
e("s_lshl_b32 s%d, s%d, 5" % (sWGL, sB))
e("s_add_u32 s%d, s%d, s%d" % (sWGL, sWGL, sH))
e("s_cmp_lt_u32 s%d, 4" % sWAVE)
e("s_cbranch_scc1 L_compute")
e("v_lshrrev_b32 v1, 4, v0")
e("v_and_b32 v3, 15, v0")
e("s_cmp_eq_u32 s%d, 6" % sWAVE)
e("s_cbranch_scc1 L_ldx")
e("s_cmp_eq_u32 s%d, 7" % sWAVE)
e("s_cbranch_scc1 L_ldw")
e("s_cmp_eq_u32 s%d, 5" % sWAVE)
e("s_cbranch_scc1 L_ldv")
e.finish()

WOV = [14, 15, 16, 17]
WSH = {256: 8, 128: 7, 64: 6}[OPT["wseg"]]


def wo_setup(b):
    b("v_lshlrev_b32 v2, 2, v1")
    b("v_xor_b32 v2, v2, v3")
    if WSH < 8:
        b("v_lshrrev_b32 v4, %d, v2" % (WSH - 4))
        b("v_and_b32 v2, %d, v2" % ((1 << (WSH - 4)) - 1))
        b("v_lshl_add_u32 v2, v4, %d, v2" % (WSH - 2))
    b("v_lshlrev_b32 v2, 4, v2")
    b("v_lshl_add_u32 v14, v1, 10, v2")
    b("v_add_u32 v15, 3072, v14")
    b("v_add_u32 v16, 6144, v14")
    b("v_add_u32 v17, 9216, v14")
    b("s_lshl_b32 s%d, s%d, 19" % (sT0, sG))
    b("s_lshl_b32 s%d, s%d, %d" % (sT1, sHN, WSH))
    b("s_add_u32 s%d, s%d, s%d" % (sT0, sT0, sT1))
    b("s_sub_u32 s%d, 0x400000, s%d" % (sT1, sT0))
    srd(b, SB, sWO, sT0, "s%d" % sT1)


def kv_tile(b, voffs, skip=False):
    if skip:
        return
    b("s_mov_b32 m0, s%d" % sLDS)
    b("s_add_u32 s%d, s%d, 4096" % (sT0, sLDS))
    dma_group(b, SA, voffs, sOFF, OPT["nt_kv"])
    b("s_mov_b32 m0, s%d" % sT0)
    b("s_add_u32 s%d, s%d, 4096" % (sOFF, sOFF))
    dma_group(b, SA, voffs, sOFF, OPT["nt_kv"])
    b("s_add_u32 s%d, s%d, 4096" % (sOFF, sOFF))
    if OPT["rot"]:
        b("s_and_b32 s%d, s%d, 0x3ffff" % (sOFF, sOFF))
    b("s_add_u32 s%d, s%d, 8192" % (sLDS, sLDS))
    b("s_cmp_eq_u32 s%d, s%d" % (sLDS, sEND))
    b("s_cselect_b32 s%d, s%d, s%d" % (sLDS, sBEG, sLDS))


def first_tile(b):
    if not OPT["rot"]:
        b("s_mov_b32 s%d, 0" % sOFF)
        return
    b("s_mul_i32 s%d, s%d, %d" % (sOFF, sWGL, OPT["rot"]))
    b("s_and_b32 s%d, s%d, 31" % (sOFF, sOFF))
    b("s_lshl_b32 s%d, s%d, 13" % (sOFF, sOFF))


def wo_tile(b):
    b("s_mov_b32 m0, s%d" % sLDS)
    b("s_add_u32 s%d, s%d, 4096" % (sT0, sLDS))
    dma_group(b, SB, WOV, sOFF, OPT["nt_wo"])
    b("s_mov_b32 m0, s%d" % sT0)
    b("s_add_u32 s%d, s%d, 16384" % (sOFF, sOFF))
    dma_group(b, SB, WOV, sOFF, OPT["nt_wo"])
    b("s_add_u32 s%d, s%d, 16384" % (sOFF, sOFF))


def wo3_tile(b):
    b("s_add_u32 s%d, s%d, 2" % (sT1, sNXT))
    b("s_and_b32 s%d, s%d, 3" % (sT1, sT1))
    b("s_lshl_b32 s%d, s%d, 13" % (sLDS, sT1))
    b("s_xor_b32 s%d, s%d, 3" % (sOFF, sHN))
    b("s_lshl_b32 s%d, s%d, 2" % (sOFF, sOFF))
    b("s_add_u32 s%d, s%d, s%d" % (sOFF, sOFF, sT1))
    b("s_lshl_b32 s%d, s%d, 15" % (sOFF, sOFF))
    wo_tile(b)


def tiles(b, label, voffs, n):
    if n > 1:
        b("s_mov_b32 s%d, %d" % (sT3, n))
        b(label + ":")
        kv_tile(b, voffs)
        b("s_sub_u32 s%d, s%d, 1" % (sT3, sT3))
        b("s_cmp_lg_u32 s%d, 0" % sT3)
        b("s_cbranch_scc1 " + label)
    elif n:
        kv_tile(b, voffs)


def q_phase_kv(b, tag, voffs, txt, hooks):
    early = [int(x) for x in OPT["early"].split(".")]
    at = [int(x) for x in txt.split(".")]
    assert max(early) <= at[0] and at == sorted(at) and at[2] >= 6
    b("s_add_u32 s%d, s%d, s%d" % (sT1, sB, sHN))
    b("s_and_b32 s%d, s%d, 3" % (sT1, sT1))
    b("s_lshl_b32 s%d, s%d, 2" % (sT1, sT1))
    b("s_lshr_b32 s%d, %d, s%d" % (sT1, sum(x << (4 * i) for i, x in enumerate(early)), sT1))
    b("s_and_b32 s%d, s%d, 15" % (sCNT, sT1))
    lo, hi = min(early), max(early)
    for i in range(lo):
        b("s_barrier")
        b.add(hooks.get(i, []))
    assert all(x > hi or x == hi for x in at) and all(k <= lo for k in hooks)
    b("s_mov_b32 s%d, %d" % (sT2, lo))
    b("L_%se:" % tag)
    b("s_barrier")
    if lo in hooks:
        b("s_cmp_lg_u32 s%d, %d" % (sT2, lo))
        b("s_cbranch_scc1 L_%seh" % tag)
        b.add(hooks[lo])
        b("L_%seh:" % tag)
    b("s_cmp_lg_u32 s%d, s%d" % (sCNT, sT2))
    b("s_cbranch_scc1 L_%sen" % tag)
    tiles(b, "L_%sei" % tag, voffs, 2)
    b("L_%sen:" % tag)
    b("s_add_u32 s%d, s%d, 1" % (sT2, sT2))
    b("s_cmp_le_u32 s%d, %d" % (sT2, hi))
    b("s_cbranch_scc1 L_%se" % tag)
    tiles(b, "L_%sq%d" % (tag, hi), voffs, at.count(hi))
    for i in range(hi + 1, 8):
        b("s_barrier")
        tiles(b, "L_%sq%d" % (tag, i), voffs, at.count(i))
    if tag == "k":
        b("s_waitcnt vmcnt(%d)" % (8 * sum(x < 8 for x in at)))
    b("s_barrier")
    tiles(b, "L_%sq8" % tag, voffs, at.count(8))
    return 2 + sum(x <= 8 for x in at)


def att_phase(b, tag, voffs, nxt, lead, f1, f2, tend, sw_at, sw_reg, sw_val):
    sT = sCNT
    stamps = STAMPS == 1 and tag == "v"
    last = 35 if tag == "k" else 31
    b("s_mov_b32 s%d, 0" % sT)
    b("s_mov_b32 s%d, %d" % (sNXT, nxt))
    b("L_%sd:" % tag)
    b("s_sub_u32 s%d, s%d, s%d" % (sA, sNXT, sT))
    for a_ in (1, 2, 3, 4, 5):
        b("s_cmp_eq_u32 s%d, %d" % (sA, lead + 1 + a_))
        b("s_cbranch_scc1 L_%sd%d" % (tag, a_))
    b("s_waitcnt vmcnt(0)")
    for a_ in range(1, 6):
        b("L_%sd%d:" % (tag, a_))
        b("s_waitcnt vmcnt(%d)" % (8 * a_))
    if stamps:
        b("s_memrealtime s[60:61]")
        b("s_waitcnt lgkmcnt(0)")
    b("s_barrier")
    if stamps:
        b("s_memrealtime s[62:63]")
        b("s_waitcnt lgkmcnt(0)")
        b("s_mov_b32 m0, s%d" % sT)
        b("s_nop 0")
        b("v_writelane_b32 v20, s60, m0")
        b("v_writelane_b32 v21, s62, m0")
    b("s_getreg_b32 s%d, hwreg(HW_REG_IB_STS, 22, 2)" % sA)
    b("s_getreg_b32 s%d, hwreg(HW_REG_IB_STS, 0, 4)" % sVM)
    b("s_lshl_b32 s%d, s%d, 4" % (sA, sA))
    b("s_or_b32 s%d, s%d, s%d" % (sVM, sVM, sA))
    b("L_%sdi:" % tag)
    b("s_cmp_le_u32 s%d, 21" % sNXT)
    b("s_cselect_b32 s%d, %d, %d" % (sLIM, f1, f2))
    b("s_add_u32 s%d, s%d, s%d" % (sLIM, sLIM, sT))
    b("s_min_u32 s%d, s%d, %d" % (sLIM, sLIM, last))
    b("s_cmp_gt_u32 s%d, s%d" % (sNXT, sLIM))
    b("s_cbranch_scc1 L_%sdn" % tag)
    b("s_cmp_le_u32 s%d, %d" % (sVM, OPT["thr0"]))
    b("s_cbranch_scc1 L_%sdg" % tag)
    b("s_add_u32 s%d, s%d, %d" % (sLIM, sT, lead + 1))
    b("s_cmp_gt_u32 s%d, s%d" % (sNXT, sLIM))
    b("s_cbranch_scc1 L_%sdn" % tag)
    b("L_%sdg:" % tag)
    if last > 31:
        b("s_cmp_ge_u32 s%d, 32" % sNXT)
        b("s_cbranch_scc1 L_kdw")
    b("s_cmp_eq_u32 s%d, %d" % (sNXT, sw_at))
    b("s_cselect_b32 s%d, %d, s%d" % (sw_reg, sw_val, sw_reg))
    kv_tile(b, voffs, OPT["noload"])
    b("L_%sdj:" % tag)
    b("s_add_u32 s%d, s%d, 1" % (sNXT, sNXT))
    b("s_add_u32 s%d, s%d, 8" % (sVM, sVM))
    b("s_branch L_%sdi" % tag)
    if last > 31:
        b("L_kdw:")
        wo3_tile(b)
        b("s_branch L_kdj")
    b("L_%sdn:" % tag)
    b("s_add_u32 s%d, s%d, 1" % (sT, sT))
    b("s_cmp_lt_u32 s%d, %d" % (sT, tend))
    b("s_cbranch_scc1 L_%sd" % tag)


b = new("K loader")
b("L_ldk:")
for p in range(4):
    b("v_add_u32 v4, %d, v1" % (4 * p))
    b("v_xor_b32 v4, v4, v3")
    b("v_lshlrev_b32 v4, 4, v4")
    b("v_lshl_add_u32 v%d, v1, 8, v4" % (10 + p))
b("s_lshl_b32 s%d, s%d, 18" % (sT0, sWGL))
b("s_waitcnt lgkmcnt(0)")
srd(b, SA, sK, sT0, "0x40000")
first_tile(b)
b("s_mov_b32 s%d, %d" % (sLDS, KRING))
b("s_mov_b32 s%d, %d" % (sBEG, KRING))
b("s_mov_b32 s%d, %d" % (sEND, KRING + 49152))
KV4 = [10, 11, 12, 13]
wo_setup(b)
NK0 = q_phase_kv(b, "k", KV4, OPT["k_at"], {})
att_phase(b, "k", KV4, NK0, 2, 7, 5, 30, 19, sEND, KRING + 32768)
b("s_barrier")
b("L_k2:")
wo3_tile(b)
b("s_add_u32 s%d, s%d, 1" % (sNXT, sNXT))
b("s_cmp_le_u32 s%d, 35" % sNXT)
b("s_cbranch_scc1 L_k2")
b("s_barrier")
b("s_waitcnt vmcnt(0)")
b("s_barrier")
b("s_endpgm")
b.finish(hist=e.ins)

b = new("V loader")
b("L_ldv:")
for par in range(2):
    b("v_lshlrev_b32 v4, 1, v1")
    b("v_xor_b32 v4, v4, v3")
    if par:
        b("v_xor_b32 v4, 8, v4")
    b("v_lshlrev_b32 v4, 4, v4")
    b("v_lshl_add_u32 v%d, v1, 8, v4" % (10 + par))
b("s_lshl_b32 s%d, s%d, 18" % (sT0, sWGL))
b("s_waitcnt lgkmcnt(0)")
srd(b, SA, sV, sT0, "0x40000")
first_tile(b)
b("s_mov_b32 s%d, %d" % (sLDS, VRING + 2 * 8192))
b("s_mov_b32 s%d, %d" % (sBEG, VRING))
b("s_mov_b32 s%d, %d" % (sEND, VRING + 49152))
V4 = [10, 11, 10, 11]
srd(b, SC, sWS, None, "0x10000000")
b("v_mov_b32 v4, 0")
b("v_mov_b32 v5, 0")
b("s_lshl_b32 s%d, s%d, 11" % (sT0, sWGL))
b("v_lshlrev_b32 v8, 3, v0")
b("buffer_store_dwordx2 v[4:5], v8, s[%d:%d], s%d offen sc1" % (SC, SC + 3, sT0))
b("buffer_store_dwordx2 v[4:5], v8, s[%d:%d], s%d offen offset:1024 sc1" % (SC, SC + 3, sT0))
b("s_getreg_b32 s%d, hwreg(HW_REG_XCC_ID, 0, 4)" % sT1)
b("s_add_u32 s%d, s%d, 1" % (sT1, sT1))
b("v_mov_b32 v7, s%d" % sT1)
b("s_mov_b64 exec, 1")
b("buffer_store_dword v7, v4, s[%d:%d], s%d offen offset:512 sc1" % (SC, SC + 3, sT0))
b("s_mov_b64 exec, -1")
b("s_lshl_b32 s%d, s%d, 5" % (sT0, sB))
b("s_add_u32 s%d, s%d, s%d" % (SB, sDBG, sT0))
b("s_addc_u32 s%d, s%d, 0" % (SB + 1, sDBG + 1))
b("s_mov_b32 s%d, 1" % (SB + 2))
NV0 = q_phase_kv(b, "v", V4, OPT["v_at"],
                 {0: ["s_waitcnt vmcnt(0)", "s_atomic_add s%d, s[%d:%d], 0x0" % (SB + 2, SB, SB + 1)]})
att_phase(b, "v", V4, NV0, 0, 5, 3, 32, 18, sBEG, VRING + 16384)
b("s_barrier")
if STAMPS == 1:
    b("s_lshl_b32 s%d, s2, 9" % sT0)
    b("s_add_u32 s%d, s%d, %d" % (sT0, sT0, ST_OFF + 0x100000))
    b("v_lshlrev_b32 v1, 2, v0")
    b("buffer_store_dword v20, v1, s[%d:%d], s%d offen" % (SC, SC + 3, sT0))
    b("buffer_store_dword v21, v1, s[%d:%d], s%d offen offset:256" % (SC, SC + 3, sT0))
b("s_endpgm")
b.finish(hist=e.ins)


def q_loader(b, tag, gstep, kstep_shift, ldsbase, blk, flags, npieces):
    def chunk():
        b("s_lshl_b32 s%d, s%d, %d" % (sOFF, sT2, kstep_shift))
        b("s_mov_b32 m0, s%d" % sLDS)
        b("s_add_u32 s%d, s%d, 1" % (sT2, sT2))
        dma_group(b, SA, [10, 11, 12, 13], sOFF, flags)
        for g in range(1, 4):
            b("s_add_u32 m0, s%d, %d" % (sLDS, 4096 * g))
            b("s_add_u32 s%d, s%d, %d" % (sOFF, sOFF, gstep))
            dma_group(b, SA, [10, 11, 12, 13], sOFF, flags, min(4, npieces - 4 * g))
        b("s_and_b32 s%d, s%d, 7" % (sT2, sT2))
        b("s_add_u32 s%d, s%d, 32768" % (sLDS, sLDS))
        b("s_cmp_eq_u32 s%d, %d" % (sLDS, ldsbase - STG + XREG + 32768))
        b("s_cselect_b32 s%d, %d, s%d" % (sLDS, ldsbase, sLDS))
        b("s_cmp_eq_u32 s%d, %d" % (sLDS, ldsbase + 65536))
        b("s_cselect_b32 s%d, %d, s%d" % (sLDS, ldsbase - STG + XREG, sLDS))
    b("s_lshl_b32 s%d, s%d, 1" % (sT2, sHN))
    b("s_add_u32 s%d, s%d, s%d" % (sT2, sT2, sB))
    b("s_and_b32 s%d, s%d, %d" % (sT2, sT2, OPT["rotmask"]))
    b("s_mov_b32 s%d, %d" % (sLDS, ldsbase))
    loop_begin(b, "L_%s0" % tag, 2)
    chunk()
    loop_end(b, "L_%s0" % tag)
    loop_begin(b, "L_%s1" % tag, 6)
    b("s_waitcnt vmcnt(%d)" % npieces)
    b("s_barrier")
    chunk()
    loop_end(b, "L_%s1" % tag)
    wo_setup(b)
    b("s_waitcnt vmcnt(%d)" % npieces)
    b("s_barrier")
    b("s_waitcnt vmcnt(0)")
    b("s_barrier")
    b("s_barrier")
    b("s_setprio 0")
    first = 4 if blk == 0 else 2
    for i in range(first + 1):
        b("s_barrier")
    if tag == "w":
        b("s_lshl_b32 s%d, s%d, 5" % (sT0, sB))
        b("s_add_u32 s%d, s%d, s%d" % (SC, sDBG, sT0))
        b("s_addc_u32 s%d, s%d, 0" % (SC + 1, sDBG + 1))
        b("s_load_dword s%d, s[%d:%d], 0x0 glc" % (SC + 2, SC, SC + 1))
    b("s_xor_b32 s%d, s%d, %d" % (sOFF, sHN, blk))
    b("s_lshl_b32 s%d, s%d, 17" % (sOFF, sOFF))
    b("s_mov_b32 s%d, %d" % (sLDS, STG + blk * 32768))
    loop_begin(b, "L_%s2" % tag, 4)
    wo_tile(b)
    b("s_add_u32 s%d, s%d, 8192" % (sLDS, sLDS))
    for i in range(4):
        b("s_barrier")
    loop_end(b, "L_%s2" % tag)
    b("s_xor_b32 s%d, s%d, 2" % (sOFF, sHN))
    b("s_lshl_b32 s%d, s%d, 17" % (sOFF, sOFF))
    b("s_add_u32 s%d, s%d, %d" % (sOFF, sOFF, blk * 65536))
    b("s_mov_b32 s%d, %d" % (sLDS, XREG + blk * 16384))
    wo_tile(b)
    b("s_add_u32 s%d, s%d, 8192" % (sLDS, sLDS))
    for i in range(4):
        b("s_barrier")
    wo_tile(b)
    done = first + 20
    if tag == "w":
        for i in range(3):
            b("s_barrier")
        done += 3
        b("s_mov_b32 s%d, 0x%x" % (sCNT, SPIN))
        b("s_branch L_wchk")
        b("L_wpoll:")
        b("s_load_dword s%d, s[%d:%d], 0x0 glc" % (SC + 2, SC, SC + 1))
        b("L_wchk:")
        b("s_waitcnt lgkmcnt(0)")
        b("s_sub_u32 s%d, s%d, 1" % (sCNT, sCNT))
        b("s_cbranch_scc1 L_wpolld")
        b("s_cmp_lt_u32 s%d, 32" % (SC + 2))
        b("s_cbranch_scc1 L_wpoll")
        b("L_wpolld:")
    for i in range(29 - done):
        b("s_barrier")
    b("s_waitcnt vmcnt(0)")
    b("s_barrier")
    b("s_barrier")
    b("s_barrier")
    b("s_endpgm")


b = new("x loader")
b("L_ldx:")
b("s_setprio 2")
b("v_lshrrev_b32 v5, 3, v0")
b("v_and_b32 v6, 7, v0")
b("v_lshrrev_b32 v7, 1, v5")
for p in range(4):
    b("v_add_u32 v4, %d, v7" % (4 * (p & 1)))
    b("v_xor_b32 v4, v4, v6")
    b("v_lshlrev_b32 v4, 4, v4")
    b("v_lshl_add_u32 v4, v5, 10, v4")
    b("v_add_u32 v%d, %d, v4" % (10 + p, p * (8192 - 1024)))
b("s_mul_i32 s%d, s%d, 114688" % (sT0, sB))
b("s_waitcnt lgkmcnt(0)")
srd(b, SA, sX, sT0, "114688")
q_loader(b, "x", 32768, 7, STG, 0, OPT["nt_x"], 14 if OPT["single"] else 16)
b.finish(hist=e.ins)

b = new("wq loader")
b("L_ldw:")
b("s_setprio 2")
b("v_lshlrev_b32 v4, 1, v1")
b("v_xor_b32 v4, v4, v3")
b("v_lshlrev_b32 v4, 4, v4")
b("v_lshl_add_u32 v10, v1, 13, v4")
b("v_add_u32 v11, %d, v10" % (32768 - 1024))
b("v_xor_b32 v4, 128, v10")
b("v_add_u32 v12, %d, v4" % (2 * (32768 - 1024)))
b("v_add_u32 v13, %d, v4" % (3 * (32768 - 1024)))
b("s_lshl_b32 s%d, s%d, 8" % (sT0, sH))
b("s_sub_u32 s%d, 0x400000, s%d" % (sT1, sT0))
b("s_waitcnt lgkmcnt(0)")
srd(b, SA, sWQ, sT0, "s%d" % sT1)
q_loader(b, "w", 131072, 19, STG + 16384, 1, OPT["nt_w"], 16)
b.finish(hist=e.ins)

c = new("compute waves: addresses")
c("L_compute:")
if OPT["codepf"]:
    c("s_cmp_lg_u32 s%d, 1" % sWAVE)
    c("s_cbranch_scc1 L_nopf")
    c("s_getpc_b64 s[56:57]")
    c("L_pc:")
    c("s_sub_u32 s56, s56, L_pc-L_start")
    c("s_subb_u32 s57, s57, 0")
    c("s_lshr_b32 s%d, s2, 3" % sT0)
    c("s_and_b32 s%d, s%d, 7" % (sT0, sT0))
    c("s_mul_i32 s%d, s%d, ((L_codeend-L_start+1023)/1024)*128" % (sT0, sT0))
    c("v_lshlrev_b32 v1, 7, v0")
    c("v_add_u32 v1, s%d, v1" % sT0)
    c("v_min_u32 v1, L_codeend-L_start-4, v1")
    c("v_mov_b32 v3, s57")
    c("v_add_co_u32 v2, vcc, s56, v1")
    c("s_nop 1")
    c("v_addc_co_u32 v3, vcc, 0, v3, vcc")
    c("v_cmp_gt_u32 vcc, (L_codeend-L_start+1023)/1024, v0")
    c("s_and_saveexec_b64 s[58:59], vcc")
    c("global_load_dword v%d, v[2:3], off" % vDUM)
    c("s_mov_b64 exec, -1")
    c("L_nopf:")
c("v_lshrrev_b32 v1, 4, v0")
c("v_and_b32 v2, 15, v0")
c("v_lshrrev_b32 v3, 5, v0")
c("v_and_b32 v4, 1, v1")
c("v_lshl_add_u32 v3, v4, 1, v3")
c("v_xor_b32 v3, v3, v2")
c("v_lshlrev_b32 v3, 4, v3")
c("v_lshl_add_u32 v%d, v2, 8, v3" % aK)
for ks in range(1, 4):
    c("v_xor_b32 v%d, %d, v%d" % (aK + ks, ks << 6, aK))
c("s_lshl_b32 s%d, s%d, 12" % (sT0, sWAVE))
c("s_add_u32 s%d, s%d, %d" % (sT0, sT0, STG))
c("v_lshrrev_b32 v3, 1, v2")
c("v_xor_b32 v3, v3, v1")
c("v_lshlrev_b32 v3, 4, v3")
c("v_lshl_add_u32 v3, v2, 7, v3")
c("v_add_u32 v%d, s%d, v3" % (aXq, sT0))
c("v_xor_b32 v%d, 64, v%d" % (aXq + 1, aXq))
c("v_bfe_u32 v2, v0, 2, 2")
c("v_lshrrev_b32 v3, 2, v0")
c("v_and_b32 v4, 7, v3")
c("v_lshlrev_b32 v4, 5, v4")
c("v_lshl_add_u32 v3, v3, 8, v4")
c("v_and_b32 v4, 3, v0")
c("v_lshl_add_u32 v3, v4, 3, v3")
c("v_add_u32 v%d, %d, v3" % (aV, VRING + 16384))
for db in range(1, 8):
    c("v_xor_b32 v%d, %d, v%d" % (aV + db, db << 5, aV))
c("v_lshl_add_u32 v3, v1, 10, v3")
c("v_add_u32 v%d, %d, v3" % (aWq, STG + 16384))
for db in range(1, 8):
    c("v_xor_b32 v%d, %d, v%d" % (aWq + db, db << 5, aWq))
c("v_mul_u32_u24 v2, 320, v2")
c("v_lshrrev_b32 v3, 5, v0")
c("v_lshl_add_u32 v3, v3, 11, v2")
c("v_and_b32 v4, 1, v1")
c("v_lshl_add_u32 v3, v4, 5, v3")
c("v_and_b32 v4, 1, v0")
c("v_lshl_add_u32 v3, v4, 4, v3")
c("v_bfe_u32 v4, v0, 1, 1")
c("v_lshl_add_u32 v3, v4, 3, v3")
c("s_lshl_b32 s%d, s%d, 5" % (sT0, sG))
c("v_xor_b32 v%d, s%d, v3" % (aO2, sT0))
for nt in range(1, 4):
    c("v_xor_b32 v%d, %d, v%d" % (aO2 + nt, nt << 6, aO2))
c("v_and_b32 v2, 31, v0")
c("s_lshl_b32 s%d, s%d, 5" % (sT0, sWAVE))
c("v_add_u32 v2, s%d, v2" % sT0)
c("v_lshlrev_b32 v%d, 4, v0" % vE)
c("v_cmp_lt_u32 vcc, 111, v2")
c("v_bfrev_b32 v3, 1")
c("v_lshlrev_b32 v2, 10, v2")
c("v_cndmask_b32 v1, 0, v3, vcc")
c("v_or_b32 v%d, v%d, v1" % (vE, vE))
c("v_lshrrev_b32 v1, 5, v0")
c("v_lshl_add_u32 v%d, v1, 4, v2" % vOUT)
c("s_lshl_b32 s%d, s%d, %d" % (sT0, sHN, WSH))
c("s_and_b32 s%d, s%d, %d" % (sT1, sG, (1 << (WSH - 5)) - 1))
c("s_lshl_b32 s%d, s%d, 5" % (sT1, sT1))
c("s_add_u32 s%d, s%d, s%d" % (sOFF, sT0, sT1))
c("s_lshr_b32 s%d, s%d, %d" % (sT1, sG, WSH - 5))
c("s_lshl_b32 s%d, s%d, %d" % (sT1, sT1, WSH + 2))
c("s_add_u32 s%d, s%d, s%d" % (sOFF, sOFF, sT1))
c("v_xor_b32 v1, s%d, v0" % sWGL)
c("v_lshlrev_b32 v1, 11, v1")
c("v_cmp_gt_u32 vcc, 4, v0")
c("v_add_u32 v2, 512, v1")
c("s_lshl_b32 s%d, s%d, 7" % (sT0, sWAVE))
c("v_cndmask_b32 v%d, v3, v2, vcc" % vINFO)
c("v_lshl_add_u32 v2, v0, 2, s%d" % sT0)
c("v_add_u32 v1, v1, v2")
c("s_lshl_b32 s%d, s%d, 11" % (sT1, sWGL))
c("v_add_u32 v2, s%d, v2" % sT1)
c("v_subrev_u32 v%d, 1, v0" % vTM)
c("v_cmp_gt_u32 vcc, 3, v%d" % vTM)
c("s_mov_b32 s%d, %s" % (sCS, f32(CSC)))
c("s_mov_b32 s%d, %s" % (sCS + 1, f32(CSC)))
c("v_cndmask_b32 v%d, v3, v1, vcc" % vM1)
c("v_cndmask_b32 v%d, v3, v2, vcc" % vP1)
for i in range(64):
    c("v_mov_b32 v%d, 0" % (ACC + i))
c("s_mov_b32 s%d, %s" % (sTHR, f32(0.0 if OPT["force_rescale"] else OPT["thr"])))
c("s_waitcnt lgkmcnt(0)")
srd(c, SA, sWS, None, "0x10000000")
c("s_mul_i32 s%d, s%d, 114688" % (sT0, sB))
srd(c, SB, sOUT, sT0, "114688")
c("s_lshl_b32 s%d, s%d, 15" % (sE1, sWGL))
c("s_lshl_b32 s%d, s%d, 13" % (sT0, sWAVE))
c("s_add_u32 s%d, s%d, s%d" % (sE1, sE1, sT0))
c("s_add_u32 s%d, s%d, %d" % (sE1, sE1, E1_OFF))
c("s_lshl_b32 s%d, s%d, 2" % (sT0, sB))
c("s_add_u32 s%d, s%d, s%d" % (sT0, sT0, sHN))
c("s_lshl_b32 s%d, s%d, 18" % (sT0, sT0))
c("s_lshl_b32 s%d, s%d, 10" % (sT1, sWAVE))
c("s_add_u32 s%d, s%d, s%d" % (sT0, sT0, sT1))
c("s_add_u32 s%d, s%d, %d" % (sE2P, sT0, E2_OFF))
c("s_lshl_b32 s%d, s%d, 15" % (sT1, sG))
c("s_add_u32 s%d, s%d, s%d" % (sE2C, sE2P, sT1))
c("s_mov_b32 s%d, %d" % (sT2, sum(((1, -3, 2)[i % 3] + 3) << (3 * i) for i in range(8))))
c("s_mov_b32 s%d, 8" % sCNT)
if OPT["single"]:
    c("s_cmp_eq_u32 s%d, 3" % sWAVE)
    c("s_cbranch_scc1 L_paths")
c.finish(hist=e.ins)


def k_reads(slot_off):
    return ["ds_read_b128 %s, v%d offset:%d" % (vr(KF + 16 * kb + 4 * ks, 4), aK + ks, slot_off + kb * 4096)
            for ks in range(4) for kb in range(2)]


def v_read(db, u, off):
    return "ds_read_b64_tr_b16 %s, v%d offset:%d" % (vr(VF + 4 * db + 2 * u, 2), aV + db, off + u * 4096)


def ex(S, i):
    return "v_exp_f32 v%d, v%d" % (S + i, S + i)


def cvt(S, j):
    return "v_cvt_pk_bf16_f32 v%d, v%d, v%d" % (PK + j, S + 2 * j, S + 2 * j + 1)


def qk(SN, ks, kb, blk, first):
    d = vr(SN + 8 * blk + 4 * kb, 4)
    cc = d if ks else ("0" if first else vr(NM[blk], 4))
    return "%s %s, %s, %s, %s" % (M16, d, vr(KF + 16 * kb + 4 * ks, 4), vr(QF + 16 * blk + 4 * ks, 4), cc)


def pv(db, blk):
    d = vr(ACC + 32 * blk + 4 * db, 4)
    return "%s %s, %s, %s, %s" % (M16, d, vr(VF + 4 * db, 4), vr(PK + 4 * blk, 4), d)


def sum_mfma(blk):
    return "%s %s, %s, %s, %s" % (M16, vr(vL[blk], 4), vr(ONES, 4), vr(PK + 4 * blk, 4), vr(vL[blk], 4))


def max_tree(dst, S, n):
    r = ["v_max3_f32 v%d, v%d, v%d, v%d" % (dst, S, S + 1, S + 2)]
    for i in range(3, n - 1, 2):
        r.append("v_max3_f32 v%d, v%d, v%d, v%d" % (dst, dst, S + i, S + i + 1))
    r.append("v_max_f32 v%d, v%d, v%d" % (dst, dst, S + n - 1))
    return r


def blk_max(b, S, dst, tmp):
    b.add(max_tree(dst, S, 8))
    for perm in ("v_permlane32_swap_b32", "v_permlane16_swap_b32"):
        b("v_mov_b32 v%d, v%d" % (tmp, dst))
        b("%s v%d, v%d" % (perm, tmp, dst))
        b("v_max_f32 v%d, v%d, v%d" % (dst, tmp, dst))


def weave(b, mfmas, gaps):
    assert len(mfmas) == len(gaps)
    for m_, g in zip(mfmas, gaps):
        b.add([x for x in [m_] + list(g) if x is not None])


AREG = {0: aO1, 1: aO3, 2: aO1, 3: aO3}
SBUF = {1: S0, 2: KF, 3: XB}
SEQ = [(j, f, nt) for j in range(3) for f in range(8) for nt in range(4)]
SEQ += [(3, f, nt) for nt in (1, 2, 3, 0) for f in range(8)]


def wbuf(m):
    return (KF if m < 8 else VF) + 4 * (m & 7)


def w_reads(m):
    if m >= len(SEQ):
        return []
    j, f, nt = SEQ[m]
    ks, y = f >> 1, f & 1
    return ["ds_read_b64_tr_b16 %s, v%d offset:%d" % (vr(wbuf(m) + 2 * u, 2), AREG[j] + nt,
                                                   ks * 8192 + u * 4096 + y * 1024) for u in range(2)]


def bfrag(j, f):
    return OB + 16 * (f & 1) + 4 * (f >> 1) if j == 0 else SBUF[j] + 4 * f


def publish(f, lo, hi, fl):
    return "buffer_store_dwordx4 %s, v%d, s[%d:%d], s%d offen offset:%d %s" % (vr(bfrag(0, f), 4), vE, SA, SA + 3,
                                                                           lo if f < 4 else hi, (f & 3) * 1024, fl)


rare = []


def compute_path(sfx, nb, out):
    B = range(nb)

    def blk(i, x):
        return x if i < nb else None

    def mk(name):
        bb = Block(name + (" (two query blocks)" if nb == 2 else " (one query block: wave 3)"))
        out.append(bb)
        return bb

    def q_reads(s_):
        W = VF if s_ == 0 else S0
        r = [blk(i, "ds_read_b128 %s, v%d offset:%d" % (vr(XB + 8 * s_ + 4 * i, 4), aXq + s_, i * 2048)) for i in range(2)]
        for db in range(8):
            for u in range(2):
                r.append("ds_read_b64_tr_b16 %s, v%d offset:%d" % (vr(W + 4 * db + 2 * u, 2), aWq + db, s_ * 8192 + u * 1024))
        return r

    def q_mfmas(s_):
        W = VF if s_ == 0 else S0
        r = []
        for db in range(8):
            for i in range(2):
                d = vr(ACC + 32 * i + 4 * db, 4)
                r.append(blk(i, "%s %s, %s, %s, %s" % (M16, d, vr(W + 4 * db, 4), vr(XB + 8 * s_ + 4 * i, 4), d)))
        return r

    q0 = mk("Q projection: first reads")
    q0("L_path%s:" % sfx)
    q0("s_barrier")
    stamp(q0, 1)
    q0.add([x for x in q_reads(0) if x])
    lgq0, _ = q0.finish(hist=c.ins)
    ql = mk("Q projection")
    ql("L_q%s:" % sfx)
    tabq = ["s_and_b32 s%d, s%d, 7" % (sDEL, sT2), "s_lshr_b32 s%d, s%d, 3" % (sT2, sT2),
            "s_sub_u32 s%d, s%d, 3" % (sDEL, sDEL), "s_lshl_b32 s%d, s%d, 15" % (sDEL, sDEL)]
    adv = ["v_add_u32 v%d, s%d, v%d" % (r_, sDEL, r_) for r_ in range(aWq, aWq + 10)]
    gaps = spread(q_reads(1), [2, 1, 2, 1, 2, 1, 1, 1, 1, 1, 1, 1, 1, 1, 1, 0])
    gaps[1] += tabq[:2]
    gaps[3] += tabq[2:]
    weave(ql, q_mfmas(0), gaps)
    m1 = q_mfmas(1)
    weave(ql, m1[:6], spread(adv, [2, 2, 2, 2, 1, 1]))
    ql("s_waitcnt lgkmcnt(0)")
    ql("s_barrier")
    weave(ql, m1[6:], spread(q_reads(0), [2, 2, 2, 2, 2, 2, 2, 2, 1, 1]))
    loop_end(ql, "L_q%s" % sfx)
    lgq1, _ = ql.finish(hist=q0.ins, lgq=lgq0)
    assert STAMPS or lgq1 == lgq0[-len(lgq1):], (lgq0, lgq1)
    pad_hazards(ql.ins, hist=ql.ins, check_only=True, where="q loop back edge")

    q = mk("attention set-up")
    stamp(q, 2)
    q("s_waitcnt lgkmcnt(0)")
    q.add(k_reads(0))
    q("s_waitcnt vmcnt(0)")

    def conv(ks):
        r = []
        for i in B:
            a0, f0 = ACC + 32 * i + 8 * ks, QF + 16 * i + 4 * ks
            if ks == 0:
                r += ["v_pk_mul_f32 %s, %s, s[%d:%d]" % (vr(a0 + 2 * j, 2), vr(a0 + 2 * j, 2), sCS, sCS + 1) for j in range(4)]
            else:
                r += ["v_mul_f32 v%d, s%d, v%d" % (a0 + j, sCS, a0 + j) for j in range(8)]
            r += ["v_cvt_pk_bf16_f32 v%d, v%d, v%d" % (f0 + j, a0 + 2 * j, a0 + 2 * j + 1) for j in range(4)]
        for i in B:
            f0 = QF + 16 * i + 4 * ks
            r += ["v_permlane16_swap_b32 v%d, v%d" % (f0 + j, f0 + 2 + j) for j in range(2)]
        return r

    k1 = k_reads(8192)
    init = ["v_mov_b32 v%d, 0" % (vL[0] + i) for i in range(8)] + ["v_mov_b32 v%d, 0x3f803f80" % (ONES + i) for i in range(4)]
    q.add(conv(0))
    q.add(init[:4])
    qk0 = [blk(i, qk(S0, ks, kb, i, True)) for ks in range(4) for kb in range(2) for i in range(2)]
    for ks in range(3):
        g = spread(conv(ks + 1), [7, 7, 7, 7] if nb == 2 else [4, 3, 4, 3])
        g[2].insert(0, k1[2 * ks])
        if ks:
            g[0].insert(0, k1[2 * ks - 1])
        weave(q, qk0[4 * ks:4 * ks + 4], g)
    weave(q, qk0[12:], [[k1[5]] + init[4:6], init[6:8], [k1[6]] + init[8:10], init[10:]])
    z = vr(vL[0], 4)
    weave(q, [blk(i >> 1, "%s %s, %s, %s, 0" % (M32, vr(ACC + 16 * i, 16), z, z)) for i in range(4)], [[k1[7]], [], [], []])
    for ks in range(4):
        q("v_add_u32 v%d, 16384, v%d" % (aK + ks, aK + ks))
    if nb == 1:
        for i in range(16):
            q("v_mov_b32 v%d, 0" % (OB + 16 + i))
    chains = []
    for i in B:
        tb = Block()
        blk_max(tb, S0 + 8 * i, *((1, 2) if i == 0 else (vTM, NM[1] + 1)))
        tb("v_sub_f32 v%d, 0, v%d" % (NM[i], 1 if i == 0 else vTM))
        if i == 1 and not OPT["single"]:
            tb("v_min_f32 v%d, s%d, v%d" % (NM[i], sT3, NM[i]))
        for j in range(1, 4):
            tb("v_mov_b32 v%d, v%d" % (NM[i] + j, NM[i]))
        for j in range(8):
            tb("v_add_f32 v%d, v%d, v%d" % (S0 + 8 * i + j, S0 + 8 * i + j, NM[i]))
        chains.append(tb.ins)
    if not OPT["single"]:
        q("s_cmp_eq_u32 s%d, 3" % sWAVE)
        q("s_mov_b32 s%d, %s" % (sT0, f32(3e38)))
        q("s_cselect_b32 s%d, %s, s%d" % (sT3, f32(-1e30), sT0))
    for i in range(max(map(len, chains))):
        q.add([ch[i] for ch in chains if i < len(ch)])
    KSEQ = [1, 2, 0, 1, 2, 0, 1, 2, 0, 1, 0, 1, 0, 1, 0, 0]
    VSEQ = [1, 2, 0, 1, 2, 0, 1, 2, 0, 1, 2, 1, 2, 1, 2, 1]
    for tab, seq in ((sTABK, KSEQ), (sTABV, VSEQ)):
        q("s_mov_b32 s%d, 0x%x" % (tab, sum((seq[i + 1] - seq[i] + 2) << (2 * i) for i in range(15))))
    q("s_mov_b32 s%d, 15" % sCNT)
    stamp(q, 3)
    if STAMPS == 6:
        q("s_memtime s[92:93]")
    q.finish(hist=ql.ins)

    def rescale(tag, SN):
        r = Block("the running max rises by more than the threshold: move to the true max (%s)" % tag)
        r("L_resc%s:" % tag)
        r("s_nop 15")
        for i in B:
            blk_max(r, SN + 8 * i, 1, 2)
            r("v_max_f32 v1, 0, v1")
            r("v_sub_f32 v2, 0, v1")
            r("v_exp_f32 v2, v2")
            for j in range(4):
                r("v_sub_f32 v%d, v%d, v1" % (NM[i] + j, NM[i] + j))
            for j in range(8):
                r("v_sub_f32 v%d, v%d, v1" % (SN + 8 * i + j, SN + 8 * i + j))
            for j in range(4):
                r("v_mul_f32 v%d, v%d, v2" % (vL[i] + j, vL[i] + j))
            for j in range(32):
                r("v_mul_f32 v%d, v%d, v2" % (ACC + 32 * i + j, ACC + 32 * i + j))
        r("s_nop 1")
        r("s_branch L_back%s" % tag)
        r.finish()
        rare.append(r)

    def epoch(b, par, kread, adv, tag, head=()):
        S, SN = (S0, S1) if par == 0 else (S1, S0)
        off = par * 8192
        vrd = [v_read(db, u, off) for db in range(8) for u in range(2)]
        kr = k_reads(off) if kread else [None] * 8
        b("s_waitcnt lgkmcnt(0)")
        b("s_barrier")
        b.add(head)
        GA = "e0|t0 t1|e1|t2 c0|e2|t3 t4|e3|t5 c1|e4|t6 t7|e5|t8 c2|e6|t9 e7|t10 c3|t11 e8"
        GB = "t12 t13|t14 e9|t15 e10|c4 e11|e12|c5 e13|e14|c6 e15|k0 c7 m0 m1|k1 k2|k3 m2|k4 m3|k5 m4|k6 m5|k7 m6|m7 a|x a|a a"
        mx = max_tree(vTM, SN, 8 * nb) + [None] * 4
        adds = []
        if adv:
            adds = ["v_add_u32 v%d, s%d, v%d" % (aV + i, sDELV, aV + i) for i in range(8)] + \
                   ["v_add_u32 v%d, s%d, v%d" % (aK + i, sDEL, aK + i) for i in range(4)]

        def ins(tok):
            k, n = tok[0], int(tok[1:]) if len(tok) > 1 else 0
            if k == "a":
                return adds.pop(0) if adds else None
            if k == "x":
                return "v_cmp_lt_f32 vcc, s%d, v%d" % (sTHR, vTM)
            return {"e": lambda: blk(n >> 3, ex(S, n)), "t": lambda: vrd[n], "c": lambda: blk(n >> 2, cvt(S, n)),
                    "k": lambda: kr[n], "m": lambda: mx[n]}[k]()
        ga = [[ins(x) for x in g.split()] for g in GA.split("|")]
        if adv:
            for tab, dl, gi in ((sTABV, sDELV, 1), (sTABK, sDEL, 5)):
                ga[gi] += ["s_and_b32 s%d, s%d, 3" % (dl, tab), "s_lshr_b32 s%d, s%d, 2" % (tab, tab)]
                ga[gi + 2] += ["s_sub_u32 s%d, s%d, 2" % (dl, dl), "s_lshl_b32 s%d, s%d, 14" % (dl, dl)]
        weave(b, [blk(i, qk(SN, ks, kb, i, False)) for ks in range(4) for kb in range(2) for i in range(2)], ga)
        order = [pv(db, 0) for db in range(8)] + [sum_mfma(0)] + [blk(1, pv(db, 1)) for db in range(8)] + [blk(1, sum_mfma(1))]
        gb = [[ins(x) for x in g.split()] for g in GB.split("|")]
        gb[-1] += adds[:]
        b("s_waitcnt lgkmcnt(4)")
        weave(b, order[:4], gb[:4])
        b("s_waitcnt lgkmcnt(4)")
        weave(b, order[4:], gb[4:])
        b("s_cbranch_vccnz L_resc%s" % tag)
        b("L_back%s:" % tag)
        rescale(tag, SN)

    lp = mk("attention loop: tiles 0..29")
    lp("L_att%s:" % sfx)
    epoch(lp, 0, True, False, "a" + sfx)
    epoch(lp, 1, True, True, "b" + sfx,
          head=["s_cmp_lg_u32 s%d, 1" % sCNT, "s_cbranch_scc1 L_noinfo%s" % sfx,
                "buffer_load_dword v%d, v%d, s[%d:%d], 0 offen sc1" % (vINF, vINFO, SA, SA + 3), "L_noinfo%s:" % sfx])
    loop_end(lp, "L_att%s" % sfx)
    lp.finish(hist=q.ins)
    pad_hazards(lp.ins, hist=lp.ins, check_only=True, where="loop back edge")

    t = mk("tiles 30, 31; o = O / l leaves for the other heads of the group")
    if STAMPS == 6:
        t("s_memtime s[94:95]")
        t("s_waitcnt lgkmcnt(0)")
    stamp(t, 4)
    epoch(t, 0, False, False, "c" + sfx)
    S = S1
    for nt in range(4):
        t("v_add_u32 v%d, %d, v%d" % (aO1 + nt, STG, aO2 + nt))
    for m in range(8):
        t.add(w_reads(m))
    for i in range(8 * nb):
        t(ex(S, i))
    for j in range(4 * nb):
        t(cvt(S, j))
    for i in B:
        t(sum_mfma(i))
    t("v_readlane_b32 s%d, v%d, 0" % (sT0, vINF))
    t("v_mov_b32 v%d, 1" % NM[0])
    t("s_add_u32 s%d, s%d, 4096" % (sT2, sE1))
    t("v_cmp_eq_u32 vcc, s%d, v%d" % (sT0, vINF))
    t("s_nop 0")
    t("s_and_b32 s%d, vcc_lo, 15" % sT0)
    t("s_cmp_eq_u32 s%d, %d" % (sT0, 15 if OPT["fast"] else 16))
    t("s_cselect_b32 s%d, s%d, 0x%x" % (sE1F, sE1, OOB))
    t("s_add_u32 s%d, s%d, 4096" % (sE1F4, sE1F))
    if not OPT["single"]:
        for i in B:
            t("v_max_f32 v%d, %s, v%d" % (vL[i], f32(1e-30), vL[i]))
    for i in B:
        t("v_rcp_f32 v%d, v%d" % (vL[i], vL[i]))
    for i in B:
        for j in range(4):
            t("v_pk_mul_f32 %s, %s, %s op_sel_hi:[1,0]" % (vr(S + 8 * i + 2 * j, 2), vr(S + 8 * i + 2 * j, 2), vr(vL[i], 2)))
    for i in B:
        for j in range(16):
            a0 = ACC + 32 * i + 2 * j
            t("v_pk_mul_f32 %s, %s, %s op_sel_hi:[1,0]" % (vr(a0, 2), vr(a0, 2), vr(vL[i], 2)))
    for j in range(4 * nb):
        t(cvt(S, j))
    t("s_waitcnt lgkmcnt(0)")
    t("s_barrier")
    stamp(t, 5)
    cst(t, 2)
    vrd = [v_read(db, u, 8192) for db in range(8) for u in range(2)]

    def pack(ks):
        return [blk(i, "v_cvt_pk_bf16_f32 v%d, v%d, v%d" % (OB + 16 * i + 4 * ks + j, ACC + 32 * i + 8 * ks + 2 * j, ACC + 32 * i + 8 * ks + 2 * j + 1))
                for i in range(2) for j in range(4)]

    def swaps(ks):
        return ["v_permlane16_swap_b32 v%d, v%d" % (OB + 4 * ks + j, OB + 16 + 4 * ks + j) for j in range(4)]

    t.add(vrd[0:8])
    p0, p1, p2 = pack(0), pack(1), pack(2)
    g = [vrd[8:10], vrd[10:12], vrd[12:14], vrd[14:16], [], [], p0[0:2], p0[2:4], p0[4:6], p0[6:8], p1[0:2] + swaps(0)[0:1],
         p1[2:4] + swaps(0)[1:2], p1[4:6] + swaps(0)[2:3], p1[6:8] + swaps(0)[3:4], p2[0:3], p2[3:8]]
    weave(t, [blk(i, pv(db, i)) for db in range(8) for i in range(2)], g)
    t.add([publish(f, sE1F, sE1F4, "") for f in (0, 1)])
    t.add(swaps(1))
    t.add([publish(f, sE1F, sE1F4, "") for f in (2, 3)])
    t.add(swaps(2))
    t.add([x for x in pack(3) if x])
    t.add([publish(f, sE1F, sE1F4, "") for f in (4, 5)])
    t.add(swaps(3))
    t.add([publish(f, sE1F, sE1F4, "") for f in (6, 7)])
    if nb == 1:
        t("s_branch L_join")
    lgq, vmq = t.finish(hist=lp.ins, vmq=[{vINF}])
    assert not lgq or STAMPS
    return t, vmq


side = []
tA, vmqA = compute_path("d", 2, blocks)
if OPT["single"]:
    tB, vmqB = compute_path("s", 1, side)
    assert vmqA == vmqB

t = new("output projection")
t("L_join:")
t("s_cmp_lg_u32 s%d, 0x%x" % (sE1F, OOB))
t("s_cbranch_scc1 L_pubj")
t.add([uncounted(publish(f, sE1, sT2, "sc1")) for f in range(8)])
t("L_pubj:")


def o_mfma(b, m, extra=()):
    j, f, nt = SEQ[m]
    b("%s %s, %s, %s, %s" % (M32, vr(ACC + 16 * nt, 16), vr(wbuf(m), 4), vr(bfrag(j, f), 4),
                             "0" if (j == 0 and f == 0) else vr(ACC + 16 * nt, 16)))
    b.add(w_reads(m + 8))
    b.add(extra)


flag = "buffer_store_dword v%d, v%d, s[%d:%d], 0 offen" % (NM[0], vM1, SA, SA + 3)
pollld = "buffer_load_dword v%d, v%d, s[%d:%d], 0 offen sc1" % (vTM, vP1, SA, SA + 3)


def sib_load(p, f):
    return "buffer_load_dwordx4 %s, v%d, s[%d:%d], s%d offen offset:%d sc1" % (vr(SBUF[p] + 4 * f, 4), vE, SA, SA + 3,
                                                                           sP if f < 4 else sP4, (f & 3) * 1024)


def try_head(b, p):
    b("v_cmp_eq_u32 vcc, 1, v%d" % vTM)
    b("s_mov_b32 s%d, 0x%x" % (sP, OOB))
    b("s_xor_b32 s%d, s%d, %d" % (sT0, sE1, p << 15))
    b("s_bitcmp1_b32 vcc_lo, %d" % p)
    b("s_cselect_b32 s%d, s%d, s%d" % (sP, sT0, sP))
    b("s_add_u32 s%d, s%d, 4096" % (sP4, sP))


NEARLY = 4


def need_head(b, p):
    b("s_cmp_lg_u32 s%d, 0x%x" % (sP, OOB))
    b("s_cbranch_scc1 L_dec%dd" % p)
    b("s_mov_b32 s%d, 0x%x" % (sCNT, SPIN))
    b("L_dec%d:" % p)
    b(pollld)
    b("s_waitcnt vmcnt(0)")
    try_head(b, p)
    b("s_sub_u32 s%d, s%d, 1" % (sCNT, sCNT))
    b("s_cbranch_scc1 L_dec%dl" % p)
    b("s_cmp_eq_u32 s%d, 0x%x" % (sP, OOB))
    b("s_cbranch_scc1 L_dec%d" % p)
    b("L_dec%dl:" % p)
    b.add([sib_load(p, f) for f in range(8 if p == 3 else NEARLY)])
    b("L_dec%dd:" % p)


def send(j):
    a0 = ACC + 8 * j
    return (["s_xor_b32 s%d, s%d, %d" % (sT0, sG, j), "s_lshl_b32 s%d, s%d, 15" % (sT0, sT0),
             "s_add_u32 s%d, s%d, s%d" % (sT0, sT0, sE2P), "s_add_u32 s%d, s%d, %d" % (sT0, sT0, j * 4096)],
            ["v_cvt_pk_bf16_f32 v%d, v%d, v%d" % (a0 + i, a0 + 2 * i, a0 + 2 * i + 1) for i in range(4)],
            ["buffer_store_dwordx4 %s, v%d, s[%d:%d], s%d offen sc1" % (vr(a0, 4), vE, SA, SA + 3, sT0)])


def fetch(j):
    return ["s_add_u32 s%d, s%d, %d" % (sT3, sE2C, j * 4096),
            "buffer_load_dwordx4 %s, v%d, s[%d:%d], s%d offen sc1" % (vr(PB + 4 * (j - 1), 4), vE, SA, SA + 3, sT3)]


extra = {m: [] for m in range(128)}
vM2, vTM2 = NM[1], NM[1] + 1
poll2 = "buffer_load_dword v%%d, v%d, s[%d:%d], 0 offen sc1" % (vP2, SA, SA + 3)
extra[1] += ["s_lshl_b32 s%d, s%d, 7" % (sT0, sWAVE), "s_add_u32 s%d, s%d, 1024" % (sT0, sT0),
             "v_lshl_add_u32 v%d, v0, 2, s%d" % (vP2, sT0)]
extra[2] += ["v_lshlrev_b32 v1, 2, v0", "v_xor_b32 v1, s%d, v1" % sWGL, "v_lshl_add_u32 v%d, v1, 11, v%d" % (vM2, vP2)]
extra[3] += ["s_lshl_b32 s%d, s%d, 11" % (sT0, sWGL), "v_add_u32 v%d, s%d, v%d" % (vP2, sT0, vP2), "v_subrev_u32 v1, 1, v0"]
extra[4] += ["v_cmp_gt_u32 vcc, 7, v1", "v_bfrev_b32 v1, 1", "s_nop 0"]
extra[5] += ["v_cndmask_b32 v%d, v1, v%d, vcc" % (vP2, vP2), "v_cndmask_b32 v%d, v1, v%d, vcc" % (vM2, vM2)]
extra[6] += ["s_mov_b32 s%d, 0x3f80" % sLO, "s_mov_b32 s%d, 0x3f800000" % sHI]
for p, base in ((1, STG + 32768), (2, XREG), (3, 0)):
    for nt in range(4):
        extra[32 * p - 14 + nt].append("v_add_u32 v%d, %d, v%d" % (AREG[p] + nt, base, aO2 + nt) if base else
                                       "v_mov_b32 v%d, v%d" % (AREG[p] + nt, aO2 + nt))
for i, nt in enumerate((1, 2, 3)):
    base = 104 + 8 * i
    for k_, j in enumerate((2 * nt, 2 * nt + 1)):
        for d_, part in enumerate(send(j)):
            extra[base + 2 + d_ + 3 * k_] += part
for p in (1, 2):
    for f in range(8):
        extra[32 * p - 16 + 2 * f].append(uncounted(sib_load(p, f)) if f < NEARLY else sib_load(p, f))
for f in range(8):
    extra[72 + 2 * f].append(uncounted(sib_load(3, f)))
extra[38].append(pollld)
extra[62].append(pollld)
t(pollld)
stamp(t, 6)
cst(t, 3)
for m in range(128):
    if m == OPT["fat"]:
        t("s_barrier")
    if m == OPT["flagat"]:
        cst(t, 4)
        t("s_waitcnt vmcnt(0)")
        cst(t, 5)
        t("s_cmp_lg_u32 s%d, 0x%x" % (sE1F, OOB))
        t("s_cbranch_scc1 L_flgf")
        t(flag + " sc1")
        t("s_branch L_flgj")
        t("L_flgf:")
        t.add([uncounted(flag)])
        t("L_flgj:")
        stamp(t, 8)
    if m in (16, 48, 72):
        t("s_waitcnt vmcnt(%d)" % (1 if m == 16 else 0))
        try_head(t, {16: 1, 48: 2, 72: 3}[m])
    if m in (24, 56, 88):
        need_head(t, m // 32 + 1)
        cst(t, 6 + m // 32)
        if m == 24:
            stamp(t, 7)
        if m == 88:
            stamp(t, 9)
    o_mfma(t, m, extra[m])
stamp(t, 10)
cst(t, 9)
for part in send(1):
    t.add(part)
t(poll2 % vTM)
t("s_waitcnt vmcnt(1)")
t("buffer_store_dword v%d, v%d, s[%d:%d], 0 offen sc1" % (NM[0], vM2, SA, SA + 3))
stamp(t, 11)
cst(t, 10)
t(poll2 % vTM2)
t("s_mov_b32 s%d, 0x%x" % (sCNT, SPIN))
t("s_waitcnt vmcnt(2)")
t("L_poll2:")
t("v_cmp_eq_u32 vcc, 1, v%d" % vTM)
t("s_cmp_eq_u32 vcc_lo, 0xfe")
t("s_cbranch_scc1 L_poll2e")
t.add([uncounted(poll2 % vTM)])
t("s_waitcnt vmcnt(1)")
t.add([uncounted("v_cmp_eq_u32 vcc, 1, v%d" % vTM2)])
t("s_nop 0")
t("s_cmp_eq_u32 vcc_lo, 0xfe")
t("s_cbranch_scc1 L_poll2e")
t.add([uncounted(poll2 % vTM2)])
t("s_sub_u32 s%d, s%d, 1" % (sCNT, sCNT))
t("s_waitcnt vmcnt(1)")
t("s_cbranch_scc0 L_poll2")
t("L_poll2e:")
stamp(t, 12)
cst(t, 11)
for j in range(1, 8):
    t.add(fetch(j))
for j in range(1, 8):
    for i in range(4):
        p = PB + 4 * (j - 1) + i
        t("v_dot2_f32_bf16 v%d, v%d, s%d, v%d" % (ACC + 2 * i, p, sLO, ACC + 2 * i))
        t("v_dot2_f32_bf16 v%d, v%d, s%d, v%d" % (ACC + 2 * i + 1, p, sHI, ACC + 2 * i + 1))
t("s_nop 2")
for j in range(4):
    t("v_cvt_pk_bf16_f32 v%d, v%d, v%d" % (ACC + 8 + j, ACC + 2 * j, ACC + 2 * j + 1))
t("buffer_store_dwordx4 %s, v%d, s[%d:%d], s%d offen" % (vr(ACC + 8, 4), vOUT, SB, SB + 3, sOFF))
if STAMPS:
    cst(t, 12)
    t("s_waitcnt vmcnt(0)")
    cst(t, 13)
    stamp(t, 13)
    if STAMPS != 6:
        t("s_memtime s[94:95]")
    t("s_waitcnt lgkmcnt(0)")
    t("s_sub_u32 s%d, s94, s92" % (sSTAMP + 28))
    t("s_getreg_b32 s%d, hwreg(HW_REG_XCC_ID, 0, 4)" % (sSTAMP + 30))
    t("s_getreg_b32 s%d, hwreg(HW_REG_HW_ID)" % sT0)
    t("s_lshl_b32 s%d, s%d, 4" % (sT0, sT0))
    t("s_or_b32 s%d, s%d, s%d" % (sSTAMP + 30, sSTAMP + 30, sT0))
    for i in range(16):
        t("v_mov_b32 v%d, s%d" % (ACC + 16 + i, sSTAMP + 2 * i))
    t("s_lshl_b32 s%d, s2, 2" % sT0)
    t("s_add_u32 s%d, s%d, s%d" % (sT0, sT0, sWAVE))
    t("s_lshl_b32 s%d, s%d, 6" % (sT0, sT0))
    t("s_add_u32 s%d, s%d, %d" % (sT0, sT0, ST_OFF))
    t("v_mov_b32 v1, 0")
    t("s_mov_b64 exec, 1")
    for i in range(4):
        t("buffer_store_dwordx4 %s, v1, s[%d:%d], s%d offen offset:%d" % (vr(ACC + 16 + 4 * i, 4), SA, SA + 3, sT0, 16 * i))
t("L_end:")
t("s_endpgm")
t.finish(hist=tA.ins, vmq=vmqA)
if OPT["single"]:
    pad_hazards(t.ins[:60], hist=tB.ins, check_only=True, where="join from the one-block path")
blocks += side
blocks.append(Block("seldom taken"))
blocks[-1]("L_codeend:")
blocks += rare

hdr = open("standalone__mha_block_cached__near_ridge.s.ref").read().split("; Override launch")[0]
out = [hdr.rstrip()]
out.append("""; Fused Q projection + attention + output projection, one workgroup (8 waves) per (batch, head), one per CU.
;   over the eight groups (partial sums exchanged through d_ws).""")
out.append("; @launch grid=(256,1,1) block=(512,1,1) lds=163840")
out.append('.amdgcn_target "amdgcn-amd-amdhsa--gfx950"')
out.append(".text")
out.append(".globl " + KNAME)
out.append(".p2align 8")
out.append(".type %s,@function" % KNAME)
out.append(KNAME + ":")
for b in blocks:
    out.append("; ---- %s ----" % b.name)
    out.append(b.text())
out.append(".p2align 8")
out.append(".fill 64, 4, 0xbf800000")
out.append('.section .rodata,"a"')
out.append(".p2align 6")
out.append(".amdhsa_kernel " + KNAME)
out.append("""  .amdhsa_next_free_vgpr 256
  .amdhsa_next_free_sgpr 102
  .amdhsa_accum_offset 256
  .amdhsa_group_segment_fixed_size 0
  .amdhsa_kernarg_size 64
  .amdhsa_user_sgpr_count 2
  .amdhsa_user_sgpr_kernarg_segment_ptr 1
  .amdhsa_system_sgpr_workgroup_id_x 1
.end_amdhsa_kernel""")
print("\n".join(out))
```

```python
import sys, struct, math
from asmgen import *

OPT = dict(stamps=0, nt_kv="nt", nt_q="", nt_wo="nt", thr=8.0, force_rescale=0, codepf=1, fast=1,
           early="0.1.2.3", k_at="5.6.7.8", v_at="6.7.8.8", thr0=8, rotmask=6, fat=6, flagat=12, single=1,
           noload=0, map=0, rot=0, wseg=256)
for a in sys.argv[1:]:
    k, v = a.split("=")
    OPT[k] = type(OPT[k])(v) if not isinstance(OPT[k], str) else v.replace("_", " ").strip()
STAMPS = OPT["stamps"]
KNAME = "standalone__mha_block_cached__near_ridge_kernel"


def f32(x):
    return "0x%08x" % struct.unpack("<I", struct.pack("<f", x))[0]


CSC = math.log2(math.e) / math.sqrt(128.0)
M16 = "v_mfma_f32_16x16x32_bf16"
M32 = "v_mfma_f32_32x32x16_bf16"
OOB = 0x40000000
SPIN = 0x100000

KRING, VRING, STG, XREG = 0, 49152, 98304, 32768
E1_OFF, E2_OFF, ST_OFF = 0x100000, 0x900000, 0x4000000
sX, sK, sV, sWQ, sWO, sOUT, sDBG, sWS = 4, 6, 8, 10, 12, 14, 16, 18
sWAVE, sG, sB, sHN, sH, sWGL = 20, 21, 22, 23, 24, 25
sBEG, sEND = 26, 27
SA, SB, SC = 28, 32, 36
sOFF, sLDS, sCNT, sT0, sT1, sT2 = 40, 41, 42, 43, 44, 45
sCS, sDEL, sE1, sE2P, sE2C, sTHR = 46, 48, 49, 50, 51, 52
sT3, sTABK, sTABV, sDELV = 53, 54, 55, 56
sP, sP4, sE1F, sE1F4, sLO, sHI = 57, 58, 59, 60, 61, 62
sNXT, sA, sVM, sLIM = 54, 55, 56, 57
sSTAMP = 64
vP2, vP1, vE, vLO, vTM, vOUT = 2, 3, 4, 5, 6, 7
aK, aW, aV = 8, 12, 16
NM = (24, 28)
ACC, QF, S0, S1, KF, VF, XB = 32, 96, 128, 144, 160, 192, 224
PK = XB
vL = (232, 236)
vM1, vINFO, vINF, ONES, vDUM = 240, 242, 243, 244, 255
aWq, aXq = 96, 104
aO1, aO2, aO3 = aK, aW, aV
OB = PB = QF


def cst(b, idx):
    if STAMPS == 7:
        b("s_memtime s[%d:%d]" % (sSTAMP + 2 * idx, sSTAMP + 2 * idx + 1))


def stamp(b, idx):
    if STAMPS == 7:
        if idx == 5:
            b("s_memrealtime s[%d:%d]" % (sSTAMP + 2, sSTAMP + 3))
    elif STAMPS == 8:
        if idx in (3, 5, 10, 13):
            b("s_memrealtime s[%d:%d]" % (sSTAMP + 2 * idx, sSTAMP + 2 * idx + 1))
    elif STAMPS:
        b("s_memrealtime s[%d:%d]" % (sSTAMP + 2 * idx, sSTAMP + 2 * idx + 1))
        b("s_waitcnt lgkmcnt(0)")


def srd(b, dst, ptr, off_sreg, size):
    if off_sreg is None:
        b("s_mov_b32 s%d, s%d" % (dst, ptr))
        b("s_mov_b32 s%d, s%d" % (dst + 1, ptr + 1))
    else:
        b("s_add_u32 s%d, s%d, s%d" % (dst, ptr, off_sreg))
        b("s_addc_u32 s%d, s%d, 0" % (dst + 1, ptr + 1))
    b("s_mov_b32 s%d, %s" % (dst + 2, size))
    b("s_mov_b32 s%d, 0x20000" % (dst + 3))


def dma_group(b, S, voffs, soff, flags, n=4):
    for p in range(n):
        o = " offset:%d" % (p * 1024) if p else ""
        b("buffer_load_dwordx4 v%d, s[%d:%d], s%d offen%s %s lds" % (voffs[p], S, S + 3, soff, o, flags))


def loop_begin(b, label, n):
    b("s_mov_b32 s%d, %d" % (sCNT, n))
    b(label + ":")


def loop_end(b, label):
    b("s_sub_u32 s%d, s%d, 1" % (sCNT, sCNT))
    b("s_cmp_lg_u32 s%d, 0" % sCNT)
    b("s_cbranch_scc1 " + label)


def spread(items, counts):
    out, k = [], 0
    for n in counts:
        out.append(items[k:k + n])
        k += n
    assert k == len(items)
    return out


def uncounted(x):
    i_ = parse(x)
    i_.kind = "comment"
    i_.n = 0
    return i_


blocks = []


def new(name):
    b = Block(name)
    blocks.append(b)
    return b


e = new("entry: workgroup -> (batch b, head group g, head hn in group); waves 0-3 compute, 4-7 load")
e("L_start:")
e("s_cmp_ge_u32 s2, 256")
e("s_cbranch_scc1 L_end")
e("s_load_dwordx16 s[4:19], s[0:1], 0")
if STAMPS:
    e("s_memrealtime s[%d:%d]" % (sSTAMP, sSTAMP + 1))
    e("s_memtime s[92:93]")
e("v_lshrrev_b32 v1, 6, v0")
e("v_and_b32 v0, 63, v0")
e("v_readfirstlane_b32 s%d, v1" % sWAVE)
e("s_and_b32 s%d, s2, 7" % sG)
if OPT["map"] == 0:
    e("s_lshr_b32 s%d, s2, 5" % sB)
    e("s_lshr_b32 s%d, s2, 3" % sHN)
    e("s_and_b32 s%d, s%d, 3" % (sHN, sHN))
else:
    e("s_lshr_b32 s%d, s2, 6" % sHN)
    e("s_lshr_b32 s%d, s2, 3" % sB)
    e("s_and_b32 s%d, s%d, 7" % (sB, sB))
e("s_lshl_b32 s%d, s%d, 2" % (sH, sG))
e("s_add_u32 s%d, s%d, s%d" % (sH, sH, sHN))
e("s_lshl_b32 s%d, s%d, 5" % (sWGL, sB))
e("s_add_u32 s%d, s%d, s%d" % (sWGL, sWGL, sH))
e("s_cmp_lt_u32 s%d, 4" % sWAVE)
e("s_cbranch_scc1 L_compute")
e("v_lshrrev_b32 v1, 4, v0")
e("v_and_b32 v3, 15, v0")
e("s_cmp_lt_u32 s%d, 6" % sWAVE)
e("s_cbranch_scc1 L_ldkv")
e.finish()

WOV = [14, 15, 16, 17]
WSH = {256: 8, 128: 7, 64: 6}[OPT["wseg"]]


def wo_setup(b):
    b("v_lshlrev_b32 v2, 2, v1")
    b("v_xor_b32 v2, v2, v3")
    if WSH < 8:
        b("v_lshrrev_b32 v4, %d, v2" % (WSH - 4))
        b("v_and_b32 v2, %d, v2" % ((1 << (WSH - 4)) - 1))
        b("v_lshl_add_u32 v2, v4, %d, v2" % (WSH - 2))
    b("v_lshlrev_b32 v2, 4, v2")
    b("v_lshl_add_u32 v14, v1, 10, v2")
    b("v_add_u32 v15, 3072, v14")
    b("v_add_u32 v16, 6144, v14")
    b("v_add_u32 v17, 9216, v14")
    b("s_lshl_b32 s%d, s%d, 19" % (sT0, sG))
    b("s_lshl_b32 s%d, s%d, %d" % (sT1, sHN, WSH))
    b("s_add_u32 s%d, s%d, s%d" % (sT0, sT0, sT1))
    b("s_sub_u32 s%d, 0x400000, s%d" % (sT1, sT0))
    srd(b, SB, sWO, sT0, "s%d" % sT1)


def kv_tile(b, voffs, skip=False):
    if skip:
        return
    b("s_mov_b32 m0, s%d" % sLDS)
    b("s_add_u32 s%d, s%d, 4096" % (sT0, sLDS))
    dma_group(b, SA, voffs, sOFF, OPT["nt_kv"])
    b("s_mov_b32 m0, s%d" % sT0)
    b("s_add_u32 s%d, s%d, 4096" % (sOFF, sOFF))
    dma_group(b, SA, voffs, sOFF, OPT["nt_kv"])
    b("s_add_u32 s%d, s%d, 4096" % (sOFF, sOFF))
    if OPT["rot"]:
        b("s_and_b32 s%d, s%d, 0x3ffff" % (sOFF, sOFF))
    b("s_add_u32 s%d, s%d, 8192" % (sLDS, sLDS))
    b("s_cmp_eq_u32 s%d, s%d" % (sLDS, sEND))
    b("s_cselect_b32 s%d, s%d, s%d" % (sLDS, sBEG, sLDS))


def first_tile(b):
    if not OPT["rot"]:
        b("s_mov_b32 s%d, 0" % sOFF)
        return
    b("s_mul_i32 s%d, s%d, %d" % (sOFF, sWGL, OPT["rot"]))
    b("s_and_b32 s%d, s%d, 31" % (sOFF, sOFF))
    b("s_lshl_b32 s%d, s%d, 13" % (sOFF, sOFF))


def wo_tile(b):
    b("s_mov_b32 m0, s%d" % sLDS)
    b("s_add_u32 s%d, s%d, 4096" % (sT0, sLDS))
    dma_group(b, SB, WOV, sOFF, OPT["nt_wo"])
    b("s_mov_b32 m0, s%d" % sT0)
    b("s_add_u32 s%d, s%d, 16384" % (sOFF, sOFF))
    dma_group(b, SB, WOV, sOFF, OPT["nt_wo"])
    b("s_add_u32 s%d, s%d, 16384" % (sOFF, sOFF))


def wo3_tile(b):
    b("s_add_u32 s%d, s%d, 2" % (sT1, sNXT))
    b("s_and_b32 s%d, s%d, 3" % (sT1, sT1))
    b("s_lshl_b32 s%d, s%d, 13" % (sLDS, sT1))
    b("s_xor_b32 s%d, s%d, 3" % (sOFF, sHN))
    b("s_lshl_b32 s%d, s%d, 2" % (sOFF, sOFF))
    b("s_add_u32 s%d, s%d, s%d" % (sOFF, sOFF, sT1))
    b("s_lshl_b32 s%d, s%d, 15" % (sOFF, sOFF))
    wo_tile(b)


def tiles(b, label, voffs, n):
    if n > 1:
        b("s_mov_b32 s%d, %d" % (sT3, n))
        b(label + ":")
        kv_tile(b, voffs)
        b("s_sub_u32 s%d, s%d, 1" % (sT3, sT3))
        b("s_cmp_lg_u32 s%d, 0" % sT3)
        b("s_cbranch_scc1 " + label)
    elif n:
        kv_tile(b, voffs)


def q_phase_kv(b, tag, voffs, txt, hooks):
    early = [int(x) for x in OPT["early"].split(".")]
    at = [int(x) for x in txt.split(".")]
    assert max(early) <= at[0] and at == sorted(at) and at[2] >= 6
    b("s_add_u32 s%d, s%d, s%d" % (sT1, sB, sHN))
    b("s_and_b32 s%d, s%d, 3" % (sT1, sT1))
    b("s_lshl_b32 s%d, s%d, 2" % (sT1, sT1))
    b("s_lshr_b32 s%d, %d, s%d" % (sT1, sum(x << (4 * i) for i, x in enumerate(early)), sT1))
    b("s_and_b32 s%d, s%d, 15" % (sCNT, sT1))
    lo, hi = min(early), max(early)
    for i in range(lo):
        b("s_barrier")
        b.add(hooks.get(i, []))
    assert all(x > hi or x == hi for x in at) and all(k <= lo for k in hooks)
    b("s_mov_b32 s%d, %d" % (sT2, lo))
    b("L_%se:" % tag)
    b("s_barrier")
    if lo in hooks:
        b("s_cmp_lg_u32 s%d, %d" % (sT2, lo))
        b("s_cbranch_scc1 L_%seh" % tag)
        b.add(hooks[lo])
        b("L_%seh:" % tag)
    b("s_cmp_lg_u32 s%d, s%d" % (sCNT, sT2))
    b("s_cbranch_scc1 L_%sen" % tag)
    tiles(b, "L_%sei" % tag, voffs, 2)
    b("L_%sen:" % tag)
    b("s_add_u32 s%d, s%d, 1" % (sT2, sT2))
    b("s_cmp_le_u32 s%d, %d" % (sT2, hi))
    b("s_cbranch_scc1 L_%se" % tag)
    tiles(b, "L_%sq%d" % (tag, hi), voffs, at.count(hi))
    for i in range(hi + 1, 8):
        b("s_barrier")
        tiles(b, "L_%sq%d" % (tag, i), voffs, at.count(i))
    if tag == "k":
        b("s_waitcnt vmcnt(%d)" % (8 * sum(x < 8 for x in at)))
    b("s_barrier")
    tiles(b, "L_%sq8" % tag, voffs, at.count(8))
    return 2 + sum(x <= 8 for x in at)


def att_phase(b, tag, voffs, nxt, lead, f1, f2, tend, sw_at, sw_reg, sw_val):
    sT = sCNT
    stamps = STAMPS == 1 and tag == "v"
    last = 35 if tag == "k" else 31
    b("s_mov_b32 s%d, 0" % sT)
    b("s_mov_b32 s%d, %d" % (sNXT, nxt))
    b("L_%sd:" % tag)
    b("s_sub_u32 s%d, s%d, s%d" % (sA, sNXT, sT))
    for a_ in (1, 2, 3, 4, 5):
        b("s_cmp_eq_u32 s%d, %d" % (sA, lead + 1 + a_))
        b("s_cbranch_scc1 L_%sd%d" % (tag, a_))
    b("s_waitcnt vmcnt(0)")
    for a_ in range(1, 6):
        b("L_%sd%d:" % (tag, a_))
        b("s_waitcnt vmcnt(%d)" % (8 * a_))
    if stamps:
        b("s_memrealtime s[60:61]")
        b("s_waitcnt lgkmcnt(0)")
    b("s_barrier")
    if stamps:
        b("s_memrealtime s[62:63]")
        b("s_waitcnt lgkmcnt(0)")
        b("s_mov_b32 m0, s%d" % sT)
        b("s_nop 0")
        b("v_writelane_b32 v20, s60, m0")
        b("v_writelane_b32 v21, s62, m0")
    b("s_getreg_b32 s%d, hwreg(HW_REG_IB_STS, 22, 2)" % sA)
    b("s_getreg_b32 s%d, hwreg(HW_REG_IB_STS, 0, 4)" % sVM)
    b("s_lshl_b32 s%d, s%d, 4" % (sA, sA))
    b("s_or_b32 s%d, s%d, s%d" % (sVM, sVM, sA))
    b("L_%sdi:" % tag)
    b("s_cmp_le_u32 s%d, 21" % sNXT)
    b("s_cselect_b32 s%d, %d, %d" % (sLIM, f1, f2))
    b("s_add_u32 s%d, s%d, s%d" % (sLIM, sLIM, sT))
    b("s_min_u32 s%d, s%d, %d" % (sLIM, sLIM, last))
    b("s_cmp_gt_u32 s%d, s%d" % (sNXT, sLIM))
    b("s_cbranch_scc1 L_%sdn" % tag)
    b("s_cmp_le_u32 s%d, %d" % (sVM, OPT["thr0"]))
    b("s_cbranch_scc1 L_%sdg" % tag)
    b("s_add_u32 s%d, s%d, %d" % (sLIM, sT, lead + 1))
    b("s_cmp_gt_u32 s%d, s%d" % (sNXT, sLIM))
    b("s_cbranch_scc1 L_%sdn" % tag)
    b("L_%sdg:" % tag)
    if last > 31:
        b("s_cmp_ge_u32 s%d, 32" % sNXT)
        b("s_cbranch_scc1 L_kdw")
    b("s_cmp_eq_u32 s%d, %d" % (sNXT, sw_at))
    b("s_cselect_b32 s%d, %d, s%d" % (sw_reg, sw_val, sw_reg))
    kv_tile(b, voffs, OPT["noload"])
    b("L_%sdj:" % tag)
    b("s_add_u32 s%d, s%d, 1" % (sNXT, sNXT))
    b("s_add_u32 s%d, s%d, 8" % (sVM, sVM))
    b("s_branch L_%sdi" % tag)
    if last > 31:
        b("L_kdw:")
        wo3_tile(b)
        b("s_branch L_kdj")
    b("L_%sdn:" % tag)
    b("s_add_u32 s%d, s%d, 1" % (sT, sT))
    b("s_cmp_lt_u32 s%d, %d" % (sT, tend))
    b("s_cbranch_scc1 L_%sd" % tag)


b = new("K loader")
b("L_ldkv:")
b("s_cmp_eq_u32 s%d, 5" % sWAVE)
b("s_cbranch_scc1 L_ldv")
for p in range(4):
    b("v_add_u32 v4, %d, v1" % (4 * p))
    b("v_xor_b32 v4, v4, v3")
    b("v_lshlrev_b32 v4, 4, v4")
    b("v_lshl_add_u32 v%d, v1, 8, v4" % (10 + p))
b("s_lshl_b32 s%d, s%d, 18" % (sT0, sWGL))
b("s_waitcnt lgkmcnt(0)")
srd(b, SA, sK, sT0, "0x40000")
first_tile(b)
b("s_mov_b32 s%d, %d" % (sLDS, KRING))
b("s_mov_b32 s%d, %d" % (sBEG, KRING))
b("s_mov_b32 s%d, %d" % (sEND, KRING + 49152))
KV4 = [10, 11, 12, 13]
wo_setup(b)
NK0 = q_phase_kv(b, "k", KV4, OPT["k_at"], {})
att_phase(b, "k", KV4, NK0, 2, 7, 5, 30, 19, sEND, KRING + 32768)
b("s_barrier")
b("L_k2:")
wo3_tile(b)
b("s_add_u32 s%d, s%d, 1" % (sNXT, sNXT))
b("s_cmp_le_u32 s%d, 35" % sNXT)
b("s_cbranch_scc1 L_k2")
b("s_barrier")
b("s_waitcnt vmcnt(0)")
b("s_barrier")
b("s_endpgm")
b.finish(hist=e.ins)

b = new("V loader")
b("L_ldv:")
for par in range(2):
    b("v_lshlrev_b32 v4, 1, v1")
    b("v_xor_b32 v4, v4, v3")
    if par:
        b("v_xor_b32 v4, 8, v4")
    b("v_lshlrev_b32 v4, 4, v4")
    b("v_lshl_add_u32 v%d, v1, 8, v4" % (10 + par))
b("s_lshl_b32 s%d, s%d, 18" % (sT0, sWGL))
b("s_waitcnt lgkmcnt(0)")
srd(b, SA, sV, sT0, "0x40000")
first_tile(b)
b("s_mov_b32 s%d, %d" % (sLDS, VRING + 2 * 8192))
b("s_mov_b32 s%d, %d" % (sBEG, VRING))
b("s_mov_b32 s%d, %d" % (sEND, VRING + 49152))
V4 = [10, 11, 10, 11]
srd(b, SC, sWS, None, "0x10000000")
b("v_mov_b32 v4, 0")
b("v_mov_b32 v5, 0")
b("s_lshl_b32 s%d, s%d, 11" % (sT0, sWGL))
b("v_lshlrev_b32 v8, 3, v0")
b("buffer_store_dwordx2 v[4:5], v8, s[%d:%d], s%d offen sc1" % (SC, SC + 3, sT0))
b("buffer_store_dwordx2 v[4:5], v8, s[%d:%d], s%d offen offset:1024 sc1" % (SC, SC + 3, sT0))
b("s_getreg_b32 s%d, hwreg(HW_REG_XCC_ID, 0, 4)" % sT1)
b("s_add_u32 s%d, s%d, 1" % (sT1, sT1))
b("v_mov_b32 v7, s%d" % sT1)
b("s_mov_b64 exec, 1")
b("buffer_store_dword v7, v4, s[%d:%d], s%d offen offset:512 sc1" % (SC, SC + 3, sT0))
b("s_mov_b64 exec, -1")
b("s_lshl_b32 s%d, s%d, 5" % (sT0, sB))
b("s_add_u32 s%d, s%d, s%d" % (SB, sDBG, sT0))
b("s_addc_u32 s%d, s%d, 0" % (SB + 1, sDBG + 1))
b("s_mov_b32 s%d, 1" % (SB + 2))
NV0 = q_phase_kv(b, "v", V4, OPT["v_at"],
                 {0: ["s_waitcnt vmcnt(0)", "s_atomic_add s%d, s[%d:%d], 0x0" % (SB + 2, SB, SB + 1)]})
att_phase(b, "v", V4, NV0, 0, 5, 3, 32, 18, sBEG, VRING + 16384)
b("s_barrier")
if STAMPS == 1:
    b("s_lshl_b32 s%d, s2, 9" % sT0)
    b("s_add_u32 s%d, s%d, %d" % (sT0, sT0, ST_OFF + 0x100000))
    b("v_lshlrev_b32 v1, 2, v0")
    b("buffer_store_dword v20, v1, s[%d:%d], s%d offen" % (SC, SC + 3, sT0))
    b("buffer_store_dword v21, v1, s[%d:%d], s%d offen offset:256" % (SC, SC + 3, sT0))
b("s_endpgm")
b.finish(hist=e.ins)


sGST, sKSH, sL0, sL1, sL2 = 54, 55, 56, 57, 58


def q_phase_xw(b):
    def chunk():
        b("s_lshl_b32 s%d, s%d, s%d" % (sOFF, sT2, sKSH))
        b("s_mov_b32 m0, s%d" % sLDS)
        b("s_add_u32 s%d, s%d, 1" % (sT2, sT2))
        dma_group(b, SA, [10, 11, 12, 13], sOFF, OPT["nt_q"])
        for g in range(1, 4):
            b("s_add_u32 m0, s%d, %d" % (sLDS, 4096 * g))
            b("s_add_u32 s%d, s%d, s%d" % (sOFF, sOFF, sGST))
            dma_group(b, SA, [10, 11, 12, 13], sOFF, OPT["nt_q"])
        b("s_and_b32 s%d, s%d, 7" % (sT2, sT2))
        b("s_mov_b32 s%d, s%d" % (sLDS, sL1))
        b("s_mov_b32 s%d, s%d" % (sL1, sL2))
        b("s_mov_b32 s%d, s%d" % (sL2, sL0))
        b("s_mov_b32 s%d, s%d" % (sL0, sLDS))
    b("s_setprio 2")
    b("s_cmp_eq_u32 s%d, 7" % sWAVE)
    b("s_cbranch_scc1 L_setw")
    b("v_lshrrev_b32 v5, 3, v0")
    b("v_and_b32 v6, 7, v0")
    b("v_lshrrev_b32 v7, 1, v5")
    b("v_xor_b32 v4, v7, v6")
    b("v_lshlrev_b32 v4, 4, v4")
    b("v_lshl_add_u32 v10, v5, 10, v4")
    b("v_xor_b32 v4, 64, v10")
    b("v_add_u32 v11, %d, v4" % (8192 - 1024))
    b("v_add_u32 v12, %d, v10" % (2 * (8192 - 1024)))
    b("v_add_u32 v13, %d, v4" % (3 * (8192 - 1024)))
    b("s_mul_i32 s%d, s%d, 114688" % (sT0, sB))
    b("s_mov_b32 s%d, 114688" % (SA + 2))
    b("s_mov_b32 s%d, 32768" % sGST)
    b("s_mov_b32 s%d, 7" % sKSH)
    b("s_mov_b32 s%d, %d" % (sLDS, STG))
    b("s_waitcnt lgkmcnt(0)")
    b("s_add_u32 s%d, s%d, s%d" % (SA, sX, sT0))
    b("s_addc_u32 s%d, s%d, 0" % (SA + 1, sX + 1))
    b("s_branch L_setj")
    b("L_setw:")
    b("v_lshlrev_b32 v4, 1, v1")
    b("v_xor_b32 v4, v4, v3")
    b("v_lshlrev_b32 v4, 4, v4")
    b("v_lshl_add_u32 v10, v1, 13, v4")
    b("v_add_u32 v11, %d, v10" % (32768 - 1024))
    b("v_xor_b32 v4, 128, v10")
    b("v_add_u32 v12, %d, v4" % (2 * (32768 - 1024)))
    b("v_add_u32 v13, %d, v4" % (3 * (32768 - 1024)))
    b("s_lshl_b32 s%d, s%d, 8" % (sT0, sH))
    b("s_sub_u32 s%d, 0x400000, s%d" % (SA + 2, sT0))
    b("s_mov_b32 s%d, 131072" % sGST)
    b("s_mov_b32 s%d, 19" % sKSH)
    b("s_mov_b32 s%d, %d" % (sLDS, STG + 16384))
    b("s_waitcnt lgkmcnt(0)")
    b("s_add_u32 s%d, s%d, s%d" % (SA, sWQ, sT0))
    b("s_addc_u32 s%d, s%d, 0" % (SA + 1, sWQ + 1))
    b("L_setj:")
    b("s_mov_b32 s%d, 0x20000" % (SA + 3))
    b("s_lshl_b32 s%d, s%d, 1" % (sT2, sHN))
    b("s_add_u32 s%d, s%d, s%d" % (sT2, sT2, sB))
    b("s_and_b32 s%d, s%d, %d" % (sT2, sT2, OPT["rotmask"]))
    b("s_mov_b32 s%d, s%d" % (sL0, sLDS))
    b("s_add_u32 s%d, s%d, 32768" % (sL1, sLDS))
    b("s_sub_u32 s%d, s%d, %d" % (sL2, sLDS, STG - XREG))
    b("s_mov_b32 s%d, 8" % sCNT)
    b("s_branch L_xwgo")
    b("L_xw:")
    b("s_waitcnt vmcnt(16)")
    b("s_barrier")
    b("L_xwgo:")
    chunk()
    b("s_sub_u32 s%d, s%d, 1" % (sCNT, sCNT))
    b("s_cmp_eq_u32 s%d, 7" % sCNT)
    b("s_cbranch_scc1 L_xwgo")
    b("s_cmp_lg_u32 s%d, 0" % sCNT)
    b("s_cbranch_scc1 L_xw")
    wo_setup(b)
    b("s_waitcnt vmcnt(16)")
    b("s_barrier")
    b("s_waitcnt vmcnt(0)")
    b("s_barrier")
    b("s_barrier")
    b("s_setprio 0")
    b("s_cmp_eq_u32 s%d, 7" % sWAVE)
    b("s_cbranch_scc1 L_attw")


def wo_trickle(b, tag, blk):
    first = 4 if blk == 0 else 2
    for i in range(first + 1):
        b("s_barrier")
    if tag == "w":
        b("s_lshl_b32 s%d, s%d, 5" % (sT0, sB))
        b("s_add_u32 s%d, s%d, s%d" % (SC, sDBG, sT0))
        b("s_addc_u32 s%d, s%d, 0" % (SC + 1, sDBG + 1))
        b("s_load_dword s%d, s[%d:%d], 0x0 glc" % (SC + 2, SC, SC + 1))
    b("s_xor_b32 s%d, s%d, %d" % (sOFF, sHN, blk))
    b("s_lshl_b32 s%d, s%d, 17" % (sOFF, sOFF))
    b("s_mov_b32 s%d, %d" % (sLDS, STG + blk * 32768))
    loop_begin(b, "L_%s2" % tag, 4)
    wo_tile(b)
    b("s_add_u32 s%d, s%d, 8192" % (sLDS, sLDS))
    for i in range(4):
        b("s_barrier")
    loop_end(b, "L_%s2" % tag)
    b("s_xor_b32 s%d, s%d, 2" % (sOFF, sHN))
    b("s_lshl_b32 s%d, s%d, 17" % (sOFF, sOFF))
    b("s_add_u32 s%d, s%d, %d" % (sOFF, sOFF, blk * 65536))
    b("s_mov_b32 s%d, %d" % (sLDS, XREG + blk * 16384))
    wo_tile(b)
    b("s_add_u32 s%d, s%d, 8192" % (sLDS, sLDS))
    for i in range(4):
        b("s_barrier")
    wo_tile(b)
    done = first + 20
    if tag == "w":
        for i in range(3):
            b("s_barrier")
        done += 3
        b("s_mov_b32 s%d, 0x%x" % (sCNT, SPIN))
        b("s_branch L_wchk")
        b("L_wpoll:")
        b("s_load_dword s%d, s[%d:%d], 0x0 glc" % (SC + 2, SC, SC + 1))
        b("L_wchk:")
        b("s_waitcnt lgkmcnt(0)")
        b("s_sub_u32 s%d, s%d, 1" % (sCNT, sCNT))
        b("s_cbranch_scc1 L_wpolld")
        b("s_cmp_lt_u32 s%d, 32" % (SC + 2))
        b("s_cbranch_scc1 L_wpoll")
        b("L_wpolld:")
    for i in range(29 - done):
        b("s_barrier")
    b("s_waitcnt vmcnt(0)")
    b("s_barrier")
    b("s_barrier")
    b("s_barrier")
    b("s_endpgm")


bq = Block("x / wq loaders: Q phase")
q_phase_xw(bq)
wo_trickle(bq, "x", 0)
bq("L_attw:")
wo_trickle(bq, "w", 1)
bq.finish(hist=e.ins)
blocks.insert(1, bq)

c = new("compute waves: addresses")
c("L_compute:")
if OPT["codepf"]:
    c("s_cmp_lg_u32 s%d, 1" % sWAVE)
    c("s_cbranch_scc1 L_nopf")
    c("s_getpc_b64 s[56:57]")
    c("L_pc:")
    c("s_sub_u32 s56, s56, L_pc-L_start")
    c("s_subb_u32 s57, s57, 0")
    c("s_lshr_b32 s%d, s2, 3" % sT0)
    c("s_and_b32 s%d, s%d, 7" % (sT0, sT0))
    c("s_mul_i32 s%d, s%d, ((L_codeend-L_start+1023)/1024)*128" % (sT0, sT0))
    c("v_lshlrev_b32 v1, 7, v0")
    c("v_add_u32 v1, s%d, v1" % sT0)
    c("v_min_u32 v1, L_codeend-L_start-4, v1")
    c("v_mov_b32 v3, s57")
    c("v_add_co_u32 v2, vcc, s56, v1")
    c("s_nop 1")
    c("v_addc_co_u32 v3, vcc, 0, v3, vcc")
    c("v_cmp_gt_u32 vcc, (L_codeend-L_start+1023)/1024, v0")
    c("s_and_saveexec_b64 s[58:59], vcc")
    c("global_load_dword v%d, v[2:3], off" % vDUM)
    c("s_mov_b64 exec, -1")
    c("L_nopf:")
c("v_lshrrev_b32 v1, 4, v0")
c("v_and_b32 v2, 15, v0")
c("v_lshrrev_b32 v3, 5, v0")
c("v_and_b32 v4, 1, v1")
c("v_lshl_add_u32 v3, v4, 1, v3")
c("v_xor_b32 v3, v3, v2")
c("v_lshlrev_b32 v3, 4, v3")
c("v_lshl_add_u32 v%d, v2, 8, v3" % aK)
for ks in range(1, 4):
    c("v_xor_b32 v%d, %d, v%d" % (aK + ks, ks << 6, aK))
c("s_lshl_b32 s%d, s%d, 12" % (sT0, sWAVE))
c("s_add_u32 s%d, s%d, %d" % (sT0, sT0, STG))
c("v_lshrrev_b32 v3, 1, v2")
c("v_xor_b32 v3, v3, v1")
c("v_lshlrev_b32 v3, 4, v3")
c("v_lshl_add_u32 v3, v2, 7, v3")
c("v_add_u32 v%d, s%d, v3" % (aXq, sT0))
c("v_xor_b32 v%d, 64, v%d" % (aXq + 1, aXq))
c("v_bfe_u32 v2, v0, 2, 2")
c("v_lshrrev_b32 v3, 2, v0")
c("v_and_b32 v4, 7, v3")
c("v_lshlrev_b32 v4, 5, v4")
c("v_lshl_add_u32 v3, v3, 8, v4")
c("v_and_b32 v4, 3, v0")
c("v_lshl_add_u32 v3, v4, 3, v3")
c("v_add_u32 v%d, %d, v3" % (aV, VRING + 16384))
for db in range(1, 8):
    c("v_xor_b32 v%d, %d, v%d" % (aV + db, db << 5, aV))
c("v_lshl_add_u32 v3, v1, 10, v3")
c("v_add_u32 v%d, %d, v3" % (aWq, STG + 16384))
for db in range(1, 8):
    c("v_xor_b32 v%d, %d, v%d" % (aWq + db, db << 5, aWq))
c("v_mul_u32_u24 v2, 320, v2")
c("v_lshrrev_b32 v3, 5, v0")
c("v_lshl_add_u32 v3, v3, 11, v2")
c("v_and_b32 v4, 1, v1")
c("v_lshl_add_u32 v3, v4, 5, v3")
c("v_and_b32 v4, 1, v0")
c("v_lshl_add_u32 v3, v4, 4, v3")
c("v_bfe_u32 v4, v0, 1, 1")
c("v_lshl_add_u32 v3, v4, 3, v3")
c("s_lshl_b32 s%d, s%d, 5" % (sT0, sG))
c("v_xor_b32 v%d, s%d, v3" % (aO2, sT0))
for nt in range(1, 4):
    c("v_xor_b32 v%d, %d, v%d" % (aO2 + nt, nt << 6, aO2))
c("v_and_b32 v2, 31, v0")
c("s_lshl_b32 s%d, s%d, 5" % (sT0, sWAVE))
c("v_add_u32 v2, s%d, v2" % sT0)
c("v_lshlrev_b32 v%d, 4, v0" % vE)
c("v_cmp_lt_u32 vcc, 111, v2")
c("v_bfrev_b32 v3, 1")
c("v_lshlrev_b32 v2, 10, v2")
c("v_cndmask_b32 v1, 0, v3, vcc")
c("v_or_b32 v%d, v%d, v1" % (vE, vE))
c("v_lshrrev_b32 v1, 5, v0")
c("v_lshl_add_u32 v%d, v1, 4, v2" % vOUT)
c("s_lshl_b32 s%d, s%d, %d" % (sT0, sHN, WSH))
c("s_and_b32 s%d, s%d, %d" % (sT1, sG, (1 << (WSH - 5)) - 1))
c("s_lshl_b32 s%d, s%d, 5" % (sT1, sT1))
c("s_add_u32 s%d, s%d, s%d" % (sOFF, sT0, sT1))
c("s_lshr_b32 s%d, s%d, %d" % (sT1, sG, WSH - 5))
c("s_lshl_b32 s%d, s%d, %d" % (sT1, sT1, WSH + 2))
c("s_add_u32 s%d, s%d, s%d" % (sOFF, sOFF, sT1))
c("v_xor_b32 v1, s%d, v0" % sWGL)
c("v_lshlrev_b32 v1, 11, v1")
c("v_cmp_gt_u32 vcc, 4, v0")
c("v_add_u32 v2, 512, v1")
c("s_lshl_b32 s%d, s%d, 7" % (sT0, sWAVE))
c("v_cndmask_b32 v%d, v3, v2, vcc" % vINFO)
c("v_lshl_add_u32 v2, v0, 2, s%d" % sT0)
c("v_add_u32 v1, v1, v2")
c("s_lshl_b32 s%d, s%d, 11" % (sT1, sWGL))
c("v_add_u32 v2, s%d, v2" % sT1)
c("v_subrev_u32 v%d, 1, v0" % vTM)
c("v_cmp_gt_u32 vcc, 3, v%d" % vTM)
c("s_mov_b32 s%d, %s" % (sCS, f32(CSC)))
c("s_mov_b32 s%d, %s" % (sCS + 1, f32(CSC)))
c("v_cndmask_b32 v%d, v3, v1, vcc" % vM1)
c("v_cndmask_b32 v%d, v3, v2, vcc" % vP1)
for i in range(64):
    c("v_mov_b32 v%d, 0" % (ACC + i))
c("s_mov_b32 s%d, %s" % (sTHR, f32(0.0 if OPT["force_rescale"] else OPT["thr"])))
c("s_waitcnt lgkmcnt(0)")
srd(c, SA, sWS, None, "0x10000000")
c("s_mul_i32 s%d, s%d, 114688" % (sT0, sB))
srd(c, SB, sOUT, sT0, "114688")
c("s_lshl_b32 s%d, s%d, 15" % (sE1, sWGL))
c("s_lshl_b32 s%d, s%d, 13" % (sT0, sWAVE))
c("s_add_u32 s%d, s%d, s%d" % (sE1, sE1, sT0))
c("s_add_u32 s%d, s%d, %d" % (sE1, sE1, E1_OFF))
c("s_lshl_b32 s%d, s%d, 2" % (sT0, sB))
c("s_add_u32 s%d, s%d, s%d" % (sT0, sT0, sHN))
c("s_lshl_b32 s%d, s%d, 18" % (sT0, sT0))
c("s_lshl_b32 s%d, s%d, 10" % (sT1, sWAVE))
c("s_add_u32 s%d, s%d, s%d" % (sT0, sT0, sT1))
c("s_add_u32 s%d, s%d, %d" % (sE2P, sT0, E2_OFF))
c("s_lshl_b32 s%d, s%d, 15" % (sT1, sG))
c("s_add_u32 s%d, s%d, s%d" % (sE2C, sE2P, sT1))
c("s_mov_b32 s%d, %d" % (sT2, sum(((1, -3, 2)[i % 3] + 3) << (3 * i) for i in range(8))))
c("s_mov_b32 s%d, 8" % sCNT)
if OPT["single"]:
    c("s_cmp_eq_u32 s%d, 3" % sWAVE)
    c("s_cbranch_scc1 L_paths")
c.finish(hist=e.ins)


def k_reads(slot_off):
    return ["ds_read_b128 %s, v%d offset:%d" % (vr(KF + 16 * kb + 4 * ks, 4), aK + ks, slot_off + kb * 4096)
            for ks in range(4) for kb in range(2)]


def v_read(db, u, off):
    return "ds_read_b64_tr_b16 %s, v%d offset:%d" % (vr(VF + 4 * db + 2 * u, 2), aV + db, off + u * 4096)


def ex(S, i):
    return "v_exp_f32 v%d, v%d" % (S + i, S + i)


def cvt(S, j):
    return "v_cvt_pk_bf16_f32 v%d, v%d, v%d" % (PK + j, S + 2 * j, S + 2 * j + 1)


def qk(SN, ks, kb, blk, first):
    d = vr(SN + 8 * blk + 4 * kb, 4)
    cc = d if ks else ("0" if first else vr(NM[blk], 4))
    return "%s %s, %s, %s, %s" % (M16, d, vr(KF + 16 * kb + 4 * ks, 4), vr(QF + 16 * blk + 4 * ks, 4), cc)


def pv(db, blk):
    d = vr(ACC + 32 * blk + 4 * db, 4)
    return "%s %s, %s, %s, %s" % (M16, d, vr(VF + 4 * db, 4), vr(PK + 4 * blk, 4), d)


def sum_mfma(blk):
    return "%s %s, %s, %s, %s" % (M16, vr(vL[blk], 4), vr(ONES, 4), vr(PK + 4 * blk, 4), vr(vL[blk], 4))


def max_tree(dst, S, n):
    r = ["v_max3_f32 v%d, v%d, v%d, v%d" % (dst, S, S + 1, S + 2)]
    for i in range(3, n - 1, 2):
        r.append("v_max3_f32 v%d, v%d, v%d, v%d" % (dst, dst, S + i, S + i + 1))
    r.append("v_max_f32 v%d, v%d, v%d" % (dst, dst, S + n - 1))
    return r


def blk_max(b, S, dst, tmp):
    b.add(max_tree(dst, S, 8))
    for perm in ("v_permlane32_swap_b32", "v_permlane16_swap_b32"):
        b("v_mov_b32 v%d, v%d" % (tmp, dst))
        b("%s v%d, v%d" % (perm, tmp, dst))
        b("v_max_f32 v%d, v%d, v%d" % (dst, tmp, dst))


def weave(b, mfmas, gaps):
    assert len(mfmas) == len(gaps)
    for m_, g in zip(mfmas, gaps):
        b.add([x for x in [m_] + list(g) if x is not None])


AREG = {0: aO1, 1: aO3, 2: aO1, 3: aO3}
SBUF = {1: S0, 2: KF, 3: XB}
SEQ = [(j, f, nt) for j in range(3) for f in range(8) for nt in range(4)]
SEQ += [(3, f, nt) for nt in (1, 2, 3, 0) for f in range(8)]


def wbuf(m):
    return (KF if m < 8 else VF) + 4 * (m & 7)


def w_reads(m):
    if m >= len(SEQ):
        return []
    j, f, nt = SEQ[m]
    ks, y = f >> 1, f & 1
    return ["ds_read_b64_tr_b16 %s, v%d offset:%d" % (vr(wbuf(m) + 2 * u, 2), AREG[j] + nt,
                                                   ks * 8192 + u * 4096 + y * 1024) for u in range(2)]


def bfrag(j, f):
    return OB + 16 * (f & 1) + 4 * (f >> 1) if j == 0 else SBUF[j] + 4 * f


def publish(f, lo, hi, fl):
    return "buffer_store_dwordx4 %s, v%d, s[%d:%d], s%d offen offset:%d %s" % (vr(bfrag(0, f), 4), vE, SA, SA + 3,
                                                                           lo if f < 4 else hi, (f & 3) * 1024, fl)


rare = []


def compute_path(sfx, nb, out):
    B = range(nb)

    def blk(i, x):
        return x if i < nb else None

    def mk(name):
        bb = Block(name + (" (two query blocks)" if nb == 2 else " (one query block: wave 3)"))
        out.append(bb)
        return bb

    def q_reads(s_):
        W = VF if s_ == 0 else S0
        r = [blk(i, "ds_read_b128 %s, v%d offset:%d" % (vr(XB + 8 * s_ + 4 * i, 4), aXq + s_, i * 2048)) for i in range(2)]
        for db in range(8):
            for u in range(2):
                r.append("ds_read_b64_tr_b16 %s, v%d offset:%d" % (vr(W + 4 * db + 2 * u, 2), aWq + db, s_ * 8192 + u * 1024))
        return r

    def q_mfmas(s_):
        W = VF if s_ == 0 else S0
        r = []
        for db in range(8):
            for i in range(2):
                d = vr(ACC + 32 * i + 4 * db, 4)
                r.append(blk(i, "%s %s, %s, %s, %s" % (M16, d, vr(W + 4 * db, 4), vr(XB + 8 * s_ + 4 * i, 4), d)))
        return r

    q0 = mk("Q projection: first reads")
    q0("L_path%s:" % sfx)
    q0("s_barrier")
    stamp(q0, 1)
    q0.add([x for x in q_reads(0) if x])
    lgq0, _ = q0.finish(hist=c.ins)
    ql = mk("Q projection")
    ql("L_q%s:" % sfx)
    tabq = ["s_and_b32 s%d, s%d, 7" % (sDEL, sT2), "s_lshr_b32 s%d, s%d, 3" % (sT2, sT2),
            "s_sub_u32 s%d, s%d, 3" % (sDEL, sDEL), "s_lshl_b32 s%d, s%d, 15" % (sDEL, sDEL)]
    adv = ["v_add_u32 v%d, s%d, v%d" % (r_, sDEL, r_) for r_ in range(aWq, aWq + 10)]
    gaps = spread(q_reads(1), [2, 1, 2, 1, 2, 1, 1, 1, 1, 1, 1, 1, 1, 1, 1, 0])
    gaps[1] += tabq[:2]
    gaps[3] += tabq[2:]
    weave(ql, q_mfmas(0), gaps)
    m1 = q_mfmas(1)
    weave(ql, m1[:6], spread(adv, [2, 2, 2, 2, 1, 1]))
    ql("s_waitcnt lgkmcnt(0)")
    ql("s_barrier")
    weave(ql, m1[6:], spread(q_reads(0), [2, 2, 2, 2, 2, 2, 2, 2, 1, 1]))
    loop_end(ql, "L_q%s" % sfx)
    lgq1, _ = ql.finish(hist=q0.ins, lgq=lgq0)
    assert STAMPS or lgq1 == lgq0[-len(lgq1):], (lgq0, lgq1)
    pad_hazards(ql.ins, hist=ql.ins, check_only=True, where="q loop back edge")

    q = mk("attention set-up")
    stamp(q, 2)
    q("s_waitcnt lgkmcnt(0)")
    q.add(k_reads(0))
    q("s_waitcnt vmcnt(0)")

    def conv(ks):
        r = []
        for i in B:
            a0, f0 = ACC + 32 * i + 8 * ks, QF + 16 * i + 4 * ks
            if ks == 0:
                r += ["v_pk_mul_f32 %s, %s, s[%d:%d]" % (vr(a0 + 2 * j, 2), vr(a0 + 2 * j, 2), sCS, sCS + 1) for j in range(4)]
            else:
                r += ["v_mul_f32 v%d, s%d, v%d" % (a0 + j, sCS, a0 + j) for j in range(8)]
            r += ["v_cvt_pk_bf16_f32 v%d, v%d, v%d" % (f0 + j, a0 + 2 * j, a0 + 2 * j + 1) for j in range(4)]
        for i in B:
            f0 = QF + 16 * i + 4 * ks
            r += ["v_permlane16_swap_b32 v%d, v%d" % (f0 + j, f0 + 2 + j) for j in range(2)]
        return r

    k1 = k_reads(8192)
    init = ["v_mov_b32 v%d, 0" % (vL[0] + i) for i in range(8)] + ["v_mov_b32 v%d, 0x3f803f80" % (ONES + i) for i in range(4)]
    q.add(conv(0))
    q.add(init[:4])
    qk0 = [blk(i, qk(S0, ks, kb, i, True)) for ks in range(4) for kb in range(2) for i in range(2)]
    for ks in range(3):
        g = spread(conv(ks + 1), [7, 7, 7, 7] if nb == 2 else [4, 3, 4, 3])
        g[2].insert(0, k1[2 * ks])
        if ks:
            g[0].insert(0, k1[2 * ks - 1])
        weave(q, qk0[4 * ks:4 * ks + 4], g)
    weave(q, qk0[12:], [[k1[5]] + init[4:6], init[6:8], [k1[6]] + init[8:10], init[10:]])
    z = vr(vL[0], 4)
    weave(q, [blk(i >> 1, "%s %s, %s, %s, 0" % (M32, vr(ACC + 16 * i, 16), z, z)) for i in range(4)], [[k1[7]], [], [], []])
    for ks in range(4):
        q("v_add_u32 v%d, 16384, v%d" % (aK + ks, aK + ks))
    if nb == 1:
        for i in range(16):
            q("v_mov_b32 v%d, 0" % (OB + 16 + i))
    chains = []
    for i in B:
        tb = Block()
        blk_max(tb, S0 + 8 * i, *((1, 2) if i == 0 else (vTM, NM[1] + 1)))
        tb("v_sub_f32 v%d, 0, v%d" % (NM[i], 1 if i == 0 else vTM))
        if i == 1 and not OPT["single"]:
            tb("v_min_f32 v%d, s%d, v%d" % (NM[i], sT3, NM[i]))
        for j in range(1, 4):
            tb("v_mov_b32 v%d, v%d" % (NM[i] + j, NM[i]))
        for j in range(8):
            tb("v_add_f32 v%d, v%d, v%d" % (S0 + 8 * i + j, S0 + 8 * i + j, NM[i]))
        chains.append(tb.ins)
    if not OPT["single"]:
        q("s_cmp_eq_u32 s%d, 3" % sWAVE)
        q("s_mov_b32 s%d, %s" % (sT0, f32(3e38)))
        q("s_cselect_b32 s%d, %s, s%d" % (sT3, f32(-1e30), sT0))
    for i in range(max(map(len, chains))):
        q.add([ch[i] for ch in chains if i < len(ch)])
    KSEQ = [1, 2, 0, 1, 2, 0, 1, 2, 0, 1, 0, 1, 0, 1, 0, 0]
    VSEQ = [1, 2, 0, 1, 2, 0, 1, 2, 0, 1, 2, 1, 2, 1, 2, 1]
    for tab, seq in ((sTABK, KSEQ), (sTABV, VSEQ)):
        q("s_mov_b32 s%d, 0x%x" % (tab, sum((seq[i + 1] - seq[i] + 2) << (2 * i) for i in range(15))))
    q("s_mov_b32 s%d, 15" % sCNT)
    stamp(q, 3)
    if STAMPS == 6:
        q("s_memtime s[92:93]")
    q.finish(hist=ql.ins)

    def rescale(tag, SN):
        r = Block("the running max rises by more than the threshold: move to the true max (%s)" % tag)
        r("L_resc%s:" % tag)
        r("s_nop 15")
        for i in B:
            blk_max(r, SN + 8 * i, 1, 2)
            r("v_max_f32 v1, 0, v1")
            r("v_sub_f32 v2, 0, v1")
            r("v_exp_f32 v2, v2")
            for j in range(4):
                r("v_sub_f32 v%d, v%d, v1" % (NM[i] + j, NM[i] + j))
            for j in range(8):
                r("v_sub_f32 v%d, v%d, v1" % (SN + 8 * i + j, SN + 8 * i + j))
            for j in range(4):
                r("v_mul_f32 v%d, v%d, v2" % (vL[i] + j, vL[i] + j))
            for j in range(32):
                r("v_mul_f32 v%d, v%d, v2" % (ACC + 32 * i + j, ACC + 32 * i + j))
        r("s_nop 1")
        r("s_branch L_back%s" % tag)
        r.finish()
        rare.append(r)

    def epoch(b, par, kread, adv, tag, head=()):
        S, SN = (S0, S1) if par == 0 else (S1, S0)
        off = par * 8192
        vrd = [v_read(db, u, off) for db in range(8) for u in range(2)]
        kr = k_reads(off) if kread else [None] * 8
        b("s_waitcnt lgkmcnt(0)")
        b("s_barrier")
        b.add(head)
        GA = "e0|t0 t1|e1|t2 c0|e2|t3 t4|e3|t5 c1|e4|t6 t7|e5|t8 c2|e6|t9 e7|t10 c3|t11 e8"
        GB = "t12 t13|t14 e9|t15 e10|c4 e11|e12|c5 e13|e14|c6 e15|k0 c7 m0 m1|k1 k2|k3 m2|k4 m3|k5 m4|k6 m5|k7 m6|m7 a|x a|a a"
        mx = max_tree(vTM, SN, 8 * nb) + [None] * 4
        adds = []
        if adv:
            adds = ["v_add_u32 v%d, s%d, v%d" % (aV + i, sDELV, aV + i) for i in range(8)] + \
                   ["v_add_u32 v%d, s%d, v%d" % (aK + i, sDEL, aK + i) for i in range(4)]

        def ins(tok):
            k, n = tok[0], int(tok[1:]) if len(tok) > 1 else 0
            if k == "a":
                return adds.pop(0) if adds else None
            if k == "x":
                return "v_cmp_lt_f32 vcc, s%d, v%d" % (sTHR, vTM)
            return {"e": lambda: blk(n >> 3, ex(S, n)), "t": lambda: vrd[n], "c": lambda: blk(n >> 2, cvt(S, n)),
                    "k": lambda: kr[n], "m": lambda: mx[n]}[k]()
        ga = [[ins(x) for x in g.split()] for g in GA.split("|")]
        if adv:
            for tab, dl, gi in ((sTABV, sDELV, 1), (sTABK, sDEL, 5)):
                ga[gi] += ["s_and_b32 s%d, s%d, 3" % (dl, tab), "s_lshr_b32 s%d, s%d, 2" % (tab, tab)]
                ga[gi + 2] += ["s_sub_u32 s%d, s%d, 2" % (dl, dl), "s_lshl_b32 s%d, s%d, 14" % (dl, dl)]
        weave(b, [blk(i, qk(SN, ks, kb, i, False)) for ks in range(4) for kb in range(2) for i in range(2)], ga)
        order = [pv(db, 0) for db in range(8)] + [sum_mfma(0)] + [blk(1, pv(db, 1)) for db in range(8)] + [blk(1, sum_mfma(1))]
        gb = [[ins(x) for x in g.split()] for g in GB.split("|")]
        gb[-1] += adds[:]
        b("s_waitcnt lgkmcnt(4)")
        weave(b, order[:4], gb[:4])
        b("s_waitcnt lgkmcnt(4)")
        weave(b, order[4:], gb[4:])
        b("s_cbranch_vccnz L_resc%s" % tag)
        b("L_back%s:" % tag)
        rescale(tag, SN)

    lp = mk("attention loop: tiles 0..29")
    lp("L_att%s:" % sfx)
    epoch(lp, 0, True, False, "a" + sfx)
    epoch(lp, 1, True, True, "b" + sfx,
          head=["s_cmp_lg_u32 s%d, 1" % sCNT, "s_cbranch_scc1 L_noinfo%s" % sfx,
                "buffer_load_dword v%d, v%d, s[%d:%d], 0 offen sc1" % (vINF, vINFO, SA, SA + 3), "L_noinfo%s:" % sfx])
    loop_end(lp, "L_att%s" % sfx)
    lp.finish(hist=q.ins)
    pad_hazards(lp.ins, hist=lp.ins, check_only=True, where="loop back edge")

    t = mk("tiles 30, 31; o = O / l leaves for the other heads of the group")
    if STAMPS == 6:
        t("s_memtime s[94:95]")
        t("s_waitcnt lgkmcnt(0)")
    stamp(t, 4)
    epoch(t, 0, False, False, "c" + sfx)
    S = S1
    for nt in range(4):
        t("v_add_u32 v%d, %d, v%d" % (aO1 + nt, STG, aO2 + nt))
    for m in range(8):
        t.add(w_reads(m))
    for i in range(8 * nb):
        t(ex(S, i))
    for j in range(4 * nb):
        t(cvt(S, j))
    for i in B:
        t(sum_mfma(i))
    t("v_readlane_b32 s%d, v%d, 0" % (sT0, vINF))
    t("v_mov_b32 v%d, 1" % NM[0])
    t("s_add_u32 s%d, s%d, 4096" % (sT2, sE1))
    t("v_cmp_eq_u32 vcc, s%d, v%d" % (sT0, vINF))
    t("s_nop 0")
    t("s_and_b32 s%d, vcc_lo, 15" % sT0)
    t("s_cmp_eq_u32 s%d, %d" % (sT0, 15 if OPT["fast"] else 16))
    t("s_cselect_b32 s%d, s%d, 0x%x" % (sE1F, sE1, OOB))
    t("s_add_u32 s%d, s%d, 4096" % (sE1F4, sE1F))
    if not OPT["single"]:
        for i in B:
            t("v_max_f32 v%d, %s, v%d" % (vL[i], f32(1e-30), vL[i]))
    for i in B:
        t("v_rcp_f32 v%d, v%d" % (vL[i], vL[i]))
    for i in B:
        for j in range(4):
            t("v_pk_mul_f32 %s, %s, %s op_sel_hi:[1,0]" % (vr(S + 8 * i + 2 * j, 2), vr(S + 8 * i + 2 * j, 2), vr(vL[i], 2)))
    for i in B:
        for j in range(16):
            a0 = ACC + 32 * i + 2 * j
            t("v_pk_mul_f32 %s, %s, %s op_sel_hi:[1,0]" % (vr(a0, 2), vr(a0, 2), vr(vL[i], 2)))
    for j in range(4 * nb):
        t(cvt(S, j))
    t("s_waitcnt lgkmcnt(0)")
    t("s_barrier")
    stamp(t, 5)
    cst(t, 2)
    vrd = [v_read(db, u, 8192) for db in range(8) for u in range(2)]

    def pack(ks):
        return [blk(i, "v_cvt_pk_bf16_f32 v%d, v%d, v%d" % (OB + 16 * i + 4 * ks + j, ACC + 32 * i + 8 * ks + 2 * j, ACC + 32 * i + 8 * ks + 2 * j + 1))
                for i in range(2) for j in range(4)]

    def swaps(ks):
        return ["v_permlane16_swap_b32 v%d, v%d" % (OB + 4 * ks + j, OB + 16 + 4 * ks + j) for j in range(4)]

    t.add(vrd[0:8])
    p0, p1, p2 = pack(0), pack(1), pack(2)
    g = [vrd[8:10], vrd[10:12], vrd[12:14], vrd[14:16], [], [], p0[0:2], p0[2:4], p0[4:6], p0[6:8], p1[0:2] + swaps(0)[0:1],
         p1[2:4] + swaps(0)[1:2], p1[4:6] + swaps(0)[2:3], p1[6:8] + swaps(0)[3:4], p2[0:3], p2[3:8]]
    weave(t, [blk(i, pv(db, i)) for db in range(8) for i in range(2)], g)
    t.add([publish(f, sE1F, sE1F4, "") for f in (0, 1)])
    t.add(swaps(1))
    t.add([publish(f, sE1F, sE1F4, "") for f in (2, 3)])
    t.add(swaps(2))
    t.add([x for x in pack(3) if x])
    t.add([publish(f, sE1F, sE1F4, "") for f in (4, 5)])
    t.add(swaps(3))
    t.add([publish(f, sE1F, sE1F4, "") for f in (6, 7)])
    if nb == 1:
        t("s_branch L_join")
    lgq, vmq = t.finish(hist=lp.ins, vmq=[{vINF}])
    assert not lgq or STAMPS
    return t, vmq


side = []
tA, vmqA = compute_path("d", 2, blocks)
if OPT["single"]:
    tB, vmqB = compute_path("s", 1, side)
    assert vmqA == vmqB

t = new("output projection")
t("L_join:")
t("s_cmp_lg_u32 s%d, 0x%x" % (sE1F, OOB))
t("s_cbranch_scc1 L_pubj")
t.add([uncounted(publish(f, sE1, sT2, "sc1")) for f in range(8)])
t("L_pubj:")


def o_mfma(b, m, extra=()):
    j, f, nt = SEQ[m]
    b("%s %s, %s, %s, %s" % (M32, vr(ACC + 16 * nt, 16), vr(wbuf(m), 4), vr(bfrag(j, f), 4),
                             "0" if (j == 0 and f == 0) else vr(ACC + 16 * nt, 16)))
    b.add(w_reads(m + 8))
    b.add(extra)


flag = "buffer_store_dword v%d, v%d, s[%d:%d], 0 offen" % (NM[0], vM1, SA, SA + 3)
pollld = "buffer_load_dword v%d, v%d, s[%d:%d], 0 offen sc1" % (vTM, vP1, SA, SA + 3)


def sib_load(p, f):
    return "buffer_load_dwordx4 %s, v%d, s[%d:%d], s%d offen offset:%d sc1" % (vr(SBUF[p] + 4 * f, 4), vE, SA, SA + 3,
                                                                           sP if f < 4 else sP4, (f & 3) * 1024)


def try_head(b, p):
    b("v_cmp_eq_u32 vcc, 1, v%d" % vTM)
    b("s_mov_b32 s%d, 0x%x" % (sP, OOB))
    b("s_xor_b32 s%d, s%d, %d" % (sT0, sE1, p << 15))
    b("s_bitcmp1_b32 vcc_lo, %d" % p)
    b("s_cselect_b32 s%d, s%d, s%d" % (sP, sT0, sP))
    b("s_add_u32 s%d, s%d, 4096" % (sP4, sP))


NEARLY = 4


def need_head(b, p):
    b("s_cmp_lg_u32 s%d, 0x%x" % (sP, OOB))
    b("s_cbranch_scc1 L_dec%dd" % p)
    b("s_mov_b32 s%d, 0x%x" % (sCNT, SPIN))
    b("L_dec%d:" % p)
    b(pollld)
    b("s_waitcnt vmcnt(0)")
    try_head(b, p)
    b("s_sub_u32 s%d, s%d, 1" % (sCNT, sCNT))
    b("s_cbranch_scc1 L_dec%dl" % p)
    b("s_cmp_eq_u32 s%d, 0x%x" % (sP, OOB))
    b("s_cbranch_scc1 L_dec%d" % p)
    b("L_dec%dl:" % p)
    b.add([sib_load(p, f) for f in range(8 if p == 3 else NEARLY)])
    b("L_dec%dd:" % p)


def send(j):
    a0 = ACC + 8 * j
    return (["s_xor_b32 s%d, s%d, %d" % (sT0, sG, j), "s_lshl_b32 s%d, s%d, 15" % (sT0, sT0),
             "s_add_u32 s%d, s%d, s%d" % (sT0, sT0, sE2P), "s_add_u32 s%d, s%d, %d" % (sT0, sT0, j * 4096)],
            ["v_cvt_pk_bf16_f32 v%d, v%d, v%d" % (a0 + i, a0 + 2 * i, a0 + 2 * i + 1) for i in range(4)],
            ["buffer_store_dwordx4 %s, v%d, s[%d:%d], s%d offen sc1" % (vr(a0, 4), vE, SA, SA + 3, sT0)])


def fetch(j):
    return ["s_add_u32 s%d, s%d, %d" % (sT3, sE2C, j * 4096),
            "buffer_load_dwordx4 %s, v%d, s[%d:%d], s%d offen sc1" % (vr(PB + 4 * (j - 1), 4), vE, SA, SA + 3, sT3)]


extra = {m: [] for m in range(128)}
vM2, vTM2 = NM[1], NM[1] + 1
poll2 = "buffer_load_dword v%%d, v%d, s[%d:%d], 0 offen sc1" % (vP2, SA, SA + 3)
extra[1] += ["s_lshl_b32 s%d, s%d, 7" % (sT0, sWAVE), "s_add_u32 s%d, s%d, 1024" % (sT0, sT0),
             "v_lshl_add_u32 v%d, v0, 2, s%d" % (vP2, sT0)]
extra[2] += ["v_lshlrev_b32 v1, 2, v0", "v_xor_b32 v1, s%d, v1" % sWGL, "v_lshl_add_u32 v%d, v1, 11, v%d" % (vM2, vP2)]
extra[3] += ["s_lshl_b32 s%d, s%d, 11" % (sT0, sWGL), "v_add_u32 v%d, s%d, v%d" % (vP2, sT0, vP2), "v_subrev_u32 v1, 1, v0"]
extra[4] += ["v_cmp_gt_u32 vcc, 7, v1", "v_bfrev_b32 v1, 1", "s_nop 0"]
extra[5] += ["v_cndmask_b32 v%d, v1, v%d, vcc" % (vP2, vP2), "v_cndmask_b32 v%d, v1, v%d, vcc" % (vM2, vM2)]
extra[6] += ["s_mov_b32 s%d, 0x3f80" % sLO, "s_mov_b32 s%d, 0x3f800000" % sHI]
for p, base in ((1, STG + 32768), (2, XREG), (3, 0)):
    for nt in range(4):
        extra[32 * p - 14 + nt].append("v_add_u32 v%d, %d, v%d" % (AREG[p] + nt, base, aO2 + nt) if base else
                                       "v_mov_b32 v%d, v%d" % (AREG[p] + nt, aO2 + nt))
for i, nt in enumerate((1, 2, 3)):
    base = 104 + 8 * i
    for k_, j in enumerate((2 * nt, 2 * nt + 1)):
        for d_, part in enumerate(send(j)):
            extra[base + 2 + d_ + 3 * k_] += part
for p in (1, 2):
    for f in range(8):
        extra[32 * p - 16 + 2 * f].append(uncounted(sib_load(p, f)) if f < NEARLY else sib_load(p, f))
for f in range(8):
    extra[72 + 2 * f].append(uncounted(sib_load(3, f)))
extra[38].append(pollld)
extra[62].append(pollld)
t(pollld)
stamp(t, 6)
cst(t, 3)
for m in range(128):
    if m == OPT["fat"]:
        t("s_barrier")
    if m == OPT["flagat"]:
        cst(t, 4)
        t("s_waitcnt vmcnt(0)")
        cst(t, 5)
        t("s_cmp_lg_u32 s%d, 0x%x" % (sE1F, OOB))
        t("s_cbranch_scc1 L_flgf")
        t(flag + " sc1")
        t("s_branch L_flgj")
        t("L_flgf:")
        t.add([uncounted(flag)])
        t("L_flgj:")
        stamp(t, 8)
    if m in (16, 48, 72):
        t("s_waitcnt vmcnt(%d)" % (1 if m == 16 else 0))
        try_head(t, {16: 1, 48: 2, 72: 3}[m])
    if m in (24, 56, 88):
        need_head(t, m // 32 + 1)
        cst(t, 6 + m // 32)
        if m == 24:
            stamp(t, 7)
        if m == 88:
            stamp(t, 9)
    o_mfma(t, m, extra[m])
stamp(t, 10)
cst(t, 9)
for part in send(1):
    t.add(part)
t(poll2 % vTM)
t("s_waitcnt vmcnt(1)")
t("buffer_store_dword v%d, v%d, s[%d:%d], 0 offen sc1" % (NM[0], vM2, SA, SA + 3))
stamp(t, 11)
cst(t, 10)
t(poll2 % vTM2)
t("s_mov_b32 s%d, 0x%x" % (sCNT, SPIN))
t("s_waitcnt vmcnt(2)")
t("L_poll2:")
t("v_cmp_eq_u32 vcc, 1, v%d" % vTM)
t("s_cmp_eq_u32 vcc_lo, 0xfe")
t("s_cbranch_scc1 L_poll2e")
t.add([uncounted(poll2 % vTM)])
t("s_waitcnt vmcnt(1)")
t.add([uncounted("v_cmp_eq_u32 vcc, 1, v%d" % vTM2)])
t("s_nop 0")
t("s_cmp_eq_u32 vcc_lo, 0xfe")
t("s_cbranch_scc1 L_poll2e")
t.add([uncounted(poll2 % vTM2)])
t("s_sub_u32 s%d, s%d, 1" % (sCNT, sCNT))
t("s_waitcnt vmcnt(1)")
t("s_cbranch_scc0 L_poll2")
t("L_poll2e:")
stamp(t, 12)
cst(t, 11)
for j in range(1, 8):
    t.add(fetch(j))
for j in range(1, 8):
    for i in range(4):
        p = PB + 4 * (j - 1) + i
        t("v_dot2_f32_bf16 v%d, v%d, s%d, v%d" % (ACC + 2 * i, p, sLO, ACC + 2 * i))
        t("v_dot2_f32_bf16 v%d, v%d, s%d, v%d" % (ACC + 2 * i + 1, p, sHI, ACC + 2 * i + 1))
t("s_nop 2")
for j in range(4):
    t("v_cvt_pk_bf16_f32 v%d, v%d, v%d" % (ACC + 8 + j, ACC + 2 * j, ACC + 2 * j + 1))
t("buffer_store_dwordx4 %s, v%d, s[%d:%d], s%d offen" % (vr(ACC + 8, 4), vOUT, SB, SB + 3, sOFF))
if STAMPS:
    cst(t, 12)
    t("s_waitcnt vmcnt(0)")
    cst(t, 13)
    stamp(t, 13)
    if STAMPS != 6:
        t("s_memtime s[94:95]")
    t("s_waitcnt lgkmcnt(0)")
    t("s_sub_u32 s%d, s94, s92" % (sSTAMP + 28))
    t("s_getreg_b32 s%d, hwreg(HW_REG_XCC_ID, 0, 4)" % (sSTAMP + 30))
    t("s_getreg_b32 s%d, hwreg(HW_REG_HW_ID)" % sT0)
    t("s_lshl_b32 s%d, s%d, 4" % (sT0, sT0))
    t("s_or_b32 s%d, s%d, s%d" % (sSTAMP + 30, sSTAMP + 30, sT0))
    for i in range(16):
        t("v_mov_b32 v%d, s%d" % (ACC + 16 + i, sSTAMP + 2 * i))
    t("s_lshl_b32 s%d, s2, 2" % sT0)
    t("s_add_u32 s%d, s%d, s%d" % (sT0, sT0, sWAVE))
    t("s_lshl_b32 s%d, s%d, 6" % (sT0, sT0))
    t("s_add_u32 s%d, s%d, %d" % (sT0, sT0, ST_OFF))
    t("v_mov_b32 v1, 0")
    t("s_mov_b64 exec, 1")
    for i in range(4):
        t("buffer_store_dwordx4 %s, v1, s[%d:%d], s%d offen offset:%d" % (vr(ACC + 16 + 4 * i, 4), SA, SA + 3, sT0, 16 * i))
t("L_end:")
t("s_endpgm")
t.finish(hist=tA.ins, vmq=vmqA)
if OPT["single"]:
    pad_hazards(t.ins[:60], hist=tB.ins, check_only=True, where="join from the one-block path")
blocks += side
blocks.append(Block("seldom taken"))
blocks[-1]("L_codeend:")
blocks += rare

hdr = open("standalone__mha_block_cached__near_ridge.s.ref").read().split("; Override launch")[0]
out = [hdr.rstrip()]
out.append("""; Fused Q projection + attention + output projection, one workgroup (8 waves) per (batch, head), one per CU.
;   over the eight groups (partial sums exchanged through d_ws).""")
out.append("; @launch grid=(256,1,1) block=(512,1,1) lds=163840")
out.append('.amdgcn_target "amdgcn-amd-amdhsa--gfx950"')
out.append(".text")
out.append(".globl " + KNAME)
out.append(".p2align 8")
out.append(".type %s,@function" % KNAME)
out.append(KNAME + ":")
for b in blocks:
    out.append("; ---- %s ----" % b.name)
    out.append(b.text())
out.append(".p2align 8")
out.append(".fill 64, 4, 0xbf800000")
out.append('.section .rodata,"a"')
out.append(".p2align 6")
out.append(".amdhsa_kernel " + KNAME)
out.append("""  .amdhsa_next_free_vgpr 256
  .amdhsa_next_free_sgpr 102
  .amdhsa_accum_offset 256
  .amdhsa_group_segment_fixed_size 0
  .amdhsa_kernarg_size 64
  .amdhsa_user_sgpr_count 2
  .amdhsa_user_sgpr_kernarg_segment_ptr 1
  .amdhsa_system_sgpr_workgroup_id_x 1
.end_amdhsa_kernel""")
print("\n".join(out))
```

```python
import sys, struct, math
from asmgen import *

OPT = dict(stamps=0, nt_kv="nt", nt_q="", nt_wo="nt", thr=8.0, force_rescale=0, codepf=1, fast=1,
           early="0.1.2.3", k_at="5.6.7.8", v_at="6.7.8.8", thr0=8, rotmask=6, fat=6, flagat=12, single=1,
           noload=0, map=0, rot=0, wseg=256)
for a in sys.argv[1:]:
    k, v = a.split("=")
    OPT[k] = type(OPT[k])(v) if not isinstance(OPT[k], str) else v.replace("_", " ").strip()
STAMPS = OPT["stamps"]
KNAME = "standalone__mha_block_cached__near_ridge_kernel"


def f32(x):
    return "0x%08x" % struct.unpack("<I", struct.pack("<f", x))[0]


CSC = math.log2(math.e) / math.sqrt(128.0)
M16 = "v_mfma_f32_16x16x32_bf16"
M32 = "v_mfma_f32_32x32x16_bf16"
OOB = 0x40000000
SPIN = 0x100000

KRING, VRING, STG, XREG = 0, 49152, 98304, 32768
E1_OFF, E2_OFF, ST_OFF = 0x100000, 0x900000, 0x4000000
sX, sK, sV, sWQ, sWO, sOUT, sDBG, sWS = 4, 6, 8, 10, 12, 14, 16, 18
sWAVE, sG, sB, sHN, sH, sWGL = 20, 21, 22, 23, 24, 25
sBEG, sEND = 26, 27
SA, SB, SC = 28, 32, 36
sOFF, sLDS, sCNT, sT0, sT1, sT2 = 40, 41, 42, 43, 44, 45
sCS, sDEL, sE1, sE2P, sE2C, sTHR = 46, 48, 49, 50, 51, 52
sT3, sTABK, sTABV, sDELV = 53, 54, 55, 56
sP, sP4, sE1F, sE1F4, sLO, sHI = 57, 58, 59, 60, 61, 62
sNXT, sA, sVM, sLIM = 54, 55, 56, 57
sSTAMP = 64
vP2, vP1, vE, vLO, vTM, vOUT = 2, 3, 4, 5, 6, 7
aK, aW, aV = 8, 12, 16
NM = (24, 28)
ACC, QF, S0, S1, KF, VF, XB = 32, 96, 128, 144, 160, 192, 224
PK = XB
vL = (232, 236)
vM1, vINFO, vINF, ONES, vDUM = 240, 242, 243, 244, 251
aWq, aXq = 96, 104
aO1, aO2, aO3 = aK, aW, aV
OB = PB = QF


def cst(b, idx):
    if STAMPS == 7:
        b("s_memtime s[%d:%d]" % (sSTAMP + 2 * idx, sSTAMP + 2 * idx + 1))


def stamp(b, idx):
    if STAMPS == 7:
        if idx == 5:
            b("s_memrealtime s[%d:%d]" % (sSTAMP + 2, sSTAMP + 3))
    elif STAMPS == 8:
        if idx in (3, 5, 10, 13):
            b("s_memrealtime s[%d:%d]" % (sSTAMP + 2 * idx, sSTAMP + 2 * idx + 1))
    elif STAMPS:
        b("s_memrealtime s[%d:%d]" % (sSTAMP + 2 * idx, sSTAMP + 2 * idx + 1))
        b("s_waitcnt lgkmcnt(0)")


def srd(b, dst, ptr, off_sreg, size):
    if off_sreg is None:
        b("s_mov_b32 s%d, s%d" % (dst, ptr))
        b("s_mov_b32 s%d, s%d" % (dst + 1, ptr + 1))
    else:
        b("s_add_u32 s%d, s%d, s%d" % (dst, ptr, off_sreg))
        b("s_addc_u32 s%d, s%d, 0" % (dst + 1, ptr + 1))
    b("s_mov_b32 s%d, %s" % (dst + 2, size))
    b("s_mov_b32 s%d, 0x20000" % (dst + 3))


def dma_group(b, S, voffs, soff, flags, n=4):
    for p in range(n):
        o = " offset:%d" % (p * 1024) if p else ""
        b("buffer_load_dwordx4 v%d, s[%d:%d], s%d offen%s %s lds" % (voffs[p], S, S + 3, soff, o, flags))


def loop_begin(b, label, n):
    b("s_mov_b32 s%d, %d" % (sCNT, n))
    b(label + ":")


def loop_end(b, label):
    b("s_sub_u32 s%d, s%d, 1" % (sCNT, sCNT))
    b("s_cmp_lg_u32 s%d, 0" % sCNT)
    b("s_cbranch_scc1 " + label)


def spread(items, counts):
    out, k = [], 0
    for n in counts:
        out.append(items[k:k + n])
        k += n
    assert k == len(items)
    return out


def uncounted(x):
    i_ = parse(x)
    i_.kind = "comment"
    i_.n = 0
    return i_


blocks = []


def new(name):
    b = Block(name)
    blocks.append(b)
    return b


e = new("entry: workgroup -> (batch b, head group g, head hn in group); waves 0-3 compute, 4-7 load")
e("L_start:")
e("s_cmp_ge_u32 s2, 256")
e("s_cbranch_scc1 L_end")
e("s_load_dwordx16 s[4:19], s[0:1], 0")
if STAMPS:
    e("s_memrealtime s[%d:%d]" % (sSTAMP, sSTAMP + 1))
    e("s_memtime s[92:93]")
e("v_lshrrev_b32 v1, 6, v0")
e("v_and_b32 v0, 63, v0")
e("v_readfirstlane_b32 s%d, v1" % sWAVE)
e("s_and_b32 s%d, s2, 7" % sG)
if OPT["map"] == 0:
    e("s_lshr_b32 s%d, s2, 5" % sB)
    e("s_lshr_b32 s%d, s2, 3" % sHN)
    e("s_and_b32 s%d, s%d, 3" % (sHN, sHN))
else:
    e("s_lshr_b32 s%d, s2, 6" % sHN)
    e("s_lshr_b32 s%d, s2, 3" % sB)
    e("s_and_b32 s%d, s%d, 7" % (sB, sB))
e("s_lshl_b32 s%d, s%d, 2" % (sH, sG))
e("s_add_u32 s%d, s%d, s%d" % (sH, sH, sHN))
e("s_lshl_b32 s%d, s%d, 5" % (sWGL, sB))
e("s_add_u32 s%d, s%d, s%d" % (sWGL, sWGL, sH))
e("s_cmp_lt_u32 s%d, 4" % sWAVE)
e("s_cbranch_scc1 L_compute")
e("v_lshrrev_b32 v1, 4, v0")
e("v_and_b32 v3, 15, v0")
e("s_cmp_lt_u32 s%d, 6" % sWAVE)
e("s_cbranch_scc1 L_ldkv")
e.finish()

WOV = [14, 15, 16, 17]
WSH = {256: 8, 128: 7, 64: 6}[OPT["wseg"]]


def wo_setup(b):
    b("v_lshlrev_b32 v2, 2, v1")
    b("v_xor_b32 v2, v2, v3")
    if WSH < 8:
        b("v_lshrrev_b32 v4, %d, v2" % (WSH - 4))
        b("v_and_b32 v2, %d, v2" % ((1 << (WSH - 4)) - 1))
        b("v_lshl_add_u32 v2, v4, %d, v2" % (WSH - 2))
    b("v_lshlrev_b32 v2, 4, v2")
    b("v_lshl_add_u32 v14, v1, 10, v2")
    b("v_add_u32 v15, 3072, v14")
    b("v_add_u32 v16, 6144, v14")
    b("v_add_u32 v17, 9216, v14")
    b("s_lshl_b32 s%d, s%d, 19" % (sT0, sG))
    b("s_lshl_b32 s%d, s%d, %d" % (sT1, sHN, WSH))
    b("s_add_u32 s%d, s%d, s%d" % (sT0, sT0, sT1))
    b("s_sub_u32 s%d, 0x400000, s%d" % (sT1, sT0))
    srd(b, SB, sWO, sT0, "s%d" % sT1)


def kv_tile(b, voffs, skip=False):
    if skip:
        return
    b("s_mov_b32 m0, s%d" % sLDS)
    b("s_add_u32 s%d, s%d, 4096" % (sT0, sLDS))
    dma_group(b, SA, voffs, sOFF, OPT["nt_kv"])
    b("s_mov_b32 m0, s%d" % sT0)
    b("s_add_u32 s%d, s%d, 4096" % (sOFF, sOFF))
    dma_group(b, SA, voffs, sOFF, OPT["nt_kv"])
    b("s_add_u32 s%d, s%d, 4096" % (sOFF, sOFF))
    if OPT["rot"]:
        b("s_and_b32 s%d, s%d, 0x3ffff" % (sOFF, sOFF))
    b("s_add_u32 s%d, s%d, 8192" % (sLDS, sLDS))
    b("s_cmp_eq_u32 s%d, s%d" % (sLDS, sEND))
    b("s_cselect_b32 s%d, s%d, s%d" % (sLDS, sBEG, sLDS))


def first_tile(b):
    if not OPT["rot"]:
        b("s_mov_b32 s%d, 0" % sOFF)
        return
    b("s_mul_i32 s%d, s%d, %d" % (sOFF, sWGL, OPT["rot"]))
    b("s_and_b32 s%d, s%d, 31" % (sOFF, sOFF))
    b("s_lshl_b32 s%d, s%d, 13" % (sOFF, sOFF))


def wo_tile(b):
    b("s_mov_b32 m0, s%d" % sLDS)
    b("s_add_u32 s%d, s%d, 4096" % (sT0, sLDS))
    dma_group(b, SB, WOV, sOFF, OPT["nt_wo"])
    b("s_mov_b32 m0, s%d" % sT0)
    b("s_add_u32 s%d, s%d, 16384" % (sOFF, sOFF))
    dma_group(b, SB, WOV, sOFF, OPT["nt_wo"])
    b("s_add_u32 s%d, s%d, 16384" % (sOFF, sOFF))


def wo3_tile(b):
    b("s_add_u32 s%d, s%d, 2" % (sT1, sNXT))
    b("s_and_b32 s%d, s%d, 3" % (sT1, sT1))
    b("s_lshl_b32 s%d, s%d, 13" % (sLDS, sT1))
    b("s_xor_b32 s%d, s%d, 3" % (sOFF, sHN))
    b("s_lshl_b32 s%d, s%d, 2" % (sOFF, sOFF))
    b("s_add_u32 s%d, s%d, s%d" % (sOFF, sOFF, sT1))
    b("s_lshl_b32 s%d, s%d, 15" % (sOFF, sOFF))
    wo_tile(b)


def tiles(b, label, voffs, n):
    if n > 1:
        b("s_mov_b32 s%d, %d" % (sT3, n))
        b(label + ":")
        kv_tile(b, voffs)
        b("s_sub_u32 s%d, s%d, 1" % (sT3, sT3))
        b("s_cmp_lg_u32 s%d, 0" % sT3)
        b("s_cbranch_scc1 " + label)
    elif n:
        kv_tile(b, voffs)


def q_phase_kv(b, tag, voffs, txt, hooks):
    early = [int(x) for x in OPT["early"].split(".")]
    at = [int(x) for x in txt.split(".")]
    assert max(early) <= at[0] and at == sorted(at) and at[2] >= 6
    b("s_add_u32 s%d, s%d, s%d" % (sT1, sB, sHN))
    b("s_and_b32 s%d, s%d, 3" % (sT1, sT1))
    b("s_lshl_b32 s%d, s%d, 2" % (sT1, sT1))
    b("s_lshr_b32 s%d, %d, s%d" % (sT1, sum(x << (4 * i) for i, x in enumerate(early)), sT1))
    b("s_and_b32 s%d, s%d, 15" % (sCNT, sT1))
    lo, hi = min(early), max(early)
    for i in range(lo):
        b("s_barrier")
        b.add(hooks.get(i, []))
    assert all(x > hi or x == hi for x in at) and all(k <= lo for k in hooks)
    b("s_mov_b32 s%d, %d" % (sT2, lo))
    b("L_%se:" % tag)
    b("s_barrier")
    if lo in hooks:
        b("s_cmp_lg_u32 s%d, %d" % (sT2, lo))
        b("s_cbranch_scc1 L_%seh" % tag)
        b.add(hooks[lo])
        b("L_%seh:" % tag)
    b("s_cmp_lg_u32 s%d, s%d" % (sCNT, sT2))
    b("s_cbranch_scc1 L_%sen" % tag)
    tiles(b, "L_%sei" % tag, voffs, 2)
    b("L_%sen:" % tag)
    b("s_add_u32 s%d, s%d, 1" % (sT2, sT2))
    b("s_cmp_le_u32 s%d, %d" % (sT2, hi))
    b("s_cbranch_scc1 L_%se" % tag)
    tiles(b, "L_%sq%d" % (tag, hi), voffs, at.count(hi))
    for i in range(hi + 1, 8):
        b("s_barrier")
        tiles(b, "L_%sq%d" % (tag, i), voffs, at.count(i))
    if tag == "k":
        b("s_waitcnt vmcnt(%d)" % (8 * sum(x < 8 for x in at)))
    b("s_barrier")
    tiles(b, "L_%sq8" % tag, voffs, at.count(8))
    return 2 + sum(x <= 8 for x in at)


def att_phase(b, tag, voffs, nxt, lead, f1, f2, tend, sw_at, sw_reg, sw_val):
    sT = sCNT
    stamps = STAMPS == 1 and tag == "v"
    last = 35 if tag == "k" else 31
    b("s_mov_b32 s%d, 0" % sT)
    b("s_mov_b32 s%d, %d" % (sNXT, nxt))
    b("L_%sd:" % tag)
    b("s_sub_u32 s%d, s%d, s%d" % (sA, sNXT, sT))
    for a_ in (1, 2, 3, 4, 5):
        b("s_cmp_eq_u32 s%d, %d" % (sA, lead + 1 + a_))
        b("s_cbranch_scc1 L_%sd%d" % (tag, a_))
    b("s_waitcnt vmcnt(0)")
    for a_ in range(1, 6):
        b("L_%sd%d:" % (tag, a_))
        b("s_waitcnt vmcnt(%d)" % (8 * a_))
    if stamps:
        b("s_memrealtime s[60:61]")
        b("s_waitcnt lgkmcnt(0)")
    b("s_barrier")
    if stamps:
        b("s_memrealtime s[62:63]")
        b("s_waitcnt lgkmcnt(0)")
        b("s_mov_b32 m0, s%d" % sT)
        b("s_nop 0")
        b("v_writelane_b32 v20, s60, m0")
        b("v_writelane_b32 v21, s62, m0")
    b("s_getreg_b32 s%d, hwreg(HW_REG_IB_STS, 22, 2)" % sA)
    b("s_getreg_b32 s%d, hwreg(HW_REG_IB_STS, 0, 4)" % sVM)
    b("s_lshl_b32 s%d, s%d, 4" % (sA, sA))
    b("s_or_b32 s%d, s%d, s%d" % (sVM, sVM, sA))
    b("L_%sdi:" % tag)
    b("s_cmp_le_u32 s%d, 21" % sNXT)
    b("s_cselect_b32 s%d, %d, %d" % (sLIM, f1, f2))
    b("s_add_u32 s%d, s%d, s%d" % (sLIM, sLIM, sT))
    b("s_min_u32 s%d, s%d, %d" % (sLIM, sLIM, last))
    b("s_cmp_gt_u32 s%d, s%d" % (sNXT, sLIM))
    b("s_cbranch_scc1 L_%sdn" % tag)
    b("s_cmp_le_u32 s%d, %d" % (sVM, OPT["thr0"]))
    b("s_cbranch_scc1 L_%sdg" % tag)
    b("s_add_u32 s%d, s%d, %d" % (sLIM, sT, lead + 1))
    b("s_cmp_gt_u32 s%d, s%d" % (sNXT, sLIM))
    b("s_cbranch_scc1 L_%sdn" % tag)
    b("L_%sdg:" % tag)
    if last > 31:
        b("s_cmp_ge_u32 s%d, 32" % sNXT)
        b("s_cbranch_scc1 L_kdw")
    b("s_cmp_eq_u32 s%d, %d" % (sNXT, sw_at))
    b("s_cselect_b32 s%d, %d, s%d" % (sw_reg, sw_val, sw_reg))
    kv_tile(b, voffs, OPT["noload"])
    b("L_%sdj:" % tag)
    b("s_add_u32 s%d, s%d, 1" % (sNXT, sNXT))
    b("s_add_u32 s%d, s%d, 8" % (sVM, sVM))
    b("s_branch L_%sdi" % tag)
    if last > 31:
        b("L_kdw:")
        wo3_tile(b)
        b("s_branch L_kdj")
    b("L_%sdn:" % tag)
    b("s_add_u32 s%d, s%d, 1" % (sT, sT))
    b("s_cmp_lt_u32 s%d, %d" % (sT, tend))
    b("s_cbranch_scc1 L_%sd" % tag)


b = new("K loader")
b(".p2align 8")
b("L_ldkv:")
b("s_cmp_eq_u32 s%d, 5" % sWAVE)
b("s_cbranch_scc1 L_ldv")
for p in range(4):
    b("v_add_u32 v4, %d, v1" % (4 * p))
    b("v_xor_b32 v4, v4, v3")
    b("v_lshlrev_b32 v4, 4, v4")
    b("v_lshl_add_u32 v%d, v1, 8, v4" % (10 + p))
b("s_lshl_b32 s%d, s%d, 18" % (sT0, sWGL))
b("s_waitcnt lgkmcnt(0)")
srd(b, SA, sK, sT0, "0x40000")
first_tile(b)
b("s_mov_b32 s%d, %d" % (sLDS, KRING))
b("s_mov_b32 s%d, %d" % (sBEG, KRING))
b("s_mov_b32 s%d, %d" % (sEND, KRING + 49152))
KV4 = [10, 11, 12, 13]
NK0 = q_phase_kv(b, "k", KV4, OPT["k_at"], {})
wo_setup(b)
att_phase(b, "k", KV4, NK0, 2, 7, 5, 30, 19, sEND, KRING + 32768)
b("s_barrier")
b("L_k2:")
wo3_tile(b)
b("s_add_u32 s%d, s%d, 1" % (sNXT, sNXT))
b("s_cmp_le_u32 s%d, 35" % sNXT)
b("s_cbranch_scc1 L_k2")
b("s_barrier")
b("s_waitcnt vmcnt(0)")
b("s_barrier")
b("s_endpgm")
b.finish(hist=e.ins)

b = new("V loader")
b(".p2align 8")
b("L_ldv:")
for par in range(2):
    b("v_lshlrev_b32 v4, 1, v1")
    b("v_xor_b32 v4, v4, v3")
    if par:
        b("v_xor_b32 v4, 8, v4")
    b("v_lshlrev_b32 v4, 4, v4")
    b("v_lshl_add_u32 v%d, v1, 8, v4" % (10 + par))
b("s_lshl_b32 s%d, s%d, 18" % (sT0, sWGL))
b("s_waitcnt lgkmcnt(0)")
srd(b, SA, sV, sT0, "0x40000")
first_tile(b)
b("s_mov_b32 s%d, %d" % (sLDS, VRING + 2 * 8192))
b("s_mov_b32 s%d, %d" % (sBEG, VRING))
b("s_mov_b32 s%d, %d" % (sEND, VRING + 49152))
V4 = [10, 11, 10, 11]
srd(b, SC, sWS, None, "0x10000000")
b("v_mov_b32 v4, 0")
b("v_mov_b32 v5, 0")
b("s_lshl_b32 s%d, s%d, 11" % (sT0, sWGL))
b("v_lshlrev_b32 v8, 3, v0")
b("buffer_store_dwordx2 v[4:5], v8, s[%d:%d], s%d offen sc1" % (SC, SC + 3, sT0))
b("buffer_store_dwordx2 v[4:5], v8, s[%d:%d], s%d offen offset:1024 sc1" % (SC, SC + 3, sT0))
b("s_getreg_b32 s%d, hwreg(HW_REG_XCC_ID, 0, 4)" % sT1)
b("s_add_u32 s%d, s%d, 1" % (sT1, sT1))
b("v_mov_b32 v7, s%d" % sT1)
b("s_mov_b64 exec, 1")
b("buffer_store_dword v7, v4, s[%d:%d], s%d offen offset:512 sc1" % (SC, SC + 3, sT0))
b("s_mov_b64 exec, -1")
b("s_lshl_b32 s%d, s%d, 5" % (sT0, sB))
b("s_add_u32 s%d, s%d, s%d" % (SB, sDBG, sT0))
b("s_addc_u32 s%d, s%d, 0" % (SB + 1, sDBG + 1))
b("s_mov_b32 s%d, 1" % (SB + 2))
NV0 = q_phase_kv(b, "v", V4, OPT["v_at"],
                 {0: ["s_waitcnt vmcnt(0)", "s_atomic_add s%d, s[%d:%d], 0x0" % (SB + 2, SB, SB + 1)]})
att_phase(b, "v", V4, NV0, 0, 5, 3, 32, 18, sBEG, VRING + 16384)
b("s_barrier")
if STAMPS == 1:
    b("s_lshl_b32 s%d, s2, 9" % sT0)
    b("s_add_u32 s%d, s%d, %d" % (sT0, sT0, ST_OFF + 0x100000))
    b("v_lshlrev_b32 v1, 2, v0")
    b("buffer_store_dword v20, v1, s[%d:%d], s%d offen" % (SC, SC + 3, sT0))
    b("buffer_store_dword v21, v1, s[%d:%d], s%d offen offset:256" % (SC, SC + 3, sT0))
b("s_endpgm")
b.finish(hist=e.ins)


sGST, sKSH, sL0, sL1, sL2, s4K = 54, 55, 56, 57, 58, 59


def q_phase_xw(b):
    def chunk():
        b("s_lshl_b32 s%d, s%d, s%d" % (sOFF, sT2, sKSH))
        b("s_mov_b32 m0, s%d" % sL0)
        b("s_add_u32 s%d, s%d, 1" % (sT2, sT2))
        b("s_and_b32 s%d, s%d, 7" % (sT2, sT2))
        b("s_mov_b32 s%d, -4" % sT3)
        b("L_xwg:")
        dma_group(b, SA, [10, 11, 12, 13], sOFF, OPT["nt_q"])
        b("s_add_u32 m0, m0, s%d" % s4K)
        b("s_add_u32 s%d, s%d, s%d" % (sOFF, sOFF, sGST))
        b("s_add_u32 s%d, s%d, 1" % (sT3, sT3))
        b("s_cbranch_scc0 L_xwg")
        b("s_mov_b32 s%d, s%d" % (sT3, sL0))
        b("s_mov_b32 s%d, s%d" % (sL0, sL1))
        b("s_mov_b32 s%d, s%d" % (sL1, sL2))
        b("s_mov_b32 s%d, s%d" % (sL2, sT3))
    b("s_setprio 2")
    b("s_cmp_eq_u32 s%d, 7" % sWAVE)
    b("s_cbranch_scc1 L_setw")
    b("v_lshrrev_b32 v5, 3, v0")
    b("v_and_b32 v6, 7, v0")
    b("v_lshrrev_b32 v7, 1, v5")
    b("v_xor_b32 v4, v7, v6")
    b("v_lshlrev_b32 v4, 4, v4")
    b("v_lshl_add_u32 v10, v5, 10, v4")
    b("v_xor_b32 v4, 64, v10")
    b("v_add_u32 v11, %d, v4" % (8192 - 1024))
    b("v_add_u32 v12, %d, v10" % (2 * (8192 - 1024)))
    b("v_add_u32 v13, %d, v4" % (3 * (8192 - 1024)))
    b("s_mul_i32 s%d, s%d, 114688" % (sT0, sB))
    b("s_mov_b32 s%d, 114688" % (SA + 2))
    b("s_mov_b32 s%d, 32768" % sGST)
    b("s_mov_b32 s%d, 7" % sKSH)
    b("s_mov_b32 s%d, %d" % (sL0, STG))
    b("s_waitcnt lgkmcnt(0)")
    b("s_add_u32 s%d, s%d, s%d" % (SA, sX, sT0))
    b("s_addc_u32 s%d, s%d, 0" % (SA + 1, sX + 1))
    b("s_branch L_setj")
    b("L_setw:")
    b("v_lshlrev_b32 v4, 1, v1")
    b("v_xor_b32 v4, v4, v3")
    b("v_lshlrev_b32 v4, 4, v4")
    b("v_lshl_add_u32 v10, v1, 13, v4")
    b("v_add_u32 v11, %d, v10" % (32768 - 1024))
    b("v_xor_b32 v4, 128, v10")
    b("v_add_u32 v12, %d, v4" % (2 * (32768 - 1024)))
    b("v_add_u32 v13, %d, v4" % (3 * (32768 - 1024)))
    b("s_lshl_b32 s%d, s%d, 8" % (sT0, sH))
    b("s_sub_u32 s%d, 0x400000, s%d" % (SA + 2, sT0))
    b("s_mov_b32 s%d, 131072" % sGST)
    b("s_mov_b32 s%d, 19" % sKSH)
    b("s_mov_b32 s%d, %d" % (sL0, STG + 16384))
    b("s_waitcnt lgkmcnt(0)")
    b("s_add_u32 s%d, s%d, s%d" % (SA, sWQ, sT0))
    b("s_addc_u32 s%d, s%d, 0" % (SA + 1, sWQ + 1))
    b("L_setj:")
    b("s_mov_b32 s%d, 0x20000" % (SA + 3))
    b("s_lshl_b32 s%d, s%d, 1" % (sT2, sHN))
    b("s_add_u32 s%d, s%d, s%d" % (sT2, sT2, sB))
    b("s_and_b32 s%d, s%d, %d" % (sT2, sT2, OPT["rotmask"]))
    b("s_movk_i32 s%d, 0x1000" % s4K)
    b("s_add_u32 s%d, s%d, 32768" % (sL1, sL0))
    b("s_sub_u32 s%d, s%d, %d" % (sL2, sL0, STG - XREG))
    b("s_mov_b32 s%d, 8" % sCNT)
    b("s_branch L_xwgo")
    b("L_xw:")
    b("s_waitcnt vmcnt(16)")
    b("s_barrier")
    b("L_xwgo:")
    chunk()
    b("s_sub_u32 s%d, s%d, 1" % (sCNT, sCNT))
    b("s_cmp_eq_u32 s%d, 7" % sCNT)
    b("s_cbranch_scc1 L_xwgo")
    b("s_cmp_lg_u32 s%d, 0" % sCNT)
    b("s_cbranch_scc1 L_xw")
    wo_setup(b)
    b("s_waitcnt vmcnt(16)")
    b("s_barrier")
    b("s_waitcnt vmcnt(0)")
    b("s_barrier")
    b("s_barrier")
    b("s_setprio 0")
    b("s_cmp_eq_u32 s%d, 7" % sWAVE)
    b("s_cbranch_scc1 L_attw")


def wo_trickle(b, tag, blk):
    first = 4 if blk == 0 else 2
    for i in range(first + 1):
        b("s_barrier")
    if tag == "w":
        b("s_lshl_b32 s%d, s%d, 5" % (sT0, sB))
        b("s_add_u32 s%d, s%d, s%d" % (SC, sDBG, sT0))
        b("s_addc_u32 s%d, s%d, 0" % (SC + 1, sDBG + 1))
        b("s_load_dword s%d, s[%d:%d], 0x0 glc" % (SC + 2, SC, SC + 1))
    b("s_xor_b32 s%d, s%d, %d" % (sOFF, sHN, blk))
    b("s_lshl_b32 s%d, s%d, 17" % (sOFF, sOFF))
    b("s_mov_b32 s%d, %d" % (sLDS, STG + blk * 32768))
    loop_begin(b, "L_%s2" % tag, 4)
    wo_tile(b)
    b("s_add_u32 s%d, s%d, 8192" % (sLDS, sLDS))
    for i in range(4):
        b("s_barrier")
    loop_end(b, "L_%s2" % tag)
    b("s_xor_b32 s%d, s%d, 2" % (sOFF, sHN))
    b("s_lshl_b32 s%d, s%d, 17" % (sOFF, sOFF))
    b("s_add_u32 s%d, s%d, %d" % (sOFF, sOFF, blk * 65536))
    b("s_mov_b32 s%d, %d" % (sLDS, XREG + blk * 16384))
    wo_tile(b)
    b("s_add_u32 s%d, s%d, 8192" % (sLDS, sLDS))
    for i in range(4):
        b("s_barrier")
    wo_tile(b)
    done = first + 20
    if tag == "w":
        for i in range(3):
            b("s_barrier")
        done += 3
        b("s_mov_b32 s%d, 0x%x" % (sCNT, SPIN))
        b("s_branch L_wchk")
        b("L_wpoll:")
        b("s_load_dword s%d, s[%d:%d], 0x0 glc" % (SC + 2, SC, SC + 1))
        b("L_wchk:")
        b("s_waitcnt lgkmcnt(0)")
        b("s_sub_u32 s%d, s%d, 1" % (sCNT, sCNT))
        b("s_cbranch_scc1 L_wpolld")
        b("s_cmp_lt_u32 s%d, 32" % (SC + 2))
        b("s_cbranch_scc1 L_wpoll")
        b("L_wpolld:")
    for i in range(29 - done):
        b("s_barrier")
    b("s_waitcnt vmcnt(0)")
    b("s_barrier")
    b("s_barrier")
    b("s_barrier")
    b("s_endpgm")


bq = Block("x / wq loaders: Q phase")
q_phase_xw(bq)
wo_trickle(bq, "x", 0)
bq("L_attw:")
wo_trickle(bq, "w", 1)
bq.finish(hist=e.ins)
blocks.insert(1, bq)

c = new("compute waves: addresses")
c(".p2align 8")
c("L_compute:")
if OPT["codepf"]:
    c("s_cmp_lg_u32 s%d, 1" % sWAVE)
    c("s_cbranch_scc1 L_nopf")
    c("s_getpc_b64 s[56:57]")
    c("L_pc:")
    c("s_sub_u32 s56, s56, L_pc-L_start")
    c("s_subb_u32 s57, s57, 0")
    c("s_lshr_b32 s%d, s2, 3" % sT0)
    c("s_and_b32 s%d, s%d, 7" % (sT0, sT0))
    c("s_mul_i32 s%d, s%d, ((L_codeend-L_start+1023)/1024)*128" % (sT0, sT0))
    c("v_lshlrev_b32 v1, 7, v0")
    c("v_add_u32 v1, s%d, v1" % sT0)
    c("v_min_u32 v1, L_codeend-L_start-4, v1")
    c("v_mov_b32 v3, s57")
    c("v_add_co_u32 v2, vcc, s56, v1")
    c("s_nop 1")
    c("v_addc_co_u32 v3, vcc, 0, v3, vcc")
    c("v_cmp_gt_u32 vcc, (L_codeend-L_start+1023)/1024, v0")
    c("s_and_saveexec_b64 s[58:59], vcc")
    c("global_load_dword v%d, v[2:3], off" % vDUM)
    c("s_mov_b64 exec, -1")
    c("L_nopf:")
for i in range(4):
    c("v_mov_b32 v%d, 0" % (XB + 28 + i))
c("v_lshrrev_b32 v1, 4, v0")
c("v_and_b32 v2, 15, v0")
c("v_lshrrev_b32 v3, 5, v0")
c("v_and_b32 v4, 1, v1")
c("v_lshl_add_u32 v3, v4, 1, v3")
c("v_xor_b32 v3, v3, v2")
c("v_lshlrev_b32 v3, 4, v3")
c("v_lshl_add_u32 v%d, v2, 8, v3" % aK)
for ks in range(1, 4):
    c("v_xor_b32 v%d, %d, v%d" % (aK + ks, ks << 6, aK))
c("s_lshl_b32 s%d, s%d, 12" % (sT0, sWAVE))
c("s_add_u32 s%d, s%d, %d" % (sT0, sT0, STG))
c("v_lshrrev_b32 v3, 1, v2")
c("v_xor_b32 v3, v3, v1")
c("v_lshlrev_b32 v3, 4, v3")
c("v_lshl_add_u32 v3, v2, 7, v3")
c("v_add_u32 v%d, s%d, v3" % (aXq, sT0))
c("v_xor_b32 v%d, 64, v%d" % (aXq + 1, aXq))
c("v_bfe_u32 v2, v0, 2, 2")
c("v_lshrrev_b32 v3, 2, v0")
c("v_and_b32 v4, 7, v3")
c("v_lshlrev_b32 v4, 5, v4")
c("v_lshl_add_u32 v3, v3, 8, v4")
c("v_and_b32 v4, 3, v0")
c("v_lshl_add_u32 v3, v4, 3, v3")
c("v_add_u32 v%d, %d, v3" % (aV, VRING + 16384))
for db in range(1, 8):
    c("v_xor_b32 v%d, %d, v%d" % (aV + db, db << 5, aV))
c("v_lshl_add_u32 v3, v1, 10, v3")
c("v_add_u32 v%d, %d, v3" % (aWq, STG + 16384))
for db in range(1, 8):
    c("v_xor_b32 v%d, %d, v%d" % (aWq + db, db << 5, aWq))
c("v_mul_u32_u24 v2, 320, v2")
c("v_lshrrev_b32 v3, 5, v0")
c("v_lshl_add_u32 v3, v3, 11, v2")
c("v_and_b32 v4, 1, v1")
c("v_lshl_add_u32 v3, v4, 5, v3")
c("v_and_b32 v4, 1, v0")
c("v_lshl_add_u32 v3, v4, 4, v3")
c("v_bfe_u32 v4, v0, 1, 1")
c("v_lshl_add_u32 v3, v4, 3, v3")
c("s_lshl_b32 s%d, s%d, 5" % (sT0, sG))
c("v_xor_b32 v%d, s%d, v3" % (aO2, sT0))
for nt in range(1, 4):
    c("v_xor_b32 v%d, %d, v%d" % (aO2 + nt, nt << 6, aO2))
c("v_and_b32 v2, 31, v0")
c("s_lshl_b32 s%d, s%d, 5" % (sT0, sWAVE))
c("v_add_u32 v2, s%d, v2" % sT0)
c("v_lshlrev_b32 v%d, 4, v0" % vE)
c("v_cmp_lt_u32 vcc, 111, v2")
c("v_bfrev_b32 v3, 1")
c("v_lshlrev_b32 v2, 10, v2")
c("v_cndmask_b32 v1, 0, v3, vcc")
c("v_or_b32 v%d, v%d, v1" % (vE, vE))
c("v_lshrrev_b32 v1, 5, v0")
c("v_lshl_add_u32 v%d, v1, 4, v2" % vOUT)
c("v_xor_b32 v1, s%d, v0" % sWGL)
c("v_lshlrev_b32 v1, 11, v1")
c("v_cmp_gt_u32 vcc, 4, v0")
c("v_add_u32 v2, 512, v1")
c("s_lshl_b32 s%d, s%d, 7" % (sT0, sWAVE))
c("v_cndmask_b32 v%d, v3, v2, vcc" % vINFO)
c("v_lshl_add_u32 v2, v0, 2, s%d" % sT0)
c("v_add_u32 v1, v1, v2")
c("s_lshl_b32 s%d, s%d, 11" % (sT1, sWGL))
c("v_add_u32 v2, s%d, v2" % sT1)
c("v_subrev_u32 v%d, 1, v0" % vTM)
c("v_cmp_gt_u32 vcc, 3, v%d" % vTM)
c("s_mov_b32 s%d, %s" % (sCS, f32(CSC)))
c("s_mov_b32 s%d, %s" % (sCS + 1, f32(CSC)))
c("v_cndmask_b32 v%d, v3, v1, vcc" % vM1)
c("v_cndmask_b32 v%d, v3, v2, vcc" % vP1)
for i in range(4):
    c("%s %s, %s, %s, 0" % (M32, vr(ACC + 16 * i, 16), vr(XB + 28, 4), vr(XB + 28, 4)))
c("s_mov_b32 s%d, %s" % (sTHR, f32(0.0 if OPT["force_rescale"] else OPT["thr"])))
c("s_waitcnt lgkmcnt(0)")
srd(c, SA, sWS, None, "0x10000000")
c("s_lshl_b32 s%d, s%d, 15" % (sE1, sWGL))
c("s_lshl_b32 s%d, s%d, 13" % (sT0, sWAVE))
c("s_add_u32 s%d, s%d, s%d" % (sE1, sE1, sT0))
c("s_add_u32 s%d, s%d, %d" % (sE1, sE1, E1_OFF))
c("s_mov_b32 s%d, %d" % (sT2, sum(((1, -3, 2)[i % 3] + 3) << (3 * i) for i in range(8))))
c("s_mov_b32 s%d, 8" % sCNT)
if OPT["single"]:
    c("s_cmp_eq_u32 s%d, 3" % sWAVE)
    c("s_cbranch_scc1 L_paths")
c.finish(hist=e.ins)


def k_reads(slot_off):
    return ["ds_read_b128 %s, v%d offset:%d" % (vr(KF + 16 * kb + 4 * ks, 4), aK + ks, slot_off + kb * 4096)
            for ks in range(4) for kb in range(2)]


def v_read(db, u, off):
    return "ds_read_b64_tr_b16 %s, v%d offset:%d" % (vr(VF + 4 * db + 2 * u, 2), aV + db, off + u * 4096)


def ex(S, i):
    return "v_exp_f32 v%d, v%d" % (S + i, S + i)


def cvt(S, j):
    return "v_cvt_pk_bf16_f32 v%d, v%d, v%d" % (PK + j, S + 2 * j, S + 2 * j + 1)


def qk(SN, ks, kb, blk, first):
    d = vr(SN + 8 * blk + 4 * kb, 4)
    cc = d if ks else ("0" if first else vr(NM[blk], 4))
    return "%s %s, %s, %s, %s" % (M16, d, vr(KF + 16 * kb + 4 * ks, 4), vr(QF + 16 * blk + 4 * ks, 4), cc)


def pv(db, blk):
    d = vr(ACC + 32 * blk + 4 * db, 4)
    return "%s %s, %s, %s, %s" % (M16, d, vr(VF + 4 * db, 4), vr(PK + 4 * blk, 4), d)


def sum_mfma(blk):
    return "%s %s, %s, %s, %s" % (M16, vr(vL[blk], 4), vr(ONES, 4), vr(PK + 4 * blk, 4), vr(vL[blk], 4))


def max_tree(dst, S, n):
    r = ["v_max3_f32 v%d, v%d, v%d, v%d" % (dst, S, S + 1, S + 2)]
    for i in range(3, n - 1, 2):
        r.append("v_max3_f32 v%d, v%d, v%d, v%d" % (dst, dst, S + i, S + i + 1))
    r.append("v_max_f32 v%d, v%d, v%d" % (dst, dst, S + n - 1))
    return r


def blk_max(b, S, dst, tmp):
    b.add(max_tree(dst, S, 8))
    for perm in ("v_permlane32_swap_b32", "v_permlane16_swap_b32"):
        b("v_mov_b32 v%d, v%d" % (tmp, dst))
        b("%s v%d, v%d" % (perm, tmp, dst))
        b("v_max_f32 v%d, v%d, v%d" % (dst, tmp, dst))


def weave(b, mfmas, gaps):
    assert len(mfmas) == len(gaps)
    for m_, g in zip(mfmas, gaps):
        b.add([x for x in [m_] + list(g) if x is not None])


AREG = {0: aO1, 1: aO3, 2: aO1, 3: aO3}
SBUF = {1: S0, 2: KF, 3: XB}
SEQ = [(j, f, nt) for j in range(3) for f in range(8) for nt in range(4)]
SEQ += [(3, f, nt) for nt in (1, 2, 3, 0) for f in range(8)]


def wbuf(m):
    return (KF if m < 8 else VF) + 4 * (m & 7)


def w_reads(m):
    if m >= len(SEQ):
        return []
    j, f, nt = SEQ[m]
    ks, y = f >> 1, f & 1
    return ["ds_read_b64_tr_b16 %s, v%d offset:%d" % (vr(wbuf(m) + 2 * u, 2), AREG[j] + nt,
                                                   ks * 8192 + u * 4096 + y * 1024) for u in range(2)]


def bfrag(j, f):
    return OB + 16 * (f & 1) + 4 * (f >> 1) if j == 0 else SBUF[j] + 4 * f


def publish(f, lo, hi, fl):
    return "buffer_store_dwordx4 %s, v%d, s[%d:%d], s%d offen offset:%d %s" % (vr(bfrag(0, f), 4), vE, SA, SA + 3,
                                                                           lo if f < 4 else hi, (f & 3) * 1024, fl)


rare = []


def compute_path(sfx, nb, out):
    B = range(nb)

    def blk(i, x):
        return x if i < nb else None

    def mk(name):
        bb = Block(name + (" (two query blocks)" if nb == 2 else " (one query block: wave 3)"))
        out.append(bb)
        return bb

    def q_reads(s_):
        W = VF if s_ == 0 else S0
        r = [blk(i, "ds_read_b128 %s, v%d offset:%d" % (vr(XB + 8 * s_ + 4 * i, 4), aXq + s_, i * 2048)) for i in range(2)]
        for db in range(8):
            for u in range(2):
                r.append("ds_read_b64_tr_b16 %s, v%d offset:%d" % (vr(W + 4 * db + 2 * u, 2), aWq + db, s_ * 8192 + u * 1024))
        return r

    def q_mfmas(s_):
        W = VF if s_ == 0 else S0
        r = []
        for db in range(8):
            for i in range(2):
                d = vr(ACC + 32 * i + 4 * db, 4)
                r.append(blk(i, "%s %s, %s, %s, %s" % (M16, d, vr(W + 4 * db, 4), vr(XB + 8 * s_ + 4 * i, 4), d)))
        return r

    q0 = mk("Q projection: first reads")
    q0("L_path%s:" % sfx)
    q0("s_barrier")
    stamp(q0, 1)
    q0.add([x for x in q_reads(0) if x])
    lgq0, _ = q0.finish(hist=c.ins)
    ql = mk("Q projection")
    ql("L_q%s:" % sfx)
    tabq = ["s_and_b32 s%d, s%d, 7" % (sDEL, sT2), "s_lshr_b32 s%d, s%d, 3" % (sT2, sT2),
            "s_sub_u32 s%d, s%d, 3" % (sDEL, sDEL), "s_lshl_b32 s%d, s%d, 15" % (sDEL, sDEL)]
    adv = ["v_add_u32 v%d, s%d, v%d" % (r_, sDEL, r_) for r_ in range(aWq, aWq + 10)]
    gaps = spread(q_reads(1), [2, 1, 2, 1, 2, 1, 1, 1, 1, 1, 1, 1, 1, 1, 1, 0])
    gaps[1] += tabq[:2]
    gaps[3] += tabq[2:]
    weave(ql, q_mfmas(0), gaps)
    m1 = q_mfmas(1)
    weave(ql, m1[:6], spread(adv, [2, 2, 2, 2, 1, 1]))
    ql("s_waitcnt lgkmcnt(0)")
    ql("s_barrier")
    weave(ql, m1[6:], spread(q_reads(0), [2, 2, 2, 2, 2, 2, 2, 2, 1, 1]))
    loop_end(ql, "L_q%s" % sfx)
    lgq1, _ = ql.finish(hist=q0.ins, lgq=lgq0)
    assert STAMPS or lgq1 == lgq0[-len(lgq1):], (lgq0, lgq1)
    pad_hazards(ql.ins, hist=ql.ins, check_only=True, where="q loop back edge")

    q = mk("attention set-up")
    stamp(q, 2)
    q("s_waitcnt lgkmcnt(0)")
    q.add(k_reads(0))
    q("s_waitcnt vmcnt(0)")

    def conv(ks):
        r = []
        for i in B:
            a0, f0 = ACC + 32 * i + 8 * ks, QF + 16 * i + 4 * ks
            if ks == 0:
                r += ["v_pk_mul_f32 %s, %s, s[%d:%d]" % (vr(a0 + 2 * j, 2), vr(a0 + 2 * j, 2), sCS, sCS + 1) for j in range(4)]
            else:
                r += ["v_mul_f32 v%d, s%d, v%d" % (a0 + j, sCS, a0 + j) for j in range(8)]
            r += ["v_cvt_pk_bf16_f32 v%d, v%d, v%d" % (f0 + j, a0 + 2 * j, a0 + 2 * j + 1) for j in range(4)]
        for i in B:
            f0 = QF + 16 * i + 4 * ks
            r += ["v_permlane16_swap_b32 v%d, v%d" % (f0 + j, f0 + 2 + j) for j in range(2)]
        return r

    k1 = k_reads(8192)
    init = ["v_mov_b32 v%d, 0" % (vL[0] + i) for i in range(8)] + ["v_mov_b32 v%d, 0x3f803f80" % (ONES + i) for i in range(4)]
    q.add(conv(0))
    q.add(init[:4])
    qk0 = [blk(i, qk(S0, ks, kb, i, True)) for ks in range(4) for kb in range(2) for i in range(2)]
    for ks in range(3):
        g = spread(conv(ks + 1), [7, 7, 7, 7] if nb == 2 else [4, 3, 4, 3])
        g[2].insert(0, k1[2 * ks])
        if ks:
            g[0].insert(0, k1[2 * ks - 1])
        weave(q, qk0[4 * ks:4 * ks + 4], g)
    weave(q, qk0[12:], [[k1[5]] + init[4:6], init[6:8], [k1[6]] + init[8:10], init[10:]])
    z = vr(vL[0], 4)
    weave(q, [blk(i >> 1, "%s %s, %s, %s, 0" % (M32, vr(ACC + 16 * i, 16), z, z)) for i in range(4)], [[k1[7]], [], [], []])
    for ks in range(4):
        q("v_add_u32 v%d, 16384, v%d" % (aK + ks, aK + ks))
    if nb == 1:
        for i in range(16):
            q("v_mov_b32 v%d, 0" % (OB + 16 + i))
    chains = []
    for i in B:
        tb = Block()
        blk_max(tb, S0 + 8 * i, *((1, 2) if i == 0 else (vTM, NM[1] + 1)))
        tb("v_sub_f32 v%d, 0, v%d" % (NM[i], 1 if i == 0 else vTM))
        if i == 1 and not OPT["single"]:
            tb("v_min_f32 v%d, s%d, v%d" % (NM[i], sT3, NM[i]))
        for j in range(1, 4):
            tb("v_mov_b32 v%d, v%d" % (NM[i] + j, NM[i]))
        for j in range(8):
            tb("v_add_f32 v%d, v%d, v%d" % (S0 + 8 * i + j, S0 + 8 * i + j, NM[i]))
        chains.append(tb.ins)
    if not OPT["single"]:
        q("s_cmp_eq_u32 s%d, 3" % sWAVE)
        q("s_mov_b32 s%d, %s" % (sT0, f32(3e38)))
        q("s_cselect_b32 s%d, %s, s%d" % (sT3, f32(-1e30), sT0))
    for i in range(max(map(len, chains))):
        q.add([ch[i] for ch in chains if i < len(ch)])
    KSEQ = [1, 2, 0, 1, 2, 0, 1, 2, 0, 1, 0, 1, 0, 1, 0, 0]
    VSEQ = [1, 2, 0, 1, 2, 0, 1, 2, 0, 1, 2, 1, 2, 1, 2, 1]
    for tab, seq in ((sTABK, KSEQ), (sTABV, VSEQ)):
        q("s_mov_b32 s%d, 0x%x" % (tab, sum((seq[i + 1] - seq[i] + 2) << (2 * i) for i in range(15))))
    q("s_mov_b32 s%d, 15" % sCNT)
    stamp(q, 3)
    if STAMPS == 6:
        q("s_memtime s[92:93]")
    q.finish(hist=ql.ins)

    def rescale(tag, SN):
        r = Block("the running max rises by more than the threshold: move to the true max (%s)" % tag)
        r("L_resc%s:" % tag)
        r("s_nop 15")
        for i in B:
            blk_max(r, SN + 8 * i, 1, 2)
            r("v_max_f32 v1, 0, v1")
            r("v_sub_f32 v2, 0, v1")
            r("v_exp_f32 v2, v2")
            for j in range(4):
                r("v_sub_f32 v%d, v%d, v1" % (NM[i] + j, NM[i] + j))
            for j in range(8):
                r("v_sub_f32 v%d, v%d, v1" % (SN + 8 * i + j, SN + 8 * i + j))
            for j in range(4):
                r("v_mul_f32 v%d, v%d, v2" % (vL[i] + j, vL[i] + j))
            for j in range(32):
                r("v_mul_f32 v%d, v%d, v2" % (ACC + 32 * i + j, ACC + 32 * i + j))
        r("s_nop 1")
        r("s_branch L_back%s" % tag)
        r.finish()
        rare.append(r)

    def epoch(b, par, kread, adv, tag, head=()):
        S, SN = (S0, S1) if par == 0 else (S1, S0)
        off = par * 8192
        vrd = [v_read(db, u, off) for db in range(8) for u in range(2)]
        kr = k_reads(off) if kread else [None] * 8
        b("s_waitcnt lgkmcnt(0)")
        b("s_barrier")
        b.add(head)
        GA = "e0|t0 t1|e1|t2 c0|e2|t3 t4|e3|t5 c1|e4|t6 t7|e5|t8 c2|e6|t9 e7|t10 c3|t11 e8"
        GB = "t12 t13|t14 e9|t15 e10|c4 e11|e12|c5 e13|e14|c6 e15|k0 c7 m0 m1|k1 k2|k3 m2|k4 m3|k5 m4|k6 m5|k7 m6|m7 a|x a|a a"
        mx = max_tree(vTM, SN, 8 * nb) + [None] * 4
        adds = []
        if adv:
            adds = ["v_add_u32 v%d, s%d, v%d" % (aV + i, sDELV, aV + i) for i in range(8)] + \
                   ["v_add_u32 v%d, s%d, v%d" % (aK + i, sDEL, aK + i) for i in range(4)]

        def ins(tok):
            k, n = tok[0], int(tok[1:]) if len(tok) > 1 else 0
            if k == "a":
                return adds.pop(0) if adds else None
            if k == "x":
                return "v_cmp_lt_f32 vcc, s%d, v%d" % (sTHR, vTM)
            return {"e": lambda: blk(n >> 3, ex(S, n)), "t": lambda: vrd[n], "c": lambda: blk(n >> 2, cvt(S, n)),
                    "k": lambda: kr[n], "m": lambda: mx[n]}[k]()
        ga = [[ins(x) for x in g.split()] for g in GA.split("|")]
        if adv:
            for tab, dl, gi in ((sTABV, sDELV, 1), (sTABK, sDEL, 5)):
                ga[gi] += ["s_and_b32 s%d, s%d, 3" % (dl, tab), "s_lshr_b32 s%d, s%d, 2" % (tab, tab)]
                ga[gi + 2] += ["s_sub_u32 s%d, s%d, 2" % (dl, dl), "s_lshl_b32 s%d, s%d, 14" % (dl, dl)]
        weave(b, [blk(i, qk(SN, ks, kb, i, False)) for ks in range(4) for kb in range(2) for i in range(2)], ga)
        order = [pv(db, 0) for db in range(8)] + [sum_mfma(0)] + [blk(1, pv(db, 1)) for db in range(8)] + [blk(1, sum_mfma(1))]
        gb = [[ins(x) for x in g.split()] for g in GB.split("|")]
        gb[-1] += adds[:]
        b("s_waitcnt lgkmcnt(4)")
        weave(b, order[:4], gb[:4])
        b("s_waitcnt lgkmcnt(4)")
        weave(b, order[4:], gb[4:])
        b("s_cbranch_vccnz L_resc%s" % tag)
        b("L_back%s:" % tag)
        rescale(tag, SN)

    lp = mk("attention loop: tiles 0..29")
    lp("L_att%s:" % sfx)
    epoch(lp, 0, True, False, "a" + sfx)
    epoch(lp, 1, True, True, "b" + sfx,
          head=["s_cmp_lg_u32 s%d, 1" % sCNT, "s_cbranch_scc1 L_noinfo%s" % sfx,
                "buffer_load_dword v%d, v%d, s[%d:%d], 0 offen sc1" % (vINF, vINFO, SA, SA + 3), "L_noinfo%s:" % sfx])
    loop_end(lp, "L_att%s" % sfx)
    lp.finish(hist=q.ins)
    pad_hazards(lp.ins, hist=lp.ins, check_only=True, where="loop back edge")

    t = mk("tiles 30, 31; o = O / l leaves for the other heads of the group")
    if STAMPS == 6:
        t("s_memtime s[94:95]")
        t("s_waitcnt lgkmcnt(0)")
    stamp(t, 4)
    epoch(t, 0, False, False, "c" + sfx)
    S = S1
    for nt in range(4):
        t("v_add_u32 v%d, %d, v%d" % (aO1 + nt, STG, aO2 + nt))
    for m in range(8):
        t.add(w_reads(m))
    for i in range(8 * nb):
        t(ex(S, i))
    for j in range(4 * nb):
        t(cvt(S, j))
    for i in B:
        t(sum_mfma(i))
    t("v_readlane_b32 s%d, v%d, 0" % (sT0, vINF))
    t("v_mov_b32 v%d, 1" % NM[0])
    t("s_add_u32 s%d, s%d, 4096" % (sT2, sE1))
    t("v_cmp_eq_u32 vcc, s%d, v%d" % (sT0, vINF))
    t("s_nop 0")
    t("s_and_b32 s%d, vcc_lo, 15" % sT0)
    t("s_cmp_eq_u32 s%d, %d" % (sT0, 15 if OPT["fast"] else 16))
    t("s_cselect_b32 s%d, s%d, 0x%x" % (sE1F, sE1, OOB))
    t("s_add_u32 s%d, s%d, 4096" % (sE1F4, sE1F))
    if not OPT["single"]:
        for i in B:
            t("v_max_f32 v%d, %s, v%d" % (vL[i], f32(1e-30), vL[i]))
    for i in B:
        t("v_rcp_f32 v%d, v%d" % (vL[i], vL[i]))
    for i in B:
        for j in range(4):
            t("v_pk_mul_f32 %s, %s, %s op_sel_hi:[1,0]" % (vr(S + 8 * i + 2 * j, 2), vr(S + 8 * i + 2 * j, 2), vr(vL[i], 2)))
    for i in B:
        for j in range(16):
            a0 = ACC + 32 * i + 2 * j
            t("v_pk_mul_f32 %s, %s, %s op_sel_hi:[1,0]" % (vr(a0, 2), vr(a0, 2), vr(vL[i], 2)))
    for j in range(4 * nb):
        t(cvt(S, j))
    t("s_waitcnt lgkmcnt(0)")
    t("s_barrier")
    stamp(t, 5)
    cst(t, 2)
    vrd = [v_read(db, u, 8192) for db in range(8) for u in range(2)]

    def pack(ks):
        return [blk(i, "v_cvt_pk_bf16_f32 v%d, v%d, v%d" % (OB + 16 * i + 4 * ks + j, ACC + 32 * i + 8 * ks + 2 * j, ACC + 32 * i + 8 * ks + 2 * j + 1))
                for i in range(2) for j in range(4)]

    def swaps(ks):
        return ["v_permlane16_swap_b32 v%d, v%d" % (OB + 4 * ks + j, OB + 16 + 4 * ks + j) for j in range(4)]

    t.add(vrd[0:8])
    p0, p1, p2 = pack(0), pack(1), pack(2)
    g = [vrd[8:10], vrd[10:12], vrd[12:14], vrd[14:16], [], [], p0[0:2], p0[2:4], p0[4:6], p0[6:8], p1[0:2] + swaps(0)[0:1],
         p1[2:4] + swaps(0)[1:2], p1[4:6] + swaps(0)[2:3], p1[6:8] + swaps(0)[3:4], p2[0:3], p2[3:8]]
    weave(t, [blk(i, pv(db, i)) for db in range(8) for i in range(2)], g)
    t.add([publish(f, sE1F, sE1F4, "") for f in (0, 1)])
    t.add(swaps(1))
    t.add([publish(f, sE1F, sE1F4, "") for f in (2, 3)])
    t.add(swaps(2))
    t.add([x for x in pack(3) if x])
    t.add([publish(f, sE1F, sE1F4, "") for f in (4, 5)])
    t.add(swaps(3))
    t.add([publish(f, sE1F, sE1F4, "") for f in (6, 7)])
    if nb == 1:
        t("s_branch L_join")
    lgq, vmq = t.finish(hist=lp.ins, vmq=[{vINF}])
    assert not lgq or STAMPS
    return t, vmq


side = []
tA, vmqA = compute_path("d", 2, blocks)
if OPT["single"]:
    tB, vmqB = compute_path("s", 1, side)
    assert vmqA == vmqB

t = new("output projection")
t("L_join:")
t("s_cmp_lg_u32 s%d, 0x%x" % (sE1F, OOB))
t("s_cbranch_scc1 L_pubj")
t.add([uncounted(publish(f, sE1, sT2, "sc1")) for f in range(8)])
t("L_pubj:")


def o_mfma(b, m, extra=()):
    j, f, nt = SEQ[m]
    b("%s %s, %s, %s, %s" % (M32, vr(ACC + 16 * nt, 16), vr(wbuf(m), 4), vr(bfrag(j, f), 4),
                             "0" if (j == 0 and f == 0) else vr(ACC + 16 * nt, 16)))
    b.add(w_reads(m + 8))
    b.add(extra)


flag = "buffer_store_dword v%d, v%d, s[%d:%d], 0 offen" % (NM[0], vM1, SA, SA + 3)
pollld = "buffer_load_dword v%d, v%d, s[%d:%d], 0 offen sc1" % (vTM, vP1, SA, SA + 3)


def sib_load(p, f):
    return "buffer_load_dwordx4 %s, v%d, s[%d:%d], s%d offen offset:%d sc1" % (vr(SBUF[p] + 4 * f, 4), vE, SA, SA + 3,
                                                                           sP if f < 4 else sP4, (f & 3) * 1024)


def try_head(b, p):
    b("v_cmp_eq_u32 vcc, 1, v%d" % vTM)
    b("s_mov_b32 s%d, 0x%x" % (sP, OOB))
    b("s_xor_b32 s%d, s%d, %d" % (sT0, sE1, p << 15))
    b("s_bitcmp1_b32 vcc_lo, %d" % p)
    b("s_cselect_b32 s%d, s%d, s%d" % (sP, sT0, sP))
    b("s_add_u32 s%d, s%d, 4096" % (sP4, sP))


NEARLY = 4


def need_head(b, p):
    b("s_cmp_lg_u32 s%d, 0x%x" % (sP, OOB))
    b("s_cbranch_scc1 L_dec%dd" % p)
    b("s_mov_b32 s%d, 0x%x" % (sCNT, SPIN))
    b("L_dec%d:" % p)
    b(pollld)
    b("s_waitcnt vmcnt(0)")
    try_head(b, p)
    b("s_sub_u32 s%d, s%d, 1" % (sCNT, sCNT))
    b("s_cbranch_scc1 L_dec%dl" % p)
    b("s_cmp_eq_u32 s%d, 0x%x" % (sP, OOB))
    b("s_cbranch_scc1 L_dec%d" % p)
    b("L_dec%dl:" % p)
    b.add([sib_load(p, f) for f in range(8 if p == 3 else NEARLY)])
    b("L_dec%dd:" % p)


def send(j):
    a0 = ACC + 8 * j
    return (["s_xor_b32 s%d, s%d, %d" % (sT0, sG, j), "s_lshl_b32 s%d, s%d, 15" % (sT0, sT0),
             "s_add_u32 s%d, s%d, s%d" % (sT0, sT0, sE2P), "s_add_u32 s%d, s%d, %d" % (sT0, sT0, j * 4096)],
            ["v_cvt_pk_bf16_f32 v%d, v%d, v%d" % (a0 + i, a0 + 2 * i, a0 + 2 * i + 1) for i in range(4)],
            ["buffer_store_dwordx4 %s, v%d, s[%d:%d], s%d offen sc1" % (vr(a0, 4), vE, SA, SA + 3, sT0)])


def fetch(j):
    return ["s_add_u32 s%d, s%d, %d" % (sT3, sE2C, j * 4096),
            "buffer_load_dwordx4 %s, v%d, s[%d:%d], s%d offen sc1" % (vr(PB + 4 * (j - 1), 4), vE, SA, SA + 3, sT3)]


extra = {m: [] for m in range(128)}
vM2, vTM2 = NM[1], NM[1] + 1
poll2 = "buffer_load_dword v%%d, v%d, s[%d:%d], 0 offen sc1" % (vP2, SA, SA + 3)
extra[1] += ["s_lshl_b32 s%d, s%d, 7" % (sT0, sWAVE), "s_add_u32 s%d, s%d, 1024" % (sT0, sT0),
             "v_lshl_add_u32 v%d, v0, 2, s%d" % (vP2, sT0)]
extra[2] += ["v_lshlrev_b32 v1, 2, v0", "v_xor_b32 v1, s%d, v1" % sWGL, "v_lshl_add_u32 v%d, v1, 11, v%d" % (vM2, vP2)]
extra[3] += ["s_lshl_b32 s%d, s%d, 11" % (sT0, sWGL), "v_add_u32 v%d, s%d, v%d" % (vP2, sT0, vP2), "v_subrev_u32 v1, 1, v0"]
extra[4] += ["v_cmp_gt_u32 vcc, 7, v1", "v_bfrev_b32 v1, 1", "s_nop 0"]
extra[5] += ["v_cndmask_b32 v%d, v1, v%d, vcc" % (vP2, vP2), "v_cndmask_b32 v%d, v1, v%d, vcc" % (vM2, vM2)]
extra[6] += ["s_mov_b32 s%d, 0x3f80" % sLO, "s_mov_b32 s%d, 0x3f800000" % sHI]
late = Block()
late("s_lshl_b32 s%d, s%d, %d" % (sT0, sHN, WSH))
late("s_and_b32 s%d, s%d, %d" % (sT1, sG, (1 << (WSH - 5)) - 1))
late("s_lshl_b32 s%d, s%d, 5" % (sT1, sT1))
late("s_add_u32 s%d, s%d, s%d" % (sOFF, sT0, sT1))
if WSH < 8:
    late("s_lshr_b32 s%d, s%d, %d" % (sT1, sG, WSH - 5))
    late("s_lshl_b32 s%d, s%d, %d" % (sT1, sT1, WSH + 2))
    late("s_add_u32 s%d, s%d, s%d" % (sOFF, sOFF, sT1))
late("s_mul_i32 s%d, s%d, 114688" % (sT0, sB))
srd(late, SB, sOUT, sT0, "114688")
late("s_lshl_b32 s%d, s%d, 2" % (sT0, sB))
late("s_add_u32 s%d, s%d, s%d" % (sT0, sT0, sHN))
late("s_lshl_b32 s%d, s%d, 18" % (sT0, sT0))
late("s_lshl_b32 s%d, s%d, 10" % (sT1, sWAVE))
late("s_add_u32 s%d, s%d, s%d" % (sT0, sT0, sT1))
late("s_add_u32 s%d, s%d, %d" % (sE2P, sT0, E2_OFF))
late("s_lshl_b32 s%d, s%d, 15" % (sT1, sG))
late("s_add_u32 s%d, s%d, s%d" % (sE2C, sE2P, sT1))
li = [i.text for i in late.ins]
k_ = li.index([x for x in li if x.startswith("s_mul_i32")][0])
extra[7] += li[:k_]
extra[8] += li[k_:k_ + 5]
extra[9] += li[k_ + 5:k_ + 9]
extra[10] += li[k_ + 9:]
for p, base in ((1, STG + 32768), (2, XREG), (3, 0)):
    for nt in range(4):
        extra[32 * p - 14 + nt].append("v_add_u32 v%d, %d, v%d" % (AREG[p] + nt, base, aO2 + nt) if base else
                                       "v_mov_b32 v%d, v%d" % (AREG[p] + nt, aO2 + nt))
for i, nt in enumerate((1, 2, 3)):
    base = 104 + 8 * i
    for k_, j in enumerate((2 * nt, 2 * nt + 1)):
        for d_, part in enumerate(send(j)):
            extra[base + 2 + d_ + 3 * k_] += part
for p in (1, 2):
    for f in range(8):
        extra[32 * p - 16 + 2 * f].append(uncounted(sib_load(p, f)) if f < NEARLY else sib_load(p, f))
for f in range(8):
    extra[72 + 2 * f].append(uncounted(sib_load(3, f)))
extra[38].append(pollld)
extra[62].append(pollld)
t(pollld)
stamp(t, 6)
cst(t, 3)
for m in range(128):
    if m == OPT["fat"]:
        t("s_barrier")
    if m == OPT["flagat"]:
        cst(t, 4)
        t("s_waitcnt vmcnt(0)")
        cst(t, 5)
        t("s_cmp_lg_u32 s%d, 0x%x" % (sE1F, OOB))
        t("s_cbranch_scc1 L_flgf")
        t(flag + " sc1")
        t("s_branch L_flgj")
        t("L_flgf:")
        t.add([uncounted(flag)])
        t("L_flgj:")
        stamp(t, 8)
    if m in (16, 48, 72):
        t("s_waitcnt vmcnt(%d)" % (1 if m == 16 else 0))
        try_head(t, {16: 1, 48: 2, 72: 3}[m])
    if m in (24, 56, 88):
        need_head(t, m // 32 + 1)
        cst(t, 6 + m // 32)
        if m == 24:
            stamp(t, 7)
        if m == 88:
            stamp(t, 9)
    o_mfma(t, m, extra[m])
stamp(t, 10)
cst(t, 9)
for part in send(1):
    t.add(part)
t(poll2 % vTM)
t("s_waitcnt vmcnt(1)")
t("buffer_store_dword v%d, v%d, s[%d:%d], 0 offen sc1" % (NM[0], vM2, SA, SA + 3))
stamp(t, 11)
cst(t, 10)
t(poll2 % vTM2)
t("s_mov_b32 s%d, 0x%x" % (sCNT, SPIN))
t("s_waitcnt vmcnt(2)")
t("L_poll2:")
t("v_cmp_eq_u32 vcc, 1, v%d" % vTM)
t("s_cmp_eq_u32 vcc_lo, 0xfe")
t("s_cbranch_scc1 L_poll2e")
t.add([uncounted(poll2 % vTM)])
t("s_waitcnt vmcnt(1)")
t.add([uncounted("v_cmp_eq_u32 vcc, 1, v%d" % vTM2)])
t("s_nop 0")
t("s_cmp_eq_u32 vcc_lo, 0xfe")
t("s_cbranch_scc1 L_poll2e")
t.add([uncounted(poll2 % vTM2)])
t("s_sub_u32 s%d, s%d, 1" % (sCNT, sCNT))
t("s_waitcnt vmcnt(1)")
t("s_cbranch_scc0 L_poll2")
t("L_poll2e:")
stamp(t, 12)
cst(t, 11)
for j in range(1, 8):
    t.add(fetch(j))
for j in range(1, 8):
    for i in range(4):
        p = PB + 4 * (j - 1) + i
        t("v_dot2_f32_bf16 v%d, v%d, s%d, v%d" % (ACC + 2 * i, p, sLO, ACC + 2 * i))
        t("v_dot2_f32_bf16 v%d, v%d, s%d, v%d" % (ACC + 2 * i + 1, p, sHI, ACC + 2 * i + 1))
t("s_nop 2")
for j in range(4):
    t("v_cvt_pk_bf16_f32 v%d, v%d, v%d" % (ACC + 8 + j, ACC + 2 * j, ACC + 2 * j + 1))
t("buffer_store_dwordx4 %s, v%d, s[%d:%d], s%d offen" % (vr(ACC + 8, 4), vOUT, SB, SB + 3, sOFF))
if STAMPS:
    cst(t, 12)
    t("s_waitcnt vmcnt(0)")
    cst(t, 13)
    stamp(t, 13)
    if STAMPS != 6:
        t("s_memtime s[94:95]")
    t("s_waitcnt lgkmcnt(0)")
    t("s_sub_u32 s%d, s94, s92" % (sSTAMP + 28))
    t("s_getreg_b32 s%d, hwreg(HW_REG_XCC_ID, 0, 4)" % (sSTAMP + 30))
    t("s_getreg_b32 s%d, hwreg(HW_REG_HW_ID)" % sT0)
    t("s_lshl_b32 s%d, s%d, 4" % (sT0, sT0))
    t("s_or_b32 s%d, s%d, s%d" % (sSTAMP + 30, sSTAMP + 30, sT0))
    for i in range(16):
        t("v_mov_b32 v%d, s%d" % (ACC + 16 + i, sSTAMP + 2 * i))
    t("s_lshl_b32 s%d, s2, 2" % sT0)
    t("s_add_u32 s%d, s%d, s%d" % (sT0, sT0, sWAVE))
    t("s_lshl_b32 s%d, s%d, 6" % (sT0, sT0))
    t("s_add_u32 s%d, s%d, %d" % (sT0, sT0, ST_OFF))
    t("v_mov_b32 v1, 0")
    t("s_mov_b64 exec, 1")
    for i in range(4):
        t("buffer_store_dwordx4 %s, v1, s[%d:%d], s%d offen offset:%d" % (vr(ACC + 16 + 4 * i, 4), SA, SA + 3, sT0, 16 * i))
t("L_end:")
t("s_endpgm")
t.finish(hist=tA.ins, vmq=vmqA)
if OPT["single"]:
    pad_hazards(t.ins[:60], hist=tB.ins, check_only=True, where="join from the one-block path")
blocks += side
blocks.append(Block("seldom taken"))
blocks[-1]("L_codeend:")
blocks += rare

hdr = open("standalone__mha_block_cached__near_ridge.s.ref").read().split("; Override launch")[0]
out = [hdr.rstrip()]
out.append("""; Fused Q projection + attention + output projection, one workgroup (8 waves) per (batch, head), one per CU.
;   over the eight groups (partial sums exchanged through d_ws).""")
out.append("; @launch grid=(256,1,1) block=(512,1,1) lds=163840")
out.append('.amdgcn_target "amdgcn-amd-amdhsa--gfx950"')
out.append(".text")
out.append(".globl " + KNAME)
out.append(".p2align 8")
out.append(".type %s,@function" % KNAME)
out.append(KNAME + ":")
for b in blocks:
    out.append("; ---- %s ----" % b.name)
    out.append(b.text())
out.append(".p2align 8")
out.append(".fill 64, 4, 0xbf800000")
out.append('.section .rodata,"a"')
out.append(".p2align 6")
out.append(".amdhsa_kernel " + KNAME)
out.append("""  .amdhsa_next_free_vgpr 256
  .amdhsa_next_free_sgpr 102
  .amdhsa_accum_offset 256
  .amdhsa_group_segment_fixed_size 0
  .amdhsa_kernarg_size 64
  .amdhsa_user_sgpr_count 2
  .amdhsa_user_sgpr_kernarg_segment_ptr 1
  .amdhsa_system_sgpr_workgroup_id_x 1
.end_amdhsa_kernel""")
print("\n".join(out))
```

```python
import sys, struct, math
from asmgen import *

OPT = dict(stamps=0, nt_kv="nt", nt_q="", nt_wo="", wopf=0, qs=0, touch=0, tfl="", ffl="", fine=0, st1="", ld1="sc1", thr=8.0, force_rescale=0, codepf=1, fast=1,
           early="0.1.2.3", k_at="5.6.8.99", v_at="6.7.8.99", thr0=8, rotmask=3, fat=6, flagat=12, single=1,
           noload=0, map=0, rot=0, wseg=256)
for a in sys.argv[1:]:
    k, v = a.split("=")
    OPT[k] = type(OPT[k])(v) if not isinstance(OPT[k], str) else v.replace("_", " ").strip()
STAMPS = OPT["stamps"]
KNAME = "standalone__mha_block_cached__near_ridge_kernel"


def f32(x):
    return "0x%08x" % struct.unpack("<I", struct.pack("<f", x))[0]


CSC = math.log2(math.e) / math.sqrt(128.0)
M16 = "v_mfma_f32_16x16x32_bf16"
M32 = "v_mfma_f32_32x32x16_bf16"
OOB = 0x40000000
SPIN = 0x100000

KRING, VRING, STG, XREG = 0, 49152, 98304, 32768
E1_OFF, E2_OFF, ST_OFF = 0x100000, 0x900000, 0x4000000
sX, sK, sV, sWQ, sWO, sOUT, sDBG, sWS = 4, 6, 8, 10, 12, 14, 16, 18
sWAVE, sG, sB, sHN, sH, sWGL = 20, 21, 22, 23, 24, 25
sBEG, sEND = 26, 27
SA, SB, SC = 28, 32, 36
sOFF, sLDS, sCNT, sT0, sT1, sT2 = 40, 41, 42, 43, 44, 45
sCS, sDEL, sE1, sE2P, sE2C, sTHR = 46, 48, 49, 50, 51, 52
sT3, sTABK, sTABV, sDELV = 53, 54, 55, 56
sP, sP4, sE1F, sE1F4, sLO, sHI = 57, 58, 59, 60, 61, 62
sNXT, sA, sVM, sLIM = 54, 55, 56, 57
sSTAMP = 64
vP2, vP1, vE, vLO, vTM, vOUT = 2, 3, 4, 5, 6, 7
aK, aW, aV = 8, 12, 16
NM = (24, 28)
ACC, QF, S0, S1, KF, VF, XB = 32, 96, 128, 144, 160, 192, 224
PK = XB
vL = (232, 236)
vM1, vINFO, vINF, ONES, vDUM = 240, 242, 243, 244, 251
aWq, aXq = 96, 104
aO1, aO2, aO3 = aK, aW, aV
OB = PB = QF


def cst(b, idx):
    if STAMPS == 7 and OPT["fine"] and 3 <= idx <= 5:
        return
    if STAMPS == 7:
        b("s_memtime s[%d:%d]" % (sSTAMP + 2 * idx, sSTAMP + 2 * idx + 1))


def stamp(b, idx):
    if STAMPS == 7:
        if idx == 5:
            b("s_memrealtime s[%d:%d]" % (sSTAMP + 2, sSTAMP + 3))
    elif STAMPS == 9:
        if idx in (1, 2, 3, 13):
            b("s_memrealtime s[%d:%d]" % (sSTAMP + 2 * idx, sSTAMP + 2 * idx + 1))
            b("s_waitcnt lgkmcnt(0)")
    elif STAMPS == 8:
        if idx in (3, 5, 10, 13):
            b("s_memrealtime s[%d:%d]" % (sSTAMP + 2 * idx, sSTAMP + 2 * idx + 1))
    elif STAMPS:
        b("s_memrealtime s[%d:%d]" % (sSTAMP + 2 * idx, sSTAMP + 2 * idx + 1))
        b("s_waitcnt lgkmcnt(0)")


def srd(b, dst, ptr, off_sreg, size):
    if off_sreg is None:
        b("s_mov_b32 s%d, s%d" % (dst, ptr))
        b("s_mov_b32 s%d, s%d" % (dst + 1, ptr + 1))
    else:
        b("s_add_u32 s%d, s%d, s%d" % (dst, ptr, off_sreg))
        b("s_addc_u32 s%d, s%d, 0" % (dst + 1, ptr + 1))
    b("s_mov_b32 s%d, %s" % (dst + 2, size))
    b("s_mov_b32 s%d, 0x20000" % (dst + 3))


def dma_group(b, S, voffs, soff, flags, n=4):
    for p in range(n):
        o = " offset:%d" % (p * 1024) if p else ""
        b("buffer_load_dwordx4 v%d, s[%d:%d], s%d offen%s %s lds" % (voffs[p], S, S + 3, soff, o, flags))


def loop_begin(b, label, n):
    b("s_mov_b32 s%d, %d" % (sCNT, n))
    b(label + ":")


def loop_end(b, label):
    b("s_sub_u32 s%d, s%d, 1" % (sCNT, sCNT))
    b("s_cmp_lg_u32 s%d, 0" % sCNT)
    b("s_cbranch_scc1 " + label)


def spread(items, counts):
    out, k = [], 0
    for n in counts:
        out.append(items[k:k + n])
        k += n
    assert k == len(items)
    return out


def uncounted(x):
    i_ = parse(x)
    i_.kind = "comment"
    i_.n = 0
    return i_


blocks = []


def new(name):
    b = Block(name)
    blocks.append(b)
    return b


e = new("entry: workgroup -> (batch b, head group g, head hn in group); waves 0-3 compute, 4-7 load")
e("L_start:")
e("s_cmp_ge_u32 s2, 256")
e("s_cbranch_scc1 L_end")
e("s_load_dwordx16 s[4:19], s[0:1], 0")
if STAMPS:
    e("s_memrealtime s[%d:%d]" % (sSTAMP, sSTAMP + 1))
    e("s_memtime s[92:93]")
e("v_lshrrev_b32 v1, 6, v0")
e("v_and_b32 v0, 63, v0")
e("v_readfirstlane_b32 s%d, v1" % sWAVE)
e("s_and_b32 s%d, s2, 7" % sG)
if OPT["map"] == 0:
    e("s_lshr_b32 s%d, s2, 5" % sB)
    e("s_lshr_b32 s%d, s2, 3" % sHN)
    e("s_and_b32 s%d, s%d, 3" % (sHN, sHN))
else:
    e("s_lshr_b32 s%d, s2, 6" % sHN)
    e("s_lshr_b32 s%d, s2, 3" % sB)
    e("s_and_b32 s%d, s%d, 7" % (sB, sB))
e("s_lshl_b32 s%d, s%d, 2" % (sH, sG))
e("s_add_u32 s%d, s%d, s%d" % (sH, sH, sHN))
e("s_lshl_b32 s%d, s%d, 5" % (sWGL, sB))
e("s_add_u32 s%d, s%d, s%d" % (sWGL, sWGL, sH))
e("s_cmp_lt_u32 s%d, 4" % sWAVE)
e("s_cbranch_scc1 L_compute")
e("v_lshrrev_b32 v1, 4, v0")
e("v_and_b32 v3, 15, v0")
e("s_cmp_lt_u32 s%d, 6" % sWAVE)
e("s_cbranch_scc1 L_ldkv")
e.finish()

WOV = [14, 15, 16, 17]
WSH = {256: 8, 128: 7, 64: 6}[OPT["wseg"]]


def wo_setup(b):
    b("v_lshlrev_b32 v2, 2, v1")
    b("v_xor_b32 v2, v2, v3")
    if WSH < 8:
        b("v_lshrrev_b32 v4, %d, v2" % (WSH - 4))
        b("v_and_b32 v2, %d, v2" % ((1 << (WSH - 4)) - 1))
        b("v_lshl_add_u32 v2, v4, %d, v2" % (WSH - 2))
    b("v_lshlrev_b32 v2, 4, v2")
    b("v_lshl_add_u32 v14, v1, 10, v2")
    b("v_add_u32 v15, 3072, v14")
    b("v_add_u32 v16, 6144, v14")
    b("v_add_u32 v17, 9216, v14")
    b("s_lshl_b32 s%d, s%d, 19" % (sT0, sG))
    b("s_lshl_b32 s%d, s%d, %d" % (sT1, sHN, WSH))
    b("s_add_u32 s%d, s%d, s%d" % (sT0, sT0, sT1))
    b("s_sub_u32 s%d, 0x400000, s%d" % (sT1, sT0))
    srd(b, SB, sWO, sT0, "s%d" % sT1)


def kv_tile(b, voffs, skip=False):
    if skip:
        return
    b("s_mov_b32 m0, s%d" % sLDS)
    b("s_add_u32 s%d, s%d, 4096" % (sT0, sLDS))
    dma_group(b, SA, voffs, sOFF, OPT["nt_kv"])
    b("s_mov_b32 m0, s%d" % sT0)
    b("s_add_u32 s%d, s%d, 4096" % (sOFF, sOFF))
    dma_group(b, SA, voffs, sOFF, OPT["nt_kv"])
    b("s_add_u32 s%d, s%d, 4096" % (sOFF, sOFF))
    if OPT["rot"]:
        b("s_and_b32 s%d, s%d, 0x3ffff" % (sOFF, sOFF))
    b("s_add_u32 s%d, s%d, 8192" % (sLDS, sLDS))
    b("s_cmp_eq_u32 s%d, s%d" % (sLDS, sEND))
    b("s_cselect_b32 s%d, s%d, s%d" % (sLDS, sBEG, sLDS))


def first_tile(b):
    if not OPT["rot"]:
        b("s_mov_b32 s%d, 0" % sOFF)
        return
    b("s_mul_i32 s%d, s%d, %d" % (sOFF, sWGL, OPT["rot"]))
    b("s_and_b32 s%d, s%d, 31" % (sOFF, sOFF))
    b("s_lshl_b32 s%d, s%d, 13" % (sOFF, sOFF))


def wo_tile(b):
    b("s_mov_b32 m0, s%d" % sLDS)
    b("s_add_u32 s%d, s%d, 4096" % (sT0, sLDS))
    dma_group(b, SB, WOV, sOFF, OPT["nt_wo"])
    b("s_mov_b32 m0, s%d" % sT0)
    b("s_add_u32 s%d, s%d, 16384" % (sOFF, sOFF))
    dma_group(b, SB, WOV, sOFF, OPT["nt_wo"])
    b("s_add_u32 s%d, s%d, 16384" % (sOFF, sOFF))


def wo3_tile(b):
    b("s_add_u32 s%d, s%d, 2" % (sT1, sNXT))
    b("s_and_b32 s%d, s%d, 3" % (sT1, sT1))
    b("s_lshl_b32 s%d, s%d, 13" % (sLDS, sT1))
    b("s_xor_b32 s%d, s%d, 3" % (sOFF, sHN))
    b("s_lshl_b32 s%d, s%d, 2" % (sOFF, sOFF))
    b("s_add_u32 s%d, s%d, s%d" % (sOFF, sOFF, sT1))
    b("s_lshl_b32 s%d, s%d, 15" % (sOFF, sOFF))
    wo_tile(b)


def tiles(b, label, voffs, n):
    if n > 1:
        b("s_mov_b32 s%d, %d" % (sT3, n))
        b(label + ":")
        kv_tile(b, voffs)
        b("s_sub_u32 s%d, s%d, 1" % (sT3, sT3))
        b("s_cmp_lg_u32 s%d, 0" % sT3)
        b("s_cbranch_scc1 " + label)
    elif n:
        kv_tile(b, voffs)


def q_phase_kv(b, tag, voffs, txt, hooks):
    early = [int(x) for x in OPT["early"].split(".")]
    at = [int(x) for x in txt.split(".")]
    assert max(early) <= at[0] and at == sorted(at) and at[2] >= 6
    b("s_add_u32 s%d, s%d, s%d" % (sT1, sB, sHN))
    b("s_and_b32 s%d, s%d, 3" % (sT1, sT1))
    b("s_lshl_b32 s%d, s%d, 2" % (sT1, sT1))
    b("s_lshr_b32 s%d, %d, s%d" % (sT1, sum(x << (4 * i) for i, x in enumerate(early)), sT1))
    b("s_and_b32 s%d, s%d, 15" % (sCNT, sT1))
    lo, hi = min(early), max(early)
    for i in range(lo):
        b("s_barrier")
        b.add(hooks.get(i, []))
    assert all(x > hi or x == hi for x in at) and all(k <= lo or k > hi for k in hooks)
    b("s_mov_b32 s%d, %d" % (sT2, lo))
    b("L_%se:" % tag)
    b("s_barrier")
    if lo in hooks:
        b("s_cmp_lg_u32 s%d, %d" % (sT2, lo))
        b("s_cbranch_scc1 L_%seh" % tag)
        b.add(hooks[lo])
        b("L_%seh:" % tag)
    b("s_cmp_lg_u32 s%d, s%d" % (sCNT, sT2))
    b("s_cbranch_scc1 L_%sen" % tag)
    b.add(hooks.get(100, []))
    tiles(b, "L_%sei" % tag, voffs, 2)
    b("L_%sen:" % tag)
    b("s_add_u32 s%d, s%d, 1" % (sT2, sT2))
    b("s_cmp_le_u32 s%d, %d" % (sT2, hi))
    b("s_cbranch_scc1 L_%se" % tag)
    tiles(b, "L_%sq%d" % (tag, hi), voffs, at.count(hi))
    for i in range(hi + 1, 8):
        b("s_barrier")
        b.add(hooks.get(i, []))
        tiles(b, "L_%sq%d" % (tag, i), voffs, at.count(i))
    if tag == "k":
        b("s_waitcnt vmcnt(%d)" % (8 * sum(x < 8 for x in at)))
    b("s_barrier")
    tiles(b, "L_%sq8" % tag, voffs, at.count(8))
    return 2 + sum(x <= 8 for x in at)


def att_phase(b, tag, voffs, nxt, lead, f1, f2, tend, sw_at, sw_reg, sw_val):
    sT = sCNT
    stamps = STAMPS == 1 and tag == "v"
    last = 35 if tag == "k" else 31
    b("s_mov_b32 s%d, 0" % sT)
    b("s_mov_b32 s%d, %d" % (sNXT, nxt))
    b("L_%sd:" % tag)
    b("s_sub_u32 s%d, s%d, s%d" % (sA, sNXT, sT))
    for a_ in (1, 2, 3, 4, 5):
        b("s_cmp_eq_u32 s%d, %d" % (sA, lead + 1 + a_))
        b("s_cbranch_scc1 L_%sd%d" % (tag, a_))
    b("s_waitcnt vmcnt(0)")
    for a_ in range(1, 6):
        b("L_%sd%d:" % (tag, a_))
        b("s_waitcnt vmcnt(%d)" % (8 * a_))
    if stamps:
        b("s_memrealtime s[60:61]")
        b("s_waitcnt lgkmcnt(0)")
    b("s_barrier")
    if stamps:
        b("s_memrealtime s[62:63]")
        b("s_waitcnt lgkmcnt(0)")
        b("s_mov_b32 m0, s%d" % sT)
        b("s_nop 0")
        b("v_writelane_b32 v20, s60, m0")
        b("v_writelane_b32 v21, s62, m0")
    b("s_getreg_b32 s%d, hwreg(HW_REG_IB_STS, 22, 2)" % sA)
    b("s_getreg_b32 s%d, hwreg(HW_REG_IB_STS, 0, 4)" % sVM)
    b("s_lshl_b32 s%d, s%d, 4" % (sA, sA))
    b("s_or_b32 s%d, s%d, s%d" % (sVM, sVM, sA))
    b("L_%sdi:" % tag)
    b("s_cmp_le_u32 s%d, 21" % sNXT)
    b("s_cselect_b32 s%d, %d, %d" % (sLIM, f1, f2))
    b("s_add_u32 s%d, s%d, s%d" % (sLIM, sLIM, sT))
    b("s_min_u32 s%d, s%d, %d" % (sLIM, sLIM, last))
    b("s_cmp_gt_u32 s%d, s%d" % (sNXT, sLIM))
    b("s_cbranch_scc1 L_%sdn" % tag)
    b("s_cmp_le_u32 s%d, %d" % (sVM, OPT["thr0"]))
    b("s_cbranch_scc1 L_%sdg" % tag)
    b("s_add_u32 s%d, s%d, %d" % (sLIM, sT, lead + 1))
    b("s_cmp_gt_u32 s%d, s%d" % (sNXT, sLIM))
    b("s_cbranch_scc1 L_%sdn" % tag)
    b("L_%sdg:" % tag)
    if last > 31:
        b("s_cmp_ge_u32 s%d, 32" % sNXT)
        b("s_cbranch_scc1 L_kdw")
    b("s_cmp_eq_u32 s%d, %d" % (sNXT, sw_at))
    b("s_cselect_b32 s%d, %d, s%d" % (sw_reg, sw_val, sw_reg))
    kv_tile(b, voffs, OPT["noload"] & 1)
    b("L_%sdj:" % tag)
    b("s_add_u32 s%d, s%d, 1" % (sNXT, sNXT))
    b("s_add_u32 s%d, s%d, 8" % (sVM, sVM))
    b("s_branch L_%sdi" % tag)
    if last > 31:
        b("L_kdw:")
        wo3_tile(b)
        b("s_branch L_kdj")
    b("L_%sdn:" % tag)
    b("s_add_u32 s%d, s%d, 1" % (sT, sT))
    b("s_cmp_lt_u32 s%d, %d" % (sT, tend))
    b("s_cbranch_scc1 L_%sd" % tag)


b = new("K loader")
b(".p2align 8")
b("L_ldkv:")
b("s_cmp_eq_u32 s%d, 5" % sWAVE)
b("s_cbranch_scc1 L_ldv")
for p in range(4):
    b("v_add_u32 v4, %d, v1" % (4 * p))
    b("v_xor_b32 v4, v4, v3")
    b("v_lshlrev_b32 v4, 4, v4")
    b("v_lshl_add_u32 v%d, v1, 8, v4" % (10 + p))
b("s_lshl_b32 s%d, s%d, 18" % (sT0, sWGL))
b("s_waitcnt lgkmcnt(0)")
srd(b, SA, sK, sT0, "0x40000")
first_tile(b)
b("s_mov_b32 s%d, %d" % (sLDS, KRING))
b("s_mov_b32 s%d, %d" % (sBEG, KRING))
b("s_mov_b32 s%d, %d" % (sEND, KRING + 49152))
KV4 = [10, 11, 12, 13]
hooks = {}
if OPT["wopf"] >= 0:
    b("s_lshl_b32 s%d, s%d, 19" % (sT0, sG))
    b("s_lshr_b32 s%d, s2, 3" % sT1)
    b("s_lshl_b32 s%d, s%d, 14" % (sT1, sT1))
    b("s_add_u32 s%d, s%d, s%d" % (sT0, sT0, sT1))
    srd(b, SC, sWO, sT0, "16384")
    b("v_lshlrev_b32 v18, 7, v0")
    b("v_add_u32 v19, 8192, v18")
    hooks[OPT["wopf"]] = ["buffer_load_dword v20, v18, s[%d:%d], 0 offen" % (SC, SC + 3),
                          "buffer_load_dword v21, v19, s[%d:%d], 0 offen" % (SC, SC + 3)]
b.add(hooks.pop(200, []))
NK0 = q_phase_kv(b, "k", KV4, OPT["k_at"], hooks)
wo_setup(b)
att_phase(b, "k", KV4, NK0, 2, 7, 5, 30, 19, sEND, KRING + 32768)
b("s_barrier")
b("L_k2:")
wo3_tile(b)
b("s_add_u32 s%d, s%d, 1" % (sNXT, sNXT))
b("s_cmp_le_u32 s%d, 35" % sNXT)
b("s_cbranch_scc1 L_k2")
b("s_barrier")
b("s_waitcnt vmcnt(0)")
b("s_barrier")
b("s_endpgm")
b.finish(hist=e.ins)

b = new("V loader")
b(".p2align 8")
b("L_ldv:")
for par in range(2):
    b("v_lshlrev_b32 v4, 1, v1")
    b("v_xor_b32 v4, v4, v3")
    if par:
        b("v_xor_b32 v4, 8, v4")
    b("v_lshlrev_b32 v4, 4, v4")
    b("v_lshl_add_u32 v%d, v1, 8, v4" % (10 + par))
b("s_lshl_b32 s%d, s%d, 18" % (sT0, sWGL))
b("s_waitcnt lgkmcnt(0)")
srd(b, SA, sV, sT0, "0x40000")
first_tile(b)
b("s_mov_b32 s%d, %d" % (sLDS, VRING + 2 * 8192))
b("s_mov_b32 s%d, %d" % (sBEG, VRING))
b("s_mov_b32 s%d, %d" % (sEND, VRING + 49152))
V4 = [10, 11, 10, 11]
srd(b, SC, sWS, None, "0x10000000")
b("v_mov_b32 v4, 0")
b("v_mov_b32 v5, 0")
b("s_lshl_b32 s%d, s%d, 11" % (sT0, sWGL))
b("v_lshlrev_b32 v8, 3, v0")
b("buffer_store_dwordx2 v[4:5], v8, s[%d:%d], s%d offen sc1" % (SC, SC + 3, sT0))
b("buffer_store_dwordx2 v[4:5], v8, s[%d:%d], s%d offen offset:1024 sc1" % (SC, SC + 3, sT0))
b("s_getreg_b32 s%d, hwreg(HW_REG_XCC_ID, 0, 4)" % sT1)
b("s_add_u32 s%d, s%d, 1" % (sT1, sT1))
b("v_mov_b32 v7, s%d" % sT1)
b("s_mov_b64 exec, 1")
b("buffer_store_dword v7, v4, s[%d:%d], s%d offen offset:512 sc1" % (SC, SC + 3, sT0))
b("s_mov_b64 exec, -1")
b("s_lshl_b32 s%d, s%d, 5" % (sT0, sB))
b("s_add_u32 s%d, s%d, s%d" % (SB, sDBG, sT0))
b("s_addc_u32 s%d, s%d, 0" % (SB + 1, sDBG + 1))
b("s_mov_b32 s%d, 1" % (SB + 2))
NV0 = q_phase_kv(b, "v", V4, OPT["v_at"],
                 {0: ["s_waitcnt vmcnt(0)", "s_atomic_add s%d, s[%d:%d], 0x0" % (SB + 2, SB, SB + 1)]})
att_phase(b, "v", V4, NV0, 0, 5, 3, 32, 18, sBEG, VRING + 16384)
b("s_barrier")
if STAMPS == 1:
    b("s_lshl_b32 s%d, s2, 9" % sT0)
    b("s_add_u32 s%d, s%d, %d" % (sT0, sT0, ST_OFF + 0x100000))
    b("v_lshlrev_b32 v1, 2, v0")
    b("buffer_store_dword v20, v1, s[%d:%d], s%d offen" % (SC, SC + 3, sT0))
    b("buffer_store_dword v21, v1, s[%d:%d], s%d offen offset:256" % (SC, SC + 3, sT0))
b("s_endpgm")
b.finish(hist=e.ins)


sGST, sKSH, sL0, sL1, sL2, s4K = 54, 55, 56, 57, 58, 59


def q_phase_xw(b):
    def chunk():
        b("s_lshl_b32 s%d, s%d, s%d" % (sOFF, sT2, sKSH))
        b("s_mov_b32 m0, s%d" % sL0)
        b("s_add_u32 s%d, s%d, 1" % (sT2, sT2))
        b("s_and_b32 s%d, s%d, 7" % (sT2, sT2))
        b("s_mov_b32 s%d, -4" % sT3)
        b("L_xwg:")
        if not OPT["noload"] & 2:
            dma_group(b, SA, [10, 11, 12, 13], sOFF, OPT["nt_q"])
        b("s_add_u32 m0, m0, s%d" % s4K)
        b("s_add_u32 s%d, s%d, s%d" % (sOFF, sOFF, sGST))
        b("s_add_u32 s%d, s%d, 1" % (sT3, sT3))
        b("s_cbranch_scc0 L_xwg")
        b("s_mov_b32 s%d, s%d" % (sT3, sL0))
        b("s_mov_b32 s%d, s%d" % (sL0, sL1))
        b("s_mov_b32 s%d, s%d" % (sL1, sL2))
        b("s_mov_b32 s%d, s%d" % (sL2, sT3))
    b("s_setprio 2")
    b("s_cmp_eq_u32 s%d, 7" % sWAVE)
    b("s_cbranch_scc1 L_setw")
    b("v_lshrrev_b32 v5, 3, v0")
    b("v_and_b32 v6, 7, v0")
    b("v_lshrrev_b32 v7, 1, v5")
    b("v_xor_b32 v4, v7, v6")
    b("v_lshlrev_b32 v4, 4, v4")
    b("v_lshl_add_u32 v10, v5, 10, v4")
    b("v_xor_b32 v4, 64, v10")
    b("v_add_u32 v11, %d, v4" % (8192 - 1024))
    b("v_add_u32 v12, %d, v10" % (2 * (8192 - 1024)))
    b("v_add_u32 v13, %d, v4" % (3 * (8192 - 1024)))
    b("s_mul_i32 s%d, s%d, 114688" % (sT0, sB))
    b("s_mov_b32 s%d, 114688" % (SA + 2))
    b("s_mov_b32 s%d, 32768" % sGST)
    b("s_mov_b32 s%d, 7" % sKSH)
    b("s_mov_b32 s%d, %d" % (sL0, STG))
    b("s_waitcnt lgkmcnt(0)")
    b("s_add_u32 s%d, s%d, s%d" % (SA, sX, sT0))
    b("s_addc_u32 s%d, s%d, 0" % (SA + 1, sX + 1))
    b("s_branch L_setj")
    b("L_setw:")
    b("v_lshlrev_b32 v4, 1, v1")
    b("v_xor_b32 v4, v4, v3")
    b("v_lshlrev_b32 v4, 4, v4")
    b("v_lshl_add_u32 v10, v1, 13, v4")
    b("v_add_u32 v11, %d, v10" % (32768 - 1024))
    b("v_xor_b32 v4, 128, v10")
    b("v_add_u32 v12, %d, v4" % (2 * (32768 - 1024)))
    b("v_add_u32 v13, %d, v4" % (3 * (32768 - 1024)))
    b("s_lshl_b32 s%d, s%d, 8" % (sT0, sH))
    b("s_sub_u32 s%d, 0x400000, s%d" % (SA + 2, sT0))
    b("s_mov_b32 s%d, 131072" % sGST)
    b("s_mov_b32 s%d, 19" % sKSH)
    b("s_mov_b32 s%d, %d" % (sL0, STG + 16384))
    b("s_waitcnt lgkmcnt(0)")
    b("s_add_u32 s%d, s%d, s%d" % (SA, sWQ, sT0))
    b("s_addc_u32 s%d, s%d, 0" % (SA + 1, sWQ + 1))
    b("L_setj:")
    b("s_mov_b32 s%d, 0x20000" % (SA + 3))
    b("s_lshl_b32 s%d, s%d, 1" % (sT2, sHN))
    b("s_add_u32 s%d, s%d, s%d" % (sT2, sT2, sB))
    b("s_and_b32 s%d, s%d, %d" % (sT2, sT2, OPT["rotmask"]))
    b("s_movk_i32 s%d, 0x1000" % s4K)
    b("s_add_u32 s%d, s%d, 32768" % (sL1, sL0))
    b("s_sub_u32 s%d, s%d, %d" % (sL2, sL0, STG - XREG))
    b("s_mov_b32 s%d, 8" % sCNT)
    b("s_branch L_xwgo")
    b("L_xw:")
    b("s_waitcnt vmcnt(16)")
    b("s_barrier")
    b("L_xwgo:")
    chunk()
    b("s_sub_u32 s%d, s%d, 1" % (sCNT, sCNT))
    b("s_cmp_eq_u32 s%d, 7" % sCNT)
    b("s_cbranch_scc1 L_xwgo")
    b("s_cmp_lg_u32 s%d, 0" % sCNT)
    b("s_cbranch_scc1 L_xw")
    wo_setup(b)
    b("s_waitcnt vmcnt(16)")
    b("s_barrier")
    b("s_waitcnt vmcnt(0)")
    b("s_barrier")
    b("s_barrier")
    b("s_setprio 0")
    b("s_cmp_eq_u32 s%d, 7" % sWAVE)
    b("s_cbranch_scc1 L_attw")


def wo_trickle(b, tag, blk):
    first = 4 if blk == 0 else 2
    for i in range(first + 1):
        b("s_barrier")
    if tag == "w":
        b("s_lshl_b32 s%d, s%d, 5" % (sT0, sB))
        b("s_add_u32 s%d, s%d, s%d" % (SC, sDBG, sT0))
        b("s_addc_u32 s%d, s%d, 0" % (SC + 1, sDBG + 1))
        b("s_load_dword s%d, s[%d:%d], 0x0 glc" % (SC + 2, SC, SC + 1))
    b("s_xor_b32 s%d, s%d, %d" % (sOFF, sHN, blk))
    b("s_lshl_b32 s%d, s%d, 17" % (sOFF, sOFF))
    b("s_mov_b32 s%d, %d" % (sLDS, STG + blk * 32768))
    loop_begin(b, "L_%s2" % tag, 4)
    wo_tile(b)
    b("s_add_u32 s%d, s%d, 8192" % (sLDS, sLDS))
    for i in range(4):
        b("s_barrier")
    loop_end(b, "L_%s2" % tag)
    b("s_xor_b32 s%d, s%d, 2" % (sOFF, sHN))
    b("s_lshl_b32 s%d, s%d, 17" % (sOFF, sOFF))
    b("s_add_u32 s%d, s%d, %d" % (sOFF, sOFF, blk * 65536))
    b("s_mov_b32 s%d, %d" % (sLDS, XREG + blk * 16384))
    wo_tile(b)
    b("s_add_u32 s%d, s%d, 8192" % (sLDS, sLDS))
    for i in range(4):
        b("s_barrier")
    wo_tile(b)
    done = first + 20
    if tag == "w":
        for i in range(3):
            b("s_barrier")
        done += 3
        b("s_mov_b32 s%d, 0x%x" % (sCNT, SPIN))
        b("s_branch L_wchk")
        b("L_wpoll:")
        b("s_load_dword s%d, s[%d:%d], 0x0 glc" % (SC + 2, SC, SC + 1))
        b("L_wchk:")
        b("s_waitcnt lgkmcnt(0)")
        b("s_sub_u32 s%d, s%d, 1" % (sCNT, sCNT))
        b("s_cbranch_scc1 L_wpolld")
        b("s_cmp_lt_u32 s%d, 32" % (SC + 2))
        b("s_cbranch_scc1 L_wpoll")
        b("L_wpolld:")
    for i in range(29 - done):
        b("s_barrier")
    b("s_waitcnt vmcnt(0)")
    b("s_barrier")
    b("s_barrier")
    b("s_barrier")
    b("s_endpgm")


bq = Block("x / wq loaders: Q phase")
q_phase_xw(bq)
wo_trickle(bq, "x", 0)
bq("L_attw:")
wo_trickle(bq, "w", 1)
bq.finish(hist=e.ins)
blocks.insert(1, bq)

c = new("compute waves: addresses")
c(".p2align 8")
c("L_compute:")
if OPT["codepf"]:
    c("s_cmp_lg_u32 s%d, 1" % sWAVE)
    c("s_cbranch_scc1 L_nopf")
    c("s_getpc_b64 s[56:57]")
    c("L_pc:")
    c("s_sub_u32 s56, s56, L_pc-L_start")
    c("s_subb_u32 s57, s57, 0")
    c("s_lshr_b32 s%d, s2, 3" % sT0)
    c("s_and_b32 s%d, s%d, 7" % (sT0, sT0))
    c("s_mul_i32 s%d, s%d, ((L_codeend-L_start+1023)/1024)*128" % (sT0, sT0))
    c("v_lshlrev_b32 v1, 7, v0")
    c("v_add_u32 v1, s%d, v1" % sT0)
    c("v_min_u32 v1, L_codeend-L_start-4, v1")
    c("v_mov_b32 v3, s57")
    c("v_add_co_u32 v2, vcc, s56, v1")
    c("s_nop 1")
    c("v_addc_co_u32 v3, vcc, 0, v3, vcc")
    c("v_cmp_gt_u32 vcc, (L_codeend-L_start+1023)/1024, v0")
    c("s_and_saveexec_b64 s[58:59], vcc")
    c("global_load_dword v%d, v[2:3], off" % vDUM)
    c("s_mov_b64 exec, -1")
    c("L_nopf:")
for i in range(4):
    c("v_mov_b32 v%d, 0" % (XB + 28 + i))
c("v_lshrrev_b32 v1, 4, v0")
c("v_and_b32 v2, 15, v0")
c("v_lshrrev_b32 v3, 5, v0")
c("v_and_b32 v4, 1, v1")
c("v_lshl_add_u32 v3, v4, 1, v3")
c("v_xor_b32 v3, v3, v2")
c("v_lshlrev_b32 v3, 4, v3")
c("v_lshl_add_u32 v%d, v2, 8, v3" % aK)
for ks in range(1, 4):
    c("v_xor_b32 v%d, %d, v%d" % (aK + ks, ks << 6, aK))
c("s_lshl_b32 s%d, s%d, 12" % (sT0, sWAVE))
c("s_add_u32 s%d, s%d, %d" % (sT0, sT0, STG))
c("v_lshrrev_b32 v3, 1, v2")
c("v_xor_b32 v3, v3, v1")
c("v_lshlrev_b32 v3, 4, v3")
c("v_lshl_add_u32 v3, v2, 7, v3")
c("v_add_u32 v%d, s%d, v3" % (aXq, sT0))
c("v_xor_b32 v%d, 64, v%d" % (aXq + 1, aXq))
c("v_bfe_u32 v2, v0, 2, 2")
c("v_lshrrev_b32 v3, 2, v0")
c("v_and_b32 v4, 7, v3")
c("v_lshlrev_b32 v4, 5, v4")
c("v_lshl_add_u32 v3, v3, 8, v4")
c("v_and_b32 v4, 3, v0")
c("v_lshl_add_u32 v3, v4, 3, v3")
c("v_add_u32 v%d, %d, v3" % (aV, VRING + 16384))
for db in range(1, 8):
    c("v_xor_b32 v%d, %d, v%d" % (aV + db, db << 5, aV))
c("v_lshl_add_u32 v3, v1, 10, v3")
c("v_add_u32 v%d, %d, v3" % (aWq, STG + 16384))
for db in range(1, 8):
    c("v_xor_b32 v%d, %d, v%d" % (aWq + db, db << 5, aWq))
c("v_mul_u32_u24 v2, 320, v2")
c("v_lshrrev_b32 v3, 5, v0")
c("v_lshl_add_u32 v3, v3, 11, v2")
c("v_and_b32 v4, 1, v1")
c("v_lshl_add_u32 v3, v4, 5, v3")
c("v_and_b32 v4, 1, v0")
c("v_lshl_add_u32 v3, v4, 4, v3")
c("v_bfe_u32 v4, v0, 1, 1")
c("v_lshl_add_u32 v3, v4, 3, v3")
c("s_lshl_b32 s%d, s%d, 5" % (sT0, sG))
c("v_xor_b32 v%d, s%d, v3" % (aO2, sT0))
for nt in range(1, 4):
    c("v_xor_b32 v%d, %d, v%d" % (aO2 + nt, nt << 6, aO2))
c("v_and_b32 v2, 31, v0")
c("s_lshl_b32 s%d, s%d, 5" % (sT0, sWAVE))
c("v_add_u32 v2, s%d, v2" % sT0)
c("v_lshlrev_b32 v%d, 4, v0" % vE)
c("v_cmp_lt_u32 vcc, 111, v2")
c("v_bfrev_b32 v3, 1")
c("v_lshlrev_b32 v2, 10, v2")
c("v_cndmask_b32 v1, 0, v3, vcc")
c("v_or_b32 v%d, v%d, v1" % (vE, vE))
c("v_lshrrev_b32 v1, 5, v0")
c("v_lshl_add_u32 v%d, v1, 4, v2" % vOUT)
c("v_xor_b32 v1, s%d, v0" % sWGL)
c("v_lshlrev_b32 v1, 11, v1")
c("v_cmp_gt_u32 vcc, 4, v0")
c("v_add_u32 v2, 512, v1")
c("s_lshl_b32 s%d, s%d, 7" % (sT0, sWAVE))
c("v_cndmask_b32 v%d, v3, v2, vcc" % vINFO)
c("v_lshl_add_u32 v2, v0, 2, s%d" % sT0)
c("v_add_u32 v1, v1, v2")
c("s_lshl_b32 s%d, s%d, 11" % (sT1, sWGL))
c("v_add_u32 v2, s%d, v2" % sT1)
c("v_subrev_u32 v%d, 1, v0" % vTM)
c("v_cmp_gt_u32 vcc, 3, v%d" % vTM)
c("s_mov_b32 s%d, %s" % (sCS, f32(CSC)))
c("s_mov_b32 s%d, %s" % (sCS + 1, f32(CSC)))
c("v_cndmask_b32 v%d, v3, v1, vcc" % vM1)
c("v_cndmask_b32 v%d, v3, v2, vcc" % vP1)
for i in range(4):
    c("%s %s, %s, %s, 0" % (M32, vr(ACC + 16 * i, 16), vr(XB + 28, 4), vr(XB + 28, 4)))
c("s_mov_b32 s%d, %s" % (sTHR, f32(0.0 if OPT["force_rescale"] else OPT["thr"])))
c("s_waitcnt lgkmcnt(0)")
srd(c, SA, sWS, None, "0x10000000")
c("s_lshl_b32 s%d, s%d, 15" % (sE1, sWGL))
c("s_lshl_b32 s%d, s%d, 13" % (sT0, sWAVE))
c("s_add_u32 s%d, s%d, s%d" % (sE1, sE1, sT0))
c("s_add_u32 s%d, s%d, %d" % (sE1, sE1, E1_OFF))
c("s_mov_b32 s%d, %d" % (sT2, sum(((1, -3, 2)[i % 3] + 3) << (3 * i) for i in range(8))))
c("s_mov_b32 s%d, 8" % sCNT)
if OPT["single"]:
    c("s_cmp_eq_u32 s%d, 3" % sWAVE)
    c("s_cbranch_scc1 L_paths")
c.finish(hist=e.ins)


def k_reads(slot_off):
    return ["ds_read_b128 %s, v%d offset:%d" % (vr(KF + 16 * kb + 4 * ks, 4), aK + ks, slot_off + kb * 4096)
            for ks in range(4) for kb in range(2)]


def v_read(db, u, off):
    return "ds_read_b64_tr_b16 %s, v%d offset:%d" % (vr(VF + 4 * db + 2 * u, 2), aV + db, off + u * 4096)


def ex(S, i):
    return "v_exp_f32 v%d, v%d" % (S + i, S + i)


def cvt(S, j):
    return "v_cvt_pk_bf16_f32 v%d, v%d, v%d" % (PK + j, S + 2 * j, S + 2 * j + 1)


def qk(SN, ks, kb, blk, first):
    d = vr(SN + 8 * blk + 4 * kb, 4)
    cc = d if ks else ("0" if first else vr(NM[blk], 4))
    return "%s %s, %s, %s, %s" % (M16, d, vr(KF + 16 * kb + 4 * ks, 4), vr(QF + 16 * blk + 4 * ks, 4), cc)


def pv(db, blk):
    d = vr(ACC + 32 * blk + 4 * db, 4)
    return "%s %s, %s, %s, %s" % (M16, d, vr(VF + 4 * db, 4), vr(PK + 4 * blk, 4), d)


def sum_mfma(blk):
    return "%s %s, %s, %s, %s" % (M16, vr(vL[blk], 4), vr(ONES, 4), vr(PK + 4 * blk, 4), vr(vL[blk], 4))


def max_tree(dst, S, n):
    r = ["v_max3_f32 v%d, v%d, v%d, v%d" % (dst, S, S + 1, S + 2)]
    for i in range(3, n - 1, 2):
        r.append("v_max3_f32 v%d, v%d, v%d, v%d" % (dst, dst, S + i, S + i + 1))
    r.append("v_max_f32 v%d, v%d, v%d" % (dst, dst, S + n - 1))
    return r


def blk_max(b, S, dst, tmp):
    b.add(max_tree(dst, S, 8))
    for perm in ("v_permlane32_swap_b32", "v_permlane16_swap_b32"):
        b("v_mov_b32 v%d, v%d" % (tmp, dst))
        b("%s v%d, v%d" % (perm, tmp, dst))
        b("v_max_f32 v%d, v%d, v%d" % (dst, tmp, dst))


def weave(b, mfmas, gaps):
    assert len(mfmas) == len(gaps)
    for m_, g in zip(mfmas, gaps):
        b.add([x for x in [m_] + list(g) if x is not None])


AREG = {0: aO1, 1: aO3, 2: aO1, 3: aO3}
SBUF = {1: S0, 2: KF, 3: XB}
SEQ = [(j, f, nt) for j in range(3) for f in range(8) for nt in range(4)]
SEQ += [(3, f, nt) for nt in (1, 2, 3, 0) for f in range(8)]


def wbuf(m):
    return (KF if m < 8 else VF) + 4 * (m & 7)


def w_reads(m):
    if m >= len(SEQ):
        return []
    j, f, nt = SEQ[m]
    ks, y = f >> 1, f & 1
    return ["ds_read_b64_tr_b16 %s, v%d offset:%d" % (vr(wbuf(m) + 2 * u, 2), AREG[j] + nt,
                                                   ks * 8192 + u * 4096 + y * 1024) for u in range(2)]


def bfrag(j, f):
    return OB + 16 * (f & 1) + 4 * (f >> 1) if j == 0 else SBUF[j] + 4 * f


def publish(f, lo, hi, fl):
    return "buffer_store_dwordx4 %s, v%d, s[%d:%d], s%d offen offset:%d %s" % (vr(bfrag(0, f), 4), vE, SA, SA + 3,
                                                                           lo if f < 4 else hi, (f & 3) * 1024, fl)


rare = []


def compute_path(sfx, nb, out):
    B = range(nb)

    def blk(i, x):
        return x if i < nb else None

    def mk(name):
        bb = Block(name + (" (two query blocks)" if nb == 2 else " (one query block: wave 3)"))
        out.append(bb)
        return bb

    def q_reads(s_):
        W = VF if s_ == 0 else S0
        r = [blk(i, "ds_read_b128 %s, v%d offset:%d" % (vr(XB + 8 * s_ + 4 * i, 4), aXq + s_, i * 2048)) for i in range(2)]
        for db in range(8):
            for u in range(2):
                r.append("ds_read_b64_tr_b16 %s, v%d offset:%d" % (vr(W + 4 * db + 2 * u, 2), aWq + db, s_ * 8192 + u * 1024))
        return r

    def q_mfmas(s_):
        W = VF if s_ == 0 else S0
        r = []
        for db in range(8):
            for i in range(2):
                d = vr(ACC + 32 * i + 4 * db, 4)
                r.append(blk(i, "%s %s, %s, %s, %s" % (M16, d, vr(W + 4 * db, 4), vr(XB + 8 * s_ + 4 * i, 4), d)))
        return r

    q0 = mk("Q projection: first reads")
    q0("L_path%s:" % sfx)
    q0("s_barrier")
    stamp(q0, 1)
    if STAMPS == 10:
        q0("s_memtime s[92:93]")
    q0.add([x for x in q_reads(0) if x])
    lgq0, _ = q0.finish(hist=c.ins)
    ql = mk("Q projection")
    ql("L_q%s:" % sfx)
    tabq = ["s_and_b32 s%d, s%d, 7" % (sDEL, sT2), "s_lshr_b32 s%d, s%d, 3" % (sT2, sT2),
            "s_sub_u32 s%d, s%d, 3" % (sDEL, sDEL), "s_lshl_b32 s%d, s%d, 15" % (sDEL, sDEL)]
    adv = ["v_add_u32 v%d, s%d, v%d" % (r_, sDEL, r_) for r_ in range(aWq, aWq + 10)]
    QS = OPT["qs"]
    gaps = spread(q_reads(1), {0: [2, 1, 2, 1, 2, 1, 1, 1, 1, 1, 1, 1, 1, 1, 1, 0], 1: [2, 2, 1, 2, 1, 2, 1, 2, 1, 2, 1, 1, 0, 0, 0, 0],
                               2: [2, 2, 1, 2, 1, 2, 1, 2, 1, 2, 1, 1, 0, 0, 0, 0]}[QS])
    gaps[1] += tabq[:2]
    gaps[3] += tabq[2:]
    weave(ql, q_mfmas(0), gaps)
    m1 = q_mfmas(1)
    NBQ = {0: 6, 1: 2, 2: 4}[QS]
    if QS:
        tail_ = ql.ins[-4 if nb == 2 else -2:]
        del ql.ins[-len(tail_):]
        k_ = {1: 8, 2: 6}[QS]
        weave(ql, tail_, spread(adv[:k_], ([2, 2, 2, 2] if k_ == 8 else [2, 2, 1, 1]) if nb == 2 else [k_ // 2, k_ // 2]))
        weave(ql, m1[:NBQ], spread(adv[k_:], [1] * NBQ))
    else:
        weave(ql, m1[:6], spread(adv, [2, 2, 2, 2, 1, 1]))
    ql("s_waitcnt lgkmcnt(0)")
    ql("s_barrier")
    if STAMPS == 9:
        ql("s_memrealtime s[88:89]")
        ql("s_waitcnt lgkmcnt(0)")
        for i in range(1, 9):
            ql("s_cmp_eq_u32 s%d, %d" % (sCNT, 9 - i))
            ql("s_cselect_b32 s%d, s88, s%d" % (sSTAMP + 2 * (i + 3), sSTAMP + 2 * (i + 3)))
    weave(ql, m1[NBQ:], spread(q_reads(0), {6: [2, 2, 2, 2, 2, 2, 2, 2, 1, 1], 2: [2, 2, 1, 2, 1, 2, 1, 1, 1, 1, 1, 1, 1, 1],
                                            4: [2, 2, 2, 1, 2, 1, 2, 1, 2, 1, 1, 1]}[NBQ]))
    loop_end(ql, "L_q%s" % sfx)
    lgq1, _ = ql.finish(hist=q0.ins, lgq=lgq0)
    assert STAMPS or lgq1 == lgq0[-len(lgq1):], (lgq0, lgq1)
    pad_hazards(ql.ins, hist=ql.ins, check_only=True, where="q loop back edge")

    q = mk("attention set-up")
    stamp(q, 2)
    if STAMPS == 10:
        q("s_memtime s[94:95]")
    q("s_waitcnt lgkmcnt(0)")
    q.add(k_reads(0))
    q("s_waitcnt vmcnt(0)")

    def conv(ks):
        r = []
        for i in B:
            a0, f0 = ACC + 32 * i + 8 * ks, QF + 16 * i + 4 * ks
            if ks == 0:
                r += ["v_pk_mul_f32 %s, %s, s[%d:%d]" % (vr(a0 + 2 * j, 2), vr(a0 + 2 * j, 2), sCS, sCS + 1) for j in range(4)]
            else:
                r += ["v_mul_f32 v%d, s%d, v%d" % (a0 + j, sCS, a0 + j) for j in range(8)]
            r += ["v_cvt_pk_bf16_f32 v%d, v%d, v%d" % (f0 + j, a0 + 2 * j, a0 + 2 * j + 1) for j in range(4)]
        for i in B:
            f0 = QF + 16 * i + 4 * ks
            r += ["v_permlane16_swap_b32 v%d, v%d" % (f0 + j, f0 + 2 + j) for j in range(2)]
        return r

    k1 = k_reads(8192)
    init = ["v_mov_b32 v%d, 0" % (vL[0] + i) for i in range(8)] + ["v_mov_b32 v%d, 0x3f803f80" % (ONES + i) for i in range(4)]
    q.add(conv(0))
    q.add(init[:4])
    qk0 = [blk(i, qk(S0, ks, kb, i, True)) for ks in range(4) for kb in range(2) for i in range(2)]
    for ks in range(3):
        g = spread(conv(ks + 1), [7, 7, 7, 7] if nb == 2 else [4, 3, 4, 3])
        g[2].insert(0, k1[2 * ks])
        if ks:
            g[0].insert(0, k1[2 * ks - 1])
        weave(q, qk0[4 * ks:4 * ks + 4], g)
    weave(q, qk0[12:], [[k1[5]] + init[4:6], init[6:8], [k1[6]] + init[8:10], init[10:]])
    z = vr(vL[0], 4)
    weave(q, [blk(i >> 1, "%s %s, %s, %s, 0" % (M32, vr(ACC + 16 * i, 16), z, z)) for i in range(4)], [[k1[7]], [], [], []])
    for ks in range(4):
        q("v_add_u32 v%d, 16384, v%d" % (aK + ks, aK + ks))
    if nb == 1:
        for i in range(16):
            q("v_mov_b32 v%d, 0" % (OB + 16 + i))
    chains = []
    for i in B:
        tb = Block()
        blk_max(tb, S0 + 8 * i, *((1, 2) if i == 0 else (vTM, NM[1] + 1)))
        tb("v_sub_f32 v%d, 0, v%d" % (NM[i], 1 if i == 0 else vTM))
        if i == 1 and not OPT["single"]:
            tb("v_min_f32 v%d, s%d, v%d" % (NM[i], sT3, NM[i]))
        for j in range(1, 4):
            tb("v_mov_b32 v%d, v%d" % (NM[i] + j, NM[i]))
        for j in range(8):
            tb("v_add_f32 v%d, v%d, v%d" % (S0 + 8 * i + j, S0 + 8 * i + j, NM[i]))
        chains.append(tb.ins)
    if not OPT["single"]:
        q("s_cmp_eq_u32 s%d, 3" % sWAVE)
        q("s_mov_b32 s%d, %s" % (sT0, f32(3e38)))
        q("s_cselect_b32 s%d, %s, s%d" % (sT3, f32(-1e30), sT0))
    for i in range(max(map(len, chains))):
        q.add([ch[i] for ch in chains if i < len(ch)])
    KSEQ = [1, 2, 0, 1, 2, 0, 1, 2, 0, 1, 0, 1, 0, 1, 0, 0]
    VSEQ = [1, 2, 0, 1, 2, 0, 1, 2, 0, 1, 2, 1, 2, 1, 2, 1]
    for tab, seq in ((sTABK, KSEQ), (sTABV, VSEQ)):
        q("s_mov_b32 s%d, 0x%x" % (tab, sum((seq[i + 1] - seq[i] + 2) << (2 * i) for i in range(15))))
    q("s_mov_b32 s%d, 15" % sCNT)
    stamp(q, 3)
    if STAMPS == 6:
        q("s_memtime s[92:93]")
    q.finish(hist=ql.ins)

    def rescale(tag, SN):
        r = Block("the running max rises by more than the threshold: move to the true max (%s)" % tag)
        r("L_resc%s:" % tag)
        r("s_nop 15")
        for i in B:
            blk_max(r, SN + 8 * i, 1, 2)
            r("v_max_f32 v1, 0, v1")
            r("v_sub_f32 v2, 0, v1")
            r("v_exp_f32 v2, v2")
            for j in range(4):
                r("v_sub_f32 v%d, v%d, v1" % (NM[i] + j, NM[i] + j))
            for j in range(8):
                r("v_sub_f32 v%d, v%d, v1" % (SN + 8 * i + j, SN + 8 * i + j))
            for j in range(4):
                r("v_mul_f32 v%d, v%d, v2" % (vL[i] + j, vL[i] + j))
            for j in range(32):
                r("v_mul_f32 v%d, v%d, v2" % (ACC + 32 * i + j, ACC + 32 * i + j))
        r("s_nop 1")
        r("s_branch L_back%s" % tag)
        r.finish()
        rare.append(r)

    def epoch(b, par, kread, adv, tag, head=()):
        S, SN = (S0, S1) if par == 0 else (S1, S0)
        off = par * 8192
        vrd = [v_read(db, u, off) for db in range(8) for u in range(2)]
        kr = k_reads(off) if kread else [None] * 8
        b("s_waitcnt lgkmcnt(0)")
        b("s_barrier")
        b.add(head)
        GA = "e0|t0 t1|e1|t2 c0|e2|t3 t4|e3|t5 c1|e4|t6 t7|e5|t8 c2|e6|t9 e7|t10 c3|t11 e8"
        GB = "t12 t13|t14 e9|t15 e10|c4 e11|e12|c5 e13|e14|c6 e15|k0 c7 m0 m1|k1 k2|k3 m2|k4 m3|k5 m4|k6 m5|k7 m6|m7 a|x a|a a"
        mx = max_tree(vTM, SN, 8 * nb) + [None] * 4
        adds = []
        if adv:
            adds = ["v_add_u32 v%d, s%d, v%d" % (aV + i, sDELV, aV + i) for i in range(8)] + \
                   ["v_add_u32 v%d, s%d, v%d" % (aK + i, sDEL, aK + i) for i in range(4)]

        def ins(tok):
            k, n = tok[0], int(tok[1:]) if len(tok) > 1 else 0
            if k == "a":
                return adds.pop(0) if adds else None
            if k == "x":
                return "v_cmp_lt_f32 vcc, s%d, v%d" % (sTHR, vTM)
            return {"e": lambda: blk(n >> 3, ex(S, n)), "t": lambda: vrd[n], "c": lambda: blk(n >> 2, cvt(S, n)),
                    "k": lambda: kr[n], "m": lambda: mx[n]}[k]()
        ga = [[ins(x) for x in g.split()] for g in GA.split("|")]
        if adv:
            for tab, dl, gi in ((sTABV, sDELV, 1), (sTABK, sDEL, 5)):
                ga[gi] += ["s_and_b32 s%d, s%d, 3" % (dl, tab), "s_lshr_b32 s%d, s%d, 2" % (tab, tab)]
                ga[gi + 2] += ["s_sub_u32 s%d, s%d, 2" % (dl, dl), "s_lshl_b32 s%d, s%d, 14" % (dl, dl)]
        weave(b, [blk(i, qk(SN, ks, kb, i, False)) for ks in range(4) for kb in range(2) for i in range(2)], ga)
        order = [pv(db, 0) for db in range(8)] + [sum_mfma(0)] + [blk(1, pv(db, 1)) for db in range(8)] + [blk(1, sum_mfma(1))]
        gb = [[ins(x) for x in g.split()] for g in GB.split("|")]
        gb[-1] += adds[:]
        b("s_waitcnt lgkmcnt(4)")
        weave(b, order[:4], gb[:4])
        b("s_waitcnt lgkmcnt(4)")
        weave(b, order[4:], gb[4:])
        b("s_cbranch_vccnz L_resc%s" % tag)
        b("L_back%s:" % tag)
        rescale(tag, SN)

    lp = mk("attention loop: tiles 0..29")
    lp("L_att%s:" % sfx)
    epoch(lp, 0, True, False, "a" + sfx)
    epoch(lp, 1, True, True, "b" + sfx,
          head=["s_cmp_lg_u32 s%d, 1" % sCNT, "s_cbranch_scc1 L_noinfo%s" % sfx,
                "buffer_load_dword v%d, v%d, s[%d:%d], 0 offen %s" % (vDUM, vM1, SA, SA + 3, OPT["tfl"]) if OPT["touch"] else "s_nop 0",
                "buffer_load_dword v%d, v%d, s[%d:%d], 0 offen sc1" % (vINF, vINFO, SA, SA + 3), "L_noinfo%s:" % sfx])
    loop_end(lp, "L_att%s" % sfx)
    lp.finish(hist=q.ins)
    pad_hazards(lp.ins, hist=lp.ins, check_only=True, where="loop back edge")

    t = mk("tiles 30, 31; o = O / l leaves for the other heads of the group")
    if STAMPS == 6:
        t("s_memtime s[94:95]")
        t("s_waitcnt lgkmcnt(0)")
    stamp(t, 4)
    epoch(t, 0, False, False, "c" + sfx)
    S = S1
    for nt in range(4):
        t("v_add_u32 v%d, %d, v%d" % (aO1 + nt, STG, aO2 + nt))
    for m in range(8):
        t.add(w_reads(m))
    for i in range(8 * nb):
        t(ex(S, i))
    for j in range(4 * nb):
        t(cvt(S, j))
    for i in B:
        t(sum_mfma(i))
    t("v_readlane_b32 s%d, v%d, 0" % (sT0, vINF))
    t("v_mov_b32 v%d, 1" % NM[0])
    t("s_add_u32 s%d, s%d, 4096" % (sT2, sE1))
    t("v_cmp_eq_u32 vcc, s%d, v%d" % (sT0, vINF))
    t("s_nop 0")
    t("s_and_b32 s%d, vcc_lo, 15" % sT0)
    t("s_cmp_eq_u32 s%d, %d" % (sT0, 15 if OPT["fast"] else 16))
    t("s_cselect_b32 s%d, s%d, 0x%x" % (sE1F, sE1, OOB))
    t("s_add_u32 s%d, s%d, 4096" % (sE1F4, sE1F))
    if not OPT["single"]:
        for i in B:
            t("v_max_f32 v%d, %s, v%d" % (vL[i], f32(1e-30), vL[i]))
    for i in B:
        t("v_rcp_f32 v%d, v%d" % (vL[i], vL[i]))
    for i in B:
        for j in range(4):
            t("v_pk_mul_f32 %s, %s, %s op_sel_hi:[1,0]" % (vr(S + 8 * i + 2 * j, 2), vr(S + 8 * i + 2 * j, 2), vr(vL[i], 2)))
    for i in B:
        for j in range(16):
            a0 = ACC + 32 * i + 2 * j
            t("v_pk_mul_f32 %s, %s, %s op_sel_hi:[1,0]" % (vr(a0, 2), vr(a0, 2), vr(vL[i], 2)))
    for j in range(4 * nb):
        t(cvt(S, j))
    t("s_waitcnt lgkmcnt(0)")
    t("s_barrier")
    stamp(t, 5)
    cst(t, 2)
    vrd = [v_read(db, u, 8192) for db in range(8) for u in range(2)]

    def pack(ks):
        return [blk(i, "v_cvt_pk_bf16_f32 v%d, v%d, v%d" % (OB + 16 * i + 4 * ks + j, ACC + 32 * i + 8 * ks + 2 * j, ACC + 32 * i + 8 * ks + 2 * j + 1))
                for i in range(2) for j in range(4)]

    def swaps(ks):
        return ["v_permlane16_swap_b32 v%d, v%d" % (OB + 4 * ks + j, OB + 16 + 4 * ks + j) for j in range(4)]

    t.add(vrd[0:8])
    p0, p1, p2 = pack(0), pack(1), pack(2)
    g = [vrd[8:10], vrd[10:12], vrd[12:14], vrd[14:16], [], [], p0[0:2], p0[2:4], p0[4:6], p0[6:8], p1[0:2] + swaps(0)[0:1],
         p1[2:4] + swaps(0)[1:2], p1[4:6] + swaps(0)[2:3], p1[6:8] + swaps(0)[3:4], p2[0:3], p2[3:8]]
    weave(t, [blk(i, pv(db, i)) for db in range(8) for i in range(2)], g)
    t.add([publish(f, sE1F, sE1F4, OPT["st1"]) for f in (0, 1)])
    t.add(swaps(1))
    t.add([publish(f, sE1F, sE1F4, OPT["st1"]) for f in (2, 3)])
    t.add(swaps(2))
    t.add([x for x in pack(3) if x])
    t.add([publish(f, sE1F, sE1F4, OPT["st1"]) for f in (4, 5)])
    t.add(swaps(3))
    t.add([publish(f, sE1F, sE1F4, OPT["st1"]) for f in (6, 7)])
    if nb == 1:
        t("s_branch L_join")
    lgq, vmq = t.finish(hist=lp.ins, vmq=[{vINF}])
    assert not lgq or STAMPS
    return t, vmq


side = []
tA, vmqA = compute_path("d", 2, blocks)
if OPT["single"]:
    tB, vmqB = compute_path("s", 1, side)
    assert vmqA == vmqB

t = new("output projection")
t("L_join:")
t("s_cmp_lg_u32 s%d, 0x%x" % (sE1F, OOB))
t("s_cbranch_scc1 L_pubj")
t.add([uncounted(publish(f, sE1, sT2, "sc1")) for f in range(8)])
t("L_pubj:")


def o_mfma(b, m, extra=()):
    j, f, nt = SEQ[m]
    b("%s %s, %s, %s, %s" % (M32, vr(ACC + 16 * nt, 16), vr(wbuf(m), 4), vr(bfrag(j, f), 4),
                             "0" if (j == 0 and f == 0) else vr(ACC + 16 * nt, 16)))
    b.add(w_reads(m + 8))
    b.add(extra)


flag = "buffer_store_dword v%d, v%d, s[%d:%d], 0 offen" % (NM[0], vM1, SA, SA + 3)
pollld = "buffer_load_dword v%d, v%d, s[%d:%d], 0 offen sc1" % (vTM, vP1, SA, SA + 3)


def sib_load(p, f):
    return "buffer_load_dwordx4 %s, v%d, s[%d:%d], s%d offen offset:%d %s" % (vr(SBUF[p] + 4 * f, 4), vE, SA, SA + 3,
                                                                          sP if f < 4 else sP4, (f & 3) * 1024, OPT["ld1"])


def try_head(b, p):
    b("v_cmp_eq_u32 vcc, 1, v%d" % vTM)
    b("s_mov_b32 s%d, 0x%x" % (sP, OOB))
    b("s_xor_b32 s%d, s%d, %d" % (sT0, sE1, p << 15))
    b("s_bitcmp1_b32 vcc_lo, %d" % p)
    b("s_cselect_b32 s%d, s%d, s%d" % (sP, sT0, sP))
    b("s_add_u32 s%d, s%d, 4096" % (sP4, sP))


NEARLY = 4


def need_head(b, p):
    b("s_cmp_lg_u32 s%d, 0x%x" % (sP, OOB))
    b("s_cbranch_scc1 L_dec%dd" % p)
    b("s_mov_b32 s%d, 0x%x" % (sCNT, SPIN))
    b("L_dec%d:" % p)
    b(pollld)
    b("s_waitcnt vmcnt(0)")
    try_head(b, p)
    b("s_sub_u32 s%d, s%d, 1" % (sCNT, sCNT))
    b("s_cbranch_scc1 L_dec%dl" % p)
    b("s_cmp_eq_u32 s%d, 0x%x" % (sP, OOB))
    b("s_cbranch_scc1 L_dec%d" % p)
    b("L_dec%dl:" % p)
    b.add([sib_load(p, f) for f in range(8 if p == 3 else NEARLY)])
    b("L_dec%dd:" % p)


def send(j):
    a0 = ACC + 8 * j
    return (["s_xor_b32 s%d, s%d, %d" % (sT0, sG, j), "s_lshl_b32 s%d, s%d, 15" % (sT0, sT0),
             "s_add_u32 s%d, s%d, s%d" % (sT0, sT0, sE2P), "s_add_u32 s%d, s%d, %d" % (sT0, sT0, j * 4096)],
            ["v_cvt_pk_bf16_f32 v%d, v%d, v%d" % (a0 + i, a0 + 2 * i, a0 + 2 * i + 1) for i in range(4)],
            ["buffer_store_dwordx4 %s, v%d, s[%d:%d], s%d offen sc1" % (vr(a0, 4), vE, SA, SA + 3, sT0)])


def fetch(j):
    return ["s_add_u32 s%d, s%d, %d" % (sT3, sE2C, j * 4096),
            "buffer_load_dwordx4 %s, v%d, s[%d:%d], s%d offen sc1" % (vr(PB + 4 * (j - 1), 4), vE, SA, SA + 3, sT3)]


extra = {m: [] for m in range(128)}
vM2, vTM2 = NM[1], NM[1] + 1
poll2 = "buffer_load_dword v%%d, v%d, s[%d:%d], 0 offen sc1" % (vP2, SA, SA + 3)
extra[1] += ["s_lshl_b32 s%d, s%d, 7" % (sT0, sWAVE), "s_add_u32 s%d, s%d, 1024" % (sT0, sT0),
             "v_lshl_add_u32 v%d, v0, 2, s%d" % (vP2, sT0)]
extra[2] += ["v_lshlrev_b32 v1, 2, v0", "v_xor_b32 v1, s%d, v1" % sWGL, "v_lshl_add_u32 v%d, v1, 11, v%d" % (vM2, vP2)]
extra[3] += ["s_lshl_b32 s%d, s%d, 11" % (sT0, sWGL), "v_add_u32 v%d, s%d, v%d" % (vP2, sT0, vP2), "v_subrev_u32 v1, 1, v0"]
extra[4] += ["v_cmp_gt_u32 vcc, 7, v1", "v_bfrev_b32 v1, 1", "s_nop 0"]
extra[5] += ["v_cndmask_b32 v%d, v1, v%d, vcc" % (vP2, vP2), "v_cndmask_b32 v%d, v1, v%d, vcc" % (vM2, vM2)]
extra[6] += ["s_mov_b32 s%d, 0x3f80" % sLO, "s_mov_b32 s%d, 0x3f800000" % sHI]
late = Block()
late("s_lshl_b32 s%d, s%d, %d" % (sT0, sHN, WSH))
late("s_and_b32 s%d, s%d, %d" % (sT1, sG, (1 << (WSH - 5)) - 1))
late("s_lshl_b32 s%d, s%d, 5" % (sT1, sT1))
late("s_add_u32 s%d, s%d, s%d" % (sOFF, sT0, sT1))
if WSH < 8:
    late("s_lshr_b32 s%d, s%d, %d" % (sT1, sG, WSH - 5))
    late("s_lshl_b32 s%d, s%d, %d" % (sT1, sT1, WSH + 2))
    late("s_add_u32 s%d, s%d, s%d" % (sOFF, sOFF, sT1))
late("s_mul_i32 s%d, s%d, 114688" % (sT0, sB))
srd(late, SB, sOUT, sT0, "114688")
late("s_lshl_b32 s%d, s%d, 2" % (sT0, sB))
late("s_add_u32 s%d, s%d, s%d" % (sT0, sT0, sHN))
late("s_lshl_b32 s%d, s%d, 18" % (sT0, sT0))
late("s_lshl_b32 s%d, s%d, 10" % (sT1, sWAVE))
late("s_add_u32 s%d, s%d, s%d" % (sT0, sT0, sT1))
late("s_add_u32 s%d, s%d, %d" % (sE2P, sT0, E2_OFF))
late("s_lshl_b32 s%d, s%d, 15" % (sT1, sG))
late("s_add_u32 s%d, s%d, s%d" % (sE2C, sE2P, sT1))
li = [i.text for i in late.ins]
k_ = li.index([x for x in li if x.startswith("s_mul_i32")][0])
extra[7] += li[:k_]
extra[8] += li[k_:k_ + 5]
extra[9] += li[k_ + 5:k_ + 9]
extra[10] += li[k_ + 9:]
for p, base in ((1, STG + 32768), (2, XREG), (3, 0)):
    for nt in range(4):
        extra[32 * p - 14 + nt].append("v_add_u32 v%d, %d, v%d" % (AREG[p] + nt, base, aO2 + nt) if base else
                                       "v_mov_b32 v%d, v%d" % (AREG[p] + nt, aO2 + nt))
for i, nt in enumerate((1, 2, 3)):
    base = 104 + 8 * i
    for k_, j in enumerate((2 * nt, 2 * nt + 1)):
        for d_, part in enumerate(send(j)):
            extra[base + 2 + d_ + 3 * k_] += part
for p in (1, 2):
    for f in range(8):
        extra[32 * p - 16 + 2 * f].append(uncounted(sib_load(p, f)) if f < NEARLY else sib_load(p, f))
for f in range(8):
    extra[72 + 2 * f].append(uncounted(sib_load(3, f)))
extra[38].append(pollld)
extra[62].append(pollld)
t(pollld)
stamp(t, 6)
cst(t, 3)
for m in range(128):
    if m == OPT["fat"]:
        t("s_barrier")
    if m == OPT["flagat"]:
        cst(t, 4)
        t("s_waitcnt vmcnt(0)")
        cst(t, 5)
        t("s_cmp_lg_u32 s%d, 0x%x" % (sE1F, OOB))
        t("s_cbranch_scc1 L_flgf")
        t(flag + " sc1")
        t("s_branch L_flgj")
        t("L_flgf:")
        t.add([uncounted(flag + OPT["ffl"])])
        t("L_flgj:")
        stamp(t, 8)
    if OPT["fine"] and m in (33, 41, 48):
        t("s_memtime s[%d:%d]" % ({33: 70, 41: 72, 48: 74}[m], {33: 71, 41: 73, 48: 75}[m]))
    if m in (16, 48, 72):
        t("s_waitcnt vmcnt(%d)" % (1 if m == 16 else 0))
        try_head(t, {16: 1, 48: 2, 72: 3}[m])
    if m in (24, 56, 88):
        need_head(t, m // 32 + 1)
        cst(t, 6 + m // 32)
        if m == 24:
            stamp(t, 7)
        if m == 88:
            stamp(t, 9)
    o_mfma(t, m, extra[m])
stamp(t, 10)
cst(t, 9)
for part in send(1):
    t.add(part)
t(poll2 % vTM)
t("s_waitcnt vmcnt(1)")
t("buffer_store_dword v%d, v%d, s[%d:%d], 0 offen sc1" % (NM[0], vM2, SA, SA + 3))
stamp(t, 11)
cst(t, 10)
t(poll2 % vTM2)
t("s_mov_b32 s%d, 0x%x" % (sCNT, SPIN))
t("s_waitcnt vmcnt(2)")
t("L_poll2:")
t("v_cmp_eq_u32 vcc, 1, v%d" % vTM)
t("s_cmp_eq_u32 vcc_lo, 0xfe")
t("s_cbranch_scc1 L_poll2e")
t.add([uncounted(poll2 % vTM)])
t("s_waitcnt vmcnt(1)")
t.add([uncounted("v_cmp_eq_u32 vcc, 1, v%d" % vTM2)])
t("s_nop 0")
t("s_cmp_eq_u32 vcc_lo, 0xfe")
t("s_cbranch_scc1 L_poll2e")
t.add([uncounted(poll2 % vTM2)])
t("s_sub_u32 s%d, s%d, 1" % (sCNT, sCNT))
t("s_waitcnt vmcnt(1)")
t("s_cbranch_scc0 L_poll2")
t("L_poll2e:")
stamp(t, 12)
cst(t, 11)
for j in range(1, 8):
    t.add(fetch(j))
for j in range(1, 8):
    for i in range(4):
        p = PB + 4 * (j - 1) + i
        t("v_dot2_f32_bf16 v%d, v%d, s%d, v%d" % (ACC + 2 * i, p, sLO, ACC + 2 * i))
        t("v_dot2_f32_bf16 v%d, v%d, s%d, v%d" % (ACC + 2 * i + 1, p, sHI, ACC + 2 * i + 1))
t("s_nop 2")
for j in range(4):
    t("v_cvt_pk_bf16_f32 v%d, v%d, v%d" % (ACC + 8 + j, ACC + 2 * j, ACC + 2 * j + 1))
t("buffer_store_dwordx4 %s, v%d, s[%d:%d], s%d offen" % (vr(ACC + 8, 4), vOUT, SB, SB + 3, sOFF))
if STAMPS:
    cst(t, 12)
    t("s_waitcnt vmcnt(0)")
    cst(t, 13)
    stamp(t, 13)
    if STAMPS not in (6, 10):
        t("s_memtime s[94:95]")
    t("s_waitcnt lgkmcnt(0)")
    t("s_sub_u32 s%d, s94, s92" % (sSTAMP + 28))
    t("s_getreg_b32 s%d, hwreg(HW_REG_XCC_ID, 0, 4)" % (sSTAMP + 30))
    t("s_getreg_b32 s%d, hwreg(HW_REG_HW_ID)" % sT0)
    t("s_lshl_b32 s%d, s%d, 4" % (sT0, sT0))
    t("s_or_b32 s%d, s%d, s%d" % (sSTAMP + 30, sSTAMP + 30, sT0))
    for i in range(16):
        t("v_mov_b32 v%d, s%d" % (ACC + 16 + i, sSTAMP + 2 * i))
    t("s_lshl_b32 s%d, s2, 2" % sT0)
    t("s_add_u32 s%d, s%d, s%d" % (sT0, sT0, sWAVE))
    t("s_lshl_b32 s%d, s%d, 6" % (sT0, sT0))
    t("s_add_u32 s%d, s%d, %d" % (sT0, sT0, ST_OFF))
    t("v_mov_b32 v1, 0")
    t("s_mov_b64 exec, 1")
    for i in range(4):
        t("buffer_store_dwordx4 %s, v1, s[%d:%d], s%d offen offset:%d" % (vr(ACC + 16 + 4 * i, 4), SA, SA + 3, sT0, 16 * i))
t("L_end:")
t("s_endpgm")
t.finish(hist=tA.ins, vmq=vmqA)
if OPT["single"]:
    pad_hazards(t.ins[:60], hist=tB.ins, check_only=True, where="join from the one-block path")
blocks += side
blocks.append(Block("seldom taken"))
blocks[-1]("L_codeend:")
blocks += rare

hdr = open("standalone__mha_block_cached__near_ridge.s.ref").read().split("; Override launch")[0]
out = [hdr.rstrip()]
out.append("""; Fused Q projection + attention + output projection, one workgroup (8 waves) per (batch, head), one per CU.
;   over the eight groups (partial sums exchanged through d_ws).""")
out.append("; @launch grid=(256,1,1) block=(512,1,1) lds=163840")
out.append('.amdgcn_target "amdgcn-amd-amdhsa--gfx950"')
out.append(".text")
out.append(".globl " + KNAME)
out.append(".p2align 8")
out.append(".type %s,@function" % KNAME)
out.append(KNAME + ":")
for b in blocks:
    out.append("; ---- %s ----" % b.name)
    out.append(b.text())
out.append(".p2align 8")
out.append(".fill 64, 4, 0xbf800000")
out.append('.section .rodata,"a"')
out.append(".p2align 6")
out.append(".amdhsa_kernel " + KNAME)
out.append("""  .amdhsa_next_free_vgpr 256
  .amdhsa_next_free_sgpr 102
  .amdhsa_accum_offset 256
  .amdhsa_group_segment_fixed_size 0
  .amdhsa_kernarg_size 64
  .amdhsa_user_sgpr_count 2
  .amdhsa_user_sgpr_kernarg_segment_ptr 1
  .amdhsa_system_sgpr_workgroup_id_x 1
.end_amdhsa_kernel""")
print("\n".join(out))
```

```python
import sys, struct, math
from asmgen import *

OPT = dict(stamps=0, nt_kv="nt", nt_q="", nt_wo="", wopf=0, spf=0, spf0=0, pre_k=1, pre_v=1, qs=0, touch=0, tfl="", ffl="", fine=0, st1="", ld1="sc1", thr=8.0, force_rescale=0, codepf=1, fast=1,
           early="0.1.2.3", k_at="5.6.8.99", v_at="6.7.8.99", thr0=8, rotmask=3, fat=6, flagat=12, single=1,
           noload=0, map=0, rot=0, wseg=256)
for a in sys.argv[1:]:
    k, v = a.split("=")
    OPT[k] = type(OPT[k])(v) if not isinstance(OPT[k], str) else v.replace("_", " ").strip()
STAMPS = OPT["stamps"]
KNAME = "standalone__mha_block_cached__near_ridge_kernel"


def f32(x):
    return "0x%08x" % struct.unpack("<I", struct.pack("<f", x))[0]


CSC = math.log2(math.e) / math.sqrt(128.0)
M16 = "v_mfma_f32_16x16x32_bf16"
M32 = "v_mfma_f32_32x32x16_bf16"
OOB = 0x40000000
SPIN = 0x100000

KRING, VRING, STG, XREG = 0, 49152, 98304, 32768
E1_OFF, E2_OFF, ST_OFF = 0x100000, 0x900000, 0x4000000
sX, sK, sV, sWQ, sWO, sOUT, sDBG, sWS = 4, 6, 8, 10, 12, 14, 16, 18
sWAVE, sG, sB, sHN, sH, sWGL = 20, 21, 22, 23, 24, 25
sBEG, sEND = 26, 27
SA, SB, SC = 28, 32, 36
sOFF, sLDS, sCNT, sT0, sT1, sT2 = 40, 41, 42, 43, 44, 45
sCS, sDEL, sE1, sE2P, sE2C, sTHR = 46, 48, 49, 50, 51, 52
sT3, sTABK, sTABV, sDELV = 53, 54, 55, 56
sP, sP4, sE1F, sE1F4, sLO, sHI = 57, 58, 59, 60, 61, 62
sNXT, sA, sVM, sLIM = 54, 55, 56, 57
sSTAMP = 64
vP2, vP1, vE, vLO, vTM, vOUT = 2, 3, 4, 5, 6, 7
aK, aW, aV = 8, 12, 16
NM = (24, 28)
ACC, QF, S0, S1, KF, VF, XB = 32, 96, 128, 144, 160, 192, 224
PK = XB
vL = (232, 236)
vM1, vINFO, vINF, ONES, vDUM = 240, 242, 243, 244, 251
aWq, aXq = 96, 104
aO1, aO2, aO3 = aK, aW, aV
OB = PB = QF


def cst(b, idx):
    if STAMPS == 7 and OPT["fine"] and 3 <= idx <= 5:
        return
    if STAMPS == 7:
        b("s_memtime s[%d:%d]" % (sSTAMP + 2 * idx, sSTAMP + 2 * idx + 1))


def stamp(b, idx):
    if STAMPS == 7:
        if idx == 5:
            b("s_memrealtime s[%d:%d]" % (sSTAMP + 2, sSTAMP + 3))
    elif STAMPS == 9:
        if idx in (1, 2, 3, 13):
            b("s_memrealtime s[%d:%d]" % (sSTAMP + 2 * idx, sSTAMP + 2 * idx + 1))
            b("s_waitcnt lgkmcnt(0)")
    elif STAMPS == 8:
        if idx in (3, 5, 10, 13):
            b("s_memrealtime s[%d:%d]" % (sSTAMP + 2 * idx, sSTAMP + 2 * idx + 1))
    elif STAMPS:
        b("s_memrealtime s[%d:%d]" % (sSTAMP + 2 * idx, sSTAMP + 2 * idx + 1))
        b("s_waitcnt lgkmcnt(0)")


def srd(b, dst, ptr, off_sreg, size):
    if off_sreg is None:
        b("s_mov_b32 s%d, s%d" % (dst, ptr))
        b("s_mov_b32 s%d, s%d" % (dst + 1, ptr + 1))
    else:
        b("s_add_u32 s%d, s%d, s%d" % (dst, ptr, off_sreg))
        b("s_addc_u32 s%d, s%d, 0" % (dst + 1, ptr + 1))
    b("s_mov_b32 s%d, %s" % (dst + 2, size))
    b("s_mov_b32 s%d, 0x20000" % (dst + 3))


def dma_group(b, S, voffs, soff, flags, n=4):
    for p in range(n):
        o = " offset:%d" % (p * 1024) if p else ""
        b("buffer_load_dwordx4 v%d, s[%d:%d], s%d offen%s %s lds" % (voffs[p], S, S + 3, soff, o, flags))


def loop_begin(b, label, n):
    b("s_mov_b32 s%d, %d" % (sCNT, n))
    b(label + ":")


def loop_end(b, label):
    b("s_sub_u32 s%d, s%d, 1" % (sCNT, sCNT))
    b("s_cmp_lg_u32 s%d, 0" % sCNT)
    b("s_cbranch_scc1 " + label)


def spread(items, counts):
    out, k = [], 0
    for n in counts:
        out.append(items[k:k + n])
        k += n
    assert k == len(items)
    return out


def uncounted(x):
    i_ = parse(x)
    i_.kind = "comment"
    i_.n = 0
    return i_


blocks = []


def new(name):
    b = Block(name)
    blocks.append(b)
    return b


e = new("entry: workgroup -> (batch b, head group g, head hn in group); waves 0-3 compute, 4-7 load")
e("L_start:")
e("s_cmp_ge_u32 s2, 256")
e("s_cbranch_scc1 L_end")
e("s_load_dwordx16 s[4:19], s[0:1], 0")
if STAMPS:
    e("s_memrealtime s[%d:%d]" % (sSTAMP, sSTAMP + 1))
    e("s_memtime s[92:93]")
e("v_lshrrev_b32 v1, 6, v0")
e("v_and_b32 v0, 63, v0")
e("v_readfirstlane_b32 s%d, v1" % sWAVE)
e("s_and_b32 s%d, s2, 7" % sG)
if OPT["map"] == 0:
    e("s_lshr_b32 s%d, s2, 5" % sB)
    e("s_lshr_b32 s%d, s2, 3" % sHN)
    e("s_and_b32 s%d, s%d, 3" % (sHN, sHN))
else:
    e("s_lshr_b32 s%d, s2, 6" % sHN)
    e("s_lshr_b32 s%d, s2, 3" % sB)
    e("s_and_b32 s%d, s%d, 7" % (sB, sB))
e("s_lshl_b32 s%d, s%d, 2" % (sH, sG))
e("s_add_u32 s%d, s%d, s%d" % (sH, sH, sHN))
e("s_lshl_b32 s%d, s%d, 5" % (sWGL, sB))
e("s_add_u32 s%d, s%d, s%d" % (sWGL, sWGL, sH))
e("s_cmp_lt_u32 s%d, 4" % sWAVE)
e("s_cbranch_scc1 L_compute")
e("v_lshrrev_b32 v1, 4, v0")
e("v_and_b32 v3, 15, v0")
e("s_cmp_lt_u32 s%d, 6" % sWAVE)
e("s_cbranch_scc1 L_ldkv")
e.finish()

WOV = [14, 15, 16, 17]
WSH = {256: 8, 128: 7, 64: 6}[OPT["wseg"]]


def wo_setup(b):
    b("v_lshlrev_b32 v2, 2, v1")
    b("v_xor_b32 v2, v2, v3")
    if WSH < 8:
        b("v_lshrrev_b32 v4, %d, v2" % (WSH - 4))
        b("v_and_b32 v2, %d, v2" % ((1 << (WSH - 4)) - 1))
        b("v_lshl_add_u32 v2, v4, %d, v2" % (WSH - 2))
    b("v_lshlrev_b32 v2, 4, v2")
    b("v_lshl_add_u32 v14, v1, 10, v2")
    b("v_add_u32 v15, 3072, v14")
    b("v_add_u32 v16, 6144, v14")
    b("v_add_u32 v17, 9216, v14")
    b("s_lshl_b32 s%d, s%d, 19" % (sT0, sG))
    b("s_lshl_b32 s%d, s%d, %d" % (sT1, sHN, WSH))
    b("s_add_u32 s%d, s%d, s%d" % (sT0, sT0, sT1))
    b("s_sub_u32 s%d, 0x400000, s%d" % (sT1, sT0))
    srd(b, SB, sWO, sT0, "s%d" % sT1)


def kv_tile(b, voffs, skip=False):
    if skip:
        return
    b("s_mov_b32 m0, s%d" % sLDS)
    b("s_add_u32 s%d, s%d, 4096" % (sT0, sLDS))
    dma_group(b, SA, voffs, sOFF, OPT["nt_kv"])
    b("s_mov_b32 m0, s%d" % sT0)
    b("s_add_u32 s%d, s%d, 4096" % (sOFF, sOFF))
    dma_group(b, SA, voffs, sOFF, OPT["nt_kv"])
    b("s_add_u32 s%d, s%d, 4096" % (sOFF, sOFF))
    if OPT["rot"]:
        b("s_and_b32 s%d, s%d, 0x3ffff" % (sOFF, sOFF))
    b("s_add_u32 s%d, s%d, 8192" % (sLDS, sLDS))
    b("s_cmp_eq_u32 s%d, s%d" % (sLDS, sEND))
    b("s_cselect_b32 s%d, s%d, s%d" % (sLDS, sBEG, sLDS))


def first_tile(b):
    if not OPT["rot"]:
        b("s_mov_b32 s%d, 0" % sOFF)
        return
    b("s_mul_i32 s%d, s%d, %d" % (sOFF, sWGL, OPT["rot"]))
    b("s_and_b32 s%d, s%d, 31" % (sOFF, sOFF))
    b("s_lshl_b32 s%d, s%d, 13" % (sOFF, sOFF))


def wo_tile(b):
    b("s_mov_b32 m0, s%d" % sLDS)
    b("s_add_u32 s%d, s%d, 4096" % (sT0, sLDS))
    dma_group(b, SB, WOV, sOFF, OPT["nt_wo"])
    b("s_mov_b32 m0, s%d" % sT0)
    b("s_add_u32 s%d, s%d, 16384" % (sOFF, sOFF))
    dma_group(b, SB, WOV, sOFF, OPT["nt_wo"])
    b("s_add_u32 s%d, s%d, 16384" % (sOFF, sOFF))


def wo3_tile(b):
    b("s_add_u32 s%d, s%d, 2" % (sT1, sNXT))
    b("s_and_b32 s%d, s%d, 3" % (sT1, sT1))
    b("s_lshl_b32 s%d, s%d, 13" % (sLDS, sT1))
    b("s_xor_b32 s%d, s%d, 3" % (sOFF, sHN))
    b("s_lshl_b32 s%d, s%d, 2" % (sOFF, sOFF))
    b("s_add_u32 s%d, s%d, s%d" % (sOFF, sOFF, sT1))
    b("s_lshl_b32 s%d, s%d, 15" % (sOFF, sOFF))
    wo_tile(b)


def tiles(b, label, voffs, n):
    if n > 1:
        b("s_mov_b32 s%d, %d" % (sT3, n))
        b(label + ":")
        kv_tile(b, voffs)
        b("s_sub_u32 s%d, s%d, 1" % (sT3, sT3))
        b("s_cmp_lg_u32 s%d, 0" % sT3)
        b("s_cbranch_scc1 " + label)
    elif n:
        kv_tile(b, voffs)


def q_phase_kv(b, tag, voffs, txt, hooks):
    early = [int(x) for x in OPT["early"].split(".")]
    at = [int(x) for x in txt.split(".")]
    assert max(early) <= at[0] and at == sorted(at) and at[2] >= 6
    b("s_add_u32 s%d, s%d, s%d" % (sT1, sB, sHN))
    b("s_and_b32 s%d, s%d, 3" % (sT1, sT1))
    b("s_lshl_b32 s%d, s%d, 2" % (sT1, sT1))
    b("s_lshr_b32 s%d, %d, s%d" % (sT1, sum(x << (4 * i) for i, x in enumerate(early)), sT1))
    b("s_and_b32 s%d, s%d, 15" % (sCNT, sT1))
    SPF = OPT["spf"]
    npre = OPT["pre_" + tag]
    tiles(b, "L_%spre" % tag, voffs, npre)

    def touch():
        if SPF:
            for i in range(SPF):
                b("s_load_dword s63, s[60:61], 0x%x" % (128 * i))
            b("s_add_u32 s60, s60, %d" % (128 * SPF))
            b("s_addc_u32 s61, s61, 0")
    if SPF:
        b("s_lshl_b32 s%d, s%d, 19" % (sT0, sG))
        b("s_lshr_b32 s%d, s2, 3" % sT1)
        b("s_lshl_b32 s%d, s%d, 14" % (sT1, sT1))
        b("s_add_u32 s%d, s%d, s%d" % (sT0, sT0, sT1))
        if tag == "v":
            b("s_add_u32 s%d, s%d, 8192" % (sT0, sT0))
        b("s_add_u32 s60, s%d, s%d" % (sWO, sT0))
        b("s_addc_u32 s61, s%d, 0" % (sWO + 1))
        if OPT["spf0"]:
            touch()
    nt_ = [64 // SPF - OPT["spf0"] if SPF else 0]
    lo, hi = min(early), max(early)
    assert not SPF or (lo == 0 and nt_[0] >= hi + 1)
    for i in range(lo):
        b("s_barrier")
        b.add(hooks.get(i, []))
    assert all(x > hi or x == hi for x in at) and all(k <= lo or k > hi for k in hooks)
    b("s_mov_b32 s%d, %d" % (sT2, lo))
    b("L_%se:" % tag)
    b("s_barrier")
    if lo in hooks:
        b("s_cmp_lg_u32 s%d, %d" % (sT2, lo))
        b("s_cbranch_scc1 L_%seh" % tag)
        b.add(hooks[lo])
        b("L_%seh:" % tag)
    touch()
    nt_[0] -= hi + 1
    b("s_cmp_lg_u32 s%d, s%d" % (sCNT, sT2))
    b("s_cbranch_scc1 L_%sen" % tag)
    b.add(hooks.get(100, []))
    tiles(b, "L_%sei" % tag, voffs, 2 - npre)
    b("L_%sen:" % tag)
    b("s_add_u32 s%d, s%d, 1" % (sT2, sT2))
    b("s_cmp_le_u32 s%d, %d" % (sT2, hi))
    b("s_cbranch_scc1 L_%se" % tag)
    tiles(b, "L_%sq%d" % (tag, hi), voffs, at.count(hi))
    for i in range(hi + 1, 8):
        b("s_barrier")
        b.add(hooks.get(i, []))
        if nt_[0] > 0:
            touch()
            nt_[0] -= 1
        tiles(b, "L_%sq%d" % (tag, i), voffs, at.count(i))
    if tag == "k":
        b("s_waitcnt vmcnt(%d)" % (8 * sum(x < 8 for x in at)))
    assert nt_[0] <= 0
    b("s_barrier")
    tiles(b, "L_%sq8" % tag, voffs, at.count(8))
    return 2 + sum(x <= 8 for x in at)


def att_phase(b, tag, voffs, nxt, lead, f1, f2, tend, sw_at, sw_reg, sw_val):
    sT = sCNT
    stamps = STAMPS == 1 and tag == "v"
    last = 35 if tag == "k" else 31
    b("s_mov_b32 s%d, 0" % sT)
    b("s_mov_b32 s%d, %d" % (sNXT, nxt))
    b("L_%sd:" % tag)
    b("s_sub_u32 s%d, s%d, s%d" % (sA, sNXT, sT))
    for a_ in (1, 2, 3, 4, 5):
        b("s_cmp_eq_u32 s%d, %d" % (sA, lead + 1 + a_))
        b("s_cbranch_scc1 L_%sd%d" % (tag, a_))
    b("s_waitcnt vmcnt(0)")
    for a_ in range(1, 6):
        b("L_%sd%d:" % (tag, a_))
        b("s_waitcnt vmcnt(%d)" % (8 * a_))
    if stamps:
        b("s_memrealtime s[60:61]")
        b("s_waitcnt lgkmcnt(0)")
    b("s_barrier")
    if stamps:
        b("s_memrealtime s[62:63]")
        b("s_waitcnt lgkmcnt(0)")
        b("s_mov_b32 m0, s%d" % sT)
        b("s_nop 0")
        b("v_writelane_b32 v20, s60, m0")
        b("v_writelane_b32 v21, s62, m0")
    b("s_getreg_b32 s%d, hwreg(HW_REG_IB_STS, 22, 2)" % sA)
    b("s_getreg_b32 s%d, hwreg(HW_REG_IB_STS, 0, 4)" % sVM)
    b("s_lshl_b32 s%d, s%d, 4" % (sA, sA))
    b("s_or_b32 s%d, s%d, s%d" % (sVM, sVM, sA))
    b("L_%sdi:" % tag)
    b("s_cmp_le_u32 s%d, 21" % sNXT)
    b("s_cselect_b32 s%d, %d, %d" % (sLIM, f1, f2))
    b("s_add_u32 s%d, s%d, s%d" % (sLIM, sLIM, sT))
    b("s_min_u32 s%d, s%d, %d" % (sLIM, sLIM, last))
    b("s_cmp_gt_u32 s%d, s%d" % (sNXT, sLIM))
    b("s_cbranch_scc1 L_%sdn" % tag)
    b("s_cmp_le_u32 s%d, %d" % (sVM, OPT["thr0"]))
    b("s_cbranch_scc1 L_%sdg" % tag)
    b("s_add_u32 s%d, s%d, %d" % (sLIM, sT, lead + 1))
    b("s_cmp_gt_u32 s%d, s%d" % (sNXT, sLIM))
    b("s_cbranch_scc1 L_%sdn" % tag)
    b("L_%sdg:" % tag)
    if last > 31:
        b("s_cmp_ge_u32 s%d, 32" % sNXT)
        b("s_cbranch_scc1 L_kdw")
    b("s_cmp_eq_u32 s%d, %d" % (sNXT, sw_at))
    b("s_cselect_b32 s%d, %d, s%d" % (sw_reg, sw_val, sw_reg))
    kv_tile(b, voffs, OPT["noload"] & 1)
    b("L_%sdj:" % tag)
    b("s_add_u32 s%d, s%d, 1" % (sNXT, sNXT))
    b("s_add_u32 s%d, s%d, 8" % (sVM, sVM))
    b("s_branch L_%sdi" % tag)
    if last > 31:
        b("L_kdw:")
        wo3_tile(b)
        b("s_branch L_kdj")
    b("L_%sdn:" % tag)
    b("s_add_u32 s%d, s%d, 1" % (sT, sT))
    b("s_cmp_lt_u32 s%d, %d" % (sT, tend))
    b("s_cbranch_scc1 L_%sd" % tag)


b = new("K loader")
b(".p2align 8")
b("L_ldkv:")
b("s_cmp_eq_u32 s%d, 5" % sWAVE)
b("s_cbranch_scc1 L_ldv")
for p in range(4):
    b("v_add_u32 v4, %d, v1" % (4 * p))
    b("v_xor_b32 v4, v4, v3")
    b("v_lshlrev_b32 v4, 4, v4")
    b("v_lshl_add_u32 v%d, v1, 8, v4" % (10 + p))
b("s_lshl_b32 s%d, s%d, 18" % (sT0, sWGL))
b("s_waitcnt lgkmcnt(0)")
srd(b, SA, sK, sT0, "0x40000")
first_tile(b)
b("s_mov_b32 s%d, %d" % (sLDS, KRING))
b("s_mov_b32 s%d, %d" % (sBEG, KRING))
b("s_mov_b32 s%d, %d" % (sEND, KRING + 49152))
KV4 = [10, 11, 12, 13]
hooks = {}
if OPT["wopf"] >= 0:
    b("s_lshl_b32 s%d, s%d, 19" % (sT0, sG))
    b("s_lshr_b32 s%d, s2, 3" % sT1)
    b("s_lshl_b32 s%d, s%d, 14" % (sT1, sT1))
    b("s_add_u32 s%d, s%d, s%d" % (sT0, sT0, sT1))
    srd(b, SC, sWO, sT0, "16384")
    b("v_lshlrev_b32 v18, 7, v0")
    b("v_add_u32 v19, 8192, v18")
    hooks[OPT["wopf"]] = ["buffer_load_dword v20, v18, s[%d:%d], 0 offen" % (SC, SC + 3),
                          "buffer_load_dword v21, v19, s[%d:%d], 0 offen" % (SC, SC + 3)]
b.add(hooks.pop(200, []))
NK0 = q_phase_kv(b, "k", KV4, OPT["k_at"], hooks)
wo_setup(b)
att_phase(b, "k", KV4, NK0, 2, 7, 5, 30, 19, sEND, KRING + 32768)
b("s_barrier")
b("L_k2:")
wo3_tile(b)
b("s_add_u32 s%d, s%d, 1" % (sNXT, sNXT))
b("s_cmp_le_u32 s%d, 35" % sNXT)
b("s_cbranch_scc1 L_k2")
b("s_barrier")
b("s_waitcnt vmcnt(0)")
b("s_barrier")
b("s_endpgm")
b.finish(hist=e.ins)

b = new("V loader")
b(".p2align 8")
b("L_ldv:")
for par in range(2):
    b("v_lshlrev_b32 v4, 1, v1")
    b("v_xor_b32 v4, v4, v3")
    if par:
        b("v_xor_b32 v4, 8, v4")
    b("v_lshlrev_b32 v4, 4, v4")
    b("v_lshl_add_u32 v%d, v1, 8, v4" % (10 + par))
b("s_lshl_b32 s%d, s%d, 18" % (sT0, sWGL))
b("s_waitcnt lgkmcnt(0)")
srd(b, SA, sV, sT0, "0x40000")
first_tile(b)
b("s_mov_b32 s%d, %d" % (sLDS, VRING + 2 * 8192))
b("s_mov_b32 s%d, %d" % (sBEG, VRING))
b("s_mov_b32 s%d, %d" % (sEND, VRING + 49152))
V4 = [10, 11, 10, 11]
srd(b, SC, sWS, None, "0x10000000")
b("v_mov_b32 v4, 0")
b("v_mov_b32 v5, 0")
b("s_lshl_b32 s%d, s%d, 11" % (sT0, sWGL))
b("v_lshlrev_b32 v8, 3, v0")
b("buffer_store_dwordx2 v[4:5], v8, s[%d:%d], s%d offen sc1" % (SC, SC + 3, sT0))
b("buffer_store_dwordx2 v[4:5], v8, s[%d:%d], s%d offen offset:1024 sc1" % (SC, SC + 3, sT0))
b("s_getreg_b32 s%d, hwreg(HW_REG_XCC_ID, 0, 4)" % sT1)
b("s_add_u32 s%d, s%d, 1" % (sT1, sT1))
b("v_mov_b32 v7, s%d" % sT1)
b("s_mov_b64 exec, 1")
b("buffer_store_dword v7, v4, s[%d:%d], s%d offen offset:512 sc1" % (SC, SC + 3, sT0))
b("s_mov_b64 exec, -1")
b("s_lshl_b32 s%d, s%d, 5" % (sT0, sB))
b("s_add_u32 s%d, s%d, s%d" % (SB, sDBG, sT0))
b("s_addc_u32 s%d, s%d, 0" % (SB + 1, sDBG + 1))
b("s_mov_b32 s%d, 1" % (SB + 2))
NV0 = q_phase_kv(b, "v", V4, OPT["v_at"],
                 {0: ["s_waitcnt vmcnt(%d)" % (8 * OPT["pre_v"]), "s_atomic_add s%d, s[%d:%d], 0x0" % (SB + 2, SB, SB + 1)]})
att_phase(b, "v", V4, NV0, 0, 5, 3, 32, 18, sBEG, VRING + 16384)
b("s_barrier")
if STAMPS == 1:
    b("s_lshl_b32 s%d, s2, 9" % sT0)
    b("s_add_u32 s%d, s%d, %d" % (sT0, sT0, ST_OFF + 0x100000))
    b("v_lshlrev_b32 v1, 2, v0")
    b("buffer_store_dword v20, v1, s[%d:%d], s%d offen" % (SC, SC + 3, sT0))
    b("buffer_store_dword v21, v1, s[%d:%d], s%d offen offset:256" % (SC, SC + 3, sT0))
b("s_endpgm")
b.finish(hist=e.ins)


sGST, sKSH, sL0, sL1, sL2, s4K = 54, 55, 56, 57, 58, 59


def q_phase_xw(b):
    def chunk():
        b("s_lshl_b32 s%d, s%d, s%d" % (sOFF, sT2, sKSH))
        b("s_mov_b32 m0, s%d" % sL0)
        b("s_add_u32 s%d, s%d, 1" % (sT2, sT2))
        b("s_and_b32 s%d, s%d, 7" % (sT2, sT2))
        b("s_mov_b32 s%d, -4" % sT3)
        b("L_xwg:")
        if not OPT["noload"] & 2:
            dma_group(b, SA, [10, 11, 12, 13], sOFF, OPT["nt_q"])
        b("s_add_u32 m0, m0, s%d" % s4K)
        b("s_add_u32 s%d, s%d, s%d" % (sOFF, sOFF, sGST))
        b("s_add_u32 s%d, s%d, 1" % (sT3, sT3))
        b("s_cbranch_scc0 L_xwg")
        b("s_mov_b32 s%d, s%d" % (sT3, sL0))
        b("s_mov_b32 s%d, s%d" % (sL0, sL1))
        b("s_mov_b32 s%d, s%d" % (sL1, sL2))
        b("s_mov_b32 s%d, s%d" % (sL2, sT3))
    b("s_setprio 2")
    b("s_cmp_eq_u32 s%d, 7" % sWAVE)
    b("s_cbranch_scc1 L_setw")
    b("v_lshrrev_b32 v5, 3, v0")
    b("v_and_b32 v6, 7, v0")
    b("v_lshrrev_b32 v7, 1, v5")
    b("v_xor_b32 v4, v7, v6")
    b("v_lshlrev_b32 v4, 4, v4")
    b("v_lshl_add_u32 v10, v5, 10, v4")
    b("v_xor_b32 v4, 64, v10")
    b("v_add_u32 v11, %d, v4" % (8192 - 1024))
    b("v_add_u32 v12, %d, v10" % (2 * (8192 - 1024)))
    b("v_add_u32 v13, %d, v4" % (3 * (8192 - 1024)))
    b("s_mul_i32 s%d, s%d, 114688" % (sT0, sB))
    b("s_mov_b32 s%d, 114688" % (SA + 2))
    b("s_mov_b32 s%d, 32768" % sGST)
    b("s_mov_b32 s%d, 7" % sKSH)
    b("s_mov_b32 s%d, %d" % (sL0, STG))
    b("s_waitcnt lgkmcnt(0)")
    b("s_add_u32 s%d, s%d, s%d" % (SA, sX, sT0))
    b("s_addc_u32 s%d, s%d, 0" % (SA + 1, sX + 1))
    b("s_branch L_setj")
    b("L_setw:")
    b("v_lshlrev_b32 v4, 1, v1")
    b("v_xor_b32 v4, v4, v3")
    b("v_lshlrev_b32 v4, 4, v4")
    b("v_lshl_add_u32 v10, v1, 13, v4")
    b("v_add_u32 v11, %d, v10" % (32768 - 1024))
    b("v_xor_b32 v4, 128, v10")
    b("v_add_u32 v12, %d, v4" % (2 * (32768 - 1024)))
    b("v_add_u32 v13, %d, v4" % (3 * (32768 - 1024)))
    b("s_lshl_b32 s%d, s%d, 8" % (sT0, sH))
    b("s_sub_u32 s%d, 0x400000, s%d" % (SA + 2, sT0))
    b("s_mov_b32 s%d, 131072" % sGST)
    b("s_mov_b32 s%d, 19" % sKSH)
    b("s_mov_b32 s%d, %d" % (sL0, STG + 16384))
    b("s_waitcnt lgkmcnt(0)")
    b("s_add_u32 s%d, s%d, s%d" % (SA, sWQ, sT0))
    b("s_addc_u32 s%d, s%d, 0" % (SA + 1, sWQ + 1))
    b("L_setj:")
    b("s_mov_b32 s%d, 0x20000" % (SA + 3))
    b("s_lshl_b32 s%d, s%d, 1" % (sT2, sHN))
    b("s_add_u32 s%d, s%d, s%d" % (sT2, sT2, sB))
    b("s_and_b32 s%d, s%d, %d" % (sT2, sT2, OPT["rotmask"]))
    b("s_movk_i32 s%d, 0x1000" % s4K)
    b("s_add_u32 s%d, s%d, 32768" % (sL1, sL0))
    b("s_sub_u32 s%d, s%d, %d" % (sL2, sL0, STG - XREG))
    b("s_mov_b32 s%d, 8" % sCNT)
    b("s_branch L_xwgo")
    b("L_xw:")
    b("s_waitcnt vmcnt(16)")
    b("s_barrier")
    b("L_xwgo:")
    chunk()
    b("s_sub_u32 s%d, s%d, 1" % (sCNT, sCNT))
    b("s_cmp_eq_u32 s%d, 7" % sCNT)
    b("s_cbranch_scc1 L_xwgo")
    b("s_cmp_lg_u32 s%d, 0" % sCNT)
    b("s_cbranch_scc1 L_xw")
    wo_setup(b)
    b("s_waitcnt vmcnt(16)")
    b("s_barrier")
    b("s_waitcnt vmcnt(0)")
    b("s_barrier")
    b("s_barrier")
    b("s_setprio 0")
    b("s_cmp_eq_u32 s%d, 7" % sWAVE)
    b("s_cbranch_scc1 L_attw")


def wo_trickle(b, tag, blk):
    first = 4 if blk == 0 else 2
    for i in range(first + 1):
        b("s_barrier")
    if tag == "w":
        b("s_lshl_b32 s%d, s%d, 5" % (sT0, sB))
        b("s_add_u32 s%d, s%d, s%d" % (SC, sDBG, sT0))
        b("s_addc_u32 s%d, s%d, 0" % (SC + 1, sDBG + 1))
        b("s_load_dword s%d, s[%d:%d], 0x0 glc" % (SC + 2, SC, SC + 1))
    b("s_xor_b32 s%d, s%d, %d" % (sOFF, sHN, blk))
    b("s_lshl_b32 s%d, s%d, 17" % (sOFF, sOFF))
    b("s_mov_b32 s%d, %d" % (sLDS, STG + blk * 32768))
    loop_begin(b, "L_%s2" % tag, 4)
    wo_tile(b)
    b("s_add_u32 s%d, s%d, 8192" % (sLDS, sLDS))
    for i in range(4):
        b("s_barrier")
    loop_end(b, "L_%s2" % tag)
    b("s_xor_b32 s%d, s%d, 2" % (sOFF, sHN))
    b("s_lshl_b32 s%d, s%d, 17" % (sOFF, sOFF))
    b("s_add_u32 s%d, s%d, %d" % (sOFF, sOFF, blk * 65536))
    b("s_mov_b32 s%d, %d" % (sLDS, XREG + blk * 16384))
    wo_tile(b)
    b("s_add_u32 s%d, s%d, 8192" % (sLDS, sLDS))
    for i in range(4):
        b("s_barrier")
    wo_tile(b)
    done = first + 20
    if tag == "w":
        for i in range(3):
            b("s_barrier")
        done += 3
        b("s_mov_b32 s%d, 0x%x" % (sCNT, SPIN))
        b("s_branch L_wchk")
        b("L_wpoll:")
        b("s_load_dword s%d, s[%d:%d], 0x0 glc" % (SC + 2, SC, SC + 1))
        b("L_wchk:")
        b("s_waitcnt lgkmcnt(0)")
        b("s_sub_u32 s%d, s%d, 1" % (sCNT, sCNT))
        b("s_cbranch_scc1 L_wpolld")
        b("s_cmp_lt_u32 s%d, 32" % (SC + 2))
        b("s_cbranch_scc1 L_wpoll")
        b("L_wpolld:")
    for i in range(29 - done):
        b("s_barrier")
    b("s_waitcnt vmcnt(0)")
    b("s_barrier")
    b("s_barrier")
    b("s_barrier")
    b("s_endpgm")


bq = Block("x / wq loaders: Q phase")
q_phase_xw(bq)
wo_trickle(bq, "x", 0)
bq("L_attw:")
wo_trickle(bq, "w", 1)
bq.finish(hist=e.ins)
blocks.insert(1, bq)

c = new("compute waves: addresses")
c(".p2align 8")
c("L_compute:")
if OPT["codepf"]:
    c("s_cmp_lg_u32 s%d, 1" % sWAVE)
    c("s_cbranch_scc1 L_nopf")
    c("s_getpc_b64 s[56:57]")
    c("L_pc:")
    c("s_sub_u32 s56, s56, L_pc-L_start")
    c("s_subb_u32 s57, s57, 0")
    c("s_lshr_b32 s%d, s2, 3" % sT0)
    c("s_and_b32 s%d, s%d, 7" % (sT0, sT0))
    c("s_mul_i32 s%d, s%d, ((L_codeend-L_start+1023)/1024)*128" % (sT0, sT0))
    c("v_lshlrev_b32 v1, 7, v0")
    c("v_add_u32 v1, s%d, v1" % sT0)
    c("v_min_u32 v1, L_codeend-L_start-4, v1")
    c("v_mov_b32 v3, s57")
    c("v_add_co_u32 v2, vcc, s56, v1")
    c("s_nop 1")
    c("v_addc_co_u32 v3, vcc, 0, v3, vcc")
    c("v_cmp_gt_u32 vcc, (L_codeend-L_start+1023)/1024, v0")
    c("s_and_saveexec_b64 s[58:59], vcc")
    c("global_load_dword v%d, v[2:3], off" % vDUM)
    c("s_mov_b64 exec, -1")
    c("L_nopf:")
for i in range(4):
    c("v_mov_b32 v%d, 0" % (XB + 28 + i))
c("v_lshrrev_b32 v1, 4, v0")
c("v_and_b32 v2, 15, v0")
c("v_lshrrev_b32 v3, 5, v0")
c("v_and_b32 v4, 1, v1")
c("v_lshl_add_u32 v3, v4, 1, v3")
c("v_xor_b32 v3, v3, v2")
c("v_lshlrev_b32 v3, 4, v3")
c("v_lshl_add_u32 v%d, v2, 8, v3" % aK)
for ks in range(1, 4):
    c("v_xor_b32 v%d, %d, v%d" % (aK + ks, ks << 6, aK))
c("s_lshl_b32 s%d, s%d, 12" % (sT0, sWAVE))
c("s_add_u32 s%d, s%d, %d" % (sT0, sT0, STG))
c("v_lshrrev_b32 v3, 1, v2")
c("v_xor_b32 v3, v3, v1")
c("v_lshlrev_b32 v3, 4, v3")
c("v_lshl_add_u32 v3, v2, 7, v3")
c("v_add_u32 v%d, s%d, v3" % (aXq, sT0))
c("v_xor_b32 v%d, 64, v%d" % (aXq + 1, aXq))
c("v_bfe_u32 v2, v0, 2, 2")
c("v_lshrrev_b32 v3, 2, v0")
c("v_and_b32 v4, 7, v3")
c("v_lshlrev_b32 v4, 5, v4")
c("v_lshl_add_u32 v3, v3, 8, v4")
c("v_and_b32 v4, 3, v0")
c("v_lshl_add_u32 v3, v4, 3, v3")
c("v_add_u32 v%d, %d, v3" % (aV, VRING + 16384))
for db in range(1, 8):
    c("v_xor_b32 v%d, %d, v%d" % (aV + db, db << 5, aV))
c("v_lshl_add_u32 v3, v1, 10, v3")
c("v_add_u32 v%d, %d, v3" % (aWq, STG + 16384))
for db in range(1, 8):
    c("v_xor_b32 v%d, %d, v%d" % (aWq + db, db << 5, aWq))
c("v_mul_u32_u24 v2, 320, v2")
c("v_lshrrev_b32 v3, 5, v0")
c("v_lshl_add_u32 v3, v3, 11, v2")
c("v_and_b32 v4, 1, v1")
c("v_lshl_add_u32 v3, v4, 5, v3")
c("v_and_b32 v4, 1, v0")
c("v_lshl_add_u32 v3, v4, 4, v3")
c("v_bfe_u32 v4, v0, 1, 1")
c("v_lshl_add_u32 v3, v4, 3, v3")
c("s_lshl_b32 s%d, s%d, 5" % (sT0, sG))
c("v_xor_b32 v%d, s%d, v3" % (aO2, sT0))
for nt in range(1, 4):
    c("v_xor_b32 v%d, %d, v%d" % (aO2 + nt, nt << 6, aO2))
c("v_and_b32 v2, 31, v0")
c("s_lshl_b32 s%d, s%d, 5" % (sT0, sWAVE))
c("v_add_u32 v2, s%d, v2" % sT0)
c("v_lshlrev_b32 v%d, 4, v0" % vE)
c("v_cmp_lt_u32 vcc, 111, v2")
c("v_bfrev_b32 v3, 1")
c("v_lshlrev_b32 v2, 10, v2")
c("v_cndmask_b32 v1, 0, v3, vcc")
c("v_or_b32 v%d, v%d, v1" % (vE, vE))
c("v_lshrrev_b32 v1, 5, v0")
c("v_lshl_add_u32 v%d, v1, 4, v2" % vOUT)
c("v_xor_b32 v1, s%d, v0" % sWGL)
c("v_lshlrev_b32 v1, 11, v1")
c("v_cmp_gt_u32 vcc, 4, v0")
c("v_add_u32 v2, 512, v1")
c("s_lshl_b32 s%d, s%d, 7" % (sT0, sWAVE))
c("v_cndmask_b32 v%d, v3, v2, vcc" % vINFO)
c("v_lshl_add_u32 v2, v0, 2, s%d" % sT0)
c("v_add_u32 v1, v1, v2")
c("s_lshl_b32 s%d, s%d, 11" % (sT1, sWGL))
c("v_add_u32 v2, s%d, v2" % sT1)
c("v_subrev_u32 v%d, 1, v0" % vTM)
c("v_cmp_gt_u32 vcc, 3, v%d" % vTM)
c("s_mov_b32 s%d, %s" % (sCS, f32(CSC)))
c("s_mov_b32 s%d, %s" % (sCS + 1, f32(CSC)))
c("v_cndmask_b32 v%d, v3, v1, vcc" % vM1)
c("v_cndmask_b32 v%d, v3, v2, vcc" % vP1)
for i in range(4):
    c("%s %s, %s, %s, 0" % (M32, vr(ACC + 16 * i, 16), vr(XB + 28, 4), vr(XB + 28, 4)))
c("s_mov_b32 s%d, %s" % (sTHR, f32(0.0 if OPT["force_rescale"] else OPT["thr"])))
c("s_waitcnt lgkmcnt(0)")
srd(c, SA, sWS, None, "0x10000000")
c("s_lshl_b32 s%d, s%d, 15" % (sE1, sWGL))
c("s_lshl_b32 s%d, s%d, 13" % (sT0, sWAVE))
c("s_add_u32 s%d, s%d, s%d" % (sE1, sE1, sT0))
c("s_add_u32 s%d, s%d, %d" % (sE1, sE1, E1_OFF))
c("s_mov_b32 s%d, %d" % (sT2, sum(((1, -3, 2)[i % 3] + 3) << (3 * i) for i in range(8))))
c("s_mov_b32 s%d, 8" % sCNT)
if OPT["single"]:
    c("s_cmp_eq_u32 s%d, 3" % sWAVE)
    c("s_cbranch_scc1 L_paths")
c.finish(hist=e.ins)


def k_reads(slot_off):
    return ["ds_read_b128 %s, v%d offset:%d" % (vr(KF + 16 * kb + 4 * ks, 4), aK + ks, slot_off + kb * 4096)
            for ks in range(4) for kb in range(2)]


def v_read(db, u, off):
    return "ds_read_b64_tr_b16 %s, v%d offset:%d" % (vr(VF + 4 * db + 2 * u, 2), aV + db, off + u * 4096)


def ex(S, i):
    return "v_exp_f32 v%d, v%d" % (S + i, S + i)


def cvt(S, j):
    return "v_cvt_pk_bf16_f32 v%d, v%d, v%d" % (PK + j, S + 2 * j, S + 2 * j + 1)


def qk(SN, ks, kb, blk, first):
    d = vr(SN + 8 * blk + 4 * kb, 4)
    cc = d if ks else ("0" if first else vr(NM[blk], 4))
    return "%s %s, %s, %s, %s" % (M16, d, vr(KF + 16 * kb + 4 * ks, 4), vr(QF + 16 * blk + 4 * ks, 4), cc)


def pv(db, blk):
    d = vr(ACC + 32 * blk + 4 * db, 4)
    return "%s %s, %s, %s, %s" % (M16, d, vr(VF + 4 * db, 4), vr(PK + 4 * blk, 4), d)


def sum_mfma(blk):
    return "%s %s, %s, %s, %s" % (M16, vr(vL[blk], 4), vr(ONES, 4), vr(PK + 4 * blk, 4), vr(vL[blk], 4))


def max_tree(dst, S, n):
    r = ["v_max3_f32 v%d, v%d, v%d, v%d" % (dst, S, S + 1, S + 2)]
    for i in range(3, n - 1, 2):
        r.append("v_max3_f32 v%d, v%d, v%d, v%d" % (dst, dst, S + i, S + i + 1))
    r.append("v_max_f32 v%d, v%d, v%d" % (dst, dst, S + n - 1))
    return r


def blk_max(b, S, dst, tmp):
    b.add(max_tree(dst, S, 8))
    for perm in ("v_permlane32_swap_b32", "v_permlane16_swap_b32"):
        b("v_mov_b32 v%d, v%d" % (tmp, dst))
        b("%s v%d, v%d" % (perm, tmp, dst))
        b("v_max_f32 v%d, v%d, v%d" % (dst, tmp, dst))


def weave(b, mfmas, gaps):
    assert len(mfmas) == len(gaps)
    for m_, g in zip(mfmas, gaps):
        b.add([x for x in [m_] + list(g) if x is not None])


AREG = {0: aO1, 1: aO3, 2: aO1, 3: aO3}
SBUF = {1: S0, 2: KF, 3: XB}
SEQ = [(j, f, nt) for j in range(3) for f in range(8) for nt in range(4)]
SEQ += [(3, f, nt) for nt in (1, 2, 3, 0) for f in range(8)]


def wbuf(m):
    return (KF if m < 8 else VF) + 4 * (m & 7)


def w_reads(m):
    if m >= len(SEQ):
        return []
    j, f, nt = SEQ[m]
    ks, y = f >> 1, f & 1
    return ["ds_read_b64_tr_b16 %s, v%d offset:%d" % (vr(wbuf(m) + 2 * u, 2), AREG[j] + nt,
                                                   ks * 8192 + u * 4096 + y * 1024) for u in range(2)]


def bfrag(j, f):
    return OB + 16 * (f & 1) + 4 * (f >> 1) if j == 0 else SBUF[j] + 4 * f


def publish(f, lo, hi, fl):
    return "buffer_store_dwordx4 %s, v%d, s[%d:%d], s%d offen offset:%d %s" % (vr(bfrag(0, f), 4), vE, SA, SA + 3,
                                                                           lo if f < 4 else hi, (f & 3) * 1024, fl)


rare = []


def compute_path(sfx, nb, out):
    B = range(nb)

    def blk(i, x):
        return x if i < nb else None

    def mk(name):
        bb = Block(name + (" (two query blocks)" if nb == 2 else " (one query block: wave 3)"))
        out.append(bb)
        return bb

    def q_reads(s_):
        W = VF if s_ == 0 else S0
        r = [blk(i, "ds_read_b128 %s, v%d offset:%d" % (vr(XB + 8 * s_ + 4 * i, 4), aXq + s_, i * 2048)) for i in range(2)]
        for db in range(8):
            for u in range(2):
                r.append("ds_read_b64_tr_b16 %s, v%d offset:%d" % (vr(W + 4 * db + 2 * u, 2), aWq + db, s_ * 8192 + u * 1024))
        return r

    def q_mfmas(s_):
        W = VF if s_ == 0 else S0
        r = []
        for db in range(8):
            for i in range(2):
                d = vr(ACC + 32 * i + 4 * db, 4)
                r.append(blk(i, "%s %s, %s, %s, %s" % (M16, d, vr(W + 4 * db, 4), vr(XB + 8 * s_ + 4 * i, 4), d)))
        return r

    q0 = mk("Q projection: first reads")
    q0("L_path%s:" % sfx)
    q0("s_barrier")
    stamp(q0, 1)
    if STAMPS == 10:
        q0("s_memtime s[92:93]")
    q0.add([x for x in q_reads(0) if x])
    lgq0, _ = q0.finish(hist=c.ins)
    ql = mk("Q projection")
    ql("L_q%s:" % sfx)
    tabq = ["s_and_b32 s%d, s%d, 7" % (sDEL, sT2), "s_lshr_b32 s%d, s%d, 3" % (sT2, sT2),
            "s_sub_u32 s%d, s%d, 3" % (sDEL, sDEL), "s_lshl_b32 s%d, s%d, 15" % (sDEL, sDEL)]
    adv = ["v_add_u32 v%d, s%d, v%d" % (r_, sDEL, r_) for r_ in range(aWq, aWq + 10)]
    QS = OPT["qs"]
    gaps = spread(q_reads(1), {0: [2, 1, 2, 1, 2, 1, 1, 1, 1, 1, 1, 1, 1, 1, 1, 0], 1: [2, 2, 1, 2, 1, 2, 1, 2, 1, 2, 1, 1, 0, 0, 0, 0],
                               2: [2, 2, 1, 2, 1, 2, 1, 2, 1, 2, 1, 1, 0, 0, 0, 0]}[QS])
    gaps[1] += tabq[:2]
    gaps[3] += tabq[2:]
    weave(ql, q_mfmas(0), gaps)
    m1 = q_mfmas(1)
    NBQ = {0: 6, 1: 2, 2: 4}[QS]
    if QS:
        tail_ = ql.ins[-4 if nb == 2 else -2:]
        del ql.ins[-len(tail_):]
        k_ = {1: 8, 2: 6}[QS]
        weave(ql, tail_, spread(adv[:k_], ([2, 2, 2, 2] if k_ == 8 else [2, 2, 1, 1]) if nb == 2 else [k_ // 2, k_ // 2]))
        weave(ql, m1[:NBQ], spread(adv[k_:], [1] * NBQ))
    else:
        weave(ql, m1[:6], spread(adv, [2, 2, 2, 2, 1, 1]))
    ql("s_waitcnt lgkmcnt(0)")
    ql("s_barrier")
    if STAMPS == 9:
        ql("s_memrealtime s[88:89]")
        ql("s_waitcnt lgkmcnt(0)")
        for i in range(1, 9):
            ql("s_cmp_eq_u32 s%d, %d" % (sCNT, 9 - i))
            ql("s_cselect_b32 s%d, s88, s%d" % (sSTAMP + 2 * (i + 3), sSTAMP + 2 * (i + 3)))
    weave(ql, m1[NBQ:], spread(q_reads(0), {6: [2, 2, 2, 2, 2, 2, 2, 2, 1, 1], 2: [2, 2, 1, 2, 1, 2, 1, 1, 1, 1, 1, 1, 1, 1],
                                            4: [2, 2, 2, 1, 2, 1, 2, 1, 2, 1, 1, 1]}[NBQ]))
    loop_end(ql, "L_q%s" % sfx)
    lgq1, _ = ql.finish(hist=q0.ins, lgq=lgq0)
    assert STAMPS or lgq1 == lgq0[-len(lgq1):], (lgq0, lgq1)
    pad_hazards(ql.ins, hist=ql.ins, check_only=True, where="q loop back edge")

    q = mk("attention set-up")
    stamp(q, 2)
    if STAMPS == 10:
        q("s_memtime s[94:95]")
    q("s_waitcnt lgkmcnt(0)")
    q.add(k_reads(0))
    q("s_waitcnt vmcnt(0)")

    def conv(ks):
        r = []
        for i in B:
            a0, f0 = ACC + 32 * i + 8 * ks, QF + 16 * i + 4 * ks
            if ks == 0:
                r += ["v_pk_mul_f32 %s, %s, s[%d:%d]" % (vr(a0 + 2 * j, 2), vr(a0 + 2 * j, 2), sCS, sCS + 1) for j in range(4)]
            else:
                r += ["v_mul_f32 v%d, s%d, v%d" % (a0 + j, sCS, a0 + j) for j in range(8)]
            r += ["v_cvt_pk_bf16_f32 v%d, v%d, v%d" % (f0 + j, a0 + 2 * j, a0 + 2 * j + 1) for j in range(4)]
        for i in B:
            f0 = QF + 16 * i + 4 * ks
            r += ["v_permlane16_swap_b32 v%d, v%d" % (f0 + j, f0 + 2 + j) for j in range(2)]
        return r

    k1 = k_reads(8192)
    init = ["v_mov_b32 v%d, 0" % (vL[0] + i) for i in range(8)] + ["v_mov_b32 v%d, 0x3f803f80" % (ONES + i) for i in range(4)]
    q.add(conv(0))
    q.add(init[:4])
    qk0 = [blk(i, qk(S0, ks, kb, i, True)) for ks in range(4) for kb in range(2) for i in range(2)]
    for ks in range(3):
        g = spread(conv(ks + 1), [7, 7, 7, 7] if nb == 2 else [4, 3, 4, 3])
        g[2].insert(0, k1[2 * ks])
        if ks:
            g[0].insert(0, k1[2 * ks - 1])
        weave(q, qk0[4 * ks:4 * ks + 4], g)
    weave(q, qk0[12:], [[k1[5]] + init[4:6], init[6:8], [k1[6]] + init[8:10], init[10:]])
    z = vr(vL[0], 4)
    weave(q, [blk(i >> 1, "%s %s, %s, %s, 0" % (M32, vr(ACC + 16 * i, 16), z, z)) for i in range(4)], [[k1[7]], [], [], []])
    for ks in range(4):
        q("v_add_u32 v%d, 16384, v%d" % (aK + ks, aK + ks))
    if nb == 1:
        for i in range(16):
            q("v_mov_b32 v%d, 0" % (OB + 16 + i))
    chains = []
    for i in B:
        tb = Block()
        blk_max(tb, S0 + 8 * i, *((1, 2) if i == 0 else (vTM, NM[1] + 1)))
        tb("v_sub_f32 v%d, 0, v%d" % (NM[i], 1 if i == 0 else vTM))
        if i == 1 and not OPT["single"]:
            tb("v_min_f32 v%d, s%d, v%d" % (NM[i], sT3, NM[i]))
        for j in range(1, 4):
            tb("v_mov_b32 v%d, v%d" % (NM[i] + j, NM[i]))
        for j in range(8):
            tb("v_add_f32 v%d, v%d, v%d" % (S0 + 8 * i + j, S0 + 8 * i + j, NM[i]))
        chains.append(tb.ins)
    if not OPT["single"]:
        q("s_cmp_eq_u32 s%d, 3" % sWAVE)
        q("s_mov_b32 s%d, %s" % (sT0, f32(3e38)))
        q("s_cselect_b32 s%d, %s, s%d" % (sT3, f32(-1e30), sT0))
    for i in range(max(map(len, chains))):
        q.add([ch[i] for ch in chains if i < len(ch)])
    KSEQ = [1, 2, 0, 1, 2, 0, 1, 2, 0, 1, 0, 1, 0, 1, 0, 0]
    VSEQ = [1, 2, 0, 1, 2, 0, 1, 2, 0, 1, 2, 1, 2, 1, 2, 1]
    for tab, seq in ((sTABK, KSEQ), (sTABV, VSEQ)):
        q("s_mov_b32 s%d, 0x%x" % (tab, sum((seq[i + 1] - seq[i] + 2) << (2 * i) for i in range(15))))
    q("s_mov_b32 s%d, 15" % sCNT)
    stamp(q, 3)
    if STAMPS == 6:
        q("s_memtime s[92:93]")
    q.finish(hist=ql.ins)

    def rescale(tag, SN):
        r = Block("the running max rises by more than the threshold: move to the true max (%s)" % tag)
        r("L_resc%s:" % tag)
        r("s_nop 15")
        for i in B:
            blk_max(r, SN + 8 * i, 1, 2)
            r("v_max_f32 v1, 0, v1")
            r("v_sub_f32 v2, 0, v1")
            r("v_exp_f32 v2, v2")
            for j in range(4):
                r("v_sub_f32 v%d, v%d, v1" % (NM[i] + j, NM[i] + j))
            for j in range(8):
                r("v_sub_f32 v%d, v%d, v1" % (SN + 8 * i + j, SN + 8 * i + j))
            for j in range(4):
                r("v_mul_f32 v%d, v%d, v2" % (vL[i] + j, vL[i] + j))
            for j in range(32):
                r("v_mul_f32 v%d, v%d, v2" % (ACC + 32 * i + j, ACC + 32 * i + j))
        r("s_nop 1")
        r("s_branch L_back%s" % tag)
        r.finish()
        rare.append(r)

    def epoch(b, par, kread, adv, tag, head=()):
        S, SN = (S0, S1) if par == 0 else (S1, S0)
        off = par * 8192
        vrd = [v_read(db, u, off) for db in range(8) for u in range(2)]
        kr = k_reads(off) if kread else [None] * 8
        b("s_waitcnt lgkmcnt(0)")
        b("s_barrier")
        b.add(head)
        GA = "e0|t0 t1|e1|t2 c0|e2|t3 t4|e3|t5 c1|e4|t6 t7|e5|t8 c2|e6|t9 e7|t10 c3|t11 e8"
        GB = "t12 t13|t14 e9|t15 e10|c4 e11|e12|c5 e13|e14|c6 e15|k0 c7 m0 m1|k1 k2|k3 m2|k4 m3|k5 m4|k6 m5|k7 m6|m7 a|x a|a a"
        mx = max_tree(vTM, SN, 8 * nb) + [None] * 4
        adds = []
        if adv:
            adds = ["v_add_u32 v%d, s%d, v%d" % (aV + i, sDELV, aV + i) for i in range(8)] + \
                   ["v_add_u32 v%d, s%d, v%d" % (aK + i, sDEL, aK + i) for i in range(4)]

        def ins(tok):
            k, n = tok[0], int(tok[1:]) if len(tok) > 1 else 0
            if k == "a":
                return adds.pop(0) if adds else None
            if k == "x":
                return "v_cmp_lt_f32 vcc, s%d, v%d" % (sTHR, vTM)
            return {"e": lambda: blk(n >> 3, ex(S, n)), "t": lambda: vrd[n], "c": lambda: blk(n >> 2, cvt(S, n)),
                    "k": lambda: kr[n], "m": lambda: mx[n]}[k]()
        ga = [[ins(x) for x in g.split()] for g in GA.split("|")]
        if adv:
            for tab, dl, gi in ((sTABV, sDELV, 1), (sTABK, sDEL, 5)):
                ga[gi] += ["s_and_b32 s%d, s%d, 3" % (dl, tab), "s_lshr_b32 s%d, s%d, 2" % (tab, tab)]
                ga[gi + 2] += ["s_sub_u32 s%d, s%d, 2" % (dl, dl), "s_lshl_b32 s%d, s%d, 14" % (dl, dl)]
        weave(b, [blk(i, qk(SN, ks, kb, i, False)) for ks in range(4) for kb in range(2) for i in range(2)], ga)
        order = [pv(db, 0) for db in range(8)] + [sum_mfma(0)] + [blk(1, pv(db, 1)) for db in range(8)] + [blk(1, sum_mfma(1))]
        gb = [[ins(x) for x in g.split()] for g in GB.split("|")]
        gb[-1] += adds[:]
        b("s_waitcnt lgkmcnt(4)")
        weave(b, order[:4], gb[:4])
        b("s_waitcnt lgkmcnt(4)")
        weave(b, order[4:], gb[4:])
        b("s_cbranch_vccnz L_resc%s" % tag)
        b("L_back%s:" % tag)
        rescale(tag, SN)

    lp = mk("attention loop: tiles 0..29")
    lp("L_att%s:" % sfx)
    epoch(lp, 0, True, False, "a" + sfx)
    epoch(lp, 1, True, True, "b" + sfx,
          head=["s_cmp_lg_u32 s%d, 1" % sCNT, "s_cbranch_scc1 L_noinfo%s" % sfx,
                "buffer_load_dword v%d, v%d, s[%d:%d], 0 offen %s" % (vDUM, vM1, SA, SA + 3, OPT["tfl"]) if OPT["touch"] else "s_nop 0",
                "buffer_load_dword v%d, v%d, s[%d:%d], 0 offen sc1" % (vINF, vINFO, SA, SA + 3), "L_noinfo%s:" % sfx])
    loop_end(lp, "L_att%s" % sfx)
    lp.finish(hist=q.ins)
    pad_hazards(lp.ins, hist=lp.ins, check_only=True, where="loop back edge")

    t = mk("tiles 30, 31; o = O / l leaves for the other heads of the group")
    if STAMPS == 6:
        t("s_memtime s[94:95]")
        t("s_waitcnt lgkmcnt(0)")
    stamp(t, 4)
    epoch(t, 0, False, False, "c" + sfx)
    S = S1
    for nt in range(4):
        t("v_add_u32 v%d, %d, v%d" % (aO1 + nt, STG, aO2 + nt))
    for m in range(8):
        t.add(w_reads(m))
    for i in range(8 * nb):
        t(ex(S, i))
    for j in range(4 * nb):
        t(cvt(S, j))
    for i in B:
        t(sum_mfma(i))
    t("v_readlane_b32 s%d, v%d, 0" % (sT0, vINF))
    t("v_mov_b32 v%d, 1" % NM[0])
    t("s_add_u32 s%d, s%d, 4096" % (sT2, sE1))
    t("v_cmp_eq_u32 vcc, s%d, v%d" % (sT0, vINF))
    t("s_nop 0")
    t("s_and_b32 s%d, vcc_lo, 15" % sT0)
    t("s_cmp_eq_u32 s%d, %d" % (sT0, 15 if OPT["fast"] else 16))
    t("s_cselect_b32 s%d, s%d, 0x%x" % (sE1F, sE1, OOB))
    t("s_add_u32 s%d, s%d, 4096" % (sE1F4, sE1F))
    if not OPT["single"]:
        for i in B:
            t("v_max_f32 v%d, %s, v%d" % (vL[i], f32(1e-30), vL[i]))
    for i in B:
        t("v_rcp_f32 v%d, v%d" % (vL[i], vL[i]))
    for i in B:
        for j in range(4):
            t("v_pk_mul_f32 %s, %s, %s op_sel_hi:[1,0]" % (vr(S + 8 * i + 2 * j, 2), vr(S + 8 * i + 2 * j, 2), vr(vL[i], 2)))
    for i in B:
        for j in range(16):
            a0 = ACC + 32 * i + 2 * j
            t("v_pk_mul_f32 %s, %s, %s op_sel_hi:[1,0]" % (vr(a0, 2), vr(a0, 2), vr(vL[i], 2)))
    for j in range(4 * nb):
        t(cvt(S, j))
    t("s_waitcnt lgkmcnt(0)")
    t("s_barrier")
    stamp(t, 5)
    cst(t, 2)
    vrd = [v_read(db, u, 8192) for db in range(8) for u in range(2)]

    def pack(ks):
        return [blk(i, "v_cvt_pk_bf16_f32 v%d, v%d, v%d" % (OB + 16 * i + 4 * ks + j, ACC + 32 * i + 8 * ks + 2 * j, ACC + 32 * i + 8 * ks + 2 * j + 1))
                for i in range(2) for j in range(4)]

    def swaps(ks):
        return ["v_permlane16_swap_b32 v%d, v%d" % (OB + 4 * ks + j, OB + 16 + 4 * ks + j) for j in range(4)]

    t.add(vrd[0:8])
    p0, p1, p2 = pack(0), pack(1), pack(2)
    g = [vrd[8:10], vrd[10:12], vrd[12:14], vrd[14:16], [], [], p0[0:2], p0[2:4], p0[4:6], p0[6:8], p1[0:2] + swaps(0)[0:1],
         p1[2:4] + swaps(0)[1:2], p1[4:6] + swaps(0)[2:3], p1[6:8] + swaps(0)[3:4], p2[0:3], p2[3:8]]
    weave(t, [blk(i, pv(db, i)) for db in range(8) for i in range(2)], g)
    t.add([publish(f, sE1F, sE1F4, OPT["st1"]) for f in (0, 1)])
    t.add(swaps(1))
    t.add([publish(f, sE1F, sE1F4, OPT["st1"]) for f in (2, 3)])
    t.add(swaps(2))
    t.add([x for x in pack(3) if x])
    t.add([publish(f, sE1F, sE1F4, OPT["st1"]) for f in (4, 5)])
    t.add(swaps(3))
    t.add([publish(f, sE1F, sE1F4, OPT["st1"]) for f in (6, 7)])
    if nb == 1:
        t("s_branch L_join")
    lgq, vmq = t.finish(hist=lp.ins, vmq=[{vINF}])
    assert not lgq or STAMPS
    return t, vmq


side = []
tA, vmqA = compute_path("d", 2, blocks)
if OPT["single"]:
    tB, vmqB = compute_path("s", 1, side)
    assert vmqA == vmqB

t = new("output projection")
t("L_join:")
t("s_cmp_lg_u32 s%d, 0x%x" % (sE1F, OOB))
t("s_cbranch_scc1 L_pubj")
t.add([uncounted(publish(f, sE1, sT2, "sc1")) for f in range(8)])
t("L_pubj:")


def o_mfma(b, m, extra=()):
    j, f, nt = SEQ[m]
    b("%s %s, %s, %s, %s" % (M32, vr(ACC + 16 * nt, 16), vr(wbuf(m), 4), vr(bfrag(j, f), 4),
                             "0" if (j == 0 and f == 0) else vr(ACC + 16 * nt, 16)))
    b.add(w_reads(m + 8))
    b.add(extra)


flag = "buffer_store_dword v%d, v%d, s[%d:%d], 0 offen" % (NM[0], vM1, SA, SA + 3)
pollld = "buffer_load_dword v%d, v%d, s[%d:%d], 0 offen sc1" % (vTM, vP1, SA, SA + 3)


def sib_load(p, f):
    return "buffer_load_dwordx4 %s, v%d, s[%d:%d], s%d offen offset:%d %s" % (vr(SBUF[p] + 4 * f, 4), vE, SA, SA + 3,
                                                                          sP if f < 4 else sP4, (f & 3) * 1024, OPT["ld1"])


def try_head(b, p):
    b("v_cmp_eq_u32 vcc, 1, v%d" % vTM)
    b("s_mov_b32 s%d, 0x%x" % (sP, OOB))
    b("s_xor_b32 s%d, s%d, %d" % (sT0, sE1, p << 15))
    b("s_bitcmp1_b32 vcc_lo, %d" % p)
    b("s_cselect_b32 s%d, s%d, s%d" % (sP, sT0, sP))
    b("s_add_u32 s%d, s%d, 4096" % (sP4, sP))


NEARLY = 4


def need_head(b, p):
    b("s_cmp_lg_u32 s%d, 0x%x" % (sP, OOB))
    b("s_cbranch_scc1 L_dec%dd" % p)
    b("s_mov_b32 s%d, 0x%x" % (sCNT, SPIN))
    b("L_dec%d:" % p)
    b(pollld)
    b("s_waitcnt vmcnt(0)")
    try_head(b, p)
    b("s_sub_u32 s%d, s%d, 1" % (sCNT, sCNT))
    b("s_cbranch_scc1 L_dec%dl" % p)
    b("s_cmp_eq_u32 s%d, 0x%x" % (sP, OOB))
    b("s_cbranch_scc1 L_dec%d" % p)
    b("L_dec%dl:" % p)
    b.add([sib_load(p, f) for f in range(8 if p == 3 else NEARLY)])
    b("L_dec%dd:" % p)


def send(j):
    a0 = ACC + 8 * j
    return (["s_xor_b32 s%d, s%d, %d" % (sT0, sG, j), "s_lshl_b32 s%d, s%d, 15" % (sT0, sT0),
             "s_add_u32 s%d, s%d, s%d" % (sT0, sT0, sE2P), "s_add_u32 s%d, s%d, %d" % (sT0, sT0, j * 4096)],
            ["v_cvt_pk_bf16_f32 v%d, v%d, v%d" % (a0 + i, a0 + 2 * i, a0 + 2 * i + 1) for i in range(4)],
            ["buffer_store_dwordx4 %s, v%d, s[%d:%d], s%d offen sc1" % (vr(a0, 4), vE, SA, SA + 3, sT0)])


def fetch(j):
    return ["s_add_u32 s%d, s%d, %d" % (sT3, sE2C, j * 4096),
            "buffer_load_dwordx4 %s, v%d, s[%d:%d], s%d offen sc1" % (vr(PB + 4 * (j - 1), 4), vE, SA, SA + 3, sT3)]


extra = {m: [] for m in range(128)}
vM2, vTM2 = NM[1], NM[1] + 1
poll2 = "buffer_load_dword v%%d, v%d, s[%d:%d], 0 offen sc1" % (vP2, SA, SA + 3)
extra[1] += ["s_lshl_b32 s%d, s%d, 7" % (sT0, sWAVE), "s_add_u32 s%d, s%d, 1024" % (sT0, sT0),
             "v_lshl_add_u32 v%d, v0, 2, s%d" % (vP2, sT0)]
extra[2] += ["v_lshlrev_b32 v1, 2, v0", "v_xor_b32 v1, s%d, v1" % sWGL, "v_lshl_add_u32 v%d, v1, 11, v%d" % (vM2, vP2)]
extra[3] += ["s_lshl_b32 s%d, s%d, 11" % (sT0, sWGL), "v_add_u32 v%d, s%d, v%d" % (vP2, sT0, vP2), "v_subrev_u32 v1, 1, v0"]
extra[4] += ["v_cmp_gt_u32 vcc, 7, v1", "v_bfrev_b32 v1, 1", "s_nop 0"]
extra[5] += ["v_cndmask_b32 v%d, v1, v%d, vcc" % (vP2, vP2), "v_cndmask_b32 v%d, v1, v%d, vcc" % (vM2, vM2)]
extra[6] += ["s_mov_b32 s%d, 0x3f80" % sLO, "s_mov_b32 s%d, 0x3f800000" % sHI]
late = Block()
late("s_lshl_b32 s%d, s%d, %d" % (sT0, sHN, WSH))
late("s_and_b32 s%d, s%d, %d" % (sT1, sG, (1 << (WSH - 5)) - 1))
late("s_lshl_b32 s%d, s%d, 5" % (sT1, sT1))
late("s_add_u32 s%d, s%d, s%d" % (sOFF, sT0, sT1))
if WSH < 8:
    late("s_lshr_b32 s%d, s%d, %d" % (sT1, sG, WSH - 5))
    late("s_lshl_b32 s%d, s%d, %d" % (sT1, sT1, WSH + 2))
    late("s_add_u32 s%d, s%d, s%d" % (sOFF, sOFF, sT1))
late("s_mul_i32 s%d, s%d, 114688" % (sT0, sB))
srd(late, SB, sOUT, sT0, "114688")
late("s_lshl_b32 s%d, s%d, 2" % (sT0, sB))
late("s_add_u32 s%d, s%d, s%d" % (sT0, sT0, sHN))
late("s_lshl_b32 s%d, s%d, 18" % (sT0, sT0))
late("s_lshl_b32 s%d, s%d, 10" % (sT1, sWAVE))
late("s_add_u32 s%d, s%d, s%d" % (sT0, sT0, sT1))
late("s_add_u32 s%d, s%d, %d" % (sE2P, sT0, E2_OFF))
late("s_lshl_b32 s%d, s%d, 15" % (sT1, sG))
late("s_add_u32 s%d, s%d, s%d" % (sE2C, sE2P, sT1))
li = [i.text for i in late.ins]
k_ = li.index([x for x in li if x.startswith("s_mul_i32")][0])
extra[7] += li[:k_]
extra[8] += li[k_:k_ + 5]
extra[9] += li[k_ + 5:k_ + 9]
extra[10] += li[k_ + 9:]
for p, base in ((1, STG + 32768), (2, XREG), (3, 0)):
    for nt in range(4):
        extra[32 * p - 14 + nt].append("v_add_u32 v%d, %d, v%d" % (AREG[p] + nt, base, aO2 + nt) if base else
                                       "v_mov_b32 v%d, v%d" % (AREG[p] + nt, aO2 + nt))
for i, nt in enumerate((1, 2, 3)):
    base = 104 + 8 * i
    for k_, j in enumerate((2 * nt, 2 * nt + 1)):
        for d_, part in enumerate(send(j)):
            extra[base + 2 + d_ + 3 * k_] += part
for p in (1, 2):
    for f in range(8):
        extra[32 * p - 16 + 2 * f].append(uncounted(sib_load(p, f)) if f < NEARLY else sib_load(p, f))
for f in range(8):
    extra[72 + 2 * f].append(uncounted(sib_load(3, f)))
extra[38].append(pollld)
extra[62].append(pollld)
t(pollld)
stamp(t, 6)
cst(t, 3)
for m in range(128):
    if m == OPT["fat"]:
        t("s_barrier")
    if m == OPT["flagat"]:
        cst(t, 4)
        t("s_waitcnt vmcnt(0)")
        cst(t, 5)
        t("s_cmp_lg_u32 s%d, 0x%x" % (sE1F, OOB))
        t("s_cbranch_scc1 L_flgf")
        t(flag + " sc1")
        t("s_branch L_flgj")
        t("L_flgf:")
        t.add([uncounted(flag + OPT["ffl"])])
        t("L_flgj:")
        stamp(t, 8)
    if OPT["fine"] and m in (33, 41, 48):
        t("s_memtime s[%d:%d]" % ({33: 70, 41: 72, 48: 74}[m], {33: 71, 41: 73, 48: 75}[m]))
    if m in (16, 48, 72):
        t("s_waitcnt vmcnt(%d)" % (1 if m == 16 else 0))
        try_head(t, {16: 1, 48: 2, 72: 3}[m])
    if m in (24, 56, 88):
        need_head(t, m // 32 + 1)
        cst(t, 6 + m // 32)
        if m == 24:
            stamp(t, 7)
        if m == 88:
            stamp(t, 9)
    o_mfma(t, m, extra[m])
stamp(t, 10)
cst(t, 9)
for part in send(1):
    t.add(part)
t(poll2 % vTM)
t("s_waitcnt vmcnt(1)")
t("buffer_store_dword v%d, v%d, s[%d:%d], 0 offen sc1" % (NM[0], vM2, SA, SA + 3))
stamp(t, 11)
cst(t, 10)
t(poll2 % vTM2)
t("s_mov_b32 s%d, 0x%x" % (sCNT, SPIN))
t("s_waitcnt vmcnt(2)")
t("L_poll2:")
t("v_cmp_eq_u32 vcc, 1, v%d" % vTM)
t("s_cmp_eq_u32 vcc_lo, 0xfe")
t("s_cbranch_scc1 L_poll2e")
t.add([uncounted(poll2 % vTM)])
t("s_waitcnt vmcnt(1)")
t.add([uncounted("v_cmp_eq_u32 vcc, 1, v%d" % vTM2)])
t("s_nop 0")
t("s_cmp_eq_u32 vcc_lo, 0xfe")
t("s_cbranch_scc1 L_poll2e")
t.add([uncounted(poll2 % vTM2)])
t("s_sub_u32 s%d, s%d, 1" % (sCNT, sCNT))
t("s_waitcnt vmcnt(1)")
t("s_cbranch_scc0 L_poll2")
t("L_poll2e:")
stamp(t, 12)
cst(t, 11)
for j in range(1, 8):
    t.add(fetch(j))
for j in range(1, 8):
    for i in range(4):
        p = PB + 4 * (j - 1) + i
        t("v_dot2_f32_bf16 v%d, v%d, s%d, v%d" % (ACC + 2 * i, p, sLO, ACC + 2 * i))
        t("v_dot2_f32_bf16 v%d, v%d, s%d, v%d" % (ACC + 2 * i + 1, p, sHI, ACC + 2 * i + 1))
t("s_nop 2")
for j in range(4):
    t("v_cvt_pk_bf16_f32 v%d, v%d, v%d" % (ACC + 8 + j, ACC + 2 * j, ACC + 2 * j + 1))
t("buffer_store_dwordx4 %s, v%d, s[%d:%d], s%d offen" % (vr(ACC + 8, 4), vOUT, SB, SB + 3, sOFF))
if STAMPS:
    cst(t, 12)
    t("s_waitcnt vmcnt(0)")
    cst(t, 13)
    stamp(t, 13)
    if STAMPS not in (6, 10):
        t("s_memtime s[94:95]")
    t("s_waitcnt lgkmcnt(0)")
    t("s_sub_u32 s%d, s94, s92" % (sSTAMP + 28))
    t("s_getreg_b32 s%d, hwreg(HW_REG_XCC_ID, 0, 4)" % (sSTAMP + 30))
    t("s_getreg_b32 s%d, hwreg(HW_REG_HW_ID)" % sT0)
    t("s_lshl_b32 s%d, s%d, 4" % (sT0, sT0))
    t("s_or_b32 s%d, s%d, s%d" % (sSTAMP + 30, sSTAMP + 30, sT0))
    for i in range(16):
        t("v_mov_b32 v%d, s%d" % (ACC + 16 + i, sSTAMP + 2 * i))
    t("s_lshl_b32 s%d, s2, 2" % sT0)
    t("s_add_u32 s%d, s%d, s%d" % (sT0, sT0, sWAVE))
    t("s_lshl_b32 s%d, s%d, 6" % (sT0, sT0))
    t("s_add_u32 s%d, s%d, %d" % (sT0, sT0, ST_OFF))
    t("v_mov_b32 v1, 0")
    t("s_mov_b64 exec, 1")
    for i in range(4):
        t("buffer_store_dwordx4 %s, v1, s[%d:%d], s%d offen offset:%d" % (vr(ACC + 16 + 4 * i, 4), SA, SA + 3, sT0, 16 * i))
t("L_end:")
t("s_endpgm")
t.finish(hist=tA.ins, vmq=vmqA)
if OPT["single"]:
    pad_hazards(t.ins[:60], hist=tB.ins, check_only=True, where="join from the one-block path")
blocks += side
blocks.append(Block("seldom taken"))
blocks[-1]("L_codeend:")
blocks += rare

hdr = open("standalone__mha_block_cached__near_ridge.s.ref").read().split("; Override launch")[0]
out = [hdr.rstrip()]
out.append("""; Fused Q projection + attention + output projection, one workgroup (8 waves) per (batch, head), one per CU.
;   over the eight groups (partial sums exchanged through d_ws).""")
out.append("; @launch grid=(256,1,1) block=(512,1,1) lds=163840")
out.append('.amdgcn_target "amdgcn-amd-amdhsa--gfx950"')
out.append(".text")
out.append(".globl " + KNAME)
out.append(".p2align 8")
out.append(".type %s,@function" % KNAME)
out.append(KNAME + ":")
for b in blocks:
    out.append("; ---- %s ----" % b.name)
    out.append(b.text())
out.append(".p2align 8")
out.append(".fill 64, 4, 0xbf800000")
out.append('.section .rodata,"a"')
out.append(".p2align 6")
out.append(".amdhsa_kernel " + KNAME)
out.append("""  .amdhsa_next_free_vgpr 256
  .amdhsa_next_free_sgpr 102
  .amdhsa_accum_offset 256
  .amdhsa_group_segment_fixed_size 0
  .amdhsa_kernarg_size 64
  .amdhsa_user_sgpr_count 2
  .amdhsa_user_sgpr_kernarg_segment_ptr 1
  .amdhsa_system_sgpr_workgroup_id_x 1
.end_amdhsa_kernel""")
print("\n".join(out))
```

```python
import sys, struct, math
from asmgen import *

OPT = dict(stamps=0, nt_kv="nt", nt_q="", nt_wo="", wopf=0, spf=0, spf0=0, tlb=0, pre_k=1, pre_v=1, qs=0, touch=0, tfl="", ffl="", fine=0, st1="", ld1="sc1", thr=8.0, force_rescale=0, codepf=1, fast=1,
           early="0.1.2.3", k_at="5.6.8.99", v_at="6.7.8.99", thr0=8, rotmask=3, fat=6, flagat=12, single=1,
           noload=0, map=0, rot=0, wseg=256)
for a in sys.argv[1:]:
    k, v = a.split("=")
    OPT[k] = type(OPT[k])(v) if not isinstance(OPT[k], str) else v.replace("_", " ").strip()
STAMPS = OPT["stamps"]
KNAME = "standalone__mha_block_cached__near_ridge_kernel"


def f32(x):
    return "0x%08x" % struct.unpack("<I", struct.pack("<f", x))[0]


CSC = math.log2(math.e) / math.sqrt(128.0)
M16 = "v_mfma_f32_16x16x32_bf16"
M32 = "v_mfma_f32_32x32x16_bf16"
OOB = 0x40000000
SPIN = 0x100000

KRING, VRING, STG, XREG = 0, 49152, 98304, 32768
E1_OFF, E2_OFF, ST_OFF = 0x100000, 0x900000, 0x4000000
sX, sK, sV, sWQ, sWO, sOUT, sDBG, sWS = 4, 6, 8, 10, 12, 14, 16, 18
sWAVE, sG, sB, sHN, sH, sWGL = 20, 21, 22, 23, 24, 25
sBEG, sEND = 26, 27
SA, SB, SC = 28, 32, 36
sOFF, sLDS, sCNT, sT0, sT1, sT2 = 40, 41, 42, 43, 44, 45
sCS, sDEL, sE1, sE2P, sE2C, sTHR = 46, 48, 49, 50, 51, 52
sT3, sTABK, sTABV, sDELV = 53, 54, 55, 56
sP, sP4, sE1F, sE1F4, sLO, sHI = 57, 58, 59, 60, 61, 62
sNXT, sA, sVM, sLIM = 54, 55, 56, 57
sSTAMP = 64
vP2, vP1, vE, vLO, vTM, vOUT = 2, 3, 4, 5, 6, 7
aK, aW, aV = 8, 12, 16
NM = (24, 28)
ACC, QF, S0, S1, KF, VF, XB = 32, 96, 128, 144, 160, 192, 224
PK = XB
vL = (232, 236)
vM1, vINFO, vINF, ONES, vDUM = 240, 242, 243, 244, 251
aWq, aXq = 96, 104
aO1, aO2, aO3 = aK, aW, aV
OB = PB = QF


def cst(b, idx):
    if STAMPS == 7 and OPT["fine"] and 3 <= idx <= 5:
        return
    if STAMPS == 7:
        b("s_memtime s[%d:%d]" % (sSTAMP + 2 * idx, sSTAMP + 2 * idx + 1))


def stamp(b, idx):
    if STAMPS == 7:
        if idx == 5:
            b("s_memrealtime s[%d:%d]" % (sSTAMP + 2, sSTAMP + 3))
    elif STAMPS == 9:
        if idx in (1, 2, 3, 13):
            b("s_memrealtime s[%d:%d]" % (sSTAMP + 2 * idx, sSTAMP + 2 * idx + 1))
            b("s_waitcnt lgkmcnt(0)")
    elif STAMPS == 8:
        if idx in (3, 5, 10, 13):
            b("s_memrealtime s[%d:%d]" % (sSTAMP + 2 * idx, sSTAMP + 2 * idx + 1))
    elif STAMPS:
        b("s_memrealtime s[%d:%d]" % (sSTAMP + 2 * idx, sSTAMP + 2 * idx + 1))
        b("s_waitcnt lgkmcnt(0)")


def srd(b, dst, ptr, off_sreg, size):
    if off_sreg is None:
        b("s_mov_b32 s%d, s%d" % (dst, ptr))
        b("s_mov_b32 s%d, s%d" % (dst + 1, ptr + 1))
    else:
        b("s_add_u32 s%d, s%d, s%d" % (dst, ptr, off_sreg))
        b("s_addc_u32 s%d, s%d, 0" % (dst + 1, ptr + 1))
    b("s_mov_b32 s%d, %s" % (dst + 2, size))
    b("s_mov_b32 s%d, 0x20000" % (dst + 3))


def dma_group(b, S, voffs, soff, flags, n=4):
    for p in range(n):
        o = " offset:%d" % (p * 1024) if p else ""
        b("buffer_load_dwordx4 v%d, s[%d:%d], s%d offen%s %s lds" % (voffs[p], S, S + 3, soff, o, flags))


def loop_begin(b, label, n):
    b("s_mov_b32 s%d, %d" % (sCNT, n))
    b(label + ":")


def loop_end(b, label):
    b("s_sub_u32 s%d, s%d, 1" % (sCNT, sCNT))
    b("s_cmp_lg_u32 s%d, 0" % sCNT)
    b("s_cbranch_scc1 " + label)


def spread(items, counts):
    out, k = [], 0
    for n in counts:
        out.append(items[k:k + n])
        k += n
    assert k == len(items)
    return out


def uncounted(x):
    i_ = parse(x)
    i_.kind = "comment"
    i_.n = 0
    return i_


blocks = []


def new(name):
    b = Block(name)
    blocks.append(b)
    return b


e = new("entry: workgroup -> (batch b, head group g, head hn in group); waves 0-3 compute, 4-7 load")
e("L_start:")
e("s_cmp_ge_u32 s2, 256")
e("s_cbranch_scc1 L_end")
e("s_load_dwordx16 s[4:19], s[0:1], 0")
if STAMPS:
    e("s_memrealtime s[%d:%d]" % (sSTAMP, sSTAMP + 1))
    e("s_memtime s[92:93]")
e("v_lshrrev_b32 v1, 6, v0")
e("v_and_b32 v0, 63, v0")
e("v_readfirstlane_b32 s%d, v1" % sWAVE)
e("s_and_b32 s%d, s2, 7" % sG)
if OPT["map"] == 0:
    e("s_lshr_b32 s%d, s2, 5" % sB)
    e("s_lshr_b32 s%d, s2, 3" % sHN)
    e("s_and_b32 s%d, s%d, 3" % (sHN, sHN))
else:
    e("s_lshr_b32 s%d, s2, 6" % sHN)
    e("s_lshr_b32 s%d, s2, 3" % sB)
    e("s_and_b32 s%d, s%d, 7" % (sB, sB))
e("s_lshl_b32 s%d, s%d, 2" % (sH, sG))
e("s_add_u32 s%d, s%d, s%d" % (sH, sH, sHN))
e("s_lshl_b32 s%d, s%d, 5" % (sWGL, sB))
e("s_add_u32 s%d, s%d, s%d" % (sWGL, sWGL, sH))
e("s_cmp_lt_u32 s%d, 4" % sWAVE)
e("s_cbranch_scc1 L_compute")
e("v_lshrrev_b32 v1, 4, v0")
e("v_and_b32 v3, 15, v0")
e("s_cmp_lt_u32 s%d, 6" % sWAVE)
e("s_cbranch_scc1 L_ldkv")
e.finish()

WOV = [14, 15, 16, 17]
WSH = {256: 8, 128: 7, 64: 6}[OPT["wseg"]]


def wo_setup(b):
    b("v_lshlrev_b32 v2, 2, v1")
    b("v_xor_b32 v2, v2, v3")
    if WSH < 8:
        b("v_lshrrev_b32 v4, %d, v2" % (WSH - 4))
        b("v_and_b32 v2, %d, v2" % ((1 << (WSH - 4)) - 1))
        b("v_lshl_add_u32 v2, v4, %d, v2" % (WSH - 2))
    b("v_lshlrev_b32 v2, 4, v2")
    b("v_lshl_add_u32 v14, v1, 10, v2")
    b("v_add_u32 v15, 3072, v14")
    b("v_add_u32 v16, 6144, v14")
    b("v_add_u32 v17, 9216, v14")
    b("s_lshl_b32 s%d, s%d, 19" % (sT0, sG))
    b("s_lshl_b32 s%d, s%d, %d" % (sT1, sHN, WSH))
    b("s_add_u32 s%d, s%d, s%d" % (sT0, sT0, sT1))
    b("s_sub_u32 s%d, 0x400000, s%d" % (sT1, sT0))
    srd(b, SB, sWO, sT0, "s%d" % sT1)


def kv_tile(b, voffs, skip=False):
    if skip:
        return
    b("s_mov_b32 m0, s%d" % sLDS)
    b("s_add_u32 s%d, s%d, 4096" % (sT0, sLDS))
    dma_group(b, SA, voffs, sOFF, OPT["nt_kv"])
    b("s_mov_b32 m0, s%d" % sT0)
    b("s_add_u32 s%d, s%d, 4096" % (sOFF, sOFF))
    dma_group(b, SA, voffs, sOFF, OPT["nt_kv"])
    b("s_add_u32 s%d, s%d, 4096" % (sOFF, sOFF))
    if OPT["rot"]:
        b("s_and_b32 s%d, s%d, 0x3ffff" % (sOFF, sOFF))
    b("s_add_u32 s%d, s%d, 8192" % (sLDS, sLDS))
    b("s_cmp_eq_u32 s%d, s%d" % (sLDS, sEND))
    b("s_cselect_b32 s%d, s%d, s%d" % (sLDS, sBEG, sLDS))


def first_tile(b):
    if not OPT["rot"]:
        b("s_mov_b32 s%d, 0" % sOFF)
        return
    b("s_mul_i32 s%d, s%d, %d" % (sOFF, sWGL, OPT["rot"]))
    b("s_and_b32 s%d, s%d, 31" % (sOFF, sOFF))
    b("s_lshl_b32 s%d, s%d, 13" % (sOFF, sOFF))


def wo_tile(b):
    b("s_mov_b32 m0, s%d" % sLDS)
    b("s_add_u32 s%d, s%d, 4096" % (sT0, sLDS))
    dma_group(b, SB, WOV, sOFF, OPT["nt_wo"])
    b("s_mov_b32 m0, s%d" % sT0)
    b("s_add_u32 s%d, s%d, 16384" % (sOFF, sOFF))
    dma_group(b, SB, WOV, sOFF, OPT["nt_wo"])
    b("s_add_u32 s%d, s%d, 16384" % (sOFF, sOFF))


def wo3_tile(b):
    b("s_add_u32 s%d, s%d, 2" % (sT1, sNXT))
    b("s_and_b32 s%d, s%d, 3" % (sT1, sT1))
    b("s_lshl_b32 s%d, s%d, 13" % (sLDS, sT1))
    b("s_xor_b32 s%d, s%d, 3" % (sOFF, sHN))
    b("s_lshl_b32 s%d, s%d, 2" % (sOFF, sOFF))
    b("s_add_u32 s%d, s%d, s%d" % (sOFF, sOFF, sT1))
    b("s_lshl_b32 s%d, s%d, 15" % (sOFF, sOFF))
    wo_tile(b)


def tiles(b, label, voffs, n):
    if n > 1:
        b("s_mov_b32 s%d, %d" % (sT3, n))
        b(label + ":")
        kv_tile(b, voffs)
        b("s_sub_u32 s%d, s%d, 1" % (sT3, sT3))
        b("s_cmp_lg_u32 s%d, 0" % sT3)
        b("s_cbranch_scc1 " + label)
    elif n:
        kv_tile(b, voffs)


def q_phase_kv(b, tag, voffs, txt, hooks):
    early = [int(x) for x in OPT["early"].split(".")]
    at = [int(x) for x in txt.split(".")]
    assert max(early) <= at[0] and at == sorted(at) and at[2] >= 6
    b("s_add_u32 s%d, s%d, s%d" % (sT1, sB, sHN))
    b("s_and_b32 s%d, s%d, 3" % (sT1, sT1))
    b("s_lshl_b32 s%d, s%d, 2" % (sT1, sT1))
    b("s_lshr_b32 s%d, %d, s%d" % (sT1, sum(x << (4 * i) for i, x in enumerate(early)), sT1))
    b("s_and_b32 s%d, s%d, 15" % (sCNT, sT1))
    SPF = OPT["spf"]
    npre = OPT["pre_" + tag]
    tiles(b, "L_%spre" % tag, voffs, npre)

    def touch():
        if SPF:
            for i in range(SPF):
                b("s_load_dword s63, s[60:61], 0x%x" % (128 * i))
            b("s_add_u32 s60, s60, %d" % (128 * SPF))
            b("s_addc_u32 s61, s61, 0")
    if SPF:
        b("s_lshl_b32 s%d, s%d, 19" % (sT0, sG))
        b("s_lshr_b32 s%d, s2, 3" % sT1)
        b("s_lshl_b32 s%d, s%d, 14" % (sT1, sT1))
        b("s_add_u32 s%d, s%d, s%d" % (sT0, sT0, sT1))
        if tag == "v":
            b("s_add_u32 s%d, s%d, 8192" % (sT0, sT0))
        b("s_add_u32 s60, s%d, s%d" % (sWO, sT0))
        b("s_addc_u32 s61, s%d, 0" % (sWO + 1))
        if OPT["spf0"]:
            touch()
    nt_ = [64 // SPF - OPT["spf0"] if SPF else 0]
    lo, hi = min(early), max(early)
    assert not SPF or (lo == 0 and nt_[0] >= hi + 1)
    for i in range(lo):
        b("s_barrier")
        b.add(hooks.get(i, []))
    assert all(x > hi or x == hi for x in at) and all(k <= lo or k > hi for k in hooks)
    b("s_mov_b32 s%d, %d" % (sT2, lo))
    b("L_%se:" % tag)
    b("s_barrier")
    if lo in hooks:
        b("s_cmp_lg_u32 s%d, %d" % (sT2, lo))
        b("s_cbranch_scc1 L_%seh" % tag)
        b.add(hooks[lo])
        b("L_%seh:" % tag)
    touch()
    nt_[0] -= hi + 1
    b("s_cmp_lg_u32 s%d, s%d" % (sCNT, sT2))
    b("s_cbranch_scc1 L_%sen" % tag)
    b.add(hooks.get(100, []))
    tiles(b, "L_%sei" % tag, voffs, 2 - npre)
    b("L_%sen:" % tag)
    b("s_add_u32 s%d, s%d, 1" % (sT2, sT2))
    b("s_cmp_le_u32 s%d, %d" % (sT2, hi))
    b("s_cbranch_scc1 L_%se" % tag)
    tiles(b, "L_%sq%d" % (tag, hi), voffs, at.count(hi))
    for i in range(hi + 1, 8):
        b("s_barrier")
        b.add(hooks.get(i, []))
        if nt_[0] > 0:
            touch()
            nt_[0] -= 1
        tiles(b, "L_%sq%d" % (tag, i), voffs, at.count(i))
    if tag == "k":
        b("s_waitcnt vmcnt(%d)" % (8 * sum(x < 8 for x in at)))
    assert nt_[0] <= 0
    b("s_barrier")
    tiles(b, "L_%sq8" % tag, voffs, at.count(8))
    return 2 + sum(x <= 8 for x in at)


def att_phase(b, tag, voffs, nxt, lead, f1, f2, tend, sw_at, sw_reg, sw_val):
    sT = sCNT
    stamps = STAMPS == 1 and tag == "v"
    last = 35 if tag == "k" else 31
    b("s_mov_b32 s%d, 0" % sT)
    b("s_mov_b32 s%d, %d" % (sNXT, nxt))
    b("L_%sd:" % tag)
    b("s_sub_u32 s%d, s%d, s%d" % (sA, sNXT, sT))
    for a_ in (1, 2, 3, 4, 5):
        b("s_cmp_eq_u32 s%d, %d" % (sA, lead + 1 + a_))
        b("s_cbranch_scc1 L_%sd%d" % (tag, a_))
    b("s_waitcnt vmcnt(0)")
    for a_ in range(1, 6):
        b("L_%sd%d:" % (tag, a_))
        b("s_waitcnt vmcnt(%d)" % (8 * a_))
    if stamps:
        b("s_memrealtime s[60:61]")
        b("s_waitcnt lgkmcnt(0)")
    b("s_barrier")
    if stamps:
        b("s_memrealtime s[62:63]")
        b("s_waitcnt lgkmcnt(0)")
        b("s_mov_b32 m0, s%d" % sT)
        b("s_nop 0")
        b("v_writelane_b32 v20, s60, m0")
        b("v_writelane_b32 v21, s62, m0")
    b("s_getreg_b32 s%d, hwreg(HW_REG_IB_STS, 22, 2)" % sA)
    b("s_getreg_b32 s%d, hwreg(HW_REG_IB_STS, 0, 4)" % sVM)
    b("s_lshl_b32 s%d, s%d, 4" % (sA, sA))
    b("s_or_b32 s%d, s%d, s%d" % (sVM, sVM, sA))
    b("L_%sdi:" % tag)
    b("s_cmp_le_u32 s%d, 21" % sNXT)
    b("s_cselect_b32 s%d, %d, %d" % (sLIM, f1, f2))
    b("s_add_u32 s%d, s%d, s%d" % (sLIM, sLIM, sT))
    b("s_min_u32 s%d, s%d, %d" % (sLIM, sLIM, last))
    b("s_cmp_gt_u32 s%d, s%d" % (sNXT, sLIM))
    b("s_cbranch_scc1 L_%sdn" % tag)
    b("s_cmp_le_u32 s%d, %d" % (sVM, OPT["thr0"]))
    b("s_cbranch_scc1 L_%sdg" % tag)
    b("s_add_u32 s%d, s%d, %d" % (sLIM, sT, lead + 1))
    b("s_cmp_gt_u32 s%d, s%d" % (sNXT, sLIM))
    b("s_cbranch_scc1 L_%sdn" % tag)
    b("L_%sdg:" % tag)
    if last > 31:
        b("s_cmp_ge_u32 s%d, 32" % sNXT)
        b("s_cbranch_scc1 L_kdw")
    b("s_cmp_eq_u32 s%d, %d" % (sNXT, sw_at))
    b("s_cselect_b32 s%d, %d, s%d" % (sw_reg, sw_val, sw_reg))
    kv_tile(b, voffs, OPT["noload"] & 1)
    b("L_%sdj:" % tag)
    b("s_add_u32 s%d, s%d, 1" % (sNXT, sNXT))
    b("s_add_u32 s%d, s%d, 8" % (sVM, sVM))
    b("s_branch L_%sdi" % tag)
    if last > 31:
        b("L_kdw:")
        wo3_tile(b)
        b("s_branch L_kdj")
    b("L_%sdn:" % tag)
    b("s_add_u32 s%d, s%d, 1" % (sT, sT))
    b("s_cmp_lt_u32 s%d, %d" % (sT, tend))
    b("s_cbranch_scc1 L_%sd" % tag)


b = new("K loader")
b(".p2align 8")
b("L_ldkv:")
b("s_cmp_eq_u32 s%d, 5" % sWAVE)
b("s_cbranch_scc1 L_ldv")
for p in range(4):
    b("v_add_u32 v4, %d, v1" % (4 * p))
    b("v_xor_b32 v4, v4, v3")
    b("v_lshlrev_b32 v4, 4, v4")
    b("v_lshl_add_u32 v%d, v1, 8, v4" % (10 + p))
b("s_lshl_b32 s%d, s%d, 18" % (sT0, sWGL))
b("s_waitcnt lgkmcnt(0)")
srd(b, SA, sK, sT0, "0x40000")
first_tile(b)
b("s_mov_b32 s%d, %d" % (sLDS, KRING))
b("s_mov_b32 s%d, %d" % (sBEG, KRING))
b("s_mov_b32 s%d, %d" % (sEND, KRING + 49152))
KV4 = [10, 11, 12, 13]
hooks = {}
if OPT["wopf"] >= 0:
    b("s_lshl_b32 s%d, s%d, 19" % (sT0, sG))
    b("s_lshr_b32 s%d, s2, 3" % sT1)
    b("s_lshl_b32 s%d, s%d, 14" % (sT1, sT1))
    b("s_add_u32 s%d, s%d, s%d" % (sT0, sT0, sT1))
    srd(b, SC, sWO, sT0, "16384")
    b("v_lshlrev_b32 v18, 7, v0")
    b("v_add_u32 v19, 8192, v18")
    hooks[OPT["wopf"]] = ["buffer_load_dword v20, v18, s[%d:%d], 0 offen" % (SC, SC + 3),
                          "buffer_load_dword v21, v19, s[%d:%d], 0 offen" % (SC, SC + 3)]
b.add(hooks.pop(200, []))
NK0 = q_phase_kv(b, "k", KV4, OPT["k_at"], hooks)
wo_setup(b)
att_phase(b, "k", KV4, NK0, 2, 7, 5, 30, 19, sEND, KRING + 32768)
b("s_barrier")
b("L_k2:")
wo3_tile(b)
b("s_add_u32 s%d, s%d, 1" % (sNXT, sNXT))
b("s_cmp_le_u32 s%d, 35" % sNXT)
b("s_cbranch_scc1 L_k2")
b("s_barrier")
b("s_waitcnt vmcnt(0)")
b("s_barrier")
b("s_endpgm")
b.finish(hist=e.ins)

b = new("V loader")
b(".p2align 8")
b("L_ldv:")
for par in range(2):
    b("v_lshlrev_b32 v4, 1, v1")
    b("v_xor_b32 v4, v4, v3")
    if par:
        b("v_xor_b32 v4, 8, v4")
    b("v_lshlrev_b32 v4, 4, v4")
    b("v_lshl_add_u32 v%d, v1, 8, v4" % (10 + par))
b("s_lshl_b32 s%d, s%d, 18" % (sT0, sWGL))
b("s_waitcnt lgkmcnt(0)")
srd(b, SA, sV, sT0, "0x40000")
first_tile(b)
b("s_mov_b32 s%d, %d" % (sLDS, VRING + 2 * 8192))
b("s_mov_b32 s%d, %d" % (sBEG, VRING))
b("s_mov_b32 s%d, %d" % (sEND, VRING + 49152))
V4 = [10, 11, 10, 11]
srd(b, SC, sWS, None, "0x10000000")
b("v_mov_b32 v4, 0")
b("v_mov_b32 v5, 0")
b("s_lshl_b32 s%d, s%d, 11" % (sT0, sWGL))
b("v_lshlrev_b32 v8, 3, v0")
b("buffer_store_dwordx2 v[4:5], v8, s[%d:%d], s%d offen sc1" % (SC, SC + 3, sT0))
b("buffer_store_dwordx2 v[4:5], v8, s[%d:%d], s%d offen offset:1024 sc1" % (SC, SC + 3, sT0))
b("s_getreg_b32 s%d, hwreg(HW_REG_XCC_ID, 0, 4)" % sT1)
b("s_add_u32 s%d, s%d, 1" % (sT1, sT1))
b("v_mov_b32 v7, s%d" % sT1)
b("s_mov_b64 exec, 1")
b("buffer_store_dword v7, v4, s[%d:%d], s%d offen offset:512 sc1" % (SC, SC + 3, sT0))
b("s_mov_b64 exec, -1")
b("s_lshl_b32 s%d, s%d, 5" % (sT0, sB))
b("s_add_u32 s%d, s%d, s%d" % (SB, sDBG, sT0))
b("s_addc_u32 s%d, s%d, 0" % (SB + 1, sDBG + 1))
b("s_mov_b32 s%d, 1" % (SB + 2))
NV0 = q_phase_kv(b, "v", V4, OPT["v_at"],
                 {0: ["s_waitcnt vmcnt(%d)" % (8 * OPT["pre_v"]), "s_atomic_add s%d, s[%d:%d], 0x0" % (SB + 2, SB, SB + 1)]})
att_phase(b, "v", V4, NV0, 0, 5, 3, 32, 18, sBEG, VRING + 16384)
b("s_barrier")
if STAMPS == 1:
    b("s_lshl_b32 s%d, s2, 9" % sT0)
    b("s_add_u32 s%d, s%d, %d" % (sT0, sT0, ST_OFF + 0x100000))
    b("v_lshlrev_b32 v1, 2, v0")
    b("buffer_store_dword v20, v1, s[%d:%d], s%d offen" % (SC, SC + 3, sT0))
    b("buffer_store_dword v21, v1, s[%d:%d], s%d offen offset:256" % (SC, SC + 3, sT0))
b("s_endpgm")
b.finish(hist=e.ins)


sGST, sKSH, sL0, sL1, sL2, s4K = 54, 55, 56, 57, 58, 59


def q_phase_xw(b):
    def chunk():
        b("s_lshl_b32 s%d, s%d, s%d" % (sOFF, sT2, sKSH))
        b("s_mov_b32 m0, s%d" % sL0)
        b("s_add_u32 s%d, s%d, 1" % (sT2, sT2))
        b("s_and_b32 s%d, s%d, 7" % (sT2, sT2))
        b("s_mov_b32 s%d, -4" % sT3)
        b("L_xwg:")
        if not OPT["noload"] & 2:
            dma_group(b, SA, [10, 11, 12, 13], sOFF, OPT["nt_q"])
        b("s_add_u32 m0, m0, s%d" % s4K)
        b("s_add_u32 s%d, s%d, s%d" % (sOFF, sOFF, sGST))
        b("s_add_u32 s%d, s%d, 1" % (sT3, sT3))
        b("s_cbranch_scc0 L_xwg")
        b("s_mov_b32 s%d, s%d" % (sT3, sL0))
        b("s_mov_b32 s%d, s%d" % (sL0, sL1))
        b("s_mov_b32 s%d, s%d" % (sL1, sL2))
        b("s_mov_b32 s%d, s%d" % (sL2, sT3))
    b("s_setprio 2")
    b("s_cmp_eq_u32 s%d, 7" % sWAVE)
    b("s_cbranch_scc1 L_setw")
    b("v_lshrrev_b32 v5, 3, v0")
    b("v_and_b32 v6, 7, v0")
    b("v_lshrrev_b32 v7, 1, v5")
    b("v_xor_b32 v4, v7, v6")
    b("v_lshlrev_b32 v4, 4, v4")
    b("v_lshl_add_u32 v10, v5, 10, v4")
    b("v_xor_b32 v4, 64, v10")
    b("v_add_u32 v11, %d, v4" % (8192 - 1024))
    b("v_add_u32 v12, %d, v10" % (2 * (8192 - 1024)))
    b("v_add_u32 v13, %d, v4" % (3 * (8192 - 1024)))
    b("s_mul_i32 s%d, s%d, 114688" % (sT0, sB))
    b("s_mov_b32 s%d, 114688" % (SA + 2))
    b("s_mov_b32 s%d, 32768" % sGST)
    b("s_mov_b32 s%d, 7" % sKSH)
    b("s_mov_b32 s%d, %d" % (sL0, STG))
    b("s_waitcnt lgkmcnt(0)")
    b("s_add_u32 s%d, s%d, s%d" % (SA, sX, sT0))
    b("s_addc_u32 s%d, s%d, 0" % (SA + 1, sX + 1))
    b("s_branch L_setj")
    b("L_setw:")
    b("v_lshlrev_b32 v4, 1, v1")
    b("v_xor_b32 v4, v4, v3")
    b("v_lshlrev_b32 v4, 4, v4")
    b("v_lshl_add_u32 v10, v1, 13, v4")
    b("v_add_u32 v11, %d, v10" % (32768 - 1024))
    b("v_xor_b32 v4, 128, v10")
    b("v_add_u32 v12, %d, v4" % (2 * (32768 - 1024)))
    b("v_add_u32 v13, %d, v4" % (3 * (32768 - 1024)))
    b("s_lshl_b32 s%d, s%d, 8" % (sT0, sH))
    b("s_sub_u32 s%d, 0x400000, s%d" % (SA + 2, sT0))
    b("s_mov_b32 s%d, 131072" % sGST)
    b("s_mov_b32 s%d, 19" % sKSH)
    b("s_mov_b32 s%d, %d" % (sL0, STG + 16384))
    b("s_waitcnt lgkmcnt(0)")
    b("s_add_u32 s%d, s%d, s%d" % (SA, sWQ, sT0))
    b("s_addc_u32 s%d, s%d, 0" % (SA + 1, sWQ + 1))
    b("L_setj:")
    b("s_mov_b32 s%d, 0x20000" % (SA + 3))
    b("s_lshl_b32 s%d, s%d, 1" % (sT2, sHN))
    b("s_add_u32 s%d, s%d, s%d" % (sT2, sT2, sB))
    b("s_and_b32 s%d, s%d, %d" % (sT2, sT2, OPT["rotmask"]))
    b("s_movk_i32 s%d, 0x1000" % s4K)
    b("s_add_u32 s%d, s%d, 32768" % (sL1, sL0))
    b("s_sub_u32 s%d, s%d, %d" % (sL2, sL0, STG - XREG))
    b("s_mov_b32 s%d, 8" % sCNT)
    b("s_branch L_xwgo")
    b("L_xw:")
    b("s_waitcnt vmcnt(16)")
    b("s_barrier")
    b("L_xwgo:")
    chunk()
    b("s_sub_u32 s%d, s%d, 1" % (sCNT, sCNT))
    b("s_cmp_eq_u32 s%d, 7" % sCNT)
    b("s_cbranch_scc1 L_xwgo")
    b("s_cmp_lg_u32 s%d, 0" % sCNT)
    b("s_cbranch_scc1 L_xw")
    wo_setup(b)
    b("s_waitcnt vmcnt(16)")
    b("s_barrier")
    b("s_waitcnt vmcnt(0)")
    b("s_barrier")
    b("s_barrier")
    b("s_setprio 0")
    b("s_cmp_eq_u32 s%d, 7" % sWAVE)
    b("s_cbranch_scc1 L_attw")


def wo_trickle(b, tag, blk):
    first = 4 if blk == 0 else 2
    for i in range(first + 1):
        b("s_barrier")
    if tag == "w":
        b("s_lshl_b32 s%d, s%d, 5" % (sT0, sB))
        b("s_add_u32 s%d, s%d, s%d" % (SC, sDBG, sT0))
        b("s_addc_u32 s%d, s%d, 0" % (SC + 1, sDBG + 1))
        b("s_load_dword s%d, s[%d:%d], 0x0 glc" % (SC + 2, SC, SC + 1))
    b("s_xor_b32 s%d, s%d, %d" % (sOFF, sHN, blk))
    b("s_lshl_b32 s%d, s%d, 17" % (sOFF, sOFF))
    b("s_mov_b32 s%d, %d" % (sLDS, STG + blk * 32768))
    loop_begin(b, "L_%s2" % tag, 4)
    wo_tile(b)
    b("s_add_u32 s%d, s%d, 8192" % (sLDS, sLDS))
    for i in range(4):
        b("s_barrier")
    loop_end(b, "L_%s2" % tag)
    if tag == "x" and OPT["tlb"]:
        srd(b, SA, sWS, None, "0x10000000")
        b("s_lshl_b32 s%d, s%d, 15" % (sT0, sWGL))
        b("s_add_u32 s%d, s%d, %d" % (sT0, sT0, E1_OFF))
        b("s_lshl_b32 s%d, s%d, 2" % (sT1, sB))
        b("s_add_u32 s%d, s%d, s%d" % (sT1, sT1, sHN))
        b("s_lshl_b32 s%d, s%d, 3" % (sT1, sT1))
        b("s_add_u32 s%d, s%d, s%d" % (sT1, sT1, sG))
        b("s_lshl_b32 s%d, s%d, 15" % (sT1, sT1))
        b("s_add_u32 s%d, s%d, %d" % (sT1, sT1, E2_OFF))
        b("v_mov_b32 v4, 0")
        b("s_mov_b64 exec, 1")
        b("buffer_load_dword v5, v4, s[%d:%d], s%d offen" % (SA, SA + 3, sT0))
        b("buffer_load_dword v5, v4, s[%d:%d], s%d offen" % (SA, SA + 3, sT1))
        if OPT["tlb"] > 1:
            b("s_mul_i32 s%d, s%d, 114688" % (sT0, sB))
            srd(b, SC, sOUT, sT0, "114688")
            b("s_xor_b32 s%d, s%d, 2" % (sT1, sHN))
            b("s_lshl_b32 s%d, s%d, 8" % (sT1, sT1))
            b("buffer_load_dword v5, v4, s[%d:%d], s%d offen" % (SC, SC + 3, sT1))
        b("s_mov_b64 exec, -1")
    b("s_xor_b32 s%d, s%d, 2" % (sOFF, sHN))
    b("s_lshl_b32 s%d, s%d, 17" % (sOFF, sOFF))
    b("s_add_u32 s%d, s%d, %d" % (sOFF, sOFF, blk * 65536))
    b("s_mov_b32 s%d, %d" % (sLDS, XREG + blk * 16384))
    wo_tile(b)
    b("s_add_u32 s%d, s%d, 8192" % (sLDS, sLDS))
    for i in range(4):
        b("s_barrier")
    wo_tile(b)
    done = first + 20
    if tag == "w":
        for i in range(3):
            b("s_barrier")
        done += 3
        b("s_mov_b32 s%d, 0x%x" % (sCNT, SPIN))
        b("s_branch L_wchk")
        b("L_wpoll:")
        b("s_load_dword s%d, s[%d:%d], 0x0 glc" % (SC + 2, SC, SC + 1))
        b("L_wchk:")
        b("s_waitcnt lgkmcnt(0)")
        b("s_sub_u32 s%d, s%d, 1" % (sCNT, sCNT))
        b("s_cbranch_scc1 L_wpolld")
        b("s_cmp_lt_u32 s%d, 32" % (SC + 2))
        b("s_cbranch_scc1 L_wpoll")
        b("L_wpolld:")
    for i in range(29 - done):
        b("s_barrier")
    b("s_waitcnt vmcnt(0)")
    b("s_barrier")
    b("s_barrier")
    b("s_barrier")
    b("s_endpgm")


bq = Block("x / wq loaders: Q phase")
q_phase_xw(bq)
wo_trickle(bq, "x", 0)
bq("L_attw:")
wo_trickle(bq, "w", 1)
bq.finish(hist=e.ins)
blocks.insert(1, bq)

c = new("compute waves: addresses")
c(".p2align 8")
c("L_compute:")
if OPT["codepf"]:
    c("s_cmp_lg_u32 s%d, 1" % sWAVE)
    c("s_cbranch_scc1 L_nopf")
    c("s_getpc_b64 s[56:57]")
    c("L_pc:")
    c("s_sub_u32 s56, s56, L_pc-L_start")
    c("s_subb_u32 s57, s57, 0")
    c("s_lshr_b32 s%d, s2, 3" % sT0)
    c("s_and_b32 s%d, s%d, 7" % (sT0, sT0))
    c("s_mul_i32 s%d, s%d, ((L_codeend-L_start+1023)/1024)*128" % (sT0, sT0))
    c("v_lshlrev_b32 v1, 7, v0")
    c("v_add_u32 v1, s%d, v1" % sT0)
    c("v_min_u32 v1, L_codeend-L_start-4, v1")
    c("v_mov_b32 v3, s57")
    c("v_add_co_u32 v2, vcc, s56, v1")
    c("s_nop 1")
    c("v_addc_co_u32 v3, vcc, 0, v3, vcc")
    c("v_cmp_gt_u32 vcc, (L_codeend-L_start+1023)/1024, v0")
    c("s_and_saveexec_b64 s[58:59], vcc")
    c("global_load_dword v%d, v[2:3], off" % vDUM)
    c("s_mov_b64 exec, -1")
    c("L_nopf:")
for i in range(4):
    c("v_mov_b32 v%d, 0" % (XB + 28 + i))
c("v_lshrrev_b32 v1, 4, v0")
c("v_and_b32 v2, 15, v0")
c("v_lshrrev_b32 v3, 5, v0")
c("v_and_b32 v4, 1, v1")
c("v_lshl_add_u32 v3, v4, 1, v3")
c("v_xor_b32 v3, v3, v2")
c("v_lshlrev_b32 v3, 4, v3")
c("v_lshl_add_u32 v%d, v2, 8, v3" % aK)
for ks in range(1, 4):
    c("v_xor_b32 v%d, %d, v%d" % (aK + ks, ks << 6, aK))
c("s_lshl_b32 s%d, s%d, 12" % (sT0, sWAVE))
c("s_add_u32 s%d, s%d, %d" % (sT0, sT0, STG))
c("v_lshrrev_b32 v3, 1, v2")
c("v_xor_b32 v3, v3, v1")
c("v_lshlrev_b32 v3, 4, v3")
c("v_lshl_add_u32 v3, v2, 7, v3")
c("v_add_u32 v%d, s%d, v3" % (aXq, sT0))
c("v_xor_b32 v%d, 64, v%d" % (aXq + 1, aXq))
c("v_bfe_u32 v2, v0, 2, 2")
c("v_lshrrev_b32 v3, 2, v0")
c("v_and_b32 v4, 7, v3")
c("v_lshlrev_b32 v4, 5, v4")
c("v_lshl_add_u32 v3, v3, 8, v4")
c("v_and_b32 v4, 3, v0")
c("v_lshl_add_u32 v3, v4, 3, v3")
c("v_add_u32 v%d, %d, v3" % (aV, VRING + 16384))
for db in range(1, 8):
    c("v_xor_b32 v%d, %d, v%d" % (aV + db, db << 5, aV))
c("v_lshl_add_u32 v3, v1, 10, v3")
c("v_add_u32 v%d, %d, v3" % (aWq, STG + 16384))
for db in range(1, 8):
    c("v_xor_b32 v%d, %d, v%d" % (aWq + db, db << 5, aWq))
c("v_mul_u32_u24 v2, 320, v2")
c("v_lshrrev_b32 v3, 5, v0")
c("v_lshl_add_u32 v3, v3, 11, v2")
c("v_and_b32 v4, 1, v1")
c("v_lshl_add_u32 v3, v4, 5, v3")
c("v_and_b32 v4, 1, v0")
c("v_lshl_add_u32 v3, v4, 4, v3")
c("v_bfe_u32 v4, v0, 1, 1")
c("v_lshl_add_u32 v3, v4, 3, v3")
c("s_lshl_b32 s%d, s%d, 5" % (sT0, sG))
c("v_xor_b32 v%d, s%d, v3" % (aO2, sT0))
for nt in range(1, 4):
    c("v_xor_b32 v%d, %d, v%d" % (aO2 + nt, nt << 6, aO2))
c("v_and_b32 v2, 31, v0")
c("s_lshl_b32 s%d, s%d, 5" % (sT0, sWAVE))
c("v_add_u32 v2, s%d, v2" % sT0)
c("v_lshlrev_b32 v%d, 4, v0" % vE)
c("v_cmp_lt_u32 vcc, 111, v2")
c("v_bfrev_b32 v3, 1")
c("v_lshlrev_b32 v2, 10, v2")
c("v_cndmask_b32 v1, 0, v3, vcc")
c("v_or_b32 v%d, v%d, v1" % (vE, vE))
c("v_lshrrev_b32 v1, 5, v0")
c("v_lshl_add_u32 v%d, v1, 4, v2" % vOUT)
c("v_xor_b32 v1, s%d, v0" % sWGL)
c("v_lshlrev_b32 v1, 11, v1")
c("v_cmp_gt_u32 vcc, 4, v0")
c("v_add_u32 v2, 512, v1")
c("s_lshl_b32 s%d, s%d, 7" % (sT0, sWAVE))
c("v_cndmask_b32 v%d, v3, v2, vcc" % vINFO)
c("v_lshl_add_u32 v2, v0, 2, s%d" % sT0)
c("v_add_u32 v1, v1, v2")
c("s_lshl_b32 s%d, s%d, 11" % (sT1, sWGL))
c("v_add_u32 v2, s%d, v2" % sT1)
c("v_subrev_u32 v%d, 1, v0" % vTM)
c("v_cmp_gt_u32 vcc, 3, v%d" % vTM)
c("s_mov_b32 s%d, %s" % (sCS, f32(CSC)))
c("s_mov_b32 s%d, %s" % (sCS + 1, f32(CSC)))
c("v_cndmask_b32 v%d, v3, v1, vcc" % vM1)
c("v_cndmask_b32 v%d, v3, v2, vcc" % vP1)
for i in range(4):
    c("%s %s, %s, %s, 0" % (M32, vr(ACC + 16 * i, 16), vr(XB + 28, 4), vr(XB + 28, 4)))
c("s_mov_b32 s%d, %s" % (sTHR, f32(0.0 if OPT["force_rescale"] else OPT["thr"])))
c("s_waitcnt lgkmcnt(0)")
srd(c, SA, sWS, None, "0x10000000")
c("s_lshl_b32 s%d, s%d, 15" % (sE1, sWGL))
c("s_lshl_b32 s%d, s%d, 13" % (sT0, sWAVE))
c("s_add_u32 s%d, s%d, s%d" % (sE1, sE1, sT0))
c("s_add_u32 s%d, s%d, %d" % (sE1, sE1, E1_OFF))
c("s_mov_b32 s%d, %d" % (sT2, sum(((1, -3, 2)[i % 3] + 3) << (3 * i) for i in range(8))))
c("s_mov_b32 s%d, 8" % sCNT)
if OPT["single"]:
    c("s_cmp_eq_u32 s%d, 3" % sWAVE)
    c("s_cbranch_scc1 L_paths")
c.finish(hist=e.ins)


def k_reads(slot_off):
    return ["ds_read_b128 %s, v%d offset:%d" % (vr(KF + 16 * kb + 4 * ks, 4), aK + ks, slot_off + kb * 4096)
            for ks in range(4) for kb in range(2)]


def v_read(db, u, off):
    return "ds_read_b64_tr_b16 %s, v%d offset:%d" % (vr(VF + 4 * db + 2 * u, 2), aV + db, off + u * 4096)


def ex(S, i):
    return "v_exp_f32 v%d, v%d" % (S + i, S + i)


def cvt(S, j):
    return "v_cvt_pk_bf16_f32 v%d, v%d, v%d" % (PK + j, S + 2 * j, S + 2 * j + 1)


def qk(SN, ks, kb, blk, first):
    d = vr(SN + 8 * blk + 4 * kb, 4)
    cc = d if ks else ("0" if first else vr(NM[blk], 4))
    return "%s %s, %s, %s, %s" % (M16, d, vr(KF + 16 * kb + 4 * ks, 4), vr(QF + 16 * blk + 4 * ks, 4), cc)


def pv(db, blk):
    d = vr(ACC + 32 * blk + 4 * db, 4)
    return "%s %s, %s, %s, %s" % (M16, d, vr(VF + 4 * db, 4), vr(PK + 4 * blk, 4), d)


def sum_mfma(blk):
    return "%s %s, %s, %s, %s" % (M16, vr(vL[blk], 4), vr(ONES, 4), vr(PK + 4 * blk, 4), vr(vL[blk], 4))


def max_tree(dst, S, n):
    r = ["v_max3_f32 v%d, v%d, v%d, v%d" % (dst, S, S + 1, S + 2)]
    for i in range(3, n - 1, 2):
        r.append("v_max3_f32 v%d, v%d, v%d, v%d" % (dst, dst, S + i, S + i + 1))
    r.append("v_max_f32 v%d, v%d, v%d" % (dst, dst, S + n - 1))
    return r


def blk_max(b, S, dst, tmp):
    b.add(max_tree(dst, S, 8))
    for perm in ("v_permlane32_swap_b32", "v_permlane16_swap_b32"):
        b("v_mov_b32 v%d, v%d" % (tmp, dst))
        b("%s v%d, v%d" % (perm, tmp, dst))
        b("v_max_f32 v%d, v%d, v%d" % (dst, tmp, dst))


def weave(b, mfmas, gaps):
    assert len(mfmas) == len(gaps)
    for m_, g in zip(mfmas, gaps):
        b.add([x for x in [m_] + list(g) if x is not None])


AREG = {0: aO1, 1: aO3, 2: aO1, 3: aO3}
SBUF = {1: S0, 2: KF, 3: XB}
SEQ = [(j, f, nt) for j in range(3) for f in range(8) for nt in range(4)]
SEQ += [(3, f, nt) for nt in (1, 2, 3, 0) for f in range(8)]


def wbuf(m):
    return (KF if m < 8 else VF) + 4 * (m & 7)


def w_reads(m):
    if m >= len(SEQ):
        return []
    j, f, nt = SEQ[m]
    ks, y = f >> 1, f & 1
    return ["ds_read_b64_tr_b16 %s, v%d offset:%d" % (vr(wbuf(m) + 2 * u, 2), AREG[j] + nt,
                                                   ks * 8192 + u * 4096 + y * 1024) for u in range(2)]


def bfrag(j, f):
    return OB + 16 * (f & 1) + 4 * (f >> 1) if j == 0 else SBUF[j] + 4 * f


def publish(f, lo, hi, fl):
    return "buffer_store_dwordx4 %s, v%d, s[%d:%d], s%d offen offset:%d %s" % (vr(bfrag(0, f), 4), vE, SA, SA + 3,
                                                                           lo if f < 4 else hi, (f & 3) * 1024, fl)


rare = []


def compute_path(sfx, nb, out):
    B = range(nb)

    def blk(i, x):
        return x if i < nb else None

    def mk(name):
        bb = Block(name + (" (two query blocks)" if nb == 2 else " (one query block: wave 3)"))
        out.append(bb)
        return bb

    def q_reads(s_):
        W = VF if s_ == 0 else S0
        r = [blk(i, "ds_read_b128 %s, v%d offset:%d" % (vr(XB + 8 * s_ + 4 * i, 4), aXq + s_, i * 2048)) for i in range(2)]
        for db in range(8):
            for u in range(2):
                r.append("ds_read_b64_tr_b16 %s, v%d offset:%d" % (vr(W + 4 * db + 2 * u, 2), aWq + db, s_ * 8192 + u * 1024))
        return r

    def q_mfmas(s_):
        W = VF if s_ == 0 else S0
        r = []
        for db in range(8):
            for i in range(2):
                d = vr(ACC + 32 * i + 4 * db, 4)
                r.append(blk(i, "%s %s, %s, %s, %s" % (M16, d, vr(W + 4 * db, 4), vr(XB + 8 * s_ + 4 * i, 4), d)))
        return r

    q0 = mk("Q projection: first reads")
    q0("L_path%s:" % sfx)
    q0("s_barrier")
    stamp(q0, 1)
    if STAMPS == 10:
        q0("s_memtime s[92:93]")
    q0.add([x for x in q_reads(0) if x])
    lgq0, _ = q0.finish(hist=c.ins)
    ql = mk("Q projection")
    ql("L_q%s:" % sfx)
    tabq = ["s_and_b32 s%d, s%d, 7" % (sDEL, sT2), "s_lshr_b32 s%d, s%d, 3" % (sT2, sT2),
            "s_sub_u32 s%d, s%d, 3" % (sDEL, sDEL), "s_lshl_b32 s%d, s%d, 15" % (sDEL, sDEL)]
    adv = ["v_add_u32 v%d, s%d, v%d" % (r_, sDEL, r_) for r_ in range(aWq, aWq + 10)]
    QS = OPT["qs"]
    gaps = spread(q_reads(1), {0: [2, 1, 2, 1, 2, 1, 1, 1, 1, 1, 1, 1, 1, 1, 1, 0], 1: [2, 2, 1, 2, 1, 2, 1, 2, 1, 2, 1, 1, 0, 0, 0, 0],
                               2: [2, 2, 1, 2, 1, 2, 1, 2, 1, 2, 1, 1, 0, 0, 0, 0]}[QS])
    gaps[1] += tabq[:2]
    gaps[3] += tabq[2:]
    weave(ql, q_mfmas(0), gaps)
    m1 = q_mfmas(1)
    NBQ = {0: 6, 1: 2, 2: 4}[QS]
    if QS:
        tail_ = ql.ins[-4 if nb == 2 else -2:]
        del ql.ins[-len(tail_):]
        k_ = {1: 8, 2: 6}[QS]
        weave(ql, tail_, spread(adv[:k_], ([2, 2, 2, 2] if k_ == 8 else [2, 2, 1, 1]) if nb == 2 else [k_ // 2, k_ // 2]))
        weave(ql, m1[:NBQ], spread(adv[k_:], [1] * NBQ))
    else:
        weave(ql, m1[:6], spread(adv, [2, 2, 2, 2, 1, 1]))
    ql("s_waitcnt lgkmcnt(0)")
    ql("s_barrier")
    if STAMPS == 9:
        ql("s_memrealtime s[88:89]")
        ql("s_waitcnt lgkmcnt(0)")
        for i in range(1, 9):
            ql("s_cmp_eq_u32 s%d, %d" % (sCNT, 9 - i))
            ql("s_cselect_b32 s%d, s88, s%d" % (sSTAMP + 2 * (i + 3), sSTAMP + 2 * (i + 3)))
    weave(ql, m1[NBQ:], spread(q_reads(0), {6: [2, 2, 2, 2, 2, 2, 2, 2, 1, 1], 2: [2, 2, 1, 2, 1, 2, 1, 1, 1, 1, 1, 1, 1, 1],
                                            4: [2, 2, 2, 1, 2, 1, 2, 1, 2, 1, 1, 1]}[NBQ]))
    loop_end(ql, "L_q%s" % sfx)
    lgq1, _ = ql.finish(hist=q0.ins, lgq=lgq0)
    assert STAMPS or lgq1 == lgq0[-len(lgq1):], (lgq0, lgq1)
    pad_hazards(ql.ins, hist=ql.ins, check_only=True, where="q loop back edge")

    q = mk("attention set-up")
    stamp(q, 2)
    if STAMPS == 10:
        q("s_memtime s[94:95]")
    q("s_waitcnt lgkmcnt(0)")
    q.add(k_reads(0))
    q("s_waitcnt vmcnt(0)")

    def conv(ks):
        r = []
        for i in B:
            a0, f0 = ACC + 32 * i + 8 * ks, QF + 16 * i + 4 * ks
            if ks == 0:
                r += ["v_pk_mul_f32 %s, %s, s[%d:%d]" % (vr(a0 + 2 * j, 2), vr(a0 + 2 * j, 2), sCS, sCS + 1) for j in range(4)]
            else:
                r += ["v_mul_f32 v%d, s%d, v%d" % (a0 + j, sCS, a0 + j) for j in range(8)]
            r += ["v_cvt_pk_bf16_f32 v%d, v%d, v%d" % (f0 + j, a0 + 2 * j, a0 + 2 * j + 1) for j in range(4)]
        for i in B:
            f0 = QF + 16 * i + 4 * ks
            r += ["v_permlane16_swap_b32 v%d, v%d" % (f0 + j, f0 + 2 + j) for j in range(2)]
        return r

    k1 = k_reads(8192)
    init = ["v_mov_b32 v%d, 0" % (vL[0] + i) for i in range(8)] + ["v_mov_b32 v%d, 0x3f803f80" % (ONES + i) for i in range(4)]
    q.add(conv(0))
    q.add(init[:4])
    qk0 = [blk(i, qk(S0, ks, kb, i, True)) for ks in range(4) for kb in range(2) for i in range(2)]
    for ks in range(3):
        g = spread(conv(ks + 1), [7, 7, 7, 7] if nb == 2 else [4, 3, 4, 3])
        g[2].insert(0, k1[2 * ks])
        if ks:
            g[0].insert(0, k1[2 * ks - 1])
        weave(q, qk0[4 * ks:4 * ks + 4], g)
    weave(q, qk0[12:], [[k1[5]] + init[4:6], init[6:8], [k1[6]] + init[8:10], init[10:]])
    z = vr(vL[0], 4)
    weave(q, [blk(i >> 1, "%s %s, %s, %s, 0" % (M32, vr(ACC + 16 * i, 16), z, z)) for i in range(4)], [[k1[7]], [], [], []])
    for ks in range(4):
        q("v_add_u32 v%d, 16384, v%d" % (aK + ks, aK + ks))
    if nb == 1:
        for i in range(16):
            q("v_mov_b32 v%d, 0" % (OB + 16 + i))
    chains = []
    for i in B:
        tb = Block()
        blk_max(tb, S0 + 8 * i, *((1, 2) if i == 0 else (vTM, NM[1] + 1)))
        tb("v_sub_f32 v%d, 0, v%d" % (NM[i], 1 if i == 0 else vTM))
        if i == 1 and not OPT["single"]:
            tb("v_min_f32 v%d, s%d, v%d" % (NM[i], sT3, NM[i]))
        for j in range(1, 4):
            tb("v_mov_b32 v%d, v%d" % (NM[i] + j, NM[i]))
        for j in range(8):
            tb("v_add_f32 v%d, v%d, v%d" % (S0 + 8 * i + j, S0 + 8 * i + j, NM[i]))
        chains.append(tb.ins)
    if not OPT["single"]:
        q("s_cmp_eq_u32 s%d, 3" % sWAVE)
        q("s_mov_b32 s%d, %s" % (sT0, f32(3e38)))
        q("s_cselect_b32 s%d, %s, s%d" % (sT3, f32(-1e30), sT0))
    for i in range(max(map(len, chains))):
        q.add([ch[i] for ch in chains if i < len(ch)])
    KSEQ = [1, 2, 0, 1, 2, 0, 1, 2, 0, 1, 0, 1, 0, 1, 0, 0]
    VSEQ = [1, 2, 0, 1, 2, 0, 1, 2, 0, 1, 2, 1, 2, 1, 2, 1]
    for tab, seq in ((sTABK, KSEQ), (sTABV, VSEQ)):
        q("s_mov_b32 s%d, 0x%x" % (tab, sum((seq[i + 1] - seq[i] + 2) << (2 * i) for i in range(15))))
    q("s_mov_b32 s%d, 15" % sCNT)
    stamp(q, 3)
    if STAMPS == 6:
        q("s_memtime s[92:93]")
    q.finish(hist=ql.ins)

    def rescale(tag, SN):
        r = Block("the running max rises by more than the threshold: move to the true max (%s)" % tag)
        r("L_resc%s:" % tag)
        r("s_nop 15")
        for i in B:
            blk_max(r, SN + 8 * i, 1, 2)
            r("v_max_f32 v1, 0, v1")
            r("v_sub_f32 v2, 0, v1")
            r("v_exp_f32 v2, v2")
            for j in range(4):
                r("v_sub_f32 v%d, v%d, v1" % (NM[i] + j, NM[i] + j))
            for j in range(8):
                r("v_sub_f32 v%d, v%d, v1" % (SN + 8 * i + j, SN + 8 * i + j))
            for j in range(4):
                r("v_mul_f32 v%d, v%d, v2" % (vL[i] + j, vL[i] + j))
            for j in range(32):
                r("v_mul_f32 v%d, v%d, v2" % (ACC + 32 * i + j, ACC + 32 * i + j))
        r("s_nop 1")
        r("s_branch L_back%s" % tag)
        r.finish()
        rare.append(r)

    def epoch(b, par, kread, adv, tag, head=()):
        S, SN = (S0, S1) if par == 0 else (S1, S0)
        off = par * 8192
        vrd = [v_read(db, u, off) for db in range(8) for u in range(2)]
        kr = k_reads(off) if kread else [None] * 8
        b("s_waitcnt lgkmcnt(0)")
        b("s_barrier")
        b.add(head)
        GA = "e0|t0 t1|e1|t2 c0|e2|t3 t4|e3|t5 c1|e4|t6 t7|e5|t8 c2|e6|t9 e7|t10 c3|t11 e8"
        GB = "t12 t13|t14 e9|t15 e10|c4 e11|e12|c5 e13|e14|c6 e15|k0 c7 m0 m1|k1 k2|k3 m2|k4 m3|k5 m4|k6 m5|k7 m6|m7 a|x a|a a"
        mx = max_tree(vTM, SN, 8 * nb) + [None] * 4
        adds = []
        if adv:
            adds = ["v_add_u32 v%d, s%d, v%d" % (aV + i, sDELV, aV + i) for i in range(8)] + \
                   ["v_add_u32 v%d, s%d, v%d" % (aK + i, sDEL, aK + i) for i in range(4)]

        def ins(tok):
            k, n = tok[0], int(tok[1:]) if len(tok) > 1 else 0
            if k == "a":
                return adds.pop(0) if adds else None
            if k == "x":
                return "v_cmp_lt_f32 vcc, s%d, v%d" % (sTHR, vTM)
            return {"e": lambda: blk(n >> 3, ex(S, n)), "t": lambda: vrd[n], "c": lambda: blk(n >> 2, cvt(S, n)),
                    "k": lambda: kr[n], "m": lambda: mx[n]}[k]()
        ga = [[ins(x) for x in g.split()] for g in GA.split("|")]
        if adv:
            for tab, dl, gi in ((sTABV, sDELV, 1), (sTABK, sDEL, 5)):
                ga[gi] += ["s_and_b32 s%d, s%d, 3" % (dl, tab), "s_lshr_b32 s%d, s%d, 2" % (tab, tab)]
                ga[gi + 2] += ["s_sub_u32 s%d, s%d, 2" % (dl, dl), "s_lshl_b32 s%d, s%d, 14" % (dl, dl)]
        weave(b, [blk(i, qk(SN, ks, kb, i, False)) for ks in range(4) for kb in range(2) for i in range(2)], ga)
        order = [pv(db, 0) for db in range(8)] + [sum_mfma(0)] + [blk(1, pv(db, 1)) for db in range(8)] + [blk(1, sum_mfma(1))]
        gb = [[ins(x) for x in g.split()] for g in GB.split("|")]
        gb[-1] += adds[:]
        b("s_waitcnt lgkmcnt(4)")
        weave(b, order[:4], gb[:4])
        b("s_waitcnt lgkmcnt(4)")
        weave(b, order[4:], gb[4:])
        b("s_cbranch_vccnz L_resc%s" % tag)
        b("L_back%s:" % tag)
        rescale(tag, SN)

    lp = mk("attention loop: tiles 0..29")
    lp("L_att%s:" % sfx)
    epoch(lp, 0, True, False, "a" + sfx)
    epoch(lp, 1, True, True, "b" + sfx,
          head=["s_cmp_lg_u32 s%d, 1" % sCNT, "s_cbranch_scc1 L_noinfo%s" % sfx,
                "buffer_load_dword v%d, v%d, s[%d:%d], 0 offen %s" % (vDUM, vM1, SA, SA + 3, OPT["tfl"]) if OPT["touch"] else "s_nop 0",
                "buffer_load_dword v%d, v%d, s[%d:%d], 0 offen sc1" % (vINF, vINFO, SA, SA + 3), "L_noinfo%s:" % sfx])
    loop_end(lp, "L_att%s" % sfx)
    lp.finish(hist=q.ins)
    pad_hazards(lp.ins, hist=lp.ins, check_only=True, where="loop back edge")

    t = mk("tiles 30, 31; o = O / l leaves for the other heads of the group")
    if STAMPS == 6:
        t("s_memtime s[94:95]")
        t("s_waitcnt lgkmcnt(0)")
    stamp(t, 4)
    epoch(t, 0, False, False, "c" + sfx)
    S = S1
    for nt in range(4):
        t("v_add_u32 v%d, %d, v%d" % (aO1 + nt, STG, aO2 + nt))
    for m in range(8):
        t.add(w_reads(m))
    for i in range(8 * nb):
        t(ex(S, i))
    for j in range(4 * nb):
        t(cvt(S, j))
    for i in B:
        t(sum_mfma(i))
    t("v_readlane_b32 s%d, v%d, 0" % (sT0, vINF))
    t("v_mov_b32 v%d, 1" % NM[0])
    t("s_add_u32 s%d, s%d, 4096" % (sT2, sE1))
    t("v_cmp_eq_u32 vcc, s%d, v%d" % (sT0, vINF))
    t("s_nop 0")
    t("s_and_b32 s%d, vcc_lo, 15" % sT0)
    t("s_cmp_eq_u32 s%d, %d" % (sT0, 15 if OPT["fast"] else 16))
    t("s_cselect_b32 s%d, s%d, 0x%x" % (sE1F, sE1, OOB))
    t("s_add_u32 s%d, s%d, 4096" % (sE1F4, sE1F))
    if not OPT["single"]:
        for i in B:
            t("v_max_f32 v%d, %s, v%d" % (vL[i], f32(1e-30), vL[i]))
    for i in B:
        t("v_rcp_f32 v%d, v%d" % (vL[i], vL[i]))
    for i in B:
        for j in range(4):
            t("v_pk_mul_f32 %s, %s, %s op_sel_hi:[1,0]" % (vr(S + 8 * i + 2 * j, 2), vr(S + 8 * i + 2 * j, 2), vr(vL[i], 2)))
    for i in B:
        for j in range(16):
            a0 = ACC + 32 * i + 2 * j
            t("v_pk_mul_f32 %s, %s, %s op_sel_hi:[1,0]" % (vr(a0, 2), vr(a0, 2), vr(vL[i], 2)))
    for j in range(4 * nb):
        t(cvt(S, j))
    t("s_waitcnt lgkmcnt(0)")
    t("s_barrier")
    stamp(t, 5)
    cst(t, 2)
    vrd = [v_read(db, u, 8192) for db in range(8) for u in range(2)]

    def pack(ks):
        return [blk(i, "v_cvt_pk_bf16_f32 v%d, v%d, v%d" % (OB + 16 * i + 4 * ks + j, ACC + 32 * i + 8 * ks + 2 * j, ACC + 32 * i + 8 * ks + 2 * j + 1))
                for i in range(2) for j in range(4)]

    def swaps(ks):
        return ["v_permlane16_swap_b32 v%d, v%d" % (OB + 4 * ks + j, OB + 16 + 4 * ks + j) for j in range(4)]

    t.add(vrd[0:8])
    p0, p1, p2 = pack(0), pack(1), pack(2)
    g = [vrd[8:10], vrd[10:12], vrd[12:14], vrd[14:16], [], [], p0[0:2], p0[2:4], p0[4:6], p0[6:8], p1[0:2] + swaps(0)[0:1],
         p1[2:4] + swaps(0)[1:2], p1[4:6] + swaps(0)[2:3], p1[6:8] + swaps(0)[3:4], p2[0:3], p2[3:8]]
    weave(t, [blk(i, pv(db, i)) for db in range(8) for i in range(2)], g)
    t.add([publish(f, sE1F, sE1F4, OPT["st1"]) for f in (0, 1)])
    t.add(swaps(1))
    t.add([publish(f, sE1F, sE1F4, OPT["st1"]) for f in (2, 3)])
    t.add(swaps(2))
    t.add([x for x in pack(3) if x])
    t.add([publish(f, sE1F, sE1F4, OPT["st1"]) for f in (4, 5)])
    t.add(swaps(3))
    t.add([publish(f, sE1F, sE1F4, OPT["st1"]) for f in (6, 7)])
    if nb == 1:
        t("s_branch L_join")
    lgq, vmq = t.finish(hist=lp.ins, vmq=[{vINF}])
    assert not lgq or STAMPS
    return t, vmq


side = []
tA, vmqA = compute_path("d", 2, blocks)
if OPT["single"]:
    tB, vmqB = compute_path("s", 1, side)
    assert vmqA == vmqB

t = new("output projection")
t("L_join:")
t("s_cmp_lg_u32 s%d, 0x%x" % (sE1F, OOB))
t("s_cbranch_scc1 L_pubj")
t.add([uncounted(publish(f, sE1, sT2, "sc1")) for f in range(8)])
t("L_pubj:")


def o_mfma(b, m, extra=()):
    j, f, nt = SEQ[m]
    b("%s %s, %s, %s, %s" % (M32, vr(ACC + 16 * nt, 16), vr(wbuf(m), 4), vr(bfrag(j, f), 4),
                             "0" if (j == 0 and f == 0) else vr(ACC + 16 * nt, 16)))
    b.add(w_reads(m + 8))
    b.add(extra)


flag = "buffer_store_dword v%d, v%d, s[%d:%d], 0 offen" % (NM[0], vM1, SA, SA + 3)
pollld = "buffer_load_dword v%d, v%d, s[%d:%d], 0 offen sc1" % (vTM, vP1, SA, SA + 3)


def sib_load(p, f):
    return "buffer_load_dwordx4 %s, v%d, s[%d:%d], s%d offen offset:%d %s" % (vr(SBUF[p] + 4 * f, 4), vE, SA, SA + 3,
                                                                          sP if f < 4 else sP4, (f & 3) * 1024, OPT["ld1"])


def try_head(b, p):
    b("v_cmp_eq_u32 vcc, 1, v%d" % vTM)
    b("s_mov_b32 s%d, 0x%x" % (sP, OOB))
    b("s_xor_b32 s%d, s%d, %d" % (sT0, sE1, p << 15))
    b("s_bitcmp1_b32 vcc_lo, %d" % p)
    b("s_cselect_b32 s%d, s%d, s%d" % (sP, sT0, sP))
    b("s_add_u32 s%d, s%d, 4096" % (sP4, sP))


NEARLY = 4


def need_head(b, p):
    b("s_cmp_lg_u32 s%d, 0x%x" % (sP, OOB))
    b("s_cbranch_scc1 L_dec%dd" % p)
    b("s_mov_b32 s%d, 0x%x" % (sCNT, SPIN))
    b("L_dec%d:" % p)
    b(pollld)
    b("s_waitcnt vmcnt(0)")
    try_head(b, p)
    b("s_sub_u32 s%d, s%d, 1" % (sCNT, sCNT))
    b("s_cbranch_scc1 L_dec%dl" % p)
    b("s_cmp_eq_u32 s%d, 0x%x" % (sP, OOB))
    b("s_cbranch_scc1 L_dec%d" % p)
    b("L_dec%dl:" % p)
    b.add([sib_load(p, f) for f in range(8 if p == 3 else NEARLY)])
    b("L_dec%dd:" % p)


def send(j):
    a0 = ACC + 8 * j
    return (["s_xor_b32 s%d, s%d, %d" % (sT0, sG, j), "s_lshl_b32 s%d, s%d, 15" % (sT0, sT0),
             "s_add_u32 s%d, s%d, s%d" % (sT0, sT0, sE2P), "s_add_u32 s%d, s%d, %d" % (sT0, sT0, j * 4096)],
            ["v_cvt_pk_bf16_f32 v%d, v%d, v%d" % (a0 + i, a0 + 2 * i, a0 + 2 * i + 1) for i in range(4)],
            ["buffer_store_dwordx4 %s, v%d, s[%d:%d], s%d offen sc1" % (vr(a0, 4), vE, SA, SA + 3, sT0)])


def fetch(j):
    return ["s_add_u32 s%d, s%d, %d" % (sT3, sE2C, j * 4096),
            "buffer_load_dwordx4 %s, v%d, s[%d:%d], s%d offen sc1" % (vr(PB + 4 * (j - 1), 4), vE, SA, SA + 3, sT3)]


extra = {m: [] for m in range(128)}
vM2, vTM2 = NM[1], NM[1] + 1
poll2 = "buffer_load_dword v%%d, v%d, s[%d:%d], 0 offen sc1" % (vP2, SA, SA + 3)
extra[1] += ["s_lshl_b32 s%d, s%d, 7" % (sT0, sWAVE), "s_add_u32 s%d, s%d, 1024" % (sT0, sT0),
             "v_lshl_add_u32 v%d, v0, 2, s%d" % (vP2, sT0)]
extra[2] += ["v_lshlrev_b32 v1, 2, v0", "v_xor_b32 v1, s%d, v1" % sWGL, "v_lshl_add_u32 v%d, v1, 11, v%d" % (vM2, vP2)]
extra[3] += ["s_lshl_b32 s%d, s%d, 11" % (sT0, sWGL), "v_add_u32 v%d, s%d, v%d" % (vP2, sT0, vP2), "v_subrev_u32 v1, 1, v0"]
extra[4] += ["v_cmp_gt_u32 vcc, 7, v1", "v_bfrev_b32 v1, 1", "s_nop 0"]
extra[5] += ["v_cndmask_b32 v%d, v1, v%d, vcc" % (vP2, vP2), "v_cndmask_b32 v%d, v1, v%d, vcc" % (vM2, vM2)]
extra[6] += ["s_mov_b32 s%d, 0x3f80" % sLO, "s_mov_b32 s%d, 0x3f800000" % sHI]
late = Block()
late("s_lshl_b32 s%d, s%d, %d" % (sT0, sHN, WSH))
late("s_and_b32 s%d, s%d, %d" % (sT1, sG, (1 << (WSH - 5)) - 1))
late("s_lshl_b32 s%d, s%d, 5" % (sT1, sT1))
late("s_add_u32 s%d, s%d, s%d" % (sOFF, sT0, sT1))
if WSH < 8:
    late("s_lshr_b32 s%d, s%d, %d" % (sT1, sG, WSH - 5))
    late("s_lshl_b32 s%d, s%d, %d" % (sT1, sT1, WSH + 2))
    late("s_add_u32 s%d, s%d, s%d" % (sOFF, sOFF, sT1))
late("s_mul_i32 s%d, s%d, 114688" % (sT0, sB))
srd(late, SB, sOUT, sT0, "114688")
late("s_lshl_b32 s%d, s%d, 2" % (sT0, sB))
late("s_add_u32 s%d, s%d, s%d" % (sT0, sT0, sHN))
late("s_lshl_b32 s%d, s%d, 18" % (sT0, sT0))
late("s_lshl_b32 s%d, s%d, 10" % (sT1, sWAVE))
late("s_add_u32 s%d, s%d, s%d" % (sT0, sT0, sT1))
late("s_add_u32 s%d, s%d, %d" % (sE2P, sT0, E2_OFF))
late("s_lshl_b32 s%d, s%d, 15" % (sT1, sG))
late("s_add_u32 s%d, s%d, s%d" % (sE2C, sE2P, sT1))
li = [i.text for i in late.ins]
k_ = li.index([x for x in li if x.startswith("s_mul_i32")][0])
extra[7] += li[:k_]
extra[8] += li[k_:k_ + 5]
extra[9] += li[k_ + 5:k_ + 9]
extra[10] += li[k_ + 9:]
for p, base in ((1, STG + 32768), (2, XREG), (3, 0)):
    for nt in range(4):
        extra[32 * p - 14 + nt].append("v_add_u32 v%d, %d, v%d" % (AREG[p] + nt, base, aO2 + nt) if base else
                                       "v_mov_b32 v%d, v%d" % (AREG[p] + nt, aO2 + nt))
for i, nt in enumerate((1, 2, 3)):
    base = 104 + 8 * i
    for k_, j in enumerate((2 * nt, 2 * nt + 1)):
        for d_, part in enumerate(send(j)):
            extra[base + 2 + d_ + 3 * k_] += part
for p in (1, 2):
    for f in range(8):
        extra[32 * p - 16 + 2 * f].append(uncounted(sib_load(p, f)) if f < NEARLY else sib_load(p, f))
for f in range(8):
    extra[72 + 2 * f].append(uncounted(sib_load(3, f)))
extra[38].append(pollld)
extra[62].append(pollld)
t(pollld)
stamp(t, 6)
cst(t, 3)
for m in range(128):
    if m == OPT["fat"]:
        t("s_barrier")
    if m == OPT["flagat"]:
        cst(t, 4)
        t("s_waitcnt vmcnt(0)")
        cst(t, 5)
        t("s_cmp_lg_u32 s%d, 0x%x" % (sE1F, OOB))
        t("s_cbranch_scc1 L_flgf")
        t(flag + " sc1")
        t("s_branch L_flgj")
        t("L_flgf:")
        t.add([uncounted(flag + OPT["ffl"])])
        t("L_flgj:")
        stamp(t, 8)
    if OPT["fine"] and m in (33, 41, 48):
        t("s_memtime s[%d:%d]" % ({33: 70, 41: 72, 48: 74}[m], {33: 71, 41: 73, 48: 75}[m]))
    if m in (16, 48, 72):
        t("s_waitcnt vmcnt(%d)" % (1 if m == 16 else 0))
        try_head(t, {16: 1, 48: 2, 72: 3}[m])
    if m in (24, 56, 88):
        need_head(t, m // 32 + 1)
        cst(t, 6 + m // 32)
        if m == 24:
            stamp(t, 7)
        if m == 88:
            stamp(t, 9)
    o_mfma(t, m, extra[m])
stamp(t, 10)
cst(t, 9)
for part in send(1):
    t.add(part)
t(poll2 % vTM)
t("s_waitcnt vmcnt(1)")
t("buffer_store_dword v%d, v%d, s[%d:%d], 0 offen sc1" % (NM[0], vM2, SA, SA + 3))
stamp(t, 11)
cst(t, 10)
t(poll2 % vTM2)
t("s_mov_b32 s%d, 0x%x" % (sCNT, SPIN))
t("s_waitcnt vmcnt(2)")
t("L_poll2:")
t("v_cmp_eq_u32 vcc, 1, v%d" % vTM)
t("s_cmp_eq_u32 vcc_lo, 0xfe")
t("s_cbranch_scc1 L_poll2e")
t.add([uncounted(poll2 % vTM)])
t("s_waitcnt vmcnt(1)")
t.add([uncounted("v_cmp_eq_u32 vcc, 1, v%d" % vTM2)])
t("s_nop 0")
t("s_cmp_eq_u32 vcc_lo, 0xfe")
t("s_cbranch_scc1 L_poll2e")
t.add([uncounted(poll2 % vTM2)])
t("s_sub_u32 s%d, s%d, 1" % (sCNT, sCNT))
t("s_waitcnt vmcnt(1)")
t("s_cbranch_scc0 L_poll2")
t("L_poll2e:")
stamp(t, 12)
cst(t, 11)
for j in range(1, 8):
    t.add(fetch(j))
for j in range(1, 8):
    for i in range(4):
        p = PB + 4 * (j - 1) + i
        t("v_dot2_f32_bf16 v%d, v%d, s%d, v%d" % (ACC + 2 * i, p, sLO, ACC + 2 * i))
        t("v_dot2_f32_bf16 v%d, v%d, s%d, v%d" % (ACC + 2 * i + 1, p, sHI, ACC + 2 * i + 1))
t("s_nop 2")
for j in range(4):
    t("v_cvt_pk_bf16_f32 v%d, v%d, v%d" % (ACC + 8 + j, ACC + 2 * j, ACC + 2 * j + 1))
t("buffer_store_dwordx4 %s, v%d, s[%d:%d], s%d offen" % (vr(ACC + 8, 4), vOUT, SB, SB + 3, sOFF))
if STAMPS:
    cst(t, 12)
    t("s_waitcnt vmcnt(0)")
    cst(t, 13)
    stamp(t, 13)
    if STAMPS not in (6, 10):
        t("s_memtime s[94:95]")
    t("s_waitcnt lgkmcnt(0)")
    t("s_sub_u32 s%d, s94, s92" % (sSTAMP + 28))
    t("s_getreg_b32 s%d, hwreg(HW_REG_XCC_ID, 0, 4)" % (sSTAMP + 30))
    t("s_getreg_b32 s%d, hwreg(HW_REG_HW_ID)" % sT0)
    t("s_lshl_b32 s%d, s%d, 4" % (sT0, sT0))
    t("s_or_b32 s%d, s%d, s%d" % (sSTAMP + 30, sSTAMP + 30, sT0))
    for i in range(16):
        t("v_mov_b32 v%d, s%d" % (ACC + 16 + i, sSTAMP + 2 * i))
    t("s_lshl_b32 s%d, s2, 2" % sT0)
    t("s_add_u32 s%d, s%d, s%d" % (sT0, sT0, sWAVE))
    t("s_lshl_b32 s%d, s%d, 6" % (sT0, sT0))
    t("s_add_u32 s%d, s%d, %d" % (sT0, sT0, ST_OFF))
    t("v_mov_b32 v1, 0")
    t("s_mov_b64 exec, 1")
    for i in range(4):
        t("buffer_store_dwordx4 %s, v1, s[%d:%d], s%d offen offset:%d" % (vr(ACC + 16 + 4 * i, 4), SA, SA + 3, sT0, 16 * i))
t("L_end:")
t("s_endpgm")
t.finish(hist=tA.ins, vmq=vmqA)
if OPT["single"]:
    pad_hazards(t.ins[:60], hist=tB.ins, check_only=True, where="join from the one-block path")
blocks += side
blocks.append(Block("seldom taken"))
blocks[-1]("L_codeend:")
blocks += rare

hdr = open("standalone__mha_block_cached__near_ridge.s.ref").read().split("; Override launch")[0]
out = [hdr.rstrip()]
out.append("""; Fused Q projection + attention + output projection, one workgroup (8 waves) per (batch, head), one per CU.
;   over the eight groups (partial sums exchanged through d_ws).""")
out.append("; @launch grid=(256,1,1) block=(512,1,1) lds=163840")
out.append('.amdgcn_target "amdgcn-amd-amdhsa--gfx950"')
out.append(".text")
out.append(".globl " + KNAME)
out.append(".p2align 8")
out.append(".type %s,@function" % KNAME)
out.append(KNAME + ":")
for b in blocks:
    out.append("; ---- %s ----" % b.name)
    out.append(b.text())
out.append(".p2align 8")
out.append(".fill 64, 4, 0xbf800000")
out.append('.section .rodata,"a"')
out.append(".p2align 6")
out.append(".amdhsa_kernel " + KNAME)
out.append("""  .amdhsa_next_free_vgpr 256
  .amdhsa_next_free_sgpr 102
  .amdhsa_accum_offset 256
  .amdhsa_group_segment_fixed_size 0
  .amdhsa_kernarg_size 64
  .amdhsa_user_sgpr_count 2
  .amdhsa_user_sgpr_kernarg_segment_ptr 1
  .amdhsa_system_sgpr_workgroup_id_x 1
.end_amdhsa_kernel""")
print("\n".join(out))
```

```python
import sys, struct, math
from asmgen import *

OPT = dict(stamps=0, nt_kv="nt", nt_q="", nt_wo="", wopf=0, spf=0, spf0=0, al=0, al2=0, alq=-1, alo=-1, cprio=0, e1pf=-1, tlb=0, pre_k=1, pre_v=1, qs=0, touch=0, tfl="", ffl="", fine=0, st1="", ld1="sc1", thr=8.0, force_rescale=0, codepf=1, fast=1,
           early="0.1.2.3", k_at="5.6.8.99", v_at="6.7.8.99", thr0=8, rotmask=3, fat=6, flagat=12, single=1,
           noload=0, map=0, rot=0, wseg=256)
for a in sys.argv[1:]:
    k, v = a.split("=")
    OPT[k] = type(OPT[k])(v) if not isinstance(OPT[k], str) else v.replace("_", " ").strip()
STAMPS = OPT["stamps"]
KNAME = "standalone__mha_block_cached__near_ridge_kernel"


def f32(x):
    return "0x%08x" % struct.unpack("<I", struct.pack("<f", x))[0]


CSC = math.log2(math.e) / math.sqrt(128.0)
M16 = "v_mfma_f32_16x16x32_bf16"
M32 = "v_mfma_f32_32x32x16_bf16"
OOB = 0x40000000
SPIN = 0x100000

KRING, VRING, STG, XREG = 0, 49152, 98304, 32768
E1_OFF, E2_OFF, ST_OFF = 0x100000, 0x900000, 0x4000000
sX, sK, sV, sWQ, sWO, sOUT, sDBG, sWS = 4, 6, 8, 10, 12, 14, 16, 18
sWAVE, sG, sB, sHN, sH, sWGL = 20, 21, 22, 23, 24, 25
sBEG, sEND = 26, 27
SA, SB, SC = 28, 32, 36
sOFF, sLDS, sCNT, sT0, sT1, sT2 = 40, 41, 42, 43, 44, 45
sCS, sDEL, sE1, sE2P, sE2C, sTHR = 46, 48, 49, 50, 51, 52
sT3, sTABK, sTABV, sDELV = 53, 54, 55, 56
sP, sP4, sE1F, sE1F4, sLO, sHI = 57, 58, 59, 60, 61, 62
sNXT, sA, sVM, sLIM = 54, 55, 56, 57
sSTAMP = 64
vP2, vP1, vE, vLO, vTM, vOUT = 2, 3, 4, 5, 6, 7
aK, aW, aV = 8, 12, 16
NM = (24, 28)
ACC, QF, S0, S1, KF, VF, XB = 32, 96, 128, 144, 160, 192, 224
PK = XB
vL = (232, 236)
vM1, vINFO, vINF, ONES, vDUM = 240, 242, 243, 244, 251
aWq, aXq = 96, 104
aO1, aO2, aO3 = aK, aW, aV
OB = PB = QF


def cst(b, idx):
    if STAMPS == 7 and OPT["fine"] and 3 <= idx <= 5:
        return
    if STAMPS == 7:
        b("s_memtime s[%d:%d]" % (sSTAMP + 2 * idx, sSTAMP + 2 * idx + 1))


def stamp(b, idx):
    if STAMPS == 7:
        if idx == 5:
            b("s_memrealtime s[%d:%d]" % (sSTAMP + 2, sSTAMP + 3))
    elif STAMPS == 9:
        if idx in (1, 2, 3, 13):
            b("s_memrealtime s[%d:%d]" % (sSTAMP + 2 * idx, sSTAMP + 2 * idx + 1))
            b("s_waitcnt lgkmcnt(0)")
    elif STAMPS == 8:
        if idx in (3, 5, 10, 13):
            b("s_memrealtime s[%d:%d]" % (sSTAMP + 2 * idx, sSTAMP + 2 * idx + 1))
    elif STAMPS:
        b("s_memrealtime s[%d:%d]" % (sSTAMP + 2 * idx, sSTAMP + 2 * idx + 1))
        b("s_waitcnt lgkmcnt(0)")


def srd(b, dst, ptr, off_sreg, size):
    if off_sreg is None:
        b("s_mov_b32 s%d, s%d" % (dst, ptr))
        b("s_mov_b32 s%d, s%d" % (dst + 1, ptr + 1))
    else:
        b("s_add_u32 s%d, s%d, s%d" % (dst, ptr, off_sreg))
        b("s_addc_u32 s%d, s%d, 0" % (dst + 1, ptr + 1))
    b("s_mov_b32 s%d, %s" % (dst + 2, size))
    b("s_mov_b32 s%d, 0x20000" % (dst + 3))


def dma_group(b, S, voffs, soff, flags, n=4):
    for p in range(n):
        o = " offset:%d" % (p * 1024) if p else ""
        b("buffer_load_dwordx4 v%d, s[%d:%d], s%d offen%s %s lds" % (voffs[p], S, S + 3, soff, o, flags))


def loop_begin(b, label, n):
    b("s_mov_b32 s%d, %d" % (sCNT, n))
    b(label + ":")


def loop_end(b, label):
    b("s_sub_u32 s%d, s%d, 1" % (sCNT, sCNT))
    b("s_cmp_lg_u32 s%d, 0" % sCNT)
    b("s_cbranch_scc1 " + label)


def spread(items, counts):
    out, k = [], 0
    for n in counts:
        out.append(items[k:k + n])
        k += n
    assert k == len(items)
    return out


def uncounted(x):
    i_ = parse(x)
    i_.kind = "comment"
    i_.n = 0
    return i_


blocks = []


def new(name):
    b = Block(name)
    blocks.append(b)
    return b


e = new("entry: workgroup -> (batch b, head group g, head hn in group); waves 0-3 compute, 4-7 load")
e("L_start:")
e("s_cmp_ge_u32 s2, 256")
e("s_cbranch_scc1 L_end")
e("s_load_dwordx16 s[4:19], s[0:1], 0")
if STAMPS:
    e("s_memrealtime s[%d:%d]" % (sSTAMP, sSTAMP + 1))
    e("s_memtime s[92:93]")
e("v_lshrrev_b32 v1, 6, v0")
e("v_and_b32 v0, 63, v0")
e("v_readfirstlane_b32 s%d, v1" % sWAVE)
e("s_and_b32 s%d, s2, 7" % sG)
if OPT["map"] == 0:
    e("s_lshr_b32 s%d, s2, 5" % sB)
    e("s_lshr_b32 s%d, s2, 3" % sHN)
    e("s_and_b32 s%d, s%d, 3" % (sHN, sHN))
else:
    e("s_lshr_b32 s%d, s2, 6" % sHN)
    e("s_lshr_b32 s%d, s2, 3" % sB)
    e("s_and_b32 s%d, s%d, 7" % (sB, sB))
e("s_lshl_b32 s%d, s%d, 2" % (sH, sG))
e("s_add_u32 s%d, s%d, s%d" % (sH, sH, sHN))
e("s_lshl_b32 s%d, s%d, 5" % (sWGL, sB))
e("s_add_u32 s%d, s%d, s%d" % (sWGL, sWGL, sH))
e("s_cmp_lt_u32 s%d, 4" % sWAVE)
e("s_cbranch_scc1 L_compute")
e("v_lshrrev_b32 v1, 4, v0")
e("v_and_b32 v3, 15, v0")
e("s_cmp_lt_u32 s%d, 6" % sWAVE)
e("s_cbranch_scc1 L_ldkv")
e.finish()

WOV = [14, 15, 16, 17]
WSH = {256: 8, 128: 7, 64: 6}[OPT["wseg"]]


def wo_setup(b):
    b("v_lshlrev_b32 v2, 2, v1")
    b("v_xor_b32 v2, v2, v3")
    if WSH < 8:
        b("v_lshrrev_b32 v4, %d, v2" % (WSH - 4))
        b("v_and_b32 v2, %d, v2" % ((1 << (WSH - 4)) - 1))
        b("v_lshl_add_u32 v2, v4, %d, v2" % (WSH - 2))
    b("v_lshlrev_b32 v2, 4, v2")
    b("v_lshl_add_u32 v14, v1, 10, v2")
    b("v_add_u32 v15, 3072, v14")
    b("v_add_u32 v16, 6144, v14")
    b("v_add_u32 v17, 9216, v14")
    b("s_lshl_b32 s%d, s%d, 19" % (sT0, sG))
    b("s_lshl_b32 s%d, s%d, %d" % (sT1, sHN, WSH))
    b("s_add_u32 s%d, s%d, s%d" % (sT0, sT0, sT1))
    b("s_sub_u32 s%d, 0x400000, s%d" % (sT1, sT0))
    srd(b, SB, sWO, sT0, "s%d" % sT1)


def kv_tile(b, voffs, skip=False):
    if skip:
        return
    b("s_mov_b32 m0, s%d" % sLDS)
    b("s_add_u32 s%d, s%d, 4096" % (sT0, sLDS))
    dma_group(b, SA, voffs, sOFF, OPT["nt_kv"])
    b("s_mov_b32 m0, s%d" % sT0)
    b("s_add_u32 s%d, s%d, 4096" % (sOFF, sOFF))
    dma_group(b, SA, voffs, sOFF, OPT["nt_kv"])
    b("s_add_u32 s%d, s%d, 4096" % (sOFF, sOFF))
    if OPT["rot"]:
        b("s_and_b32 s%d, s%d, 0x3ffff" % (sOFF, sOFF))
    b("s_add_u32 s%d, s%d, 8192" % (sLDS, sLDS))
    b("s_cmp_eq_u32 s%d, s%d" % (sLDS, sEND))
    b("s_cselect_b32 s%d, s%d, s%d" % (sLDS, sBEG, sLDS))


def first_tile(b):
    if not OPT["rot"]:
        b("s_mov_b32 s%d, 0" % sOFF)
        return
    b("s_mul_i32 s%d, s%d, %d" % (sOFF, sWGL, OPT["rot"]))
    b("s_and_b32 s%d, s%d, 31" % (sOFF, sOFF))
    b("s_lshl_b32 s%d, s%d, 13" % (sOFF, sOFF))


def wo_tile(b):
    b("s_mov_b32 m0, s%d" % sLDS)
    b("s_add_u32 s%d, s%d, 4096" % (sT0, sLDS))
    dma_group(b, SB, WOV, sOFF, OPT["nt_wo"])
    b("s_mov_b32 m0, s%d" % sT0)
    b("s_add_u32 s%d, s%d, 16384" % (sOFF, sOFF))
    dma_group(b, SB, WOV, sOFF, OPT["nt_wo"])
    b("s_add_u32 s%d, s%d, 16384" % (sOFF, sOFF))


def wo3_tile(b):
    b("s_add_u32 s%d, s%d, 2" % (sT1, sNXT))
    b("s_and_b32 s%d, s%d, 3" % (sT1, sT1))
    b("s_lshl_b32 s%d, s%d, 13" % (sLDS, sT1))
    b("s_xor_b32 s%d, s%d, 3" % (sOFF, sHN))
    b("s_lshl_b32 s%d, s%d, 2" % (sOFF, sOFF))
    b("s_add_u32 s%d, s%d, s%d" % (sOFF, sOFF, sT1))
    b("s_lshl_b32 s%d, s%d, 15" % (sOFF, sOFF))
    wo_tile(b)


def tiles(b, label, voffs, n):
    if n > 1:
        b("s_mov_b32 s%d, %d" % (sT3, n))
        b(label + ":")
        kv_tile(b, voffs)
        b("s_sub_u32 s%d, s%d, 1" % (sT3, sT3))
        b("s_cmp_lg_u32 s%d, 0" % sT3)
        b("s_cbranch_scc1 " + label)
    elif n:
        kv_tile(b, voffs)


def q_phase_kv(b, tag, voffs, txt, hooks):
    early = [int(x) for x in OPT["early"].split(".")]
    at = [int(x) for x in txt.split(".")]
    assert max(early) <= at[0] and at == sorted(at) and at[2] >= 6
    b("s_add_u32 s%d, s%d, s%d" % (sT1, sB, sHN))
    b("s_and_b32 s%d, s%d, 3" % (sT1, sT1))
    b("s_lshl_b32 s%d, s%d, 2" % (sT1, sT1))
    b("s_lshr_b32 s%d, %d, s%d" % (sT1, sum(x << (4 * i) for i, x in enumerate(early)), sT1))
    b("s_and_b32 s%d, s%d, 15" % (sCNT, sT1))
    SPF = OPT["spf"]
    npre = OPT["pre_" + tag]
    tiles(b, "L_%spre" % tag, voffs, npre)

    def touch():
        if SPF:
            for i in range(SPF):
                b("s_load_dword s63, s[60:61], 0x%x" % (128 * i))
            b("s_add_u32 s60, s60, %d" % (128 * SPF))
            b("s_addc_u32 s61, s61, 0")
    if SPF:
        b("s_lshl_b32 s%d, s%d, 19" % (sT0, sG))
        b("s_lshr_b32 s%d, s2, 3" % sT1)
        b("s_lshl_b32 s%d, s%d, 14" % (sT1, sT1))
        b("s_add_u32 s%d, s%d, s%d" % (sT0, sT0, sT1))
        if tag == "v":
            b("s_add_u32 s%d, s%d, 8192" % (sT0, sT0))
        b("s_add_u32 s60, s%d, s%d" % (sWO, sT0))
        b("s_addc_u32 s61, s%d, 0" % (sWO + 1))
        if OPT["spf0"]:
            touch()
    nt_ = [64 // SPF - OPT["spf0"] if SPF else 0]
    lo, hi = min(early), max(early)
    assert not SPF or (lo == 0 and nt_[0] >= hi + 1)
    for i in range(lo):
        b("s_barrier")
        b.add(hooks.get(i, []))
    assert all(x > hi or x == hi for x in at) and all(k <= lo or k > hi for k in hooks)
    b("s_mov_b32 s%d, %d" % (sT2, lo))
    b("L_%se:" % tag)
    b("s_barrier")
    if lo in hooks:
        b("s_cmp_lg_u32 s%d, %d" % (sT2, lo))
        b("s_cbranch_scc1 L_%seh" % tag)
        b.add(hooks[lo])
        b("L_%seh:" % tag)
    touch()
    nt_[0] -= hi + 1
    b("s_cmp_lg_u32 s%d, s%d" % (sCNT, sT2))
    b("s_cbranch_scc1 L_%sen" % tag)
    b.add(hooks.get(100, []))
    tiles(b, "L_%sei" % tag, voffs, 2 - npre)
    b("L_%sen:" % tag)
    b("s_add_u32 s%d, s%d, 1" % (sT2, sT2))
    b("s_cmp_le_u32 s%d, %d" % (sT2, hi))
    b("s_cbranch_scc1 L_%se" % tag)
    tiles(b, "L_%sq%d" % (tag, hi), voffs, at.count(hi))
    for i in range(hi + 1, 8):
        b("s_barrier")
        b.add(hooks.get(i, []))
        if nt_[0] > 0:
            touch()
            nt_[0] -= 1
        tiles(b, "L_%sq%d" % (tag, i), voffs, at.count(i))
    if tag == "k":
        b("s_waitcnt vmcnt(%d)" % (8 * sum(x < 8 for x in at)))
    assert nt_[0] <= 0
    b("s_barrier")
    tiles(b, "L_%sq8" % tag, voffs, at.count(8))
    return 2 + sum(x <= 8 for x in at)


def att_phase(b, tag, voffs, nxt, lead, f1, f2, tend, sw_at, sw_reg, sw_val):
    sT = sCNT
    stamps = STAMPS == 1 and tag == "v"
    last = 35 if tag == "k" else 31
    b("s_mov_b32 s%d, 0" % sT)
    b("s_mov_b32 s%d, %d" % (sNXT, nxt))
    b("L_%sd:" % tag)
    b("s_sub_u32 s%d, s%d, s%d" % (sA, sNXT, sT))
    for a_ in (1, 2, 3, 4, 5):
        b("s_cmp_eq_u32 s%d, %d" % (sA, lead + 1 + a_))
        b("s_cbranch_scc1 L_%sd%d" % (tag, a_))
    b("s_waitcnt vmcnt(0)")
    for a_ in range(1, 6):
        b("L_%sd%d:" % (tag, a_))
        b("s_waitcnt vmcnt(%d)" % (8 * a_))
    if stamps:
        b("s_memrealtime s[60:61]")
        b("s_waitcnt lgkmcnt(0)")
    b("s_barrier")
    if stamps:
        b("s_memrealtime s[62:63]")
        b("s_waitcnt lgkmcnt(0)")
        b("s_mov_b32 m0, s%d" % sT)
        b("s_nop 0")
        b("v_writelane_b32 v20, s60, m0")
        b("v_writelane_b32 v21, s62, m0")
    b("s_getreg_b32 s%d, hwreg(HW_REG_IB_STS, 22, 2)" % sA)
    b("s_getreg_b32 s%d, hwreg(HW_REG_IB_STS, 0, 4)" % sVM)
    b("s_lshl_b32 s%d, s%d, 4" % (sA, sA))
    b("s_or_b32 s%d, s%d, s%d" % (sVM, sVM, sA))
    b("L_%sdi:" % tag)
    b("s_cmp_le_u32 s%d, 21" % sNXT)
    b("s_cselect_b32 s%d, %d, %d" % (sLIM, f1, f2))
    b("s_add_u32 s%d, s%d, s%d" % (sLIM, sLIM, sT))
    b("s_min_u32 s%d, s%d, %d" % (sLIM, sLIM, last))
    b("s_cmp_gt_u32 s%d, s%d" % (sNXT, sLIM))
    b("s_cbranch_scc1 L_%sdn" % tag)
    b("s_cmp_le_u32 s%d, %d" % (sVM, OPT["thr0"]))
    b("s_cbranch_scc1 L_%sdg" % tag)
    b("s_add_u32 s%d, s%d, %d" % (sLIM, sT, lead + 1))
    b("s_cmp_gt_u32 s%d, s%d" % (sNXT, sLIM))
    b("s_cbranch_scc1 L_%sdn" % tag)
    b("L_%sdg:" % tag)
    if last > 31:
        b("s_cmp_ge_u32 s%d, 32" % sNXT)
        b("s_cbranch_scc1 L_kdw")
    b("s_cmp_eq_u32 s%d, %d" % (sNXT, sw_at))
    b("s_cselect_b32 s%d, %d, s%d" % (sw_reg, sw_val, sw_reg))
    kv_tile(b, voffs, OPT["noload"] & 1)
    b("L_%sdj:" % tag)
    b("s_add_u32 s%d, s%d, 1" % (sNXT, sNXT))
    b("s_add_u32 s%d, s%d, 8" % (sVM, sVM))
    b("s_branch L_%sdi" % tag)
    if last > 31:
        b("L_kdw:")
        wo3_tile(b)
        b("s_branch L_kdj")
    b("L_%sdn:" % tag)
    b("s_add_u32 s%d, s%d, 1" % (sT, sT))
    b("s_cmp_lt_u32 s%d, %d" % (sT, tend))
    b("s_cbranch_scc1 L_%sd" % tag)


b = new("K loader")
b(".p2align 8")
b("L_ldkv:")
b("s_cmp_eq_u32 s%d, 5" % sWAVE)
b("s_cbranch_scc1 L_ldv")
for p in range(4):
    b("v_add_u32 v4, %d, v1" % (4 * p))
    b("v_xor_b32 v4, v4, v3")
    b("v_lshlrev_b32 v4, 4, v4")
    b("v_lshl_add_u32 v%d, v1, 8, v4" % (10 + p))
b("s_lshl_b32 s%d, s%d, 18" % (sT0, sWGL))
b("s_waitcnt lgkmcnt(0)")
srd(b, SA, sK, sT0, "0x40000")
first_tile(b)
b("s_mov_b32 s%d, %d" % (sLDS, KRING))
b("s_mov_b32 s%d, %d" % (sBEG, KRING))
b("s_mov_b32 s%d, %d" % (sEND, KRING + 49152))
KV4 = [10, 11, 12, 13]
hooks = {}
if OPT["wopf"] >= 0:
    b("s_lshl_b32 s%d, s%d, 19" % (sT0, sG))
    b("s_lshr_b32 s%d, s2, 3" % sT1)
    b("s_lshl_b32 s%d, s%d, 14" % (sT1, sT1))
    b("s_add_u32 s%d, s%d, s%d" % (sT0, sT0, sT1))
    srd(b, SC, sWO, sT0, "16384")
    b("v_lshlrev_b32 v18, 7, v0")
    b("v_add_u32 v19, 8192, v18")
    hooks[OPT["wopf"]] = ["buffer_load_dword v20, v18, s[%d:%d], 0 offen" % (SC, SC + 3),
                          "buffer_load_dword v21, v19, s[%d:%d], 0 offen" % (SC, SC + 3)]
b.add(hooks.pop(200, []))
NK0 = q_phase_kv(b, "k", KV4, OPT["k_at"], hooks)
wo_setup(b)
att_phase(b, "k", KV4, NK0, 2, 7, 5, 30, 19, sEND, KRING + 32768)
b("s_barrier")
b("L_k2:")
wo3_tile(b)
b("s_add_u32 s%d, s%d, 1" % (sNXT, sNXT))
b("s_cmp_le_u32 s%d, 35" % sNXT)
b("s_cbranch_scc1 L_k2")
b("s_barrier")
b("s_waitcnt vmcnt(0)")
b("s_barrier")
b("s_endpgm")
b.finish(hist=e.ins)

b = new("V loader")
b(".p2align 8")
b("L_ldv:")
for par in range(2):
    b("v_lshlrev_b32 v4, 1, v1")
    b("v_xor_b32 v4, v4, v3")
    if par:
        b("v_xor_b32 v4, 8, v4")
    b("v_lshlrev_b32 v4, 4, v4")
    b("v_lshl_add_u32 v%d, v1, 8, v4" % (10 + par))
b("s_lshl_b32 s%d, s%d, 18" % (sT0, sWGL))
b("s_waitcnt lgkmcnt(0)")
srd(b, SA, sV, sT0, "0x40000")
first_tile(b)
b("s_mov_b32 s%d, %d" % (sLDS, VRING + 2 * 8192))
b("s_mov_b32 s%d, %d" % (sBEG, VRING))
b("s_mov_b32 s%d, %d" % (sEND, VRING + 49152))
V4 = [10, 11, 10, 11]
srd(b, SC, sWS, None, "0x10000000")
b("v_mov_b32 v4, 0")
b("v_mov_b32 v5, 0")
b("s_lshl_b32 s%d, s%d, 11" % (sT0, sWGL))
b("v_lshlrev_b32 v8, 3, v0")
b("buffer_store_dwordx2 v[4:5], v8, s[%d:%d], s%d offen sc1" % (SC, SC + 3, sT0))
b("buffer_store_dwordx2 v[4:5], v8, s[%d:%d], s%d offen offset:1024 sc1" % (SC, SC + 3, sT0))
b("s_getreg_b32 s%d, hwreg(HW_REG_XCC_ID, 0, 4)" % sT1)
b("s_add_u32 s%d, s%d, 1" % (sT1, sT1))
b("v_mov_b32 v7, s%d" % sT1)
b("s_mov_b64 exec, 1")
b("buffer_store_dword v7, v4, s[%d:%d], s%d offen offset:512 sc1" % (SC, SC + 3, sT0))
b("s_mov_b64 exec, -1")
b("s_lshl_b32 s%d, s%d, 5" % (sT0, sB))
b("s_add_u32 s%d, s%d, s%d" % (SB, sDBG, sT0))
b("s_addc_u32 s%d, s%d, 0" % (SB + 1, sDBG + 1))
b("s_mov_b32 s%d, 1" % (SB + 2))
hooks = {0: ["s_waitcnt vmcnt(%d)" % (8 * OPT["pre_v"]), "s_atomic_add s%d, s[%d:%d], 0x0" % (SB + 2, SB, SB + 1)]}
if OPT["e1pf"] >= 0:
    b("s_lshl_b32 s62, s%d, 15" % sWGL)
    b("s_add_u32 s62, s62, %d" % E1_OFF)
    b("v_lshlrev_b32 v18, 7, v0")
    for i in range(1, 4):
        b("v_add_u32 v%d, %d, v18" % (18 + i, 8192 * i))
    hooks.setdefault(OPT["e1pf"], []).extend(["buffer_load_dword v22, v%d, s[%d:%d], s62 offen" % (18 + i, SC, SC + 3) for i in range(4)])
NV0 = q_phase_kv(b, "v", V4, OPT["v_at"], hooks)
att_phase(b, "v", V4, NV0, 0, 5, 3, 32, 18, sBEG, VRING + 16384)
b("s_barrier")
if STAMPS == 1:
    b("s_lshl_b32 s%d, s2, 9" % sT0)
    b("s_add_u32 s%d, s%d, %d" % (sT0, sT0, ST_OFF + 0x100000))
    b("v_lshlrev_b32 v1, 2, v0")
    b("buffer_store_dword v20, v1, s[%d:%d], s%d offen" % (SC, SC + 3, sT0))
    b("buffer_store_dword v21, v1, s[%d:%d], s%d offen offset:256" % (SC, SC + 3, sT0))
b("s_endpgm")
b.finish(hist=e.ins)


sGST, sKSH, sL0, sL1, sL2, s4K = 54, 55, 56, 57, 58, 59


def q_phase_xw(b):
    def chunk():
        b("s_lshl_b32 s%d, s%d, s%d" % (sOFF, sT2, sKSH))
        b("s_mov_b32 m0, s%d" % sL0)
        b("s_add_u32 s%d, s%d, 1" % (sT2, sT2))
        b("s_and_b32 s%d, s%d, 7" % (sT2, sT2))
        b("s_mov_b32 s%d, -4" % sT3)
        b("L_xwg:")
        if not OPT["noload"] & 2:
            dma_group(b, SA, [10, 11, 12, 13], sOFF, OPT["nt_q"])
        b("s_add_u32 m0, m0, s%d" % s4K)
        b("s_add_u32 s%d, s%d, s%d" % (sOFF, sOFF, sGST))
        b("s_add_u32 s%d, s%d, 1" % (sT3, sT3))
        b("s_cbranch_scc0 L_xwg")
        b("s_mov_b32 s%d, s%d" % (sT3, sL0))
        b("s_mov_b32 s%d, s%d" % (sL0, sL1))
        b("s_mov_b32 s%d, s%d" % (sL1, sL2))
        b("s_mov_b32 s%d, s%d" % (sL2, sT3))
    b("s_setprio 2")
    b("s_cmp_eq_u32 s%d, 7" % sWAVE)
    b("s_cbranch_scc1 L_setw")
    b("v_lshrrev_b32 v5, 3, v0")
    b("v_and_b32 v6, 7, v0")
    b("v_lshrrev_b32 v7, 1, v5")
    b("v_xor_b32 v4, v7, v6")
    b("v_lshlrev_b32 v4, 4, v4")
    b("v_lshl_add_u32 v10, v5, 10, v4")
    b("v_xor_b32 v4, 64, v10")
    b("v_add_u32 v11, %d, v4" % (8192 - 1024))
    b("v_add_u32 v12, %d, v10" % (2 * (8192 - 1024)))
    b("v_add_u32 v13, %d, v4" % (3 * (8192 - 1024)))
    b("s_mul_i32 s%d, s%d, 114688" % (sT0, sB))
    b("s_mov_b32 s%d, 114688" % (SA + 2))
    b("s_mov_b32 s%d, 32768" % sGST)
    b("s_mov_b32 s%d, 7" % sKSH)
    b("s_mov_b32 s%d, %d" % (sL0, STG))
    b("s_waitcnt lgkmcnt(0)")
    b("s_add_u32 s%d, s%d, s%d" % (SA, sX, sT0))
    b("s_addc_u32 s%d, s%d, 0" % (SA + 1, sX + 1))
    b("s_branch L_setj")
    b("L_setw:")
    b("v_lshlrev_b32 v4, 1, v1")
    b("v_xor_b32 v4, v4, v3")
    b("v_lshlrev_b32 v4, 4, v4")
    b("v_lshl_add_u32 v10, v1, 13, v4")
    b("v_add_u32 v11, %d, v10" % (32768 - 1024))
    b("v_xor_b32 v4, 128, v10")
    b("v_add_u32 v12, %d, v4" % (2 * (32768 - 1024)))
    b("v_add_u32 v13, %d, v4" % (3 * (32768 - 1024)))
    b("s_lshl_b32 s%d, s%d, 8" % (sT0, sH))
    b("s_sub_u32 s%d, 0x400000, s%d" % (SA + 2, sT0))
    b("s_mov_b32 s%d, 131072" % sGST)
    b("s_mov_b32 s%d, 19" % sKSH)
    b("s_mov_b32 s%d, %d" % (sL0, STG + 16384))
    b("s_waitcnt lgkmcnt(0)")
    b("s_add_u32 s%d, s%d, s%d" % (SA, sWQ, sT0))
    b("s_addc_u32 s%d, s%d, 0" % (SA + 1, sWQ + 1))
    b("L_setj:")
    b("s_mov_b32 s%d, 0x20000" % (SA + 3))
    b("s_lshl_b32 s%d, s%d, 1" % (sT2, sHN))
    b("s_add_u32 s%d, s%d, s%d" % (sT2, sT2, sB))
    b("s_and_b32 s%d, s%d, %d" % (sT2, sT2, OPT["rotmask"]))
    b("s_movk_i32 s%d, 0x1000" % s4K)
    b("s_add_u32 s%d, s%d, 32768" % (sL1, sL0))
    b("s_sub_u32 s%d, s%d, %d" % (sL2, sL0, STG - XREG))
    b("s_mov_b32 s%d, 8" % sCNT)
    b("s_branch L_xwgo")
    b("L_xw:")
    b("s_waitcnt vmcnt(16)")
    b("s_barrier")
    b("L_xwgo:")
    chunk()
    b("s_sub_u32 s%d, s%d, 1" % (sCNT, sCNT))
    b("s_cmp_eq_u32 s%d, 7" % sCNT)
    b("s_cbranch_scc1 L_xwgo")
    b("s_cmp_lg_u32 s%d, 0" % sCNT)
    b("s_cbranch_scc1 L_xw")
    wo_setup(b)
    b("s_waitcnt vmcnt(16)")
    b("s_barrier")
    b("s_waitcnt vmcnt(0)")
    b("s_barrier")
    b("s_barrier")
    b("s_setprio 0")
    b("s_cmp_eq_u32 s%d, 7" % sWAVE)
    b("s_cbranch_scc1 L_attw")


def wo_trickle(b, tag, blk):
    first = 4 if blk == 0 else 2
    for i in range(first + 1):
        b("s_barrier")
    if tag == "w":
        b("s_lshl_b32 s%d, s%d, 5" % (sT0, sB))
        b("s_add_u32 s%d, s%d, s%d" % (SC, sDBG, sT0))
        b("s_addc_u32 s%d, s%d, 0" % (SC + 1, sDBG + 1))
        b("s_load_dword s%d, s[%d:%d], 0x0 glc" % (SC + 2, SC, SC + 1))
    b("s_xor_b32 s%d, s%d, %d" % (sOFF, sHN, blk))
    b("s_lshl_b32 s%d, s%d, 17" % (sOFF, sOFF))
    b("s_mov_b32 s%d, %d" % (sLDS, STG + blk * 32768))
    loop_begin(b, "L_%s2" % tag, 4)
    wo_tile(b)
    b("s_add_u32 s%d, s%d, 8192" % (sLDS, sLDS))
    for i in range(4):
        b("s_barrier")
    loop_end(b, "L_%s2" % tag)
    if tag == "x" and OPT["tlb"]:
        srd(b, SA, sWS, None, "0x10000000")
        b("s_lshl_b32 s%d, s%d, 15" % (sT0, sWGL))
        b("s_add_u32 s%d, s%d, %d" % (sT0, sT0, E1_OFF))
        b("s_lshl_b32 s%d, s%d, 2" % (sT1, sB))
        b("s_add_u32 s%d, s%d, s%d" % (sT1, sT1, sHN))
        b("s_lshl_b32 s%d, s%d, 3" % (sT1, sT1))
        b("s_add_u32 s%d, s%d, s%d" % (sT1, sT1, sG))
        b("s_lshl_b32 s%d, s%d, 15" % (sT1, sT1))
        b("s_add_u32 s%d, s%d, %d" % (sT1, sT1, E2_OFF))
        b("v_mov_b32 v4, 0")
        b("s_mov_b64 exec, 1")
        b("buffer_load_dword v5, v4, s[%d:%d], s%d offen" % (SA, SA + 3, sT0))
        b("buffer_load_dword v5, v4, s[%d:%d], s%d offen" % (SA, SA + 3, sT1))
        if OPT["tlb"] > 1:
            b("s_mul_i32 s%d, s%d, 114688" % (sT0, sB))
            srd(b, SC, sOUT, sT0, "114688")
            b("s_xor_b32 s%d, s%d, 2" % (sT1, sHN))
            b("s_lshl_b32 s%d, s%d, 8" % (sT1, sT1))
            b("buffer_load_dword v5, v4, s[%d:%d], s%d offen" % (SC, SC + 3, sT1))
        b("s_mov_b64 exec, -1")
    b("s_xor_b32 s%d, s%d, 2" % (sOFF, sHN))
    b("s_lshl_b32 s%d, s%d, 17" % (sOFF, sOFF))
    b("s_add_u32 s%d, s%d, %d" % (sOFF, sOFF, blk * 65536))
    b("s_mov_b32 s%d, %d" % (sLDS, XREG + blk * 16384))
    wo_tile(b)
    b("s_add_u32 s%d, s%d, 8192" % (sLDS, sLDS))
    for i in range(4):
        b("s_barrier")
    wo_tile(b)
    done = first + 20
    if tag == "w":
        for i in range(3):
            b("s_barrier")
        done += 3
        b("s_mov_b32 s%d, 0x%x" % (sCNT, SPIN))
        b("s_branch L_wchk")
        b("L_wpoll:")
        b("s_load_dword s%d, s[%d:%d], 0x0 glc" % (SC + 2, SC, SC + 1))
        b("L_wchk:")
        b("s_waitcnt lgkmcnt(0)")
        b("s_sub_u32 s%d, s%d, 1" % (sCNT, sCNT))
        b("s_cbranch_scc1 L_wpolld")
        b("s_cmp_lt_u32 s%d, 32" % (SC + 2))
        b("s_cbranch_scc1 L_wpoll")
        b("L_wpolld:")
    for i in range(29 - done):
        b("s_barrier")
    b("s_waitcnt vmcnt(0)")
    b("s_barrier")
    b("s_barrier")
    b("s_barrier")
    b("s_endpgm")


bq = Block("x / wq loaders: Q phase")
q_phase_xw(bq)
wo_trickle(bq, "x", 0)
bq("L_attw:")
wo_trickle(bq, "w", 1)
bq.finish(hist=e.ins)
blocks.insert(1, bq)

c = new("compute waves: addresses")
c(".p2align 8")
c("L_compute:")
if OPT["codepf"]:
    c("s_cmp_lg_u32 s%d, 1" % sWAVE)
    c("s_cbranch_scc1 L_nopf")
    c("s_getpc_b64 s[56:57]")
    c("L_pc:")
    c("s_sub_u32 s56, s56, L_pc-L_start")
    c("s_subb_u32 s57, s57, 0")
    c("s_lshr_b32 s%d, s2, 3" % sT0)
    c("s_and_b32 s%d, s%d, 7" % (sT0, sT0))
    c("s_mul_i32 s%d, s%d, ((L_codeend-L_start+1023)/1024)*128" % (sT0, sT0))
    c("v_lshlrev_b32 v1, 7, v0")
    c("v_add_u32 v1, s%d, v1" % sT0)
    c("v_min_u32 v1, L_codeend-L_start-4, v1")
    c("v_mov_b32 v3, s57")
    c("v_add_co_u32 v2, vcc, s56, v1")
    c("s_nop 1")
    c("v_addc_co_u32 v3, vcc, 0, v3, vcc")
    c("v_cmp_gt_u32 vcc, (L_codeend-L_start+1023)/1024, v0")
    c("s_and_saveexec_b64 s[58:59], vcc")
    c("global_load_dword v%d, v[2:3], off" % vDUM)
    c("s_mov_b64 exec, -1")
    c("L_nopf:")
for i in range(4):
    c("v_mov_b32 v%d, 0" % (XB + 28 + i))
c("v_lshrrev_b32 v1, 4, v0")
c("v_and_b32 v2, 15, v0")
c("v_lshrrev_b32 v3, 5, v0")
c("v_and_b32 v4, 1, v1")
c("v_lshl_add_u32 v3, v4, 1, v3")
c("v_xor_b32 v3, v3, v2")
c("v_lshlrev_b32 v3, 4, v3")
c("v_lshl_add_u32 v%d, v2, 8, v3" % aK)
for ks in range(1, 4):
    c("v_xor_b32 v%d, %d, v%d" % (aK + ks, ks << 6, aK))
c("s_lshl_b32 s%d, s%d, 12" % (sT0, sWAVE))
c("s_add_u32 s%d, s%d, %d" % (sT0, sT0, STG))
c("v_lshrrev_b32 v3, 1, v2")
c("v_xor_b32 v3, v3, v1")
c("v_lshlrev_b32 v3, 4, v3")
c("v_lshl_add_u32 v3, v2, 7, v3")
c("v_add_u32 v%d, s%d, v3" % (aXq, sT0))
c("v_xor_b32 v%d, 64, v%d" % (aXq + 1, aXq))
c("v_bfe_u32 v2, v0, 2, 2")
c("v_lshrrev_b32 v3, 2, v0")
c("v_and_b32 v4, 7, v3")
c("v_lshlrev_b32 v4, 5, v4")
c("v_lshl_add_u32 v3, v3, 8, v4")
c("v_and_b32 v4, 3, v0")
c("v_lshl_add_u32 v3, v4, 3, v3")
c("v_add_u32 v%d, %d, v3" % (aV, VRING + 16384))
for db in range(1, 8):
    c("v_xor_b32 v%d, %d, v%d" % (aV + db, db << 5, aV))
c("v_lshl_add_u32 v3, v1, 10, v3")
c("v_add_u32 v%d, %d, v3" % (aWq, STG + 16384))
for db in range(1, 8):
    c("v_xor_b32 v%d, %d, v%d" % (aWq + db, db << 5, aWq))
c("v_mul_u32_u24 v2, 320, v2")
c("v_lshrrev_b32 v3, 5, v0")
c("v_lshl_add_u32 v3, v3, 11, v2")
c("v_and_b32 v4, 1, v1")
c("v_lshl_add_u32 v3, v4, 5, v3")
c("v_and_b32 v4, 1, v0")
c("v_lshl_add_u32 v3, v4, 4, v3")
c("v_bfe_u32 v4, v0, 1, 1")
c("v_lshl_add_u32 v3, v4, 3, v3")
c("s_lshl_b32 s%d, s%d, 5" % (sT0, sG))
c("v_xor_b32 v%d, s%d, v3" % (aO2, sT0))
for nt in range(1, 4):
    c("v_xor_b32 v%d, %d, v%d" % (aO2 + nt, nt << 6, aO2))
c("v_and_b32 v2, 31, v0")
c("s_lshl_b32 s%d, s%d, 5" % (sT0, sWAVE))
c("v_add_u32 v2, s%d, v2" % sT0)
c("v_lshlrev_b32 v%d, 4, v0" % vE)
c("v_cmp_lt_u32 vcc, 111, v2")
c("v_bfrev_b32 v3, 1")
c("v_lshlrev_b32 v2, 10, v2")
c("v_cndmask_b32 v1, 0, v3, vcc")
c("v_or_b32 v%d, v%d, v1" % (vE, vE))
c("v_lshrrev_b32 v1, 5, v0")
c("v_lshl_add_u32 v%d, v1, 4, v2" % vOUT)
c("v_xor_b32 v1, s%d, v0" % sWGL)
c("v_lshlrev_b32 v1, 11, v1")
c("v_cmp_gt_u32 vcc, 4, v0")
c("v_add_u32 v2, 512, v1")
c("s_lshl_b32 s%d, s%d, 7" % (sT0, sWAVE))
c("v_cndmask_b32 v%d, v3, v2, vcc" % vINFO)
c("v_lshl_add_u32 v2, v0, 2, s%d" % sT0)
c("v_add_u32 v1, v1, v2")
c("s_lshl_b32 s%d, s%d, 11" % (sT1, sWGL))
c("v_add_u32 v2, s%d, v2" % sT1)
c("v_subrev_u32 v%d, 1, v0" % vTM)
c("v_cmp_gt_u32 vcc, 3, v%d" % vTM)
c("s_mov_b32 s%d, %s" % (sCS, f32(CSC)))
c("s_mov_b32 s%d, %s" % (sCS + 1, f32(CSC)))
c("v_cndmask_b32 v%d, v3, v1, vcc" % vM1)
c("v_cndmask_b32 v%d, v3, v2, vcc" % vP1)
for i in range(4):
    c("%s %s, %s, %s, 0" % (M32, vr(ACC + 16 * i, 16), vr(XB + 28, 4), vr(XB + 28, 4)))
c("s_mov_b32 s%d, %s" % (sTHR, f32(0.0 if OPT["force_rescale"] else OPT["thr"])))
c("s_waitcnt lgkmcnt(0)")
srd(c, SA, sWS, None, "0x10000000")
c("s_lshl_b32 s%d, s%d, 15" % (sE1, sWGL))
c("s_lshl_b32 s%d, s%d, 13" % (sT0, sWAVE))
c("s_add_u32 s%d, s%d, s%d" % (sE1, sE1, sT0))
c("s_add_u32 s%d, s%d, %d" % (sE1, sE1, E1_OFF))
c("s_mov_b32 s%d, %d" % (sT2, sum(((1, -3, 2)[i % 3] + 3) << (3 * i) for i in range(8))))
c("s_mov_b32 s%d, 8" % sCNT)
if OPT["single"]:
    c("s_cmp_eq_u32 s%d, 3" % sWAVE)
    c("s_cbranch_scc1 L_paths")
c.finish(hist=e.ins)


def k_reads(slot_off):
    return ["ds_read_b128 %s, v%d offset:%d" % (vr(KF + 16 * kb + 4 * ks, 4), aK + ks, slot_off + kb * 4096)
            for ks in range(4) for kb in range(2)]


def v_read(db, u, off):
    return "ds_read_b64_tr_b16 %s, v%d offset:%d" % (vr(VF + 4 * db + 2 * u, 2), aV + db, off + u * 4096)


def ex(S, i):
    return "v_exp_f32 v%d, v%d" % (S + i, S + i)


def cvt(S, j):
    return "v_cvt_pk_bf16_f32 v%d, v%d, v%d" % (PK + j, S + 2 * j, S + 2 * j + 1)


def qk(SN, ks, kb, blk, first):
    d = vr(SN + 8 * blk + 4 * kb, 4)
    cc = d if ks else ("0" if first else vr(NM[blk], 4))
    return "%s %s, %s, %s, %s" % (M16, d, vr(KF + 16 * kb + 4 * ks, 4), vr(QF + 16 * blk + 4 * ks, 4), cc)


def pv(db, blk):
    d = vr(ACC + 32 * blk + 4 * db, 4)
    return "%s %s, %s, %s, %s" % (M16, d, vr(VF + 4 * db, 4), vr(PK + 4 * blk, 4), d)


def sum_mfma(blk):
    return "%s %s, %s, %s, %s" % (M16, vr(vL[blk], 4), vr(ONES, 4), vr(PK + 4 * blk, 4), vr(vL[blk], 4))


def max_tree(dst, S, n):
    r = ["v_max3_f32 v%d, v%d, v%d, v%d" % (dst, S, S + 1, S + 2)]
    for i in range(3, n - 1, 2):
        r.append("v_max3_f32 v%d, v%d, v%d, v%d" % (dst, dst, S + i, S + i + 1))
    r.append("v_max_f32 v%d, v%d, v%d" % (dst, dst, S + n - 1))
    return r


def blk_max(b, S, dst, tmp):
    b.add(max_tree(dst, S, 8))
    for perm in ("v_permlane32_swap_b32", "v_permlane16_swap_b32"):
        b("v_mov_b32 v%d, v%d" % (tmp, dst))
        b("%s v%d, v%d" % (perm, tmp, dst))
        b("v_max_f32 v%d, v%d, v%d" % (dst, tmp, dst))


def weave(b, mfmas, gaps):
    assert len(mfmas) == len(gaps)
    for m_, g in zip(mfmas, gaps):
        b.add([x for x in [m_] + list(g) if x is not None])


AREG = {0: aO1, 1: aO3, 2: aO1, 3: aO3}
SBUF = {1: S0, 2: KF, 3: XB}
SEQ = [(j, f, nt) for j in range(3) for f in range(8) for nt in range(4)]
SEQ += [(3, f, nt) for nt in (1, 2, 3, 0) for f in range(8)]


def wbuf(m):
    return (KF if m < 8 else VF) + 4 * (m & 7)


def w_reads(m):
    if m >= len(SEQ):
        return []
    j, f, nt = SEQ[m]
    ks, y = f >> 1, f & 1
    return ["ds_read_b64_tr_b16 %s, v%d offset:%d" % (vr(wbuf(m) + 2 * u, 2), AREG[j] + nt,
                                                   ks * 8192 + u * 4096 + y * 1024) for u in range(2)]


def bfrag(j, f):
    return OB + 16 * (f & 1) + 4 * (f >> 1) if j == 0 else SBUF[j] + 4 * f


def publish(f, lo, hi, fl):
    return "buffer_store_dwordx4 %s, v%d, s[%d:%d], s%d offen offset:%d %s" % (vr(bfrag(0, f), 4), vE, SA, SA + 3,
                                                                           lo if f < 4 else hi, (f & 3) * 1024, fl)


rare = []


def compute_path(sfx, nb, out):
    B = range(nb)

    def blk(i, x):
        return x if i < nb else None

    def mk(name):
        bb = Block(name + (" (two query blocks)" if nb == 2 else " (one query block: wave 3)"))
        out.append(bb)
        return bb

    def q_reads(s_):
        W = VF if s_ == 0 else S0
        r = [blk(i, "ds_read_b128 %s, v%d offset:%d" % (vr(XB + 8 * s_ + 4 * i, 4), aXq + s_, i * 2048)) for i in range(2)]
        for db in range(8):
            for u in range(2):
                r.append("ds_read_b64_tr_b16 %s, v%d offset:%d" % (vr(W + 4 * db + 2 * u, 2), aWq + db, s_ * 8192 + u * 1024))
        return r

    def q_mfmas(s_):
        W = VF if s_ == 0 else S0
        r = []
        for db in range(8):
            for i in range(2):
                d = vr(ACC + 32 * i + 4 * db, 4)
                r.append(blk(i, "%s %s, %s, %s, %s" % (M16, d, vr(W + 4 * db, 4), vr(XB + 8 * s_ + 4 * i, 4), d)))
        return r

    q0 = mk("Q projection: first reads")
    q0("L_path%s:" % sfx)
    q0("s_barrier")
    stamp(q0, 1)
    if STAMPS == 10:
        q0("s_memtime s[92:93]")
    q0.add([x for x in q_reads(0) if x])
    lgq0, _ = q0.finish(hist=c.ins)
    ql = mk("Q projection")
    if OPT["alq"] >= 0 and nb == 2:
        ql(".p2align 6")
        for _ in range(OPT["alq"]):
            ql("s_nop 0")
    ql("L_q%s:" % sfx)
    tabq = ["s_and_b32 s%d, s%d, 7" % (sDEL, sT2), "s_lshr_b32 s%d, s%d, 3" % (sT2, sT2),
            "s_sub_u32 s%d, s%d, 3" % (sDEL, sDEL), "s_lshl_b32 s%d, s%d, 15" % (sDEL, sDEL)]
    adv = ["v_add_u32 v%d, s%d, v%d" % (r_, sDEL, r_) for r_ in range(aWq, aWq + 10)]
    QS = OPT["qs"]
    gaps = spread(q_reads(1), {0: [2, 1, 2, 1, 2, 1, 1, 1, 1, 1, 1, 1, 1, 1, 1, 0], 1: [2, 2, 1, 2, 1, 2, 1, 2, 1, 2, 1, 1, 0, 0, 0, 0],
                               2: [2, 2, 1, 2, 1, 2, 1, 2, 1, 2, 1, 1, 0, 0, 0, 0]}[QS])
    gaps[1] += tabq[:2]
    gaps[3] += tabq[2:]
    weave(ql, q_mfmas(0), gaps)
    m1 = q_mfmas(1)
    NBQ = {0: 6, 1: 2, 2: 4}[QS]
    if QS:
        tail_ = ql.ins[-4 if nb == 2 else -2:]
        del ql.ins[-len(tail_):]
        k_ = {1: 8, 2: 6}[QS]
        weave(ql, tail_, spread(adv[:k_], ([2, 2, 2, 2] if k_ == 8 else [2, 2, 1, 1]) if nb == 2 else [k_ // 2, k_ // 2]))
        weave(ql, m1[:NBQ], spread(adv[k_:], [1] * NBQ))
    else:
        weave(ql, m1[:6], spread(adv, [2, 2, 2, 2, 1, 1]))
    ql("s_waitcnt lgkmcnt(0)")
    ql("s_barrier")
    if STAMPS == 9:
        ql("s_memrealtime s[88:89]")
        ql("s_waitcnt lgkmcnt(0)")
        for i in range(1, 9):
            ql("s_cmp_eq_u32 s%d, %d" % (sCNT, 9 - i))
            ql("s_cselect_b32 s%d, s88, s%d" % (sSTAMP + 2 * (i + 3), sSTAMP + 2 * (i + 3)))
    weave(ql, m1[NBQ:], spread(q_reads(0), {6: [2, 2, 2, 2, 2, 2, 2, 2, 1, 1], 2: [2, 2, 1, 2, 1, 2, 1, 1, 1, 1, 1, 1, 1, 1],
                                            4: [2, 2, 2, 1, 2, 1, 2, 1, 2, 1, 1, 1]}[NBQ]))
    loop_end(ql, "L_q%s" % sfx)
    lgq1, _ = ql.finish(hist=q0.ins, lgq=lgq0)
    assert STAMPS or lgq1 == lgq0[-len(lgq1):], (lgq0, lgq1)
    pad_hazards(ql.ins, hist=ql.ins, check_only=True, where="q loop back edge")

    q = mk("attention set-up")
    stamp(q, 2)
    if STAMPS == 10:
        q("s_memtime s[94:95]")
    q("s_waitcnt lgkmcnt(0)")
    q.add(k_reads(0))
    q("s_waitcnt vmcnt(0)")

    def conv(ks):
        r = []
        for i in B:
            a0, f0 = ACC + 32 * i + 8 * ks, QF + 16 * i + 4 * ks
            if ks == 0:
                r += ["v_pk_mul_f32 %s, %s, s[%d:%d]" % (vr(a0 + 2 * j, 2), vr(a0 + 2 * j, 2), sCS, sCS + 1) for j in range(4)]
            else:
                r += ["v_mul_f32 v%d, s%d, v%d" % (a0 + j, sCS, a0 + j) for j in range(8)]
            r += ["v_cvt_pk_bf16_f32 v%d, v%d, v%d" % (f0 + j, a0 + 2 * j, a0 + 2 * j + 1) for j in range(4)]
        for i in B:
            f0 = QF + 16 * i + 4 * ks
            r += ["v_permlane16_swap_b32 v%d, v%d" % (f0 + j, f0 + 2 + j) for j in range(2)]
        return r

    k1 = k_reads(8192)
    init = ["v_mov_b32 v%d, 0" % (vL[0] + i) for i in range(8)] + ["v_mov_b32 v%d, 0x3f803f80" % (ONES + i) for i in range(4)]
    q.add(conv(0))
    q.add(init[:4])
    qk0 = [blk(i, qk(S0, ks, kb, i, True)) for ks in range(4) for kb in range(2) for i in range(2)]
    for ks in range(3):
        g = spread(conv(ks + 1), [7, 7, 7, 7] if nb == 2 else [4, 3, 4, 3])
        g[2].insert(0, k1[2 * ks])
        if ks:
            g[0].insert(0, k1[2 * ks - 1])
        weave(q, qk0[4 * ks:4 * ks + 4], g)
    weave(q, qk0[12:], [[k1[5]] + init[4:6], init[6:8], [k1[6]] + init[8:10], init[10:]])
    z = vr(vL[0], 4)
    weave(q, [blk(i >> 1, "%s %s, %s, %s, 0" % (M32, vr(ACC + 16 * i, 16), z, z)) for i in range(4)], [[k1[7]], [], [], []])
    for ks in range(4):
        q("v_add_u32 v%d, 16384, v%d" % (aK + ks, aK + ks))
    if nb == 1:
        for i in range(16):
            q("v_mov_b32 v%d, 0" % (OB + 16 + i))
    chains = []
    for i in B:
        tb = Block()
        blk_max(tb, S0 + 8 * i, *((1, 2) if i == 0 else (vTM, NM[1] + 1)))
        tb("v_sub_f32 v%d, 0, v%d" % (NM[i], 1 if i == 0 else vTM))
        if i == 1 and not OPT["single"]:
            tb("v_min_f32 v%d, s%d, v%d" % (NM[i], sT3, NM[i]))
        for j in range(1, 4):
            tb("v_mov_b32 v%d, v%d" % (NM[i] + j, NM[i]))
        for j in range(8):
            tb("v_add_f32 v%d, v%d, v%d" % (S0 + 8 * i + j, S0 + 8 * i + j, NM[i]))
        chains.append(tb.ins)
    if not OPT["single"]:
        q("s_cmp_eq_u32 s%d, 3" % sWAVE)
        q("s_mov_b32 s%d, %s" % (sT0, f32(3e38)))
        q("s_cselect_b32 s%d, %s, s%d" % (sT3, f32(-1e30), sT0))
    for i in range(max(map(len, chains))):
        q.add([ch[i] for ch in chains if i < len(ch)])
    KSEQ = [1, 2, 0, 1, 2, 0, 1, 2, 0, 1, 0, 1, 0, 1, 0, 0]
    VSEQ = [1, 2, 0, 1, 2, 0, 1, 2, 0, 1, 2, 1, 2, 1, 2, 1]
    for tab, seq in ((sTABK, KSEQ), (sTABV, VSEQ)):
        q("s_mov_b32 s%d, 0x%x" % (tab, sum((seq[i + 1] - seq[i] + 2) << (2 * i) for i in range(15))))
    q("s_mov_b32 s%d, 15" % sCNT)
    if OPT["cprio"]:
        q("s_setprio %d" % OPT["cprio"])
    stamp(q, 3)
    if STAMPS == 6:
        q("s_memtime s[92:93]")
    q.finish(hist=ql.ins)

    def rescale(tag, SN):
        r = Block("the running max rises by more than the threshold: move to the true max (%s)" % tag)
        r("L_resc%s:" % tag)
        r("s_nop 15")
        for i in B:
            blk_max(r, SN + 8 * i, 1, 2)
            r("v_max_f32 v1, 0, v1")
            r("v_sub_f32 v2, 0, v1")
            r("v_exp_f32 v2, v2")
            for j in range(4):
                r("v_sub_f32 v%d, v%d, v1" % (NM[i] + j, NM[i] + j))
            for j in range(8):
                r("v_sub_f32 v%d, v%d, v1" % (SN + 8 * i + j, SN + 8 * i + j))
            for j in range(4):
                r("v_mul_f32 v%d, v%d, v2" % (vL[i] + j, vL[i] + j))
            for j in range(32):
                r("v_mul_f32 v%d, v%d, v2" % (ACC + 32 * i + j, ACC + 32 * i + j))
        r("s_nop 1")
        r("s_branch L_back%s" % tag)
        r.finish()
        rare.append(r)

    def epoch(b, par, kread, adv, tag, head=()):
        S, SN = (S0, S1) if par == 0 else (S1, S0)
        off = par * 8192
        vrd = [v_read(db, u, off) for db in range(8) for u in range(2)]
        kr = k_reads(off) if kread else [None] * 8
        b("s_waitcnt lgkmcnt(0)")
        b("s_barrier")
        b.add(head)
        GA = "e0|t0 t1|e1|t2 c0|e2|t3 t4|e3|t5 c1|e4|t6 t7|e5|t8 c2|e6|t9 e7|t10 c3|t11 e8"
        GB = "t12 t13|t14 e9|t15 e10|c4 e11|e12|c5 e13|e14|c6 e15|k0 c7 m0 m1|k1 k2|k3 m2|k4 m3|k5 m4|k6 m5|k7 m6|m7 a|x a|a a"
        mx = max_tree(vTM, SN, 8 * nb) + [None] * 4
        adds = []
        if adv:
            adds = ["v_add_u32 v%d, s%d, v%d" % (aV + i, sDELV, aV + i) for i in range(8)] + \
                   ["v_add_u32 v%d, s%d, v%d" % (aK + i, sDEL, aK + i) for i in range(4)]

        def ins(tok):
            k, n = tok[0], int(tok[1:]) if len(tok) > 1 else 0
            if k == "a":
                return adds.pop(0) if adds else None
            if k == "x":
                return "v_cmp_lt_f32 vcc, s%d, v%d" % (sTHR, vTM)
            return {"e": lambda: blk(n >> 3, ex(S, n)), "t": lambda: vrd[n], "c": lambda: blk(n >> 2, cvt(S, n)),
                    "k": lambda: kr[n], "m": lambda: mx[n]}[k]()
        ga = [[ins(x) for x in g.split()] for g in GA.split("|")]
        if adv:
            for tab, dl, gi in ((sTABV, sDELV, 1), (sTABK, sDEL, 5)):
                ga[gi] += ["s_and_b32 s%d, s%d, 3" % (dl, tab), "s_lshr_b32 s%d, s%d, 2" % (tab, tab)]
                ga[gi + 2] += ["s_sub_u32 s%d, s%d, 2" % (dl, dl), "s_lshl_b32 s%d, s%d, 14" % (dl, dl)]
        weave(b, [blk(i, qk(SN, ks, kb, i, False)) for ks in range(4) for kb in range(2) for i in range(2)], ga)
        order = [pv(db, 0) for db in range(8)] + [sum_mfma(0)] + [blk(1, pv(db, 1)) for db in range(8)] + [blk(1, sum_mfma(1))]
        gb = [[ins(x) for x in g.split()] for g in GB.split("|")]
        gb[-1] += adds[:]
        b("s_waitcnt lgkmcnt(4)")
        weave(b, order[:4], gb[:4])
        b("s_waitcnt lgkmcnt(4)")
        weave(b, order[4:], gb[4:])
        b("s_cbranch_vccnz L_resc%s" % tag)
        b("L_back%s:" % tag)
        rescale(tag, SN)

    lp = mk("attention loop: tiles 0..29")
    if OPT["al"] >= 0 and nb == 2:
        lp(".p2align 6")
        for _ in range(OPT["al"]):
            lp("s_nop 0")
    lp("L_att%s:" % sfx)
    epoch(lp, 0, True, False, "a" + sfx)
    epoch(lp, 1, True, True, "b" + sfx,
          head=["s_nop 0"] * OPT["al2"] + ["s_cmp_lg_u32 s%d, 1" % sCNT, "s_cbranch_scc1 L_noinfo%s" % sfx,
                "buffer_load_dword v%d, v%d, s[%d:%d], 0 offen sc1" % (vINF, vINFO, SA, SA + 3), "L_noinfo%s:" % sfx])
    loop_end(lp, "L_att%s" % sfx)
    lp.finish(hist=q.ins)
    pad_hazards(lp.ins, hist=lp.ins, check_only=True, where="loop back edge")

    t = mk("tiles 30, 31; o = O / l leaves for the other heads of the group")
    if STAMPS == 6:
        t("s_memtime s[94:95]")
        t("s_waitcnt lgkmcnt(0)")
    stamp(t, 4)
    epoch(t, 0, False, False, "c" + sfx)
    S = S1
    for nt in range(4):
        t("v_add_u32 v%d, %d, v%d" % (aO1 + nt, STG, aO2 + nt))
    for m in range(8):
        t.add(w_reads(m))
    for i in range(8 * nb):
        t(ex(S, i))
    for j in range(4 * nb):
        t(cvt(S, j))
    for i in B:
        t(sum_mfma(i))
    t("v_readlane_b32 s%d, v%d, 0" % (sT0, vINF))
    t("v_mov_b32 v%d, 1" % NM[0])
    t("s_add_u32 s%d, s%d, 4096" % (sT2, sE1))
    t("v_cmp_eq_u32 vcc, s%d, v%d" % (sT0, vINF))
    t("s_nop 0")
    t("s_and_b32 s%d, vcc_lo, 15" % sT0)
    t("s_cmp_eq_u32 s%d, %d" % (sT0, 15 if OPT["fast"] else 16))
    t("s_cselect_b32 s%d, s%d, 0x%x" % (sE1F, sE1, OOB))
    t("s_add_u32 s%d, s%d, 4096" % (sE1F4, sE1F))
    if not OPT["single"]:
        for i in B:
            t("v_max_f32 v%d, %s, v%d" % (vL[i], f32(1e-30), vL[i]))
    for i in B:
        t("v_rcp_f32 v%d, v%d" % (vL[i], vL[i]))
    for i in B:
        for j in range(4):
            t("v_pk_mul_f32 %s, %s, %s op_sel_hi:[1,0]" % (vr(S + 8 * i + 2 * j, 2), vr(S + 8 * i + 2 * j, 2), vr(vL[i], 2)))
    for i in B:
        for j in range(16):
            a0 = ACC + 32 * i + 2 * j
            t("v_pk_mul_f32 %s, %s, %s op_sel_hi:[1,0]" % (vr(a0, 2), vr(a0, 2), vr(vL[i], 2)))
    for j in range(4 * nb):
        t(cvt(S, j))
    t("s_waitcnt lgkmcnt(0)")
    t("s_barrier")
    stamp(t, 5)
    cst(t, 2)
    vrd = [v_read(db, u, 8192) for db in range(8) for u in range(2)]

    def pack(ks):
        return [blk(i, "v_cvt_pk_bf16_f32 v%d, v%d, v%d" % (OB + 16 * i + 4 * ks + j, ACC + 32 * i + 8 * ks + 2 * j, ACC + 32 * i + 8 * ks + 2 * j + 1))
                for i in range(2) for j in range(4)]

    def swaps(ks):
        return ["v_permlane16_swap_b32 v%d, v%d" % (OB + 4 * ks + j, OB + 16 + 4 * ks + j) for j in range(4)]

    t.add(vrd[0:8])
    p0, p1, p2 = pack(0), pack(1), pack(2)
    g = [vrd[8:10], vrd[10:12], vrd[12:14], vrd[14:16], [], [], p0[0:2], p0[2:4], p0[4:6], p0[6:8], p1[0:2] + swaps(0)[0:1],
         p1[2:4] + swaps(0)[1:2], p1[4:6] + swaps(0)[2:3], p1[6:8] + swaps(0)[3:4], p2[0:3], p2[3:8]]
    weave(t, [blk(i, pv(db, i)) for db in range(8) for i in range(2)], g)
    t.add([publish(f, sE1F, sE1F4, OPT["st1"]) for f in (0, 1)])
    t.add(swaps(1))
    t.add([publish(f, sE1F, sE1F4, OPT["st1"]) for f in (2, 3)])
    t.add(swaps(2))
    t.add([x for x in pack(3) if x])
    t.add([publish(f, sE1F, sE1F4, OPT["st1"]) for f in (4, 5)])
    t.add(swaps(3))
    t.add([publish(f, sE1F, sE1F4, OPT["st1"]) for f in (6, 7)])
    if nb == 1:
        t("s_branch L_join")
    lgq, vmq = t.finish(hist=lp.ins, vmq=[{vINF}])
    assert not lgq or STAMPS
    return t, vmq


side = []
tA, vmqA = compute_path("d", 2, blocks)
if OPT["single"]:
    tB, vmqB = compute_path("s", 1, side)
    assert vmqA == vmqB

t = new("output projection")
t("L_join:")
t("s_cmp_lg_u32 s%d, 0x%x" % (sE1F, OOB))
t("s_cbranch_scc1 L_pubj")
t.add([uncounted(publish(f, sE1, sT2, "sc1")) for f in range(8)])
if OPT["alo"] >= 0:
    t(".p2align 3")
    for _ in range(OPT["alo"]):
        t("s_nop 0")
t("L_pubj:")


def o_mfma(b, m, extra=()):
    j, f, nt = SEQ[m]
    b("%s %s, %s, %s, %s" % (M32, vr(ACC + 16 * nt, 16), vr(wbuf(m), 4), vr(bfrag(j, f), 4),
                             "0" if (j == 0 and f == 0) else vr(ACC + 16 * nt, 16)))
    b.add(w_reads(m + 8))
    b.add(extra)


flag = "buffer_store_dword v%d, v%d, s[%d:%d], 0 offen" % (NM[0], vM1, SA, SA + 3)
pollld = "buffer_load_dword v%d, v%d, s[%d:%d], 0 offen sc1" % (vTM, vP1, SA, SA + 3)


def sib_load(p, f):
    return "buffer_load_dwordx4 %s, v%d, s[%d:%d], s%d offen offset:%d %s" % (vr(SBUF[p] + 4 * f, 4), vE, SA, SA + 3,
                                                                          sP if f < 4 else sP4, (f & 3) * 1024, OPT["ld1"])


def try_head(b, p):
    b("v_cmp_eq_u32 vcc, 1, v%d" % vTM)
    b("s_mov_b32 s%d, 0x%x" % (sP, OOB))
    b("s_xor_b32 s%d, s%d, %d" % (sT0, sE1, p << 15))
    b("s_bitcmp1_b32 vcc_lo, %d" % p)
    b("s_cselect_b32 s%d, s%d, s%d" % (sP, sT0, sP))
    b("s_add_u32 s%d, s%d, 4096" % (sP4, sP))


NEARLY = 4


def need_head(b, p):
    b("s_cmp_lg_u32 s%d, 0x%x" % (sP, OOB))
    b("s_cbranch_scc1 L_dec%dd" % p)
    b("s_mov_b32 s%d, 0x%x" % (sCNT, SPIN))
    b("L_dec%d:" % p)
    b(pollld)
    b("s_waitcnt vmcnt(0)")
    try_head(b, p)
    b("s_sub_u32 s%d, s%d, 1" % (sCNT, sCNT))
    b("s_cbranch_scc1 L_dec%dl" % p)
    b("s_cmp_eq_u32 s%d, 0x%x" % (sP, OOB))
    b("s_cbranch_scc1 L_dec%d" % p)
    b("L_dec%dl:" % p)
    b.add([sib_load(p, f) for f in range(8 if p == 3 else NEARLY)])
    b("L_dec%dd:" % p)


def send(j):
    a0 = ACC + 8 * j
    return (["s_xor_b32 s%d, s%d, %d" % (sT0, sG, j), "s_lshl_b32 s%d, s%d, 15" % (sT0, sT0),
             "s_add_u32 s%d, s%d, s%d" % (sT0, sT0, sE2P), "s_add_u32 s%d, s%d, %d" % (sT0, sT0, j * 4096)],
            ["v_cvt_pk_bf16_f32 v%d, v%d, v%d" % (a0 + i, a0 + 2 * i, a0 + 2 * i + 1) for i in range(4)],
            ["buffer_store_dwordx4 %s, v%d, s[%d:%d], s%d offen sc1" % (vr(a0, 4), vE, SA, SA + 3, sT0)])


def fetch(j):
    return ["s_add_u32 s%d, s%d, %d" % (sT3, sE2C, j * 4096),
            "buffer_load_dwordx4 %s, v%d, s[%d:%d], s%d offen sc1" % (vr(PB + 4 * (j - 1), 4), vE, SA, SA + 3, sT3)]


extra = {m: [] for m in range(128)}
vM2, vTM2 = NM[1], NM[1] + 1
poll2 = "buffer_load_dword v%%d, v%d, s[%d:%d], 0 offen sc1" % (vP2, SA, SA + 3)
extra[1] += ["s_lshl_b32 s%d, s%d, 7" % (sT0, sWAVE), "s_add_u32 s%d, s%d, 1024" % (sT0, sT0),
             "v_lshl_add_u32 v%d, v0, 2, s%d" % (vP2, sT0)]
extra[2] += ["v_lshlrev_b32 v1, 2, v0", "v_xor_b32 v1, s%d, v1" % sWGL, "v_lshl_add_u32 v%d, v1, 11, v%d" % (vM2, vP2)]
extra[3] += ["s_lshl_b32 s%d, s%d, 11" % (sT0, sWGL), "v_add_u32 v%d, s%d, v%d" % (vP2, sT0, vP2), "v_subrev_u32 v1, 1, v0"]
extra[4] += ["v_cmp_gt_u32 vcc, 7, v1", "v_bfrev_b32 v1, 1", "s_nop 0"]
extra[5] += ["v_cndmask_b32 v%d, v1, v%d, vcc" % (vP2, vP2), "v_cndmask_b32 v%d, v1, v%d, vcc" % (vM2, vM2)]
extra[6] += ["s_mov_b32 s%d, 0x3f80" % sLO, "s_mov_b32 s%d, 0x3f800000" % sHI]
late = Block()
late("s_lshl_b32 s%d, s%d, %d" % (sT0, sHN, WSH))
late("s_and_b32 s%d, s%d, %d" % (sT1, sG, (1 << (WSH - 5)) - 1))
late("s_lshl_b32 s%d, s%d, 5" % (sT1, sT1))
late("s_add_u32 s%d, s%d, s%d" % (sOFF, sT0, sT1))
if WSH < 8:
    late("s_lshr_b32 s%d, s%d, %d" % (sT1, sG, WSH - 5))
    late("s_lshl_b32 s%d, s%d, %d" % (sT1, sT1, WSH + 2))
    late("s_add_u32 s%d, s%d, s%d" % (sOFF, sOFF, sT1))
late("s_mul_i32 s%d, s%d, 114688" % (sT0, sB))
srd(late, SB, sOUT, sT0, "114688")
late("s_lshl_b32 s%d, s%d, 2" % (sT0, sB))
late("s_add_u32 s%d, s%d, s%d" % (sT0, sT0, sHN))
late("s_lshl_b32 s%d, s%d, 18" % (sT0, sT0))
late("s_lshl_b32 s%d, s%d, 10" % (sT1, sWAVE))
late("s_add_u32 s%d, s%d, s%d" % (sT0, sT0, sT1))
late("s_add_u32 s%d, s%d, %d" % (sE2P, sT0, E2_OFF))
late("s_lshl_b32 s%d, s%d, 15" % (sT1, sG))
late("s_add_u32 s%d, s%d, s%d" % (sE2C, sE2P, sT1))
li = [i.text for i in late.ins]
k_ = li.index([x for x in li if x.startswith("s_mul_i32")][0])
extra[7] += li[:k_]
extra[8] += li[k_:k_ + 5]
extra[9] += li[k_ + 5:k_ + 9]
extra[10] += li[k_ + 9:]
for p, base in ((1, STG + 32768), (2, XREG), (3, 0)):
    for nt in range(4):
        extra[32 * p - 14 + nt].append("v_add_u32 v%d, %d, v%d" % (AREG[p] + nt, base, aO2 + nt) if base else
                                       "v_mov_b32 v%d, v%d" % (AREG[p] + nt, aO2 + nt))
for i, nt in enumerate((1, 2, 3)):
    base = 104 + 8 * i
    for k_, j in enumerate((2 * nt, 2 * nt + 1)):
        for d_, part in enumerate(send(j)):
            extra[base + 2 + d_ + 3 * k_] += part
for p in (1, 2):
    for f in range(8):
        extra[32 * p - 16 + 2 * f].append(uncounted(sib_load(p, f)) if f < NEARLY else sib_load(p, f))
for f in range(8):
    extra[72 + 2 * f].append(uncounted(sib_load(3, f)))
extra[38].append(pollld)
extra[62].append(pollld)
t(pollld)
stamp(t, 6)
cst(t, 3)
for m in range(128):
    if m == OPT["fat"]:
        t("s_barrier")
    if m == OPT["flagat"]:
        cst(t, 4)
        t("s_waitcnt vmcnt(0)")
        cst(t, 5)
        t("s_cmp_lg_u32 s%d, 0x%x" % (sE1F, OOB))
        t("s_cbranch_scc1 L_flgf")
        t(flag + " sc1")
        t("s_branch L_flgj")
        t("L_flgf:")
        t.add([uncounted(flag + OPT["ffl"])])
        t("L_flgj:")
        stamp(t, 8)
    if OPT["fine"] and m in (33, 41, 48):
        t("s_memtime s[%d:%d]" % ({33: 70, 41: 72, 48: 74}[m], {33: 71, 41: 73, 48: 75}[m]))
    if m in (16, 48, 72):
        t("s_waitcnt vmcnt(%d)" % (1 if m == 16 else 0))
        try_head(t, {16: 1, 48: 2, 72: 3}[m])
    if m in (24, 56, 88):
        need_head(t, m // 32 + 1)
        cst(t, 6 + m // 32)
        if m == 24:
            stamp(t, 7)
        if m == 88:
            stamp(t, 9)
    o_mfma(t, m, extra[m])
stamp(t, 10)
cst(t, 9)
for part in send(1):
    t.add(part)
t(poll2 % vTM)
t("s_waitcnt vmcnt(1)")
t("buffer_store_dword v%d, v%d, s[%d:%d], 0 offen sc1" % (NM[0], vM2, SA, SA + 3))
stamp(t, 11)
cst(t, 10)
t(poll2 % vTM2)
t("s_mov_b32 s%d, 0x%x" % (sCNT, SPIN))
t("s_waitcnt vmcnt(2)")
t("L_poll2:")
t("v_cmp_eq_u32 vcc, 1, v%d" % vTM)
t("s_cmp_eq_u32 vcc_lo, 0xfe")
t("s_cbranch_scc1 L_poll2e")
t.add([uncounted(poll2 % vTM)])
t("s_waitcnt vmcnt(1)")
t.add([uncounted("v_cmp_eq_u32 vcc, 1, v%d" % vTM2)])
t("s_nop 0")
t("s_cmp_eq_u32 vcc_lo, 0xfe")
t("s_cbranch_scc1 L_poll2e")
t.add([uncounted(poll2 % vTM2)])
t("s_sub_u32 s%d, s%d, 1" % (sCNT, sCNT))
t("s_waitcnt vmcnt(1)")
t("s_cbranch_scc0 L_poll2")
t("L_poll2e:")
stamp(t, 12)
cst(t, 11)
for j in range(1, 8):
    t.add(fetch(j))
for j in range(1, 8):
    for i in range(4):
        p = PB + 4 * (j - 1) + i
        t("v_dot2_f32_bf16 v%d, v%d, s%d, v%d" % (ACC + 2 * i, p, sLO, ACC + 2 * i))
        t("v_dot2_f32_bf16 v%d, v%d, s%d, v%d" % (ACC + 2 * i + 1, p, sHI, ACC + 2 * i + 1))
t("s_nop 2")
for j in range(4):
    t("v_cvt_pk_bf16_f32 v%d, v%d, v%d" % (ACC + 8 + j, ACC + 2 * j, ACC + 2 * j + 1))
t("buffer_store_dwordx4 %s, v%d, s[%d:%d], s%d offen" % (vr(ACC + 8, 4), vOUT, SB, SB + 3, sOFF))
if STAMPS:
    cst(t, 12)
    t("s_waitcnt vmcnt(0)")
    cst(t, 13)
    stamp(t, 13)
    if STAMPS not in (6, 10):
        t("s_memtime s[94:95]")
    t("s_waitcnt lgkmcnt(0)")
    t("s_sub_u32 s%d, s94, s92" % (sSTAMP + 28))
    t("s_getreg_b32 s%d, hwreg(HW_REG_XCC_ID, 0, 4)" % (sSTAMP + 30))
    t("s_getreg_b32 s%d, hwreg(HW_REG_HW_ID)" % sT0)
    t("s_lshl_b32 s%d, s%d, 4" % (sT0, sT0))
    t("s_or_b32 s%d, s%d, s%d" % (sSTAMP + 30, sSTAMP + 30, sT0))
    for i in range(16):
        t("v_mov_b32 v%d, s%d" % (ACC + 16 + i, sSTAMP + 2 * i))
    t("s_lshl_b32 s%d, s2, 2" % sT0)
    t("s_add_u32 s%d, s%d, s%d" % (sT0, sT0, sWAVE))
    t("s_lshl_b32 s%d, s%d, 6" % (sT0, sT0))
    t("s_add_u32 s%d, s%d, %d" % (sT0, sT0, ST_OFF))
    t("v_mov_b32 v1, 0")
    t("s_mov_b64 exec, 1")
    for i in range(4):
        t("buffer_store_dwordx4 %s, v1, s[%d:%d], s%d offen offset:%d" % (vr(ACC + 16 + 4 * i, 4), SA, SA + 3, sT0, 16 * i))
t("L_end:")
t("s_endpgm")
t.finish(hist=tA.ins, vmq=vmqA)
if OPT["single"]:
    pad_hazards(t.ins[:60], hist=tB.ins, check_only=True, where="join from the one-block path")
blocks += side
blocks.append(Block("seldom taken"))
blocks[-1]("L_codeend:")
blocks += rare

hdr = open("standalone__mha_block_cached__near_ridge.s.ref").read().split("; Override launch")[0]
out = [hdr.rstrip()]
out.append("""; Fused Q projection + attention + output projection, one workgroup (8 waves) per (batch, head), one per CU.
;   over the eight groups (partial sums exchanged through d_ws).""")
out.append("; @launch grid=(256,1,1) block=(512,1,1) lds=163840")
out.append('.amdgcn_target "amdgcn-amd-amdhsa--gfx950"')
out.append(".text")
out.append(".globl " + KNAME)
out.append(".p2align 8")
out.append(".type %s,@function" % KNAME)
out.append(KNAME + ":")
for b in blocks:
    out.append("; ---- %s ----" % b.name)
    out.append(b.text())
out.append(".p2align 8")
out.append(".fill 64, 4, 0xbf800000")
out.append('.section .rodata,"a"')
out.append(".p2align 6")
out.append(".amdhsa_kernel " + KNAME)
out.append("""  .amdhsa_next_free_vgpr 256
  .amdhsa_next_free_sgpr 102
  .amdhsa_accum_offset 256
  .amdhsa_group_segment_fixed_size 0
  .amdhsa_kernarg_size 64
  .amdhsa_user_sgpr_count 2
  .amdhsa_user_sgpr_kernarg_segment_ptr 1
  .amdhsa_system_sgpr_workgroup_id_x 1
.end_amdhsa_kernel""")
print("\n".join(out))
```

```python
import sys, struct, math
from asmgen import *

OPT = dict(stamps=0, nt_kv="nt", nt_q="", nt_wo="", wopf=0, spf=0, spf0=0, al=0, al2=0, alq=-1, alo=-1, cprio=0, e1pf=-1, tlb=0, pre_k=1, pre_v=1, qs=0, touch=0, tfl="", ffl="", fine=0, st1="", ld1="sc1", thr=8.0, force_rescale=0, codepf=1, fast=1,
           early="0.1.2.3", k_at="5.6.8.99", v_at="6.7.8.99", thr0=8, rotmask=3, fat=6, flagat=12, single=1,
           noload=0, map=0, rot=0, wseg=256)
for a in sys.argv[1:]:
    k, v = a.split("=")
    OPT[k] = type(OPT[k])(v) if not isinstance(OPT[k], str) else v.replace("_", " ").strip()
STAMPS = OPT["stamps"]
KNAME = "standalone__mha_block_cached__near_ridge_kernel"


def f32(x):
    return "0x%08x" % struct.unpack("<I", struct.pack("<f", x))[0]


CSC = math.log2(math.e) / math.sqrt(128.0)
M16 = "v_mfma_f32_16x16x32_bf16"
M32 = "v_mfma_f32_32x32x16_bf16"
OOB = 0x40000000
SPIN = 0x100000

KRING, VRING, STG, XREG = 0, 49152, 98304, 32768
E1_OFF, E2_OFF, ST_OFF = 0x100000, 0x900000, 0x4000000
sX, sK, sV, sWQ, sWO, sOUT, sDBG, sWS = 4, 6, 8, 10, 12, 14, 16, 18
sWAVE, sG, sB, sHN, sH, sWGL = 20, 21, 22, 23, 24, 25
sBEG, sEND = 26, 27
SA, SB, SC = 28, 32, 36
sOFF, sLDS, sCNT, sT0, sT1, sT2 = 40, 41, 42, 43, 44, 45
sCS, sDEL, sE1, sE2P, sE2C, sTHR = 46, 48, 49, 50, 51, 52
sT3, sTABK, sTABV, sDELV = 53, 54, 55, 56
sP, sP4, sE1F, sE1F4, sLO, sHI = 57, 58, 59, 60, 61, 62
sNXT, sA, sVM, sLIM = 54, 55, 56, 57
sSTAMP = 64
vP2, vP1, vE, vLO, vTM, vOUT = 2, 3, 4, 5, 6, 7
aK, aW, aV = 8, 12, 16
NM = (24, 28)
ACC, QF, S0, S1, KF, VF, XB = 32, 96, 128, 144, 160, 192, 224
PK = XB
vL = (232, 236)
vM1, vINFO, vINF, ONES, vDUM = 240, 242, 243, 244, 251
aWq, aXq = 96, 104
aO1, aO2, aO3 = aK, aW, aV
OB = PB = QF


def cst(b, idx):
    if STAMPS == 7 and OPT["fine"] and 3 <= idx <= 5:
        return
    if STAMPS == 7:
        b("s_memtime s[%d:%d]" % (sSTAMP + 2 * idx, sSTAMP + 2 * idx + 1))


def stamp(b, idx):
    if STAMPS == 7:
        if idx == 5:
            b("s_memrealtime s[%d:%d]" % (sSTAMP + 2, sSTAMP + 3))
    elif STAMPS == 9:
        if idx in (1, 2, 3, 13):
            b("s_memrealtime s[%d:%d]" % (sSTAMP + 2 * idx, sSTAMP + 2 * idx + 1))
            b("s_waitcnt lgkmcnt(0)")
    elif STAMPS == 8:
        if idx in (3, 5, 10, 13):
            b("s_memrealtime s[%d:%d]" % (sSTAMP + 2 * idx, sSTAMP + 2 * idx + 1))
    elif STAMPS:
        b("s_memrealtime s[%d:%d]" % (sSTAMP + 2 * idx, sSTAMP + 2 * idx + 1))
        b("s_waitcnt lgkmcnt(0)")


def srd(b, dst, ptr, off_sreg, size):
    if off_sreg is None:
        b("s_mov_b32 s%d, s%d" % (dst, ptr))
        b("s_mov_b32 s%d, s%d" % (dst + 1, ptr + 1))
    else:
        b("s_add_u32 s%d, s%d, s%d" % (dst, ptr, off_sreg))
        b("s_addc_u32 s%d, s%d, 0" % (dst + 1, ptr + 1))
    b("s_mov_b32 s%d, %s" % (dst + 2, size))
    b("s_mov_b32 s%d, 0x20000" % (dst + 3))


def dma_group(b, S, voffs, soff, flags, n=4):
    for p in range(n):
        o = " offset:%d" % (p * 1024) if p else ""
        b("buffer_load_dwordx4 v%d, s[%d:%d], s%d offen%s %s lds" % (voffs[p], S, S + 3, soff, o, flags))


def loop_begin(b, label, n):
    b("s_mov_b32 s%d, %d" % (sCNT, n))
    b(label + ":")


def loop_end(b, label):
    b("s_sub_u32 s%d, s%d, 1" % (sCNT, sCNT))
    b("s_cmp_lg_u32 s%d, 0" % sCNT)
    b("s_cbranch_scc1 " + label)


def spread(items, counts):
    out, k = [], 0
    for n in counts:
        out.append(items[k:k + n])
        k += n
    assert k == len(items)
    return out


def uncounted(x):
    i_ = parse(x)
    i_.kind = "comment"
    i_.n = 0
    return i_


blocks = []


def new(name):
    b = Block(name)
    blocks.append(b)
    return b


e = new("entry: workgroup -> (batch b, head group g, head hn in group); waves 0-3 compute, 4-7 load")
e("L_start:")
e("s_cmp_ge_u32 s2, 256")
e("s_cbranch_scc1 L_end")
e("s_load_dwordx16 s[4:19], s[0:1], 0")
if STAMPS:
    e("s_memrealtime s[%d:%d]" % (sSTAMP, sSTAMP + 1))
    e("s_memtime s[92:93]")
e("v_lshrrev_b32 v1, 6, v0")
e("v_and_b32 v0, 63, v0")
e("v_readfirstlane_b32 s%d, v1" % sWAVE)
e("s_and_b32 s%d, s2, 7" % sG)
if OPT["map"] == 0:
    e("s_lshr_b32 s%d, s2, 5" % sB)
    e("s_lshr_b32 s%d, s2, 3" % sHN)
    e("s_and_b32 s%d, s%d, 3" % (sHN, sHN))
else:
    e("s_lshr_b32 s%d, s2, 6" % sHN)
    e("s_lshr_b32 s%d, s2, 3" % sB)
    e("s_and_b32 s%d, s%d, 7" % (sB, sB))
e("s_lshl_b32 s%d, s%d, 2" % (sH, sG))
e("s_add_u32 s%d, s%d, s%d" % (sH, sH, sHN))
e("s_lshl_b32 s%d, s%d, 5" % (sWGL, sB))
e("s_add_u32 s%d, s%d, s%d" % (sWGL, sWGL, sH))
e("s_cmp_lt_u32 s%d, 4" % sWAVE)
e("s_cbranch_scc1 L_compute")
e("v_lshrrev_b32 v1, 4, v0")
e("v_and_b32 v3, 15, v0")
e("s_cmp_lt_u32 s%d, 6" % sWAVE)
e("s_cbranch_scc1 L_ldkv")
e.finish()

WOV = [14, 15, 16, 17]
WSH = {256: 8, 128: 7, 64: 6}[OPT["wseg"]]


def wo_setup(b):
    b("v_lshlrev_b32 v2, 2, v1")
    b("v_xor_b32 v2, v2, v3")
    if WSH < 8:
        b("v_lshrrev_b32 v4, %d, v2" % (WSH - 4))
        b("v_and_b32 v2, %d, v2" % ((1 << (WSH - 4)) - 1))
        b("v_lshl_add_u32 v2, v4, %d, v2" % (WSH - 2))
    b("v_lshlrev_b32 v2, 4, v2")
    b("v_lshl_add_u32 v14, v1, 10, v2")
    b("v_add_u32 v15, 3072, v14")
    b("v_add_u32 v16, 6144, v14")
    b("v_add_u32 v17, 9216, v14")
    b("s_lshl_b32 s%d, s%d, 19" % (sT0, sG))
    b("s_lshl_b32 s%d, s%d, %d" % (sT1, sHN, WSH))
    b("s_add_u32 s%d, s%d, s%d" % (sT0, sT0, sT1))
    b("s_sub_u32 s%d, 0x400000, s%d" % (sT1, sT0))
    srd(b, SB, sWO, sT0, "s%d" % sT1)


def kv_tile(b, voffs, skip=False):
    if skip:
        return
    b("s_mov_b32 m0, s%d" % sLDS)
    b("s_add_u32 s%d, s%d, 4096" % (sT0, sLDS))
    dma_group(b, SA, voffs, sOFF, OPT["nt_kv"])
    b("s_mov_b32 m0, s%d" % sT0)
    b("s_add_u32 s%d, s%d, 4096" % (sOFF, sOFF))
    dma_group(b, SA, voffs, sOFF, OPT["nt_kv"])
    b("s_add_u32 s%d, s%d, 4096" % (sOFF, sOFF))
    if OPT["rot"]:
        b("s_and_b32 s%d, s%d, 0x3ffff" % (sOFF, sOFF))
    b("s_add_u32 s%d, s%d, 8192" % (sLDS, sLDS))
    b("s_cmp_eq_u32 s%d, s%d" % (sLDS, sEND))
    b("s_cselect_b32 s%d, s%d, s%d" % (sLDS, sBEG, sLDS))


def first_tile(b):
    if not OPT["rot"]:
        b("s_mov_b32 s%d, 0" % sOFF)
        return
    b("s_mul_i32 s%d, s%d, %d" % (sOFF, sWGL, OPT["rot"]))
    b("s_and_b32 s%d, s%d, 31" % (sOFF, sOFF))
    b("s_lshl_b32 s%d, s%d, 13" % (sOFF, sOFF))


def wo_tile(b):
    b("s_mov_b32 m0, s%d" % sLDS)
    b("s_add_u32 s%d, s%d, 4096" % (sT0, sLDS))
    dma_group(b, SB, WOV, sOFF, OPT["nt_wo"])
    b("s_mov_b32 m0, s%d" % sT0)
    b("s_add_u32 s%d, s%d, 16384" % (sOFF, sOFF))
    dma_group(b, SB, WOV, sOFF, OPT["nt_wo"])
    b("s_add_u32 s%d, s%d, 16384" % (sOFF, sOFF))


def wo3_tile(b):
    b("s_add_u32 s%d, s%d, 2" % (sT1, sNXT))
    b("s_and_b32 s%d, s%d, 3" % (sT1, sT1))
    b("s_lshl_b32 s%d, s%d, 13" % (sLDS, sT1))
    b("s_xor_b32 s%d, s%d, 3" % (sOFF, sHN))
    b("s_lshl_b32 s%d, s%d, 2" % (sOFF, sOFF))
    b("s_add_u32 s%d, s%d, s%d" % (sOFF, sOFF, sT1))
    b("s_lshl_b32 s%d, s%d, 15" % (sOFF, sOFF))
    wo_tile(b)


def tiles(b, label, voffs, n):
    if n > 1:
        b("s_mov_b32 s%d, %d" % (sT3, n))
        b(label + ":")
        kv_tile(b, voffs)
        b("s_sub_u32 s%d, s%d, 1" % (sT3, sT3))
        b("s_cmp_lg_u32 s%d, 0" % sT3)
        b("s_cbranch_scc1 " + label)
    elif n:
        kv_tile(b, voffs)


def q_phase_kv(b, tag, voffs, txt, hooks):
    early = [int(x) for x in OPT["early"].split(".")]
    at = [int(x) for x in txt.split(".")]
    assert max(early) <= at[0] and at == sorted(at) and at[2] >= 6
    b("s_add_u32 s%d, s%d, s%d" % (sT1, sB, sHN))
    b("s_and_b32 s%d, s%d, 3" % (sT1, sT1))
    b("s_lshl_b32 s%d, s%d, 2" % (sT1, sT1))
    b("s_lshr_b32 s%d, %d, s%d" % (sT1, sum(x << (4 * i) for i, x in enumerate(early)), sT1))
    b("s_and_b32 s%d, s%d, 15" % (sCNT, sT1))
    SPF = OPT["spf"]
    npre = OPT["pre_" + tag]
    tiles(b, "L_%spre" % tag, voffs, npre)

    def touch():
        if SPF:
            for i in range(SPF):
                b("s_load_dword s63, s[60:61], 0x%x" % (128 * i))
            b("s_add_u32 s60, s60, %d" % (128 * SPF))
            b("s_addc_u32 s61, s61, 0")
    if SPF:
        b("s_lshl_b32 s%d, s%d, 19" % (sT0, sG))
        b("s_lshr_b32 s%d, s2, 3" % sT1)
        b("s_lshl_b32 s%d, s%d, 14" % (sT1, sT1))
        b("s_add_u32 s%d, s%d, s%d" % (sT0, sT0, sT1))
        if tag == "v":
            b("s_add_u32 s%d, s%d, 8192" % (sT0, sT0))
        b("s_add_u32 s60, s%d, s%d" % (sWO, sT0))
        b("s_addc_u32 s61, s%d, 0" % (sWO + 1))
        if OPT["spf0"]:
            touch()
    nt_ = [64 // SPF - OPT["spf0"] if SPF else 0]
    lo, hi = min(early), max(early)
    assert not SPF or (lo == 0 and nt_[0] >= hi + 1)
    for i in range(lo):
        b("s_barrier")
        b.add(hooks.get(i, []))
    assert all(x > hi or x == hi for x in at) and all(k <= lo or k > hi for k in hooks)
    b("s_mov_b32 s%d, %d" % (sT2, lo))
    b("L_%se:" % tag)
    b("s_barrier")
    if lo in hooks:
        b("s_cmp_lg_u32 s%d, %d" % (sT2, lo))
        b("s_cbranch_scc1 L_%seh" % tag)
        b.add(hooks[lo])
        b("L_%seh:" % tag)
    touch()
    nt_[0] -= hi + 1
    b("s_cmp_lg_u32 s%d, s%d" % (sCNT, sT2))
    b("s_cbranch_scc1 L_%sen" % tag)
    b.add(hooks.get(100, []))
    tiles(b, "L_%sei" % tag, voffs, 2 - npre)
    b("L_%sen:" % tag)
    b("s_add_u32 s%d, s%d, 1" % (sT2, sT2))
    b("s_cmp_le_u32 s%d, %d" % (sT2, hi))
    b("s_cbranch_scc1 L_%se" % tag)
    tiles(b, "L_%sq%d" % (tag, hi), voffs, at.count(hi))
    for i in range(hi + 1, 8):
        b("s_barrier")
        b.add(hooks.get(i, []))
        if nt_[0] > 0:
            touch()
            nt_[0] -= 1
        tiles(b, "L_%sq%d" % (tag, i), voffs, at.count(i))
    if tag == "k":
        b("s_waitcnt vmcnt(%d)" % (8 * sum(x < 8 for x in at)))
    assert nt_[0] <= 0
    b("s_barrier")
    tiles(b, "L_%sq8" % tag, voffs, at.count(8))
    return 2 + sum(x <= 8 for x in at)


def att_phase(b, tag, voffs, nxt, lead, f1, f2, tend, sw_at, sw_reg, sw_val):
    sT = sCNT
    stamps = STAMPS == 1 and tag == "v"
    last = 35 if tag == "k" else 31
    b("s_mov_b32 s%d, 0" % sT)
    b("s_mov_b32 s%d, %d" % (sNXT, nxt))
    b("L_%sd:" % tag)
    b("s_sub_u32 s%d, s%d, s%d" % (sA, sNXT, sT))
    for a_ in (1, 2, 3, 4, 5):
        b("s_cmp_eq_u32 s%d, %d" % (sA, lead + 1 + a_))
        b("s_cbranch_scc1 L_%sd%d" % (tag, a_))
    b("s_waitcnt vmcnt(0)")
    for a_ in range(1, 6):
        b("L_%sd%d:" % (tag, a_))
        b("s_waitcnt vmcnt(%d)" % (8 * a_))
    if stamps:
        b("s_memrealtime s[60:61]")
        b("s_waitcnt lgkmcnt(0)")
    b("s_barrier")
    if stamps:
        b("s_memrealtime s[62:63]")
        b("s_waitcnt lgkmcnt(0)")
        b("s_mov_b32 m0, s%d" % sT)
        b("s_nop 0")
        b("v_writelane_b32 v20, s60, m0")
        b("v_writelane_b32 v21, s62, m0")
    b("s_getreg_b32 s%d, hwreg(HW_REG_IB_STS, 22, 2)" % sA)
    b("s_getreg_b32 s%d, hwreg(HW_REG_IB_STS, 0, 4)" % sVM)
    b("s_lshl_b32 s%d, s%d, 4" % (sA, sA))
    b("s_or_b32 s%d, s%d, s%d" % (sVM, sVM, sA))
    b("L_%sdi:" % tag)
    b("s_cmp_le_u32 s%d, 21" % sNXT)
    b("s_cselect_b32 s%d, %d, %d" % (sLIM, f1, f2))
    b("s_add_u32 s%d, s%d, s%d" % (sLIM, sLIM, sT))
    b("s_min_u32 s%d, s%d, %d" % (sLIM, sLIM, last))
    b("s_cmp_gt_u32 s%d, s%d" % (sNXT, sLIM))
    b("s_cbranch_scc1 L_%sdn" % tag)
    b("s_cmp_le_u32 s%d, %d" % (sVM, OPT["thr0"]))
    b("s_cbranch_scc1 L_%sdg" % tag)
    b("s_add_u32 s%d, s%d, %d" % (sLIM, sT, lead + 1))
    b("s_cmp_gt_u32 s%d, s%d" % (sNXT, sLIM))
    b("s_cbranch_scc1 L_%sdn" % tag)
    b("L_%sdg:" % tag)
    if last > 31:
        b("s_cmp_ge_u32 s%d, 32" % sNXT)
        b("s_cbranch_scc1 L_kdw")
    b("s_cmp_eq_u32 s%d, %d" % (sNXT, sw_at))
    b("s_cselect_b32 s%d, %d, s%d" % (sw_reg, sw_val, sw_reg))
    kv_tile(b, voffs, OPT["noload"] & 1)
    b("L_%sdj:" % tag)
    b("s_add_u32 s%d, s%d, 1" % (sNXT, sNXT))
    b("s_add_u32 s%d, s%d, 8" % (sVM, sVM))
    b("s_branch L_%sdi" % tag)
    if last > 31:
        b("L_kdw:")
        wo3_tile(b)
        b("s_branch L_kdj")
    b("L_%sdn:" % tag)
    b("s_add_u32 s%d, s%d, 1" % (sT, sT))
    b("s_cmp_lt_u32 s%d, %d" % (sT, tend))
    b("s_cbranch_scc1 L_%sd" % tag)


b = new("K loader")
b(".p2align 8")
b("L_ldkv:")
b("s_cmp_eq_u32 s%d, 5" % sWAVE)
b("s_cbranch_scc1 L_ldv")
for p in range(4):
    b("v_add_u32 v4, %d, v1" % (4 * p))
    b("v_xor_b32 v4, v4, v3")
    b("v_lshlrev_b32 v4, 4, v4")
    b("v_lshl_add_u32 v%d, v1, 8, v4" % (10 + p))
b("s_lshl_b32 s%d, s%d, 18" % (sT0, sWGL))
b("s_waitcnt lgkmcnt(0)")
srd(b, SA, sK, sT0, "0x40000")
first_tile(b)
b("s_mov_b32 s%d, %d" % (sLDS, KRING))
b("s_mov_b32 s%d, %d" % (sBEG, KRING))
b("s_mov_b32 s%d, %d" % (sEND, KRING + 49152))
KV4 = [10, 11, 12, 13]
hooks = {}
if OPT["wopf"] >= 0:
    b("s_lshl_b32 s%d, s%d, 19" % (sT0, sG))
    b("s_lshr_b32 s%d, s2, 3" % sT1)
    b("s_lshl_b32 s%d, s%d, 14" % (sT1, sT1))
    b("s_add_u32 s%d, s%d, s%d" % (sT0, sT0, sT1))
    srd(b, SC, sWO, sT0, "16384")
    b("v_lshlrev_b32 v18, 7, v0")
    b("v_add_u32 v19, 8192, v18")
    hooks[OPT["wopf"]] = ["buffer_load_dword v20, v18, s[%d:%d], 0 offen" % (SC, SC + 3),
                          "buffer_load_dword v21, v19, s[%d:%d], 0 offen" % (SC, SC + 3)]
b.add(hooks.pop(200, []))
NK0 = q_phase_kv(b, "k", KV4, OPT["k_at"], hooks)
wo_setup(b)
att_phase(b, "k", KV4, NK0, 2, 7, 5, 30, 19, sEND, KRING + 32768)
b("s_barrier")
b("L_k2:")
wo3_tile(b)
b("s_add_u32 s%d, s%d, 1" % (sNXT, sNXT))
b("s_cmp_le_u32 s%d, 35" % sNXT)
b("s_cbranch_scc1 L_k2")
b("s_barrier")
b("s_waitcnt vmcnt(0)")
b("s_barrier")
b("s_endpgm")
b.finish(hist=e.ins)

b = new("V loader")
b(".p2align 8")
b("L_ldv:")
for par in range(2):
    b("v_lshlrev_b32 v4, 1, v1")
    b("v_xor_b32 v4, v4, v3")
    if par:
        b("v_xor_b32 v4, 8, v4")
    b("v_lshlrev_b32 v4, 4, v4")
    b("v_lshl_add_u32 v%d, v1, 8, v4" % (10 + par))
b("s_lshl_b32 s%d, s%d, 18" % (sT0, sWGL))
b("s_waitcnt lgkmcnt(0)")
srd(b, SA, sV, sT0, "0x40000")
first_tile(b)
b("s_mov_b32 s%d, %d" % (sLDS, VRING + 2 * 8192))
b("s_mov_b32 s%d, %d" % (sBEG, VRING))
b("s_mov_b32 s%d, %d" % (sEND, VRING + 49152))
V4 = [10, 11, 10, 11]
srd(b, SC, sWS, None, "0x10000000")
b("v_mov_b32 v4, 0")
b("v_mov_b32 v5, 0")
b("s_lshl_b32 s%d, s%d, 11" % (sT0, sWGL))
b("v_lshlrev_b32 v8, 3, v0")
b("buffer_store_dwordx2 v[4:5], v8, s[%d:%d], s%d offen sc1" % (SC, SC + 3, sT0))
b("buffer_store_dwordx2 v[4:5], v8, s[%d:%d], s%d offen offset:1024 sc1" % (SC, SC + 3, sT0))
b("s_getreg_b32 s%d, hwreg(HW_REG_XCC_ID, 0, 4)" % sT1)
b("s_add_u32 s%d, s%d, 1" % (sT1, sT1))
b("v_mov_b32 v7, s%d" % sT1)
b("s_mov_b64 exec, 1")
b("buffer_store_dword v7, v4, s[%d:%d], s%d offen offset:512 sc1" % (SC, SC + 3, sT0))
b("s_mov_b64 exec, -1")
b("s_lshl_b32 s%d, s%d, 5" % (sT0, sB))
b("s_add_u32 s%d, s%d, s%d" % (SB, sDBG, sT0))
b("s_addc_u32 s%d, s%d, 0" % (SB + 1, sDBG + 1))
b("s_mov_b32 s%d, 1" % (SB + 2))
hooks = {0: ["s_waitcnt vmcnt(%d)" % (8 * OPT["pre_v"]), "s_atomic_add s%d, s[%d:%d], 0x0" % (SB + 2, SB, SB + 1)]}
if OPT["e1pf"] >= 0:
    b("s_lshl_b32 s62, s%d, 15" % sWGL)
    b("s_add_u32 s62, s62, %d" % E1_OFF)
    b("v_lshlrev_b32 v18, 7, v0")
    for i in range(1, 4):
        b("v_add_u32 v%d, %d, v18" % (18 + i, 8192 * i))
    hooks.setdefault(OPT["e1pf"], []).extend(["buffer_load_dword v22, v%d, s[%d:%d], s62 offen" % (18 + i, SC, SC + 3) for i in range(4)])
NV0 = q_phase_kv(b, "v", V4, OPT["v_at"], hooks)
att_phase(b, "v", V4, NV0, 0, 5, 3, 32, 18, sBEG, VRING + 16384)
b("s_barrier")
if STAMPS == 1:
    b("s_lshl_b32 s%d, s2, 9" % sT0)
    b("s_add_u32 s%d, s%d, %d" % (sT0, sT0, ST_OFF + 0x100000))
    b("v_lshlrev_b32 v1, 2, v0")
    b("buffer_store_dword v20, v1, s[%d:%d], s%d offen" % (SC, SC + 3, sT0))
    b("buffer_store_dword v21, v1, s[%d:%d], s%d offen offset:256" % (SC, SC + 3, sT0))
b("s_endpgm")
b.finish(hist=e.ins)


sGST, sKSH, sL0, sL1, sL2, s4K = 54, 55, 56, 57, 58, 59


def q_phase_xw(b):
    def chunk():
        b("s_lshl_b32 s%d, s%d, s%d" % (sOFF, sT2, sKSH))
        b("s_mov_b32 m0, s%d" % sL0)
        b("s_add_u32 s%d, s%d, 1" % (sT2, sT2))
        b("s_and_b32 s%d, s%d, 7" % (sT2, sT2))
        b("s_mov_b32 s%d, -4" % sT3)
        b("L_xwg:")
        if not OPT["noload"] & 2:
            dma_group(b, SA, [10, 11, 12, 13], sOFF, OPT["nt_q"])
        b("s_add_u32 m0, m0, s%d" % s4K)
        b("s_add_u32 s%d, s%d, s%d" % (sOFF, sOFF, sGST))
        b("s_add_u32 s%d, s%d, 1" % (sT3, sT3))
        b("s_cbranch_scc0 L_xwg")
        b("s_mov_b32 s%d, s%d" % (sT3, sL0))
        b("s_mov_b32 s%d, s%d" % (sL0, sL1))
        b("s_mov_b32 s%d, s%d" % (sL1, sL2))
        b("s_mov_b32 s%d, s%d" % (sL2, sT3))
    b("s_setprio 2")
    b("s_cmp_eq_u32 s%d, 7" % sWAVE)
    b("s_cbranch_scc1 L_setw")
    b("v_lshrrev_b32 v5, 3, v0")
    b("v_and_b32 v6, 7, v0")
    b("v_lshrrev_b32 v7, 1, v5")
    b("v_xor_b32 v4, v7, v6")
    b("v_lshlrev_b32 v4, 4, v4")
    b("v_lshl_add_u32 v10, v5, 10, v4")
    b("v_xor_b32 v4, 64, v10")
    b("v_add_u32 v11, %d, v4" % (8192 - 1024))
    b("v_add_u32 v12, %d, v10" % (2 * (8192 - 1024)))
    b("v_add_u32 v13, %d, v4" % (3 * (8192 - 1024)))
    b("s_mul_i32 s%d, s%d, 114688" % (sT0, sB))
    b("s_mov_b32 s%d, 114688" % (SA + 2))
    b("s_mov_b32 s%d, 32768" % sGST)
    b("s_mov_b32 s%d, 7" % sKSH)
    b("s_mov_b32 s%d, %d" % (sL0, STG))
    b("s_waitcnt lgkmcnt(0)")
    b("s_add_u32 s%d, s%d, s%d" % (SA, sX, sT0))
    b("s_addc_u32 s%d, s%d, 0" % (SA + 1, sX + 1))
    b("s_branch L_setj")
    b("L_setw:")
    b("v_lshlrev_b32 v4, 1, v1")
    b("v_xor_b32 v4, v4, v3")
    b("v_lshlrev_b32 v4, 4, v4")
    b("v_lshl_add_u32 v10, v1, 13, v4")
    b("v_add_u32 v11, %d, v10" % (32768 - 1024))
    b("v_xor_b32 v4, 128, v10")
    b("v_add_u32 v12, %d, v4" % (2 * (32768 - 1024)))
    b("v_add_u32 v13, %d, v4" % (3 * (32768 - 1024)))
    b("s_lshl_b32 s%d, s%d, 8" % (sT0, sH))
    b("s_sub_u32 s%d, 0x400000, s%d" % (SA + 2, sT0))
    b("s_mov_b32 s%d, 131072" % sGST)
    b("s_mov_b32 s%d, 19" % sKSH)
    b("s_mov_b32 s%d, %d" % (sL0, STG + 16384))
    b("s_waitcnt lgkmcnt(0)")
    b("s_add_u32 s%d, s%d, s%d" % (SA, sWQ, sT0))
    b("s_addc_u32 s%d, s%d, 0" % (SA + 1, sWQ + 1))
    b("L_setj:")
    b("s_mov_b32 s%d, 0x20000" % (SA + 3))
    b("s_lshl_b32 s%d, s%d, 1" % (sT2, sHN))
    b("s_add_u32 s%d, s%d, s%d" % (sT2, sT2, sB))
    b("s_and_b32 s%d, s%d, %d" % (sT2, sT2, OPT["rotmask"]))
    b("s_movk_i32 s%d, 0x1000" % s4K)
    b("s_add_u32 s%d, s%d, 32768" % (sL1, sL0))
    b("s_sub_u32 s%d, s%d, %d" % (sL2, sL0, STG - XREG))
    b("s_mov_b32 s%d, 8" % sCNT)
    b("s_branch L_xwgo")
    b("L_xw:")
    b("s_waitcnt vmcnt(16)")
    b("s_barrier")
    b("L_xwgo:")
    chunk()
    b("s_sub_u32 s%d, s%d, 1" % (sCNT, sCNT))
    b("s_cmp_eq_u32 s%d, 7" % sCNT)
    b("s_cbranch_scc1 L_xwgo")
    b("s_cmp_lg_u32 s%d, 0" % sCNT)
    b("s_cbranch_scc1 L_xw")
    wo_setup(b)
    b("s_waitcnt vmcnt(16)")
    b("s_barrier")
    b("s_waitcnt vmcnt(0)")
    b("s_barrier")
    b("s_barrier")
    b("s_setprio 0")
    b("s_cmp_eq_u32 s%d, 7" % sWAVE)
    b("s_cbranch_scc1 L_attw")


def wo_trickle(b, tag, blk):
    first = 4 if blk == 0 else 2
    for i in range(first + 1):
        b("s_barrier")
    if tag == "w":
        b("s_lshl_b32 s%d, s%d, 5" % (sT0, sB))
        b("s_add_u32 s%d, s%d, s%d" % (SC, sDBG, sT0))
        b("s_addc_u32 s%d, s%d, 0" % (SC + 1, sDBG + 1))
        b("s_load_dword s%d, s[%d:%d], 0x0 glc" % (SC + 2, SC, SC + 1))
    b("s_xor_b32 s%d, s%d, %d" % (sOFF, sHN, blk))
    b("s_lshl_b32 s%d, s%d, 17" % (sOFF, sOFF))
    b("s_mov_b32 s%d, %d" % (sLDS, STG + blk * 32768))
    loop_begin(b, "L_%s2" % tag, 4)
    wo_tile(b)
    b("s_add_u32 s%d, s%d, 8192" % (sLDS, sLDS))
    for i in range(4):
        b("s_barrier")
    loop_end(b, "L_%s2" % tag)
    if tag == "x" and OPT["tlb"]:
        srd(b, SA, sWS, None, "0x10000000")
        b("s_lshl_b32 s%d, s%d, 15" % (sT0, sWGL))
        b("s_add_u32 s%d, s%d, %d" % (sT0, sT0, E1_OFF))
        b("s_lshl_b32 s%d, s%d, 2" % (sT1, sB))
        b("s_add_u32 s%d, s%d, s%d" % (sT1, sT1, sHN))
        b("s_lshl_b32 s%d, s%d, 3" % (sT1, sT1))
        b("s_add_u32 s%d, s%d, s%d" % (sT1, sT1, sG))
        b("s_lshl_b32 s%d, s%d, 15" % (sT1, sT1))
        b("s_add_u32 s%d, s%d, %d" % (sT1, sT1, E2_OFF))
        b("v_mov_b32 v4, 0")
        b("s_mov_b64 exec, 1")
        b("buffer_load_dword v5, v4, s[%d:%d], s%d offen" % (SA, SA + 3, sT0))
        b("buffer_load_dword v5, v4, s[%d:%d], s%d offen" % (SA, SA + 3, sT1))
        if OPT["tlb"] > 1:
            b("s_mul_i32 s%d, s%d, 114688" % (sT0, sB))
            srd(b, SC, sOUT, sT0, "114688")
            b("s_xor_b32 s%d, s%d, 2" % (sT1, sHN))
            b("s_lshl_b32 s%d, s%d, 8" % (sT1, sT1))
            b("buffer_load_dword v5, v4, s[%d:%d], s%d offen" % (SC, SC + 3, sT1))
        b("s_mov_b64 exec, -1")
    b("s_xor_b32 s%d, s%d, 2" % (sOFF, sHN))
    b("s_lshl_b32 s%d, s%d, 17" % (sOFF, sOFF))
    b("s_add_u32 s%d, s%d, %d" % (sOFF, sOFF, blk * 65536))
    b("s_mov_b32 s%d, %d" % (sLDS, XREG + blk * 16384))
    wo_tile(b)
    b("s_add_u32 s%d, s%d, 8192" % (sLDS, sLDS))
    for i in range(4):
        b("s_barrier")
    wo_tile(b)
    done = first + 20
    if tag == "w":
        for i in range(3):
            b("s_barrier")
        done += 3
        b("s_mov_b32 s%d, 0x%x" % (sCNT, SPIN))
        b("s_branch L_wchk")
        b("L_wpoll:")
        b("s_load_dword s%d, s[%d:%d], 0x0 glc" % (SC + 2, SC, SC + 1))
        b("L_wchk:")
        b("s_waitcnt lgkmcnt(0)")
        b("s_sub_u32 s%d, s%d, 1" % (sCNT, sCNT))
        b("s_cbranch_scc1 L_wpolld")
        b("s_cmp_lt_u32 s%d, 32" % (SC + 2))
        b("s_cbranch_scc1 L_wpoll")
        b("L_wpolld:")
    for i in range(29 - done):
        b("s_barrier")
    b("s_waitcnt vmcnt(0)")
    b("s_barrier")
    b("s_barrier")
    b("s_barrier")
    b("s_endpgm")


bq = Block("x / wq loaders: Q phase")
q_phase_xw(bq)
wo_trickle(bq, "x", 0)
bq("L_attw:")
wo_trickle(bq, "w", 1)
bq.finish(hist=e.ins)
blocks.insert(1, bq)

c = new("compute waves: addresses")
c(".p2align 8")
c("L_compute:")
if OPT["codepf"]:
    c("s_cmp_lg_u32 s%d, 1" % sWAVE)
    c("s_cbranch_scc1 L_nopf")
    c("s_getpc_b64 s[56:57]")
    c("L_pc:")
    c("s_sub_u32 s56, s56, L_pc-L_start")
    c("s_subb_u32 s57, s57, 0")
    c("s_lshr_b32 s%d, s2, 3" % sT0)
    c("s_and_b32 s%d, s%d, 7" % (sT0, sT0))
    c("s_mul_i32 s%d, s%d, ((L_codeend-L_start+1023)/1024)*128" % (sT0, sT0))
    c("v_lshlrev_b32 v1, 7, v0")
    c("v_add_u32 v1, s%d, v1" % sT0)
    c("v_min_u32 v1, L_codeend-L_start-4, v1")
    c("v_mov_b32 v3, s57")
    c("v_add_co_u32 v2, vcc, s56, v1")
    c("s_nop 1")
    c("v_addc_co_u32 v3, vcc, 0, v3, vcc")
    c("v_cmp_gt_u32 vcc, (L_codeend-L_start+1023)/1024, v0")
    c("s_and_saveexec_b64 s[58:59], vcc")
    c("global_load_dword v%d, v[2:3], off" % vDUM)
    c("s_mov_b64 exec, -1")
    c("L_nopf:")
for i in range(4):
    c("v_mov_b32 v%d, 0" % (XB + 28 + i))
c("v_lshrrev_b32 v1, 4, v0")
c("v_and_b32 v2, 15, v0")
c("v_lshrrev_b32 v3, 5, v0")
c("v_and_b32 v4, 1, v1")
c("v_lshl_add_u32 v3, v4, 1, v3")
c("v_xor_b32 v3, v3, v2")
c("v_lshlrev_b32 v3, 4, v3")
c("v_lshl_add_u32 v%d, v2, 8, v3" % aK)
for ks in range(1, 4):
    c("v_xor_b32 v%d, %d, v%d" % (aK + ks, ks << 6, aK))
c("s_lshl_b32 s%d, s%d, 12" % (sT0, sWAVE))
c("s_add_u32 s%d, s%d, %d" % (sT0, sT0, STG))
c("v_lshrrev_b32 v3, 1, v2")
c("v_xor_b32 v3, v3, v1")
c("v_lshlrev_b32 v3, 4, v3")
c("v_lshl_add_u32 v3, v2, 7, v3")
c("v_add_u32 v%d, s%d, v3" % (aXq, sT0))
c("v_xor_b32 v%d, 64, v%d" % (aXq + 1, aXq))
c("v_bfe_u32 v2, v0, 2, 2")
c("v_lshrrev_b32 v3, 2, v0")
c("v_and_b32 v4, 7, v3")
c("v_lshlrev_b32 v4, 5, v4")
c("v_lshl_add_u32 v3, v3, 8, v4")
c("v_and_b32 v4, 3, v0")
c("v_lshl_add_u32 v3, v4, 3, v3")
c("v_add_u32 v%d, %d, v3" % (aV, VRING + 16384))
for db in range(1, 8):
    c("v_xor_b32 v%d, %d, v%d" % (aV + db, db << 5, aV))
c("v_lshl_add_u32 v3, v1, 10, v3")
c("v_add_u32 v%d, %d, v3" % (aWq, STG + 16384))
for db in range(1, 8):
    c("v_xor_b32 v%d, %d, v%d" % (aWq + db, db << 5, aWq))
c("v_mul_u32_u24 v2, 320, v2")
c("v_lshrrev_b32 v3, 5, v0")
c("v_lshl_add_u32 v3, v3, 11, v2")
c("v_and_b32 v4, 1, v1")
c("v_lshl_add_u32 v3, v4, 5, v3")
c("v_and_b32 v4, 1, v0")
c("v_lshl_add_u32 v3, v4, 4, v3")
c("v_bfe_u32 v4, v0, 1, 1")
c("v_lshl_add_u32 v3, v4, 3, v3")
c("s_lshl_b32 s%d, s%d, 5" % (sT0, sG))
c("v_xor_b32 v%d, s%d, v3" % (aO2, sT0))
for nt in range(1, 4):
    c("v_xor_b32 v%d, %d, v%d" % (aO2 + nt, nt << 6, aO2))
c("v_and_b32 v2, 31, v0")
c("s_lshl_b32 s%d, s%d, 5" % (sT0, sWAVE))
c("v_add_u32 v2, s%d, v2" % sT0)
c("v_lshlrev_b32 v%d, 4, v0" % vE)
c("v_cmp_lt_u32 vcc, 111, v2")
c("v_bfrev_b32 v3, 1")
c("v_lshlrev_b32 v2, 10, v2")
c("v_cndmask_b32 v1, 0, v3, vcc")
c("v_or_b32 v%d, v%d, v1" % (vE, vE))
c("v_lshrrev_b32 v1, 5, v0")
c("v_lshl_add_u32 v%d, v1, 4, v2" % vOUT)
c("v_xor_b32 v1, s%d, v0" % sWGL)
c("v_lshlrev_b32 v1, 11, v1")
c("v_cmp_gt_u32 vcc, 4, v0")
c("v_add_u32 v2, 512, v1")
c("s_lshl_b32 s%d, s%d, 7" % (sT0, sWAVE))
c("v_cndmask_b32 v%d, v3, v2, vcc" % vINFO)
c("v_lshl_add_u32 v2, v0, 2, s%d" % sT0)
c("v_add_u32 v1, v1, v2")
c("s_lshl_b32 s%d, s%d, 11" % (sT1, sWGL))
c("v_add_u32 v2, s%d, v2" % sT1)
c("v_subrev_u32 v%d, 1, v0" % vTM)
c("v_cmp_gt_u32 vcc, 3, v%d" % vTM)
c("s_mov_b32 s%d, %s" % (sCS, f32(CSC)))
c("s_mov_b32 s%d, %s" % (sCS + 1, f32(CSC)))
c("v_cndmask_b32 v%d, v3, v1, vcc" % vM1)
c("v_cndmask_b32 v%d, v3, v2, vcc" % vP1)
for i in range(4):
    c("%s %s, %s, %s, 0" % (M32, vr(ACC + 16 * i, 16), vr(XB + 28, 4), vr(XB + 28, 4)))
c("s_mov_b32 s%d, %s" % (sTHR, f32(0.0 if OPT["force_rescale"] else OPT["thr"])))
c("s_waitcnt lgkmcnt(0)")
srd(c, SA, sWS, None, "0x10000000")
c("s_lshl_b32 s%d, s%d, 15" % (sE1, sWGL))
c("s_lshl_b32 s%d, s%d, 13" % (sT0, sWAVE))
c("s_add_u32 s%d, s%d, s%d" % (sE1, sE1, sT0))
c("s_add_u32 s%d, s%d, %d" % (sE1, sE1, E1_OFF))
c("s_mov_b32 s%d, %d" % (sT2, sum(((1, -3, 2)[i % 3] + 3) << (3 * i) for i in range(8))))
c("s_mov_b32 s%d, 8" % sCNT)
if OPT["single"]:
    c("s_cmp_eq_u32 s%d, 3" % sWAVE)
    c("s_cbranch_scc1 L_paths")
c.finish(hist=e.ins)


def k_reads(slot_off):
    return ["ds_read_b128 %s, v%d offset:%d" % (vr(KF + 16 * kb + 4 * ks, 4), aK + ks, slot_off + kb * 4096)
            for ks in range(4) for kb in range(2)]


def v_read(db, u, off):
    return "ds_read_b64_tr_b16 %s, v%d offset:%d" % (vr(VF + 4 * db + 2 * u, 2), aV + db, off + u * 4096)


def ex(S, i):
    return "v_exp_f32 v%d, v%d" % (S + i, S + i)


def cvt(S, j):
    return "v_cvt_pk_bf16_f32 v%d, v%d, v%d" % (PK + j, S + 2 * j, S + 2 * j + 1)


def qk(SN, ks, kb, blk, first):
    d = vr(SN + 8 * blk + 4 * kb, 4)
    cc = d if ks else ("0" if first else vr(NM[blk], 4))
    return "%s %s, %s, %s, %s" % (M16, d, vr(KF + 16 * kb + 4 * ks, 4), vr(QF + 16 * blk + 4 * ks, 4), cc)


def pv(db, blk):
    d = vr(ACC + 32 * blk + 4 * db, 4)
    return "%s %s, %s, %s, %s" % (M16, d, vr(VF + 4 * db, 4), vr(PK + 4 * blk, 4), d)


def sum_mfma(blk):
    return "%s %s, %s, %s, %s" % (M16, vr(vL[blk], 4), vr(ONES, 4), vr(PK + 4 * blk, 4), vr(vL[blk], 4))


def max_tree(dst, S, n):
    r = ["v_max3_f32 v%d, v%d, v%d, v%d" % (dst, S, S + 1, S + 2)]
    for i in range(3, n - 1, 2):
        r.append("v_max3_f32 v%d, v%d, v%d, v%d" % (dst, dst, S + i, S + i + 1))
    r.append("v_max_f32 v%d, v%d, v%d" % (dst, dst, S + n - 1))
    return r


def blk_max(b, S, dst, tmp):
    b.add(max_tree(dst, S, 8))
    for perm in ("v_permlane32_swap_b32", "v_permlane16_swap_b32"):
        b("v_mov_b32 v%d, v%d" % (tmp, dst))
        b("%s v%d, v%d" % (perm, tmp, dst))
        b("v_max_f32 v%d, v%d, v%d" % (dst, tmp, dst))


def weave(b, mfmas, gaps):
    assert len(mfmas) == len(gaps)
    for m_, g in zip(mfmas, gaps):
        b.add([x for x in [m_] + list(g) if x is not None])


AREG = {0: aO1, 1: aO3, 2: aO1, 3: aO3}
SBUF = {1: S0, 2: KF, 3: XB}
SEQ = [(j, f, nt) for j in range(3) for f in range(8) for nt in range(4)]
SEQ += [(3, f, nt) for nt in (1, 2, 3, 0) for f in range(8)]


def wbuf(m):
    return (KF if m < 8 else VF) + 4 * (m & 7)


def w_reads(m):
    if m >= len(SEQ):
        return []
    j, f, nt = SEQ[m]
    ks, y = f >> 1, f & 1
    return ["ds_read_b64_tr_b16 %s, v%d offset:%d" % (vr(wbuf(m) + 2 * u, 2), AREG[j] + nt,
                                                   ks * 8192 + u * 4096 + y * 1024) for u in range(2)]


def bfrag(j, f):
    return OB + 16 * (f & 1) + 4 * (f >> 1) if j == 0 else SBUF[j] + 4 * f


def publish(f, lo, hi, fl):
    return "buffer_store_dwordx4 %s, v%d, s[%d:%d], s%d offen offset:%d %s" % (vr(bfrag(0, f), 4), vE, SA, SA + 3,
                                                                           lo if f < 4 else hi, (f & 3) * 1024, fl)


rare = []


def compute_path(sfx, nb, out):
    B = range(nb)

    def blk(i, x):
        return x if i < nb else None

    def mk(name):
        bb = Block(name + (" (two query blocks)" if nb == 2 else " (one query block: wave 3)"))
        out.append(bb)
        return bb

    def q_reads(s_):
        W = VF if s_ == 0 else S0
        r = [blk(i, "ds_read_b128 %s, v%d offset:%d" % (vr(XB + 8 * s_ + 4 * i, 4), aXq + s_, i * 2048)) for i in range(2)]
        for db in range(8):
            for u in range(2):
                r.append("ds_read_b64_tr_b16 %s, v%d offset:%d" % (vr(W + 4 * db + 2 * u, 2), aWq + db, s_ * 8192 + u * 1024))
        return r

    def q_mfmas(s_):
        W = VF if s_ == 0 else S0
        r = []
        for db in range(8):
            for i in range(2):
                d = vr(ACC + 32 * i + 4 * db, 4)
                r.append(blk(i, "%s %s, %s, %s, %s" % (M16, d, vr(W + 4 * db, 4), vr(XB + 8 * s_ + 4 * i, 4), d)))
        return r

    q0 = mk("Q projection: first reads")
    q0("L_path%s:" % sfx)
    q0("s_barrier")
    stamp(q0, 1)
    if STAMPS == 10:
        q0("s_memtime s[92:93]")
    q0.add([x for x in q_reads(0) if x])
    lgq0, _ = q0.finish(hist=c.ins)
    ql = mk("Q projection")
    if OPT["alq"] >= 0 and nb == 2:
        ql(".p2align 6")
        for _ in range(OPT["alq"]):
            ql("s_nop 0")
    ql("L_q%s:" % sfx)
    tabq = ["s_and_b32 s%d, s%d, 7" % (sDEL, sT2), "s_lshr_b32 s%d, s%d, 3" % (sT2, sT2),
            "s_sub_u32 s%d, s%d, 3" % (sDEL, sDEL), "s_lshl_b32 s%d, s%d, 15" % (sDEL, sDEL)]
    adv = ["v_add_u32 v%d, s%d, v%d" % (r_, sDEL, r_) for r_ in range(aWq, aWq + 10)]
    QS = OPT["qs"]
    gaps = spread(q_reads(1), {0: [2, 1, 2, 1, 2, 1, 1, 1, 1, 1, 1, 1, 1, 1, 1, 0], 1: [2, 2, 1, 2, 1, 2, 1, 2, 1, 2, 1, 1, 0, 0, 0, 0],
                               2: [2, 2, 1, 2, 1, 2, 1, 2, 1, 2, 1, 1, 0, 0, 0, 0]}[QS])
    gaps[1] += tabq[:2]
    gaps[3] += tabq[2:]
    weave(ql, q_mfmas(0), gaps)
    m1 = q_mfmas(1)
    NBQ = {0: 6, 1: 2, 2: 4}[QS]
    if QS:
        tail_ = ql.ins[-4 if nb == 2 else -2:]
        del ql.ins[-len(tail_):]
        k_ = {1: 8, 2: 6}[QS]
        weave(ql, tail_, spread(adv[:k_], ([2, 2, 2, 2] if k_ == 8 else [2, 2, 1, 1]) if nb == 2 else [k_ // 2, k_ // 2]))
        weave(ql, m1[:NBQ], spread(adv[k_:], [1] * NBQ))
    else:
        weave(ql, m1[:6], spread(adv, [2, 2, 2, 2, 1, 1]))
    ql("s_waitcnt lgkmcnt(0)")
    ql("s_barrier")
    if STAMPS == 9:
        ql("s_memrealtime s[88:89]")
        ql("s_waitcnt lgkmcnt(0)")
        for i in range(1, 9):
            ql("s_cmp_eq_u32 s%d, %d" % (sCNT, 9 - i))
            ql("s_cselect_b32 s%d, s88, s%d" % (sSTAMP + 2 * (i + 3), sSTAMP + 2 * (i + 3)))
    weave(ql, m1[NBQ:], spread(q_reads(0), {6: [2, 2, 2, 2, 2, 2, 2, 2, 1, 1], 2: [2, 2, 1, 2, 1, 2, 1, 1, 1, 1, 1, 1, 1, 1],
                                            4: [2, 2, 2, 1, 2, 1, 2, 1, 2, 1, 1, 1]}[NBQ]))
    loop_end(ql, "L_q%s" % sfx)
    lgq1, _ = ql.finish(hist=q0.ins, lgq=lgq0)
    assert STAMPS or lgq1 == lgq0[-len(lgq1):], (lgq0, lgq1)
    pad_hazards(ql.ins, hist=ql.ins, check_only=True, where="q loop back edge")

    q = mk("attention set-up")
    stamp(q, 2)
    if STAMPS == 10:
        q("s_memtime s[94:95]")
    q("s_waitcnt lgkmcnt(0)")
    q.add(k_reads(0))
    q("s_waitcnt vmcnt(0)")

    def conv(ks):
        r = []
        for i in B:
            a0, f0 = ACC + 32 * i + 8 * ks, QF + 16 * i + 4 * ks
            if ks == 0:
                r += ["v_pk_mul_f32 %s, %s, s[%d:%d]" % (vr(a0 + 2 * j, 2), vr(a0 + 2 * j, 2), sCS, sCS + 1) for j in range(4)]
            else:
                r += ["v_mul_f32 v%d, s%d, v%d" % (a0 + j, sCS, a0 + j) for j in range(8)]
            r += ["v_cvt_pk_bf16_f32 v%d, v%d, v%d" % (f0 + j, a0 + 2 * j, a0 + 2 * j + 1) for j in range(4)]
        for i in B:
            f0 = QF + 16 * i + 4 * ks
            r += ["v_permlane16_swap_b32 v%d, v%d" % (f0 + j, f0 + 2 + j) for j in range(2)]
        return r

    k1 = k_reads(8192)
    init = ["v_mov_b32 v%d, 0" % (vL[0] + i) for i in range(8)] + ["v_mov_b32 v%d, 0x3f803f80" % (ONES + i) for i in range(4)]
    q.add(conv(0))
    q.add(init[:4])
    qk0 = [blk(i, qk(S0, ks, kb, i, True)) for ks in range(4) for kb in range(2) for i in range(2)]
    for ks in range(3):
        g = spread(conv(ks + 1), [7, 7, 7, 7] if nb == 2 else [4, 3, 4, 3])
        g[2].insert(0, k1[2 * ks])
        if ks:
            g[0].insert(0, k1[2 * ks - 1])
        weave(q, qk0[4 * ks:4 * ks + 4], g)
    weave(q, qk0[12:], [[k1[5]] + init[4:6], init[6:8], [k1[6]] + init[8:10], init[10:]])
    z = vr(vL[0], 4)
    weave(q, [blk(i >> 1, "%s %s, %s, %s, 0" % (M32, vr(ACC + 16 * i, 16), z, z)) for i in range(4)], [[k1[7]], [], [], []])
    for ks in range(4):
        q("v_add_u32 v%d, 16384, v%d" % (aK + ks, aK + ks))
    if nb == 1:
        for i in range(16):
            q("v_mov_b32 v%d, 0" % (OB + 16 + i))
    chains = []
    for i in B:
        tb = Block()
        blk_max(tb, S0 + 8 * i, *((1, 2) if i == 0 else (vTM, NM[1] + 1)))
        tb("v_sub_f32 v%d, 0, v%d" % (NM[i], 1 if i == 0 else vTM))
        if i == 1 and not OPT["single"]:
            tb("v_min_f32 v%d, s%d, v%d" % (NM[i], sT3, NM[i]))
        for j in range(1, 4):
            tb("v_mov_b32 v%d, v%d" % (NM[i] + j, NM[i]))
        for j in range(8):
            tb("v_add_f32 v%d, v%d, v%d" % (S0 + 8 * i + j, S0 + 8 * i + j, NM[i]))
        chains.append(tb.ins)
    if not OPT["single"]:
        q("s_cmp_eq_u32 s%d, 3" % sWAVE)
        q("s_mov_b32 s%d, %s" % (sT0, f32(3e38)))
        q("s_cselect_b32 s%d, %s, s%d" % (sT3, f32(-1e30), sT0))
    for i in range(max(map(len, chains))):
        q.add([ch[i] for ch in chains if i < len(ch)])
    KSEQ = [1, 2, 0, 1, 2, 0, 1, 2, 0, 1, 0, 1, 0, 1, 0, 0]
    VSEQ = [1, 2, 0, 1, 2, 0, 1, 2, 0, 1, 2, 1, 2, 1, 2, 1]
    for tab, seq in ((sTABK, KSEQ), (sTABV, VSEQ)):
        q("s_mov_b32 s%d, 0x%x" % (tab, sum((seq[i + 1] - seq[i] + 2) << (2 * i) for i in range(15))))
    q("s_mov_b32 s%d, 15" % sCNT)
    if OPT["cprio"]:
        q("s_setprio %d" % OPT["cprio"])
    stamp(q, 3)
    if STAMPS == 6:
        q("s_memtime s[92:93]")
    q.finish(hist=ql.ins)

    def rescale(tag, SN):
        r = Block("the running max rises by more than the threshold: move to the true max (%s)" % tag)
        r("L_resc%s:" % tag)
        r("s_nop 15")
        for i in B:
            blk_max(r, SN + 8 * i, 1, 2)
            r("v_max_f32 v1, 0, v1")
            r("v_sub_f32 v2, 0, v1")
            r("v_exp_f32 v2, v2")
            for j in range(4):
                r("v_sub_f32 v%d, v%d, v1" % (NM[i] + j, NM[i] + j))
            for j in range(8):
                r("v_sub_f32 v%d, v%d, v1" % (SN + 8 * i + j, SN + 8 * i + j))
            for j in range(4):
                r("v_mul_f32 v%d, v%d, v2" % (vL[i] + j, vL[i] + j))
            for j in range(32):
                r("v_mul_f32 v%d, v%d, v2" % (ACC + 32 * i + j, ACC + 32 * i + j))
        r("s_nop 1")
        r("s_branch L_back%s" % tag)
        r.finish()
        rare.append(r)

    def epoch(b, par, kread, adv, tag, head=()):
        S, SN = (S0, S1) if par == 0 else (S1, S0)
        off = par * 8192
        vrd = [v_read(db, u, off) for db in range(8) for u in range(2)]
        kr = k_reads(off) if kread else ["\n".join(w_reads(m)) for m in range(8)]
        b("s_waitcnt lgkmcnt(0)")
        b("s_barrier")
        b.add(head)
        GA = "e0|t0 t1|e1|t2 c0|e2|t3 t4|e3|t5 c1|e4|t6 t7|e5|t8 c2|e6|t9 e7|t10 c3|t11 e8"
        GB = "t12 t13|t14 e9|t15 e10|c4 e11|e12|c5 e13|e14|c6 e15|k0 c7 m0 m1|k1 k2|k3 m2|k4 m3|k5 m4|k6 m5|k7 m6|m7 a|x a|a a"
        mx = max_tree(vTM, SN, 8 * nb) + [None] * 4
        adds = []
        if adv:
            adds = ["v_add_u32 v%d, s%d, v%d" % (aV + i, sDELV, aV + i) for i in range(8)] + \
                   ["v_add_u32 v%d, s%d, v%d" % (aK + i, sDEL, aK + i) for i in range(4)]

        def ins(tok):
            k, n = tok[0], int(tok[1:]) if len(tok) > 1 else 0
            if k == "a":
                return adds.pop(0) if adds else None
            if k == "x":
                return "v_cmp_lt_f32 vcc, s%d, v%d" % (sTHR, vTM)
            return {"e": lambda: blk(n >> 3, ex(S, n)), "t": lambda: vrd[n], "c": lambda: blk(n >> 2, cvt(S, n)),
                    "k": lambda: kr[n], "m": lambda: mx[n]}[k]()
        ga = [[ins(x) for x in g.split()] for g in GA.split("|")]
        if adv:
            for tab, dl, gi in ((sTABV, sDELV, 1), (sTABK, sDEL, 5)):
                ga[gi] += ["s_and_b32 s%d, s%d, 3" % (dl, tab), "s_lshr_b32 s%d, s%d, 2" % (tab, tab)]
                ga[gi + 2] += ["s_sub_u32 s%d, s%d, 2" % (dl, dl), "s_lshl_b32 s%d, s%d, 14" % (dl, dl)]
        weave(b, [blk(i, qk(SN, ks, kb, i, False)) for ks in range(4) for kb in range(2) for i in range(2)], ga)
        order = [pv(db, 0) for db in range(8)] + [sum_mfma(0)] + [blk(1, pv(db, 1)) for db in range(8)] + [blk(1, sum_mfma(1))]
        gb = [[ins(x) for x in g.split()] for g in GB.split("|")]
        gb[-1] += adds[:]
        b("s_waitcnt lgkmcnt(4)")
        weave(b, order[:4], gb[:4])
        b("s_waitcnt lgkmcnt(4)")
        weave(b, order[4:], gb[4:])
        b("s_cbranch_vccnz L_resc%s" % tag)
        b("L_back%s:" % tag)
        rescale(tag, SN)

    lp = mk("attention loop: tiles 0..29")
    if OPT["al"] >= 0 and nb == 2:
        lp(".p2align 6")
        for _ in range(OPT["al"]):
            lp("s_nop 0")
    lp("L_att%s:" % sfx)
    epoch(lp, 0, True, False, "a" + sfx)
    epoch(lp, 1, True, True, "b" + sfx,
          head=["s_nop 0"] * OPT["al2"] + ["s_cmp_lg_u32 s%d, 1" % sCNT, "s_cbranch_scc1 L_noinfo%s" % sfx,
                "buffer_load_dword v%d, v%d, s[%d:%d], 0 offen sc1" % (vINF, vINFO, SA, SA + 3), "L_noinfo%s:" % sfx])
    loop_end(lp, "L_att%s" % sfx)
    lp.finish(hist=q.ins)
    pad_hazards(lp.ins, hist=lp.ins, check_only=True, where="loop back edge")

    t = mk("tiles 30, 31; o = O / l leaves for the other heads of the group")
    if STAMPS == 6:
        t("s_memtime s[94:95]")
        t("s_waitcnt lgkmcnt(0)")
    stamp(t, 4)
    epoch(t, 0, False, False, "c" + sfx, head=["v_add_u32 v%d, %d, v%d" % (aO1 + nt, STG, aO2 + nt) for nt in range(4)])
    S = S1
    for i in range(8 * nb):
        t(ex(S, i))
    for j in range(4 * nb):
        t(cvt(S, j))
    for i in B:
        t(sum_mfma(i))
    t("v_readlane_b32 s%d, v%d, 0" % (sT0, vINF))
    t("v_mov_b32 v%d, 1" % NM[0])
    t("s_add_u32 s%d, s%d, 4096" % (sT2, sE1))
    t("v_cmp_eq_u32 vcc, s%d, v%d" % (sT0, vINF))
    t("s_nop 0")
    t("s_and_b32 s%d, vcc_lo, 15" % sT0)
    t("s_cmp_eq_u32 s%d, %d" % (sT0, 15 if OPT["fast"] else 16))
    t("s_cselect_b32 s%d, s%d, 0x%x" % (sE1F, sE1, OOB))
    t("s_add_u32 s%d, s%d, 4096" % (sE1F4, sE1F))
    if not OPT["single"]:
        for i in B:
            t("v_max_f32 v%d, %s, v%d" % (vL[i], f32(1e-30), vL[i]))
    for i in B:
        t("v_rcp_f32 v%d, v%d" % (vL[i], vL[i]))
    for i in B:
        for j in range(4):
            t("v_pk_mul_f32 %s, %s, %s op_sel_hi:[1,0]" % (vr(S + 8 * i + 2 * j, 2), vr(S + 8 * i + 2 * j, 2), vr(vL[i], 2)))
    for i in B:
        for j in range(16):
            a0 = ACC + 32 * i + 2 * j
            t("v_pk_mul_f32 %s, %s, %s op_sel_hi:[1,0]" % (vr(a0, 2), vr(a0, 2), vr(vL[i], 2)))
    for j in range(4 * nb):
        t(cvt(S, j))
    t("s_waitcnt lgkmcnt(0)")
    t("s_barrier")
    stamp(t, 5)
    cst(t, 2)
    vrd = [v_read(db, u, 8192) for db in range(8) for u in range(2)]

    def pack(ks):
        return [blk(i, "v_cvt_pk_bf16_f32 v%d, v%d, v%d" % (OB + 16 * i + 4 * ks + j, ACC + 32 * i + 8 * ks + 2 * j, ACC + 32 * i + 8 * ks + 2 * j + 1))
                for i in range(2) for j in range(4)]

    def swaps(ks):
        return ["v_permlane16_swap_b32 v%d, v%d" % (OB + 4 * ks + j, OB + 16 + 4 * ks + j) for j in range(4)]

    t.add(vrd[0:8])
    p0, p1, p2 = pack(0), pack(1), pack(2)
    g = [vrd[8:10], vrd[10:12], vrd[12:14], vrd[14:16], [], [], p0[0:2], p0[2:4], p0[4:6], p0[6:8], p1[0:2] + swaps(0)[0:1],
         p1[2:4] + swaps(0)[1:2], p1[4:6] + swaps(0)[2:3], p1[6:8] + swaps(0)[3:4], p2[0:3], p2[3:8]]
    weave(t, [blk(i, pv(db, i)) for db in range(8) for i in range(2)], g)
    t.add([publish(f, sE1F, sE1F4, OPT["st1"]) for f in (0, 1)])
    t.add(swaps(1))
    t.add([publish(f, sE1F, sE1F4, OPT["st1"]) for f in (2, 3)])
    t.add(swaps(2))
    t.add([x for x in pack(3) if x])
    t.add([publish(f, sE1F, sE1F4, OPT["st1"]) for f in (4, 5)])
    t.add(swaps(3))
    t.add([publish(f, sE1F, sE1F4, OPT["st1"]) for f in (6, 7)])
    if nb == 1:
        t("s_branch L_join")
    lgq, vmq = t.finish(hist=lp.ins, vmq=[{vINF}])
    assert not lgq or STAMPS
    return t, vmq


side = []
tA, vmqA = compute_path("d", 2, blocks)
if OPT["single"]:
    tB, vmqB = compute_path("s", 1, side)
    assert vmqA == vmqB

t = new("output projection")
t("L_join:")
t("s_cmp_lg_u32 s%d, 0x%x" % (sE1F, OOB))
t("s_cbranch_scc1 L_pubj")
t.add([uncounted(publish(f, sE1, sT2, "sc1")) for f in range(8)])
if OPT["alo"] >= 0:
    t(".p2align 3")
    for _ in range(OPT["alo"]):
        t("s_nop 0")
t("L_pubj:")


def o_mfma(b, m, extra=()):
    j, f, nt = SEQ[m]
    b("%s %s, %s, %s, %s" % (M32, vr(ACC + 16 * nt, 16), vr(wbuf(m), 4), vr(bfrag(j, f), 4),
                             "0" if (j == 0 and f == 0) else vr(ACC + 16 * nt, 16)))
    b.add(w_reads(m + 8))
    b.add(extra)


flag = "buffer_store_dword v%d, v%d, s[%d:%d], 0 offen" % (NM[0], vM1, SA, SA + 3)
pollld = "buffer_load_dword v%d, v%d, s[%d:%d], 0 offen sc1" % (vTM, vP1, SA, SA + 3)


def sib_load(p, f):
    return "buffer_load_dwordx4 %s, v%d, s[%d:%d], s%d offen offset:%d %s" % (vr(SBUF[p] + 4 * f, 4), vE, SA, SA + 3,
                                                                          sP if f < 4 else sP4, (f & 3) * 1024, OPT["ld1"])


def try_head(b, p):
    b("v_cmp_eq_u32 vcc, 1, v%d" % vTM)
    b("s_mov_b32 s%d, 0x%x" % (sP, OOB))
    b("s_xor_b32 s%d, s%d, %d" % (sT0, sE1, p << 15))
    b("s_bitcmp1_b32 vcc_lo, %d" % p)
    b("s_cselect_b32 s%d, s%d, s%d" % (sP, sT0, sP))
    b("s_add_u32 s%d, s%d, 4096" % (sP4, sP))


NEARLY = 4


def need_head(b, p):
    b("s_cmp_lg_u32 s%d, 0x%x" % (sP, OOB))
    b("s_cbranch_scc1 L_dec%dd" % p)
    b("s_mov_b32 s%d, 0x%x" % (sCNT, SPIN))
    b("L_dec%d:" % p)
    b(pollld)
    b("s_waitcnt vmcnt(0)")
    try_head(b, p)
    b("s_sub_u32 s%d, s%d, 1" % (sCNT, sCNT))
    b("s_cbranch_scc1 L_dec%dl" % p)
    b("s_cmp_eq_u32 s%d, 0x%x" % (sP, OOB))
    b("s_cbranch_scc1 L_dec%d" % p)
    b("L_dec%dl:" % p)
    b.add([sib_load(p, f) for f in range(8 if p == 3 else NEARLY)])
    b("L_dec%dd:" % p)


def send(j):
    a0 = ACC + 8 * j
    return (["s_xor_b32 s%d, s%d, %d" % (sT0, sG, j), "s_lshl_b32 s%d, s%d, 15" % (sT0, sT0),
             "s_add_u32 s%d, s%d, s%d" % (sT0, sT0, sE2P), "s_add_u32 s%d, s%d, %d" % (sT0, sT0, j * 4096)],
            ["v_cvt_pk_bf16_f32 v%d, v%d, v%d" % (a0 + i, a0 + 2 * i, a0 + 2 * i + 1) for i in range(4)],
            ["buffer_store_dwordx4 %s, v%d, s[%d:%d], s%d offen sc1" % (vr(a0, 4), vE, SA, SA + 3, sT0)])


def fetch(j):
    return ["s_add_u32 s%d, s%d, %d" % (sT3, sE2C, j * 4096),
            "buffer_load_dwordx4 %s, v%d, s[%d:%d], s%d offen sc1" % (vr(PB + 4 * (j - 1), 4), vE, SA, SA + 3, sT3)]


extra = {m: [] for m in range(128)}
vM2, vTM2 = NM[1], NM[1] + 1
poll2 = "buffer_load_dword v%%d, v%d, s[%d:%d], 0 offen sc1" % (vP2, SA, SA + 3)
extra[1] += ["s_lshl_b32 s%d, s%d, 7" % (sT0, sWAVE), "s_add_u32 s%d, s%d, 1024" % (sT0, sT0),
             "v_lshl_add_u32 v%d, v0, 2, s%d" % (vP2, sT0)]
extra[2] += ["v_lshlrev_b32 v1, 2, v0", "v_xor_b32 v1, s%d, v1" % sWGL, "v_lshl_add_u32 v%d, v1, 11, v%d" % (vM2, vP2)]
extra[3] += ["s_lshl_b32 s%d, s%d, 11" % (sT0, sWGL), "v_add_u32 v%d, s%d, v%d" % (vP2, sT0, vP2), "v_subrev_u32 v1, 1, v0"]
extra[4] += ["v_cmp_gt_u32 vcc, 7, v1", "v_bfrev_b32 v1, 1", "s_nop 0"]
extra[5] += ["v_cndmask_b32 v%d, v1, v%d, vcc" % (vP2, vP2), "v_cndmask_b32 v%d, v1, v%d, vcc" % (vM2, vM2)]
extra[6] += ["s_mov_b32 s%d, 0x3f80" % sLO, "s_mov_b32 s%d, 0x3f800000" % sHI]
late = Block()
late("s_lshl_b32 s%d, s%d, %d" % (sT0, sHN, WSH))
late("s_and_b32 s%d, s%d, %d" % (sT1, sG, (1 << (WSH - 5)) - 1))
late("s_lshl_b32 s%d, s%d, 5" % (sT1, sT1))
late("s_add_u32 s%d, s%d, s%d" % (sOFF, sT0, sT1))
if WSH < 8:
    late("s_lshr_b32 s%d, s%d, %d" % (sT1, sG, WSH - 5))
    late("s_lshl_b32 s%d, s%d, %d" % (sT1, sT1, WSH + 2))
    late("s_add_u32 s%d, s%d, s%d" % (sOFF, sOFF, sT1))
late("s_mul_i32 s%d, s%d, 114688" % (sT0, sB))
srd(late, SB, sOUT, sT0, "114688")
late("s_lshl_b32 s%d, s%d, 2" % (sT0, sB))
late("s_add_u32 s%d, s%d, s%d" % (sT0, sT0, sHN))
late("s_lshl_b32 s%d, s%d, 18" % (sT0, sT0))
late("s_lshl_b32 s%d, s%d, 10" % (sT1, sWAVE))
late("s_add_u32 s%d, s%d, s%d" % (sT0, sT0, sT1))
late("s_add_u32 s%d, s%d, %d" % (sE2P, sT0, E2_OFF))
late("s_lshl_b32 s%d, s%d, 15" % (sT1, sG))
late("s_add_u32 s%d, s%d, s%d" % (sE2C, sE2P, sT1))
li = [i.text for i in late.ins]
k_ = li.index([x for x in li if x.startswith("s_mul_i32")][0])
extra[7] += li[:k_]
extra[8] += li[k_:k_ + 5]
extra[9] += li[k_ + 5:k_ + 9]
extra[10] += li[k_ + 9:]
for p, base in ((1, STG + 32768), (2, XREG), (3, 0)):
    for nt in range(4):
        extra[32 * p - 14 + nt].append("v_add_u32 v%d, %d, v%d" % (AREG[p] + nt, base, aO2 + nt) if base else
                                       "v_mov_b32 v%d, v%d" % (AREG[p] + nt, aO2 + nt))
for i, nt in enumerate((1, 2, 3)):
    base = 104 + 8 * i
    for k_, j in enumerate((2 * nt, 2 * nt + 1)):
        for d_, part in enumerate(send(j)):
            extra[base + 2 + d_ + 3 * k_] += part
for p in (1, 2):
    for f in range(8):
        extra[32 * p - 16 + 2 * f].append(uncounted(sib_load(p, f)) if f < NEARLY else sib_load(p, f))
for f in range(8):
    extra[72 + 2 * f].append(uncounted(sib_load(3, f)))
extra[38].append(pollld)
extra[62].append(pollld)
t(pollld)
stamp(t, 6)
cst(t, 3)
for m in range(128):
    if m == OPT["fat"]:
        t("s_barrier")
    if m == OPT["flagat"]:
        cst(t, 4)
        t("s_waitcnt vmcnt(0)")
        cst(t, 5)
        t("s_cmp_lg_u32 s%d, 0x%x" % (sE1F, OOB))
        t("s_cbranch_scc1 L_flgf")
        t(flag + " sc1")
        t("s_branch L_flgj")
        t("L_flgf:")
        t.add([uncounted(flag + OPT["ffl"])])
        t("L_flgj:")
        stamp(t, 8)
    if OPT["fine"] and m in (33, 41, 48):
        t("s_memtime s[%d:%d]" % ({33: 70, 41: 72, 48: 74}[m], {33: 71, 41: 73, 48: 75}[m]))
    if m in (16, 48, 72):
        t("s_waitcnt vmcnt(%d)" % (1 if m == 16 else 0))
        try_head(t, {16: 1, 48: 2, 72: 3}[m])
    if m in (24, 56, 88):
        need_head(t, m // 32 + 1)
        cst(t, 6 + m // 32)
        if m == 24:
            stamp(t, 7)
        if m == 88:
            stamp(t, 9)
    o_mfma(t, m, extra[m])
stamp(t, 10)
cst(t, 9)
for part in send(1):
    t.add(part)
t(poll2 % vTM)
t("s_waitcnt vmcnt(1)")
t("buffer_store_dword v%d, v%d, s[%d:%d], 0 offen sc1" % (NM[0], vM2, SA, SA + 3))
stamp(t, 11)
cst(t, 10)
t(poll2 % vTM2)
t("s_mov_b32 s%d, 0x%x" % (sCNT, SPIN))
t("s_waitcnt vmcnt(2)")
t("L_poll2:")
t("v_cmp_eq_u32 vcc, 1, v%d" % vTM)
t("s_cmp_eq_u32 vcc_lo, 0xfe")
t("s_cbranch_scc1 L_poll2e")
t.add([uncounted(poll2 % vTM)])
t("s_waitcnt vmcnt(1)")
t.add([uncounted("v_cmp_eq_u32 vcc, 1, v%d" % vTM2)])
t("s_nop 0")
t("s_cmp_eq_u32 vcc_lo, 0xfe")
t("s_cbranch_scc1 L_poll2e")
t.add([uncounted(poll2 % vTM2)])
t("s_sub_u32 s%d, s%d, 1" % (sCNT, sCNT))
t("s_waitcnt vmcnt(1)")
t("s_cbranch_scc0 L_poll2")
t("L_poll2e:")
stamp(t, 12)
cst(t, 11)
for j in range(1, 8):
    t.add(fetch(j))
for j in range(1, 8):
    for i in range(4):
        p = PB + 4 * (j - 1) + i
        t("v_dot2_f32_bf16 v%d, v%d, s%d, v%d" % (ACC + 2 * i, p, sLO, ACC + 2 * i))
        t("v_dot2_f32_bf16 v%d, v%d, s%d, v%d" % (ACC + 2 * i + 1, p, sHI, ACC + 2 * i + 1))
t("s_nop 2")
for j in range(4):
    t("v_cvt_pk_bf16_f32 v%d, v%d, v%d" % (ACC + 8 + j, ACC + 2 * j, ACC + 2 * j + 1))
t("buffer_store_dwordx4 %s, v%d, s[%d:%d], s%d offen" % (vr(ACC + 8, 4), vOUT, SB, SB + 3, sOFF))
if STAMPS:
    cst(t, 12)
    t("s_waitcnt vmcnt(0)")
    cst(t, 13)
    stamp(t, 13)
    if STAMPS not in (6, 10):
        t("s_memtime s[94:95]")
    t("s_waitcnt lgkmcnt(0)")
    t("s_sub_u32 s%d, s94, s92" % (sSTAMP + 28))
    t("s_getreg_b32 s%d, hwreg(HW_REG_XCC_ID, 0, 4)" % (sSTAMP + 30))
    t("s_getreg_b32 s%d, hwreg(HW_REG_HW_ID)" % sT0)
    t("s_lshl_b32 s%d, s%d, 4" % (sT0, sT0))
    t("s_or_b32 s%d, s%d, s%d" % (sSTAMP + 30, sSTAMP + 30, sT0))
    for i in range(16):
        t("v_mov_b32 v%d, s%d" % (ACC + 16 + i, sSTAMP + 2 * i))
    t("s_lshl_b32 s%d, s2, 2" % sT0)
    t("s_add_u32 s%d, s%d, s%d" % (sT0, sT0, sWAVE))
    t("s_lshl_b32 s%d, s%d, 6" % (sT0, sT0))
    t("s_add_u32 s%d, s%d, %d" % (sT0, sT0, ST_OFF))
    t("v_mov_b32 v1, 0")
    t("s_mov_b64 exec, 1")
    for i in range(4):
        t("buffer_store_dwordx4 %s, v1, s[%d:%d], s%d offen offset:%d" % (vr(ACC + 16 + 4 * i, 4), SA, SA + 3, sT0, 16 * i))
t("L_end:")
t("s_endpgm")
t.finish(hist=tA.ins, vmq=vmqA)
if OPT["single"]:
    pad_hazards(t.ins[:60], hist=tB.ins, check_only=True, where="join from the one-block path")
blocks += side
blocks.append(Block("seldom taken"))
blocks[-1]("L_codeend:")
blocks += rare

hdr = open("standalone__mha_block_cached__near_ridge.s.ref").read().split("; Override launch")[0]
out = [hdr.rstrip()]
out.append("""; Fused Q projection + attention + output projection, one workgroup (8 waves) per (batch, head), one per CU.
;   over the eight groups (partial sums exchanged through d_ws).""")
out.append("; @launch grid=(256,1,1) block=(512,1,1) lds=163840")
out.append('.amdgcn_target "amdgcn-amd-amdhsa--gfx950"')
out.append(".text")
out.append(".globl " + KNAME)
out.append(".p2align 8")
out.append(".type %s,@function" % KNAME)
out.append(KNAME + ":")
for b in blocks:
    out.append("; ---- %s ----" % b.name)
    out.append(b.text())
out.append(".p2align 8")
out.append(".fill 64, 4, 0xbf800000")
out.append('.section .rodata,"a"')
out.append(".p2align 6")
out.append(".amdhsa_kernel " + KNAME)
out.append("""  .amdhsa_next_free_vgpr 256
  .amdhsa_next_free_sgpr 102
  .amdhsa_accum_offset 256
  .amdhsa_group_segment_fixed_size 0
  .amdhsa_kernarg_size 64
  .amdhsa_user_sgpr_count 2
  .amdhsa_user_sgpr_kernarg_segment_ptr 1
  .amdhsa_system_sgpr_workgroup_id_x 1
.end_amdhsa_kernel""")
print("\n".join(out))
```

```python
import sys, struct, math
from asmgen import *

OPT = dict(stamps=0, nt_kv="nt", nt_q="", nt_wo="", wopf=0, spf=0, spf0=0, n5=2, cap=4, thrq=8, wohalf=0, erole=0, chk=0, rank=0, rank_until=16, rank_thr=16, thr_h1=8, h1_until=32, al=0, al2=0, alq=-1, alo=-1, cprio=0, e1pf=-1, tlb=0, pre_k=1, pre_v=1, qs=0, touch=0, tfl="", ffl="", fine=0, st1="", ld1="sc1", thr=8.0, force_rescale=0, codepf=1, fast=1,
           early="0.1.2.3", k_at="5.6.8.99", v_at="6.7.8.99", thr0=8, rotmask=3, fat=6, flagat=12, single=1,
           noload=0, map=0, rot=0, wseg=256)
for a in sys.argv[1:]:
    k, v = a.split("=")
    OPT[k] = type(OPT[k])(v) if not isinstance(OPT[k], str) else v.replace("_", " ").strip()
STAMPS = OPT["stamps"]
KNAME = "standalone__mha_block_cached__near_ridge_kernel"


def f32(x):
    return "0x%08x" % struct.unpack("<I", struct.pack("<f", x))[0]


CSC = math.log2(math.e) / math.sqrt(128.0)
M16 = "v_mfma_f32_16x16x32_bf16"
M32 = "v_mfma_f32_32x32x16_bf16"
OOB = 0x40000000
SPIN = 0x100000

KRING, VRING, STG, XREG = 0, 49152, 98304, 32768
E1_OFF, E2_OFF, ST_OFF = 0x100000, 0x900000, 0x4000000
sX, sK, sV, sWQ, sWO, sOUT, sDBG, sWS = 4, 6, 8, 10, 12, 14, 16, 18
sWAVE, sG, sB, sHN, sH, sWGL = 20, 21, 22, 23, 24, 25
sBEG, sEND = 26, 27
SA, SB, SC = 28, 32, 36
sOFF, sLDS, sCNT, sT0, sT1, sT2 = 40, 41, 42, 43, 44, 45
sCS, sDEL, sE1, sE2P, sE2C, sTHR = 46, 48, 49, 50, 51, 52
sT3, sTABK, sTABV, sDELV = 53, 54, 55, 56
sP, sP4, sE1F, sE1F4, sLO, sHI = 57, 58, 59, 60, 61, 62
sNXT, sA, sVM, sLIM = 54, 55, 56, 57
sSTAMP = 64
vP2, vP1, vE, vLO, vTM, vOUT = 2, 3, 4, 5, 6, 7
aK, aW, aV = 8, 12, 16
NM = (24, 28)
ACC, QF, S0, S1, KF, VF, XB = 32, 96, 128, 144, 160, 192, 224
PK = XB
vL = (232, 236)
vM1, vINFO, vINF, ONES, vDUM = 240, 242, 243, 244, 251
aWq, aXq = 96, 104
aO1, aO2, aO3 = aK, aW, aV
OB = PB = QF


def cst(b, idx):
    if STAMPS == 7 and OPT["fine"] and 3 <= idx <= 5:
        return
    if STAMPS == 7:
        b("s_memtime s[%d:%d]" % (sSTAMP + 2 * idx, sSTAMP + 2 * idx + 1))


def stamp(b, idx):
    if STAMPS == 7:
        if idx == 5:
            b("s_memrealtime s[%d:%d]" % (sSTAMP + 2, sSTAMP + 3))
    elif STAMPS == 9:
        if idx in (1, 2, 3, 13):
            b("s_memrealtime s[%d:%d]" % (sSTAMP + 2 * idx, sSTAMP + 2 * idx + 1))
            b("s_waitcnt lgkmcnt(0)")
    elif STAMPS == 8:
        if idx in (3, 5, 10, 13):
            b("s_memrealtime s[%d:%d]" % (sSTAMP + 2 * idx, sSTAMP + 2 * idx + 1))
    elif STAMPS:
        b("s_memrealtime s[%d:%d]" % (sSTAMP + 2 * idx, sSTAMP + 2 * idx + 1))
        b("s_waitcnt lgkmcnt(0)")


def srd(b, dst, ptr, off_sreg, size):
    if off_sreg is None:
        b("s_mov_b32 s%d, s%d" % (dst, ptr))
        b("s_mov_b32 s%d, s%d" % (dst + 1, ptr + 1))
    else:
        b("s_add_u32 s%d, s%d, s%d" % (dst, ptr, off_sreg))
        b("s_addc_u32 s%d, s%d, 0" % (dst + 1, ptr + 1))
    b("s_mov_b32 s%d, %s" % (dst + 2, size))
    b("s_mov_b32 s%d, 0x20000" % (dst + 3))


def dma_group(b, S, voffs, soff, flags, n=4):
    for p in range(n):
        o = " offset:%d" % (p * 1024) if p else ""
        b("buffer_load_dwordx4 v%d, s[%d:%d], s%d offen%s %s lds" % (voffs[p], S, S + 3, soff, o, flags))


def loop_begin(b, label, n):
    b("s_mov_b32 s%d, %d" % (sCNT, n))
    b(label + ":")


def loop_end(b, label):
    b("s_sub_u32 s%d, s%d, 1" % (sCNT, sCNT))
    b("s_cmp_lg_u32 s%d, 0" % sCNT)
    b("s_cbranch_scc1 " + label)


def spread(items, counts):
    out, k = [], 0
    for n in counts:
        out.append(items[k:k + n])
        k += n
    assert k == len(items)
    return out


def uncounted(x):
    i_ = parse(x)
    i_.kind = "comment"
    i_.n = 0
    return i_


blocks = []


def new(name):
    b = Block(name)
    blocks.append(b)
    return b


e = new("entry: workgroup -> (batch b, head group g, head hn in group); waves 0-3 compute, 4-7 load")
e("L_start:")
e("s_cmp_ge_u32 s2, 256")
e("s_cbranch_scc1 L_end")
e("s_load_dwordx16 s[4:19], s[0:1], 0")
if STAMPS:
    e("s_memrealtime s[%d:%d]" % (sSTAMP, sSTAMP + 1))
    e("s_memtime s[92:93]")
e("v_lshrrev_b32 v1, 6, v0")
e("v_and_b32 v0, 63, v0")
e("v_readfirstlane_b32 s%d, v1" % sWAVE)
e("s_and_b32 s%d, s2, 7" % sG)
if OPT["map"] == 0:
    e("s_lshr_b32 s%d, s2, 5" % sB)
    e("s_lshr_b32 s%d, s2, 3" % sHN)
    e("s_and_b32 s%d, s%d, 3" % (sHN, sHN))
else:
    e("s_lshr_b32 s%d, s2, 6" % sHN)
    e("s_lshr_b32 s%d, s2, 3" % sB)
    e("s_and_b32 s%d, s%d, 7" % (sB, sB))
e("s_lshl_b32 s%d, s%d, 2" % (sH, sG))
e("s_add_u32 s%d, s%d, s%d" % (sH, sH, sHN))
e("s_lshl_b32 s%d, s%d, 5" % (sWGL, sB))
e("s_add_u32 s%d, s%d, s%d" % (sWGL, sWGL, sH))
e("s_cmp_lt_u32 s%d, 4" % sWAVE)
e("s_cbranch_scc1 L_compute")
e("v_lshrrev_b32 v1, 4, v0")
e("v_and_b32 v3, 15, v0")
e("s_cmp_lt_u32 s%d, 6" % sWAVE)
e("s_cbranch_scc1 L_ldkv")
e.finish()

WOV = [14, 15, 16, 17]
WSH = {256: 8, 128: 7, 64: 6}[OPT["wseg"]]


def wo_setup(b):
    b("v_lshlrev_b32 v2, 2, v1")
    b("v_xor_b32 v2, v2, v3")
    if WSH < 8:
        b("v_lshrrev_b32 v4, %d, v2" % (WSH - 4))
        b("v_and_b32 v2, %d, v2" % ((1 << (WSH - 4)) - 1))
        b("v_lshl_add_u32 v2, v4, %d, v2" % (WSH - 2))
    b("v_lshlrev_b32 v2, 4, v2")
    b("v_lshl_add_u32 v14, v1, 10, v2")
    b("v_add_u32 v15, 3072, v14")
    b("v_add_u32 v16, 6144, v14")
    b("v_add_u32 v17, 9216, v14")
    b("s_lshl_b32 s%d, s%d, 19" % (sT0, sG))
    b("s_lshl_b32 s%d, s%d, %d" % (sT1, sHN, WSH))
    b("s_add_u32 s%d, s%d, s%d" % (sT0, sT0, sT1))
    b("s_sub_u32 s%d, 0x400000, s%d" % (sT1, sT0))
    srd(b, SB, sWO, sT0, "s%d" % sT1)


def kv_tile(b, voffs, skip=False):
    if skip:
        return
    b("s_mov_b32 m0, s%d" % sLDS)
    b("s_add_u32 s%d, s%d, 4096" % (sT0, sLDS))
    dma_group(b, SA, voffs, sOFF, OPT["nt_kv"])
    b("s_mov_b32 m0, s%d" % sT0)
    b("s_add_u32 s%d, s%d, 4096" % (sOFF, sOFF))
    dma_group(b, SA, voffs, sOFF, OPT["nt_kv"])
    b("s_add_u32 s%d, s%d, 4096" % (sOFF, sOFF))
    if OPT["rot"]:
        b("s_and_b32 s%d, s%d, 0x3ffff" % (sOFF, sOFF))
    b("s_add_u32 s%d, s%d, 8192" % (sLDS, sLDS))
    b("s_cmp_eq_u32 s%d, s%d" % (sLDS, sEND))
    b("s_cselect_b32 s%d, s%d, s%d" % (sLDS, sBEG, sLDS))


def first_tile(b):
    if not OPT["rot"]:
        b("s_mov_b32 s%d, 0" % sOFF)
        return
    b("s_mul_i32 s%d, s%d, %d" % (sOFF, sWGL, OPT["rot"]))
    b("s_and_b32 s%d, s%d, 31" % (sOFF, sOFF))
    b("s_lshl_b32 s%d, s%d, 13" % (sOFF, sOFF))


def wo_tile(b):
    b("s_mov_b32 m0, s%d" % sLDS)
    b("s_add_u32 s%d, s%d, 4096" % (sT0, sLDS))
    dma_group(b, SB, WOV, sOFF, OPT["nt_wo"])
    b("s_mov_b32 m0, s%d" % sT0)
    b("s_add_u32 s%d, s%d, 16384" % (sOFF, sOFF))
    dma_group(b, SB, WOV, sOFF, OPT["nt_wo"])
    b("s_add_u32 s%d, s%d, 16384" % (sOFF, sOFF))


def wo3_tile(b):
    b("s_add_u32 s%d, s%d, 2" % (sT1, sNXT))
    b("s_and_b32 s%d, s%d, 3" % (sT1, sT1))
    b("s_lshl_b32 s%d, s%d, 13" % (sLDS, sT1))
    b("s_xor_b32 s%d, s%d, 3" % (sOFF, sHN))
    b("s_lshl_b32 s%d, s%d, 2" % (sOFF, sOFF))
    b("s_add_u32 s%d, s%d, s%d" % (sOFF, sOFF, sT1))
    b("s_lshl_b32 s%d, s%d, 15" % (sOFF, sOFF))
    wo_tile(b)


def tiles(b, label, voffs, n):
    if n > 1:
        b("s_mov_b32 s%d, %d" % (sT3, n))
        b(label + ":")
        kv_tile(b, voffs)
        b("s_sub_u32 s%d, s%d, 1" % (sT3, sT3))
        b("s_cmp_lg_u32 s%d, 0" % sT3)
        b("s_cbranch_scc1 " + label)
    elif n:
        kv_tile(b, voffs)


def q_phase_kv(b, tag, voffs, txt, hooks):
    npre = OPT["pre_" + tag]
    tiles(b, "L_%spre" % tag, voffs, npre)
    b("s_barrier")
    b.add(hooks.get(0, []))
    loop_begin(b, "L_%se" % tag, 6)
    b("s_barrier")
    loop_end(b, "L_%se" % tag)
    b.add(hooks.get(5, []))
    tiles(b, "L_%sq5" % tag, voffs, OPT["n5"])
    return npre + OPT["n5"]


def att_phase(b, tag, voffs, nxt, lead, f1, f2, tend, sw_at, sw_reg, sw_val):
    sT = sCNT
    stamps = STAMPS == 1 and tag == "v"
    last = 35 if tag == "k" else 31
    b("s_mov_b32 s%d, -3" % sT)
    b("s_mov_b32 s%d, %d" % (sNXT, nxt))
    RK = OPT["rank"]
    if RK:
        b("s_lshl_b32 s%d, s%d, 5" % (sT0, sB))
        b("s_add_u32 s%d, s%d, %d" % (sT0, sT0, 8 if tag == "k" else 16))
        b("s_mov_b32 s59, 1")
        b("s_mov_b32 s58, %d" % OPT["thr0"])
        b("s_mov_b32 s62, 0")
        b("s_waitcnt lgkmcnt(0)")
        b("s_atomic_add s59, s[%d:%d], s%d glc" % (sDBG, sDBG + 1, sT0))
    H1 = OPT["thr_h1"] != OPT["thr0"] or RK
    if H1 and not RK:
        b("s_cmp_eq_u32 s%d, 1" % sHN)
        b("s_cselect_b32 s58, %d, %d" % (OPT["thr_h1"], OPT["thr0"]))
    b("L_%sd:" % tag)
    b("s_sub_u32 s%d, s%d, s%d" % (sA, sNXT, sT))
    for a_ in (1, 2, 3, 4, 5):
        b("s_cmp_%s_u32 s%d, %d" % ("eq" if a_ < 5 else "ge", sA, lead + 1 + a_))
        b("s_cbranch_scc1 L_%sd%d" % (tag, a_))
    b("s_waitcnt vmcnt(0)")
    for a_ in range(1, 6):
        b("L_%sd%d:" % (tag, a_))
        b("s_waitcnt vmcnt(%d)" % (8 * a_))
    if stamps:
        b("s_memrealtime s[60:61]")
        b("s_waitcnt lgkmcnt(0)")
    b("s_barrier")
    if stamps:
        b("s_memrealtime s[62:63]")
        b("s_waitcnt lgkmcnt(0)")
        b("s_and_b32 m0, s%d, 63" % sT)
        b("s_nop 0")
        b("v_writelane_b32 v20, s60, m0")
        b("v_writelane_b32 v21, s62, m0")
    if RK:
        b("s_cmp_lg_u32 s62, 0")
        b("s_cbranch_scc1 L_%srk" % tag)
        b("s_getreg_b32 s%d, hwreg(HW_REG_IB_STS, 8, 4)" % sA)
        b("s_cmp_lg_u32 s%d, 0" % sA)
        b("s_cbranch_scc1 L_%srk" % tag)
        b("s_waitcnt lgkmcnt(0)")
        b("s_mov_b32 s62, 1")
        b("s_cmp_ge_u32 s59, %d" % RK)
        b("s_cselect_b32 s58, %d, s58" % OPT["rank_thr"])
        b("L_%srk:" % tag)
    b("s_getreg_b32 s%d, hwreg(HW_REG_IB_STS, 22, 2)" % sA)
    b("s_getreg_b32 s%d, hwreg(HW_REG_IB_STS, 0, 4)" % sVM)
    b("s_lshl_b32 s%d, s%d, 4" % (sA, sA))
    b("s_or_b32 s%d, s%d, s%d" % (sVM, sVM, sA))
    b("L_%sdi:" % tag)
    b("s_cmp_le_u32 s%d, 21" % sNXT)
    b("s_cselect_b32 s%d, %d, %d" % (sLIM, f1, f2))
    b("s_add_u32 s%d, s%d, s%d" % (sLIM, sLIM, sT))
    b("s_cmp_lt_i32 s%d, 0" % sT)
    b("s_cselect_b32 s%d, %d, s%d" % (sLIM, OPT["cap"], sLIM))
    b("s_min_u32 s%d, s%d, %d" % (sLIM, sLIM, last))
    b("s_cmp_gt_u32 s%d, s%d" % (sNXT, sLIM))
    b("s_cbranch_scc1 L_%sdn" % tag)
    b("s_cmp_le_u32 s%d, %s" % (sVM, "s58" if H1 else OPT["thr0"]))
    b("s_cbranch_scc1 L_%sdg" % tag)
    b("s_add_u32 s%d, s%d, %d" % (sLIM, sT, lead + 1))
    b("s_cmp_gt_i32 s%d, s%d" % (sNXT, sLIM))
    b("s_cbranch_scc1 L_%sdn" % tag)
    b("L_%sdg:" % tag)
    if last > 31:
        b("s_cmp_ge_u32 s%d, 32" % sNXT)
        b("s_cbranch_scc1 L_kdw")
    b("s_cmp_eq_u32 s%d, %d" % (sNXT, sw_at))
    b("s_cselect_b32 s%d, %d, s%d" % (sw_reg, sw_val, sw_reg))
    kv_tile(b, voffs, OPT["noload"] & 1)
    b("L_%sdj:" % tag)
    b("s_add_u32 s%d, s%d, 1" % (sNXT, sNXT))
    b("s_add_u32 s%d, s%d, 8" % (sVM, sVM))
    b("s_branch L_%sdi" % tag)
    if last > 31:
        b("L_kdw:")
        wo3_tile(b)
        b("s_branch L_kdj")
    b("L_%sdn:" % tag)
    b("s_add_u32 s%d, s%d, 1" % (sT, sT))
    if H1 and (OPT["rank_until"] if RK else OPT["h1_until"]) < 32:
        b("s_cmp_ge_u32 s%d, %d" % (sT, OPT["rank_until"] if RK else OPT["h1_until"]))
        b("s_cselect_b32 s58, %d, s58" % OPT["thr0"])
    b("s_cmp_lt_i32 s%d, %d" % (sT, tend))
    b("s_cbranch_scc1 L_%sd" % tag)


b = new("K loader")
b(".p2align 8")
b("L_ldkv:")
b("s_cmp_eq_u32 s%d, 5" % sWAVE)
b("s_cbranch_scc1 L_ldv")
for p in range(4):
    b("v_add_u32 v4, %d, v1" % (4 * p))
    b("v_xor_b32 v4, v4, v3")
    b("v_lshlrev_b32 v4, 4, v4")
    b("v_lshl_add_u32 v%d, v1, 8, v4" % (10 + p))
b("s_lshl_b32 s%d, s%d, 18" % (sT0, sWGL))
b("s_waitcnt lgkmcnt(0)")
srd(b, SA, sK, sT0, "0x40000")
first_tile(b)
b("s_mov_b32 s%d, %d" % (sLDS, KRING))
b("s_mov_b32 s%d, %d" % (sBEG, KRING))
b("s_mov_b32 s%d, %d" % (sEND, KRING + 49152))
KV4 = [10, 11, 12, 13]
hooks = {}
if OPT["wopf"] >= 0:
    if OPT["wohalf"]:
        b("s_lshl_b32 s%d, s%d, 19" % (sT0, sG))
        b("s_lshr_b32 s%d, s%d, 1" % (sT1, sHN))
        b("s_lshl_b32 s%d, s%d, 1" % (sT2, sB))
        b("s_add_u32 s%d, s%d, s%d" % (sT1, sT1, sT2))
        b("s_lshl_b32 s%d, s%d, 15" % (sT1, sT1))
        b("s_add_u32 s%d, s%d, s%d" % (sT0, sT0, sT1))
        b("s_lshl_b32 s%d, s%d, 1" % (sT1, sHN))
        b("s_add_u32 s%d, s%d, s%d" % (sT1, sT1, sB))
        b("s_and_b32 s%d, s%d, 2" % (sT1, sT1))
        b("s_cselect_b32 s%d, 0, 0x8000" % sT1)
        srd(b, SC, sWO, sT0, "s%d" % sT1)
        b("v_lshlrev_b32 v18, 7, v0")
        for i in range(1, 4):
            b("v_add_u32 v%d, %d, v18" % (18 + i, 8192 * i))
        hooks[OPT["wopf"]] = ["buffer_load_dword v22, v%d, s[%d:%d], 0 offen" % (18 + i, SC, SC + 3) for i in range(4)]
    else:
        b("s_lshl_b32 s%d, s%d, 19" % (sT0, sG))
        b("s_lshr_b32 s%d, s2, 3" % sT1)
        b("s_lshl_b32 s%d, s%d, 14" % (sT1, sT1))
        b("s_add_u32 s%d, s%d, s%d" % (sT0, sT0, sT1))
        srd(b, SC, sWO, sT0, "16384")
        b("v_lshlrev_b32 v18, 7, v0")
        b("v_add_u32 v19, 8192, v18")
        hooks[OPT["wopf"]] = ["buffer_load_dword v20, v18, s[%d:%d], 0 offen" % (SC, SC + 3),
                              "buffer_load_dword v21, v19, s[%d:%d], 0 offen" % (SC, SC + 3)]
b.add(hooks.pop(200, []))
hooks[0] = hooks.get(0, []) + [i.text for i in (lambda tb: (wo_setup(tb), tb)[1])(Block()).ins]
NK0 = q_phase_kv(b, "k", KV4, OPT["k_at"], hooks)
att_phase(b, "k", KV4, NK0, 2, 7, 5, 30, 19, sEND, KRING + 32768)
b("s_barrier")
b("L_k2:")
wo3_tile(b)
b("s_add_u32 s%d, s%d, 1" % (sNXT, sNXT))
b("s_cmp_le_u32 s%d, 35" % sNXT)
b("s_cbranch_scc1 L_k2")
b("s_barrier")
b("s_waitcnt vmcnt(0)")
b("s_barrier")
b("s_endpgm")
b.finish(hist=e.ins)

b = new("V loader")
b(".p2align 8")
b("L_ldv:")
for par in range(2):
    b("v_lshlrev_b32 v4, 1, v1")
    b("v_xor_b32 v4, v4, v3")
    if par:
        b("v_xor_b32 v4, 8, v4")
    b("v_lshlrev_b32 v4, 4, v4")
    b("v_lshl_add_u32 v%d, v1, 8, v4" % (10 + par))
b("s_lshl_b32 s%d, s%d, 18" % (sT0, sWGL))
b("s_waitcnt lgkmcnt(0)")
srd(b, SA, sV, sT0, "0x40000")
first_tile(b)
b("s_mov_b32 s%d, %d" % (sLDS, VRING + 2 * 8192))
b("s_mov_b32 s%d, %d" % (sBEG, VRING))
b("s_mov_b32 s%d, %d" % (sEND, VRING + 49152))
V4 = [10, 11, 10, 11]
srd(b, SC, sWS, None, "0x10000000")
b("v_mov_b32 v4, 0")
b("v_mov_b32 v5, 0")
b("s_lshl_b32 s%d, s%d, 11" % (sT0, sWGL))
b("v_lshlrev_b32 v8, 3, v0")
b("buffer_store_dwordx2 v[4:5], v8, s[%d:%d], s%d offen sc1" % (SC, SC + 3, sT0))
b("buffer_store_dwordx2 v[4:5], v8, s[%d:%d], s%d offen offset:1024 sc1" % (SC, SC + 3, sT0))
b("s_getreg_b32 s%d, hwreg(HW_REG_XCC_ID, 0, 4)" % sT1)
b("s_add_u32 s%d, s%d, 1" % (sT1, sT1))
b("v_mov_b32 v7, s%d" % sT1)
b("s_mov_b64 exec, 1")
b("buffer_store_dword v7, v4, s[%d:%d], s%d offen offset:512 sc1" % (SC, SC + 3, sT0))
b("s_mov_b64 exec, -1")
b("s_lshl_b32 s%d, s%d, 5" % (sT0, sB))
b("s_add_u32 s%d, s%d, s%d" % (SB, sDBG, sT0))
b("s_addc_u32 s%d, s%d, 0" % (SB + 1, sDBG + 1))
b("s_mov_b32 s%d, 1" % (SB + 2))
hooks = {0: ["s_waitcnt vmcnt(%d)" % (8 * OPT["pre_v"]), "s_atomic_add s%d, s[%d:%d], 0x0" % (SB + 2, SB, SB + 1)]}
if OPT["chk"] == 3:
    hooks = {}
if OPT["e1pf"] >= 0:
    b("s_lshl_b32 s62, s%d, 15" % sWGL)
    b("s_add_u32 s62, s62, %d" % E1_OFF)
    b("v_lshlrev_b32 v18, 7, v0")
    for i in range(1, 4):
        b("v_add_u32 v%d, %d, v18" % (18 + i, 8192 * i))
    hooks.setdefault(OPT["e1pf"], []).extend(["buffer_load_dword v22, v%d, s[%d:%d], s62 offen" % (18 + i, SC, SC + 3) for i in range(4)])
NV0 = q_phase_kv(b, "v", V4, OPT["v_at"], hooks)
att_phase(b, "v", V4, NV0, 0, 5, 3, 32, 18, sBEG, VRING + 16384)
b("s_barrier")
if STAMPS == 1:
    b("s_lshl_b32 s%d, s2, 9" % sT0)
    b("s_add_u32 s%d, s%d, %d" % (sT0, sT0, ST_OFF + 0x100000))
    b("v_lshlrev_b32 v1, 2, v0")
    b("buffer_store_dword v20, v1, s[%d:%d], s%d offen" % (SC, SC + 3, sT0))
    b("buffer_store_dword v21, v1, s[%d:%d], s%d offen offset:256" % (SC, SC + 3, sT0))
b("s_endpgm")
b.finish(hist=e.ins)


sGST, sKSH, sL0, sL1, sL2, s4K = 54, 55, 56, 57, 58, 59


def look(b):
    b("s_lshl_b32 s%d, s%d, 5" % (sT0, sB))
    b("s_add_u32 s%d, s%d, s%d" % (SC, sDBG, sT0))
    b("s_addc_u32 s%d, s%d, 0" % (SC + 1, sDBG + 1))
    b("s_load_dword s%d, s[%d:%d], 0x0 glc" % (SC + 2, SC, SC + 1))


def q_phase_xw(b):
    def chunk():
        b("s_lshl_b32 s%d, s%d, s%d" % (sOFF, sT2, sKSH))
        b("s_mov_b32 m0, s%d" % sL0)
        b("s_add_u32 s%d, s%d, 1" % (sT2, sT2))
        b("s_and_b32 s%d, s%d, 7" % (sT2, sT2))
        b("s_mov_b32 s%d, -4" % sT3)
        b("L_xwg:")
        if not OPT["noload"] & 2:
            dma_group(b, SA, [10, 11, 12, 13], sOFF, OPT["nt_q"])
        b("s_add_u32 m0, m0, s%d" % s4K)
        b("s_add_u32 s%d, s%d, s%d" % (sOFF, sOFF, sGST))
        b("s_add_u32 s%d, s%d, 1" % (sT3, sT3))
        b("s_cbranch_scc0 L_xwg")
        b("s_mov_b32 s%d, s%d" % (sT3, sL0))
        b("s_mov_b32 s%d, s%d" % (sL0, sL1))
        b("s_mov_b32 s%d, s%d" % (sL1, sL2))
        b("s_mov_b32 s%d, s%d" % (sL2, sT3))
    b("s_setprio 2")
    b("s_cmp_eq_u32 s%d, 7" % sWAVE)
    b("s_cbranch_scc1 L_setw")
    b("v_lshrrev_b32 v5, 3, v0")
    b("v_and_b32 v6, 7, v0")
    b("v_lshrrev_b32 v7, 1, v5")
    b("v_xor_b32 v4, v7, v6")
    b("v_lshlrev_b32 v4, 4, v4")
    b("v_lshl_add_u32 v10, v5, 10, v4")
    b("v_xor_b32 v4, 64, v10")
    b("v_add_u32 v11, %d, v4" % (8192 - 1024))
    b("v_add_u32 v12, %d, v10" % (2 * (8192 - 1024)))
    b("v_add_u32 v13, %d, v4" % (3 * (8192 - 1024)))
    b("s_mul_i32 s%d, s%d, 114688" % (sT0, sB))
    b("s_mov_b32 s%d, 114688" % (SA + 2))
    b("s_mov_b32 s%d, 32768" % sGST)
    b("s_mov_b32 s%d, 7" % sKSH)
    b("s_mov_b32 s%d, %d" % (sL0, STG))
    b("s_waitcnt lgkmcnt(0)")
    b("s_add_u32 s%d, s%d, s%d" % (SA, sX, sT0))
    b("s_addc_u32 s%d, s%d, 0" % (SA + 1, sX + 1))
    b("s_branch L_setj")
    b("L_setw:")
    b("v_lshlrev_b32 v4, 1, v1")
    b("v_xor_b32 v4, v4, v3")
    b("v_lshlrev_b32 v4, 4, v4")
    b("v_lshl_add_u32 v10, v1, 13, v4")
    b("v_add_u32 v11, %d, v10" % (32768 - 1024))
    b("v_xor_b32 v4, 128, v10")
    b("v_add_u32 v12, %d, v4" % (2 * (32768 - 1024)))
    b("v_add_u32 v13, %d, v4" % (3 * (32768 - 1024)))
    b("s_lshl_b32 s%d, s%d, 8" % (sT0, sH))
    b("s_sub_u32 s%d, 0x400000, s%d" % (SA + 2, sT0))
    b("s_mov_b32 s%d, 131072" % sGST)
    b("s_mov_b32 s%d, 19" % sKSH)
    b("s_mov_b32 s%d, %d" % (sL0, STG + 16384))
    b("s_waitcnt lgkmcnt(0)")
    b("s_add_u32 s%d, s%d, s%d" % (SA, sWQ, sT0))
    b("s_addc_u32 s%d, s%d, 0" % (SA + 1, sWQ + 1))
    b("L_setj:")
    b("s_mov_b32 s%d, 0x20000" % (SA + 3))
    b("s_lshl_b32 s%d, s%d, 1" % (sT2, sHN))
    b("s_add_u32 s%d, s%d, s%d" % (sT2, sT2, sB))
    b("s_and_b32 s%d, s%d, %d" % (sT2, sT2, OPT["rotmask"]))
    b("s_movk_i32 s%d, 0x1000" % s4K)
    b("s_add_u32 s%d, s%d, 32768" % (sL1, sL0))
    b("s_sub_u32 s%d, s%d, %d" % (sL2, sL0, STG - XREG))
    b("s_mov_b32 s%d, 8" % sCNT)
    b("s_branch L_xwgo")
    b("L_xw:")
    b("s_waitcnt vmcnt(16)")
    b("s_barrier")
    b("L_xwgo:")
    chunk()
    b("s_sub_u32 s%d, s%d, 1" % (sCNT, sCNT))
    b("s_cmp_eq_u32 s%d, 7" % sCNT)
    b("s_cbranch_scc1 L_xwgo")
    b("s_cmp_lg_u32 s%d, 0" % sCNT)
    b("s_cbranch_scc1 L_xw")
    if OPT["chk"] == 2:
        b("s_lshl_b32 s%d, s%d, 5" % (sT0, sB))
        b("s_add_u32 s%d, s%d, s%d" % (SC, sDBG, sT0))
        b("s_addc_u32 s%d, s%d, 0" % (SC + 1, sDBG + 1))
        b("s_cmp_lg_u32 s%d, 7" % sWAVE)
        b("s_cbranch_scc1 L_nolook")
        b("s_load_dword s%d, s[%d:%d], 0x0 glc" % (SC + 2, SC, SC + 1))
        b("L_nolook:")
    b("s_barrier")
    wo_setup(b)
    b("s_waitcnt vmcnt(16)")
    b("s_barrier")
    b("s_waitcnt vmcnt(0)")
    b("s_barrier")
    b("s_barrier")
    b("s_setprio 0")
    b("s_cmp_eq_u32 s%d, 7" % sWAVE)
    b("s_cbranch_scc1 L_attw")


def wo_trickle(b, tag, blk):
    first = 4 if blk == 0 else 2
    for i in range(first + 1):
        b("s_barrier")
    if tag == "w" and OPT["chk"] == 0:
        look(b)
    b("s_xor_b32 s%d, s%d, %d" % (sOFF, sHN, blk))
    b("s_lshl_b32 s%d, s%d, 17" % (sOFF, sOFF))
    b("s_mov_b32 s%d, %d" % (sLDS, STG + blk * 32768))
    loop_begin(b, "L_%s2" % tag, 4)
    wo_tile(b)
    b("s_add_u32 s%d, s%d, 8192" % (sLDS, sLDS))
    for i in range(4):
        b("s_barrier")
    loop_end(b, "L_%s2" % tag)
    if tag == "x" and OPT["tlb"]:
        srd(b, SA, sWS, None, "0x10000000")
        b("s_lshl_b32 s%d, s%d, 15" % (sT0, sWGL))
        b("s_add_u32 s%d, s%d, %d" % (sT0, sT0, E1_OFF))
        b("s_lshl_b32 s%d, s%d, 2" % (sT1, sB))
        b("s_add_u32 s%d, s%d, s%d" % (sT1, sT1, sHN))
        b("s_lshl_b32 s%d, s%d, 3" % (sT1, sT1))
        b("s_add_u32 s%d, s%d, s%d" % (sT1, sT1, sG))
        b("s_lshl_b32 s%d, s%d, 15" % (sT1, sT1))
        b("s_add_u32 s%d, s%d, %d" % (sT1, sT1, E2_OFF))
        b("v_mov_b32 v4, 0")
        b("s_mov_b64 exec, 1")
        b("buffer_load_dword v5, v4, s[%d:%d], s%d offen" % (SA, SA + 3, sT0))
        b("buffer_load_dword v5, v4, s[%d:%d], s%d offen" % (SA, SA + 3, sT1))
        if OPT["tlb"] > 1:
            b("s_mul_i32 s%d, s%d, 114688" % (sT0, sB))
            srd(b, SC, sOUT, sT0, "114688")
            b("s_xor_b32 s%d, s%d, 2" % (sT1, sHN))
            b("s_lshl_b32 s%d, s%d, 8" % (sT1, sT1))
            b("buffer_load_dword v5, v4, s[%d:%d], s%d offen" % (SC, SC + 3, sT1))
        b("s_mov_b64 exec, -1")
    b("s_xor_b32 s%d, s%d, 2" % (sOFF, sHN))
    b("s_lshl_b32 s%d, s%d, 17" % (sOFF, sOFF))
    b("s_add_u32 s%d, s%d, %d" % (sOFF, sOFF, blk * 65536))
    b("s_mov_b32 s%d, %d" % (sLDS, XREG + blk * 16384))
    wo_tile(b)
    b("s_add_u32 s%d, s%d, 8192" % (sLDS, sLDS))
    for i in range(4):
        b("s_barrier")
    wo_tile(b)
    done = first + 20
    if tag == "w" and OPT["chk"] not in (1, 3):
        for i in range(3):
            b("s_barrier")
        done += 3
        b("s_mov_b32 s%d, 0x%x" % (sCNT, SPIN))
        b("s_branch L_wchk")
        b("L_wpoll:")
        b("s_load_dword s%d, s[%d:%d], 0x0 glc" % (SC + 2, SC, SC + 1))
        b("L_wchk:")
        b("s_waitcnt lgkmcnt(0)")
        b("s_sub_u32 s%d, s%d, 1" % (sCNT, sCNT))
        b("s_cbranch_scc1 L_wpolld")
        b("s_cmp_lt_u32 s%d, 32" % (SC + 2))
        b("s_cbranch_scc1 L_wpoll")
        b("L_wpolld:")
    for i in range(29 - done):
        b("s_barrier")
    b("s_waitcnt vmcnt(0)")
    b("s_barrier")
    b("s_barrier")
    b("s_barrier")
    b("s_endpgm")


bq = Block("x / wq loaders: Q phase")
q_phase_xw(bq)
wo_trickle(bq, "x", 0)
bq("L_attw:")
wo_trickle(bq, "w", 1)
bq.finish(hist=e.ins)
blocks.insert(1, bq)

c = new("compute waves: addresses")
c(".p2align 8")
c("L_compute:")
if OPT["codepf"]:
    c("s_cmp_lg_u32 s%d, 1" % sWAVE)
    c("s_cbranch_scc1 L_nopf")
    c("s_getpc_b64 s[56:57]")
    c("L_pc:")
    c("s_sub_u32 s56, s56, L_pc-L_start")
    c("s_subb_u32 s57, s57, 0")
    c("s_lshr_b32 s%d, s2, 3" % sT0)
    c("s_and_b32 s%d, s%d, 7" % (sT0, sT0))
    c("s_mul_i32 s%d, s%d, ((L_codeend-L_start+1023)/1024)*128" % (sT0, sT0))
    c("v_lshlrev_b32 v1, 7, v0")
    c("v_add_u32 v1, s%d, v1" % sT0)
    c("v_min_u32 v1, L_codeend-L_start-4, v1")
    c("v_mov_b32 v3, s57")
    c("v_add_co_u32 v2, vcc, s56, v1")
    c("s_nop 1")
    c("v_addc_co_u32 v3, vcc, 0, v3, vcc")
    c("v_cmp_gt_u32 vcc, (L_codeend-L_start+1023)/1024, v0")
    c("s_and_saveexec_b64 s[58:59], vcc")
    c("global_load_dword v%d, v[2:3], off" % vDUM)
    c("s_mov_b64 exec, -1")
    c("L_nopf:")
for i in range(4):
    c("v_mov_b32 v%d, 0" % (XB + 28 + i))
c("v_lshrrev_b32 v1, 4, v0")
c("v_and_b32 v2, 15, v0")
c("v_lshrrev_b32 v3, 5, v0")
c("v_and_b32 v4, 1, v1")
c("v_lshl_add_u32 v3, v4, 1, v3")
c("v_xor_b32 v3, v3, v2")
c("v_lshlrev_b32 v3, 4, v3")
c("v_lshl_add_u32 v%d, v2, 8, v3" % aK)
for ks in range(1, 4):
    c("v_xor_b32 v%d, %d, v%d" % (aK + ks, ks << 6, aK))
c("s_lshl_b32 s%d, s%d, 12" % (sT0, sWAVE))
c("s_add_u32 s%d, s%d, %d" % (sT0, sT0, STG))
c("v_lshrrev_b32 v3, 1, v2")
c("v_xor_b32 v3, v3, v1")
c("v_lshlrev_b32 v3, 4, v3")
c("v_lshl_add_u32 v3, v2, 7, v3")
c("v_add_u32 v%d, s%d, v3" % (aXq, sT0))
c("v_xor_b32 v%d, 64, v%d" % (aXq + 1, aXq))
c("v_bfe_u32 v2, v0, 2, 2")
c("v_lshrrev_b32 v3, 2, v0")
c("v_and_b32 v4, 7, v3")
c("v_lshlrev_b32 v4, 5, v4")
c("v_lshl_add_u32 v3, v3, 8, v4")
c("v_and_b32 v4, 3, v0")
c("v_lshl_add_u32 v3, v4, 3, v3")
c("v_add_u32 v%d, %d, v3" % (aV, VRING + 16384))
for db in range(1, 8):
    c("v_xor_b32 v%d, %d, v%d" % (aV + db, db << 5, aV))
c("v_lshl_add_u32 v3, v1, 10, v3")
c("v_add_u32 v%d, %d, v3" % (aWq, STG + 16384))
for db in range(1, 8):
    c("v_xor_b32 v%d, %d, v%d" % (aWq + db, db << 5, aWq))
c("v_mul_u32_u24 v2, 320, v2")
c("v_lshrrev_b32 v3, 5, v0")
c("v_lshl_add_u32 v3, v3, 11, v2")
c("v_and_b32 v4, 1, v1")
c("v_lshl_add_u32 v3, v4, 5, v3")
c("v_and_b32 v4, 1, v0")
c("v_lshl_add_u32 v3, v4, 4, v3")
c("v_bfe_u32 v4, v0, 1, 1")
c("v_lshl_add_u32 v3, v4, 3, v3")
c("s_lshl_b32 s%d, s%d, 5" % (sT0, sG))
c("v_xor_b32 v%d, s%d, v3" % (aO2, sT0))
for nt in range(1, 4):
    c("v_xor_b32 v%d, %d, v%d" % (aO2 + nt, nt << 6, aO2))
c("v_and_b32 v2, 31, v0")
c("s_lshl_b32 s%d, s%d, 5" % (sT0, sWAVE))
c("v_add_u32 v2, s%d, v2" % sT0)
c("v_lshlrev_b32 v%d, 4, v0" % vE)
c("v_cmp_lt_u32 vcc, 111, v2")
c("v_bfrev_b32 v3, 1")
c("v_lshlrev_b32 v2, 10, v2")
c("v_cndmask_b32 v1, 0, v3, vcc")
c("v_or_b32 v%d, v%d, v1" % (vE, vE))
c("v_lshrrev_b32 v1, 5, v0")
c("v_lshl_add_u32 v%d, v1, 4, v2" % vOUT)
c("v_xor_b32 v1, s%d, v0" % sWGL)
c("v_lshlrev_b32 v1, 11, v1")
c("v_cmp_gt_u32 vcc, 4, v0")
c("v_add_u32 v2, 512, v1")
c("s_lshl_b32 s%d, s%d, 7" % (sT0, sWAVE))
c("v_cndmask_b32 v%d, v3, v2, vcc" % vINFO)
c("v_lshl_add_u32 v2, v0, 2, s%d" % sT0)
c("v_add_u32 v1, v1, v2")
c("s_lshl_b32 s%d, s%d, 11" % (sT1, sWGL))
c("v_add_u32 v2, s%d, v2" % sT1)
c("v_subrev_u32 v%d, 1, v0" % vTM)
c("v_cmp_gt_u32 vcc, 3, v%d" % vTM)
c("s_mov_b32 s%d, %s" % (sCS, f32(CSC)))
c("s_mov_b32 s%d, %s" % (sCS + 1, f32(CSC)))
c("v_cndmask_b32 v%d, v3, v1, vcc" % vM1)
c("v_cndmask_b32 v%d, v3, v2, vcc" % vP1)
for i in range(4):
    c("%s %s, %s, %s, 0" % (M32, vr(ACC + 16 * i, 16), vr(XB + 28, 4), vr(XB + 28, 4)))
c("s_mov_b32 s%d, %s" % (sTHR, f32(0.0 if OPT["force_rescale"] else OPT["thr"])))
c("s_waitcnt lgkmcnt(0)")
srd(c, SA, sWS, None, "0x10000000")
c("s_lshl_b32 s%d, s%d, 15" % (sE1, sWGL))
c("s_lshl_b32 s%d, s%d, 13" % (sT0, sWAVE))
c("s_add_u32 s%d, s%d, s%d" % (sE1, sE1, sT0))
c("s_add_u32 s%d, s%d, %d" % (sE1, sE1, E1_OFF))
c("s_mov_b32 s%d, %d" % (sT2, sum(((1, -3, 2)[i % 3] + 3) << (3 * i) for i in range(8))))
c("s_mov_b32 s%d, 8" % sCNT)
if OPT["single"]:
    c("s_cmp_eq_u32 s%d, 3" % sWAVE)
    c("s_cbranch_scc1 L_paths")
c.finish(hist=e.ins)


def k_reads(slot_off):
    return ["ds_read_b128 %s, v%d offset:%d" % (vr(KF + 16 * kb + 4 * ks, 4), aK + ks, slot_off + kb * 4096)
            for ks in range(4) for kb in range(2)]


def v_read(db, u, off):
    return "ds_read_b64_tr_b16 %s, v%d offset:%d" % (vr(VF + 4 * db + 2 * u, 2), aV + db, off + u * 4096)


def ex(S, i):
    return "v_exp_f32 v%d, v%d" % (S + i, S + i)


def cvt(S, j):
    return "v_cvt_pk_bf16_f32 v%d, v%d, v%d" % (PK + j, S + 2 * j, S + 2 * j + 1)


def qk(SN, ks, kb, blk, first):
    d = vr(SN + 8 * blk + 4 * kb, 4)
    cc = d if ks else ("0" if first else vr(NM[blk], 4))
    return "%s %s, %s, %s, %s" % (M16, d, vr(KF + 16 * kb + 4 * ks, 4), vr(QF + 16 * blk + 4 * ks, 4), cc)


def pv(db, blk):
    d = vr(ACC + 32 * blk + 4 * db, 4)
    return "%s %s, %s, %s, %s" % (M16, d, vr(VF + 4 * db, 4), vr(PK + 4 * blk, 4), d)


def sum_mfma(blk):
    return "%s %s, %s, %s, %s" % (M16, vr(vL[blk], 4), vr(ONES, 4), vr(PK + 4 * blk, 4), vr(vL[blk], 4))


def max_tree(dst, S, n):
    r = ["v_max3_f32 v%d, v%d, v%d, v%d" % (dst, S, S + 1, S + 2)]
    for i in range(3, n - 1, 2):
        r.append("v_max3_f32 v%d, v%d, v%d, v%d" % (dst, dst, S + i, S + i + 1))
    r.append("v_max_f32 v%d, v%d, v%d" % (dst, dst, S + n - 1))
    return r


def blk_max(b, S, dst, tmp):
    b.add(max_tree(dst, S, 8))
    for perm in ("v_permlane32_swap_b32", "v_permlane16_swap_b32"):
        b("v_mov_b32 v%d, v%d" % (tmp, dst))
        b("%s v%d, v%d" % (perm, tmp, dst))
        b("v_max_f32 v%d, v%d, v%d" % (dst, tmp, dst))


def weave(b, mfmas, gaps):
    assert len(mfmas) == len(gaps)
    for m_, g in zip(mfmas, gaps):
        b.add([x for x in [m_] + list(g) if x is not None])


AREG = {0: aO1, 1: aO3, 2: aO1, 3: aO3}
SBUF = {1: S0, 2: KF, 3: XB}
SEQ = [(j, f, nt) for j in range(3) for f in range(8) for nt in range(4)]
SEQ += [(3, f, nt) for nt in (1, 2, 3, 0) for f in range(8)]


def wbuf(m):
    return (KF if m < 8 else VF) + 4 * (m & 7)


def w_reads(m):
    if m >= len(SEQ):
        return []
    j, f, nt = SEQ[m]
    ks, y = f >> 1, f & 1
    return ["ds_read_b64_tr_b16 %s, v%d offset:%d" % (vr(wbuf(m) + 2 * u, 2), AREG[j] + nt,
                                                   ks * 8192 + u * 4096 + y * 1024) for u in range(2)]


def bfrag(j, f):
    return OB + 16 * (f & 1) + 4 * (f >> 1) if j == 0 else SBUF[j] + 4 * f


def publish(f, lo, hi, fl):
    return "buffer_store_dwordx4 %s, v%d, s[%d:%d], s%d offen offset:%d %s" % (vr(bfrag(0, f), 4), vE, SA, SA + 3,
                                                                           lo if f < 4 else hi, (f & 3) * 1024, fl)


rare = []


def compute_path(sfx, nb, out):
    B = range(nb)

    def blk(i, x):
        return x if i < nb else None

    def mk(name):
        bb = Block(name + (" (two query blocks)" if nb == 2 else " (one query block: wave 3)"))
        out.append(bb)
        return bb

    def q_reads(s_):
        W = VF if s_ == 0 else S0
        r = [blk(i, "ds_read_b128 %s, v%d offset:%d" % (vr(XB + 8 * s_ + 4 * i, 4), aXq + s_, i * 2048)) for i in range(2)]
        for db in range(8):
            for u in range(2):
                r.append("ds_read_b64_tr_b16 %s, v%d offset:%d" % (vr(W + 4 * db + 2 * u, 2), aWq + db, s_ * 8192 + u * 1024))
        return r

    def q_mfmas(s_):
        W = VF if s_ == 0 else S0
        r = []
        for db in range(8):
            for i in range(2):
                d = vr(ACC + 32 * i + 4 * db, 4)
                r.append(blk(i, "%s %s, %s, %s, %s" % (M16, d, vr(W + 4 * db, 4), vr(XB + 8 * s_ + 4 * i, 4), d)))
        return r

    q0 = mk("Q projection: first reads")
    q0("L_path%s:" % sfx)
    q0("s_barrier")
    stamp(q0, 1)
    if STAMPS == 10:
        q0("s_memtime s[92:93]")
    q0.add([x for x in q_reads(0) if x])
    lgq0, _ = q0.finish(hist=c.ins)
    ql = mk("Q projection")
    if OPT["alq"] >= 0 and nb == 2:
        ql(".p2align 6")
        for _ in range(OPT["alq"]):
            ql("s_nop 0")
    ql("L_q%s:" % sfx)
    tabq = ["s_and_b32 s%d, s%d, 7" % (sDEL, sT2), "s_lshr_b32 s%d, s%d, 3" % (sT2, sT2),
            "s_sub_u32 s%d, s%d, 3" % (sDEL, sDEL), "s_lshl_b32 s%d, s%d, 15" % (sDEL, sDEL)]
    adv = ["v_add_u32 v%d, s%d, v%d" % (r_, sDEL, r_) for r_ in range(aWq, aWq + 10)]
    QS = OPT["qs"]
    gaps = spread(q_reads(1), {0: [2, 1, 2, 1, 2, 1, 1, 1, 1, 1, 1, 1, 1, 1, 1, 0], 1: [2, 2, 1, 2, 1, 2, 1, 2, 1, 2, 1, 1, 0, 0, 0, 0],
                               2: [2, 2, 1, 2, 1, 2, 1, 2, 1, 2, 1, 1, 0, 0, 0, 0]}[QS])
    gaps[1] += tabq[:2]
    gaps[3] += tabq[2:]
    weave(ql, q_mfmas(0), gaps)
    ql("s_cmp_lg_u32 s%d, 3" % sCNT)
    ql("s_cbranch_scc1 L_qnb%s" % sfx)
    ql("s_barrier")
    ql("L_qnb%s:" % sfx)
    m1 = q_mfmas(1)
    NBQ = {0: 6, 1: 2, 2: 4}[QS]
    if QS:
        tail_ = ql.ins[-4 if nb == 2 else -2:]
        del ql.ins[-len(tail_):]
        k_ = {1: 8, 2: 6}[QS]
        weave(ql, tail_, spread(adv[:k_], ([2, 2, 2, 2] if k_ == 8 else [2, 2, 1, 1]) if nb == 2 else [k_ // 2, k_ // 2]))
        weave(ql, m1[:NBQ], spread(adv[k_:], [1] * NBQ))
    else:
        weave(ql, m1[:6], spread(adv, [2, 2, 2, 2, 1, 1]))
    ql("s_waitcnt lgkmcnt(0)")
    ql("s_barrier")
    if STAMPS == 9:
        ql("s_memrealtime s[88:89]")
        ql("s_waitcnt lgkmcnt(0)")
        for i in range(1, 9):
            ql("s_cmp_eq_u32 s%d, %d" % (sCNT, 9 - i))
            ql("s_cselect_b32 s%d, s88, s%d" % (sSTAMP + 2 * (i + 3), sSTAMP + 2 * (i + 3)))
    weave(ql, m1[NBQ:], spread(q_reads(0), {6: [2, 2, 2, 2, 2, 2, 2, 2, 1, 1], 2: [2, 2, 1, 2, 1, 2, 1, 1, 1, 1, 1, 1, 1, 1],
                                            4: [2, 2, 2, 1, 2, 1, 2, 1, 2, 1, 1, 1]}[NBQ]))
    loop_end(ql, "L_q%s" % sfx)
    lgq1, _ = ql.finish(hist=q0.ins, lgq=lgq0)
    assert STAMPS or lgq1 == lgq0[-len(lgq1):], (lgq0, lgq1)
    pad_hazards(ql.ins, hist=ql.ins, check_only=True, where="q loop back edge")

    q = mk("attention set-up")
    stamp(q, 2)
    if STAMPS == 10:
        q("s_memtime s[94:95]")
    q("s_waitcnt lgkmcnt(0)")
    q.add(k_reads(0))
    q("s_waitcnt vmcnt(0)")

    def conv(ks):
        r = []
        for i in B:
            a0, f0 = ACC + 32 * i + 8 * ks, QF + 16 * i + 4 * ks
            if ks == 0:
                r += ["v_pk_mul_f32 %s, %s, s[%d:%d]" % (vr(a0 + 2 * j, 2), vr(a0 + 2 * j, 2), sCS, sCS + 1) for j in range(4)]
            else:
                r += ["v_mul_f32 v%d, s%d, v%d" % (a0 + j, sCS, a0 + j) for j in range(8)]
            r += ["v_cvt_pk_bf16_f32 v%d, v%d, v%d" % (f0 + j, a0 + 2 * j, a0 + 2 * j + 1) for j in range(4)]
        for i in B:
            f0 = QF + 16 * i + 4 * ks
            r += ["v_permlane16_swap_b32 v%d, v%d" % (f0 + j, f0 + 2 + j) for j in range(2)]
        return r

    k1 = k_reads(8192)
    init = ["v_mov_b32 v%d, 0" % (vL[0] + i) for i in range(8)] + ["v_mov_b32 v%d, 0x3f803f80" % (ONES + i) for i in range(4)]
    q.add(conv(0))
    q.add(init[:4])
    qk0 = [blk(i, qk(S0, ks, kb, i, True)) for ks in range(4) for kb in range(2) for i in range(2)]
    for ks in range(3):
        g = spread(conv(ks + 1), [7, 7, 7, 7] if nb == 2 else [4, 3, 4, 3])
        g[2].insert(0, k1[2 * ks])
        if ks:
            g[0].insert(0, k1[2 * ks - 1])
        weave(q, qk0[4 * ks:4 * ks + 4], g)
    weave(q, qk0[12:], [[k1[5]] + init[4:6], init[6:8], [k1[6]] + init[8:10], init[10:]])
    z = vr(vL[0], 4)
    weave(q, [blk(i >> 1, "%s %s, %s, %s, 0" % (M32, vr(ACC + 16 * i, 16), z, z)) for i in range(4)], [[k1[7]], [], [], []])
    for ks in range(4):
        q("v_add_u32 v%d, 16384, v%d" % (aK + ks, aK + ks))
    if nb == 1:
        for i in range(16):
            q("v_mov_b32 v%d, 0" % (OB + 16 + i))
    chains = []
    for i in B:
        tb = Block()
        blk_max(tb, S0 + 8 * i, *((1, 2) if i == 0 else (vTM, NM[1] + 1)))
        tb("v_sub_f32 v%d, 0, v%d" % (NM[i], 1 if i == 0 else vTM))
        if i == 1 and not OPT["single"]:
            tb("v_min_f32 v%d, s%d, v%d" % (NM[i], sT3, NM[i]))
        for j in range(1, 4):
            tb("v_mov_b32 v%d, v%d" % (NM[i] + j, NM[i]))
        for j in range(8):
            tb("v_add_f32 v%d, v%d, v%d" % (S0 + 8 * i + j, S0 + 8 * i + j, NM[i]))
        chains.append(tb.ins)
    if not OPT["single"]:
        q("s_cmp_eq_u32 s%d, 3" % sWAVE)
        q("s_mov_b32 s%d, %s" % (sT0, f32(3e38)))
        q("s_cselect_b32 s%d, %s, s%d" % (sT3, f32(-1e30), sT0))
    for i in range(max(map(len, chains))):
        q.add([ch[i] for ch in chains if i < len(ch)])
    KSEQ = [1, 2, 0, 1, 2, 0, 1, 2, 0, 1, 0, 1, 0, 1, 0, 0]
    VSEQ = [1, 2, 0, 1, 2, 0, 1, 2, 0, 1, 2, 1, 2, 1, 2, 1]
    for tab, seq in ((sTABK, KSEQ), (sTABV, VSEQ)):
        q("s_mov_b32 s%d, 0x%x" % (tab, sum((seq[i + 1] - seq[i] + 2) << (2 * i) for i in range(15))))
    q("s_mov_b32 s%d, 15" % sCNT)
    if OPT["cprio"]:
        q("s_setprio %d" % OPT["cprio"])
    stamp(q, 3)
    if STAMPS == 6:
        q("s_memtime s[92:93]")
    q.finish(hist=ql.ins)

    def rescale(tag, SN):
        r = Block("the running max rises by more than the threshold: move to the true max (%s)" % tag)
        r("L_resc%s:" % tag)
        r("s_nop 15")
        for i in B:
            blk_max(r, SN + 8 * i, 1, 2)
            r("v_max_f32 v1, 0, v1")
            r("v_sub_f32 v2, 0, v1")
            r("v_exp_f32 v2, v2")
            for j in range(4):
                r("v_sub_f32 v%d, v%d, v1" % (NM[i] + j, NM[i] + j))
            for j in range(8):
                r("v_sub_f32 v%d, v%d, v1" % (SN + 8 * i + j, SN + 8 * i + j))
            for j in range(4):
                r("v_mul_f32 v%d, v%d, v2" % (vL[i] + j, vL[i] + j))
            for j in range(32):
                r("v_mul_f32 v%d, v%d, v2" % (ACC + 32 * i + j, ACC + 32 * i + j))
        r("s_nop 1")
        r("s_branch L_back%s" % tag)
        r.finish()
        rare.append(r)

    def epoch(b, par, kread, adv, tag, head=()):
        S, SN = (S0, S1) if par == 0 else (S1, S0)
        off = par * 8192
        vrd = [v_read(db, u, off) for db in range(8) for u in range(2)]
        kr = k_reads(off) if kread else ["\n".join(w_reads(m)) for m in range(8)]
        b("s_waitcnt lgkmcnt(0)")
        b("s_barrier")
        b.add(head)
        GA = "e0|t0 t1|e1|t2 c0|e2|t3 t4|e3|t5 c1|e4|t6 t7|e5|t8 c2|e6|t9 e7|t10 c3|t11 e8"
        GB = "t12 t13|t14 e9|t15 e10|c4 e11|e12|c5 e13|e14|c6 e15|k0 c7 m0 m1|k1 k2|k3 m2|k4 m3|k5 m4|k6 m5|k7 m6|m7 a|x a|a a"
        mx = max_tree(vTM, SN, 8 * nb) + [None] * 4
        adds = []
        if adv:
            adds = ["v_add_u32 v%d, s%d, v%d" % (aV + i, sDELV, aV + i) for i in range(8)] + \
                   ["v_add_u32 v%d, s%d, v%d" % (aK + i, sDEL, aK + i) for i in range(4)]

        def ins(tok):
            k, n = tok[0], int(tok[1:]) if len(tok) > 1 else 0
            if k == "a":
                return adds.pop(0) if adds else None
            if k == "x":
                return "v_cmp_lt_f32 vcc, s%d, v%d" % (sTHR, vTM)
            return {"e": lambda: blk(n >> 3, ex(S, n)), "t": lambda: vrd[n], "c": lambda: blk(n >> 2, cvt(S, n)),
                    "k": lambda: kr[n], "m": lambda: mx[n]}[k]()
        ga = [[ins(x) for x in g.split()] for g in GA.split("|")]
        if adv:
            for tab, dl, gi in ((sTABV, sDELV, 1), (sTABK, sDEL, 5)):
                ga[gi] += ["s_and_b32 s%d, s%d, 3" % (dl, tab), "s_lshr_b32 s%d, s%d, 2" % (tab, tab)]
                ga[gi + 2] += ["s_sub_u32 s%d, s%d, 2" % (dl, dl), "s_lshl_b32 s%d, s%d, 14" % (dl, dl)]
        weave(b, [blk(i, qk(SN, ks, kb, i, False)) for ks in range(4) for kb in range(2) for i in range(2)], ga)
        order = [pv(db, 0) for db in range(8)] + [sum_mfma(0)] + [blk(1, pv(db, 1)) for db in range(8)] + [blk(1, sum_mfma(1))]
        gb = [[ins(x) for x in g.split()] for g in GB.split("|")]
        gb[-1] += adds[:]
        b("s_waitcnt lgkmcnt(4)")
        weave(b, order[:4], gb[:4])
        b("s_waitcnt lgkmcnt(4)")
        weave(b, order[4:], gb[4:])
        b("s_cbranch_vccnz L_resc%s" % tag)
        b("L_back%s:" % tag)
        rescale(tag, SN)

    lp = mk("attention loop: tiles 0..29")
    if OPT["al"] >= 0 and nb == 2:
        lp(".p2align 6")
        for _ in range(OPT["al"]):
            lp("s_nop 0")
    lp("L_att%s:" % sfx)
    epoch(lp, 0, True, False, "a" + sfx)
    epoch(lp, 1, True, True, "b" + sfx,
          head=["s_nop 0"] * OPT["al2"] + ["s_cmp_lg_u32 s%d, 1" % sCNT, "s_cbranch_scc1 L_noinfo%s" % sfx,
                "buffer_load_dword v%d, v%d, s[%d:%d], 0 offen sc1" % (vINF, vINFO, SA, SA + 3), "L_noinfo%s:" % sfx])
    loop_end(lp, "L_att%s" % sfx)
    lp.finish(hist=q.ins)
    pad_hazards(lp.ins, hist=lp.ins, check_only=True, where="loop back edge")

    t = mk("tiles 30, 31; o = O / l leaves for the other heads of the group")
    if STAMPS == 6:
        t("s_memtime s[94:95]")
        t("s_waitcnt lgkmcnt(0)")
    stamp(t, 4)
    epoch(t, 0, False, False, "c" + sfx, head=["v_add_u32 v%d, %d, v%d" % (aO1 + nt, STG, aO2 + nt) for nt in range(4)])
    S = S1
    for i in range(8 * nb):
        t(ex(S, i))
    for j in range(4 * nb):
        t(cvt(S, j))
    for i in B:
        t(sum_mfma(i))
    t("v_readlane_b32 s%d, v%d, 0" % (sT0, vINF))
    t("v_mov_b32 v%d, 1" % NM[0])
    t("s_add_u32 s%d, s%d, 4096" % (sT2, sE1))
    t("v_cmp_eq_u32 vcc, s%d, v%d" % (sT0, vINF))
    t("s_nop 0")
    t("s_and_b32 s%d, vcc_lo, 15" % sT0)
    t("s_cmp_eq_u32 s%d, %d" % (sT0, 15 if OPT["fast"] else 16))
    t("s_cselect_b32 s%d, s%d, 0x%x" % (sE1F, sE1, OOB))
    t("s_add_u32 s%d, s%d, 4096" % (sE1F4, sE1F))
    if not OPT["single"]:
        for i in B:
            t("v_max_f32 v%d, %s, v%d" % (vL[i], f32(1e-30), vL[i]))
    for i in B:
        t("v_rcp_f32 v%d, v%d" % (vL[i], vL[i]))
    for i in B:
        for j in range(4):
            t("v_pk_mul_f32 %s, %s, %s op_sel_hi:[1,0]" % (vr(S + 8 * i + 2 * j, 2), vr(S + 8 * i + 2 * j, 2), vr(vL[i], 2)))
    for i in B:
        for j in range(16):
            a0 = ACC + 32 * i + 2 * j
            t("v_pk_mul_f32 %s, %s, %s op_sel_hi:[1,0]" % (vr(a0, 2), vr(a0, 2), vr(vL[i], 2)))
    for j in range(4 * nb):
        t(cvt(S, j))
    t("s_waitcnt lgkmcnt(0)")
    t("s_barrier")
    stamp(t, 5)
    cst(t, 2)
    vrd = [v_read(db, u, 8192) for db in range(8) for u in range(2)]

    def pack(ks):
        return [blk(i, "v_cvt_pk_bf16_f32 v%d, v%d, v%d" % (OB + 16 * i + 4 * ks + j, ACC + 32 * i + 8 * ks + 2 * j, ACC + 32 * i + 8 * ks + 2 * j + 1))
                for i in range(2) for j in range(4)]

    def swaps(ks):
        return ["v_permlane16_swap_b32 v%d, v%d" % (OB + 4 * ks + j, OB + 16 + 4 * ks + j) for j in range(4)]

    t.add(vrd[0:8])
    p0, p1, p2 = pack(0), pack(1), pack(2)
    g = [vrd[8:10], vrd[10:12], vrd[12:14], vrd[14:16], [], [], p0[0:2], p0[2:4], p0[4:6], p0[6:8], p1[0:2] + swaps(0)[0:1],
         p1[2:4] + swaps(0)[1:2], p1[4:6] + swaps(0)[2:3], p1[6:8] + swaps(0)[3:4], p2[0:3], p2[3:8]]
    weave(t, [blk(i, pv(db, i)) for db in range(8) for i in range(2)], g)
    t.add([publish(f, sE1F, sE1F4, OPT["st1"]) for f in (0, 1)])
    t.add(swaps(1))
    t.add([publish(f, sE1F, sE1F4, OPT["st1"]) for f in (2, 3)])
    t.add(swaps(2))
    t.add([x for x in pack(3) if x])
    t.add([publish(f, sE1F, sE1F4, OPT["st1"]) for f in (4, 5)])
    t.add(swaps(3))
    t.add([publish(f, sE1F, sE1F4, OPT["st1"]) for f in (6, 7)])
    if nb == 1:
        t("s_branch L_join")
    lgq, vmq = t.finish(hist=lp.ins, vmq=[{vINF}])
    assert not lgq or STAMPS
    return t, vmq


side = []
tA, vmqA = compute_path("d", 2, blocks)
if OPT["single"]:
    tB, vmqB = compute_path("s", 1, side)
    assert vmqA == vmqB

t = new("output projection")
t("L_join:")
t("s_cmp_lg_u32 s%d, 0x%x" % (sE1F, OOB))
t("s_cbranch_scc1 L_pubj")
t.add([uncounted(publish(f, sE1, sT2, "sc1")) for f in range(8)])
if OPT["alo"] >= 0:
    t(".p2align 3")
    for _ in range(OPT["alo"]):
        t("s_nop 0")
t("L_pubj:")


def o_mfma(b, m, extra=()):
    j, f, nt = SEQ[m]
    b("%s %s, %s, %s, %s" % (M32, vr(ACC + 16 * nt, 16), vr(wbuf(m), 4), vr(bfrag(j, f), 4),
                             "0" if (j == 0 and f == 0) else vr(ACC + 16 * nt, 16)))
    b.add(w_reads(m + 8))
    b.add(extra)


flag = "buffer_store_dword v%d, v%d, s[%d:%d], 0 offen" % (NM[0], vM1, SA, SA + 3)
pollld = "buffer_load_dword v%d, v%d, s[%d:%d], 0 offen sc1" % (vTM, vP1, SA, SA + 3)


def sib_load(p, f):
    return "buffer_load_dwordx4 %s, v%d, s[%d:%d], s%d offen offset:%d %s" % (vr(SBUF[p] + 4 * f, 4), vE, SA, SA + 3,
                                                                          sP if f < 4 else sP4, (f & 3) * 1024, OPT["ld1"])


def try_head(b, p):
    b("v_cmp_eq_u32 vcc, 1, v%d" % vTM)
    b("s_mov_b32 s%d, 0x%x" % (sP, OOB))
    b("s_xor_b32 s%d, s%d, %d" % (sT0, sE1, p << 15))
    b("s_bitcmp1_b32 vcc_lo, %d" % p)
    b("s_cselect_b32 s%d, s%d, s%d" % (sP, sT0, sP))
    b("s_add_u32 s%d, s%d, 4096" % (sP4, sP))


NEARLY = 4


def need_head(b, p):
    b("s_cmp_lg_u32 s%d, 0x%x" % (sP, OOB))
    b("s_cbranch_scc1 L_dec%dd" % p)
    b("s_mov_b32 s%d, 0x%x" % (sCNT, SPIN))
    b("L_dec%d:" % p)
    b(pollld)
    b("s_waitcnt vmcnt(0)")
    try_head(b, p)
    b("s_sub_u32 s%d, s%d, 1" % (sCNT, sCNT))
    b("s_cbranch_scc1 L_dec%dl" % p)
    b("s_cmp_eq_u32 s%d, 0x%x" % (sP, OOB))
    b("s_cbranch_scc1 L_dec%d" % p)
    b("L_dec%dl:" % p)
    b.add([sib_load(p, f) for f in range(8 if p == 3 else NEARLY)])
    b("L_dec%dd:" % p)


def send(j):
    a0 = ACC + 8 * j
    return (["s_xor_b32 s%d, s%d, %d" % (sT0, sG, j), "s_lshl_b32 s%d, s%d, 15" % (sT0, sT0),
             "s_add_u32 s%d, s%d, s%d" % (sT0, sT0, sE2P), "s_add_u32 s%d, s%d, %d" % (sT0, sT0, j * 4096)],
            ["v_cvt_pk_bf16_f32 v%d, v%d, v%d" % (a0 + i, a0 + 2 * i, a0 + 2 * i + 1) for i in range(4)],
            ["buffer_store_dwordx4 %s, v%d, s[%d:%d], s%d offen sc1" % (vr(a0, 4), vE, SA, SA + 3, sT0)])


def fetch(j):
    return ["s_add_u32 s%d, s%d, %d" % (sT3, sE2C, j * 4096),
            "buffer_load_dwordx4 %s, v%d, s[%d:%d], s%d offen sc1" % (vr(PB + 4 * (j - 1), 4), vE, SA, SA + 3, sT3)]


extra = {m: [] for m in range(128)}
vM2, vTM2 = NM[1], NM[1] + 1
poll2 = "buffer_load_dword v%%d, v%d, s[%d:%d], 0 offen sc1" % (vP2, SA, SA + 3)
extra[1] += ["s_lshl_b32 s%d, s%d, 7" % (sT0, sWAVE), "s_add_u32 s%d, s%d, 1024" % (sT0, sT0),
             "v_lshl_add_u32 v%d, v0, 2, s%d" % (vP2, sT0)]
extra[2] += ["v_lshlrev_b32 v1, 2, v0", "v_xor_b32 v1, s%d, v1" % sWGL, "v_lshl_add_u32 v%d, v1, 11, v%d" % (vM2, vP2)]
extra[3] += ["s_lshl_b32 s%d, s%d, 11" % (sT0, sWGL), "v_add_u32 v%d, s%d, v%d" % (vP2, sT0, vP2), "v_subrev_u32 v1, 1, v0"]
extra[4] += ["v_cmp_gt_u32 vcc, 7, v1", "v_bfrev_b32 v1, 1", "s_nop 0"]
extra[5] += ["v_cndmask_b32 v%d, v1, v%d, vcc" % (vP2, vP2), "v_cndmask_b32 v%d, v1, v%d, vcc" % (vM2, vM2)]
extra[6] += ["s_mov_b32 s%d, 0x3f80" % sLO, "s_mov_b32 s%d, 0x3f800000" % sHI]
late = Block()
late("s_lshl_b32 s%d, s%d, %d" % (sT0, sHN, WSH))
late("s_and_b32 s%d, s%d, %d" % (sT1, sG, (1 << (WSH - 5)) - 1))
late("s_lshl_b32 s%d, s%d, 5" % (sT1, sT1))
late("s_add_u32 s%d, s%d, s%d" % (sOFF, sT0, sT1))
if WSH < 8:
    late("s_lshr_b32 s%d, s%d, %d" % (sT1, sG, WSH - 5))
    late("s_lshl_b32 s%d, s%d, %d" % (sT1, sT1, WSH + 2))
    late("s_add_u32 s%d, s%d, s%d" % (sOFF, sOFF, sT1))
late("s_mul_i32 s%d, s%d, 114688" % (sT0, sB))
srd(late, SB, sOUT, sT0, "114688")
late("s_lshl_b32 s%d, s%d, 2" % (sT0, sB))
late("s_add_u32 s%d, s%d, s%d" % (sT0, sT0, sHN))
late("s_lshl_b32 s%d, s%d, 18" % (sT0, sT0))
late("s_lshl_b32 s%d, s%d, 10" % (sT1, sWAVE))
late("s_add_u32 s%d, s%d, s%d" % (sT0, sT0, sT1))
late("s_add_u32 s%d, s%d, %d" % (sE2P, sT0, E2_OFF))
late("s_lshl_b32 s%d, s%d, 15" % (sT1, sG))
late("s_add_u32 s%d, s%d, s%d" % (sE2C, sE2P, sT1))
li = [i.text for i in late.ins]
k_ = li.index([x for x in li if x.startswith("s_mul_i32")][0])
extra[7] += li[:k_]
extra[8] += li[k_:k_ + 5]
extra[9] += li[k_ + 5:k_ + 9]
extra[10] += li[k_ + 9:]
for p, base in ((1, STG + 32768), (2, XREG), (3, 0)):
    for nt in range(4):
        extra[32 * p - 14 + nt].append("v_add_u32 v%d, %d, v%d" % (AREG[p] + nt, base, aO2 + nt) if base else
                                       "v_mov_b32 v%d, v%d" % (AREG[p] + nt, aO2 + nt))
for i, nt in enumerate((1, 2, 3)):
    base = 104 + 8 * i
    for k_, j in enumerate((2 * nt, 2 * nt + 1)):
        for d_, part in enumerate(send(j)):
            extra[base + 2 + d_ + 3 * k_] += part
for p in (1, 2):
    for f in range(8):
        extra[32 * p - 16 + 2 * f].append(uncounted(sib_load(p, f)) if f < NEARLY else sib_load(p, f))
for f in range(8):
    extra[72 + 2 * f].append(uncounted(sib_load(3, f)))
extra[38].append(pollld)
extra[62].append(pollld)
t(pollld)
stamp(t, 6)
cst(t, 3)
for m in range(128):
    if m == OPT["fat"]:
        t("s_barrier")
    if m == OPT["flagat"]:
        cst(t, 4)
        t("s_waitcnt vmcnt(0)")
        cst(t, 5)
        t("s_cmp_lg_u32 s%d, 0x%x" % (sE1F, OOB))
        t("s_cbranch_scc1 L_flgf")
        t(flag + " sc1")
        t("s_branch L_flgj")
        t("L_flgf:")
        t.add([uncounted(flag + OPT["ffl"])])
        t("L_flgj:")
        stamp(t, 8)
    if OPT["fine"] and m in (33, 41, 48):
        t("s_memtime s[%d:%d]" % ({33: 70, 41: 72, 48: 74}[m], {33: 71, 41: 73, 48: 75}[m]))
    if m in (16, 48, 72):
        t("s_waitcnt vmcnt(%d)" % (1 if m == 16 else 0))
        try_head(t, {16: 1, 48: 2, 72: 3}[m])
    if m in (24, 56, 88):
        need_head(t, m // 32 + 1)
        cst(t, 6 + m // 32)
        if m == 24:
            stamp(t, 7)
        if m == 88:
            stamp(t, 9)
    o_mfma(t, m, extra[m])
stamp(t, 10)
cst(t, 9)
for part in send(1):
    t.add(part)
t(poll2 % vTM)
t("s_waitcnt vmcnt(1)")
t("buffer_store_dword v%d, v%d, s[%d:%d], 0 offen sc1" % (NM[0], vM2, SA, SA + 3))
stamp(t, 11)
cst(t, 10)
t(poll2 % vTM2)
t("s_mov_b32 s%d, 0x%x" % (sCNT, SPIN))
t("s_waitcnt vmcnt(2)")
t("L_poll2:")
t("v_cmp_eq_u32 vcc, 1, v%d" % vTM)
t("s_cmp_eq_u32 vcc_lo, 0xfe")
t("s_cbranch_scc1 L_poll2e")
t.add([uncounted(poll2 % vTM)])
t("s_waitcnt vmcnt(1)")
t.add([uncounted("v_cmp_eq_u32 vcc, 1, v%d" % vTM2)])
t("s_nop 0")
t("s_cmp_eq_u32 vcc_lo, 0xfe")
t("s_cbranch_scc1 L_poll2e")
t.add([uncounted(poll2 % vTM2)])
t("s_sub_u32 s%d, s%d, 1" % (sCNT, sCNT))
t("s_waitcnt vmcnt(1)")
t("s_cbranch_scc0 L_poll2")
t("L_poll2e:")
stamp(t, 12)
cst(t, 11)
for j in range(1, 8):
    t.add(fetch(j))
for j in range(1, 8):
    for i in range(4):
        p = PB + 4 * (j - 1) + i
        t("v_dot2_f32_bf16 v%d, v%d, s%d, v%d" % (ACC + 2 * i, p, sLO, ACC + 2 * i))
        t("v_dot2_f32_bf16 v%d, v%d, s%d, v%d" % (ACC + 2 * i + 1, p, sHI, ACC + 2 * i + 1))
t("s_nop 2")
for j in range(4):
    t("v_cvt_pk_bf16_f32 v%d, v%d, v%d" % (ACC + 8 + j, ACC + 2 * j, ACC + 2 * j + 1))
t("buffer_store_dwordx4 %s, v%d, s[%d:%d], s%d offen" % (vr(ACC + 8, 4), vOUT, SB, SB + 3, sOFF))
if STAMPS:
    cst(t, 12)
    t("s_waitcnt vmcnt(0)")
    cst(t, 13)
    stamp(t, 13)
    if STAMPS not in (6, 10):
        t("s_memtime s[94:95]")
    t("s_waitcnt lgkmcnt(0)")
    t("s_sub_u32 s%d, s94, s92" % (sSTAMP + 28))
    t("s_getreg_b32 s%d, hwreg(HW_REG_XCC_ID, 0, 4)" % (sSTAMP + 30))
    t("s_getreg_b32 s%d, hwreg(HW_REG_HW_ID)" % sT0)
    t("s_lshl_b32 s%d, s%d, 4" % (sT0, sT0))
    t("s_or_b32 s%d, s%d, s%d" % (sSTAMP + 30, sSTAMP + 30, sT0))
    for i in range(16):
        t("v_mov_b32 v%d, s%d" % (ACC + 16 + i, sSTAMP + 2 * i))
    t("s_lshl_b32 s%d, s2, 2" % sT0)
    t("s_add_u32 s%d, s%d, s%d" % (sT0, sT0, sWAVE))
    t("s_lshl_b32 s%d, s%d, 6" % (sT0, sT0))
    t("s_add_u32 s%d, s%d, %d" % (sT0, sT0, ST_OFF))
    t("v_mov_b32 v1, 0")
    t("s_mov_b64 exec, 1")
    for i in range(4):
        t("buffer_store_dwordx4 %s, v1, s[%d:%d], s%d offen offset:%d" % (vr(ACC + 16 + 4 * i, 4), SA, SA + 3, sT0, 16 * i))
t("L_end:")
t("s_endpgm")
t.finish(hist=tA.ins, vmq=vmqA)
if OPT["single"]:
    pad_hazards(t.ins[:60], hist=tB.ins, check_only=True, where="join from the one-block path")
blocks += side
blocks.append(Block("seldom taken"))
blocks[-1]("L_codeend:")
blocks += rare

hdr = open("standalone__mha_block_cached__near_ridge.s.ref").read().split("; Override launch")[0]
out = [hdr.rstrip()]
out.append("""; Fused Q projection + attention + output projection, one workgroup (8 waves) per (batch, head), one per CU.
;   over the eight groups (partial sums exchanged through d_ws).""")
out.append("; @launch grid=(256,1,1) block=(512,1,1) lds=163840")
out.append('.amdgcn_target "amdgcn-amd-amdhsa--gfx950"')
out.append(".text")
out.append(".globl " + KNAME)
out.append(".p2align 8")
out.append(".type %s,@function" % KNAME)
out.append(KNAME + ":")
for b in blocks:
    out.append("; ---- %s ----" % b.name)
    out.append(b.text())
out.append(".p2align 8")
out.append(".fill 64, 4, 0xbf800000")
out.append('.section .rodata,"a"')
out.append(".p2align 6")
out.append(".amdhsa_kernel " + KNAME)
out.append("""  .amdhsa_next_free_vgpr 256
  .amdhsa_next_free_sgpr 102
  .amdhsa_accum_offset 256
  .amdhsa_group_segment_fixed_size 0
  .amdhsa_kernarg_size 64
  .amdhsa_user_sgpr_count 2
  .amdhsa_user_sgpr_kernarg_segment_ptr 1
  .amdhsa_system_sgpr_workgroup_id_x 1
.end_amdhsa_kernel""")
print("\n".join(out))
```
